```python
import torch

def _softmax(x, axis=-1):
    return torch.softmax(x, dim=axis)
def _gelu(x):
    return torch.nn.functional.gelu(x, approximate="tanh")
def _silu(x):
    return torch.nn.functional.silu(x)
def _sigmoid(x):
    return torch.sigmoid(x)
def _layernorm(x, axis=-1, eps=1e-5):
    m = x.mean(dim=axis, keepdim=True)
    v = x.var(dim=axis, keepdim=True, unbiased=False)
    return (x - m) / torch.sqrt(v + eps)
def _scatter_add(tgt, idx, src, axis=0):
    return tgt.clone().index_add_(axis, idx, src)
def _segment_sum(src, seg, n):
    out = torch.zeros((n,) + src.shape[1:], dtype=src.dtype)
    return out.index_add_(0, seg, src)
def _pad(x, pw):
    flat = tuple(v for pair in reversed(pw) for v in pair)
    return torch.nn.functional.pad(x, flat)

kernel_name = 'sequential_preLN__grouped_kv_mqa__geglu_ffn__prompt'

def setup_inputs():

    _w = (lambda a: (lambda t: t.to(torch.bfloat16) if t.is_floating_point() else t)(torch.as_tensor(a)))
    def _A_setup():
        B, S, D, H = 1, 2048, 512, 32
        Dh = D // H
        return {
            "x": _w((lambda *s: torch.randn(*s, dtype=torch.bfloat16) * 0.05)(B, S, D)),
            "wq": _w((lambda *s: torch.randn(*s, dtype=torch.bfloat16) * 0.05)(D, H * Dh)),
            "wk": _w((lambda *s: torch.randn(*s, dtype=torch.bfloat16) * 0.05)(D, Dh)),
            "wv": _w((lambda *s: torch.randn(*s, dtype=torch.bfloat16) * 0.05)(D, Dh)),
            "wo": _w((lambda *s: torch.randn(*s, dtype=torch.bfloat16) * 0.05)(H * Dh, D)),
        }
    _A_in = _A_setup()

    def _B_setup():
        B, S, D, F = 1, 2048, 512, 1376
        return {
            "x": _w((lambda *s: torch.randn(*s, dtype=torch.bfloat16) * 0.05)(B, S, D)),
            "w_gate": _w((lambda *s: torch.randn(*s, dtype=torch.bfloat16) * 0.05)(D, F)),
            "w_up": _w((lambda *s: torch.randn(*s, dtype=torch.bfloat16) * 0.05)(D, F)),
            "w_down": _w((lambda *s: torch.randn(*s, dtype=torch.bfloat16) * 0.05)(F, D)),
        }
    _B_in = _B_setup()

    return {
        "A_x": _A_in["x"],
        "A_wq": _A_in["wq"],
        "A_wk": _A_in["wk"],
        "A_wv": _A_in["wv"],
        "A_wo": _A_in["wo"],
        "B_x": _B_in["x"],
        "B_w_gate": _B_in["w_gate"],
        "B_w_up": _B_in["w_up"],
        "B_w_down": _B_in["w_down"],
    }

def reference(A_x, A_wq, A_wk, A_wv, A_wo, B_x, B_w_gate, B_w_up, B_w_down):
    def _A_ref(x, wq, wk, wv, wo):
        B, S, D = x.shape
        H = 32
        Dh = D // H
        q = (lambda x, *d: x.permute(*d))((x @ wq).reshape(B, S, H, Dh), 0, 2, 1, 3)
        k = x @ wk
        v = x @ wv
        scores = torch.einsum("bhqd,bkd->bhqk", q, k) * (Dh ** -0.5)
        p = _softmax(scores, axis=-1)
        o = torch.einsum("bhqk,bkd->bhqd", p, v)
        return (lambda x, *d: x.permute(*d))(o, 0, 2, 1, 3).reshape(B, S, H * Dh) @ wo

    def _B_ref(x, w_gate, w_up, w_down):
        return (_gelu(x @ w_gate) * (x @ w_up)) @ w_down

    x = A_x
    h = x + _A_ref(_layernorm(x, axis=-1), A_wq, A_wk, A_wv, A_wo)
    h2 = h + _B_ref(_layernorm(h, axis=-1), B_w_gate, B_w_up, B_w_down)
    return h2
```

```python
import re, sys

TRANS = ("v_exp_f32","v_log_f32","v_rcp_f32","v_rsq_f32","v_sqrt_f32","v_sin_f32","v_cos_f32","v_rcp_iflag_f32",
         "v_exp_f16","v_rcp_f16","v_rsq_f16","v_sqrt_f16","v_log_f16")

def regs_of(tok):
    tok = tok.strip()
    tok = tok.lstrip('-')
    if tok.startswith('abs(') or tok.startswith('|'):
        tok = tok.replace('abs(','').replace(')','').replace('|','')
    m = re.fullmatch(r'([vas])\[(\d+):(\d+)\]', tok)
    if m:
        return [(m.group(1), i) for i in range(int(m.group(2)), int(m.group(3))+1)]
    m = re.fullmatch(r'([vas])(\d+)', tok)
    if m:
        return [(m.group(1), int(m.group(2)))]
    if tok == 'vcc': return [('s','vcc_lo'),('s','vcc_hi')]
    if tok in ('vcc_lo','vcc_hi'): return [('s',tok)]
    if tok == 'exec': return [('s','exec_lo'),('s','exec_hi')]
    if tok in ('exec_lo','exec_hi'): return [('s',tok)]
    if tok == 'm0': return [('s','m0')]
    if tok == 'scc': return [('s','scc')]
    return []

class Ins:
    __slots__=('text','op','ops','mods','dst','src','kind','line','label','target','srcA','srcB','srcC','passes','comment','nop')
    def __init__(self, text):
        self.text=text; self.label=None; self.target=None
        self.dst=[]; self.src=[]; self.kind='other'; self.srcA=[]; self.srcB=[]; self.srcC=[]; self.passes=0; self.nop=0
        t=text.split(';')[0].strip()
        if t.endswith(':'):
            self.label=t[:-1]; self.kind='label'; self.op=''; self.ops=[]; self.mods=''; return
        if t.startswith('.') or t=='':
            self.kind='directive'; self.op=t; self.ops=[]; self.mods=''; return
        parts=t.split(None,1)
        self.op=parts[0]
        rest=parts[1] if len(parts)>1 else ''
        ops=[]; cur=''; depth=0
        for ch in rest:
            if ch in '[(': depth+=1
            if ch in '])': depth-=1
            if ch==',' and depth==0:
                ops.append(cur.strip()); cur=''
            else: cur+=ch
        if cur.strip(): ops.append(cur.strip())
        mods=''
        if ops:
            last=ops[-1].split()
            ops[-1]=last[0] if last else ''
            mods=' '.join(last[1:])
        self.ops=ops; self.mods=mods
        self.classify()
    def classify(s):
        op=s.op; ops=s.ops; R=regs_of
        base=re.sub(r'_(e32|e64|dpp|sdwa)$','',op)
        if op.startswith('v_mfma'):
            s.kind='mfma'
            s.dst=R(ops[0]); s.srcA=R(ops[1]); s.srcB=R(ops[2]); s.srcC=R(ops[3])
            s.src=s.srcA+s.srcB+s.srcC
            s.passes = 8 if '32x32' in op else 4
        elif op.startswith('v_'):
            s.kind='valu'
            if base in TRANS: s.kind='trans'
            if base.startswith('v_cmp'):
                s.dst=R(ops[0]); s.src=sum((R(o) for o in ops[1:]),[])
                if base.startswith('v_cmpx'): s.dst+=R('exec')
            elif base in ('v_add_co_u32','v_sub_co_u32','v_subrev_co_u32'):
                s.dst=R(ops[0])+R(ops[1]); s.src=sum((R(o) for o in ops[2:]),[])
            elif base in ('v_addc_co_u32','v_subb_co_u32'):
                s.dst=R(ops[0])+R(ops[1]); s.src=sum((R(o) for o in ops[2:]),[])
            elif base.startswith('v_permlane') and 'swap' in base:
                s.dst=R(ops[0])+R(ops[1]); s.src=R(ops[0])+R(ops[1]); s.kind='permlane'
            elif base in ('v_readfirstlane_b32','v_readlane_b32'):
                s.dst=R(ops[0]); s.src=sum((R(o) for o in ops[1:]),[]); s.kind='readlane'
            elif base=='v_writelane_b32':
                s.dst=R(ops[0]); s.src=sum((R(o) for o in ops[1:]),[])+R(ops[0])
            elif base in ('v_fmac_f32','v_dot2c_f32_bf16','v_mac_f32','v_pk_fmac_f16','v_fmac_f16'):
                s.dst=R(ops[0]); s.src=sum((R(o) for o in ops),[])
            else:
                s.dst=R(ops[0]); s.src=sum((R(o) for o in ops[1:]),[])
                if base=='v_cndmask_b32' and len(ops)==3: s.src+=R('vcc')
            if op.endswith('_dpp') or 'quad_perm' in s.mods or 'row_' in s.mods or 'wave_' in s.mods:
                s.kind='dpp'
                s.src+=s.dst
        elif op.startswith('ds_'):
            s.kind='ds'
            if op.startswith('ds_read') or op.startswith('ds_bpermute') or op.startswith('ds_permute') or op.startswith('ds_swizzle') or '_rtn' in op:
                s.dst=R(ops[0]); s.src=sum((R(o) for o in ops[1:]),[])
            else:
                s.src=sum((R(o) for o in ops),[])
        elif op.startswith('buffer_') or op.startswith('global_'):
            s.kind='vmem'
            islds = ('lds' in s.mods.split()) or ('_lds_' in op)
            if op in ('buffer_inv','buffer_wbl2'):
                s.kind='vmem'; return
            if islds:
                s.src=sum((R(o) for o in ops),[])+R('m0'); s.kind='dma'
            elif 'load' in op:
                s.dst=R(ops[0]); s.src=sum((R(o) for o in ops[1:]),[])
            elif 'store' in op:
                s.src=sum((R(o) for o in ops),[]); s.kind='vstore'
            elif 'atomic' in op:
                ret = 'sc0' in s.mods.split()
                if op.startswith('global_') and ret:
                    s.dst=R(ops[0]); s.src=sum((R(o) for o in ops[1:]),[])
                elif op.startswith('buffer_') and ret:
                    s.dst=R(ops[0]); s.src=sum((R(o) for o in ops),[])
                else:
                    s.src=sum((R(o) for o in ops),[])
        elif op.startswith('s_'):
            s.kind='salu'
            if op=='s_nop': s.kind='nop'; s.nop=int(ops[0],0)+1
            elif op=='s_waitcnt': s.kind='waitcnt'
            elif op=='s_barrier': s.kind='barrier'
            elif op=='s_endpgm': s.kind='end'
            elif op=='s_branch': s.kind='branch'; s.target=ops[0]
            elif op.startswith('s_cbranch'):
                s.kind='cbranch'; s.target=ops[0]
                if 'scc' in op: s.src=R('scc')
                elif 'exec' in op: s.src=R('exec')
                else: s.src=R('vcc')
            elif op.startswith('s_load') or op in ('s_memtime','s_memrealtime'):
                s.kind='smem'; s.dst=R(ops[0]); s.src=sum((R(o) for o in ops[1:]),[])
            elif op.startswith('s_cmp') or op.startswith('s_bitcmp'):
                s.dst=R('scc'); s.src=sum((R(o) for o in ops),[])
            elif op in ('s_sleep','s_setprio','s_setreg_b32','s_setreg_imm32_b32','s_sendmsg','s_inst_prefetch'):
                s.src=sum((R(o) for o in ops),[])
            elif 'saveexec' in op:
                s.dst=R(ops[0])+R('exec')+R('scc'); s.src=R(ops[1])+R('exec')
            else:
                s.dst=R(ops[0]); s.src=sum((R(o) for o in ops[1:]),[])
                if op.startswith('s_cselect') or op.startswith('s_addc') or op.startswith('s_subb') or op.startswith('s_cmov'): s.src+=R('scc')
                if op in ('s_addk_i32','s_mulk_i32','s_cmov_b32','s_cmov_b64'): s.src+=s.dst
                if not (op.startswith('s_mov') or op.startswith('s_getpc') or op.startswith('s_getreg') or op.startswith('s_cselect') or op.startswith('s_mul') or op.startswith('s_cmov')):
                    s.dst=s.dst+R('scc')
        else:
            raise ValueError("unknown instr "+s.text)

VALUK=('valu','trans','dpp','permlane','readlane')
def isv(r): return r[0] in ('v','a')
def iss(r): return r[0]=='s'

def need(p, c):
    n=0
    pd=set(p.dst); cs=set(c.src); cd=set(c.dst)
    if p.kind in VALUK:
        pv={r for r in pd if isv(r)}; ps={r for r in pd if iss(r)}
        if c.kind=='mfma' and pv & cs: n=max(n,2)
        if p.kind=='trans' and (pv & (cs)) : n=max(n,1)
        if c.kind=='permlane' and pv & cs: n=max(n,2)
        if c.kind=='dpp' and pv & cs: n=max(n,2)
        if c.kind=='readlane' and pv & cs: n=max(n,1)
        if ps:
            if c.kind in VALUK+('mfma',) and ps & cs: n=max(n,2)
            if c.kind=='readlane' and len(c.ops)>2 and ps & set(regs_of(c.ops[2])): n=max(n,4)
            if c.kind in ('vmem','vstore','dma') and ps & cs: n=max(n,5)
            if c.kind in ('salu','cbranch','smem') and ps & cs: n=max(n,1)
            if ('s','exec_lo') in ps and c.kind=='mfma': n=max(n,4)
            if ('s','exec_lo') in ps and c.kind in ('dpp',): n=max(n,5)
            if ('s','exec_lo') in ps and c.kind in ('permlane','readlane'): n=max(n,4)
    if p.kind in VALUK and p.op.startswith('v_dot'):
        pv={r for r in pd if isv(r)}
        if pv & (cs|cd):
            same = (re.sub(r'_(e32|e64)$','',c.op)==re.sub(r'_(e32|e64)$','',p.op))
            if not same: n=max(n,3)
            else:
                ab=set()
                if 'dot2c' in c.op: ab=set(sum((regs_of(o) for o in c.ops[1:]),[]))
                else: ab=set(sum((regs_of(o) for o in c.ops[1:3]),[]))
                if pv & ab: n=max(n,3)
    if p.kind=='mfma':
        P=p.passes
        big=12 if P==8 else 8
        ov=10 if P==8 else 6
        war=7 if P==8 else 3
        if c.kind=='mfma':
            if pd & (set(c.srcA)|set(c.srcB)): n=max(n,big)
            if pd & set(c.srcC):
                if not (c.srcC==p.dst and c.passes==P): n=max(n,ov)
            if pd & cd and not (c.dst==p.dst and c.passes==P): n=max(n,ov)
        elif c.kind in VALUK:
            if pd & (cs|cd): n=max(n,big)
            if set(p.srcC) & cd: n=max(n,war)
        elif c.kind in ('ds','vmem','vstore','dma'):
            if pd & (cs|cd): n=max(n,big)
            if set(p.srcC) & cd: n=max(n,war)
    if p.kind=='salu' and ('s','m0') in pd and c.kind=='dma': n=max(n,1)
    if p.kind=='vstore' and ('x4' in p.op or 'x3' in p.op):
        data=set(regs_of(p.ops[0])) if p.op.startswith('buffer_') else set(regs_of(p.ops[1]))
        if data & cd:
            n=max(n, 2 if c.kind in VALUK+('mfma',) else 1)
    if p.kind=='ds' and ('b128' in p.op or 'b96' in p.op) and p.op.startswith('ds_write'):
        pass
    return n

class Prog:
    def __init__(self): self.lines=[]
    def __call__(self, text):
        for l in text.split('\n'):
            if l.strip(): self.lines.append(l.strip())
        return self
    def label(self, n): self.lines.append(n+':')
    def finalize(self, check_waits=True, name=''):
        ins=[Ins(l) for l in self.lines]
        MAXD=13
        total_nops=0
        changed=True; it=0
        while changed:
            changed=False; it+=1
            labels={x.label:i for i,x in enumerate(ins) if x.kind=='label'}
            preds={}
            for i,x in enumerate(ins):
                if x.target is not None and x.target in labels:
                    preds.setdefault(labels[x.target],[]).append(i)
            def real(x): return x.kind not in ('label','directive')
            i=0
            out=[]
            for i,c in enumerate(ins):
                if real(c) and c.kind not in ('nop','waitcnt','barrier','branch','end'):
                    worst=0
                    stack=[(i-1,0)]
                    seen=set()
                    while stack:
                        j,d=stack.pop()
                        while j>=0 and d<MAXD:
                            if (j,d) in seen: break
                            seen.add((j,d))
                            p=ins[j]
                            if p.kind=='label':
                                for b in preds.get(j,[]): stack.append((b,d))
                                k=j-1
                                while k>=0 and not real(ins[k]) : k-=1
                                if k>=0 and ins[k].kind in ('branch','end'): break
                                j-=1; continue
                            if p.kind=='directive': j-=1; continue
                            nn=need(p,c)
                            if nn>d: worst=max(worst,nn-d)
                            d+= p.nop if p.kind=='nop' else 1
                            j-=1
                    if worst>0:
                        out.append(Ins(f"s_nop {worst-1}   ; hazard"))
                        total_nops+=1
                        changed=True
                out.append(c)
            ins=out
            if it>8: raise RuntimeError("hazard fix did not converge")
        if check_waits: check_waitcnt(ins, name)
        self.nops=total_nops
        return ins

def parse_wait(x):
    vm=None; lg=None
    t=x.text.split(';')[0]
    m=re.search(r'vmcnt\((\d+)\)',t); vm=int(m.group(1)) if m else None
    m=re.search(r'lgkmcnt\((\d+)\)',t); lg=int(m.group(1)) if m else None
    return vm,lg

def check_waitcnt(ins, name=''):
    labels={x.label:i for i,x in enumerate(ins) if x.kind=='label'}
    errors=set()
    visits={}
    stack=[(0,(),())]
    steps=0
    while stack:
        i,vm,lg=stack.pop()
        vm=list(vm); lg=list(lg)
        while i<len(ins):
            steps+=1
            if steps>5_000_000:
                print("waitcheck: too many steps",file=sys.stderr); return
            x=ins[i]
            if x.kind=='label':
                key=(i,tuple(vm),tuple(lg))
                if key in visits: break
                visits[key]=1
                cnt=visits.get(('n',i),0)
                if cnt>=6: break
                visits[('n',i)]=cnt+1
                i+=1; continue
            if x.kind=='directive': i+=1; continue
            if x.kind=='waitcnt':
                a,b=parse_wait(x)
                if a is not None:
                    while len(vm)>a: vm.pop(0)
                if b is not None:
                    if any(k=='smem' for k,_ in lg) and b>0:
                        pass
                    else:
                        while len(lg)>b: lg.pop(0)
                i+=1; continue
            touched=set(x.src)|set(x.dst)
            if 'nowaitcheck' in x.text: touched=set()
            for d in vm:
                if touched & set(d): errors.add((i,'vm',x.text))
            for k,d in lg:
                if touched & set(d): errors.add((i,'lgkm',x.text))
            if x.kind in ('vmem','vstore','dma'):
                vm.append(tuple(x.dst))
                if len(vm)>63: vm.pop(0)
            elif x.kind=='ds':
                lg.append(('ds',tuple(x.dst)))
                if len(lg)>15 and not any(k=='smem' for k,_ in lg): lg.pop(0)
            elif x.kind=='smem':
                lg.append(('smem',tuple(x.dst)))
            if x.kind=='end': break
            if x.kind=='branch':
                i=labels[x.target]; continue
            if x.kind=='cbranch' and x.target in labels:
                stack.append((labels[x.target],tuple(vm),tuple(lg)))
            i+=1
    if errors:
        for e in sorted(errors)[:40]:
            print(f"WAITCNT ERROR [{name}] ins#{e[0]} {e[1]}: {e[2]}",file=sys.stderr)
        raise RuntimeError("waitcnt check failed")

def render(ins):
    out=[]
    for x in ins:
        if x.kind=='label': out.append(x.text)
        else: out.append('    '+x.text)
    return '\n'.join(out)+'\n'
```

```python
QF  = 0x000000
KF  = 0x200000
VF  = 0x210000
KM  = 0x230000
FLG = 0x238000
OF  = 0x300000
HF  = 0x500000
HS  = 0x700000
AF  = 0x800000
W1F = 0x1000000
WOF = 0x1400000
WDF = 0x1500000
PROF= 0x1800000
WS_USED = 0x1A00000
```

```python
import sys
from asm import Prog, render
import layout as L

KNAME='sequential_preLN__grouped_kv_mqa__geglu_ffn__prompt_kernel'
QSCALE=1.4426950408889634/4.0
import struct
def f2u(x): return struct.unpack('<I',struct.pack('<f',x))[0]
def hx(x): return '0x%08x'%(x & 0xffffffff)

S_TB,S_HG,S_W='s4','s5','s6'
SRD_WS='s[8:11]'; SRD_X='s[12:15]'; SRD_A='s[16:19]'; SRD_B='s[20:23]'; SRD_O='s[24:27]'
P_X,P_WQ,P_WK,P_WV,P_WO,P_WG,P_WU,P_WD,P_OUT,P_WS,P_DBG=32,34,36,38,40,44,46,48,50,52,54

def srd(p, d, ptr, size):
    p(f"s_mov_b32 s{d}, s{ptr}")
    p(f"s_mov_b32 s{d+1}, s{ptr+1}")
    p(f"s_mov_b32 s{d+2}, {hx(size)}")
    p(f"s_mov_b32 s{d+3}, 0x20000")

def csel(p,d,a,b):
    p(f"s_mov_b32 {d}, {b}"); p(f"s_cmov_b32 {d}, {a}")

def prologue(p, end):
    p(f"s_cmp_ge_u32 s2, 256")
    p(f"s_cbranch_scc1 {end}")
    p("s_load_dwordx4 s[32:35], s[0:1], 0")
    p("s_load_dwordx4 s[36:39], s[0:1], 16")
    p("s_load_dwordx2 s[40:41], s[0:1], 32")
    p("s_load_dwordx4 s[44:47], s[0:1], 48")
    p("s_load_dwordx4 s[48:51], s[0:1], 64")
    p("s_load_dwordx2 s[52:53], s[0:1], 88")
    p("s_load_dwordx2 s[54:55], s[0:1], 80")
    p("v_lshrrev_b32 v1, 6, v0")
    p("v_and_b32 v0, 63, v0")
    p("v_readfirstlane_b32 s6, v1")
    p("s_and_b32 s3, s2, 7")
    p("s_lshr_b32 s7, s2, 3")
    p("s_lshr_b32 s4, s7, 3")
    p("s_lshl_b32 s3, s3, 2")
    p("s_add_u32 s4, s4, s3")
    p("s_and_b32 s5, s7, 7")
    p("s_waitcnt lgkmcnt(0)")
    srd(p,8,P_WS,L.WS_USED)

XH0=0; XH1=33792; WQ=67584; WK=XH1; WV=XH1+16384+128
A_LDS=133120

def ln_tile(p, X, vaddr, off):
    S0,S1,Q0,Q1='v80','v81','v82','v83'
    p(f"v_mov_b32 {S0}, 0"); p(f"v_mov_b32 {S1}, 0"); p(f"v_mov_b32 {Q0}, 0"); p(f"v_mov_b32 {Q1}, 0")
    for i in range(0,32,2):
        p(f"v_dot2c_f32_bf16 {S0}, s28, v{X+i}")
        p(f"v_dot2c_f32_bf16 {Q0}, v{X+i}, v{X+i}")
        p(f"v_dot2c_f32_bf16 {S1}, s28, v{X+i+1}")
        p(f"v_dot2c_f32_bf16 {Q1}, v{X+i+1}, v{X+i+1}")
    p(f"v_add_f32 {S0}, {S0}, {S1}")
    p(f"v_add_f32 {Q0}, {Q0}, {Q1}")
    for d in ("quad_perm:[1,0,3,2]","quad_perm:[2,3,0,1]","row_half_mirror"):
        p(f"v_add_f32_dpp {S0}, {S0}, {S0} {d} row_mask:0xf bank_mask:0xf")
        p(f"v_add_f32_dpp {Q0}, {Q0}, {Q0} {d} row_mask:0xf bank_mask:0xf")
    p(f"v_mul_f32 {S0}, {hx(f2u(1/512))}, {S0}")
    p(f"v_mul_f32 {Q0}, {hx(f2u(1/512))}, {Q0}")
    p(f"v_fma_f32 {Q0}, -{S0}, {S0}, {Q0}")
    p(f"v_max_f32 {Q0}, 0, {Q0}")
    p(f"v_add_f32 {Q0}, {hx(f2u(1e-5))}, {Q0}")
    p(f"v_rsq_f32 {Q0}, {Q0}")
    p(f"v_mul_f32 {S0}, {S0}, {Q0}")
    p(f"v_sub_f32 {S0}, 0, {S0}")
    for cb in range(8):
        for i in range(4):
            r=X+4*cb+i; t0=84+2*i; t1=85+2*i
            p(f"v_lshlrev_b32 v{t0}, 16, v{r}")
            p(f"v_and_b32 v{t1}, 0xffff0000, v{r}")
        for i in range(4):
            t0=84+2*i; t1=85+2*i
            p(f"v_fma_f32 v{t0}, v{t0}, {Q0}, {S0}")
            p(f"v_fma_f32 v{t1}, v{t1}, {Q0}, {S0}")
        for i in range(4):
            r=X+4*cb+i; t0=84+2*i; t1=85+2*i
            p(f"v_cvt_pk_bf16_f32 v{r}, v{t0}, v{t1}")
        p(f"ds_write_b128 {vaddr}, v[{X+4*cb}:{X+4*cb+3}] offset:{off+cb*4224}")

def gemm_lds(p, nsteps, readA, readB, mfma, rps, depth=3, nbuf=4):
    for s in range(min(depth,nsteps)):
        readA(s,s%nbuf); readB(s,s%nbuf)
    for s in range(nsteps):
        if s+depth<nsteps:
            readA(s+depth,(s+depth)%nbuf); readB(s+depth,(s+depth)%nbuf)
        rem=min(depth,nsteps-1-s)
        p(f"s_waitcnt lgkmcnt({rem*rps})")
        mfma(s,s%nbuf)

def phase_a(p):
    p("s_mov_b32 s28, 0x3f803f80")
    srd(p,12,P_X,2048*1024)
    srd(p,16,P_WQ,512*1024)
    p("s_and_b32 s3, s5, 1")
    p("s_lshl_b32 s29, s4, 1")
    p("s_add_u32 s29, s29, s3")
    p("v_lshrrev_b32 v1, 3, v0")
    p("v_and_b32 v10, 7, v0")
    p("s_lshl_b32 s3, s29, 5")
    p("s_lshl_b32 s7, s6, 3")
    p("s_add_u32 s3, s3, s7")
    p("v_add_u32 v2, s3, v1")
    p("v_lshlrev_b32 v2, 10, v2")
    p("v_lshl_add_u32 v2, v10, 4, v2")
    p("v_xor_b32 v3, 0x8000, v2")
    p("v_lshlrev_b32 v9, 4, v0")
    p("s_cmp_ge_u32 s5, 2")
    p("s_cbranch_scc1 A_nokvdma")
    p("s_cmp_lt_u32 s6, 2")
    p(f"s_cselect_b32 s20, s{P_WK}, s{P_WV}")
    p(f"s_cselect_b32 s21, s{P_WK+1}, s{P_WV+1}")
    p("s_mov_b32 s22, 16384")
    p("s_mov_b32 s23, 0x20000")
    csel(p,'s30',WK,WV)
    p("s_and_b32 s3, s6, 1")
    p("s_lshl_b32 s3, s3, 13")
    p("s_add_u32 s30, s30, s3")
    for i in range(8):
        p(f"s_add_u32 m0, s30, {i*1024}")
        p(f"s_add_u32 s31, s3, {i*1024}")
        p(f"buffer_load_dwordx4 v9, {SRD_B}, s31 offen lds")
    p.label("A_nokvdma")
    for cb in range(8):
        p(f"buffer_load_dwordx4 v[{16+4*cb}:{19+4*cb}], v2, {SRD_X}, 0 offen offset:{cb*128}")
    for cb in range(8):
        p(f"buffer_load_dwordx4 v[{48+4*cb}:{51+4*cb}], v3, {SRD_X}, 0 offen offset:{cb*128}")
    p("v_lshrrev_b32 v11, 4, v0")
    p("v_and_b32 v11, 1, v11")
    p("v_lshlrev_b32 v11, 2, v11")
    p("v_xor_b32 v11, v11, v10")
    p("v_lshlrev_b32 v11, 4, v11")
    p("v_lshl_add_u32 v4, v1, 10, v11")
    p("s_lshl_b32 s3, s5, 7")
    p("v_add_u32 v4, s3, v4")
    p("s_lshl_b32 s31, s6, 17")
    p("s_lshl_b32 s30, s6, 14")
    p(f"s_add_u32 s30, s30, {WQ}")
    for i in range(16):
        p(f"s_add_u32 m0, s30, {i*1024}")
        p(f"buffer_load_dwordx4 v4, {SRD_A}, s31 offen lds")
        if i<15: p(f"s_add_u32 s31, s31, 8192")
    p("v_lshrrev_b32 v11, 1, v10")
    p("v_mul_u32_u24 v11, 1056, v11")
    p("v_and_b32 v12, 1, v10")
    p("v_mul_u32_u24 v12, 528, v12")
    p("v_add_u32 v5, v11, v12")
    p("s_lshl_b32 s3, s6, 3")
    p("v_add_u32 v11, s3, v1")
    p("v_lshl_add_u32 v5, v11, 4, v5")
    p("v_lshrrev_b32 v11, 5, v0")
    p("v_mul_u32_u24 v11, 528, v11")
    p("v_and_b32 v12, 31, v0")
    p("v_lshl_add_u32 v6, v12, 4, v11")
    p("v_lshrrev_b32 v11, 4, v0")
    p("v_bfe_u32 v12, v0, 2, 2")
    p("v_and_b32 v13, 3, v0")
    p("v_lshrrev_b32 v14, 1, v11")
    p("v_lshl_add_u32 v14, v14, 3, v12")
    p("v_and_b32 v15, 1, v11")
    p("v_and_b32 v96, 1, v13")
    p("v_lshlrev_b32 v96, 4, v96")
    p("v_lshrrev_b32 v97, 1, v13")
    p("v_lshl_add_u32 v96, v97, 3, v96")
    p(f"v_mul_u32_u24 v97, {WV-WK}, v15")
    p("v_lshl_add_u32 v97, v14, 5, v97")
    p("v_add_u32 v97, v97, v96")
    p(f"v_add_u32 v8, {WK}, v97")
    p("v_and_b32 v97, 1, v13")
    p("v_lshl_add_u32 v97, v15, 1, v97")
    p("s_and_b32 s3, s6, 1")
    p("s_lshl_b32 s3, s3, 2")
    p("v_add_u32 v97, s3, v97")
    p("v_lshrrev_b32 v98, 1, v12")
    p("v_lshlrev_b32 v98, 2, v98")
    p("v_xor_b32 v97, v97, v98")
    p("v_lshlrev_b32 v97, 4, v97")
    p("v_lshrrev_b32 v98, 1, v13")
    p("v_lshl_add_u32 v97, v98, 3, v97")
    p("v_lshl_add_u32 v97, v14, 7, v97")
    p(f"v_add_u32 v7, {WQ}, v97")
    p("v_lshl_add_u32 v13, v14, 7, v96")
    p("s_waitcnt vmcnt(24)")
    ln_tile(p,16,'v5',XH0)
    p("s_waitcnt lgkmcnt(0)")
    p("s_barrier")
    p("s_cmp_ge_u32 s5, 2")
    p("s_cbranch_scc1 A_kvdone")
    p("s_cmp_ge_u32 s6, 2")
    p("s_cbranch_scc1 A_kvdone")
    def rA(s,b):
        p(f"ds_read_b64_tr_b16 v[{96+4*b}:{97+4*b}], v8 offset:{s*512}")
        p(f"ds_read_b64_tr_b16 v[{98+4*b}:{99+4*b}], v8 offset:{s*512+128}")
    def rB(s,b):
        p(f"ds_read_b128 v[{112+4*b}:{115+4*b}], v6 offset:{XH0+s*1056}")
    p("s_cmp_eq_u32 s6, 1")
    p("s_cbranch_scc1 A_vwave")
    gemm_lds(p,32,rA,rB,lambda s,b: p(f"v_mfma_f32_32x32x16_bf16 v[128:143], v[{96+4*b}:{99+4*b}], v[{112+4*b}:{115+4*b}], {'0' if s==0 else 'v[128:143]'}"),3)
    p("s_nop 7");
    p("v_mul_f32 v84, v128, v128")
    for j in range(1,8): p(f"v_fmac_f32 v84, v{128+j}, v{128+j}")
    for j in range(4): p(f"v_cvt_pk_bf16_f32 v{88+j}, v{128+2*j}, v{129+2*j}")
    p("s_lshl_b32 s3, s29, 10")
    p(f"s_add_u32 s3, s3, {L.KF}")
    p(f"buffer_store_dwordx4 v[88:91], v9, {SRD_WS}, s3 offen")
    p("v_mov_b32 v85, v84")
    p("v_permlane32_swap_b32 v84, v85")
    p("v_add_f32 v84, v84, v85")
    for d in ("row_ror:8","row_ror:4","row_ror:2","row_ror:1"):
        p(f"v_max_f32_dpp v84, v84, v84 {d} row_mask:0xf bank_mask:0xf")
    p("v_readlane_b32 s3, v84, 0")
    p("v_readlane_b32 s7, v84, 16")
    p("s_max_u32 s3, s3, s7")
    p("v_mov_b32 v84, s3")
    p("s_lshl_b32 s7, s29, 2")
    p(f"s_add_u32 s7, s7, {L.KM}")
    p("v_mov_b32 v85, 0")
    p("s_mov_b64 exec, 1")
    p(f"buffer_store_dword v84, v85, {SRD_WS}, s7 offen")
    p("s_mov_b64 exec, -1")
    p("s_branch A_kvdone")
    p.label("A_vwave")
    gemm_lds(p,32,rA,rB,lambda s,b: p(f"v_mfma_f32_32x32x16_bf16 v[128:143], v[{112+4*b}:{115+4*b}], v[{96+4*b}:{99+4*b}], {'0' if s==0 else 'v[128:143]'}"),3)
    for j in range(8): p(f"v_cvt_pk_bf16_f32 v{88+j}, v{128+2*j}, v{129+2*j}")
    p("v_lshrrev_b32 v84, 5, v0")
    p("v_and_b32 v85, 15, v0")
    p("v_lshl_add_u32 v84, v84, 4, v85")
    p("v_lshlrev_b32 v84, 4, v84")
    p("s_lshl_b32 s3, s29, 10")
    p(f"s_add_u32 s3, s3, {L.VF}")
    p("s_mov_b32 exec_lo, 0xffff0000")
    p("s_mov_b32 exec_hi, 0xffff0000")
    p(f"buffer_store_dwordx4 v[88:91], v84, {SRD_WS}, s3 offen")
    p(f"buffer_store_dwordx4 v[92:95], v84, {SRD_WS}, s3 offen offset:512")
    p("s_mov_b64 exec, -1")
    p.label("A_kvdone")
    p("s_waitcnt lgkmcnt(0)")
    p("s_barrier")
    p("s_waitcnt vmcnt(16)")
    ln_tile(p,48,'v5',XH1)
    p("s_waitcnt vmcnt(0) lgkmcnt(0)")
    p("s_barrier")
    p("s_lshr_b32 s3, s6, 1")
    p(f"s_mul_i32 s7, s3, {XH1}")
    p("v_add_u32 v6, s7, v6")
    def rA(s,b):
        p(f"ds_read_b64_tr_b16 v[{96+4*b}:{97+4*b}], v7 offset:{s*2048}")
        p(f"ds_read_b64_tr_b16 v[{98+4*b}:{99+4*b}], v7 offset:{s*2048+512}")
    def rB(s,b):
        p(f"ds_read_b128 v[{112+4*b}:{115+4*b}], v6 offset:{s*1056}")
    gemm_lds(p,32,rA,rB,lambda s,b: p(f"v_mfma_f32_32x32x16_bf16 v[128:143], v[{96+4*b}:{99+4*b}], v[{112+4*b}:{115+4*b}], {'0' if s==0 else 'v[128:143]'}"),3)
    p(f"s_mov_b32 s7, {hx(f2u(QSCALE))}")
    for j in range(16): p(f"v_mul_f32 v{128+j}, s7, v{128+j}")
    for j in range(8): p(f"v_cvt_pk_bf16_f32 v{88+j}, v{128+2*j}, v{129+2*j}")
    p("s_xor_b32 s3, s29, s3")
    p("s_lshl_b32 s3, s3, 5")
    p("s_lshl_b32 s7, s5, 2")
    p("s_add_u32 s3, s3, s7")
    p("s_and_b32 s7, s6, 1")
    p("s_lshl_b32 s7, s7, 1")
    p("s_add_u32 s3, s3, s7")
    p("s_lshl_b32 s3, s3, 10")
    p(f"s_add_u32 s3, s3, {L.QF}")
    p(f"buffer_store_dwordx4 v[88:91], v9, {SRD_WS}, s3 offen")
    p(f"buffer_store_dwordx4 v[92:95], v9, {SRD_WS}, s3 offen offset:1024")
    p("s_barrier")
    repack(p)

def repack(p):
    p("s_lshl_b32 s3, s6, 8")
    p("s_add_u32 s3, s3, s2")
    p("s_lshl_b32 s30, s6, 13")
    p(f"s_add_u32 s30, s30, {WQ}")
    p("s_cmp_ge_u32 s3, 592")
    p("s_cbranch_scc1 R_done")
    p("s_cmp_ge_u32 s3, 352")
    p("s_cbranch_scc1 R_notw1")
    srd(p,16,P_WG,512*2752)
    srd(p,20,P_WU,512*2752)
    p("s_lshr_b32 s29, s3, 4")
    p("s_and_b32 s31, s3, 15")
    p("v_mul_u32_u24 v2, 2752, v1")
    p("v_lshl_add_u32 v2, v10, 4, v2")
    p(f"s_mul_i32 s7, s31, {32*2752}")
    p("s_lshl_b32 s3, s29, 7")
    p("s_add_u32 s7, s7, s3")
    for i in range(4):
        p(f"s_add_u32 m0, s30, {i*1024}")
        p(f"buffer_load_dwordx4 v2, {SRD_A}, s7 offen lds")
        p(f"s_add_u32 m0, s30, {4096+i*1024}")
        p(f"buffer_load_dwordx4 v2, {SRD_B}, s7 offen lds")
        if i<3: p(f"s_add_u32 s7, s7, {8*2752}")
    p("v_lshlrev_b32 v2, 12, v15")
    p("v_add_u32 v2, v2, v13")
    p("v_add_u32 v2, s30, v2")
    p("s_waitcnt vmcnt(0)")
    for uu in range(4):
        for ss in range(2):
            b=16+4*(uu*2+ss)
            p(f"ds_read_b64_tr_b16 v[{b}:{b+1}], v2 offset:{ss*2048+uu*32}")
            p(f"ds_read_b64_tr_b16 v[{b+2}:{b+3}], v2 offset:{ss*2048+512+uu*32}")
    p("s_lshl_b32 s3, s29, 7")
    p("s_lshl_b32 s7, s31, 1")
    p("s_add_u32 s3, s3, s7")
    p("s_lshl_b32 s3, s3, 10")
    p(f"s_add_u32 s3, s3, {L.W1F}")
    p("s_waitcnt lgkmcnt(0)")
    for uu in range(4):
        if uu==2:
            p("s_cmp_eq_u32 s29, 21")
            p("s_cbranch_scc1 R_done")
        for ss in range(2):
            b=16+4*(uu*2+ss)
            p(f"s_add_u32 s7, s3, {uu*32768+ss*1024}")
            p(f"buffer_store_dwordx4 v[{b}:{b+3}], v9, {SRD_WS}, s7 offen")
    p("s_branch R_done")
    p.label("R_notw1")
    p("s_cmp_ge_u32 s3, 528")
    p(f"s_cselect_b32 s16, s{P_WO}, s{P_WD}")
    p(f"s_cselect_b32 s17, s{P_WO+1}, s{P_WD+1}")
    csel(p,'s18',512*1024,1376*1024)
    p("s_mov_b32 s19, 0x20000")
    csel(p,'s7',528,352)
    csel(p,'s20',L.WOF,L.WDF)
    csel(p,'s21',32,86)
    p("s_sub_u32 s3, s3, s7")
    p("s_and_b32 s29, s3, 7")
    p("s_lshr_b32 s31, s3, 3")
    p("v_lshlrev_b32 v2, 10, v1")
    p("v_lshl_add_u32 v2, v10, 4, v2")
    p("s_lshl_b32 s7, s31, 16")
    p("s_lshl_b32 s3, s29, 7")
    p("s_add_u32 s7, s7, s3")
    for i in range(8):
        p(f"s_add_u32 m0, s30, {i*1024}")
        p(f"buffer_load_dwordx4 v2, {SRD_A}, s7 offen lds")
        if i<7: p(f"s_add_u32 s7, s7, 8192")
    p("v_lshlrev_b32 v2, 5, v15")
    p("v_add_u32 v2, v2, v13")
    p("v_add_u32 v2, s30, v2")
    p("s_waitcnt vmcnt(0)")
    for cc in range(2):
        for ss in range(4):
            b=16+4*(cc*4+ss)
            p(f"ds_read_b64_tr_b16 v[{b}:{b+1}], v2 offset:{ss*2048+cc*64}")
            p(f"ds_read_b64_tr_b16 v[{b+2}:{b+3}], v2 offset:{ss*2048+512+cc*64}")
    p("s_lshl_b32 s3, s29, 1")
    p("s_mul_i32 s3, s3, s21")
    p("s_lshl_b32 s7, s31, 2")
    p("s_add_u32 s3, s3, s7")
    p("s_lshl_b32 s3, s3, 10")
    p("s_add_u32 s3, s3, s20")
    p("s_lshl_b32 s21, s21, 10")
    p("s_lshl_b32 s31, s31, 2")
    p("s_waitcnt lgkmcnt(0)")
    for ss in range(4):
        if ss==2:
            p("s_cmp_eq_u32 s31, 84")
            p("s_cbranch_scc1 R_done")
        for cc in range(2):
            b=16+4*(cc*4+ss)
            p(f"s_add_u32 s7, s3, {ss*1024}")
            if cc: p("s_add_u32 s7, s7, s21")
            p(f"buffer_store_dwordx4 v[{b}:{b+3}], v9, {SRD_WS}, s7 offen")
    p.label("R_done")

QL=0
OP=8192
MX=OP+8*2304
MF=MX+4096
ATT_LDS=MF+2048
KA=0; VA=64
SB=[16,32]; PB=[48,56]; OB=[64,80]; QB=[96,100]; CB=104; TB=120
THRESH=40.0

def att_tile(p,t,ps,extra,pv2=True):
    S=SB[t%2]; Sn=SB[(t+1)%2]; P=PB[t%2]; Pp=PB[(t+1)%2]
    O=OB[ps]; Op=OB[ps] if t>0 else OB[1-ps]
    Qn=QB[ps] if t<15 else QB[1-ps]
    kn=(t+1)%16; tp=(t-1)%16
    I=[f"v_mfma_f32_32x32x16_bf16 v[{Sn}:{Sn+15}], a[{KA+4*kn}:{KA+4*kn+3}], v[{Qn}:{Qn+3}], v[{CB}:{CB+15}]"]
    PV2=f"v_mfma_f32_32x32x16_bf16 v[{Op}:{Op+15}], a[{VA+8*tp+4}:{VA+8*tp+7}], v[{Pp+4}:{Pp+7}], v[{Op}:{Op+15}]"+(" ; nowaitcheck" if t==0 else "")
    PV1=f"v_mfma_f32_32x32x16_bf16 v[{O}:{O+15}], a[{VA+8*t}:{VA+8*t+3}], v[{P}:{P+3}], {'0' if t==0 else f'v[{O}:{O+15}]'}"
    e=lambda i: f"v_exp_f32 v{S+i}, v{S+i}"
    c=lambda j: f"v_cvt_pk_bf16_f32 v{P+j}, v{S+2*j}, v{S+2*j+1}"
    I+=[e(0),e(1),PV2,e(2),e(3),c(0),e(4),e(5),c(1),e(6),e(7),c(2),e(8),e(9),c(3),e(10),e(11),PV1,c(4),e(12),e(13),c(5),e(14),e(15),c(6),c(7)]
    for pos,txt in sorted(extra,key=lambda z:-z[0]): I.insert(pos,txt)
    for x in I: p(x)

def o_store(p,O,sq):
    p(f"v_rcp_f32 v{TB}, v{O+8}")
    for j in range(8): p(f"v_mul_f32 v{O+j}, v{O+j}, v{TB}")
    for j in range(4): p(f"v_cvt_pk_bf16_f32 v{TB+2+j}, v{O+2*j}, v{O+2*j+1}")
    p(f"s_lshr_b32 s3, {sq}, 2")
    p("s_lshl_b32 s7, s4, 1")
    p("s_add_u32 s3, s3, s7")
    p("s_lshl_b32 s3, s3, 5")
    p("s_lshl_b32 s7, s5, 2")
    p("s_add_u32 s3, s3, s7")
    p(f"s_and_b32 s7, {sq}, 3")
    p("s_add_u32 s3, s3, s7")
    p("s_lshl_b32 s3, s3, 10")
    p(f"s_add_u32 s3, s3, {L.OF}")
    p(f"buffer_store_dwordx4 v[{TB+2}:{TB+5}], v9, {SRD_WS}, s3 offen")

def slot_addr(p, sq):
    p(f"s_mul_i32 s3, {sq}, 2304")
    p(f"s_add_u32 s3, s3, {OP}")
    p("v_add_u32 v130, s3, v9")
    p("s_add_u32 s3, s3, 2048")
    p("v_lshl_add_u32 v131, v0, 2, s3")
def slot_read(p):
    p(f"ds_read_b128 v[{TB}:{TB+3}], v130")
    p(f"ds_read_b128 v[{TB+4}:{TB+7}], v130 offset:1024")
    p(f"ds_read_b32 v{TB+8}, v131")
def slot_write(p,O):
    p(f"ds_write_b128 v130, v[{O}:{O+3}]")
    p(f"ds_write_b128 v130, v[{O+4}:{O+7}] offset:1024")
    p(f"ds_write_b32 v131, v{O+8}")

class Cap:
    def __init__(s): s.l=[]
    def __call__(s,t):
        for x in t.split('\n'):
            if x.strip(): s.l.append(x.strip())
    def label(s,n): s.l.append(n+':')

def att_main(p, sfx, slow, waits=True):
    p(f"s_mov_b32 s60, 0")
    p.label(f"L_att{sfx}")
    p("s_add_u32 s3, s60, s6")
    p("s_lshl_b32 s3, s3, 1")
    p("s_and_b32 s61, s3, 7")
    p("s_add_u32 s62, s61, 1")
    p("s_add_u32 s63, s61, 2")
    p("s_and_b32 s63, s63, 7")
    p("s_add_u32 s64, s61, 7")
    p("s_and_b32 s64, s64, 7")
    p("s_waitcnt lgkmcnt(0)")
    p("s_barrier")
    for ps in range(2):
        for t in range(16):
            ex=[]; pre=Cap(); post=Cap()
            if ps==0 and waits and t%2==0:
                n=44-3*(t+1) if t<14 else 0
                pre(f"s_waitcnt vmcnt({max(n,0)})")
            if t==0:
                slot_addr(pre, 's64' if ps==0 else 's61')
                slot_read(pre)
            if t==2:
                O=OB[1-ps]
                lab=f"{sfx}_{ps}"
                post("s_waitcnt lgkmcnt(0)")
                if ps==0:
                    post("s_cmp_eq_u32 s60, 0"); post(f"s_cbranch_scc1 L_epi_done{lab}")
                    post("s_cmp_eq_u32 s60, 1"); post(f"s_cbranch_scc1 L_epi_noadd{lab}")
                else:
                    post("s_cmp_eq_u32 s60, 0"); post(f"s_cbranch_scc1 L_epi_noadd{lab}")
                for j in range(9): post(f"v_add_f32 v{O+j}, v{O+j}, v{TB+j}")
                post.label(f"L_epi_noadd{lab}")
                if ps==1:
                    post("s_cmp_eq_u32 s60, 3"); post(f"s_cbranch_scc1 L_epi_fin{lab}")
                slot_write(post,O)
                if ps==1:
                    post(f"s_branch L_epi_done{lab}")
                    post.label(f"L_epi_fin{lab}")
                    o_store(post,O,'s61')
                post.label(f"L_epi_done{lab}")
            if t==4:
                q='s62' if ps==0 else 's63'
                Qd=QB[1-ps]
                post(f"s_lshl_b32 s3, {q}, 10")
                post("v_add_u32 v132, s3, v9")
                post(f"ds_read_b128 v[{Qd}:{Qd+3}], v132 offset:{QL}")
                if slow:
                    post(f"s_lshl_b32 s3, {q}, 8")
                    post("v_lshl_add_u32 v132, v0, 2, s3")
                    post(f"ds_read_b32 v133, v132 offset:{MF}")
            if t==14:
                pre("s_waitcnt lgkmcnt(0)")
                if slow:
                    for j in range(16): post(f"v_mov_b32 v{CB+j}, v133")
            for x in pre.l: p(x)
            att_tile(p,t,ps,ex)
            for x in post.l: p(x)
    p("s_add_u32 s60, s60, 1")
    p("s_cmp_lt_u32 s60, 4")
    p(f"s_cbranch_scc1 L_att{sfx}")
    p(f"v_mfma_f32_32x32x16_bf16 v[{OB[1]}:{OB[1]+15}], a[{VA+8*15+4}:{VA+8*15+7}], v[{PB[1]+4}:{PB[1]+7}], v[{OB[1]}:{OB[1]+15}]")
    p("s_waitcnt lgkmcnt(0)")
    p("s_barrier")
    slot_addr(p,'s62'); slot_read(p)
    p("s_waitcnt lgkmcnt(0)")
    for j in range(9): p(f"v_add_f32 v{OB[1]+j}, v{OB[1]+j}, v{TB+j}")
    o_store(p,OB[1],'s62')

def attention(p):
    p("v_lshlrev_b32 v9, 4, v0")
    p("s_lshl_b32 s29, s6, 1")
    p("s_lshr_b32 s3, s29, 2")
    p("s_lshl_b32 s7, s4, 1")
    p("s_add_u32 s3, s3, s7")
    p("s_lshl_b32 s3, s3, 5")
    p("s_lshl_b32 s7, s5, 2")
    p("s_add_u32 s3, s3, s7")
    p("s_and_b32 s7, s29, 3")
    p("s_add_u32 s3, s3, s7")
    p("s_lshl_b32 s3, s3, 10")
    p(f"s_add_u32 s3, s3, {L.QF}")
    p(f"buffer_load_dwordx4 v[16:19], v9, {SRD_WS}, s3 offen")
    p(f"buffer_load_dwordx4 v[20:23], v9, {SRD_WS}, s3 offen offset:1024")
    p("v_lshlrev_b32 v2, 2, v0")
    p(f"s_mov_b32 s3, {L.KM}")
    p(f"buffer_load_dword v24, v2, {SRD_WS}, s3 offen")
    p("v_mov_b32 v3, 0x3f803f80")
    for i in range(128): p(f"v_accvgpr_write_b32 a{VA+i}, v3")
    p("v_lshrrev_b32 v4, 5, v0")
    p("v_and_b32 v5, 15, v0")
    p("v_lshl_add_u32 v4, v4, 4, v5")
    p("v_lshlrev_b32 v4, 4, v4")
    p("s_lshl_b32 s30, s6, 14")
    p(f"s_add_u32 s31, s30, {L.VF}")
    p(f"s_add_u32 s30, s30, {L.KF}")
    def ldK(j):
        p(f"s_add_u32 s3, s30, {j*1024}")
        p(f"buffer_load_dwordx4 a[{KA+4*j}:{KA+4*j+3}], v9, {SRD_WS}, s3 offen")
    ldK(0)
    for j in range(16):
        if j<15: ldK(j+1)
        p("s_mov_b32 exec_lo, 0xffff"); p("s_mov_b32 exec_hi, 0xffff")
        p(f"s_add_u32 s3, s31, {j*1024}")
        p(f"buffer_load_dwordx4 a[{VA+8*j}:{VA+8*j+3}], v4, {SRD_WS}, s3 offen")
        p(f"buffer_load_dwordx4 a[{VA+8*j+4}:{VA+8*j+7}], v4, {SRD_WS}, s3 offen offset:512")
        p("s_mov_b64 exec, -1")
    p("s_waitcnt vmcnt(48)")
    p("s_lshl_b32 s3, s29, 10")
    p("v_add_u32 v6, s3, v9")
    p(f"ds_write_b128 v6, v[16:19] offset:{QL}")
    p(f"ds_write_b128 v6, v[20:23] offset:{QL+1024}")
    for d in ("row_ror:8","row_ror:4","row_ror:2","row_ror:1"):
        p(f"v_max_f32_dpp v24, v24, v24 {d} row_mask:0xf bank_mask:0xf")
    p("v_readlane_b32 s3, v24, 0"); p("v_readlane_b32 s7, v24, 16"); p("s_max_u32 s3, s3, s7")
    p("v_readlane_b32 s7, v24, 32"); p("s_max_u32 s3, s3, s7")
    p("v_readlane_b32 s7, v24, 48"); p("s_max_u32 s65, s3, s7")
    p("s_waitcnt lgkmcnt(0)")
    p("s_barrier")
    for qi in range(8): p(f"ds_read_b128 v[{16+4*qi}:{19+4*qi}], v9 offset:{QL+qi*1024}")
    for qi in range(8):
        p(f"s_waitcnt lgkmcnt({7-qi})")
        p(f"v_mov_b32 v{48+qi}, 0")
        for j in range(4): p(f"v_dot2c_f32_bf16 v{48+qi}, v{16+4*qi+j}, v{16+4*qi+j}")
    for qi in range(8):
        p(f"v_mov_b32 v{56+qi}, v{48+qi}")
    for qi in range(8):
        p(f"v_permlane32_swap_b32 v{48+qi}, v{56+qi}")
    for qi in range(8):
        p(f"v_add_f32 v{48+qi}, v{48+qi}, v{56+qi}")
    p("v_max3_f32 v48, v48, v49, v50"); p("v_max3_f32 v51, v51, v52, v53"); p("v_max3_f32 v48, v48, v54, v55"); p("v_max_f32 v48, v48, v51")
    p("v_mul_f32 v48, s65, v48")
    p("v_sqrt_f32 v48, v48")
    p(f"v_mul_f32 v48, {hx(f2u(1.02))}, v48")
    p(f"v_cmp_nge_f32 vcc, {hx(f2u(THRESH))}, v48")
    p("v_sub_f32 v49, 0, v48")
    for j in range(16): p(f"v_mov_b32 v{CB+j}, v49")
    p("s_cmp_lg_u64 vcc, 0")
    p("s_cbranch_scc1 L_slow")
    def first(p):
        p("s_lshl_b32 s3, s6, 1"); p("s_and_b32 s3, s3, 7"); p("s_lshl_b32 s3, s3, 10")
        p("v_add_u32 v132, s3, v9")
        p(f"ds_read_b128 v[{QB[0]}:{QB[0]+3}], v132 offset:{QL}")
        p("s_waitcnt vmcnt(47) lgkmcnt(0)")
        p(f"v_mfma_f32_32x32x16_bf16 v[{SB[0]}:{SB[0]+15}], a[{KA}:{KA+3}], v[{QB[0]}:{QB[0]+3}], v[{CB}:{CB+15}]")
    first(p)
    att_main(p,'f',False)
    p("s_branch L_att_done")
    p.label("L_slow")
    p("s_waitcnt vmcnt(0)")
    p("s_mov_b32 s60, 0")
    p.label("L_mx")
    p("s_lshl_b32 s3, s60, 10")
    p("v_add_u32 v132, s3, v9")
    p(f"ds_read_b128 v[{QB[0]}:{QB[0]+3}], v132 offset:{QL}")
    p("v_mov_b32 v133, 0xff800000")
    p("s_waitcnt lgkmcnt(0)")
    p(f"v_mfma_f32_32x32x16_bf16 v[{SB[0]}:{SB[0]+15}], a[{KA}:{KA+3}], v[{QB[0]}:{QB[0]+3}], 0")
    for t in range(16):
        S=SB[t%2]; Sn=SB[(t+1)%2]
        if t<15: p(f"v_mfma_f32_32x32x16_bf16 v[{Sn}:{Sn+15}], a[{KA+4*(t+1)}:{KA+4*(t+1)+3}], v[{QB[0]}:{QB[0]+3}], 0")
        for j in range(8): p(f"v_max3_f32 v133, v{S+2*j}, v{S+2*j+1}, v133")
    p("v_mov_b32 v134, v133")
    p("v_permlane32_swap_b32 v133, v134")
    p("v_max_f32 v133, v133, v134")
    p("s_lshl_b32 s3, s60, 9"); p("s_lshl_b32 s7, s6, 7"); p("s_add_u32 s3, s3, s7")
    p("v_and_b32 v134, 31, v0")
    p("v_lshl_add_u32 v134, v134, 2, s3")
    p(f"ds_write_b32 v134, v133 offset:{MX}")
    p("s_add_u32 s60, s60, 1"); p("s_cmp_lt_u32 s60, 8"); p("s_cbranch_scc1 L_mx")
    p("s_waitcnt lgkmcnt(0)")
    p("s_barrier")
    p("v_and_b32 v134, 31, v0"); p("v_lshlrev_b32 v134, 2, v134")
    p("s_lshl_b32 s3, s6, 10"); p("v_add_u32 v134, s3, v134")
    for qq in range(2):
        for ww in range(4): p(f"ds_read_b32 v{16+4*qq+ww}, v134 offset:{MX+qq*512+ww*128}")
    p("s_waitcnt lgkmcnt(0)")
    p("s_lshl_b32 s3, s6, 9")
    p("v_lshl_add_u32 v134, v0, 2, s3")
    for qq in range(2):
        b=16+4*qq
        p(f"v_max3_f32 v{b}, v{b}, v{b+1}, v{b+2}"); p(f"v_max_f32 v{b}, v{b}, v{b+3}"); p(f"v_sub_f32 v{b}, 0, v{b}")
        p(f"ds_write_b32 v134, v{b} offset:{MF+qq*256}")
    p("s_waitcnt lgkmcnt(0)")
    p("s_barrier")
    p("s_lshl_b32 s3, s6, 1"); p("s_and_b32 s3, s3, 7"); p("s_lshl_b32 s3, s3, 8")
    p("v_lshl_add_u32 v132, v0, 2, s3")
    p(f"ds_read_b32 v133, v132 offset:{MF}")
    p("s_waitcnt lgkmcnt(0)")
    for j in range(16): p(f"v_mov_b32 v{CB+j}, v133")
    first(p)
    att_main(p,'s',True,waits=False)
    p.label("L_att_done")

RED=0
def ksplit_reduce(p, ACC):
    p("s_lshl_b32 s3, s6, 14")
    p("v_add_u32 v2, s3, v9")
    for tl in range(4):
        for q in range(4):
            p(f"ds_write_b128 v2, v[{ACC[tl]+4*q}:{ACC[tl]+4*q+3}] offset:{RED+tl*4096+q*1024}")
    p("s_waitcnt lgkmcnt(0)")
    p("s_barrier")
    p("s_lshl_b32 s3, s6, 12")
    p("v_add_u32 v2, s3, v9")
    for sw in range(4):
        for q in range(4):
            b=16+16*sw+4*q
            p(f"ds_read_b128 v[{b}:{b+3}], v2 offset:{RED+sw*16384+q*1024}")
    for sw in range(1,4):
        p(f"s_waitcnt lgkmcnt({12-4*sw})")
        for j in range(16): p(f"v_add_f32 v{16+j}, v{16+j}, v{16+16*sw+j}")

def wo_phase(p):
    p("v_lshlrev_b32 v9, 4, v0")
    srd(p,12,P_X,2048*1024)
    p("s_lshr_b32 s28, s6, 1"); p("s_lshl_b32 s3, s4, 1"); p("s_add_u32 s28, s28, s3")
    p("s_and_b32 s29, s6, 1"); p("s_lshl_b32 s3, s5, 1"); p("s_add_u32 s29, s29, s3")
    p("v_and_b32 v2, 31, v0"); p("s_lshl_b32 s3, s28, 5"); p("v_add_u32 v2, s3, v2"); p("v_lshlrev_b32 v2, 10, v2")
    p("v_lshrrev_b32 v3, 5, v0"); p("v_lshl_add_u32 v2, v3, 4, v2")
    p("s_lshl_b32 s3, s29, 6")
    p(f"buffer_load_dwordx4 v[240:243], v2, {SRD_X}, s3 offen")
    p(f"buffer_load_dwordx4 v[244:247], v2, {SRD_X}, s3 offen offset:32")
    p("s_lshl_b32 s30, s5, 6"); p("s_lshl_b32 s3, s6, 3"); p("s_add_u32 s30, s30, s3"); p("s_lshl_b32 s30, s30, 10"); p(f"s_add_u32 s30, s30, {L.WOF}")
    p("s_lshl_b32 s31, s4, 6"); p("s_add_u32 s31, s31, s3"); p("s_lshl_b32 s31, s31, 10"); p(f"s_add_u32 s31, s31, {L.OF}")
    for s in range(8):
        for cc in range(2):
            p(f"s_add_u32 s3, s30, {cc*32768+s*1024}")
            p(f"buffer_load_dwordx4 a[{8*s+4*cc}:{8*s+4*cc+3}], v9, {SRD_WS}, s3 offen")
        for tt in range(2):
            p(f"s_add_u32 s3, s31, {tt*32768+s*1024}")
            p(f"buffer_load_dwordx4 a[{64+8*s+4*tt}:{64+8*s+4*tt+3}], v9, {SRD_WS}, s3 offen")
    ACC=[64,80,96,112]
    for s in range(8):
        p(f"s_waitcnt vmcnt({4*(7-s)})")
        for tt in range(2):
            for cc in range(2):
                a=ACC[tt*2+cc]
                p(f"v_mfma_f32_32x32x16_bf16 v[{a}:{a+15}], a[{8*s+4*cc}:{8*s+4*cc+3}], a[{64+8*s+4*tt}:{64+8*s+4*tt+3}], {'0' if s==0 else f'v[{a}:{a+15}]'}")
    ksplit_reduce(p,ACC)
    for j in range(8):
        p(f"v_lshlrev_b32 v{96+2*j}, 16, v{240+j}")
        p(f"v_and_b32 v{97+2*j}, 0xffff0000, v{240+j}")
    for j in range(16): p(f"v_add_f32 v{16+j}, v{16+j}, v{96+j}")
    for j in range(8): p(f"v_cvt_pk_bf16_f32 v{32+j}, v{16+2*j}, v{17+2*j}")
    p("s_lshl_b32 s3, s28, 5"); p("s_lshl_b32 s7, s29, 1"); p("s_add_u32 s3, s3, s7"); p("s_lshl_b32 s3, s3, 10"); p(f"s_add_u32 s3, s3, {L.HF}")
    p(f"buffer_store_dwordx4 v[32:35], v9, {SRD_WS}, s3 offen")
    p(f"buffer_store_dwordx4 v[36:39], v9, {SRD_WS}, s3 offen offset:1024")
    p("v_add_f32 v40, v16, v17"); p("v_mul_f32 v41, v16, v16"); p("v_fmac_f32 v41, v17, v17")
    for j in range(2,16):
        p(f"v_add_f32 v40, v40, v{16+j}"); p(f"v_fmac_f32 v41, v{16+j}, v{16+j}")
    p("v_mov_b32 v42, v40"); p("v_mov_b32 v43, v41")
    p("v_permlane32_swap_b32 v40, v42"); p("v_permlane32_swap_b32 v41, v43")
    p("v_add_f32 v40, v40, v42"); p("v_add_f32 v41, v41, v43")
    p("s_lshl_b32 s3, s28, 4"); p("s_add_u32 s3, s3, s29"); p("s_lshl_b32 s3, s3, 8"); p(f"s_add_u32 s3, s3, {L.HS}")
    p("v_lshlrev_b32 v2, 3, v0")
    p("s_mov_b32 exec_hi, 0")
    p(f"buffer_store_dwordx2 v[40:41], v2, {SRD_WS}, s3 offen")
    p("s_mov_b64 exec, -1")

NSLOT=6
def ffn1_phase(p):
    p("v_lshlrev_b32 v9, 4, v0")
    p("s_lshr_b32 s28, s4, 1"); p("s_lshl_b32 s28, s28, 2"); p("s_add_u32 s28, s28, s6")
    p("s_and_b32 s3, s4, 1"); p("s_lshl_b32 s3, s3, 3"); p("s_add_u32 s3, s3, s5")
    p("s_min_u32 s7, s3, 6"); p("s_mul_i32 s29, s3, 5"); p("s_add_u32 s29, s29, s7")
    p("s_cmp_lt_u32 s3, 6"); p("s_cselect_b32 s66, 6, 5")
    p("v_and_b32 v2, 31, v0"); p("v_lshlrev_b32 v2, 3, v2"); p("v_lshrrev_b32 v3, 5, v0"); p("v_lshl_add_u32 v2, v3, 11, v2")
    p("s_lshl_b32 s3, s28, 12"); p(f"s_add_u32 s3, s3, {L.HS}")
    for i in range(8):
        p(f"buffer_load_dwordx2 v[{16+2*i}:{17+2*i}], v2, {SRD_WS}, s3 offen offset:{i*256}")
    p("s_lshl_b32 s30, s28, 15"); p(f"s_add_u32 s30, s30, {L.HF}")
    def ldB(s):
        p(f"s_add_u32 s3, s30, {s*1024}")
        p(f"buffer_load_dwordx4 v[{128+4*s}:{131+4*s}], v9, {SRD_WS}, s3 offen")
    p("s_lshl_b32 s31, s29, 15"); p("s_lshl_b32 s3, s6, 10"); p("s_add_u32 s31, s31, s3"); p(f"s_add_u32 s31, s31, {L.W1F}")
    p("s_add_u32 s3, s29, 5"); p("s_min_u32 s3, s3, 85"); p("s_sub_u32 s3, s3, s29"); p("s_lshl_b32 s67, s3, 15")
    p("s_mul_i32 s68, s6, 6144")
    def dma(q):
        slot=q%NSLOT
        for uu in range(6):
            p(f"s_add_u32 m0, s68, {slot*24576+uu*1024}")
            if uu<5: p(f"s_add_u32 s3, s31, {uu*32768+q*4096}")
            else:
                p(f"s_add_u32 s3, s31, s67"); p(f"s_add_u32 s3, s3, {q*4096}")
            p(f"buffer_load_dwordx4 v9, {SRD_WS}, s3 offen lds")
    for s in range(8): ldB(s)
    dma(0)
    for s in range(8,32): ldB(s)
    dma(1); dma(2)
    p("s_waitcnt vmcnt(50)")
    for i in range(1,8):
        p(f"v_add_f32 v16, v16, v{16+2*i}"); p(f"v_add_f32 v17, v17, v{17+2*i}")
    p("v_mov_b32 v18, v16"); p("v_mov_b32 v19, v17")
    p("v_permlane32_swap_b32 v16, v18"); p("v_permlane32_swap_b32 v17, v19")
    p("v_add_f32 v16, v16, v18"); p("v_add_f32 v17, v17, v19")
    p(f"v_mul_f32 v16, {hx(f2u(1/512))}, v16"); p(f"v_mul_f32 v17, {hx(f2u(1/512))}, v17")
    p("v_fma_f32 v17, -v16, v16, v17"); p("v_max_f32 v17, 0, v17"); p(f"v_add_f32 v17, {hx(f2u(1e-5))}, v17")
    p("v_rsq_f32 v17, v17"); p("v_mul_f32 v16, v16, v17"); p("v_sub_f32 v16, 0, v16")
    def norm(s):
        out=[]
        for i in range(4):
            r=128+4*s+i; t0=20+2*i; t1=21+2*i
            out.append(f"v_lshlrev_b32 v{t0}, 16, v{r}"); out.append(f"v_and_b32 v{t1}, 0xffff0000, v{r}")
        for i in range(4):
            t0=20+2*i; t1=21+2*i
            out.append(f"v_fma_f32 v{t0}, v{t0}, v17, v16"); out.append(f"v_fma_f32 v{t1}, v{t1}, v17, v16")
        for i in range(4):
            r=128+4*s+i; t0=20+2*i; t1=21+2*i
            out.append(f"v_cvt_pk_bf16_f32 v{r}, v{t0}, v{t1}")
        return out
    p("s_waitcnt vmcnt(49)")
    for x in norm(0): p(x)
    ACC=[32+16*u for u in range(6)]
    AB=[0,24]
    def rdA(s):
        q,ss=divmod(s,4); b=AB[s%2]
        return [f"ds_read_b128 a[{b+4*uu}:{b+4*uu+3}], v10 offset:{ss*6144+uu*1024}" for uu in range(6)]
    issued=50
    pos={}
    for s in range(8): pos[('B',s)]=s
    pos[('D',0)]=13
    for s in range(8,32): pos[('B',s)]=14+(s-8)
    pos[('D',1)]=43; pos[('D',2)]=49
    state={'n':50}
    def wait_for(keys):
        need=max(pos[k] for k in keys)
        p(f"s_waitcnt vmcnt({min(63,state['n']-1-need)})")
    def issue_dma(q):
        dma(q); state['n']+=6; pos[('D',q)]=state['n']-1
    issue_dma(3); issue_dma(4); issue_dma(5)
    wait_for([('D',0)])
    p("s_barrier")
    p(f"v_mov_b32 v10, v9")
    for x in rdA(0): p(x)
    for s in range(32):
        q,ss=divmod(s,4)
        nxt=s+1
        fill=[]
        if nxt<32:
            qn,ssn=divmod(nxt,4)
            if ssn==0:
                wait_for([('D',qn)])
                p("s_waitcnt lgkmcnt(0)")
                p("s_barrier")
                if qn+NSLOT-1<8 and qn>=1:
                    issue_dma_q=qn+NSLOT-1
                    issue_dma(issue_dma_q)
                p(f"v_add_u32 v10, {(qn%NSLOT)*24576}, v9")
            wait_for([('B',nxt)])
            fill=norm(nxt)
            rd=rdA(nxt)
        else:
            rd=[]
        if not (nxt<32 and divmod(nxt,4)[1]==0):
            p("s_waitcnt lgkmcnt(0)")
        b=AB[s%2]
        mf=[f"v_mfma_f32_32x32x16_bf16 v[{ACC[uu]}:{ACC[uu]+15}], a[{b+4*uu}:{b+4*uu+3}], v[{128+4*s}:{131+4*s}], {'0' if s==0 else f'v[{ACC[uu]}:{ACC[uu]+15}]'}" for uu in range(6)]
        fi=0
        for uu in range(6):
            p(mf[uu])
            if rd: p(rd[uu])
            k=4 if uu<2 else 3
            for x in fill[fi:fi+k]: p(x)
            fi+=k
        for x in fill[fi:]: p(x)
    c1=f2u(-2*1.4426950408889634*0.7978845608028654); c2=f2u(-2*1.4426950408889634*0.7978845608028654*0.044715)
    p(f"s_mov_b32 s69, {hx(c1)}"); p(f"s_mov_b32 s70, {hx(c2)}")
    p("s_lshl_b32 s30, s28, 0"); p("s_mul_i32 s30, s30, 86"); p("s_add_u32 s30, s30, s29"); p("s_lshl_b32 s30, s30, 10"); p(f"s_add_u32 s30, s30, {L.AF}")
    p("v_mov_b32 v31, s69")
    for uu in range(6):
        a=ACC[uu]
        if uu==5:
            p("s_cmp_eq_u32 s66, 5"); p("s_cbranch_scc1 F1_done")
        T=16
        for j in range(8): p(f"v_mul_f32 v{T+j}, v{a+j}, v{a+j}")
        for j in range(8): p(f"v_fma_f32 v{T+j}, v{T+j}, s70, v31")
        for j in range(8): p(f"v_mul_f32 v{T+j}, v{T+j}, v{a+j}")
        for j in range(8): p(f"v_exp_f32 v{T+j}, v{T+j}")
        for j in range(8): p(f"v_add_f32 v{T+j}, 1.0, v{T+j}")
        for j in range(8): p(f"v_rcp_f32 v{T+j}, v{T+j}")
        for j in range(8): p(f"v_mul_f32 v{a+j}, v{a+j}, v{a+8+j}")
        for j in range(8): p(f"v_mul_f32 v{T+j}, v{T+j}, v{a+j}")
        for j in range(4): p(f"v_cvt_pk_bf16_f32 v{24+j}, v{T+2*j}, v{T+2*j+1}")
        p(f"s_add_u32 s3, s30, {uu*1024}")
        p(f"buffer_store_dwordx4 v[24:27], v9, {SRD_WS}, s3 offen")
    p.label("F1_done")

def ffn2_phase(p):
    p("v_lshlrev_b32 v9, 4, v0")
    srd(p,24,P_OUT,2048*1024)
    p("s_lshr_b32 s28, s6, 1"); p("s_lshl_b32 s3, s4, 1"); p("s_add_u32 s28, s28, s3")
    p("s_and_b32 s29, s6, 1"); p("s_lshl_b32 s3, s5, 1"); p("s_add_u32 s29, s29, s3")
    p("s_lshl_b32 s3, s28, 5"); p("s_lshl_b32 s7, s29, 1"); p("s_add_u32 s3, s3, s7"); p("s_lshl_b32 s3, s3, 10"); p(f"s_add_u32 s3, s3, {L.HF}")
    p(f"buffer_load_dwordx4 v[224:227], v9, {SRD_WS}, s3 offen")
    p(f"buffer_load_dwordx4 v[228:231], v9, {SRD_WS}, s3 offen offset:1024")
    p("s_mul_i32 s7, s6, 22")
    p("s_mul_i32 s30, s5, 172"); p("s_add_u32 s30, s30, s7"); p("s_lshl_b32 s30, s30, 10"); p(f"s_add_u32 s30, s30, {L.WDF}")
    p("s_mul_i32 s31, s4, 172"); p("s_add_u32 s31, s31, s7"); p("s_lshl_b32 s31, s31, 10"); p(f"s_add_u32 s31, s31, {L.AF}")
    NS=22
    def Areg(i,cc): return f"a[{8*i+4*cc}:{8*i+4*cc+3}]"
    def Breg(i,tt):
        k=2*i+tt
        if k<20: return f"a[{176+4*k}:{176+4*k+3}]"
        return f"v[{128+4*(k-20)}:{128+4*(k-20)+3}]"
    def ld(i):
        for cc in range(2):
            p(f"s_add_u32 s3, s30, {cc*86*1024+i*1024}")
            p(f"buffer_load_dwordx4 {Areg(i,cc)}, v9, {SRD_WS}, s3 offen")
        for tt in range(2):
            p(f"s_add_u32 s3, s31, {tt*86*1024+i*1024}")
            p(f"buffer_load_dwordx4 {Breg(i,tt)}, v9, {SRD_WS}, s3 offen")
    W=14
    for i in range(W): ld(i)
    ACC=[64,80,96,112]
    issued=W
    for i in range(NS):
        if i==20:
            p("s_cmp_eq_u32 s6, 3"); p("s_cbranch_scc1 F2_kdone")
        p(f"s_waitcnt vmcnt({4*(issued-1-i)})")
        for tt in range(2):
            for cc in range(2):
                a=ACC[tt*2+cc]
                p(f"v_mfma_f32_32x32x16_bf16 v[{a}:{a+15}], {Areg(i,cc)}, {Breg(i,tt)}, {'0' if i==0 else f'v[{a}:{a+15}]'}")
        if issued<NS:
            ld(issued); issued+=1
    p.label("F2_kdone")
    p("s_waitcnt vmcnt(0)")
    ksplit_reduce(p,ACC)
    for j in range(4):
        p(f"v_lshlrev_b32 v{96+2*j}, 16, v{224+j}"); p(f"v_and_b32 v{97+2*j}, 0xffff0000, v{224+j}")
        p(f"v_lshlrev_b32 v{104+2*j}, 16, v{228+j}"); p(f"v_and_b32 v{105+2*j}, 0xffff0000, v{228+j}")
    for j in range(16): p(f"v_add_f32 v{16+j}, v{16+j}, v{96+j}")
    for j in range(8): p(f"v_cvt_pk_bf16_f32 v{32+j}, v{16+2*j}, v{17+2*j}")
    p("v_and_b32 v2, 31, v0"); p("s_lshl_b32 s3, s28, 5"); p("v_add_u32 v2, s3, v2"); p("v_lshlrev_b32 v2, 10, v2")
    p("v_lshrrev_b32 v3, 5, v0"); p("v_lshl_add_u32 v2, v3, 4, v2")
    p("s_lshl_b32 s3, s29, 6")
    p(f"buffer_store_dwordx4 v[32:35], v2, {SRD_O}, s3 offen")
    p(f"buffer_store_dwordx4 v[36:39], v2, {SRD_O}, s3 offen offset:32")

def kernel(name, body_fn):
    p=Prog()
    end=f"END_{name}"
    prologue(p,end)
    body_fn(p)
    p.label(end)
    p("s_endpgm")
    ins=p.finalize(name=name)
    print(f"{name}: {len(ins)} lines, {p.nops} hazard nops",file=sys.stderr)
    txt=render(ins)
    return txt

def kd(name):
    return f""".p2align 6
.amdhsa_kernel {name}
  .amdhsa_next_free_vgpr 512
  .amdhsa_next_free_sgpr 96
  .amdhsa_accum_offset 256
  .amdhsa_group_segment_fixed_size 0
  .amdhsa_kernarg_size 96
  .amdhsa_user_sgpr_count 2
  .amdhsa_user_sgpr_kernarg_segment_ptr 1
  .amdhsa_system_sgpr_workgroup_id_x 1
.end_amdhsa_kernel
"""
HEADER=open('sequential_preLN__grouped_kv_mqa__geglu_ffn__prompt.s.ref').read().split('; Override')[0]

def build_multi(fname, extra_empty=0):
    ks=[('k1_kernel',phase_a,A_LDS),('k2_kernel',attention,ATT_LDS),('k3_kernel',wo_phase,65536),('k4_kernel',ffn1_phase,NSLOT*24576),('k5_kernel',ffn2_phase,65536)]
    out=HEADER
    for n,_,lds in ks: out+=f"; @launch kernel={n} grid=(256,1,1) block=(256,1,1) lds={lds}\n"
    for i in range(extra_empty): out+=f"; @launch kernel=k0_kernel grid=(256,1,1) block=(256,1,1) lds=0\n"
    out+='.amdgcn_target "amdgcn-amd-amdhsa--gfx950"\n.text\n'
    names=[k[0] for k in ks]
    for n,fn,_ in ks:
        out+=f".globl {n}\n.p2align 8\n.type {n},@function\n{n}:\n"+kernel(n,fn)
    if extra_empty:
        out+=".globl k0_kernel\n.p2align 8\n.type k0_kernel,@function\nk0_kernel:\n    s_endpgm\n"; names.append('k0_kernel')
    out+='.section .rodata,"a"\n'
    for n in names: out+=kd(n)
    open(fname,'w').write(out)

if __name__=='__main__':
    out=sys.argv[1] if len(sys.argv)>1 else 'v1.s'
    build_multi(out, int(sys.argv[2]) if len(sys.argv)>2 else 0)
```

```python
import re, sys

TRANS = ("v_exp_f32","v_log_f32","v_rcp_f32","v_rsq_f32","v_sqrt_f32","v_sin_f32","v_cos_f32","v_rcp_iflag_f32",
         "v_exp_f16","v_rcp_f16","v_rsq_f16","v_sqrt_f16","v_log_f16")

def regs_of(tok):
    tok = tok.strip()
    tok = tok.lstrip('-')
    if tok.startswith('abs(') or tok.startswith('|'):
        tok = tok.replace('abs(','').replace(')','').replace('|','')
    m = re.fullmatch(r'([vas])\[(\d+):(\d+)\]', tok)
    if m:
        return [(m.group(1), i) for i in range(int(m.group(2)), int(m.group(3))+1)]
    m = re.fullmatch(r'([vas])(\d+)', tok)
    if m:
        return [(m.group(1), int(m.group(2)))]
    if tok == 'vcc': return [('s','vcc_lo'),('s','vcc_hi')]
    if tok in ('vcc_lo','vcc_hi'): return [('s',tok)]
    if tok == 'exec': return [('s','exec_lo'),('s','exec_hi')]
    if tok in ('exec_lo','exec_hi'): return [('s',tok)]
    if tok == 'm0': return [('s','m0')]
    if tok == 'scc': return [('s','scc')]
    return []

class Ins:
    __slots__=('text','op','ops','mods','dst','src','kind','line','label','target','srcA','srcB','srcC','passes','comment','nop')
    def __init__(self, text):
        self.text=text; self.label=None; self.target=None
        self.dst=[]; self.src=[]; self.kind='other'; self.srcA=[]; self.srcB=[]; self.srcC=[]; self.passes=0; self.nop=0
        t=text.split(';')[0].strip()
        if t.endswith(':'):
            self.label=t[:-1]; self.kind='label'; self.op=''; self.ops=[]; self.mods=''; return
        if t.startswith('.') or t=='':
            self.kind='directive'; self.op=t; self.ops=[]; self.mods=''; return
        parts=t.split(None,1)
        self.op=parts[0]
        rest=parts[1] if len(parts)>1 else ''
        ops=[]; cur=''; depth=0
        for ch in rest:
            if ch in '[(': depth+=1
            if ch in '])': depth-=1
            if ch==',' and depth==0:
                ops.append(cur.strip()); cur=''
            else: cur+=ch
        if cur.strip(): ops.append(cur.strip())
        mods=''
        if ops:
            last=ops[-1].split()
            ops[-1]=last[0] if last else ''
            mods=' '.join(last[1:])
        self.ops=ops; self.mods=mods
        self.classify()
    def classify(s):
        op=s.op; ops=s.ops; R=regs_of
        base=re.sub(r'_(e32|e64|dpp|sdwa)$','',op)
        if op.startswith('v_smfmac'):
            s.kind='mfma'
            s.dst=R(ops[0]); s.srcA=R(ops[1]); s.srcB=R(ops[2])+R(ops[3]); s.srcC=R(ops[0])
            s.src=s.srcA+s.srcB+s.srcC
            s.passes = 8 if '32x32' in op else 4
        elif op.startswith('v_mfma'):
            s.kind='mfma'
            s.dst=R(ops[0]); s.srcA=R(ops[1]); s.srcB=R(ops[2]); s.srcC=R(ops[3])
            s.src=s.srcA+s.srcB+s.srcC
            s.passes = 8 if '32x32' in op else 4
        elif op.startswith('v_'):
            s.kind='valu'
            if base in TRANS: s.kind='trans'
            if base.startswith('v_cmp'):
                s.dst=R(ops[0]); s.src=sum((R(o) for o in ops[1:]),[])
                if base.startswith('v_cmpx'): s.dst+=R('exec')
            elif base in ('v_add_co_u32','v_sub_co_u32','v_subrev_co_u32'):
                s.dst=R(ops[0])+R(ops[1]); s.src=sum((R(o) for o in ops[2:]),[])
            elif base in ('v_addc_co_u32','v_subb_co_u32'):
                s.dst=R(ops[0])+R(ops[1]); s.src=sum((R(o) for o in ops[2:]),[])
            elif base.startswith('v_permlane') and 'swap' in base:
                s.dst=R(ops[0])+R(ops[1]); s.src=R(ops[0])+R(ops[1]); s.kind='permlane'
            elif base in ('v_readfirstlane_b32','v_readlane_b32'):
                s.dst=R(ops[0]); s.src=sum((R(o) for o in ops[1:]),[]); s.kind='readlane'
            elif base=='v_writelane_b32':
                s.dst=R(ops[0]); s.src=sum((R(o) for o in ops[1:]),[])+R(ops[0])
            elif base in ('v_fmac_f32','v_dot2c_f32_bf16','v_mac_f32','v_pk_fmac_f16','v_fmac_f16'):
                s.dst=R(ops[0]); s.src=sum((R(o) for o in ops),[])
            else:
                s.dst=R(ops[0]); s.src=sum((R(o) for o in ops[1:]),[])
                if base=='v_cndmask_b32' and len(ops)==3: s.src+=R('vcc')
            if op.endswith('_dpp') or 'quad_perm' in s.mods or 'row_' in s.mods or 'wave_' in s.mods:
                s.kind='dpp'
                s.src+=s.dst
        elif op.startswith('ds_'):
            s.kind='ds'
            if op.startswith('ds_read') or op.startswith('ds_bpermute') or op.startswith('ds_permute') or op.startswith('ds_swizzle') or '_rtn' in op:
                s.dst=R(ops[0]); s.src=sum((R(o) for o in ops[1:]),[])
            else:
                s.src=sum((R(o) for o in ops),[])
        elif op.startswith('buffer_') or op.startswith('global_'):
            s.kind='vmem'
            islds = ('lds' in s.mods.split()) or ('_lds_' in op)
            if op in ('buffer_inv','buffer_wbl2'):
                s.kind='vmem'; return
            if islds:
                s.src=sum((R(o) for o in ops),[])+R('m0'); s.kind='dma'
            elif 'load' in op:
                s.dst=R(ops[0]); s.src=sum((R(o) for o in ops[1:]),[])
            elif 'store' in op:
                s.src=sum((R(o) for o in ops),[]); s.kind='vstore'
            elif 'atomic' in op:
                ret = 'sc0' in s.mods.split()
                if op.startswith('global_') and ret:
                    s.dst=R(ops[0]); s.src=sum((R(o) for o in ops[1:]),[])
                elif op.startswith('buffer_') and ret:
                    s.dst=R(ops[0]); s.src=sum((R(o) for o in ops),[])
                else:
                    s.src=sum((R(o) for o in ops),[])
        elif op.startswith('s_'):
            s.kind='salu'
            if op=='s_nop': s.kind='nop'; s.nop=int(ops[0],0)+1
            elif op=='s_waitcnt': s.kind='waitcnt'
            elif op=='s_barrier': s.kind='barrier'
            elif op=='s_endpgm': s.kind='end'
            elif op=='s_branch': s.kind='branch'; s.target=ops[0]
            elif op.startswith('s_cbranch'):
                s.kind='cbranch'; s.target=ops[0]
                if 'scc' in op: s.src=R('scc')
                elif 'exec' in op: s.src=R('exec')
                else: s.src=R('vcc')
            elif op.startswith('s_load') or op in ('s_memtime','s_memrealtime'):
                s.kind='smem'; s.dst=R(ops[0]); s.src=sum((R(o) for o in ops[1:]),[])
            elif op.startswith('s_cmp') or op.startswith('s_bitcmp'):
                s.dst=R('scc'); s.src=sum((R(o) for o in ops),[])
            elif op in ('s_sleep','s_setprio','s_setreg_b32','s_setreg_imm32_b32','s_sendmsg','s_inst_prefetch'):
                s.src=sum((R(o) for o in ops),[])
            elif 'saveexec' in op:
                s.dst=R(ops[0])+R('exec')+R('scc'); s.src=R(ops[1])+R('exec')
            else:
                s.dst=R(ops[0]); s.src=sum((R(o) for o in ops[1:]),[])
                if op.startswith('s_cselect') or op.startswith('s_addc') or op.startswith('s_subb') or op.startswith('s_cmov'): s.src+=R('scc')
                if op in ('s_addk_i32','s_mulk_i32','s_cmov_b32','s_cmov_b64'): s.src+=s.dst
                if not (op.startswith('s_mov') or op.startswith('s_getpc') or op.startswith('s_getreg') or op.startswith('s_cselect') or op.startswith('s_mul') or op.startswith('s_cmov')):
                    s.dst=s.dst+R('scc')
        else:
            raise ValueError("unknown instr "+s.text)

VALUK=('valu','trans','dpp','permlane','readlane')
import os
EXP2=bool(os.environ.get('EXP2'))
def isv(r): return r[0] in ('v','a')
def iss(r): return r[0]=='s'

def need(p, c):
    n=0
    pd=set(p.dst); cs=set(c.src); cd=set(c.dst)
    if p.kind in VALUK:
        pv={r for r in pd if isv(r)}; ps={r for r in pd if iss(r)}
        if c.kind=='mfma' and pv & cs: n=max(n,2)
        if p.kind=='trans' and (pv & (cs)) : n=max(n,1)
        if c.kind=='permlane' and pv & cs: n=max(n,2)
        if c.kind=='dpp' and pv & cs: n=max(n,2)
        if c.kind=='readlane' and pv & cs: n=max(n,1)
        if ps:
            if c.kind in VALUK+('mfma',) and ps & cs: n=max(n,2)
            if c.kind=='readlane' and len(c.ops)>2 and ps & set(regs_of(c.ops[2])): n=max(n,4)
            if c.kind in ('vmem','vstore','dma') and ps & cs: n=max(n,5)
            if c.kind in ('salu','cbranch','smem') and ps & cs: n=max(n,1)
            if ('s','exec_lo') in ps and c.kind=='mfma': n=max(n,4)
            if ('s','exec_lo') in ps and c.kind in ('dpp',): n=max(n,5)
            if ('s','exec_lo') in ps and c.kind in ('permlane','readlane'): n=max(n,4)
    if p.kind in VALUK and p.op.startswith('v_dot'):
        pv={r for r in pd if isv(r)}
        if pv & (cs|cd):
            same = (re.sub(r'_(e32|e64)$','',c.op)==re.sub(r'_(e32|e64)$','',p.op))
            if not same: n=max(n,3)
            else:
                ab=set()
                if 'dot2c' in c.op: ab=set(sum((regs_of(o) for o in c.ops[1:]),[]))
                else: ab=set(sum((regs_of(o) for o in c.ops[1:3]),[]))
                if pv & ab: n=max(n,3)
    if p.kind=='mfma':
        P=p.passes
        big=12 if P==8 else 8
        ov=10 if P==8 else 6
        war=7 if P==8 else 3
        if c.kind=='mfma':
            if pd & (set(c.srcA)|set(c.srcB)): n=max(n,big)
            if pd & set(c.srcC):
                if not (c.srcC==p.dst and c.passes==P): n=max(n,ov)
            if pd & cd and not (c.dst==p.dst and c.passes==P): n=max(n,ov)
        elif c.kind in VALUK:
            if pd & (cs|cd): n=max(n,big)
            if set(p.srcC) & cd: n=max(n,war)
        elif c.kind in ('ds','vmem','vstore','dma'):
            if pd & (cs|cd): n=max(n,big)
            if set(p.srcC) & cd: n=max(n,war)
    if p.kind=='salu' and ('s','m0') in pd and c.kind=='dma': n=max(n,1)
    if p.kind=='vstore' and ('x4' in p.op or 'x3' in p.op):
        data=set(regs_of(p.ops[0])) if p.op.startswith('buffer_') else set(regs_of(p.ops[1]))
        if data & cd:
            n=max(n, 2 if c.kind in VALUK+('mfma',) else 1)
    if p.kind=='ds' and ('b128' in p.op or 'b96' in p.op) and p.op.startswith('ds_write'):
        pass
    return n

class Prog:
    def __init__(self): self.lines=[]
    def __call__(self, text):
        for l in text.split('\n'):
            if l.strip(): self.lines.append(l.strip())
        return self
    def label(self, n): self.lines.append(n+':')
    def finalize(self, check_waits=True, name=''):
        ins=[Ins(l) for l in self.lines]
        MAXD=13
        total_nops=0
        changed=True; it=0
        def real(x): return x.kind not in ('label','directive')
        while changed:
            changed=False; it+=1
            def mkpreds():
                pr={}
                for k,x in enumerate(ins):
                    if x.target is not None: pr.setdefault(x.target,[]).append(k)
                return pr
            preds=mkpreds()
            i=0
            while i<len(ins):
                c=ins[i]
                if real(c) and c.kind not in ('nop','waitcnt','barrier','branch','end'):
                    worst=0
                    stack=[(i-1,0)]
                    seen=set()
                    while stack:
                        j,d=stack.pop()
                        while j>=0 and d<MAXD:
                            if (j,d) in seen: break
                            seen.add((j,d))
                            p=ins[j]
                            if p.kind=='label':
                                for b_ in preds.get(p.label,[]): stack.append((b_,d))
                                k=j-1
                                while k>=0 and not real(ins[k]) : k-=1
                                if k>=0 and ins[k].kind in ('branch','end'): break
                                j-=1; continue
                            if p.kind=='directive': j-=1; continue
                            nn=need(p,c)
                            if nn>d: worst=max(worst,nn-d)
                            d+= p.nop if p.kind=='nop' else (2 if (EXP2 and p.kind=='trans') else 1)
                            j-=1
                    if worst>0:
                        ins.insert(i,Ins(f"s_nop {worst-1}   ; hazard"))
                        total_nops+=1
                        changed=True
                        preds=mkpreds()
                        i+=1
                i+=1
            if it>8: raise RuntimeError("hazard fix did not converge")
        if check_waits: check_waitcnt(ins, name)
        self.nops=total_nops
        return ins

def parse_wait(x):
    vm=None; lg=None
    t=x.text.split(';')[0]
    m=re.search(r'vmcnt\((\d+)\)',t); vm=int(m.group(1)) if m else None
    m=re.search(r'lgkmcnt\((\d+)\)',t); lg=int(m.group(1)) if m else None
    return vm,lg

def check_waitcnt(ins, name=''):
    labels={x.label:i for i,x in enumerate(ins) if x.kind=='label'}
    errors=set()
    visits={}
    stack=[(0,(),())]
    steps=0
    while stack:
        i,vm,lg=stack.pop()
        vm=list(vm); lg=list(lg)
        while i<len(ins):
            steps+=1
            if steps>5_000_000:
                print("waitcheck: too many steps",file=sys.stderr); return
            x=ins[i]
            if x.kind=='label':
                key=(i,tuple(vm),tuple(lg))
                if key in visits: break
                visits[key]=1
                cnt=visits.get(('n',i),0)
                if cnt>=6: break
                visits[('n',i)]=cnt+1
                i+=1; continue
            if x.kind=='directive': i+=1; continue
            if x.kind=='waitcnt':
                a,b=parse_wait(x)
                if a is not None:
                    while len(vm)>a: vm.pop(0)
                if b is not None:
                    if any(k=='smem' for k,_ in lg) and b>0:
                        pass
                    else:
                        while len(lg)>b: lg.pop(0)
                i+=1; continue
            touched=set(x.src)|set(x.dst)
            if 'nowaitcheck' in x.text: touched=set()
            for d in vm:
                if touched & set(d): errors.add((i,'vm',x.text))
            for k,d in lg:
                if touched & set(d): errors.add((i,'lgkm',x.text))
            if x.kind in ('vmem','vstore','dma'):
                vm.append(tuple(x.dst))
                if len(vm)>63: vm.pop(0)
            elif x.kind=='ds':
                lg.append(('ds',tuple(x.dst)))
                if len(lg)>15 and not any(k=='smem' for k,_ in lg): lg.pop(0)
            elif x.kind=='smem':
                lg.append(('smem',tuple(x.dst)))
            if x.kind=='end': break
            if x.kind=='branch':
                i=labels[x.target]; continue
            if x.kind=='cbranch' and x.target in labels:
                stack.append((labels[x.target],tuple(vm),tuple(lg)))
            i+=1
    if errors:
        for e in sorted(errors)[:8]:
            print(f"WAITCNT ERROR [{name}] ins#{e[0]} {e[1]}: {e[2]}",file=sys.stderr)
        raise RuntimeError("waitcnt check failed")

def render(ins):
    out=[]
    for x in ins:
        if x.kind=='label': out.append(x.text)
        else: out.append('    '+x.text)
    return '\n'.join(out)+'\n'
```

```python
import sys, os, struct
from asm import Prog, render
import layout as L

OPT=set(x for x in os.environ.get('OPT','').split(',') if x)
KNAME='sequential_preLN__grouped_kv_mqa__geglu_ffn__prompt_kernel'
QSCALE=1.4426950408889634/4.0
def f2u(x): return struct.unpack('<I',struct.pack('<f',x))[0]
def hx(x): return '0x%08x'%(x & 0xffffffff)

SRD_WS='s[8:11]'; SRD_X='s[12:15]'; SRD_A='s[16:19]'; SRD_B='s[20:23]'; SRD_O='s[24:27]'; SRD_D='s[56:59]'
P_X,P_WQ,P_WK,P_WV,P_WO,P_WG,P_WU,P_WD,P_OUT,P_WS,P_DBG=32,34,36,38,40,44,46,48,50,52,54
SPIN=1<<17

XH0=0; XH1=33792; WQ=67584; WK=XH1; WV=XH1+16384+128
WO_L=0; OP=65536; QL=139264; MX=147456; MF=MX+4096; QM=153600
SLOT=24576; RED=147456
LDS_TOTAL=163840
F2=L.FLG; F3=L.FLG+4096; F4=L.FLG+8192

def srd(p, d, ptr, size):
    p(f"s_mov_b32 s{d}, s{ptr}")
    p(f"s_mov_b32 s{d+1}, s{ptr+1}")
    p(f"s_mov_b32 s{d+2}, {hx(size)}")
    p(f"s_mov_b32 s{d+3}, 0x20000")
def csel(p,d,a,b):
    p(f"s_mov_b32 {d}, {b}"); p(f"s_cmov_b32 {d}, {a}")

PROFILE=False
STAMPS=[]
def stamp(p, name, vt=250, dyn=None, n=1):
    if not PROFILE: return
    slot=len(STAMPS)
    for i in range(n): STAMPS.append(name+(f"[{i}]" if n>1 else ""))
    lab=f"ST_{slot}_{len(p.lines)}"
    p("s_cmp_lg_u32 s6, 0"); p(f"s_cbranch_scc1 {lab}")
    p("s_memrealtime s[90:91]")
    p("s_memtime s[88:89]")
    p("s_lshl_b32 s92, s2, 3"); p(f"s_add_u32 s92, s92, {L.PROF+slot*2048}")
    if dyn: p(f"s_lshl_b32 s93, {dyn}, 11"); p("s_add_u32 s92, s92, s93")
    p("s_waitcnt lgkmcnt(0) ; nowaitcheck")
    p(f"v_mov_b32 v{vt}, s90"); p(f"v_mov_b32 v{vt+1}, s88"); p(f"v_mov_b32 v{vt+2}, 0")
    p("s_mov_b64 s[94:95], exec"); p("s_mov_b64 exec, 1")
    p(f"buffer_store_dwordx2 v[{vt}:{vt+1}], v{vt+2}, {SRD_WS}, s92 offen")
    p("s_mov_b64 exec, s[94:95]")
    p.label(lab)

class VM:
    def __init__(s,p): s.p=p; s.n=0; s.pos={}
    def issue(s,key,txt):
        s.p(txt); s.pos[key]=s.n; s.n+=1
    def wait(s,*keys,extra=""):
        need=max(s.pos[k] for k in keys)
        c=s.n-1-need
        if c<=63: s.p(f"s_waitcnt vmcnt({c}){extra}")
        elif extra: s.p(f"s_waitcnt{extra}")

def poll(p, name, srd_, soff, vaddr, expect, vt):
    p(f"s_mov_b32 s29, {SPIN}")
    p.label(f"POLL_{name}")
    p(f"buffer_load_dword v{vt}, {vaddr}, {srd_}, {soff} offen sc1")
    p("s_waitcnt vmcnt(0)")
    p(f"v_cmp_ne_u32 vcc, {expect}, v{vt}")
    p("s_cmp_eq_u64 vcc, 0")
    p(f"s_cbranch_scc1 POLLD_{name}")
    p("s_sub_u32 s29, s29, 1")
    p("s_cmp_lg_u32 s29, 0")
    p(f"s_cbranch_scc1 POLL_{name}")
    p.label(f"POLLD_{name}")

def set_flag(p, soff, vt):
    p(f"v_mov_b32 v{vt}, 1"); p(f"v_mov_b32 v{vt+1}, 0")
    p("s_mov_b64 exec, 1")
    p(f"buffer_store_dword v{vt}, v{vt+1}, {SRD_WS}, {soff} offen sc1")
    p("s_mov_b64 exec, -1")

def prologue(p, end):
    p(f"s_cmp_ge_u32 s2, 256")
    p(f"s_cbranch_scc1 {end}")
    p("s_load_dwordx4 s[32:35], s[0:1], 0")
    p("s_load_dwordx4 s[36:39], s[0:1], 16")
    p("s_load_dwordx2 s[40:41], s[0:1], 32")
    p("s_load_dwordx4 s[44:47], s[0:1], 48")
    p("s_load_dwordx4 s[48:51], s[0:1], 64")
    p("s_load_dwordx2 s[52:53], s[0:1], 88")
    p("s_load_dwordx2 s[54:55], s[0:1], 80")
    p("v_lshrrev_b32 v1, 6, v0")
    p("v_and_b32 v0, 63, v0")
    p("v_readfirstlane_b32 s6, v1")
    p("s_and_b32 s3, s2, 7")
    p("s_lshr_b32 s7, s2, 3")
    p("s_lshr_b32 s4, s7, 3")
    p("s_lshl_b32 s3, s3, 2")
    p("s_add_u32 s4, s4, s3")
    p("s_and_b32 s5, s7, 7")
    p("v_lshlrev_b32 v9, 4, v0")
    if 'codepf' in OPT:
        p("s_getpc_b64 s[60:61]")
        p.label("PF_HERE")
    p("s_waitcnt lgkmcnt(0)")
    srd(p,8,P_WS,L.WS_USED)

def ln_tile(p, X, vaddr, off, mid=None):
    S0,S1,Q0,Q1='v80','v81','v82','v83'
    p(f"v_mov_b32 {S0}, 0"); p(f"v_mov_b32 {S1}, 0"); p(f"v_mov_b32 {Q0}, 0"); p(f"v_mov_b32 {Q1}, 0")
    for i in range(0,32,2):
        p(f"v_dot2c_f32_bf16 {S0}, s28, v{X+i}")
        p(f"v_dot2c_f32_bf16 {Q0}, v{X+i}, v{X+i}")
        p(f"v_dot2c_f32_bf16 {S1}, s28, v{X+i+1}")
        p(f"v_dot2c_f32_bf16 {Q1}, v{X+i+1}, v{X+i+1}")
    p(f"v_add_f32 {S0}, {S0}, {S1}")
    p(f"v_add_f32 {Q0}, {Q0}, {Q1}")
    for d in ("quad_perm:[1,0,3,2]","quad_perm:[2,3,0,1]","row_half_mirror"):
        p(f"v_add_f32_dpp {S0}, {S0}, {S0} {d} row_mask:0xf bank_mask:0xf")
        p(f"v_add_f32_dpp {Q0}, {Q0}, {Q0} {d} row_mask:0xf bank_mask:0xf")
    p(f"v_mul_f32 {S0}, {hx(f2u(1/512))}, {S0}")
    p(f"v_mul_f32 {Q0}, {hx(f2u(1/512))}, {Q0}")
    p(f"v_fma_f32 {Q0}, -{S0}, {S0}, {Q0}")
    p(f"v_max_f32 {Q0}, 0, {Q0}")
    p(f"v_add_f32 {Q0}, {hx(f2u(1e-5))}, {Q0}")
    p(f"v_rsq_f32 {Q0}, {Q0}")
    p(f"v_mul_f32 {S0}, {S0}, {Q0}")
    p(f"v_sub_f32 v94, 0, {S0}")
    p(f"v_mov_b32 v95, v94")
    p(f"v_mov_b32 v92, {Q0}")
    p(f"v_mov_b32 v93, {Q0}")
    for cb in range(8):
        for i in range(4):
            r=X+4*cb+i; t0=84+2*i; t1=85+2*i
            p(f"v_lshlrev_b32 v{t0}, 16, v{r}")
            p(f"v_and_b32 v{t1}, 0xffff0000, v{r}")
        for i in range(4):
            t0=84+2*i
            p(f"v_pk_fma_f32 v[{t0}:{t0+1}], v[{t0}:{t0+1}], v[92:93], v[94:95]")
        for i in range(4):
            r=X+4*cb+i; t0=84+2*i; t1=85+2*i
            p(f"v_cvt_pk_bf16_f32 v{r}, v{t0}, v{t1}")
        p(f"ds_write_b128 {vaddr}, v[{X+4*cb}:{X+4*cb+3}] offset:{off+cb*4224}")

def gemm_lds(p, nsteps, readA, readB, mfma, rps, depth=3, nbuf=4):
    for s in range(min(depth,nsteps)):
        readA(s,s%nbuf); readB(s,s%nbuf)
    for s in range(nsteps):
        if s+depth<nsteps:
            readA(s+depth,(s+depth)%nbuf); readB(s+depth,(s+depth)%nbuf)
        rem=min(depth,nsteps-1-s)
        p(f"s_waitcnt lgkmcnt({rem*rps})")
        mfma(s,s%nbuf)

def tr_base128(p, dst, cbit_sgpr, base):
    p("v_and_b32 v97, 1, v13")
    p("v_lshl_add_u32 v97, v15, 1, v97")
    if cbit_sgpr: p(f"v_add_u32 v97, {cbit_sgpr}, v97")
    p("v_lshrrev_b32 v98, 1, v12")
    p("v_lshlrev_b32 v98, 2, v98")
    p("v_xor_b32 v97, v97, v98")
    p("v_lshlrev_b32 v97, 4, v97")
    p("v_lshrrev_b32 v98, 1, v13")
    p("v_lshl_add_u32 v97, v98, 3, v97")
    p("v_lshl_add_u32 v97, v14, 7, v97")
    p(f"v_add_u32 {dst}, {base}, v97")

def lane_params(p):
    p("v_lshrrev_b32 v11, 4, v0")
    p("v_bfe_u32 v12, v0, 2, 2")
    p("v_and_b32 v13, 3, v0")
    p("v_lshrrev_b32 v14, 1, v11")
    p("v_lshl_add_u32 v14, v14, 3, v12")
    p("v_and_b32 v15, 1, v11")
    p("v_and_b32 v96, 1, v13")
    p("v_lshlrev_b32 v96, 4, v96")
    p("v_lshrrev_b32 v97, 1, v13")
    p("v_lshl_add_u32 v96, v97, 3, v96")

def w128_voff(p, dst):
    p("v_lshrrev_b32 v11, 4, v0")
    p("v_and_b32 v11, 1, v11")
    p("v_lshlrev_b32 v11, 2, v11")
    p("v_xor_b32 v11, v11, v10")
    p("v_lshlrev_b32 v11, 4, v11")
    p(f"v_lshl_add_u32 {dst}, v1, 10, v11")
    p("s_lshl_b32 s3, s5, 7")
    p(f"v_add_u32 {dst}, s3, {dst}")

def phase_a(p):
    p("s_mov_b32 s28, 0x3f803f80")
    srd(p,12,P_X,2048*1024)
    srd(p,16,P_WQ,512*1024)
    srd(p,56,P_DBG,256)
    p("s_and_b32 s3, s5, 1")
    p("s_lshl_b32 s60, s4, 1")
    p("s_add_u32 s60, s60, s3")
    p("v_lshrrev_b32 v1, 3, v0")
    p("v_and_b32 v10, 7, v0")
    p("s_lshl_b32 s3, s60, 5")
    p("s_lshl_b32 s7, s6, 3")
    p("s_add_u32 s3, s3, s7")
    p("v_add_u32 v2, s3, v1")
    p("v_lshlrev_b32 v2, 10, v2")
    p("v_lshl_add_u32 v2, v10, 4, v2")
    p("v_xor_b32 v3, 0x8000, v2")
    p("s_cmp_ge_u32 s5, 2")
    p("s_cbranch_scc1 A_noclr")
    p("s_cmp_lg_u32 s6, 2")
    p("s_cbranch_scc1 A_noclr")
    p("s_mul_i32 s3, s60, 192")
    p(f"s_add_u32 s3, s3, {L.FLG}")
    p("v_lshlrev_b32 v11, 2, v0")
    p("v_mov_b32 v12, 0")
    p("s_mov_b32 exec_hi, 0xffff")
    p(f"buffer_store_dword v12, v11, {SRD_WS}, s3 offen sc1")
    p("s_mov_b64 exec, -1")
    p.label("A_noclr")
    for cb in range(8):
        p(f"buffer_load_dwordx4 v[{16+4*cb}:{19+4*cb}], v2, {SRD_X}, 0 offen offset:{cb*128}")
    p("s_cmp_ge_u32 s5, 2")
    p("s_cbranch_scc1 A_nokvdma")
    p("s_cmp_lt_u32 s6, 2")
    p(f"s_cselect_b32 s20, s{P_WK}, s{P_WV}")
    p(f"s_cselect_b32 s21, s{P_WK+1}, s{P_WV+1}")
    p("s_mov_b32 s22, 16384")
    p("s_mov_b32 s23, 0x20000")
    csel(p,'s30',WK,WV)
    p("s_and_b32 s3, s6, 1")
    p("s_lshl_b32 s3, s3, 13")
    p("s_add_u32 s30, s30, s3")
    for i in range(8):
        p(f"s_add_u32 m0, s30, {i*1024}")
        p(f"s_add_u32 s31, s3, {i*1024}")
        p(f"buffer_load_dwordx4 v9, {SRD_B}, s31 offen lds")
    p.label("A_nokvdma")
    for cb in range(8):
        p(f"buffer_load_dwordx4 v[{48+4*cb}:{51+4*cb}], v3, {SRD_X}, 0 offen offset:{cb*128}")
    w128_voff(p,'v4')
    p("v_lshrrev_b32 v11, 1, v10")
    p("v_mul_u32_u24 v11, 1056, v11")
    p("v_and_b32 v12, 1, v10")
    p("v_mul_u32_u24 v12, 528, v12")
    p("v_add_u32 v5, v11, v12")
    p("s_lshl_b32 s3, s6, 3")
    p("v_add_u32 v11, s3, v1")
    p("v_lshl_add_u32 v5, v11, 4, v5")
    p("v_lshrrev_b32 v11, 5, v0")
    p("v_mul_u32_u24 v11, 528, v11")
    p("v_and_b32 v12, 31, v0")
    p("v_lshl_add_u32 v6, v12, 4, v11")
    lane_params(p)
    p(f"v_mul_u32_u24 v97, {WV-WK}, v15")
    p("v_lshl_add_u32 v97, v14, 5, v97")
    p("v_add_u32 v97, v97, v96")
    p(f"v_add_u32 v8, {WK}, v97")
    p("s_and_b32 s3, s6, 1")
    p("s_lshl_b32 s3, s3, 2")
    tr_base128(p,'v7','s3',WQ)
    stamp(p,'A issued')
    p("s_waitcnt vmcnt(8)")
    stamp(p,'A x arrived')
    ln_tile(p,16,'v5',XH0)
    p("s_waitcnt lgkmcnt(0)")
    p("s_barrier")
    stamp(p,'A lnA done')
    p("s_cmp_ge_u32 s6, 2")
    p("s_cbranch_scc1 A_wqdma")
    p("s_waitcnt vmcnt(0)")
    p("s_cmp_ge_u32 s5, 2")
    p("s_cbranch_scc1 A_kvdone")
    def rA(s,b):
        p(f"ds_read_b64_tr_b16 v[{96+4*b}:{97+4*b}], v8 offset:{s*512}")
        p(f"ds_read_b64_tr_b16 v[{98+4*b}:{99+4*b}], v8 offset:{s*512+128}")
    def rB(s,b):
        p(f"ds_read_b128 v[{112+4*b}:{115+4*b}], v6 offset:{XH0+s*1056}")
    p("s_cmp_eq_u32 s6, 1")
    p("s_cbranch_scc1 A_vwave")
    gemm_lds(p,32,rA,rB,lambda s,b: p(f"v_mfma_f32_32x32x16_bf16 v[128:143], v[{96+4*b}:{99+4*b}], v[{112+4*b}:{115+4*b}], {'0' if s==0 else 'v[128:143]'}"),3)
    for j in range(4): p(f"v_cvt_pk_bf16_f32 v{88+j}, v{128+2*j}, v{129+2*j}")
    p("s_lshl_b32 s3, s60, 10")
    p(f"s_add_u32 s3, s3, {L.KF}")
    p(f"buffer_store_dwordx4 v[88:91], v9, {SRD_WS}, s3 offen sc1")
    p("v_mul_f32 v84, v128, v128")
    for j in range(1,8): p(f"v_fmac_f32 v84, v{128+j}, v{128+j}")
    p("v_mov_b32 v85, v84")
    p("v_permlane32_swap_b32 v84, v85")
    p("v_add_f32 v84, v84, v85")
    for d in ("row_ror:8","row_ror:4","row_ror:2","row_ror:1"):
        p(f"v_max_f32_dpp v84, v84, v84 {d} row_mask:0xf bank_mask:0xf")
    p("v_readlane_b32 s3, v84, 0")
    p("v_readlane_b32 s7, v84, 16")
    p("s_max_u32 s3, s3, s7")
    p("v_mov_b32 v84, s3")
    p("s_lshl_b32 s7, s60, 2")
    p(f"s_add_u32 s7, s7, {L.KM}")
    p("v_mov_b32 v85, 0")
    p("s_mov_b64 exec, 1")
    p(f"buffer_store_dword v84, v85, {SRD_WS}, s7 offen sc1")
    p("s_mov_b64 exec, -1")
    p("s_branch A_kvdone")
    p.label("A_vwave")
    p("v_and_b32 v84, 3, v0")
    p("v_bfe_u32 v85, v0, 2, 1")
    p("v_lshl_add_u32 v84, v85, 3, v84")
    p("v_bfe_u32 v85, v0, 3, 1")
    p("v_lshl_add_u32 v84, v85, 2, v84")
    p("v_and_b32 v85, 16, v0")
    p("v_add_u32 v84, v84, v85")
    p("v_lshrrev_b32 v85, 5, v0")
    p("v_mul_u32_u24 v85, 528, v85")
    p("v_lshl_add_u32 v86, v84, 4, v85")
    def rBv(s,b):
        p(f"ds_read_b128 v[{112+4*b}:{115+4*b}], v86 offset:{XH0+s*1056}")
    gemm_lds(p,32,rA,rBv,lambda s,b: p(f"v_mfma_f32_32x32x16_bf16 v[128:143], v[{112+4*b}:{115+4*b}], v[{96+4*b}:{99+4*b}], {'0' if s==0 else 'v[128:143]'}"),3)
    for j in range(8): p(f"v_cvt_pk_bf16_f32 v{88+j}, v{128+2*j}, v{129+2*j}")
    p("v_lshrrev_b32 v84, 5, v0")
    p("v_and_b32 v85, 15, v0")
    p("v_lshl_add_u32 v84, v84, 4, v85")
    p("v_lshlrev_b32 v84, 4, v84")
    p("s_lshl_b32 s3, s60, 10")
    p(f"s_add_u32 s3, s3, {L.VF}")
    p("s_mov_b32 exec_lo, 0xffff0000")
    p("s_mov_b32 exec_hi, 0xffff0000")
    p(f"buffer_store_dwordx4 v[88:91], v84, {SRD_WS}, s3 offen sc1")
    p(f"buffer_store_dwordx4 v[92:95], v84, {SRD_WS}, s3 offen offset:512 sc1")
    p("s_mov_b64 exec, -1")
    p("s_branch A_kvdone")
    p.label("A_wqdma")
    p("s_sub_u32 s3, s6, 2")
    p("s_lshl_b32 s31, s3, 18")
    p("s_lshl_b32 s30, s3, 15")
    p(f"s_add_u32 s30, s30, {WQ}")
    for i in range(32):
        p(f"s_add_u32 m0, s30, {i*1024}")
        if i>0: p(f"s_add_u32 s31, s31, 8192")
        p(f"buffer_load_dwordx4 v4, {SRD_A}, s31 offen lds")
    p("s_waitcnt vmcnt(32)")
    p.label("A_kvdone")
    stamp(p,'A kvdone')
    p("s_waitcnt lgkmcnt(0)")
    p("s_barrier")
    ln_tile(p,48,'v5',XH1)
    p("s_waitcnt vmcnt(0)")
    p("s_cmp_ge_u32 s5, 2"); p("s_cbranch_scc1 A_nosig")
    p("s_cmp_ge_u32 s6, 2"); p("s_cbranch_scc1 A_nosig")
    p("s_lshl_b32 s3, s60, 2")
    p("v_mov_b32 v84, 1"); p("v_mov_b32 v85, 0")
    p("s_mov_b64 exec, 1")
    p(f"buffer_atomic_add v84, v85, {SRD_D}, s3 offen sc1")
    p("s_mov_b64 exec, -1")
    p.label("A_nosig")
    p("s_waitcnt lgkmcnt(0)")
    p("s_barrier")
    stamp(p,'A lnB done')
    p("s_lshr_b32 s3, s6, 1")
    p(f"s_mul_i32 s7, s3, {XH1}")
    p("v_add_u32 v6, s7, v6")
    def rA(s,b):
        p(f"ds_read_b64_tr_b16 v[{96+4*b}:{97+4*b}], v7 offset:{s*2048}")
        p(f"ds_read_b64_tr_b16 v[{98+4*b}:{99+4*b}], v7 offset:{s*2048+512}")
    def rB(s,b):
        p(f"ds_read_b128 v[{112+4*b}:{115+4*b}], v6 offset:{s*1056}")
    gemm_lds(p,32,rA,rB,lambda s,b: p(f"v_mfma_f32_32x32x16_bf16 v[128:143], v[{96+4*b}:{99+4*b}], v[{112+4*b}:{115+4*b}], {'0' if s==0 else 'v[128:143]'}"),3)
    p(f"s_mov_b32 s30, {hx(f2u(QSCALE))}"); p("s_mov_b32 s31, s30")
    for j in range(8): p(f"v_pk_mul_f32 v[{128+2*j}:{129+2*j}], v[{128+2*j}:{129+2*j}], s[30:31]")
    for j in range(8): p(f"v_cvt_pk_bf16_f32 v{88+j}, v{128+2*j}, v{129+2*j}")
    p("s_xor_b32 s3, s5, s3"); p("s_and_b32 s3, s3, 1"); p("s_lshl_b32 s3, s3, 2")
    p("s_and_b32 s7, s6, 1"); p("s_lshl_b32 s7, s7, 1"); p("s_add_u32 s3, s3, s7")
    p("s_lshl_b32 s3, s3, 10"); p(f"s_add_u32 s3, s3, {QL}")
    p("v_add_u32 v84, s3, v9")
    p("ds_write_b128 v84, v[88:91]")
    p("ds_write_b128 v84, v[92:95] offset:1024")
    p("v_mul_f32 v84, v128, v128"); p("v_mul_f32 v85, v136, v136")
    for j in range(1,8): p(f"v_fmac_f32 v84, v{128+j}, v{128+j}"); p(f"v_fmac_f32 v85, v{136+j}, v{136+j}")
    p("v_mov_b32 v86, v84"); p("v_mov_b32 v87, v85")
    p("v_permlane32_swap_b32 v84, v86"); p("v_permlane32_swap_b32 v85, v87")
    p("v_add_f32 v84, v84, v86"); p("v_add_f32 v85, v85, v87")
    p("v_max_u32 v84, v84, v85")
    for d in ("row_ror:8","row_ror:4","row_ror:2","row_ror:1"):
        p(f"v_max_u32_dpp v84, v84, v84 {d} row_mask:0xf bank_mask:0xf")
    p("v_readlane_b32 s3, v84, 0")
    p("v_readlane_b32 s7, v84, 16")
    p("s_max_u32 s3, s3, s7")
    p("v_mov_b32 v84, s3")
    p("s_lshl_b32 s7, s6, 2"); p(f"s_add_u32 s7, s7, {QM}")
    p("v_mov_b32 v85, s7")
    p("ds_write_b32 v85, v84")
    p("s_waitcnt lgkmcnt(0)")
    p("s_barrier")
    stamp(p,'A q done')
    srd(p,16,P_WO,512*1024)
    p("s_lshl_b32 s31, s6, 17")
    p("s_lshl_b32 s30, s6, 14")
    for i in range(16):
        p(f"s_add_u32 m0, s30, {WO_L+i*1024}")
        if i>0: p(f"s_add_u32 s31, s31, 8192")
        p(f"buffer_load_dwordx4 v4, {SRD_A}, s31 offen lds")
    p("s_lshr_b32 s61, s6, 1"); p("s_lshl_b32 s3, s4, 1"); p("s_add_u32 s61, s61, s3")
    p("s_and_b32 s62, s6, 1"); p("s_lshl_b32 s3, s5, 1"); p("s_add_u32 s62, s62, s3")
    p("v_and_b32 v2, 31, v0"); p("s_lshl_b32 s3, s61, 5"); p("v_add_u32 v2, s3, v2"); p("v_lshlrev_b32 v2, 10, v2")
    p("v_lshrrev_b32 v3, 5, v0"); p("v_lshl_add_u32 v8, v3, 4, v2")
    p("s_lshl_b32 s3, s62, 6")
    p(f"buffer_load_dwordx4 v[240:243], v8, {SRD_X}, s3 offen")
    p(f"buffer_load_dwordx4 v[244:247], v8, {SRD_X}, s3 offen offset:32")

KA=0; VA=64
SB=[16,32]; OB=[64,80]; QB=[96,100]; CB=104; IDX=48; ZR=52; SLA=56; SLB=57; QA=58; TB=120
THRESH=40.0
VMASK='s[80:81]'

def QK(Sn,kn,Qn,slow): return f"v_mfma_f32_32x32x16_bf16 v[{Sn}:{Sn+15}], a[{KA+4*kn}:{KA+4*kn+3}], v[{Qn}:{Qn+3}], {f'v[{CB}:{CB+15}]' if slow else '0'}"
def PV(O,areg,S): return f"v_smfmac_f32_32x32x32_bf16 v[{O}:{O+15}], a[{areg}:{areg+3}], v[{S}:{S+7}], v{IDX}"

def slot_write(p,O):
    p(f"ds_write_b128 v{SLA}, v[{O}:{O+3}]")
    p(f"ds_write_b128 v{SLA}, v[{O+4}:{O+7}] offset:1024")
    p(f"ds_write_b32 v{SLB}, v{O+8}")

def att_pass(p, ps, first=False, slow=False, vm=None):
    for t in range(16):
        S=SB[t%2]; Sn=SB[(t+1)%2]
        O=OB[ps]; Op=OB[ps] if t>0 else OB[1-ps]
        Qn=QB[ps] if t<15 else QB[1-ps]
        kn=(t+1)%16; tp=(t-1)%16
        e=lambda i: f"v_exp_f32 v{S+i}, v{S+i}"
        pv2=PV(Op,VA+8*tp+4,Sn+8)
        I=[e(0),e(1),pv2,e(2),e(3),e(4),QK(Sn,kn,Qn,slow),e(5),e(6),e(7),e(8),e(9),PV(O,VA+8*t,S),e(10),e(11),e(12),e(13),e(14),e(15)]
        ins={}
        def add(pos,txt): ins.setdefault(pos,[]).append(txt)
        if first and t==0: I[2]=None
        if not first:
            if t==2:
                add(4,f"ds_write_b128 v{SLA}, v[{Op if 0 else OB[1-ps]}:{OB[1-ps]+3}]")
                add(8,f"ds_write_b128 v{SLA}, v[{OB[1-ps]+4}:{OB[1-ps]+7}] offset:1024")
                add(10,f"ds_write_b32 v{SLB}, v{OB[1-ps]+8}")
            if t==3:
                add(4,f"v_add_u32 v{SLA}, 9216, v{SLA}"); add(8,f"v_add_u32 v{SLB}, 9216, v{SLB}")
            if t==8:
                Z=OB[1-ps]
                add(16,f"v_mfma_f32_32x32x16_bf16 v[{Z}:{Z+15}], v[{ZR}:{ZR+3}], v[{ZR}:{ZR+3}], 0")
        if t==4:
            Qd=QB[1-ps]
            add(4,f"ds_read_b128 v[{Qd}:{Qd+3}], v{QA}")
            if slow: add(5,f"ds_read_b32 v133, v132")
        if t==5:
            add(4,f"v_add_u32 v{QA}, 1024, v{QA}")
            if slow: add(8,"v_add_u32 v132, 256, v132")
        if t==14:
            add(0,"s_waitcnt lgkmcnt(0)")
        if t==15 and slow:
            for j in range(16): add(1,f"v_mov_b32 v{CB+j}, v133")
        if vm is not None:
            vm.wait(('V',t,0))
            if t+4<16: add(4,('K',t+4))
            if t+3<16: add(9,('V',t+3))
        for i,x in enumerate(I):
            for y in ins.get(i,[]):
                if isinstance(y,tuple): (ldK if y[0]=='K' else ldV)(p,vm,y[1])
                else: p(y)
            if x: p(x)

def ldK(p,vm,j):
    p(f"s_add_u32 s3, s30, {j*1024}")
    vm.issue(('K',j),f"buffer_load_dwordx4 a[{KA+4*j}:{KA+4*j+3}], v9, {SRD_WS}, s3 offen sc1")
def ldV(p,vm,j):
    p(f"s_add_u32 s3, s31, {j*1024}")
    p(f"s_mov_b64 exec, {VMASK}")
    vm.issue(('V',j,0),f"buffer_load_dwordx4 a[{VA+8*j}:{VA+8*j+3}], v4, {SRD_WS}, s3 offen sc1")
    vm.issue(('V',j,1),f"buffer_load_dwordx4 a[{VA+8*j+4}:{VA+8*j+7}], v4, {SRD_WS}, s3 offen offset:512 sc1")
    p("s_mov_b64 exec, -1")

def o_store(p,O,jj):
    p(f"v_rcp_f32 v{TB}, v{O+8}")
    p(f"v_mov_b32 v{TB+1}, v{O+8}")
    p(f"v_mov_b32 v{TB+1}, v{TB}")
    for j in range(4): p(f"v_pk_mul_f32 v[{O+2*j}:{O+2*j+1}], v[{O+2*j}:{O+2*j+1}], v[{TB}:{TB+1}]")
    for j in range(4): p(f"v_cvt_pk_bf16_f32 v{TB+4+j}, v{O+2*j}, v{O+2*j+1}")
    p(f"buffer_store_dwordx4 v[{TB+4}:{TB+7}], v9, {SRD_WS}, s63 offen offset:{jj*1024} sc1")

def attention(p):
    p("v_mov_b32 v3, 0x3f803f80")
    p("v_and_b32 v4, 27, v0"); p("v_cmp_eq_u32 vcc, 16, v4"); p("v_cndmask_b32 v3, 0, v3, vcc")
    for i in range(128): p(f"v_accvgpr_write_b32 a{VA+i}, v3")
    p(f"v_mov_b32 v{IDX}, 0xdddddddd")
    for i in range(4): p(f"v_mov_b32 v{ZR+i}, 0")
    for i in range(16): p(f"v_mov_b32 v{OB[0]+i}, 0"); p(f"v_mov_b32 v{OB[1]+i}, 0")
    p("s_mov_b32 s80, 0xffff"); p("s_mov_b32 s81, 0xffff")
    p("v_lshrrev_b32 v4, 5, v0")
    p("v_and_b32 v5, 15, v0")
    p("v_lshl_add_u32 v4, v4, 4, v5")
    p("v_lshlrev_b32 v4, 4, v4")
    p("s_mul_i32 s3, s6, 2304"); p(f"s_add_u32 s3, s3, {OP}")
    p(f"v_add_u32 v{SLA}, s3, v9")
    p("s_add_u32 s3, s3, 2048")
    p(f"v_lshl_add_u32 v{SLB}, v0, 2, s3")
    p(f"v_add_u32 v{QA}, {QL+1024}, v9")
    p(f"v_add_u32 v59, {QL}, v9")
    p(f"v_mov_b32 v60, {QM}")
    p(f"ds_read_b128 v[{QB[0]}:{QB[0]+3}], v59")
    p(f"ds_read_b128 v[60:63], v60")
    p("s_lshl_b32 s30, s6, 14")
    p(f"s_add_u32 s31, s30, {L.VF}")
    p(f"s_add_u32 s30, s30, {L.KF}")
    p("v_lshlrev_b32 v2, 2, v0")
    p("s_waitcnt lgkmcnt(0)")
    p("v_max_u32 v60, v60, v61"); p("v_max3_u32 v60, v60, v62, v63")
    stamp(p,'B pre-S1',vt=200)
    p("s_cmp_lg_u32 s6, 0"); p("s_cbranch_scc1 B_s1skip")
    poll(p,'s1',SRD_D,'0','v2',2,61)
    p.label("B_s1skip")
    p("s_barrier")
    stamp(p,'B S1 done',vt=200)
    vm=VM(p)
    p(f"s_mov_b32 s3, {L.KM}")
    vm.issue('KM',f"buffer_load_dword v61, v2, {SRD_WS}, s3 offen sc1")
    ldK(p,vm,0); ldK(p,vm,1); ldV(p,vm,0); ldK(p,vm,2); ldV(p,vm,1); ldK(p,vm,3); ldV(p,vm,2)
    vm.wait('KM')
    for d in ("row_ror:8","row_ror:4","row_ror:2","row_ror:1"):
        p(f"v_max_u32_dpp v61, v61, v61 {d} row_mask:0xf bank_mask:0xf")
    p("v_readlane_b32 s3, v61, 0"); p("v_readlane_b32 s7, v61, 16"); p("s_max_u32 s3, s3, s7")
    p("v_readlane_b32 s7, v61, 32"); p("s_max_u32 s3, s3, s7")
    p("v_readlane_b32 s7, v61, 48"); p("s_max_u32 s65, s3, s7")
    p("v_mul_f32 v60, s65, v60")
    p(f"v_cmp_nge_f32 vcc, {hx(f2u(THRESH*THRESH/(1.02*1.02)))}, v60")
    p("s_cmp_lg_u64 vcc, 0")
    p("s_cbranch_scc1 L_slow")
    vm.wait(('K',0))
    p(QK(SB[0],0,QB[0],False))
    stamp(p,'B first',vt=200)
    import copy
    vmf=copy.copy(vm); vmf.pos=dict(vm.pos)
    att_pass(p,0,first=True,vm=vmf)
    p("s_waitcnt vmcnt(0)")
    stamp(p,'B pass0',vt=200)
    p("s_mov_b32 s64, 4")
    p("s_branch L_attY")
    p.label("L_attX")
    att_pass(p,0)
    p.label("L_attY")
    att_pass(p,1)
    p("s_sub_u32 s64, s64, 1")
    p("s_cmp_lg_u32 s64, 0")
    p("s_cbranch_scc1 L_attX")
    p.label("L_att_tail")
    p(PV(OB[1],VA+8*15+4,SB[1]+8))
    slot_write(p,OB[1])
    p("s_branch L_att_done")
    p.label("L_slow")
    for j in range(4,16): ldK(p,vm,j)
    for j in range(3,16): ldV(p,vm,j)
    p("s_waitcnt vmcnt(0)")
    p("s_mov_b32 s64, 0")
    p.label("L_mx")
    p("s_lshl_b32 s3, s64, 10")
    p("v_add_u32 v132, s3, v59")
    p(f"ds_read_b128 v[{QB[1]}:{QB[1]+3}], v132")
    p("v_mov_b32 v133, 0xff800000")
    p("s_waitcnt lgkmcnt(0)")
    p(QK(SB[0],0,QB[1],False))
    for t in range(16):
        S=SB[t%2]; Sn=SB[(t+1)%2]
        if t<15: p(QK(Sn,t+1,QB[1],False))
        for j in range(8): p(f"v_max3_f32 v133, v{S+2*j}, v{S+2*j+1}, v133")
    p("v_mov_b32 v134, v133")
    p("v_permlane32_swap_b32 v133, v134")
    p("v_max_f32 v133, v133, v134")
    p("s_lshl_b32 s3, s64, 9"); p("s_lshl_b32 s7, s6, 7"); p("s_add_u32 s3, s3, s7")
    p("v_and_b32 v134, 31, v0")
    p("v_lshl_add_u32 v134, v134, 2, s3")
    p(f"v_add_u32 v134, {MX}, v134")
    p(f"ds_write_b32 v134, v133")
    p("s_add_u32 s64, s64, 1"); p("s_cmp_lt_u32 s64, 8"); p("s_cbranch_scc1 L_mx")
    p("s_waitcnt lgkmcnt(0)")
    p("s_barrier")
    p("v_and_b32 v134, 31, v0"); p("v_lshlrev_b32 v134, 2, v134")
    p("s_lshl_b32 s3, s6, 10"); p(f"s_add_u32 s3, s3, {MX}"); p("v_add_u32 v134, s3, v134")
    for qq in range(2):
        for ww in range(4): p(f"ds_read_b32 v{16+4*qq+ww}, v134 offset:{qq*512+ww*128}")
    p("s_waitcnt lgkmcnt(0)")
    p("s_lshl_b32 s3, s6, 9"); p(f"s_add_u32 s3, s3, {MF}")
    p("v_lshl_add_u32 v134, v0, 2, s3")
    for qq in range(2):
        b=16+4*qq
        p(f"v_max3_f32 v{b}, v{b}, v{b+1}, v{b+2}"); p(f"v_max_f32 v{b}, v{b}, v{b+3}"); p(f"v_sub_f32 v{b}, 0, v{b}")
        p(f"ds_write_b32 v134, v{b} offset:{qq*256}")
    p("s_waitcnt lgkmcnt(0)")
    p("s_barrier")
    p(f"v_lshlrev_b32 v132, 2, v0"); p(f"v_add_u32 v132, {MF}, v132")
    p(f"ds_read_b32 v133, v132")
    p("v_add_u32 v132, 256, v132")
    p("s_waitcnt lgkmcnt(0)")
    for j in range(16): p(f"v_mov_b32 v{CB+j}, v133")
    p(QK(SB[0],0,QB[0],True))
    att_pass_slow(p)
    p.label("L_att_done")
    stamp(p,'B loop done',vt=200)
    p("s_waitcnt lgkmcnt(0)")
    p("s_barrier")
    p("s_mul_i32 s3, s6, 18432"); p(f"s_add_u32 s3, s3, {OP}")
    p("v_add_u32 v60, s3, v9")
    p("s_add_u32 s3, s3, 2048")
    p("v_lshl_add_u32 v61, v0, 2, s3")
    R=[[128+36*jj+9*ww for ww in range(4)] for jj in range(2)]
    for jj in range(2):
        for ww in range(4):
            b=128+(jj*4+ww)*8; off=jj*9216+ww*2304
            p(f"ds_read_b128 v[{b}:{b+3}], v60 offset:{off}")
            p(f"ds_read_b128 v[{b+4}:{b+7}], v60 offset:{off+1024}")
            p(f"ds_read_b32 v{192+jj*4+ww}, v61 offset:{off}")
    p("s_lshr_b32 s3, s6, 1"); p("s_lshl_b32 s7, s4, 1"); p("s_add_u32 s3, s3, s7"); p("s_lshl_b32 s3, s3, 5")
    p("s_lshl_b32 s7, s5, 2"); p("s_add_u32 s3, s3, s7")
    p("s_and_b32 s7, s6, 1"); p("s_lshl_b32 s7, s7, 1"); p("s_add_u32 s3, s3, s7")
    p("s_lshl_b32 s3, s3, 10"); p(f"s_add_u32 s63, s3, {L.OF}")
    for jj in range(2):
        b=128+jj*32; sb=192+jj*4; O=64+16*jj
        p(f"s_waitcnt lgkmcnt({12*(1-jj)})")
        for j in range(4):
            p(f"v_pk_add_f32 v[{b+2*j}:{b+2*j+1}], v[{b+2*j}:{b+2*j+1}], v[{b+8+2*j}:{b+8+2*j+1}]")
            p(f"v_pk_add_f32 v[{b+16+2*j}:{b+16+2*j+1}], v[{b+16+2*j}:{b+16+2*j+1}], v[{b+24+2*j}:{b+24+2*j+1}]")
        p(f"v_add_f32 v{sb}, v{sb}, v{sb+1}"); p(f"v_add_f32 v{sb+2}, v{sb+2}, v{sb+3}")
        for j in range(4):
            p(f"v_pk_add_f32 v[{O+2*j}:{O+2*j+1}], v[{b+2*j}:{b+2*j+1}], v[{b+16+2*j}:{b+16+2*j+1}]")
        p(f"v_add_f32 v{O+8}, v{sb}, v{sb+2}")
        o_store(p,O,jj)

def att_pass_slow(p):
    att_pass(p,0,first=True,slow=True,vm=None)
    p("s_mov_b32 s64, 4")
    p("s_branch L_sttY")
    p.label("L_sttX")
    att_pass(p,0,slow=True)
    p.label("L_sttY")
    att_pass(p,1,slow=True)
    p("s_sub_u32 s64, s64, 1")
    p("s_cmp_lg_u32 s64, 0")
    p("s_cbranch_scc1 L_sttX")
    p(PV(OB[1],VA+8*15+4,SB[1]+8))
    slot_write(p,OB[1])

def w1_setup(p):
    srd(p,16,P_WG,512*2752)
    srd(p,20,P_WU,512*2752)
    p("s_and_b32 s3, s4, 1"); p("s_lshl_b32 s3, s3, 3"); p("s_add_u32 s3, s3, s5")
    p("s_min_u32 s7, s3, 6"); p("s_mul_i32 s66, s3, 5"); p("s_add_u32 s66, s66, s7")
    p("s_cmp_lt_u32 s3, 6"); p("s_cselect_b32 s67, 6, 5")
    for i in range(3):
        p(f"v_add_u32 v11, {64*i}, v0")
        p("v_mul_u32_u24 v12, 5462, v11"); p("v_lshrrev_b32 v12, 16, v12")
        p("v_mul_u32_u24 v13, 12, v12"); p("v_sub_u32 v13, v11, v13")
        p("v_mul_u32_u24 v12, 2752, v12")
        p(f"v_lshl_add_u32 v{2+i}, v13, 4, v12")
        p("v_add_u32 v13, 10, v13"); p("v_subrev_u32 v14, 12, v13"); p("v_min_u32 v13, v13, v14")
        p(f"v_lshl_add_u32 v{5+i}, v13, 4, v12")
    p(f"s_mul_i32 s68, s6, {16*2752}"); p("s_lshl_b32 s3, s66, 5"); p("s_add_u32 s68, s68, s3")
    p("s_mul_i32 s69, s6, 3072")
assert all((c*5462)>>16==c//12 for c in range(192))

def w1_dma(q):
    slot=(q+3)%6
    out=[]
    for mat in range(2):
        for i in range(3):
            out.append([f"s_add_u32 m0, s69, {slot*SLOT+mat*12288+i*1024}",
                        f"s_add_u32 s3, s68, {q*64*2752}",
                        f"buffer_load_dwordx4 v{2+3*mat+i}, {SRD_A if mat==0 else SRD_B}, s3 offen lds"])
    return out

def wo_phase(p):
    w1_setup(p)
    p("s_waitcnt lgkmcnt(0)")
    p("s_barrier")
    n=0
    for q in range(3):
        for g in w1_dma(q):
            for x in g: p(x)
            n+=1
            if n==12:
                p("s_waitcnt vmcnt(12)")
                flag_off(p,F2); set_flag(p,'s3',12)
    stamp(p,'C flag set',vt=200)
    lane_params(p)
    p("s_and_b32 s3, s6, 1"); p("s_lshl_b32 s3, s3, 2")
    tr_base128(p,'v10',"s3",WO_L)
    p("s_and_b32 s3, s6, 1"); p("s_lshl_b32 s3, s3, 15")
    p("v_add_u32 v10, s3, v10")
    p("v_xor_b32 v11, 64, v10")
    p("v_and_b32 v12, 31, v0"); p("v_lshlrev_b32 v12, 2, v12")
    p("s_lshl_b32 s30, s4, 7"); p(f"s_add_u32 s30, s30, {F2}")
    poll(p,'s2',SRD_WS,'s30','v12',1,13)
    stamp(p,'C S2 done',vt=200)
    p("s_lshl_b32 s31, s61, 5"); p("s_and_b32 s3, s6, 1"); p("s_lshl_b32 s3, s3, 4"); p("s_add_u32 s31, s31, s3")
    p("s_lshl_b32 s31, s31, 10"); p(f"s_add_u32 s31, s31, {L.OF}")
    vm=VM(p)
    for i in range(16):
        p(f"s_add_u32 s3, s31, {i*1024}")
        vm.issue(i,f"buffer_load_dwordx4 a[{4*i}:{4*i+3}], v9, {SRD_WS}, s3 offen sc1")
    AB=[16+8*b for b in range(4)]
    ACC=[64,80]
    def rd(i):
        b=AB[i%4]
        for cc,va in enumerate(('v10','v11')):
            p(f"ds_read_b64_tr_b16 v[{b+4*cc}:{b+4*cc+1}], {va} offset:{i*2048}")
            p(f"ds_read_b64_tr_b16 v[{b+4*cc+2}:{b+4*cc+3}], {va} offset:{i*2048+512}")
    for i in range(3): rd(i)
    for i in range(16):
        if i+3<16: rd(i+3)
        rem=min(3,15-i)
        p(f"s_waitcnt vmcnt({15-i}) lgkmcnt({rem*4})")
        b=AB[i%4]
        for cc in range(2):
            a=ACC[cc]
            p(f"v_mfma_f32_32x32x16_bf16 v[{a}:{a+15}], v[{b+4*cc}:{b+4*cc+3}], a[{4*i}:{4*i+3}], {'0' if i==0 else f'v[{a}:{a+15}]'}")
    stamp(p,'C mfma',vt=200)
    pair_reduce(p,ACC,RED)
    for j in range(8):
        p(f"v_lshlrev_b32 v{96+2*j}, 16, v{240+j}")
        p(f"v_and_b32 v{97+2*j}, 0xffff0000, v{240+j}")
    for j in range(8): p(f"v_pk_add_f32 v[{64+2*j}:{65+2*j}], v[{64+2*j}:{65+2*j}], v[{96+2*j}:{97+2*j}]")
    for j in range(8): p(f"v_cvt_pk_bf16_f32 v{32+j}, v{64+2*j}, v{65+2*j}")
    p("s_lshl_b32 s3, s61, 5"); p("s_lshl_b32 s7, s62, 1"); p("s_add_u32 s3, s3, s7"); p("s_lshl_b32 s3, s3, 10"); p(f"s_add_u32 s3, s3, {L.HF}")
    p(f"buffer_store_dwordx4 v[32:35], v9, {SRD_WS}, s3 offen sc1")
    p(f"buffer_store_dwordx4 v[36:39], v9, {SRD_WS}, s3 offen offset:1024 sc1")
    p("v_pk_mul_f32 v[42:43], v[64:65], v[64:65]"); p("v_pk_add_f32 v[40:41], v[64:65], v[66:67]")
    p("v_pk_fma_f32 v[42:43], v[66:67], v[66:67], v[42:43]")
    for j in range(2,8):
        p(f"v_pk_add_f32 v[40:41], v[40:41], v[{64+2*j}:{65+2*j}]"); p(f"v_pk_fma_f32 v[42:43], v[{64+2*j}:{65+2*j}], v[{64+2*j}:{65+2*j}], v[42:43]")
    p("v_add_f32 v40, v40, v41"); p("v_add_f32 v41, v42, v43")
    p("v_mov_b32 v42, v40"); p("v_mov_b32 v43, v41")
    p("v_permlane32_swap_b32 v40, v42"); p("v_permlane32_swap_b32 v41, v43")
    p("v_add_f32 v40, v40, v42"); p("v_add_f32 v41, v41, v43")
    p("s_lshl_b32 s3, s61, 12"); p("s_lshl_b32 s7, s62, 3"); p("s_add_u32 s3, s3, s7"); p(f"s_add_u32 s3, s3, {L.HS}")
    p("v_lshlrev_b32 v12, 7, v0")
    p("s_mov_b32 exec_hi, 0")
    p(f"buffer_store_dwordx2 v[40:41], v12, {SRD_WS}, s3 offen sc1")
    p("s_mov_b64 exec, -1")
    for j in range(8): p(f"v_accvgpr_write_b32 a{248+j}, v{32+j}")
    n=0
    for q in range(3,6):
        for g in w1_dma(q):
            for x in g: p(x)
            n+=1
            if n==12:
                p("s_waitcnt vmcnt(12)")
                flag_off(p,F3); set_flag(p,'s3',12)
    stamp(p,'C done',vt=200)

def flag_off(p,F):
    p("s_lshl_b32 s3, s4, 7"); p("s_lshl_b32 s7, s5, 4"); p("s_add_u32 s3, s3, s7"); p("s_lshl_b32 s7, s6, 2"); p("s_add_u32 s3, s3, s7")
    p(f"s_add_u32 s3, s3, {F}")

def pair_reduce(p,ACC,base):
    p(f"s_lshl_b32 s3, s6, 12"); p(f"s_add_u32 s3, s3, {base}")
    p("v_add_u32 v12, s3, v9")
    for q in range(4): p(f"ds_write_b128 v12, v[{ACC[1]+4*q}:{ACC[1]+4*q+3}] offset:{q*1024}")
    p("v_xor_b32 v12, 4096, v12")
    p("s_waitcnt lgkmcnt(0)")
    p("s_barrier")
    for q in range(4): p(f"ds_read_b128 v[{ACC[1]+4*q}:{ACC[1]+4*q+3}], v12 offset:{q*1024}")
    for q in range(4):
        p(f"s_waitcnt lgkmcnt({3-q})")
        for j in range(2):
            a=ACC[0]+4*q+2*j; b=ACC[1]+4*q+2*j
            p(f"v_pk_add_f32 v[{a}:{a+1}], v[{a}:{a+1}], v[{b}:{b+1}]")

def ffn1_phase(p):
    p("s_lshr_b32 s70, s4, 1"); p("s_lshl_b32 s70, s70, 2"); p("s_add_u32 s70, s70, s6")
    lane_params(p)
    p("v_mul_u32_u24 v10, 192, v14"); p("v_add_u32 v10, v10, v96")
    p(f"v_mul_u32_u24 v97, {12288+32}, v15"); p("v_add_u32 v28, v10, v97")
    p(f"v_mul_u32_u24 v97, {12288+32-192}, v15"); p("v_add_u32 v29, v10, v97")
    p("v_and_b32 v12, 31, v0"); p("v_lshlrev_b32 v12, 7, v12"); p("v_lshrrev_b32 v13, 5, v0"); p("v_lshl_add_u32 v30, v13, 6, v12")
    p("v_lshlrev_b32 v12, 2, v0")
    p("s_lshr_b32 s30, s4, 1"); p("s_lshl_b32 s30, s30, 8"); p(f"s_add_u32 s30, s30, {F3}")
    poll(p,'s3',SRD_WS,'s30','v12',1,13)
    stamp(p,'D S3 done',vt=12)
    vm=VM(p)
    p("s_lshl_b32 s30, s70, 15"); p(f"s_add_u32 s30, s30, {L.HF}")
    def ldB(s):
        p(f"s_add_u32 s3, s30, {s*1024}")
        vm.issue(('B',s),f"buffer_load_dwordx4 v[{128+4*s}:{131+4*s}], v9, {SRD_WS}, s3 offen sc1")
    p("s_lshl_b32 s31, s70, 12"); p(f"s_add_u32 s31, s31, {L.HS}")
    ldB(0)
    for i in range(4): vm.issue(('S',i),f"buffer_load_dwordx4 v[{32+4*i}:{35+4*i}], v30, {SRD_WS}, s31 offen offset:{i*16} sc1")
    LA=8
    for s in range(1,LA): ldB(s)
    p("s_barrier")
    AB=[0,24]
    def rdA(s):
        q,ss=divmod(s,4); b=AB[s%2]; out=[]
        for uu in range(6):
            va='v10' if uu<5 else 'v11'
            off=ss*3072+uu*32
            out.append(f"ds_read_b64_tr_b16 a[{b+4*uu}:{b+4*uu+1}], {va} offset:{off}")
            out.append(f"ds_read_b64_tr_b16 a[{b+4*uu+2}:{b+4*uu+3}], {va} offset:{off+768}")
        return out
    def setbase(q):
        slot=(q+3)%6
        return [f"v_add_u32 v10, {slot*SLOT}, v28", f"v_add_u32 v11, {slot*SLOT}, v29"]
    for x in setbase(0): p(x)
    for x in rdA(0): p(x)
    vm.wait(('S',3))
    for i in range(2):
        p(f"v_pk_add_f32 v[{32+4*i}:{33+4*i}], v[{32+4*i}:{33+4*i}], v[{34+4*i}:{35+4*i}]")
        p(f"v_pk_add_f32 v[{40+4*i}:{41+4*i}], v[{40+4*i}:{41+4*i}], v[{42+4*i}:{43+4*i}]")
    p("v_pk_add_f32 v[32:33], v[32:33], v[36:37]"); p("v_pk_add_f32 v[40:41], v[40:41], v[44:45]")
    p("v_pk_add_f32 v[16:17], v[32:33], v[40:41]")
    p("v_mov_b32 v18, v16"); p("v_mov_b32 v19, v17")
    p("v_permlane32_swap_b32 v16, v18"); p("v_permlane32_swap_b32 v17, v19")
    p("v_add_f32 v16, v16, v18"); p("v_add_f32 v17, v17, v19")
    p(f"v_mul_f32 v16, {hx(f2u(1/512))}, v16"); p(f"v_mul_f32 v17, {hx(f2u(1/512))}, v17")
    p("v_fma_f32 v17, -v16, v16, v17"); p("v_max_f32 v17, 0, v17"); p(f"v_add_f32 v17, {hx(f2u(1e-5))}, v17")
    p("v_rsq_f32 v17, v17"); p("v_mul_f32 v16, v16, v17"); p("v_sub_f32 v18, 0, v16"); p("v_mov_b32 v19, v18"); p("v_mov_b32 v16, v17")
    def norm(s):
        out=[]
        for i in range(4):
            r=128+4*s+i; t0=20+2*i; t1=21+2*i
            out.append(f"v_lshlrev_b32 v{t0}, 16, v{r}"); out.append(f"v_and_b32 v{t1}, 0xffff0000, v{r}")
        for i in range(4):
            t0=20+2*i
            out.append(f"v_pk_fma_f32 v[{t0}:{t0+1}], v[{t0}:{t0+1}], v[16:17], v[18:19]")
        for i in range(4):
            r=128+4*s+i; t0=20+2*i; t1=21+2*i
            out.append(f"v_cvt_pk_bf16_f32 v{r}, v{t0}, v{t1}")
        return out
    vm.wait(('B',0))
    for x in norm(0): p(x)
    stamp(p,'D start',vt=12)
    ACC=[32+16*u for u in range(6)]
    dmas=w1_dma(6)+w1_dma(7)
    for s in range(32):
        nxt=s+1
        pre=[]; rd=[]; fill=[]; mem=[]
        if s==8:
            p("s_barrier")
        if s+LA<32: mem.append(('B',s+LA))
        if 8<=s<20: mem.append(('D',s-8))
        if nxt<32:
            qn,ssn=divmod(nxt,4)
            if nxt==24:
                vm.wait(('D',11))
                p("s_barrier")
            if ssn==0: pre=setbase(qn)
            rd=rdA(nxt); fill=norm(nxt)
        p("s_waitcnt lgkmcnt(0)")
        for x in pre: p(x)
        if nxt<32: vm.wait(('B',nxt))
        b=AB[s%2]
        mf=[f"v_mfma_f32_32x32x16_bf16 v[{ACC[uu]}:{ACC[uu]+15}], a[{b+4*uu}:{b+4*uu+3}], v[{128+4*s}:{131+4*s}], {'0' if s==0 else f'v[{ACC[uu]}:{ACC[uu]+15}]'}" for uu in range(6)]
        fi=0
        for uu in range(6):
            p(mf[uu])
            for x in rd[2*uu:2*uu+2]: p(x)
            k=3 if uu<4 else 2
            for x in fill[fi:fi+k]: p(x)
            fi+=k
            if uu==1 and mem and mem[0][0]=='B': ldB(mem[0][1])
            if uu==3:
                for m in mem:
                    if m[0]=='D':
                        g=dmas[m[1]]; p(g[0]); p(g[1]); vm.issue(('D',m[1]),g[2])
        for x in fill[fi:]: p(x)
    stamp(p,'D mfma done',vt=12)
    c1=-2*1.4426950408889634*0.7978845608028654; c2=c1*0.044715
    p(f"s_mov_b32 s72, {hx(f2u(c2))}"); p("s_mov_b32 s73, s72")
    p(f"v_mov_b32 v28, {hx(f2u(c1))}"); p("v_mov_b32 v29, v28")
    p("v_mov_b32 v30, 1.0"); p("v_mov_b32 v31, 1.0")
    p("s_mul_i32 s30, s70, 86"); p("s_add_u32 s30, s30, s66"); p("s_lshl_b32 s30, s30, 10"); p(f"s_add_u32 s30, s30, {L.AF}")
    for uu in range(6):
        a=ACC[uu]; T=16
        if uu==5:
            p("s_cmp_eq_u32 s67, 5"); p("s_cbranch_scc1 F1_done")
        pr=lambda x,j: f"v[{x+2*j}:{x+2*j+1}]"
        for j in range(4): p(f"v_pk_mul_f32 {pr(T,j)}, {pr(a,j)}, {pr(a,j)}")
        for j in range(4): p(f"v_pk_fma_f32 {pr(T,j)}, {pr(T,j)}, s[72:73], v[28:29]")
        for j in range(4): p(f"v_pk_mul_f32 {pr(T,j)}, {pr(T,j)}, {pr(a,j)}")
        for j in range(8): p(f"v_exp_f32 v{T+j}, v{T+j}")
        for j in range(4): p(f"v_pk_mul_f32 {pr(a,j)}, {pr(a,j)}, {pr(a+8,j)}")
        for j in range(4): p(f"v_pk_add_f32 {pr(T,j)}, {pr(T,j)}, v[30:31]")
        for j in range(8): p(f"v_rcp_f32 v{T+j}, v{T+j}")
        for j in range(4): p(f"v_pk_mul_f32 {pr(T,j)}, {pr(T,j)}, {pr(a,j)}")
        for j in range(4): p(f"v_cvt_pk_bf16_f32 v{24+j}, v{T+2*j}, v{T+2*j+1}")
        p(f"buffer_store_dwordx4 v[24:27], v9, {SRD_WS}, s30 offen offset:{(uu%4)*1024} sc1")
        if uu==3: p("s_add_u32 s30, s30, 4096")
    p.label("F1_done")
    stamp(p,'D epi done',vt=12)

def ffn2_phase(p):
    srd(p,16,P_WD,1376*1024)
    srd(p,24,P_OUT,2048*1024)
    p("v_lshrrev_b32 v1, 3, v0"); p("v_and_b32 v10, 7, v0")
    w128_voff(p,'v4')
    p("s_barrier")
    p("s_lshr_b32 s3, s6, 1"); p("s_and_b32 s7, s6, 1")
    p(f"s_mul_i32 s30, s3, 81920"); p(f"s_mul_i32 s31, s7, 40960"); p("s_add_u32 s74, s30, s31")
    p(f"s_mul_i32 s75, s3, {43*16*1024}"); p(f"s_mul_i32 s31, s7, {320*1024}"); p("s_add_u32 s31, s31, s75")
    for i in range(40):
        p(f"s_add_u32 m0, s74, {i*1024}")
        if i>0: p("s_add_u32 s31, s31, 8192")
        p(f"buffer_load_dwordx4 v4, {SRD_A}, s31 offen lds")
        if i==19:
            p("s_waitcnt vmcnt(20)")
            flag_off(p,F4); set_flag(p,'s3',12)
    stamp(p,'E flag set',vt=12)
    lane_params(p)
    p("s_and_b32 s3, s6, 1"); p("s_lshl_b32 s3, s3, 2")
    tr_base128(p,'v10',"s3",0)
    p("s_and_b32 s3, s6, 1"); p("s_mul_i32 s3, s3, 81920")
    p("v_add_u32 v10, s3, v10")
    p("v_xor_b32 v11, 64, v10")
    p("v_lshlrev_b32 v12, 2, v0")
    p("s_lshr_b32 s30, s4, 1"); p("s_lshl_b32 s30, s30, 8"); p(f"s_add_u32 s30, s30, {F4}")
    poll(p,'s4',SRD_WS,'s30','v12',1,13)
    stamp(p,'E S4 done',vt=12)
    vm=VM(p)
    p("s_mul_i32 s31, s61, 86"); p("s_and_b32 s3, s6, 1"); p("s_mul_i32 s3, s3, 43"); p("s_add_u32 s31, s31, s3")
    p("s_lshl_b32 s31, s31, 10"); p(f"s_add_u32 s31, s31, {L.AF}")
    def ldB(i):
        p(f"s_add_u32 s3, s31, {i*1024}")
        vm.issue(('B',i),f"buffer_load_dwordx4 a[{4*i}:{4*i+3}], v9, {SRD_WS}, s3 offen sc1")
    LA=10; NS=43
    for i in range(LA): ldB(i)
    p("s_barrier")
    AB=[16+8*b for b in range(4)]
    ACC=[64,80]
    def rd(i):
        b=AB[i%4]
        j=i if i<40 else i-40
        off=j*2048
        va=('v10','v11')
        if 24<=i<40: va=('v14','v15'); off-=49152
        for cc in range(2):
            p(f"ds_read_b64_tr_b16 v[{b+4*cc}:{b+4*cc+1}], {va[cc]} offset:{off}")
            p(f"ds_read_b64_tr_b16 v[{b+4*cc+2}:{b+4*cc+3}], {va[cc]} offset:{off+512}")
    p("v_add_u32 v14, 49152, v10"); p("v_add_u32 v15, 49152, v11")
    p("s_and_b32 s7, s6, 1"); p("s_mul_i32 s3, s7, 3")
    p("s_lshl_b32 s76, s3, 13"); p("s_add_u32 s76, s76, s75"); p(f"s_add_u32 s76, s76, {40*16*1024}")
    p("s_lshl_b32 s77, s3, 10"); p("s_lshr_b32 s3, s6, 1"); p("s_mul_i32 s3, s3, 81920"); p("s_add_u32 s77, s77, s3")
    for i in range(3): rd(i)
    for i in range(NS):
        if i==4:
            p("s_barrier")
            for j in range(3):
                p(f"s_add_u32 m0, s77, {j*1024}"); p(f"s_add_u32 s3, s76, {j*8192}")
                vm.issue(('D',j),f"buffer_load_dwordx4 v4, {SRD_A}, s3 offen lds")
        if i==36:
            vm.wait(('D',2))
            p("s_barrier")
        if i+3<NS: rd(i+3)
        if i+LA<NS: ldB(i+LA)
        rem=min(3,NS-1-i)
        vm.wait(('B',i),extra=f" lgkmcnt({rem*4})")
        b=AB[i%4]
        for cc in range(2):
            a=ACC[cc]
            p(f"v_mfma_f32_32x32x16_bf16 v[{a}:{a+15}], v[{b+4*cc}:{b+4*cc+3}], a[{4*i}:{4*i+3}], {'0' if i==0 else f'v[{a}:{a+15}]'}")
    stamp(p,'E mfma',vt=12)
    pair_reduce(p,ACC,8192)
    for j in range(8): p(f"v_accvgpr_read_b32 v{32+j}, a{248+j}")
    for j in range(8):
        p(f"v_lshlrev_b32 v{96+2*j}, 16, v{32+j}")
        p(f"v_and_b32 v{97+2*j}, 0xffff0000, v{32+j}")
    for j in range(8): p(f"v_pk_add_f32 v[{64+2*j}:{65+2*j}], v[{64+2*j}:{65+2*j}], v[{96+2*j}:{97+2*j}]")
    for j in range(8): p(f"v_cvt_pk_bf16_f32 v{32+j}, v{64+2*j}, v{65+2*j}")
    p("s_lshl_b32 s3, s62, 6")
    p(f"buffer_store_dwordx4 v[32:35], v8, {SRD_O}, s3 offen")
    p(f"buffer_store_dwordx4 v[36:39], v8, {SRD_O}, s3 offen offset:32")

def build(fname):
    p=Prog()
    end="END_K"
    prologue(p,end)
    stamp(p,'start')
    phase_a(p)
    attention(p)
    wo_phase(p)
    ffn1_phase(p)
    ffn2_phase(p)
    stamp(p,'end',vt=12)
    p.label(end)
    p("s_endpgm")
    ins=p.finalize(name='k')
    print(f"{len(ins)} lines, {p.nops} hazard nops",file=sys.stderr)
    ref=open('sequential_preLN__grouped_kv_mqa__geglu_ffn__prompt.s.ref').read()
    hdr=ref.split('; Override')[0]
    out=hdr+f"; @launch grid=(256,1,1) block=(256,1,1) lds={LDS_TOTAL}\n"
    out+='.amdgcn_target "amdgcn-amd-amdhsa--gfx950"\n.text\n'
    out+=f".globl {KNAME}\n.p2align 8\n.type {KNAME},@function\n{KNAME}:\n"+render(ins)
    out+=f""".section .rodata,"a"
.p2align 6
.amdhsa_kernel {KNAME}
  .amdhsa_next_free_vgpr 512
  .amdhsa_next_free_sgpr 96
  .amdhsa_accum_offset 256
  .amdhsa_group_segment_fixed_size 0
  .amdhsa_kernarg_size 96
  .amdhsa_user_sgpr_count 2
  .amdhsa_user_sgpr_kernarg_segment_ptr 1
  .amdhsa_system_sgpr_workgroup_id_x 1
.end_amdhsa_kernel
"""
    open(fname,'w').write(out)

if __name__=='__main__':
    out=sys.argv[1]
    if len(sys.argv)>2: PROFILE=True
    build(out)
    open(out+'.stamps','w').write('\n'.join(STAMPS))
```

```python
import sys, os, struct
from asm import Prog, render
import layout as L

OPT=set(x for x in os.environ.get('OPT','').split(',') if x)
KNAME='sequential_preLN__grouped_kv_mqa__geglu_ffn__prompt_kernel'
QSCALE=1.4426950408889634/4.0
def f2u(x): return struct.unpack('<I',struct.pack('<f',x))[0]
def hx(x): return '0x%08x'%(x & 0xffffffff)

SRD_WS='s[8:11]'; SRD_X='s[12:15]'; SRD_A='s[16:19]'; SRD_B='s[20:23]'; SRD_O='s[24:27]'; SRD_D='s[56:59]'
P_X,P_WQ,P_WK,P_WV,P_WO,P_WG,P_WU,P_WD,P_OUT,P_WS,P_DBG=32,34,36,38,40,44,46,48,50,52,54
SPIN=1<<17

XH0=0; XH1=33792; WQ=67584; WK=XH1; WV=XH1+16384+128
WO_L=0; OP=65536; QL=139264; MX=147456; MF=MX+4096; QM=153600
SLOT=24576; RED=147456
LDS_TOTAL=163840
F2=L.FLG; F3=L.FLG+4096; F4=L.FLG+8192

def srd(p, d, ptr, size):
    p(f"s_mov_b32 s{d}, s{ptr}")
    p(f"s_mov_b32 s{d+1}, s{ptr+1}")
    p(f"s_mov_b32 s{d+2}, {hx(size)}")
    p(f"s_mov_b32 s{d+3}, 0x20000")
def csel(p,d,a,b):
    p(f"s_mov_b32 {d}, {b}"); p(f"s_cmov_b32 {d}, {a}")

PROFILE=False
STAMPS=[]
DSTAMPS=[]
def dstamp(p,name,vt):
    slot=len(DSTAMPS)
    if slot>=16: return
    DSTAMPS.append(name)
    lab=f"DST_{slot}_{len(p.lines)}"
    p("s_lshl_b32 s90, s2, 2"); p("s_or_b32 s90, s90, s6")
    p(f"s_cmp_lg_u32 s90, {int(os.environ.get('DWG','40'))*4}"); p(f"s_cbranch_scc1 {lab}")
    p("s_memrealtime s[90:91]")
    p("s_waitcnt lgkmcnt(0) ; nowaitcheck")
    p(f"v_mov_b32 v{vt}, s90"); p(f"v_mov_b32 v{vt+1}, {slot*4}")
    p("s_mov_b64 s[94:95], exec"); p("s_mov_b64 exec, 1")
    p(f"buffer_store_dword v{vt}, v{vt+1}, {SRD_D}, 0 offen")
    p("s_mov_b64 exec, s[94:95]")
    p.label(lab)
DSEL=os.environ.get('DSEL','').split(',')
def stamp(p, name, vt=250, dyn=None, n=1):
    if name in DSEL: dstamp(p,name,vt)
    if not PROFILE: return
    slot=len(STAMPS)
    for i in range(n): STAMPS.append(name+(f"[{i}]" if n>1 else ""))
    lab=f"ST_{slot}_{len(p.lines)}"
    p("s_cmp_lg_u32 s6, 0"); p(f"s_cbranch_scc1 {lab}")
    p("s_memrealtime s[90:91]")
    p("s_memtime s[88:89]")
    p("s_lshl_b32 s92, s2, 3"); p(f"s_add_u32 s92, s92, {L.PROF+slot*2048}")
    if dyn: p(f"s_lshl_b32 s93, {dyn}, 11"); p("s_add_u32 s92, s92, s93")
    p("s_waitcnt lgkmcnt(0) ; nowaitcheck")
    p(f"v_mov_b32 v{vt}, s90"); p(f"v_mov_b32 v{vt+1}, s88"); p(f"v_mov_b32 v{vt+2}, 0")
    p("s_mov_b64 s[94:95], exec"); p("s_mov_b64 exec, 1")
    p(f"buffer_store_dwordx2 v[{vt}:{vt+1}], v{vt+2}, {SRD_WS}, s92 offen")
    p("s_mov_b64 exec, s[94:95]")
    p.label(lab)

class VM:
    def __init__(s,p): s.p=p; s.n=0; s.pos={}
    def issue(s,key,txt):
        s.p(txt); s.pos[key]=s.n; s.n+=1
    def wait(s,*keys,extra=""):
        need=max(s.pos[k] for k in keys)
        c=s.n-1-need
        if c<=63: s.p(f"s_waitcnt vmcnt({c}){extra}")
        elif extra: s.p(f"s_waitcnt{extra}")

def poll(p, name, srd_, soff, vaddr, expect, vt):
    p(f"s_mov_b32 s29, {SPIN}")
    p.label(f"POLL_{name}")
    p(f"buffer_load_dword v{vt}, {vaddr}, {srd_}, {soff} offen sc1")
    p("s_waitcnt vmcnt(0)")
    p(f"v_cmp_ne_u32 vcc, {expect}, v{vt}")
    p("s_cmp_eq_u64 vcc, 0")
    p(f"s_cbranch_scc1 POLLD_{name}")
    p("s_sub_u32 s29, s29, 1")
    p("s_cmp_lg_u32 s29, 0")
    p(f"s_cbranch_scc1 POLL_{name}")
    p.label(f"POLLD_{name}")

def set_flag(p, soff, vt):
    p(f"v_mov_b32 v{vt}, 1"); p(f"v_mov_b32 v{vt+1}, 0")
    p("s_mov_b64 exec, 1")
    p(f"buffer_store_dword v{vt}, v{vt+1}, {SRD_WS}, {soff} offen sc1")
    p("s_mov_b64 exec, -1")

def prologue(p, end):
    p(f"s_cmp_ge_u32 s2, 256")
    p(f"s_cbranch_scc1 {end}")
    p("s_load_dwordx4 s[32:35], s[0:1], 0")
    p("s_load_dwordx4 s[36:39], s[0:1], 16")
    p("s_load_dwordx2 s[40:41], s[0:1], 32")
    p("s_load_dwordx4 s[44:47], s[0:1], 48")
    p("s_load_dwordx4 s[48:51], s[0:1], 64")
    p("s_load_dwordx2 s[52:53], s[0:1], 88")
    p("s_load_dwordx2 s[54:55], s[0:1], 80")
    p("v_lshrrev_b32 v1, 6, v0")
    p("v_and_b32 v0, 63, v0")
    p("v_readfirstlane_b32 s6, v1")
    p("s_and_b32 s3, s2, 7")
    p("s_lshr_b32 s7, s2, 3")
    p("s_lshr_b32 s4, s7, 3")
    p("s_lshl_b32 s3, s3, 2")
    p("s_add_u32 s4, s4, s3")
    p("s_and_b32 s5, s7, 7")
    p("v_lshlrev_b32 v9, 4, v0")
    if 'codepf' in OPT:
        p("s_getpc_b64 s[60:61]")
        p.label("PF_HERE")
    p("s_waitcnt lgkmcnt(0)")
    srd(p,8,P_WS,L.WS_USED)
    srd(p,56,P_DBG,256)

def ln_tile(p, X, vaddr, off, mid=None):
    S0,S1,Q0,Q1='v80','v81','v82','v83'
    p(f"v_mov_b32 {S0}, 0"); p(f"v_mov_b32 {S1}, 0"); p(f"v_mov_b32 {Q0}, 0"); p(f"v_mov_b32 {Q1}, 0")
    for i in range(0,32,2):
        p(f"v_dot2c_f32_bf16 {S0}, s28, v{X+i}")
        p(f"v_dot2c_f32_bf16 {Q0}, v{X+i}, v{X+i}")
        p(f"v_dot2c_f32_bf16 {S1}, s28, v{X+i+1}")
        p(f"v_dot2c_f32_bf16 {Q1}, v{X+i+1}, v{X+i+1}")
    p(f"v_add_f32 {S0}, {S0}, {S1}")
    p(f"v_add_f32 {Q0}, {Q0}, {Q1}")
    for d in ("quad_perm:[1,0,3,2]","quad_perm:[2,3,0,1]","row_half_mirror"):
        p(f"v_add_f32_dpp {S0}, {S0}, {S0} {d} row_mask:0xf bank_mask:0xf")
        p(f"v_add_f32_dpp {Q0}, {Q0}, {Q0} {d} row_mask:0xf bank_mask:0xf")
    p(f"v_mul_f32 {S0}, {hx(f2u(1/512))}, {S0}")
    p(f"v_mul_f32 {Q0}, {hx(f2u(1/512))}, {Q0}")
    p(f"v_fma_f32 {Q0}, -{S0}, {S0}, {Q0}")
    p(f"v_max_f32 {Q0}, 0, {Q0}")
    p(f"v_add_f32 {Q0}, {hx(f2u(1e-5))}, {Q0}")
    p(f"v_rsq_f32 {Q0}, {Q0}")
    p(f"v_mul_f32 {S0}, {S0}, {Q0}")
    p(f"v_sub_f32 v94, 0, {S0}")
    p(f"v_mov_b32 v95, v94")
    p(f"v_mov_b32 v92, {Q0}")
    p(f"v_mov_b32 v93, {Q0}")
    for cb in range(8):
        for i in range(4):
            r=X+4*cb+i; t0=84+2*i; t1=85+2*i
            p(f"v_lshlrev_b32 v{t0}, 16, v{r}")
            p(f"v_and_b32 v{t1}, 0xffff0000, v{r}")
        for i in range(4):
            t0=84+2*i
            p(f"v_pk_fma_f32 v[{t0}:{t0+1}], v[{t0}:{t0+1}], v[92:93], v[94:95]")
        for i in range(4):
            r=X+4*cb+i; t0=84+2*i; t1=85+2*i
            p(f"v_cvt_pk_bf16_f32 v{r}, v{t0}, v{t1}")
        p(f"ds_write_b128 {vaddr}, v[{X+4*cb}:{X+4*cb+3}] offset:{off+cb*4224}")

def gemm_lds(p, nsteps, readA, readB, mfma, rps, depth=3, nbuf=4):
    for s in range(min(depth,nsteps)):
        readA(s,s%nbuf); readB(s,s%nbuf)
    for s in range(nsteps):
        if s+depth<nsteps:
            readA(s+depth,(s+depth)%nbuf); readB(s+depth,(s+depth)%nbuf)
        rem=min(depth,nsteps-1-s)
        p(f"s_waitcnt lgkmcnt({rem*rps})")
        mfma(s,s%nbuf)

def tr_base128(p, dst, cbit_sgpr, base):
    p("v_and_b32 v97, 1, v13")
    p("v_lshl_add_u32 v97, v15, 1, v97")
    if cbit_sgpr: p(f"v_add_u32 v97, {cbit_sgpr}, v97")
    p("v_lshrrev_b32 v98, 1, v12")
    p("v_lshlrev_b32 v98, 2, v98")
    p("v_xor_b32 v97, v97, v98")
    p("v_lshlrev_b32 v97, 4, v97")
    p("v_lshrrev_b32 v98, 1, v13")
    p("v_lshl_add_u32 v97, v98, 3, v97")
    p("v_lshl_add_u32 v97, v14, 7, v97")
    p(f"v_add_u32 {dst}, {base}, v97")

def lane_params(p):
    p("v_lshrrev_b32 v11, 4, v0")
    p("v_bfe_u32 v12, v0, 2, 2")
    p("v_and_b32 v13, 3, v0")
    p("v_lshrrev_b32 v14, 1, v11")
    p("v_lshl_add_u32 v14, v14, 3, v12")
    p("v_and_b32 v15, 1, v11")
    p("v_and_b32 v96, 1, v13")
    p("v_lshlrev_b32 v96, 4, v96")
    p("v_lshrrev_b32 v97, 1, v13")
    p("v_lshl_add_u32 v96, v97, 3, v96")

def w128_voff(p, dst):
    p("v_lshrrev_b32 v11, 4, v0")
    p("v_and_b32 v11, 1, v11")
    p("v_lshlrev_b32 v11, 2, v11")
    p("v_xor_b32 v11, v11, v10")
    p("v_lshlrev_b32 v11, 4, v11")
    p(f"v_lshl_add_u32 {dst}, v1, 10, v11")
    p("s_lshl_b32 s3, s5, 7")
    p(f"v_add_u32 {dst}, s3, {dst}")

def phase_a(p):
    p("s_mov_b32 s28, 0x3f803f80")
    srd(p,12,P_X,2048*1024)
    srd(p,16,P_WQ,512*1024)
    p("s_and_b32 s3, s5, 1")
    p("s_lshl_b32 s60, s4, 1")
    p("s_add_u32 s60, s60, s3")
    p("v_lshrrev_b32 v1, 3, v0")
    p("v_and_b32 v10, 7, v0")
    p("s_lshl_b32 s3, s60, 5")
    p("s_lshl_b32 s7, s6, 3")
    p("s_add_u32 s3, s3, s7")
    p("v_add_u32 v2, s3, v1")
    p("v_lshlrev_b32 v2, 10, v2")
    p("v_lshl_add_u32 v2, v10, 4, v2")
    p("v_xor_b32 v3, 0x8000, v2")
    p("s_cmp_ge_u32 s5, 2")
    p("s_cbranch_scc1 A_noclr")
    p("s_cmp_lg_u32 s6, 2")
    p("s_cbranch_scc1 A_noclr")
    p("s_mul_i32 s3, s60, 192")
    p(f"s_add_u32 s3, s3, {L.FLG}")
    p("v_lshlrev_b32 v11, 2, v0")
    p("v_mov_b32 v12, 0")
    p("s_mov_b32 exec_hi, 0xffff")
    p(f"buffer_store_dword v12, v11, {SRD_WS}, s3 offen sc1")
    p("s_mov_b64 exec, -1")
    p.label("A_noclr")
    for cb in range(8):
        p(f"buffer_load_dwordx4 v[{16+4*cb}:{19+4*cb}], v2, {SRD_X}, 0 offen offset:{cb*128}")
    p("s_cmp_ge_u32 s5, 2")
    p("s_cbranch_scc1 A_nokvdma")
    p("s_cmp_lt_u32 s6, 2")
    p(f"s_cselect_b32 s20, s{P_WK}, s{P_WV}")
    p(f"s_cselect_b32 s21, s{P_WK+1}, s{P_WV+1}")
    p("s_mov_b32 s22, 16384")
    p("s_mov_b32 s23, 0x20000")
    csel(p,'s30',WK,WV)
    p("s_and_b32 s3, s6, 1")
    p("s_lshl_b32 s3, s3, 13")
    p("s_add_u32 s30, s30, s3")
    for i in range(8):
        p(f"s_add_u32 m0, s30, {i*1024}")
        p(f"s_add_u32 s31, s3, {i*1024}")
        p(f"buffer_load_dwordx4 v9, {SRD_B}, s31 offen lds")
    p.label("A_nokvdma")
    for cb in range(8):
        p(f"buffer_load_dwordx4 v[{48+4*cb}:{51+4*cb}], v3, {SRD_X}, 0 offen offset:{cb*128}")
    w128_voff(p,'v4')
    p("v_lshrrev_b32 v11, 1, v10")
    p("v_mul_u32_u24 v11, 1056, v11")
    p("v_and_b32 v12, 1, v10")
    p("v_mul_u32_u24 v12, 528, v12")
    p("v_add_u32 v5, v11, v12")
    p("s_lshl_b32 s3, s6, 3")
    p("v_add_u32 v11, s3, v1")
    p("v_lshl_add_u32 v5, v11, 4, v5")
    p("v_lshrrev_b32 v11, 5, v0")
    p("v_mul_u32_u24 v11, 528, v11")
    p("v_and_b32 v12, 31, v0")
    p("v_lshl_add_u32 v6, v12, 4, v11")
    lane_params(p)
    p(f"v_mul_u32_u24 v97, {WV-WK}, v15")
    p("v_lshl_add_u32 v97, v14, 5, v97")
    p("v_add_u32 v97, v97, v96")
    p(f"v_add_u32 v8, {WK}, v97")
    p("s_and_b32 s3, s6, 1")
    p("s_lshl_b32 s3, s3, 2")
    tr_base128(p,'v7','s3',WQ)
    stamp(p,'A issued')
    p("s_waitcnt vmcnt(8)")
    stamp(p,'A x arrived')
    ln_tile(p,16,'v5',XH0)
    p("s_waitcnt lgkmcnt(0)")
    p("s_barrier")
    stamp(p,'A lnA done')
    p("s_cmp_ge_u32 s6, 2")
    p("s_cbranch_scc1 A_wqdma")
    p("s_waitcnt vmcnt(0)")
    p("s_cmp_ge_u32 s5, 2")
    p("s_cbranch_scc1 A_kvdone")
    def rA(s,b):
        p(f"ds_read_b64_tr_b16 v[{96+4*b}:{97+4*b}], v8 offset:{s*512}")
        p(f"ds_read_b64_tr_b16 v[{98+4*b}:{99+4*b}], v8 offset:{s*512+128}")
    def rB(s,b):
        p(f"ds_read_b128 v[{112+4*b}:{115+4*b}], v6 offset:{XH0+s*1056}")
    p("s_cmp_eq_u32 s6, 1")
    p("s_cbranch_scc1 A_vwave")
    gemm_lds(p,32,rA,rB,lambda s,b: p(f"v_mfma_f32_32x32x16_bf16 v[128:143], v[{96+4*b}:{99+4*b}], v[{112+4*b}:{115+4*b}], {'0' if s==0 else 'v[128:143]'}"),3)
    for j in range(4): p(f"v_cvt_pk_bf16_f32 v{88+j}, v{128+2*j}, v{129+2*j}")
    p("s_lshl_b32 s3, s60, 10")
    p(f"s_add_u32 s3, s3, {L.KF}")
    p(f"buffer_store_dwordx4 v[88:91], v9, {SRD_WS}, s3 offen sc1")
    p("v_mul_f32 v84, v128, v128")
    for j in range(1,8): p(f"v_fmac_f32 v84, v{128+j}, v{128+j}")
    p("v_mov_b32 v85, v84")
    p("v_permlane32_swap_b32 v84, v85")
    p("v_add_f32 v84, v84, v85")
    for d in ("row_ror:8","row_ror:4","row_ror:2","row_ror:1"):
        p(f"v_max_f32_dpp v84, v84, v84 {d} row_mask:0xf bank_mask:0xf")
    p("v_readlane_b32 s3, v84, 0")
    p("v_readlane_b32 s7, v84, 16")
    p("s_max_u32 s3, s3, s7")
    p("v_mov_b32 v84, s3")
    p("s_lshl_b32 s7, s60, 2")
    p(f"s_add_u32 s7, s7, {L.KM}")
    p("v_mov_b32 v85, 0")
    p("s_mov_b64 exec, 1")
    p(f"buffer_store_dword v84, v85, {SRD_WS}, s7 offen sc1")
    p("s_mov_b64 exec, -1")
    p("s_branch A_kvdone")
    p.label("A_vwave")
    p("v_and_b32 v84, 3, v0")
    p("v_bfe_u32 v85, v0, 2, 1")
    p("v_lshl_add_u32 v84, v85, 3, v84")
    p("v_bfe_u32 v85, v0, 3, 1")
    p("v_lshl_add_u32 v84, v85, 2, v84")
    p("v_and_b32 v85, 16, v0")
    p("v_add_u32 v84, v84, v85")
    p("v_lshrrev_b32 v85, 5, v0")
    p("v_mul_u32_u24 v85, 528, v85")
    p("v_lshl_add_u32 v86, v84, 4, v85")
    def rBv(s,b):
        p(f"ds_read_b128 v[{112+4*b}:{115+4*b}], v86 offset:{XH0+s*1056}")
    gemm_lds(p,32,rA,rBv,lambda s,b: p(f"v_mfma_f32_32x32x16_bf16 v[128:143], v[{112+4*b}:{115+4*b}], v[{96+4*b}:{99+4*b}], {'0' if s==0 else 'v[128:143]'}"),3)
    for j in range(8): p(f"v_cvt_pk_bf16_f32 v{88+j}, v{128+2*j}, v{129+2*j}")
    p("v_lshrrev_b32 v84, 5, v0")
    p("v_and_b32 v85, 15, v0")
    p("v_lshl_add_u32 v84, v84, 4, v85")
    p("v_lshlrev_b32 v84, 4, v84")
    p("s_lshl_b32 s3, s60, 10")
    p(f"s_add_u32 s3, s3, {L.VF}")
    p("s_mov_b32 exec_lo, 0xffff0000")
    p("s_mov_b32 exec_hi, 0xffff0000")
    p(f"buffer_store_dwordx4 v[88:91], v84, {SRD_WS}, s3 offen sc1")
    p(f"buffer_store_dwordx4 v[92:95], v84, {SRD_WS}, s3 offen offset:512 sc1")
    p("s_mov_b64 exec, -1")
    p("s_branch A_kvdone")
    p.label("A_wqdma")
    p("s_sub_u32 s3, s6, 2")
    p("s_lshl_b32 s31, s3, 18")
    p("s_lshl_b32 s30, s3, 15")
    p(f"s_add_u32 s30, s30, {WQ}")
    for i in range(32):
        p(f"s_add_u32 m0, s30, {i*1024}")
        if i>0: p(f"s_add_u32 s31, s31, 8192")
        p(f"buffer_load_dwordx4 v4, {SRD_A}, s31 offen lds")
    p("s_waitcnt vmcnt(32)")
    p.label("A_kvdone")
    stamp(p,'A kvdone')
    p("s_waitcnt lgkmcnt(0)")
    p("s_barrier")
    ln_tile(p,48,'v5',XH1)
    p("s_waitcnt vmcnt(0)")
    p("s_cmp_ge_u32 s5, 2"); p("s_cbranch_scc1 A_nosig")
    p("s_cmp_ge_u32 s6, 2"); p("s_cbranch_scc1 A_nosig")
    p("s_and_b32 s3, s60, 3"); p("s_lshl_b32 s3, s3, 3"); p("s_lshl_b32 s7, 1, s3")
    p("s_lshr_b32 s3, s60, 2"); p("s_lshl_b32 s3, s3, 2"); p("s_add_u32 s3, s3, 64")
    p("v_mov_b32 v84, s7"); p("v_mov_b32 v85, 0")
    p("s_mov_b64 exec, 1")
    p(f"buffer_atomic_add v84, v85, {SRD_D}, s3 offen sc1")
    p("s_mov_b64 exec, -1")
    p.label("A_nosig")
    p("s_waitcnt lgkmcnt(0)")
    p("s_barrier")
    stamp(p,'A lnB done')
    p("s_lshr_b32 s3, s6, 1")
    p(f"s_mul_i32 s7, s3, {XH1}")
    p("v_add_u32 v6, s7, v6")
    def rA(s,b):
        p(f"ds_read_b64_tr_b16 v[{96+4*b}:{97+4*b}], v7 offset:{s*2048}")
        p(f"ds_read_b64_tr_b16 v[{98+4*b}:{99+4*b}], v7 offset:{s*2048+512}")
    def rB(s,b):
        p(f"ds_read_b128 v[{112+4*b}:{115+4*b}], v6 offset:{s*1056}")
    gemm_lds(p,32,rA,rB,lambda s,b: p(f"v_mfma_f32_32x32x16_bf16 v[128:143], v[{96+4*b}:{99+4*b}], v[{112+4*b}:{115+4*b}], {'0' if s==0 else 'v[128:143]'}"),3)
    p(f"s_mov_b32 s30, {hx(f2u(QSCALE))}"); p("s_mov_b32 s31, s30")
    for j in range(8): p(f"v_pk_mul_f32 v[{128+2*j}:{129+2*j}], v[{128+2*j}:{129+2*j}], s[30:31]")
    for j in range(8): p(f"v_cvt_pk_bf16_f32 v{88+j}, v{128+2*j}, v{129+2*j}")
    p("s_xor_b32 s3, s5, s3"); p("s_and_b32 s3, s3, 1"); p("s_lshl_b32 s3, s3, 2")
    p("s_and_b32 s7, s6, 1"); p("s_lshl_b32 s7, s7, 1"); p("s_add_u32 s3, s3, s7")
    p("s_lshl_b32 s3, s3, 10"); p(f"s_add_u32 s3, s3, {QL}")
    p("v_add_u32 v84, s3, v9")
    p("ds_write_b128 v84, v[88:91]")
    p("ds_write_b128 v84, v[92:95] offset:1024")
    p("v_mul_f32 v84, v128, v128"); p("v_mul_f32 v85, v136, v136")
    for j in range(1,8): p(f"v_fmac_f32 v84, v{128+j}, v{128+j}"); p(f"v_fmac_f32 v85, v{136+j}, v{136+j}")
    p("v_mov_b32 v86, v84"); p("v_mov_b32 v87, v85")
    p("v_permlane32_swap_b32 v84, v86"); p("v_permlane32_swap_b32 v85, v87")
    p("v_add_f32 v84, v84, v86"); p("v_add_f32 v85, v85, v87")
    p("v_max_u32 v84, v84, v85")
    for d in ("row_ror:8","row_ror:4","row_ror:2","row_ror:1"):
        p(f"v_max_u32_dpp v84, v84, v84 {d} row_mask:0xf bank_mask:0xf")
    p("v_readlane_b32 s3, v84, 0")
    p("v_readlane_b32 s7, v84, 16")
    p("s_max_u32 s3, s3, s7")
    p("v_mov_b32 v84, s3")
    p("s_lshl_b32 s7, s6, 2"); p(f"s_add_u32 s7, s7, {QM}")
    p("v_mov_b32 v85, s7")
    p("ds_write_b32 v85, v84")
    p("s_waitcnt lgkmcnt(0)")
    p("s_barrier")
    stamp(p,'A q done')
    srd(p,16,P_WO,512*1024)
    p("s_lshl_b32 s31, s6, 17")
    p("s_lshl_b32 s30, s6, 14")
    for i in range(16):
        p(f"s_add_u32 m0, s30, {WO_L+i*1024}")
        if i>0: p(f"s_add_u32 s31, s31, 8192")
        p(f"buffer_load_dwordx4 v4, {SRD_A}, s31 offen lds")
    p("s_lshr_b32 s61, s6, 1"); p("s_lshl_b32 s3, s4, 1"); p("s_add_u32 s61, s61, s3")
    p("s_and_b32 s62, s6, 1"); p("s_lshl_b32 s3, s5, 1"); p("s_add_u32 s62, s62, s3")
    p("v_and_b32 v2, 31, v0"); p("s_lshl_b32 s3, s61, 5"); p("v_add_u32 v2, s3, v2"); p("v_lshlrev_b32 v2, 10, v2")
    p("v_lshrrev_b32 v3, 5, v0"); p("v_lshl_add_u32 v8, v3, 4, v2")
    p("s_lshl_b32 s3, s62, 6")
    p(f"buffer_load_dwordx4 v[240:243], v8, {SRD_X}, s3 offen")
    p(f"buffer_load_dwordx4 v[244:247], v8, {SRD_X}, s3 offen offset:32")

KA=0; VA=64
SB=[16,32]; OB=[64,80]; QB=[96,100]; CB=104; IDX=48; ZR=52; SLA=56; SLB=57; QA=58; TB=120
THRESH=40.0
VMASK='s[80:81]'

def QK(Sn,kn,Qn,slow): return f"v_mfma_f32_32x32x16_bf16 v[{Sn}:{Sn+15}], a[{KA+4*kn}:{KA+4*kn+3}], v[{Qn}:{Qn+3}], {f'v[{CB}:{CB+15}]' if slow else '0'}"
def PV(O,areg,S): return f"v_smfmac_f32_32x32x32_bf16 v[{O}:{O+15}], a[{areg}:{areg+3}], v[{S}:{S+7}], v{IDX}"

def slot_write(p,O):
    p(f"ds_write_b128 v{SLA}, v[{O}:{O+3}]")
    p(f"ds_write_b128 v{SLA}, v[{O+4}:{O+7}] offset:1024")
    p(f"ds_write_b32 v{SLB}, v{O+8}")

def att_pass(p, ps, first=False, slow=False, vm=None):
    for t in range(16):
        S=SB[t%2]; Sn=SB[(t+1)%2]
        O=OB[ps]; Op=OB[ps] if t>0 else OB[1-ps]
        Qn=QB[ps] if t<15 else QB[1-ps]
        kn=(t+1)%16; tp=(t-1)%16
        e=lambda i: f"v_exp_f32 v{S+i}, v{S+i}"
        pv2=PV(Op,VA+8*tp+4,Sn+8)
        I=[e(0),e(1),pv2,e(2),e(3),e(4),QK(Sn,kn,Qn,slow),e(5),e(6),e(7),e(8),e(9),PV(O,VA+8*t,S),e(10),e(11),e(12),e(13),e(14),e(15)]
        ins={}
        def add(pos,txt): ins.setdefault(pos,[]).append(txt)
        if first and t==0: I[2]=None
        if not first:
            if t==2:
                add(4,f"ds_write_b128 v{SLA}, v[{Op if 0 else OB[1-ps]}:{OB[1-ps]+3}]")
                add(8,f"ds_write_b128 v{SLA}, v[{OB[1-ps]+4}:{OB[1-ps]+7}] offset:1024")
                add(10,f"ds_write_b32 v{SLB}, v{OB[1-ps]+8}")
            if t==3:
                add(4,f"v_add_u32 v{SLA}, 9216, v{SLA}"); add(8,f"v_add_u32 v{SLB}, 9216, v{SLB}")
            if t==8:
                Z=OB[1-ps]
                add(16,f"v_mfma_f32_32x32x16_bf16 v[{Z}:{Z+15}], v[{ZR}:{ZR+3}], v[{ZR}:{ZR+3}], 0")
        if t==4:
            Qd=QB[1-ps]
            add(4,f"ds_read_b128 v[{Qd}:{Qd+3}], v{QA}")
            if slow: add(5,f"ds_read_b32 v133, v132")
        if t==5:
            add(4,f"v_add_u32 v{QA}, 1024, v{QA}")
            if slow: add(8,"v_add_u32 v132, 256, v132")
        if t==14:
            add(0,"s_waitcnt lgkmcnt(0)")
        if t==15 and slow:
            for j in range(16): add(1,f"v_mov_b32 v{CB+j}, v133")
        if vm is not None:
            vm.wait(('V',t,0))
            if t+4<16: add(4,('K',t+4))
            if t+3<16: add(9,('V',t+3))
        for i,x in enumerate(I):
            for y in ins.get(i,[]):
                if isinstance(y,tuple): (ldK if y[0]=='K' else ldV)(p,vm,y[1])
                else: p(y)
            if x: p(x)

def ldK(p,vm,j):
    p(f"s_add_u32 s3, s30, {j*1024}")
    vm.issue(('K',j),f"buffer_load_dwordx4 a[{KA+4*j}:{KA+4*j+3}], v9, {SRD_WS}, s3 offen sc1")
def ldV(p,vm,j):
    p(f"s_add_u32 s3, s31, {j*1024}")
    p(f"s_mov_b64 exec, {VMASK}")
    vm.issue(('V',j,0),f"buffer_load_dwordx4 a[{VA+8*j}:{VA+8*j+3}], v4, {SRD_WS}, s3 offen sc1")
    vm.issue(('V',j,1),f"buffer_load_dwordx4 a[{VA+8*j+4}:{VA+8*j+7}], v4, {SRD_WS}, s3 offen offset:512 sc1")
    p("s_mov_b64 exec, -1")

def o_store(p,O,jj):
    p(f"v_rcp_f32 v{TB}, v{O+8}")
    p(f"v_mov_b32 v{TB+1}, v{O+8}")
    p(f"v_mov_b32 v{TB+1}, v{TB}")
    for j in range(4): p(f"v_pk_mul_f32 v[{O+2*j}:{O+2*j+1}], v[{O+2*j}:{O+2*j+1}], v[{TB}:{TB+1}]")
    for j in range(4): p(f"v_cvt_pk_bf16_f32 v{TB+4+j}, v{O+2*j}, v{O+2*j+1}")
    p(f"buffer_store_dwordx4 v[{TB+4}:{TB+7}], v9, {SRD_WS}, s63 offen offset:{jj*1024} sc1")

def attention(p):
    p("v_mov_b32 v3, 0x3f803f80")
    p("v_and_b32 v4, 27, v0"); p("v_cmp_eq_u32 vcc, 16, v4"); p("v_cndmask_b32 v3, 0, v3, vcc")
    for i in range(128): p(f"v_accvgpr_write_b32 a{VA+i}, v3")
    p(f"v_mov_b32 v{IDX}, 0xdddddddd")
    for i in range(4): p(f"v_mov_b32 v{ZR+i}, 0")
    for i in range(16): p(f"v_mov_b32 v{OB[0]+i}, 0"); p(f"v_mov_b32 v{OB[1]+i}, 0")
    p("s_mov_b32 s80, 0xffff"); p("s_mov_b32 s81, 0xffff")
    p("v_lshrrev_b32 v4, 5, v0")
    p("v_and_b32 v5, 15, v0")
    p("v_lshl_add_u32 v4, v4, 4, v5")
    p("v_lshlrev_b32 v4, 4, v4")
    p("s_mul_i32 s3, s6, 2304"); p(f"s_add_u32 s3, s3, {OP}")
    p(f"v_add_u32 v{SLA}, s3, v9")
    p("s_add_u32 s3, s3, 2048")
    p(f"v_lshl_add_u32 v{SLB}, v0, 2, s3")
    p(f"v_add_u32 v{QA}, {QL+1024}, v9")
    p(f"v_add_u32 v59, {QL}, v9")
    p(f"v_mov_b32 v60, {QM}")
    p(f"ds_read_b128 v[{QB[0]}:{QB[0]+3}], v59")
    p(f"ds_read_b128 v[60:63], v60")
    p("s_lshl_b32 s30, s6, 14")
    p(f"s_add_u32 s31, s30, {L.VF}")
    p(f"s_add_u32 s30, s30, {L.KF}")
    p("v_lshlrev_b32 v2, 2, v0")
    p("s_waitcnt lgkmcnt(0)")
    p("v_max_u32 v60, v60, v61"); p("v_max3_u32 v60, v60, v62, v63")
    stamp(p,'B pre-S1',vt=200)
    p("s_cmp_lg_u32 s6, 0"); p("s_cbranch_scc1 B_s1skip")
    p("v_and_b32 v61, 15, v0"); p("v_lshlrev_b32 v62, 2, v61"); p("s_mov_b32 s3, 0x02020202")
    poll(p,'s1',SRD_D,'64','v62','s3',61)
    p.label("B_s1skip")
    p("s_barrier")
    stamp(p,'B S1 done',vt=200)
    vm=VM(p)
    p(f"s_mov_b32 s3, {L.KM}")
    vm.issue('KM',f"buffer_load_dword v61, v2, {SRD_WS}, s3 offen sc1")
    ldK(p,vm,0); ldK(p,vm,1); ldV(p,vm,0); ldK(p,vm,2); ldV(p,vm,1); ldK(p,vm,3); ldV(p,vm,2)
    vm.wait('KM')
    for d in ("row_ror:8","row_ror:4","row_ror:2","row_ror:1"):
        p(f"v_max_u32_dpp v61, v61, v61 {d} row_mask:0xf bank_mask:0xf")
    p("v_readlane_b32 s3, v61, 0"); p("v_readlane_b32 s7, v61, 16"); p("s_max_u32 s3, s3, s7")
    p("v_readlane_b32 s7, v61, 32"); p("s_max_u32 s3, s3, s7")
    p("v_readlane_b32 s7, v61, 48"); p("s_max_u32 s65, s3, s7")
    p("v_mul_f32 v60, s65, v60")
    p(f"v_cmp_nge_f32 vcc, {hx(f2u(THRESH*THRESH/(1.02*1.02)))}, v60")
    p("s_cmp_lg_u64 vcc, 0")
    p("s_cbranch_scc1 L_slow")
    vm.wait(('K',0))
    p(QK(SB[0],0,QB[0],False))
    stamp(p,'B first',vt=200)
    import copy
    vmf=copy.copy(vm); vmf.pos=dict(vm.pos)
    att_pass(p,0,first=True,vm=vmf)
    p("s_waitcnt vmcnt(0)")
    stamp(p,'B pass0',vt=200)
    p("s_mov_b32 s64, 4")
    p("s_branch L_attY")
    p.label("L_attX")
    att_pass(p,0)
    p.label("L_attY")
    att_pass(p,1)
    p("s_sub_u32 s64, s64, 1")
    p("s_cmp_lg_u32 s64, 0")
    p("s_cbranch_scc1 L_attX")
    p.label("L_att_tail")
    p(PV(OB[1],VA+8*15+4,SB[1]+8))
    slot_write(p,OB[1])
    p("s_branch L_att_done")
    p.label("L_slow")
    for j in range(4,16): ldK(p,vm,j)
    for j in range(3,16): ldV(p,vm,j)
    p("s_waitcnt vmcnt(0)")
    p("s_mov_b32 s64, 0")
    p.label("L_mx")
    p("s_lshl_b32 s3, s64, 10")
    p("v_add_u32 v132, s3, v59")
    p(f"ds_read_b128 v[{QB[1]}:{QB[1]+3}], v132")
    p("v_mov_b32 v133, 0xff800000")
    p("s_waitcnt lgkmcnt(0)")
    p(QK(SB[0],0,QB[1],False))
    for t in range(16):
        S=SB[t%2]; Sn=SB[(t+1)%2]
        if t<15: p(QK(Sn,t+1,QB[1],False))
        for j in range(8): p(f"v_max3_f32 v133, v{S+2*j}, v{S+2*j+1}, v133")
    p("v_mov_b32 v134, v133")
    p("v_permlane32_swap_b32 v133, v134")
    p("v_max_f32 v133, v133, v134")
    p("s_lshl_b32 s3, s64, 9"); p("s_lshl_b32 s7, s6, 7"); p("s_add_u32 s3, s3, s7")
    p("v_and_b32 v134, 31, v0")
    p("v_lshl_add_u32 v134, v134, 2, s3")
    p(f"v_add_u32 v134, {MX}, v134")
    p(f"ds_write_b32 v134, v133")
    p("s_add_u32 s64, s64, 1"); p("s_cmp_lt_u32 s64, 8"); p("s_cbranch_scc1 L_mx")
    p("s_waitcnt lgkmcnt(0)")
    p("s_barrier")
    p("v_and_b32 v134, 31, v0"); p("v_lshlrev_b32 v134, 2, v134")
    p("s_lshl_b32 s3, s6, 10"); p(f"s_add_u32 s3, s3, {MX}"); p("v_add_u32 v134, s3, v134")
    for qq in range(2):
        for ww in range(4): p(f"ds_read_b32 v{16+4*qq+ww}, v134 offset:{qq*512+ww*128}")
    p("s_waitcnt lgkmcnt(0)")
    p("s_lshl_b32 s3, s6, 9"); p(f"s_add_u32 s3, s3, {MF}")
    p("v_lshl_add_u32 v134, v0, 2, s3")
    for qq in range(2):
        b=16+4*qq
        p(f"v_max3_f32 v{b}, v{b}, v{b+1}, v{b+2}"); p(f"v_max_f32 v{b}, v{b}, v{b+3}"); p(f"v_sub_f32 v{b}, 0, v{b}")
        p(f"ds_write_b32 v134, v{b} offset:{qq*256}")
    p("s_waitcnt lgkmcnt(0)")
    p("s_barrier")
    p(f"v_lshlrev_b32 v132, 2, v0"); p(f"v_add_u32 v132, {MF}, v132")
    p(f"ds_read_b32 v133, v132")
    p("v_add_u32 v132, 256, v132")
    p("s_waitcnt lgkmcnt(0)")
    for j in range(16): p(f"v_mov_b32 v{CB+j}, v133")
    p(QK(SB[0],0,QB[0],True))
    att_pass_slow(p)
    p.label("L_att_done")
    stamp(p,'B loop done',vt=200)
    p("s_waitcnt lgkmcnt(0)")
    p("s_barrier")
    p("s_mul_i32 s3, s6, 18432"); p(f"s_add_u32 s3, s3, {OP}")
    p("v_add_u32 v60, s3, v9")
    p("s_add_u32 s3, s3, 2048")
    p("v_lshl_add_u32 v61, v0, 2, s3")
    R=[[128+36*jj+9*ww for ww in range(4)] for jj in range(2)]
    for jj in range(2):
        for ww in range(4):
            b=128+(jj*4+ww)*8; off=jj*9216+ww*2304
            p(f"ds_read_b128 v[{b}:{b+3}], v60 offset:{off}")
            p(f"ds_read_b128 v[{b+4}:{b+7}], v60 offset:{off+1024}")
            p(f"ds_read_b32 v{192+jj*4+ww}, v61 offset:{off}")
    p("s_lshr_b32 s3, s6, 1"); p("s_lshl_b32 s7, s4, 1"); p("s_add_u32 s3, s3, s7"); p("s_lshl_b32 s3, s3, 5")
    p("s_lshl_b32 s7, s5, 2"); p("s_add_u32 s3, s3, s7")
    p("s_and_b32 s7, s6, 1"); p("s_lshl_b32 s7, s7, 1"); p("s_add_u32 s3, s3, s7")
    p("s_lshl_b32 s3, s3, 10"); p(f"s_add_u32 s63, s3, {L.OF}")
    for jj in range(2):
        b=128+jj*32; sb=192+jj*4; O=64+16*jj
        p(f"s_waitcnt lgkmcnt({12*(1-jj)})")
        for j in range(4):
            p(f"v_pk_add_f32 v[{b+2*j}:{b+2*j+1}], v[{b+2*j}:{b+2*j+1}], v[{b+8+2*j}:{b+8+2*j+1}]")
            p(f"v_pk_add_f32 v[{b+16+2*j}:{b+16+2*j+1}], v[{b+16+2*j}:{b+16+2*j+1}], v[{b+24+2*j}:{b+24+2*j+1}]")
        p(f"v_add_f32 v{sb}, v{sb}, v{sb+1}"); p(f"v_add_f32 v{sb+2}, v{sb+2}, v{sb+3}")
        for j in range(4):
            p(f"v_pk_add_f32 v[{O+2*j}:{O+2*j+1}], v[{b+2*j}:{b+2*j+1}], v[{b+16+2*j}:{b+16+2*j+1}]")
        p(f"v_add_f32 v{O+8}, v{sb}, v{sb+2}")
        o_store(p,O,jj)

def att_pass_slow(p):
    att_pass(p,0,first=True,slow=True,vm=None)
    p("s_mov_b32 s64, 4")
    p("s_branch L_sttY")
    p.label("L_sttX")
    att_pass(p,0,slow=True)
    p.label("L_sttY")
    att_pass(p,1,slow=True)
    p("s_sub_u32 s64, s64, 1")
    p("s_cmp_lg_u32 s64, 0")
    p("s_cbranch_scc1 L_sttX")
    p(PV(OB[1],VA+8*15+4,SB[1]+8))
    slot_write(p,OB[1])

def w1_setup(p):
    srd(p,16,P_WG,512*2752)
    srd(p,20,P_WU,512*2752)
    p("s_and_b32 s3, s4, 1"); p("s_lshl_b32 s3, s3, 3"); p("s_add_u32 s3, s3, s5")
    p("s_min_u32 s7, s3, 6"); p("s_mul_i32 s66, s3, 5"); p("s_add_u32 s66, s66, s7")
    p("s_cmp_lt_u32 s3, 6"); p("s_cselect_b32 s67, 6, 5")
    for i in range(3):
        p(f"v_add_u32 v11, {64*i}, v0")
        p("v_mul_u32_u24 v12, 5462, v11"); p("v_lshrrev_b32 v12, 16, v12")
        p("v_mul_u32_u24 v13, 12, v12"); p("v_sub_u32 v13, v11, v13")
        p("v_mul_u32_u24 v12, 2752, v12")
        p(f"v_lshl_add_u32 v{2+i}, v13, 4, v12")
        p("v_add_u32 v13, 10, v13"); p("v_subrev_u32 v14, 12, v13"); p("v_min_u32 v13, v13, v14")
        p(f"v_lshl_add_u32 v{5+i}, v13, 4, v12")
    p(f"s_mul_i32 s68, s6, {16*2752}"); p("s_lshl_b32 s3, s66, 5"); p("s_add_u32 s68, s68, s3")
    p("s_mul_i32 s69, s6, 3072")
assert all((c*5462)>>16==c//12 for c in range(192))

def w1_dma(q):
    slot=(q+3)%6
    out=[]
    for mat in range(2):
        for i in range(3):
            out.append([f"s_add_u32 m0, s69, {slot*SLOT+mat*12288+i*1024}",
                        f"s_add_u32 s3, s68, {q*64*2752}",
                        f"buffer_load_dwordx4 v{2+3*mat+i}, {SRD_A if mat==0 else SRD_B}, s3 offen lds"])
    return out

def wo_phase(p):
    w1_setup(p)
    p("s_waitcnt lgkmcnt(0)")
    p("s_barrier")
    n=0
    for q in range(3):
        for g in w1_dma(q):
            for x in g: p(x)
            n+=1
            if n==12:
                p("s_waitcnt vmcnt(12)")
                flag_off(p,F2); set_flag(p,'s3',12)
    stamp(p,'C flag set',vt=200)
    lane_params(p)
    p("s_and_b32 s3, s6, 1"); p("s_lshl_b32 s3, s3, 2")
    tr_base128(p,'v10',"s3",WO_L)
    p("s_and_b32 s3, s6, 1"); p("s_lshl_b32 s3, s3, 15")
    p("v_add_u32 v10, s3, v10")
    p("v_xor_b32 v11, 64, v10")
    p("v_and_b32 v12, 31, v0"); p("v_lshlrev_b32 v12, 2, v12")
    p("s_lshl_b32 s30, s4, 7"); p(f"s_add_u32 s30, s30, {F2}")
    poll(p,'s2',SRD_WS,'s30','v12',1,13)
    stamp(p,'C S2 done',vt=200)
    p("s_lshl_b32 s31, s61, 5"); p("s_and_b32 s3, s6, 1"); p("s_lshl_b32 s3, s3, 4"); p("s_add_u32 s31, s31, s3")
    p("s_lshl_b32 s31, s31, 10"); p(f"s_add_u32 s31, s31, {L.OF}")
    vm=VM(p)
    for i in range(16):
        p(f"s_add_u32 s3, s31, {i*1024}")
        vm.issue(i,f"buffer_load_dwordx4 a[{4*i}:{4*i+3}], v9, {SRD_WS}, s3 offen sc1")
    AB=[16+8*b for b in range(4)]
    ACC=[64,80]
    def rd(i):
        b=AB[i%4]
        for cc,va in enumerate(('v10','v11')):
            p(f"ds_read_b64_tr_b16 v[{b+4*cc}:{b+4*cc+1}], {va} offset:{i*2048}")
            p(f"ds_read_b64_tr_b16 v[{b+4*cc+2}:{b+4*cc+3}], {va} offset:{i*2048+512}")
    for i in range(3): rd(i)
    for i in range(16):
        if i+3<16: rd(i+3)
        rem=min(3,15-i)
        p(f"s_waitcnt vmcnt({15-i}) lgkmcnt({rem*4})")
        b=AB[i%4]
        for cc in range(2):
            a=ACC[cc]
            p(f"v_mfma_f32_32x32x16_bf16 v[{a}:{a+15}], v[{b+4*cc}:{b+4*cc+3}], a[{4*i}:{4*i+3}], {'0' if i==0 else f'v[{a}:{a+15}]'}")
    stamp(p,'C mfma',vt=200)
    pair_reduce(p,ACC,RED)
    for j in range(8):
        p(f"v_lshlrev_b32 v{96+2*j}, 16, v{240+j}")
        p(f"v_and_b32 v{97+2*j}, 0xffff0000, v{240+j}")
    for j in range(8): p(f"v_pk_add_f32 v[{64+2*j}:{65+2*j}], v[{64+2*j}:{65+2*j}], v[{96+2*j}:{97+2*j}]")
    for j in range(8): p(f"v_cvt_pk_bf16_f32 v{32+j}, v{64+2*j}, v{65+2*j}")
    p("s_lshl_b32 s3, s61, 5"); p("s_lshl_b32 s7, s62, 1"); p("s_add_u32 s3, s3, s7"); p("s_lshl_b32 s3, s3, 10"); p(f"s_add_u32 s3, s3, {L.HF}")
    p(f"buffer_store_dwordx4 v[32:35], v9, {SRD_WS}, s3 offen sc1")
    p(f"buffer_store_dwordx4 v[36:39], v9, {SRD_WS}, s3 offen offset:1024 sc1")
    p("v_pk_mul_f32 v[42:43], v[64:65], v[64:65]"); p("v_pk_add_f32 v[40:41], v[64:65], v[66:67]")
    p("v_pk_fma_f32 v[42:43], v[66:67], v[66:67], v[42:43]")
    for j in range(2,8):
        p(f"v_pk_add_f32 v[40:41], v[40:41], v[{64+2*j}:{65+2*j}]"); p(f"v_pk_fma_f32 v[42:43], v[{64+2*j}:{65+2*j}], v[{64+2*j}:{65+2*j}], v[42:43]")
    p("v_add_f32 v40, v40, v41"); p("v_add_f32 v41, v42, v43")
    p("v_mov_b32 v42, v40"); p("v_mov_b32 v43, v41")
    p("v_permlane32_swap_b32 v40, v42"); p("v_permlane32_swap_b32 v41, v43")
    p("v_add_f32 v40, v40, v42"); p("v_add_f32 v41, v41, v43")
    p("s_lshl_b32 s3, s61, 12"); p("s_lshl_b32 s7, s62, 3"); p("s_add_u32 s3, s3, s7"); p(f"s_add_u32 s3, s3, {L.HS}")
    p("v_lshlrev_b32 v12, 7, v0")
    p("s_mov_b32 exec_hi, 0")
    p(f"buffer_store_dwordx2 v[40:41], v12, {SRD_WS}, s3 offen sc1")
    p("s_mov_b64 exec, -1")
    for j in range(8): p(f"v_accvgpr_write_b32 a{248+j}, v{32+j}")
    n=0
    for q in range(3,6):
        for g in w1_dma(q):
            for x in g: p(x)
            n+=1
            if n==12:
                p("s_waitcnt vmcnt(12)")
                flag_off(p,F3); set_flag(p,'s3',12)
    stamp(p,'C done',vt=200)

def flag_off(p,F):
    p("s_lshl_b32 s3, s4, 7"); p("s_lshl_b32 s7, s5, 4"); p("s_add_u32 s3, s3, s7"); p("s_lshl_b32 s7, s6, 2"); p("s_add_u32 s3, s3, s7")
    p(f"s_add_u32 s3, s3, {F}")

def pair_reduce(p,ACC,base):
    p(f"s_lshl_b32 s3, s6, 12"); p(f"s_add_u32 s3, s3, {base}")
    p("v_add_u32 v12, s3, v9")
    for q in range(4): p(f"ds_write_b128 v12, v[{ACC[1]+4*q}:{ACC[1]+4*q+3}] offset:{q*1024}")
    p("v_xor_b32 v12, 4096, v12")
    p("s_waitcnt lgkmcnt(0)")
    p("s_barrier")
    for q in range(4): p(f"ds_read_b128 v[{ACC[1]+4*q}:{ACC[1]+4*q+3}], v12 offset:{q*1024}")
    for q in range(4):
        p(f"s_waitcnt lgkmcnt({3-q})")
        for j in range(2):
            a=ACC[0]+4*q+2*j; b=ACC[1]+4*q+2*j
            p(f"v_pk_add_f32 v[{a}:{a+1}], v[{a}:{a+1}], v[{b}:{b+1}]")

def ffn1_phase(p):
    p("s_lshr_b32 s70, s4, 1"); p("s_lshl_b32 s70, s70, 2"); p("s_add_u32 s70, s70, s6")
    lane_params(p)
    p("v_mul_u32_u24 v10, 192, v14"); p("v_add_u32 v10, v10, v96")
    p(f"v_mul_u32_u24 v97, {12288+32}, v15"); p("v_add_u32 v28, v10, v97")
    p(f"v_mul_u32_u24 v97, {12288+32-192}, v15"); p("v_add_u32 v29, v10, v97")
    p("v_and_b32 v12, 31, v0"); p("v_lshlrev_b32 v12, 7, v12"); p("v_lshrrev_b32 v13, 5, v0"); p("v_lshl_add_u32 v30, v13, 6, v12")
    p("v_lshlrev_b32 v12, 2, v0")
    p("s_lshr_b32 s30, s4, 1"); p("s_lshl_b32 s30, s30, 8"); p(f"s_add_u32 s30, s30, {F3}")
    poll(p,'s3',SRD_WS,'s30','v12',1,13)
    stamp(p,'D S3 done',vt=12)
    vm=VM(p)
    p("s_lshl_b32 s30, s70, 15"); p(f"s_add_u32 s30, s30, {L.HF}")
    def ldB(s):
        p(f"s_add_u32 s3, s30, {s*1024}")
        vm.issue(('B',s),f"buffer_load_dwordx4 v[{128+4*s}:{131+4*s}], v9, {SRD_WS}, s3 offen sc1")
    p("s_lshl_b32 s31, s70, 12"); p(f"s_add_u32 s31, s31, {L.HS}")
    ldB(0)
    for i in range(4): vm.issue(('S',i),f"buffer_load_dwordx4 v[{32+4*i}:{35+4*i}], v30, {SRD_WS}, s31 offen offset:{i*16} sc1")
    LA=8
    for s in range(1,LA): ldB(s)
    p("s_barrier")
    AB=[0,24]
    def rdA(s):
        q,ss=divmod(s,4); b=AB[s%2]; out=[]
        for uu in range(6):
            va='v10' if uu<5 else 'v11'
            off=ss*3072+uu*32
            out.append(f"ds_read_b64_tr_b16 a[{b+4*uu}:{b+4*uu+1}], {va} offset:{off}")
            out.append(f"ds_read_b64_tr_b16 a[{b+4*uu+2}:{b+4*uu+3}], {va} offset:{off+768}")
        return out
    def setbase(q):
        slot=(q+3)%6
        return [f"v_add_u32 v10, {slot*SLOT}, v28", f"v_add_u32 v11, {slot*SLOT}, v29"]
    for x in setbase(0): p(x)
    for x in rdA(0): p(x)
    vm.wait(('S',3))
    for i in range(2):
        p(f"v_pk_add_f32 v[{32+4*i}:{33+4*i}], v[{32+4*i}:{33+4*i}], v[{34+4*i}:{35+4*i}]")
        p(f"v_pk_add_f32 v[{40+4*i}:{41+4*i}], v[{40+4*i}:{41+4*i}], v[{42+4*i}:{43+4*i}]")
    p("v_pk_add_f32 v[32:33], v[32:33], v[36:37]"); p("v_pk_add_f32 v[40:41], v[40:41], v[44:45]")
    p("v_pk_add_f32 v[16:17], v[32:33], v[40:41]")
    p("v_mov_b32 v18, v16"); p("v_mov_b32 v19, v17")
    p("v_permlane32_swap_b32 v16, v18"); p("v_permlane32_swap_b32 v17, v19")
    p("v_add_f32 v16, v16, v18"); p("v_add_f32 v17, v17, v19")
    p(f"v_mul_f32 v16, {hx(f2u(1/512))}, v16"); p(f"v_mul_f32 v17, {hx(f2u(1/512))}, v17")
    p("v_fma_f32 v17, -v16, v16, v17"); p("v_max_f32 v17, 0, v17"); p(f"v_add_f32 v17, {hx(f2u(1e-5))}, v17")
    p("v_rsq_f32 v17, v17"); p("v_mul_f32 v16, v16, v17"); p("v_sub_f32 v18, 0, v16"); p("v_mov_b32 v19, v18"); p("v_mov_b32 v16, v17")
    def norm(s):
        out=[]
        for i in range(4):
            r=128+4*s+i; t0=20+2*i; t1=21+2*i
            out.append(f"v_lshlrev_b32 v{t0}, 16, v{r}"); out.append(f"v_and_b32 v{t1}, 0xffff0000, v{r}")
        for i in range(4):
            t0=20+2*i
            out.append(f"v_pk_fma_f32 v[{t0}:{t0+1}], v[{t0}:{t0+1}], v[16:17], v[18:19]")
        for i in range(4):
            r=128+4*s+i; t0=20+2*i; t1=21+2*i
            out.append(f"v_cvt_pk_bf16_f32 v{r}, v{t0}, v{t1}")
        return out
    vm.wait(('B',0))
    for x in norm(0): p(x)
    stamp(p,'D start',vt=12)
    ACC=[32+16*u for u in range(6)]
    dmas=w1_dma(6)+w1_dma(7)
    for s in range(32):
        nxt=s+1
        pre=[]; rd=[]; fill=[]; mem=[]
        if s==8:
            p("s_barrier")
        if s+LA<32: mem.append(('B',s+LA))
        if 8<=s<20: mem.append(('D',s-8))
        if nxt<32:
            qn,ssn=divmod(nxt,4)
            if nxt==24:
                vm.wait(('D',11))
                p("s_barrier")
            if ssn==0: pre=setbase(qn)
            rd=rdA(nxt); fill=norm(nxt)
        p("s_waitcnt lgkmcnt(0)")
        for x in pre: p(x)
        if nxt<32: vm.wait(('B',nxt))
        b=AB[s%2]
        mf=[f"v_mfma_f32_32x32x16_bf16 v[{ACC[uu]}:{ACC[uu]+15}], a[{b+4*uu}:{b+4*uu+3}], v[{128+4*s}:{131+4*s}], {'0' if s==0 else f'v[{ACC[uu]}:{ACC[uu]+15}]'}" for uu in range(6)]
        fi=0
        for uu in range(6):
            p(mf[uu])
            for x in rd[2*uu:2*uu+2]: p(x)
            k=3 if uu<4 else 2
            for x in fill[fi:fi+k]: p(x)
            fi+=k
            if uu==1 and mem and mem[0][0]=='B': ldB(mem[0][1])
            if uu==3:
                for m in mem:
                    if m[0]=='D':
                        g=dmas[m[1]]; p(g[0]); p(g[1]); vm.issue(('D',m[1]),g[2])
        for x in fill[fi:]: p(x)
    stamp(p,'D mfma done',vt=12)
    c1=-2*1.4426950408889634*0.7978845608028654; c2=c1*0.044715
    p(f"s_mov_b32 s72, {hx(f2u(c2))}"); p("s_mov_b32 s73, s72")
    p(f"v_mov_b32 v28, {hx(f2u(c1))}"); p("v_mov_b32 v29, v28")
    p("v_mov_b32 v30, 1.0"); p("v_mov_b32 v31, 1.0")
    p("s_mul_i32 s30, s70, 86"); p("s_add_u32 s30, s30, s66"); p("s_lshl_b32 s30, s30, 10"); p(f"s_add_u32 s30, s30, {L.AF}")
    for uu in range(6):
        a=ACC[uu]; T=16
        if uu==5:
            p("s_cmp_eq_u32 s67, 5"); p("s_cbranch_scc1 F1_done")
        pr=lambda x,j: f"v[{x+2*j}:{x+2*j+1}]"
        for j in range(4): p(f"v_pk_mul_f32 {pr(T,j)}, {pr(a,j)}, {pr(a,j)}")
        for j in range(4): p(f"v_pk_fma_f32 {pr(T,j)}, {pr(T,j)}, s[72:73], v[28:29]")
        for j in range(4): p(f"v_pk_mul_f32 {pr(T,j)}, {pr(T,j)}, {pr(a,j)}")
        for j in range(8): p(f"v_exp_f32 v{T+j}, v{T+j}")
        for j in range(4): p(f"v_pk_mul_f32 {pr(a,j)}, {pr(a,j)}, {pr(a+8,j)}")
        for j in range(4): p(f"v_pk_add_f32 {pr(T,j)}, {pr(T,j)}, v[30:31]")
        for j in range(8): p(f"v_rcp_f32 v{T+j}, v{T+j}")
        for j in range(4): p(f"v_pk_mul_f32 {pr(T,j)}, {pr(T,j)}, {pr(a,j)}")
        for j in range(4): p(f"v_cvt_pk_bf16_f32 v{24+j}, v{T+2*j}, v{T+2*j+1}")
        p(f"buffer_store_dwordx4 v[24:27], v9, {SRD_WS}, s30 offen offset:{(uu%4)*1024} sc1")
        if uu==3: p("s_add_u32 s30, s30, 4096")
    p.label("F1_done")
    stamp(p,'D epi done',vt=12)

def ffn2_phase(p):
    srd(p,16,P_WD,1376*1024)
    srd(p,24,P_OUT,2048*1024)
    p("v_lshrrev_b32 v1, 3, v0"); p("v_and_b32 v10, 7, v0")
    w128_voff(p,'v4')
    p("s_barrier")
    p("s_lshr_b32 s3, s6, 1"); p("s_and_b32 s7, s6, 1")
    p(f"s_mul_i32 s30, s3, 81920"); p(f"s_mul_i32 s31, s7, 40960"); p("s_add_u32 s74, s30, s31")
    p(f"s_mul_i32 s75, s3, {43*16*1024}"); p(f"s_mul_i32 s31, s7, {320*1024}"); p("s_add_u32 s31, s31, s75")
    for i in range(40):
        p(f"s_add_u32 m0, s74, {i*1024}")
        if i>0: p("s_add_u32 s31, s31, 8192")
        p(f"buffer_load_dwordx4 v4, {SRD_A}, s31 offen lds")
        if i==19:
            p("s_waitcnt vmcnt(20)")
            flag_off(p,F4); set_flag(p,'s3',12)
    stamp(p,'E flag set',vt=12)
    lane_params(p)
    p("s_and_b32 s3, s6, 1"); p("s_lshl_b32 s3, s3, 2")
    tr_base128(p,'v10',"s3",0)
    p("s_and_b32 s3, s6, 1"); p("s_mul_i32 s3, s3, 81920")
    p("v_add_u32 v10, s3, v10")
    p("v_xor_b32 v11, 64, v10")
    p("v_lshlrev_b32 v12, 2, v0")
    p("s_lshr_b32 s30, s4, 1"); p("s_lshl_b32 s30, s30, 8"); p(f"s_add_u32 s30, s30, {F4}")
    poll(p,'s4',SRD_WS,'s30','v12',1,13)
    stamp(p,'E S4 done',vt=12)
    vm=VM(p)
    p("s_mul_i32 s31, s61, 86"); p("s_and_b32 s3, s6, 1"); p("s_mul_i32 s3, s3, 43"); p("s_add_u32 s31, s31, s3")
    p("s_lshl_b32 s31, s31, 10"); p(f"s_add_u32 s31, s31, {L.AF}")
    def ldB(i):
        p(f"s_add_u32 s3, s31, {i*1024}")
        vm.issue(('B',i),f"buffer_load_dwordx4 a[{4*i}:{4*i+3}], v9, {SRD_WS}, s3 offen sc1")
    LA=10; NS=43
    for i in range(LA): ldB(i)
    p("s_barrier")
    AB=[16+8*b for b in range(4)]
    ACC=[64,80]
    def rd(i):
        b=AB[i%4]
        j=i if i<40 else i-40
        off=j*2048
        va=('v10','v11')
        if 24<=i<40: va=('v14','v15'); off-=49152
        for cc in range(2):
            p(f"ds_read_b64_tr_b16 v[{b+4*cc}:{b+4*cc+1}], {va[cc]} offset:{off}")
            p(f"ds_read_b64_tr_b16 v[{b+4*cc+2}:{b+4*cc+3}], {va[cc]} offset:{off+512}")
    p("v_add_u32 v14, 49152, v10"); p("v_add_u32 v15, 49152, v11")
    p("s_and_b32 s7, s6, 1"); p("s_mul_i32 s3, s7, 3")
    p("s_lshl_b32 s76, s3, 13"); p("s_add_u32 s76, s76, s75"); p(f"s_add_u32 s76, s76, {40*16*1024}")
    p("s_lshl_b32 s77, s3, 10"); p("s_lshr_b32 s3, s6, 1"); p("s_mul_i32 s3, s3, 81920"); p("s_add_u32 s77, s77, s3")
    for i in range(3): rd(i)
    for i in range(NS):
        if i==4:
            p("s_barrier")
            for j in range(3):
                p(f"s_add_u32 m0, s77, {j*1024}"); p(f"s_add_u32 s3, s76, {j*8192}")
                vm.issue(('D',j),f"buffer_load_dwordx4 v4, {SRD_A}, s3 offen lds")
        if i==36:
            vm.wait(('D',2))
            p("s_barrier")
        if i+3<NS: rd(i+3)
        if i+LA<NS: ldB(i+LA)
        rem=min(3,NS-1-i)
        vm.wait(('B',i),extra=f" lgkmcnt({rem*4})")
        b=AB[i%4]
        for cc in range(2):
            a=ACC[cc]
            p(f"v_mfma_f32_32x32x16_bf16 v[{a}:{a+15}], v[{b+4*cc}:{b+4*cc+3}], a[{4*i}:{4*i+3}], {'0' if i==0 else f'v[{a}:{a+15}]'}")
    stamp(p,'E mfma',vt=12)
    pair_reduce(p,ACC,8192)
    for j in range(8): p(f"v_accvgpr_read_b32 v{32+j}, a{248+j}")
    for j in range(8):
        p(f"v_lshlrev_b32 v{96+2*j}, 16, v{32+j}")
        p(f"v_and_b32 v{97+2*j}, 0xffff0000, v{32+j}")
    for j in range(8): p(f"v_pk_add_f32 v[{64+2*j}:{65+2*j}], v[{64+2*j}:{65+2*j}], v[{96+2*j}:{97+2*j}]")
    for j in range(8): p(f"v_cvt_pk_bf16_f32 v{32+j}, v{64+2*j}, v{65+2*j}")
    p("s_lshl_b32 s3, s62, 6")
    p(f"buffer_store_dwordx4 v[32:35], v8, {SRD_O}, s3 offen")
    p(f"buffer_store_dwordx4 v[36:39], v8, {SRD_O}, s3 offen offset:32")

def build(fname):
    p=Prog()
    end="END_K"
    prologue(p,end)
    stamp(p,'start')
    phase_a(p)
    attention(p)
    wo_phase(p)
    ffn1_phase(p)
    ffn2_phase(p)
    stamp(p,'end',vt=12)
    p.label(end)
    p("s_endpgm")
    ins=p.finalize(name='k')
    print(f"{len(ins)} lines, {p.nops} hazard nops",file=sys.stderr)
    ref=open('sequential_preLN__grouped_kv_mqa__geglu_ffn__prompt.s.ref').read()
    hdr=ref.split('; Override')[0]
    out=hdr+f"; @launch grid=(256,1,1) block=(256,1,1) lds={LDS_TOTAL}\n"
    out+='.amdgcn_target "amdgcn-amd-amdhsa--gfx950"\n.text\n'
    out+=f".globl {KNAME}\n.p2align 8\n.type {KNAME},@function\n{KNAME}:\n"+render(ins)
    out+=f""".section .rodata,"a"
.p2align 6
.amdhsa_kernel {KNAME}
  .amdhsa_next_free_vgpr 512
  .amdhsa_next_free_sgpr 96
  .amdhsa_accum_offset 256
  .amdhsa_group_segment_fixed_size 0
  .amdhsa_kernarg_size 96
  .amdhsa_user_sgpr_count 2
  .amdhsa_user_sgpr_kernarg_segment_ptr 1
  .amdhsa_system_sgpr_workgroup_id_x 1
.end_amdhsa_kernel
"""
    open(fname,'w').write(out)

if __name__=='__main__':
    out=sys.argv[1]
    if len(sys.argv)>2: PROFILE=True
    build(out)
    open(out+'.stamps','w').write('\n'.join(STAMPS))
    if DSTAMPS: print(DSTAMPS)
```

```python
import sys, os, struct
from asm import Prog, render
import layout as L

OPT=set(x for x in os.environ.get('OPT','').split(',') if x)
KNAME='sequential_preLN__grouped_kv_mqa__geglu_ffn__prompt_kernel'
QSCALE=1.4426950408889634/4.0
def f2u(x): return struct.unpack('<I',struct.pack('<f',x))[0]
def hx(x): return '0x%08x'%(x & 0xffffffff)

SRD_WS='s[8:11]'; SRD_X='s[12:15]'; SRD_A='s[16:19]'; SRD_B='s[20:23]'; SRD_O='s[24:27]'; SRD_D='s[56:59]'
P_X,P_WQ,P_WK,P_WV,P_WO,P_WG,P_WU,P_WD,P_OUT,P_WS,P_DBG=32,34,36,38,40,44,46,48,50,52,54
SPIN=1<<17

XH0=0; XH1=33792; WQ=67584; WK=XH1; WV=XH1+16384+128
WO_L=0; OP=65536; QL=139264; MX=147456; MF=MX+4096; QM=153600
SLOT=24576; RED=147456
LDS_TOTAL=163840
F2=L.FLG; F3=L.FLG+4096; F4=L.FLG+8192

def srd(p, d, ptr, size):
    p(f"s_mov_b32 s{d}, s{ptr}")
    p(f"s_mov_b32 s{d+1}, s{ptr+1}")
    p(f"s_mov_b32 s{d+2}, {hx(size)}")
    p(f"s_mov_b32 s{d+3}, 0x20000")
def csel(p,d,a,b):
    p(f"s_mov_b32 {d}, {b}"); p(f"s_cmov_b32 {d}, {a}")

PROFILE=False
PF_N=int(os.environ.get('PF_N','3'))
STAMPS=[]
DSTAMPS=[]
def dstamp(p,name,vt):
    slot=len(DSTAMPS)
    if slot>=16: return
    DSTAMPS.append(name)
    lab=f"DST_{slot}_{len(p.lines)}"
    p("s_lshl_b32 s90, s2, 2"); p("s_or_b32 s90, s90, s6")
    p(f"s_cmp_lg_u32 s90, {int(os.environ.get('DWG','40'))*4}"); p(f"s_cbranch_scc1 {lab}")
    p("s_memrealtime s[90:91]")
    p("s_waitcnt lgkmcnt(0) ; nowaitcheck")
    p(f"v_mov_b32 v{vt}, s90"); p(f"v_mov_b32 v{vt+1}, {slot*4}")
    p("s_mov_b64 s[94:95], exec"); p("s_mov_b64 exec, 1")
    p(f"buffer_store_dword v{vt}, v{vt+1}, {SRD_D}, 0 offen")
    p("s_mov_b64 exec, s[94:95]")
    p.label(lab)
DSEL=os.environ.get('DSEL','').split(',')
def stamp(p, name, vt=250, dyn=None, n=1):
    if name in DSEL: dstamp(p,name,vt)
    if not PROFILE: return
    slot=len(STAMPS)
    for i in range(n): STAMPS.append(name+(f"[{i}]" if n>1 else ""))
    lab=f"ST_{slot}_{len(p.lines)}"
    p("s_cmp_lg_u32 s6, 0"); p(f"s_cbranch_scc1 {lab}")
    p("s_memrealtime s[90:91]")
    p("s_memtime s[88:89]")
    p("s_lshl_b32 s92, s2, 3"); p(f"s_add_u32 s92, s92, {L.PROF+slot*2048}")
    if dyn: p(f"s_lshl_b32 s93, {dyn}, 11"); p("s_add_u32 s92, s92, s93")
    p("s_waitcnt lgkmcnt(0) ; nowaitcheck")
    p(f"v_mov_b32 v{vt}, s90"); p(f"v_mov_b32 v{vt+1}, s88"); p(f"v_mov_b32 v{vt+2}, 0")
    p("s_mov_b64 s[94:95], exec"); p("s_mov_b64 exec, 1")
    p(f"buffer_store_dwordx2 v[{vt}:{vt+1}], v{vt+2}, {SRD_WS}, s92 offen")
    p("s_mov_b64 exec, s[94:95]")
    p.label(lab)

class VM:
    def __init__(s,p): s.p=p; s.n=0; s.pos={}
    def issue(s,key,txt):
        s.p(txt); s.pos[key]=s.n; s.n+=1
    def wait(s,*keys,extra=""):
        need=max(s.pos[k] for k in keys)
        c=s.n-1-need
        if c<=63: s.p(f"s_waitcnt vmcnt({c}){extra}")
        elif extra: s.p(f"s_waitcnt{extra}")

def poll(p, name, srd_, soff, vaddr, expect, vt):
    p(f"s_mov_b32 s29, {SPIN}")
    p.label(f"POLL_{name}")
    p(f"buffer_load_dword v{vt}, {vaddr}, {srd_}, {soff} offen sc1")
    p("s_waitcnt vmcnt(0)")
    p(f"v_cmp_ne_u32 vcc, {expect}, v{vt}")
    p("s_cmp_eq_u64 vcc, 0")
    p(f"s_cbranch_scc1 POLLD_{name}")
    p("s_sub_u32 s29, s29, 1")
    p("s_cmp_lg_u32 s29, 0")
    p(f"s_cbranch_scc1 POLL_{name}")
    p.label(f"POLLD_{name}")

def set_flag(p, soff, vt):
    p(f"v_mov_b32 v{vt}, 1"); p(f"v_mov_b32 v{vt+1}, 0")
    p("s_mov_b64 exec, 1")
    p(f"buffer_store_dword v{vt}, v{vt+1}, {SRD_WS}, {soff} offen sc1")
    p("s_mov_b64 exec, -1")

def prologue(p, end):
    p(f"s_cmp_ge_u32 s2, 256")
    p(f"s_cbranch_scc1 {end}")
    p("s_load_dwordx4 s[32:35], s[0:1], 0")
    p("s_load_dwordx4 s[36:39], s[0:1], 16")
    p("s_load_dwordx2 s[40:41], s[0:1], 32")
    p("s_load_dwordx4 s[44:47], s[0:1], 48")
    p("s_load_dwordx4 s[48:51], s[0:1], 64")
    p("s_load_dwordx2 s[52:53], s[0:1], 88")
    p("s_load_dwordx2 s[54:55], s[0:1], 80")
    p("v_lshrrev_b32 v1, 6, v0")
    p("v_and_b32 v0, 63, v0")
    p("v_readfirstlane_b32 s6, v1")
    p("s_and_b32 s3, s2, 7")
    p("s_lshr_b32 s7, s2, 3")
    p("s_lshr_b32 s4, s7, 3")
    p("s_lshl_b32 s3, s3, 2")
    p("s_add_u32 s4, s4, s3")
    p("s_and_b32 s5, s7, 7")
    p("v_lshlrev_b32 v9, 4, v0")
    if 'codepf' in OPT:
        p("s_getpc_b64 s[60:61]")
        p.label("PF_HERE")
        p("v_lshlrev_b32 v231, 6, v0")
        p("s_mul_i32 s3, s6, 4096")
        p("v_add_u32 v231, s3, v231")
        for i in range(PF_N):
            p(f"v_min_u32 v230, END_K-PF_HERE-4, v231")
            p(f"global_load_dword v{232+i}, v230, s[60:61] ; nowaitcheck")
            if i<PF_N-1: p("v_add_u32 v231, 16384, v231")
    p("s_waitcnt lgkmcnt(0)")
    srd(p,8,P_WS,L.WS_USED)
    srd(p,56,P_DBG,256)

def ln_tile(p, X, vaddr, off, mid=None):
    S0,S1,Q0,Q1='v80','v81','v82','v83'
    p(f"v_mov_b32 {S0}, 0"); p(f"v_mov_b32 {S1}, 0"); p(f"v_mov_b32 {Q0}, 0"); p(f"v_mov_b32 {Q1}, 0")
    for i in range(0,32,2):
        p(f"v_dot2c_f32_bf16 {S0}, s28, v{X+i}")
        p(f"v_dot2c_f32_bf16 {Q0}, v{X+i}, v{X+i}")
        p(f"v_dot2c_f32_bf16 {S1}, s28, v{X+i+1}")
        p(f"v_dot2c_f32_bf16 {Q1}, v{X+i+1}, v{X+i+1}")
    p(f"v_add_f32 {S0}, {S0}, {S1}")
    p(f"v_add_f32 {Q0}, {Q0}, {Q1}")
    for d in ("quad_perm:[1,0,3,2]","quad_perm:[2,3,0,1]","row_half_mirror"):
        p(f"v_add_f32_dpp {S0}, {S0}, {S0} {d} row_mask:0xf bank_mask:0xf")
        p(f"v_add_f32_dpp {Q0}, {Q0}, {Q0} {d} row_mask:0xf bank_mask:0xf")
    p(f"v_mul_f32 {S0}, {hx(f2u(1/512))}, {S0}")
    p(f"v_mul_f32 {Q0}, {hx(f2u(1/512))}, {Q0}")
    p(f"v_fma_f32 {Q0}, -{S0}, {S0}, {Q0}")
    p(f"v_max_f32 {Q0}, 0, {Q0}")
    p(f"v_add_f32 {Q0}, {hx(f2u(1e-5))}, {Q0}")
    p(f"v_rsq_f32 {Q0}, {Q0}")
    p(f"v_mul_f32 {S0}, {S0}, {Q0}")
    p(f"v_sub_f32 v94, 0, {S0}")
    p(f"v_mov_b32 v95, v94")
    p(f"v_mov_b32 v92, {Q0}")
    p(f"v_mov_b32 v93, {Q0}")
    for cb in range(8):
        for i in range(4):
            r=X+4*cb+i; t0=84+2*i; t1=85+2*i
            p(f"v_lshlrev_b32 v{t0}, 16, v{r}")
            p(f"v_and_b32 v{t1}, 0xffff0000, v{r}")
        for i in range(4):
            t0=84+2*i
            p(f"v_pk_fma_f32 v[{t0}:{t0+1}], v[{t0}:{t0+1}], v[92:93], v[94:95]")
        for i in range(4):
            r=X+4*cb+i; t0=84+2*i; t1=85+2*i
            p(f"v_cvt_pk_bf16_f32 v{r}, v{t0}, v{t1}")
        p(f"ds_write_b128 {vaddr}, v[{X+4*cb}:{X+4*cb+3}] offset:{off+cb*4224}")

def gemm_lds(p, nsteps, readA, readB, mfma, rps, depth=3, nbuf=4):
    for s in range(min(depth,nsteps)):
        readA(s,s%nbuf); readB(s,s%nbuf)
    for s in range(nsteps):
        if s+depth<nsteps:
            readA(s+depth,(s+depth)%nbuf); readB(s+depth,(s+depth)%nbuf)
        rem=min(depth,nsteps-1-s)
        p(f"s_waitcnt lgkmcnt({rem*rps})")
        mfma(s,s%nbuf)

def tr_base128(p, dst, cbit_sgpr, base):
    p("v_and_b32 v97, 1, v13")
    p("v_lshl_add_u32 v97, v15, 1, v97")
    if cbit_sgpr: p(f"v_add_u32 v97, {cbit_sgpr}, v97")
    p("v_lshrrev_b32 v98, 1, v12")
    p("v_lshlrev_b32 v98, 2, v98")
    p("v_xor_b32 v97, v97, v98")
    p("v_lshlrev_b32 v97, 4, v97")
    p("v_lshrrev_b32 v98, 1, v13")
    p("v_lshl_add_u32 v97, v98, 3, v97")
    p("v_lshl_add_u32 v97, v14, 7, v97")
    p(f"v_add_u32 {dst}, {base}, v97")

def lane_params(p):
    p("v_lshrrev_b32 v11, 4, v0")
    p("v_bfe_u32 v12, v0, 2, 2")
    p("v_and_b32 v13, 3, v0")
    p("v_lshrrev_b32 v14, 1, v11")
    p("v_lshl_add_u32 v14, v14, 3, v12")
    p("v_and_b32 v15, 1, v11")
    p("v_and_b32 v96, 1, v13")
    p("v_lshlrev_b32 v96, 4, v96")
    p("v_lshrrev_b32 v97, 1, v13")
    p("v_lshl_add_u32 v96, v97, 3, v96")

def w128_voff(p, dst):
    p("v_lshrrev_b32 v11, 4, v0")
    p("v_and_b32 v11, 1, v11")
    p("v_lshlrev_b32 v11, 2, v11")
    p("v_xor_b32 v11, v11, v10")
    p("v_lshlrev_b32 v11, 4, v11")
    p(f"v_lshl_add_u32 {dst}, v1, 10, v11")
    p("s_lshl_b32 s3, s5, 7")
    p(f"v_add_u32 {dst}, s3, {dst}")

def phase_a(p):
    p("s_mov_b32 s28, 0x3f803f80")
    srd(p,12,P_X,2048*1024)
    srd(p,16,P_WQ,512*1024)
    p("s_and_b32 s3, s5, 1")
    p("s_lshl_b32 s60, s4, 1")
    p("s_add_u32 s60, s60, s3")
    p("v_lshrrev_b32 v1, 3, v0")
    p("v_and_b32 v10, 7, v0")
    p("s_lshl_b32 s3, s60, 5")
    p("s_lshl_b32 s7, s6, 3")
    p("s_add_u32 s3, s3, s7")
    p("v_add_u32 v2, s3, v1")
    p("v_lshlrev_b32 v2, 10, v2")
    p("v_lshl_add_u32 v2, v10, 4, v2")
    p("v_xor_b32 v3, 0x8000, v2")
    p("s_cmp_ge_u32 s5, 2")
    p("s_cbranch_scc1 A_noclr")
    p("s_cmp_lg_u32 s6, 2")
    p("s_cbranch_scc1 A_noclr")
    p("s_mul_i32 s3, s60, 192")
    p(f"s_add_u32 s3, s3, {L.FLG}")
    p("v_lshlrev_b32 v11, 2, v0")
    p("v_mov_b32 v12, 0")
    p("s_mov_b32 exec_hi, 0xffff")
    p(f"buffer_store_dword v12, v11, {SRD_WS}, s3 offen sc1")
    p("s_mov_b64 exec, -1")
    p.label("A_noclr")
    for cb in range(8):
        p(f"buffer_load_dwordx4 v[{16+4*cb}:{19+4*cb}], v2, {SRD_X}, 0 offen offset:{cb*128}")
    p("s_cmp_ge_u32 s5, 2")
    p("s_cbranch_scc1 A_nokvdma")
    p("s_cmp_lt_u32 s6, 2")
    p(f"s_cselect_b32 s20, s{P_WK}, s{P_WV}")
    p(f"s_cselect_b32 s21, s{P_WK+1}, s{P_WV+1}")
    p("s_mov_b32 s22, 16384")
    p("s_mov_b32 s23, 0x20000")
    csel(p,'s30',WK,WV)
    p("s_and_b32 s3, s6, 1")
    p("s_lshl_b32 s3, s3, 13")
    p("s_add_u32 s30, s30, s3")
    for i in range(8):
        p(f"s_add_u32 m0, s30, {i*1024}")
        p(f"s_add_u32 s31, s3, {i*1024}")
        p(f"buffer_load_dwordx4 v9, {SRD_B}, s31 offen lds")
    p.label("A_nokvdma")
    for cb in range(8):
        p(f"buffer_load_dwordx4 v[{48+4*cb}:{51+4*cb}], v3, {SRD_X}, 0 offen offset:{cb*128}")
    w128_voff(p,'v4')
    p("v_lshrrev_b32 v11, 1, v10")
    p("v_mul_u32_u24 v11, 1056, v11")
    p("v_and_b32 v12, 1, v10")
    p("v_mul_u32_u24 v12, 528, v12")
    p("v_add_u32 v5, v11, v12")
    p("s_lshl_b32 s3, s6, 3")
    p("v_add_u32 v11, s3, v1")
    p("v_lshl_add_u32 v5, v11, 4, v5")
    p("v_lshrrev_b32 v11, 5, v0")
    p("v_mul_u32_u24 v11, 528, v11")
    p("v_and_b32 v12, 31, v0")
    p("v_lshl_add_u32 v6, v12, 4, v11")
    lane_params(p)
    p(f"v_mul_u32_u24 v97, {WV-WK}, v15")
    p("v_lshl_add_u32 v97, v14, 5, v97")
    p("v_add_u32 v97, v97, v96")
    p(f"v_add_u32 v8, {WK}, v97")
    p("s_and_b32 s3, s6, 1")
    p("s_lshl_b32 s3, s3, 2")
    tr_base128(p,'v7','s3',WQ)
    stamp(p,'A issued')
    p("s_waitcnt vmcnt(8)")
    stamp(p,'A x arrived')
    ln_tile(p,16,'v5',XH0)
    p("s_waitcnt lgkmcnt(0)")
    p("s_barrier")
    stamp(p,'A lnA done')
    p("s_cmp_ge_u32 s6, 2")
    p("s_cbranch_scc1 A_wqdma")
    p("s_waitcnt vmcnt(0)")
    p("s_cmp_ge_u32 s5, 2")
    p("s_cbranch_scc1 A_kvdone")
    def rA(s,b):
        p(f"ds_read_b64_tr_b16 v[{96+4*b}:{97+4*b}], v8 offset:{s*512}")
        p(f"ds_read_b64_tr_b16 v[{98+4*b}:{99+4*b}], v8 offset:{s*512+128}")
    def rB(s,b):
        p(f"ds_read_b128 v[{112+4*b}:{115+4*b}], v6 offset:{XH0+s*1056}")
    p("s_cmp_eq_u32 s6, 1")
    p("s_cbranch_scc1 A_vwave")
    gemm_lds(p,32,rA,rB,lambda s,b: p(f"v_mfma_f32_32x32x16_bf16 v[128:143], v[{96+4*b}:{99+4*b}], v[{112+4*b}:{115+4*b}], {'0' if s==0 else 'v[128:143]'}"),3)
    for j in range(4): p(f"v_cvt_pk_bf16_f32 v{88+j}, v{128+2*j}, v{129+2*j}")
    p("s_lshl_b32 s3, s60, 10")
    p(f"s_add_u32 s3, s3, {L.KF}")
    p(f"buffer_store_dwordx4 v[88:91], v9, {SRD_WS}, s3 offen sc1")
    p("v_mul_f32 v84, v128, v128")
    for j in range(1,8): p(f"v_fmac_f32 v84, v{128+j}, v{128+j}")
    p("v_mov_b32 v85, v84")
    p("v_permlane32_swap_b32 v84, v85")
    p("v_add_f32 v84, v84, v85")
    for d in ("row_ror:8","row_ror:4","row_ror:2","row_ror:1"):
        p(f"v_max_f32_dpp v84, v84, v84 {d} row_mask:0xf bank_mask:0xf")
    p("v_readlane_b32 s3, v84, 0")
    p("v_readlane_b32 s7, v84, 16")
    p("s_max_u32 s3, s3, s7")
    p("v_mov_b32 v84, s3")
    p("s_lshl_b32 s7, s60, 2")
    p(f"s_add_u32 s7, s7, {L.KM}")
    p("v_mov_b32 v85, 0")
    p("s_mov_b64 exec, 1")
    p(f"buffer_store_dword v84, v85, {SRD_WS}, s7 offen sc1")
    p("s_mov_b64 exec, -1")
    p("s_branch A_kvdone")
    p.label("A_vwave")
    p("v_and_b32 v84, 3, v0")
    p("v_bfe_u32 v85, v0, 2, 1")
    p("v_lshl_add_u32 v84, v85, 3, v84")
    p("v_bfe_u32 v85, v0, 3, 1")
    p("v_lshl_add_u32 v84, v85, 2, v84")
    p("v_and_b32 v85, 16, v0")
    p("v_add_u32 v84, v84, v85")
    p("v_lshrrev_b32 v85, 5, v0")
    p("v_mul_u32_u24 v85, 528, v85")
    p("v_lshl_add_u32 v86, v84, 4, v85")
    def rBv(s,b):
        p(f"ds_read_b128 v[{112+4*b}:{115+4*b}], v86 offset:{XH0+s*1056}")
    gemm_lds(p,32,rA,rBv,lambda s,b: p(f"v_mfma_f32_32x32x16_bf16 v[128:143], v[{112+4*b}:{115+4*b}], v[{96+4*b}:{99+4*b}], {'0' if s==0 else 'v[128:143]'}"),3)
    for j in range(8): p(f"v_cvt_pk_bf16_f32 v{88+j}, v{128+2*j}, v{129+2*j}")
    p("v_lshrrev_b32 v84, 5, v0")
    p("v_and_b32 v85, 15, v0")
    p("v_lshl_add_u32 v84, v84, 4, v85")
    p("v_lshlrev_b32 v84, 4, v84")
    p("s_lshl_b32 s3, s60, 10")
    p(f"s_add_u32 s3, s3, {L.VF}")
    p("s_mov_b32 exec_lo, 0xffff0000")
    p("s_mov_b32 exec_hi, 0xffff0000")
    p(f"buffer_store_dwordx4 v[88:91], v84, {SRD_WS}, s3 offen sc1")
    p(f"buffer_store_dwordx4 v[92:95], v84, {SRD_WS}, s3 offen offset:512 sc1")
    p("s_mov_b64 exec, -1")
    p("s_branch A_kvdone")
    p.label("A_wqdma")
    p("s_sub_u32 s3, s6, 2")
    p("s_lshl_b32 s31, s3, 18")
    p("s_lshl_b32 s30, s3, 15")
    p(f"s_add_u32 s30, s30, {WQ}")
    for i in range(32):
        p(f"s_add_u32 m0, s30, {i*1024}")
        if i>0: p(f"s_add_u32 s31, s31, 8192")
        p(f"buffer_load_dwordx4 v4, {SRD_A}, s31 offen lds")
    p("s_waitcnt vmcnt(32)")
    p.label("A_kvdone")
    stamp(p,'A kvdone')
    p("s_waitcnt lgkmcnt(0)")
    p("s_barrier")
    ln_tile(p,48,'v5',XH1)
    p("s_waitcnt vmcnt(0)")
    p("s_cmp_ge_u32 s5, 2"); p("s_cbranch_scc1 A_nosig")
    p("s_cmp_ge_u32 s6, 2"); p("s_cbranch_scc1 A_nosig")
    p("s_and_b32 s3, s60, 3"); p("s_lshl_b32 s3, s3, 3"); p("s_lshl_b32 s7, 1, s3")
    p("s_lshr_b32 s3, s60, 2"); p("s_lshl_b32 s3, s3, 2"); p("s_add_u32 s3, s3, 64")
    p("v_mov_b32 v84, s7"); p("v_mov_b32 v85, 0")
    p("s_mov_b64 exec, 1")
    p(f"buffer_atomic_add v84, v85, {SRD_D}, s3 offen sc1")
    p("s_mov_b64 exec, -1")
    p.label("A_nosig")
    p("s_waitcnt lgkmcnt(0)")
    p("s_barrier")
    stamp(p,'A lnB done')
    p("s_lshr_b32 s3, s6, 1")
    p(f"s_mul_i32 s7, s3, {XH1}")
    p("v_add_u32 v6, s7, v6")
    def rA(s,b):
        p(f"ds_read_b64_tr_b16 v[{96+4*b}:{97+4*b}], v7 offset:{s*2048}")
        p(f"ds_read_b64_tr_b16 v[{98+4*b}:{99+4*b}], v7 offset:{s*2048+512}")
    def rB(s,b):
        p(f"ds_read_b128 v[{112+4*b}:{115+4*b}], v6 offset:{s*1056}")
    gemm_lds(p,32,rA,rB,lambda s,b: p(f"v_mfma_f32_32x32x16_bf16 v[128:143], v[{96+4*b}:{99+4*b}], v[{112+4*b}:{115+4*b}], {'0' if s==0 else 'v[128:143]'}"),3)
    p(f"s_mov_b32 s30, {hx(f2u(QSCALE))}"); p("s_mov_b32 s31, s30")
    for j in range(8): p(f"v_pk_mul_f32 v[{128+2*j}:{129+2*j}], v[{128+2*j}:{129+2*j}], s[30:31]")
    for j in range(8): p(f"v_cvt_pk_bf16_f32 v{88+j}, v{128+2*j}, v{129+2*j}")
    p("s_xor_b32 s3, s5, s3"); p("s_and_b32 s3, s3, 1"); p("s_lshl_b32 s3, s3, 2")
    p("s_and_b32 s7, s6, 1"); p("s_lshl_b32 s7, s7, 1"); p("s_add_u32 s3, s3, s7")
    p("s_lshl_b32 s3, s3, 10"); p(f"s_add_u32 s3, s3, {QL}")
    p("v_add_u32 v84, s3, v9")
    p("ds_write_b128 v84, v[88:91]")
    p("ds_write_b128 v84, v[92:95] offset:1024")
    p("v_mul_f32 v84, v128, v128"); p("v_mul_f32 v85, v136, v136")
    for j in range(1,8): p(f"v_fmac_f32 v84, v{128+j}, v{128+j}"); p(f"v_fmac_f32 v85, v{136+j}, v{136+j}")
    p("v_mov_b32 v86, v84"); p("v_mov_b32 v87, v85")
    p("v_permlane32_swap_b32 v84, v86"); p("v_permlane32_swap_b32 v85, v87")
    p("v_add_f32 v84, v84, v86"); p("v_add_f32 v85, v85, v87")
    p("v_max_u32 v84, v84, v85")
    for d in ("row_ror:8","row_ror:4","row_ror:2","row_ror:1"):
        p(f"v_max_u32_dpp v84, v84, v84 {d} row_mask:0xf bank_mask:0xf")
    p("v_readlane_b32 s3, v84, 0")
    p("v_readlane_b32 s7, v84, 16")
    p("s_max_u32 s3, s3, s7")
    p("v_mov_b32 v84, s3")
    p("s_lshl_b32 s7, s6, 2"); p(f"s_add_u32 s7, s7, {QM}")
    p("v_mov_b32 v85, s7")
    p("ds_write_b32 v85, v84")
    p("s_waitcnt lgkmcnt(0)")
    p("s_barrier")
    stamp(p,'A q done')
    srd(p,16,P_WO,512*1024)
    p("s_lshl_b32 s31, s6, 17")
    p("s_lshl_b32 s30, s6, 14")
    for i in range(16):
        p(f"s_add_u32 m0, s30, {WO_L+i*1024}")
        if i>0: p(f"s_add_u32 s31, s31, 8192")
        p(f"buffer_load_dwordx4 v4, {SRD_A}, s31 offen lds")
    p("s_lshr_b32 s61, s6, 1"); p("s_lshl_b32 s3, s4, 1"); p("s_add_u32 s61, s61, s3")
    p("s_and_b32 s62, s6, 1"); p("s_lshl_b32 s3, s5, 1"); p("s_add_u32 s62, s62, s3")
    p("v_and_b32 v2, 31, v0"); p("s_lshl_b32 s3, s61, 5"); p("v_add_u32 v2, s3, v2"); p("v_lshlrev_b32 v2, 10, v2")
    p("v_lshrrev_b32 v3, 5, v0"); p("v_lshl_add_u32 v8, v3, 4, v2")
    p("s_lshl_b32 s3, s62, 6")
    p(f"buffer_load_dwordx4 v[240:243], v8, {SRD_X}, s3 offen")
    p(f"buffer_load_dwordx4 v[244:247], v8, {SRD_X}, s3 offen offset:32")

KA=0; VA=64
SB=[16,32]; OB=[64,80]; QB=[96,100]; CB=104; IDX=48; ZR=52; SLA=56; SLB=57; QA=58; TB=120
THRESH=40.0
VMASK='s[80:81]'

def QK(Sn,kn,Qn,slow): return f"v_mfma_f32_32x32x16_bf16 v[{Sn}:{Sn+15}], a[{KA+4*kn}:{KA+4*kn+3}], v[{Qn}:{Qn+3}], {f'v[{CB}:{CB+15}]' if slow else '0'}"
def PV(O,areg,S): return f"v_smfmac_f32_32x32x32_bf16 v[{O}:{O+15}], a[{areg}:{areg+3}], v[{S}:{S+7}], v{IDX}"

def slot_write(p,O):
    p(f"ds_write_b128 v{SLA}, v[{O}:{O+3}]")
    p(f"ds_write_b128 v{SLA}, v[{O+4}:{O+7}] offset:1024")
    p(f"ds_write_b32 v{SLB}, v{O+8}")

def att_pass(p, ps, first=False, slow=False, vm=None):
    for t in range(16):
        S=SB[t%2]; Sn=SB[(t+1)%2]
        O=OB[ps]; Op=OB[ps] if t>0 else OB[1-ps]
        Qn=QB[ps] if t<15 else QB[1-ps]
        kn=(t+1)%16; tp=(t-1)%16
        e=lambda i: f"v_exp_f32 v{S+i}, v{S+i}"
        pv2=PV(Op,VA+8*tp+4,Sn+8)
        I=[e(0),e(1),pv2,e(2),e(3),e(4),QK(Sn,kn,Qn,slow),e(5),e(6),e(7),e(8),e(9),PV(O,VA+8*t,S),e(10),e(11),e(12),e(13),e(14),e(15)]
        ins={}
        def add(pos,txt): ins.setdefault(pos,[]).append(txt)
        if first and t==0: I[2]=None
        if not first:
            if t==2:
                add(4,f"ds_write_b128 v{SLA}, v[{Op if 0 else OB[1-ps]}:{OB[1-ps]+3}]")
                add(8,f"ds_write_b128 v{SLA}, v[{OB[1-ps]+4}:{OB[1-ps]+7}] offset:1024")
                add(10,f"ds_write_b32 v{SLB}, v{OB[1-ps]+8}")
            if t==3:
                add(4,f"v_add_u32 v{SLA}, 9216, v{SLA}"); add(8,f"v_add_u32 v{SLB}, 9216, v{SLB}")
            if t==8:
                Z=OB[1-ps]
                add(16,f"v_mfma_f32_32x32x16_bf16 v[{Z}:{Z+15}], v[{ZR}:{ZR+3}], v[{ZR}:{ZR+3}], 0")
        if t==4:
            Qd=QB[1-ps]
            add(4,f"ds_read_b128 v[{Qd}:{Qd+3}], v{QA}")
            if slow: add(5,f"ds_read_b32 v133, v132")
        if t==5:
            add(4,f"v_add_u32 v{QA}, 1024, v{QA}")
            if slow: add(8,"v_add_u32 v132, 256, v132")
        if 'warm' in OPT and not first and not slow and ps==0:
            if t==6: add(4,f"buffer_load_dword v49, v50, {SRD_A}, s78 offen ; nowaitcheck")
            if t==10: add(4,f"buffer_load_dword v49, v50, {SRD_B}, s78 offen ; nowaitcheck"); add(8,"s_add_u32 s78, s78, 4096")
        if t==14:
            add(0,"s_waitcnt lgkmcnt(0)")
        if t==15 and slow:
            for j in range(16): add(1,f"v_mov_b32 v{CB+j}, v133")
        if vm is not None:
            vm.wait(('V',t,0))
            if t+4<16: add(4,('K',t+4))
            if t+3<16: add(9,('V',t+3))
        for i,x in enumerate(I):
            for y in ins.get(i,[]):
                if isinstance(y,tuple): (ldK if y[0]=='K' else ldV)(p,vm,y[1])
                else: p(y)
            if x: p(x)

def ldK(p,vm,j):
    p(f"s_add_u32 s3, s30, {j*1024}")
    vm.issue(('K',j),f"buffer_load_dwordx4 a[{KA+4*j}:{KA+4*j+3}], v9, {SRD_WS}, s3 offen sc1")
def ldV(p,vm,j):
    p(f"s_add_u32 s3, s31, {j*1024}")
    p(f"s_mov_b64 exec, {VMASK}")
    vm.issue(('V',j,0),f"buffer_load_dwordx4 a[{VA+8*j}:{VA+8*j+3}], v4, {SRD_WS}, s3 offen sc1")
    vm.issue(('V',j,1),f"buffer_load_dwordx4 a[{VA+8*j+4}:{VA+8*j+7}], v4, {SRD_WS}, s3 offen offset:512 sc1")
    p("s_mov_b64 exec, -1")

def o_store(p,O,jj):
    p(f"v_rcp_f32 v{TB}, v{O+8}")
    p(f"v_mov_b32 v{TB+1}, v{O+8}")
    p(f"v_mov_b32 v{TB+1}, v{TB}")
    for j in range(4): p(f"v_pk_mul_f32 v[{O+2*j}:{O+2*j+1}], v[{O+2*j}:{O+2*j+1}], v[{TB}:{TB+1}]")
    for j in range(4): p(f"v_cvt_pk_bf16_f32 v{TB+4+j}, v{O+2*j}, v{O+2*j+1}")
    p(f"buffer_store_dwordx4 v[{TB+4}:{TB+7}], v9, {SRD_WS}, s63 offen offset:{jj*1024} sc1")

def attention(p):
    srd(p,16,P_WG,512*2752)
    srd(p,20,P_WU,512*2752)
    p("s_lshr_b32 s78, s2, 3"); p("s_lshl_b32 s78, s78, 2"); p("s_add_u32 s78, s78, s6"); p("s_mul_i32 s78, s78, 11008")
    p("v_lshlrev_b32 v50, 6, v0")
    p("v_mov_b32 v3, 0x3f803f80")
    p("v_and_b32 v4, 27, v0"); p("v_cmp_eq_u32 vcc, 16, v4"); p("v_cndmask_b32 v3, 0, v3, vcc")
    for i in range(128): p(f"v_accvgpr_write_b32 a{VA+i}, v3")
    p(f"v_mov_b32 v{IDX}, 0xdddddddd")
    for i in range(4): p(f"v_mov_b32 v{ZR+i}, 0")
    for i in range(16): p(f"v_mov_b32 v{OB[0]+i}, 0"); p(f"v_mov_b32 v{OB[1]+i}, 0")
    p("s_mov_b32 s80, 0xffff"); p("s_mov_b32 s81, 0xffff")
    p("v_lshrrev_b32 v4, 5, v0")
    p("v_and_b32 v5, 15, v0")
    p("v_lshl_add_u32 v4, v4, 4, v5")
    p("v_lshlrev_b32 v4, 4, v4")
    p("s_mul_i32 s3, s6, 2304"); p(f"s_add_u32 s3, s3, {OP}")
    p(f"v_add_u32 v{SLA}, s3, v9")
    p("s_add_u32 s3, s3, 2048")
    p(f"v_lshl_add_u32 v{SLB}, v0, 2, s3")
    p(f"v_add_u32 v{QA}, {QL+1024}, v9")
    p(f"v_add_u32 v59, {QL}, v9")
    p(f"v_mov_b32 v60, {QM}")
    p(f"ds_read_b128 v[{QB[0]}:{QB[0]+3}], v59")
    p(f"ds_read_b128 v[60:63], v60")
    p("s_lshl_b32 s30, s6, 14")
    p(f"s_add_u32 s31, s30, {L.VF}")
    p(f"s_add_u32 s30, s30, {L.KF}")
    p("v_lshlrev_b32 v2, 2, v0")
    p("s_waitcnt lgkmcnt(0)")
    p("v_max_u32 v60, v60, v61"); p("v_max3_u32 v60, v60, v62, v63")
    stamp(p,'B pre-S1',vt=200)
    p("s_cmp_lg_u32 s6, 0"); p("s_cbranch_scc1 B_s1skip")
    p("v_and_b32 v61, 15, v0"); p("v_lshlrev_b32 v62, 2, v61"); p("s_mov_b32 s3, 0x02020202")
    poll(p,'s1',SRD_D,'64','v62','s3',61)
    p.label("B_s1skip")
    p("s_barrier")
    stamp(p,'B S1 done',vt=200)
    vm=VM(p)
    p(f"s_mov_b32 s3, {L.KM}")
    vm.issue('KM',f"buffer_load_dword v61, v2, {SRD_WS}, s3 offen sc1")
    ldK(p,vm,0); ldK(p,vm,1); ldV(p,vm,0); ldK(p,vm,2); ldV(p,vm,1); ldK(p,vm,3); ldV(p,vm,2)
    vm.wait('KM')
    for d in ("row_ror:8","row_ror:4","row_ror:2","row_ror:1"):
        p(f"v_max_u32_dpp v61, v61, v61 {d} row_mask:0xf bank_mask:0xf")
    p("v_readlane_b32 s3, v61, 0"); p("v_readlane_b32 s7, v61, 16"); p("s_max_u32 s3, s3, s7")
    p("v_readlane_b32 s7, v61, 32"); p("s_max_u32 s3, s3, s7")
    p("v_readlane_b32 s7, v61, 48"); p("s_max_u32 s65, s3, s7")
    p("v_mul_f32 v60, s65, v60")
    p(f"v_cmp_nge_f32 vcc, {hx(f2u(THRESH*THRESH/(1.02*1.02)))}, v60")
    p("s_cmp_lg_u64 vcc, 0")
    p("s_cbranch_scc1 L_slow")
    vm.wait(('K',0))
    p(QK(SB[0],0,QB[0],False))
    stamp(p,'B first',vt=200)
    import copy
    vmf=copy.copy(vm); vmf.pos=dict(vm.pos)
    att_pass(p,0,first=True,vm=vmf)
    p("s_waitcnt vmcnt(0)")
    stamp(p,'B pass0',vt=200)
    p("s_mov_b32 s64, 4")
    p("s_branch L_attY")
    p.label("L_attX")
    att_pass(p,0)
    p.label("L_attY")
    att_pass(p,1)
    p("s_sub_u32 s64, s64, 1")
    p("s_cmp_lg_u32 s64, 0")
    p("s_cbranch_scc1 L_attX")
    p.label("L_att_tail")
    p(PV(OB[1],VA+8*15+4,SB[1]+8))
    slot_write(p,OB[1])
    SLOW.append(vm)
    p.label("L_att_done")
    stamp(p,'B loop done',vt=200)
    p("s_waitcnt lgkmcnt(0)")
    p("s_barrier")
    p("s_mul_i32 s3, s6, 18432"); p(f"s_add_u32 s3, s3, {OP}")
    p("v_add_u32 v60, s3, v9")
    p("s_add_u32 s3, s3, 2048")
    p("v_lshl_add_u32 v61, v0, 2, s3")
    R=[[128+36*jj+9*ww for ww in range(4)] for jj in range(2)]
    for jj in range(2):
        for ww in range(4):
            b=128+(jj*4+ww)*8; off=jj*9216+ww*2304
            p(f"ds_read_b128 v[{b}:{b+3}], v60 offset:{off}")
            p(f"ds_read_b128 v[{b+4}:{b+7}], v60 offset:{off+1024}")
            p(f"ds_read_b32 v{192+jj*4+ww}, v61 offset:{off}")
    p("s_lshr_b32 s3, s6, 1"); p("s_lshl_b32 s7, s4, 1"); p("s_add_u32 s3, s3, s7"); p("s_lshl_b32 s3, s3, 5")
    p("s_lshl_b32 s7, s5, 2"); p("s_add_u32 s3, s3, s7")
    p("s_and_b32 s7, s6, 1"); p("s_lshl_b32 s7, s7, 1"); p("s_add_u32 s3, s3, s7")
    p("s_lshl_b32 s3, s3, 10"); p(f"s_add_u32 s63, s3, {L.OF}")
    for jj in range(2):
        b=128+jj*32; sb=192+jj*4; O=64+16*jj
        p(f"s_waitcnt lgkmcnt({12*(1-jj)})")
        for j in range(4):
            p(f"v_pk_add_f32 v[{b+2*j}:{b+2*j+1}], v[{b+2*j}:{b+2*j+1}], v[{b+8+2*j}:{b+8+2*j+1}]")
            p(f"v_pk_add_f32 v[{b+16+2*j}:{b+16+2*j+1}], v[{b+16+2*j}:{b+16+2*j+1}], v[{b+24+2*j}:{b+24+2*j+1}]")
        p(f"v_add_f32 v{sb}, v{sb}, v{sb+1}"); p(f"v_add_f32 v{sb+2}, v{sb+2}, v{sb+3}")
        for j in range(4):
            p(f"v_pk_add_f32 v[{O+2*j}:{O+2*j+1}], v[{b+2*j}:{b+2*j+1}], v[{b+16+2*j}:{b+16+2*j+1}]")
        p(f"v_add_f32 v{O+8}, v{sb}, v{sb+2}")
        o_store(p,O,jj)

SLOW=[]
def attention_slow(p):
    vm=SLOW[0]
    p.label("L_slow")
    for j in range(4,16): ldK(p,vm,j)
    for j in range(3,16): ldV(p,vm,j)
    p("s_waitcnt vmcnt(0)")
    p("s_mov_b32 s64, 0")
    p.label("L_mx")
    p("s_lshl_b32 s3, s64, 10")
    p("v_add_u32 v132, s3, v59")
    p(f"ds_read_b128 v[{QB[1]}:{QB[1]+3}], v132")
    p("v_mov_b32 v133, 0xff800000")
    p("s_waitcnt lgkmcnt(0)")
    p(QK(SB[0],0,QB[1],False))
    for t in range(16):
        S=SB[t%2]; Sn=SB[(t+1)%2]
        if t<15: p(QK(Sn,t+1,QB[1],False))
        for j in range(8): p(f"v_max3_f32 v133, v{S+2*j}, v{S+2*j+1}, v133")
    p("v_mov_b32 v134, v133")
    p("v_permlane32_swap_b32 v133, v134")
    p("v_max_f32 v133, v133, v134")
    p("s_lshl_b32 s3, s64, 9"); p("s_lshl_b32 s7, s6, 7"); p("s_add_u32 s3, s3, s7")
    p("v_and_b32 v134, 31, v0")
    p("v_lshl_add_u32 v134, v134, 2, s3")
    p(f"v_add_u32 v134, {MX}, v134")
    p(f"ds_write_b32 v134, v133")
    p("s_add_u32 s64, s64, 1"); p("s_cmp_lt_u32 s64, 8"); p("s_cbranch_scc1 L_mx")
    p("s_waitcnt lgkmcnt(0)")
    p("s_barrier")
    p("v_and_b32 v134, 31, v0"); p("v_lshlrev_b32 v134, 2, v134")
    p("s_lshl_b32 s3, s6, 10"); p(f"s_add_u32 s3, s3, {MX}"); p("v_add_u32 v134, s3, v134")
    for qq in range(2):
        for ww in range(4): p(f"ds_read_b32 v{16+4*qq+ww}, v134 offset:{qq*512+ww*128}")
    p("s_waitcnt lgkmcnt(0)")
    p("s_lshl_b32 s3, s6, 9"); p(f"s_add_u32 s3, s3, {MF}")
    p("v_lshl_add_u32 v134, v0, 2, s3")
    for qq in range(2):
        b=16+4*qq
        p(f"v_max3_f32 v{b}, v{b}, v{b+1}, v{b+2}"); p(f"v_max_f32 v{b}, v{b}, v{b+3}"); p(f"v_sub_f32 v{b}, 0, v{b}")
        p(f"ds_write_b32 v134, v{b} offset:{qq*256}")
    p("s_waitcnt lgkmcnt(0)")
    p("s_barrier")
    p(f"v_lshlrev_b32 v132, 2, v0"); p(f"v_add_u32 v132, {MF}, v132")
    p(f"ds_read_b32 v133, v132")
    p("v_add_u32 v132, 256, v132")
    p("s_waitcnt lgkmcnt(0)")
    for j in range(16): p(f"v_mov_b32 v{CB+j}, v133")
    p(QK(SB[0],0,QB[0],True))
    att_pass_slow(p)
    p("s_branch L_att_done")

def att_pass_slow(p):
    att_pass(p,0,first=True,slow=True,vm=None)
    p("s_mov_b32 s64, 4")
    p("s_branch L_sttY")
    p.label("L_sttX")
    att_pass(p,0,slow=True)
    p.label("L_sttY")
    att_pass(p,1,slow=True)
    p("s_sub_u32 s64, s64, 1")
    p("s_cmp_lg_u32 s64, 0")
    p("s_cbranch_scc1 L_sttX")
    p(PV(OB[1],VA+8*15+4,SB[1]+8))
    slot_write(p,OB[1])

def w1_setup(p):
    p("s_and_b32 s3, s4, 1"); p("s_lshl_b32 s3, s3, 3"); p("s_add_u32 s3, s3, s5")
    p("s_min_u32 s7, s3, 11"); p("s_lshl_b32 s7, s7, 1"); p("s_lshl_b32 s66, s3, 2"); p("s_add_u32 s66, s66, s7")
    p("s_cmp_lt_u32 s3, 11"); p("s_cselect_b32 s67, 6, 4")
    for i in range(3):
        p(f"v_add_u32 v11, {64*i}, v0")
        p("v_mul_u32_u24 v12, 5462, v11"); p("v_lshrrev_b32 v12, 16, v12")
        p("v_mul_u32_u24 v13, 12, v12"); p("v_sub_u32 v13, v11, v13")
        p("v_mul_u32_u24 v12, 2752, v12")
        p(f"v_lshl_add_u32 v{2+i}, v13, 4, v12")
        p("v_add_u32 v13, 10, v13"); p("v_subrev_u32 v14, 12, v13"); p("v_min_u32 v13, v13, v14")
        p(f"v_lshl_add_u32 v{5+i}, v13, 4, v12")
    p(f"s_mul_i32 s68, s6, {16*2752}"); p("s_lshl_b32 s3, s66, 5"); p("s_add_u32 s68, s68, s3")
    p("s_mul_i32 s69, s6, 3072")
assert all((c*5462)>>16==c//12 for c in range(192))

def w1_dma(q):
    slot=(q+3)%6
    out=[]
    for mat in range(2):
        for i in range(3):
            out.append([f"s_add_u32 m0, s69, {slot*SLOT+mat*12288+i*1024}",
                        f"s_add_u32 s3, s68, {q*64*2752}",
                        f"buffer_load_dwordx4 v{2+3*mat+i}, {SRD_A if mat==0 else SRD_B}, s3 offen lds"])
    return out

def wo_phase(p):
    w1_setup(p)
    p("s_waitcnt lgkmcnt(0)")
    p("s_barrier")
    n=0
    for q in range(3):
        for g in w1_dma(q):
            for x in g: p(x)
            n+=1
            if n==12:
                p("s_waitcnt vmcnt(12)")
                flag_off(p,F2); set_flag(p,'s3',12)
    stamp(p,'C flag set',vt=200)
    lane_params(p)
    p("s_and_b32 s3, s6, 1"); p("s_lshl_b32 s3, s3, 2")
    tr_base128(p,'v10',"s3",WO_L)
    p("s_and_b32 s3, s6, 1"); p("s_lshl_b32 s3, s3, 15")
    p("v_add_u32 v10, s3, v10")
    p("v_xor_b32 v11, 64, v10")
    p("v_and_b32 v12, 31, v0"); p("v_lshlrev_b32 v12, 2, v12")
    p("s_lshl_b32 s30, s4, 7"); p(f"s_add_u32 s30, s30, {F2}")
    poll(p,'s2',SRD_WS,'s30','v12',1,13)
    stamp(p,'C S2 done',vt=200)
    p("s_lshl_b32 s31, s61, 5"); p("s_and_b32 s3, s6, 1"); p("s_lshl_b32 s3, s3, 4"); p("s_add_u32 s31, s31, s3")
    p("s_lshl_b32 s31, s31, 10"); p(f"s_add_u32 s31, s31, {L.OF}")
    vm=VM(p)
    for i in range(16):
        p(f"s_add_u32 s3, s31, {i*1024}")
        vm.issue(i,f"buffer_load_dwordx4 a[{4*i}:{4*i+3}], v9, {SRD_WS}, s3 offen sc1")
    AB=[16+8*b for b in range(4)]
    ACC=[64,80]
    def rd(i):
        b=AB[i%4]
        for cc,va in enumerate(('v10','v11')):
            p(f"ds_read_b64_tr_b16 v[{b+4*cc}:{b+4*cc+1}], {va} offset:{i*2048}")
            p(f"ds_read_b64_tr_b16 v[{b+4*cc+2}:{b+4*cc+3}], {va} offset:{i*2048+512}")
    for i in range(3): rd(i)
    for i in range(16):
        if i+3<16: rd(i+3)
        rem=min(3,15-i)
        p(f"s_waitcnt vmcnt({15-i}) lgkmcnt({rem*4})")
        b=AB[i%4]
        for cc in range(2):
            a=ACC[cc]
            p(f"v_mfma_f32_32x32x16_bf16 v[{a}:{a+15}], v[{b+4*cc}:{b+4*cc+3}], a[{4*i}:{4*i+3}], {'0' if i==0 else f'v[{a}:{a+15}]'}")
    stamp(p,'C mfma',vt=200)
    pair_reduce(p,ACC,RED)
    for j in range(8):
        p(f"v_lshlrev_b32 v{96+2*j}, 16, v{240+j}")
        p(f"v_and_b32 v{97+2*j}, 0xffff0000, v{240+j}")
    for j in range(8): p(f"v_pk_add_f32 v[{64+2*j}:{65+2*j}], v[{64+2*j}:{65+2*j}], v[{96+2*j}:{97+2*j}]")
    for j in range(8): p(f"v_cvt_pk_bf16_f32 v{32+j}, v{64+2*j}, v{65+2*j}")
    p("s_lshl_b32 s3, s61, 5"); p("s_lshl_b32 s7, s62, 1"); p("s_add_u32 s3, s3, s7"); p("s_lshl_b32 s3, s3, 10"); p(f"s_add_u32 s3, s3, {L.HF}")
    p(f"buffer_store_dwordx4 v[32:35], v9, {SRD_WS}, s3 offen sc1")
    p(f"buffer_store_dwordx4 v[36:39], v9, {SRD_WS}, s3 offen offset:1024 sc1")
    p("v_pk_mul_f32 v[42:43], v[64:65], v[64:65]"); p("v_pk_add_f32 v[40:41], v[64:65], v[66:67]")
    p("v_pk_fma_f32 v[42:43], v[66:67], v[66:67], v[42:43]")
    for j in range(2,8):
        p(f"v_pk_add_f32 v[40:41], v[40:41], v[{64+2*j}:{65+2*j}]"); p(f"v_pk_fma_f32 v[42:43], v[{64+2*j}:{65+2*j}], v[{64+2*j}:{65+2*j}], v[42:43]")
    p("v_add_f32 v40, v40, v41"); p("v_add_f32 v41, v42, v43")
    p("v_mov_b32 v42, v40"); p("v_mov_b32 v43, v41")
    p("v_permlane32_swap_b32 v40, v42"); p("v_permlane32_swap_b32 v41, v43")
    p("v_add_f32 v40, v40, v42"); p("v_add_f32 v41, v41, v43")
    p("s_lshl_b32 s3, s61, 12"); p("s_lshl_b32 s7, s62, 3"); p("s_add_u32 s3, s3, s7"); p(f"s_add_u32 s3, s3, {L.HS}")
    p("v_lshlrev_b32 v12, 7, v0")
    p("s_mov_b32 exec_hi, 0")
    p(f"buffer_store_dwordx2 v[40:41], v12, {SRD_WS}, s3 offen sc1")
    p("s_mov_b64 exec, -1")
    for j in range(8): p(f"v_accvgpr_write_b32 a{248+j}, v{32+j}")
    n=0
    for q in range(3,6):
        for g in w1_dma(q):
            for x in g: p(x)
            n+=1
            if n==12:
                p("s_waitcnt vmcnt(12)")
                flag_off(p,F3); set_flag(p,'s3',12)
    stamp(p,'C done',vt=200)

def flag_off(p,F):
    p("s_lshl_b32 s3, s4, 7"); p("s_lshl_b32 s7, s5, 4"); p("s_add_u32 s3, s3, s7"); p("s_lshl_b32 s7, s6, 2"); p("s_add_u32 s3, s3, s7")
    p(f"s_add_u32 s3, s3, {F}")

def pair_reduce(p,ACC,base):
    p(f"s_lshl_b32 s3, s6, 12"); p(f"s_add_u32 s3, s3, {base}")
    p("v_add_u32 v12, s3, v9")
    for q in range(4): p(f"ds_write_b128 v12, v[{ACC[1]+4*q}:{ACC[1]+4*q+3}] offset:{q*1024}")
    p("v_xor_b32 v12, 4096, v12")
    p("s_waitcnt lgkmcnt(0)")
    p("s_barrier")
    for q in range(4): p(f"ds_read_b128 v[{ACC[1]+4*q}:{ACC[1]+4*q+3}], v12 offset:{q*1024}")
    for q in range(4):
        p(f"s_waitcnt lgkmcnt({3-q})")
        for j in range(2):
            a=ACC[0]+4*q+2*j; b=ACC[1]+4*q+2*j
            p(f"v_pk_add_f32 v[{a}:{a+1}], v[{a}:{a+1}], v[{b}:{b+1}]")

def ffn1_phase(p):
    p("s_lshr_b32 s70, s4, 1"); p("s_lshl_b32 s70, s70, 2"); p("s_add_u32 s70, s70, s6")
    lane_params(p)
    p("v_mul_u32_u24 v10, 192, v14"); p("v_add_u32 v10, v10, v96")
    p(f"v_mul_u32_u24 v97, {12288+32}, v15"); p("v_add_u32 v28, v10, v97")
    p(f"v_mul_u32_u24 v97, {12288+32-192}, v15"); p("v_add_u32 v29, v10, v97")
    p("v_and_b32 v12, 31, v0"); p("v_lshlrev_b32 v12, 7, v12"); p("v_lshrrev_b32 v13, 5, v0"); p("v_lshl_add_u32 v30, v13, 6, v12")
    p("v_lshlrev_b32 v12, 2, v0")
    p("s_lshr_b32 s30, s4, 1"); p("s_lshl_b32 s30, s30, 8"); p(f"s_add_u32 s30, s30, {F3}")
    poll(p,'s3',SRD_WS,'s30','v12',1,13)
    stamp(p,'D S3 done',vt=12)
    srd(p,24,P_WD,1376*1024)
    p("s_lshr_b32 s79, s2, 3"); p("s_lshl_b32 s79, s79, 2"); p("s_add_u32 s79, s79, s6"); p("s_mul_i32 s79, s79, 11008")
    p("v_lshlrev_b32 v14, 6, v0")
    vm=VM(p)
    p("s_lshl_b32 s30, s70, 15"); p(f"s_add_u32 s30, s30, {L.HF}")
    def ldB(s):
        p(f"s_add_u32 s3, s30, {s*1024}")
        vm.issue(('B',s),f"buffer_load_dwordx4 v[{128+4*s}:{131+4*s}], v9, {SRD_WS}, s3 offen sc1")
    p("s_lshl_b32 s31, s70, 12"); p(f"s_add_u32 s31, s31, {L.HS}")
    ldB(0)
    for i in range(4): vm.issue(('S',i),f"buffer_load_dwordx4 v[{32+4*i}:{35+4*i}], v30, {SRD_WS}, s31 offen offset:{i*16} sc1")
    LA=8
    for s in range(1,LA): ldB(s)
    p("s_barrier")
    AB=[0,24]
    def rdA(s):
        q,ss=divmod(s,4); b=AB[s%2]; out=[]
        for uu in range(6):
            va='v10' if uu<5 else 'v11'
            off=ss*3072+uu*32
            out.append(f"ds_read_b64_tr_b16 a[{b+4*uu}:{b+4*uu+1}], {va} offset:{off}")
            out.append(f"ds_read_b64_tr_b16 a[{b+4*uu+2}:{b+4*uu+3}], {va} offset:{off+768}")
        return out
    def setbase(q):
        slot=(q+3)%6
        return [f"v_add_u32 v10, {slot*SLOT}, v28", f"v_add_u32 v11, {slot*SLOT}, v29"]
    for x in setbase(0): p(x)
    for x in rdA(0): p(x)
    vm.wait(('S',3))
    for i in range(2):
        p(f"v_pk_add_f32 v[{32+4*i}:{33+4*i}], v[{32+4*i}:{33+4*i}], v[{34+4*i}:{35+4*i}]")
        p(f"v_pk_add_f32 v[{40+4*i}:{41+4*i}], v[{40+4*i}:{41+4*i}], v[{42+4*i}:{43+4*i}]")
    p("v_pk_add_f32 v[32:33], v[32:33], v[36:37]"); p("v_pk_add_f32 v[40:41], v[40:41], v[44:45]")
    p("v_pk_add_f32 v[16:17], v[32:33], v[40:41]")
    p("v_mov_b32 v18, v16"); p("v_mov_b32 v19, v17")
    p("v_permlane32_swap_b32 v16, v18"); p("v_permlane32_swap_b32 v17, v19")
    p("v_add_f32 v16, v16, v18"); p("v_add_f32 v17, v17, v19")
    p(f"v_mul_f32 v16, {hx(f2u(1/512))}, v16"); p(f"v_mul_f32 v17, {hx(f2u(1/512))}, v17")
    p("v_fma_f32 v17, -v16, v16, v17"); p("v_max_f32 v17, 0, v17"); p(f"v_add_f32 v17, {hx(f2u(1e-5))}, v17")
    p("v_rsq_f32 v17, v17"); p("v_mul_f32 v16, v16, v17"); p("v_sub_f32 v18, 0, v16"); p("v_mov_b32 v19, v18"); p("v_mov_b32 v16, v17")
    def norm(s):
        out=[]
        for i in range(4):
            r=128+4*s+i; t0=20+2*i; t1=21+2*i
            out.append(f"v_lshlrev_b32 v{t0}, 16, v{r}"); out.append(f"v_and_b32 v{t1}, 0xffff0000, v{r}")
        for i in range(4):
            t0=20+2*i
            out.append(f"v_pk_fma_f32 v[{t0}:{t0+1}], v[{t0}:{t0+1}], v[16:17], v[18:19]")
        for i in range(4):
            r=128+4*s+i; t0=20+2*i; t1=21+2*i
            out.append(f"v_cvt_pk_bf16_f32 v{r}, v{t0}, v{t1}")
        return out
    vm.wait(('B',0))
    for x in norm(0): p(x)
    stamp(p,'D start',vt=12)
    ACC=[32+16*u for u in range(6)]
    dmas=w1_dma(6)+w1_dma(7)
    for s in range(32):
        nxt=s+1
        pre=[]; rd=[]; fill=[]; mem=[]
        if s==8:
            p("s_barrier")
        if s+LA<32: mem.append(('B',s+LA))
        if 8<=s<20: mem.append(('D',s-8))
        if 'warm' in OPT and 24<=s<27: mem.append(('W',s-24))
        if nxt<32:
            qn,ssn=divmod(nxt,4)
            if nxt==24:
                vm.wait(('D',11))
                p("s_barrier")
            if ssn==0: pre=setbase(qn)
            rd=rdA(nxt); fill=norm(nxt)
        p("s_waitcnt lgkmcnt(0)")
        for x in pre: p(x)
        if nxt<32: vm.wait(('B',nxt))
        b=AB[s%2]
        mf=[f"v_mfma_f32_32x32x16_bf16 v[{ACC[uu]}:{ACC[uu]+15}], a[{b+4*uu}:{b+4*uu+3}], v[{128+4*s}:{131+4*s}], {'0' if s==0 else f'v[{ACC[uu]}:{ACC[uu]+15}]'}" for uu in range(6)]
        fi=0
        for uu in range(6):
            p(mf[uu])
            for x in rd[2*uu:2*uu+2]: p(x)
            k=3 if uu<4 else 2
            for x in fill[fi:fi+k]: p(x)
            fi+=k
            if uu==1 and mem and mem[0][0]=='B': ldB(mem[0][1])
            if uu==3:
                for m in mem:
                    if m[0]=='D':
                        g=dmas[m[1]]; p(g[0]); p(g[1]); vm.issue(('D',m[1]),g[2])
                    if m[0]=='W':
                        p(f"s_add_u32 s3, s79, {m[1]*4096}")
                        vm.issue(('W',m[1]),f"buffer_load_dword v15, v14, {SRD_O}, s3 offen ; nowaitcheck")
        for x in fill[fi:]: p(x)
    stamp(p,'D mfma done',vt=12)
    c1=-2*1.4426950408889634*0.7978845608028654; c2=c1*0.044715
    p(f"s_mov_b32 s72, {hx(f2u(c2))}"); p("s_mov_b32 s73, s72")
    p(f"v_mov_b32 v28, {hx(f2u(c1))}"); p("v_mov_b32 v29, v28")
    p("v_mov_b32 v30, 1.0"); p("v_mov_b32 v31, 1.0")
    p("s_mul_i32 s30, s70, 86"); p("s_add_u32 s30, s30, s66"); p("s_lshl_b32 s30, s30, 10"); p(f"s_add_u32 s30, s30, {L.AF}")
    for uu in range(6):
        a=ACC[uu]; T=16
        if uu==4:
            p("s_cmp_eq_u32 s67, 4"); p("s_cbranch_scc1 F1_done")
        pr=lambda x,j: f"v[{x+2*j}:{x+2*j+1}]"
        for j in range(4): p(f"v_pk_mul_f32 {pr(T,j)}, {pr(a,j)}, {pr(a,j)}")
        for j in range(4): p(f"v_pk_fma_f32 {pr(T,j)}, {pr(T,j)}, s[72:73], v[28:29]")
        for j in range(4): p(f"v_pk_mul_f32 {pr(T,j)}, {pr(T,j)}, {pr(a,j)}")
        for j in range(8): p(f"v_exp_f32 v{T+j}, v{T+j}")
        for j in range(4): p(f"v_pk_mul_f32 {pr(a,j)}, {pr(a,j)}, {pr(a+8,j)}")
        for j in range(4): p(f"v_pk_add_f32 {pr(T,j)}, {pr(T,j)}, v[30:31]")
        for j in range(8): p(f"v_rcp_f32 v{T+j}, v{T+j}")
        for j in range(4): p(f"v_pk_mul_f32 {pr(T,j)}, {pr(T,j)}, {pr(a,j)}")
        for j in range(4): p(f"v_cvt_pk_bf16_f32 v{24+j}, v{T+2*j}, v{T+2*j+1}")
        p(f"buffer_store_dwordx4 v[24:27], v9, {SRD_WS}, s30 offen offset:{(uu%4)*1024} sc1")
        if uu==3: p("s_add_u32 s30, s30, 4096")
    p.label("F1_done")
    stamp(p,'D epi done',vt=12)

def ffn2_phase(p):
    srd(p,16,P_WD,1376*1024)
    srd(p,24,P_OUT,2048*1024)
    p("v_lshrrev_b32 v1, 3, v0"); p("v_and_b32 v10, 7, v0")
    w128_voff(p,'v4')
    p("s_barrier")
    p("s_lshr_b32 s3, s6, 1"); p("s_and_b32 s7, s6, 1")
    p(f"s_mul_i32 s30, s3, 81920"); p(f"s_mul_i32 s31, s7, 40960"); p("s_add_u32 s74, s30, s31")
    p(f"s_mul_i32 s75, s3, {43*16*1024}"); p(f"s_mul_i32 s31, s7, {320*1024}"); p("s_add_u32 s31, s31, s75")
    for i in range(40):
        p(f"s_add_u32 m0, s74, {i*1024}")
        if i>0: p("s_add_u32 s31, s31, 8192")
        p(f"buffer_load_dwordx4 v4, {SRD_A}, s31 offen lds")
        if i==19:
            p("s_waitcnt vmcnt(20)")
            flag_off(p,F4); set_flag(p,'s3',12)
    stamp(p,'E flag set',vt=12)
    lane_params(p)
    p("s_and_b32 s3, s6, 1"); p("s_lshl_b32 s3, s3, 2")
    tr_base128(p,'v10',"s3",0)
    p("s_and_b32 s3, s6, 1"); p("s_mul_i32 s3, s3, 81920")
    p("v_add_u32 v10, s3, v10")
    p("v_xor_b32 v11, 64, v10")
    p("v_lshlrev_b32 v12, 2, v0")
    p("s_lshr_b32 s30, s4, 1"); p("s_lshl_b32 s30, s30, 8"); p(f"s_add_u32 s30, s30, {F4}")
    poll(p,'s4',SRD_WS,'s30','v12',1,13)
    stamp(p,'E S4 done',vt=12)
    vm=VM(p)
    p("s_mul_i32 s31, s61, 86"); p("s_and_b32 s3, s6, 1"); p("s_mul_i32 s3, s3, 43"); p("s_add_u32 s31, s31, s3")
    p("s_lshl_b32 s31, s31, 10"); p(f"s_add_u32 s31, s31, {L.AF}")
    def ldB(i):
        p(f"s_add_u32 s3, s31, {i*1024}")
        vm.issue(('B',i),f"buffer_load_dwordx4 a[{4*i}:{4*i+3}], v9, {SRD_WS}, s3 offen sc1")
    LA=10; NS=43
    for i in range(LA): ldB(i)
    p("s_barrier")
    AB=[16+8*b for b in range(4)]
    ACC=[64,80]
    def rd(i):
        b=AB[i%4]
        j=i if i<40 else i-40
        off=j*2048
        va=('v10','v11')
        if 24<=i<40: va=('v14','v15'); off-=49152
        for cc in range(2):
            p(f"ds_read_b64_tr_b16 v[{b+4*cc}:{b+4*cc+1}], {va[cc]} offset:{off}")
            p(f"ds_read_b64_tr_b16 v[{b+4*cc+2}:{b+4*cc+3}], {va[cc]} offset:{off+512}")
    p("v_add_u32 v14, 49152, v10"); p("v_add_u32 v15, 49152, v11")
    p("s_and_b32 s7, s6, 1"); p("s_mul_i32 s3, s7, 3")
    p("s_lshl_b32 s76, s3, 13"); p("s_add_u32 s76, s76, s75"); p(f"s_add_u32 s76, s76, {40*16*1024}")
    p("s_lshl_b32 s77, s3, 10"); p("s_lshr_b32 s3, s6, 1"); p("s_mul_i32 s3, s3, 81920"); p("s_add_u32 s77, s77, s3")
    for i in range(3): rd(i)
    for i in range(NS):
        if i==4:
            p("s_barrier")
            for j in range(3):
                p(f"s_add_u32 m0, s77, {j*1024}"); p(f"s_add_u32 s3, s76, {j*8192}")
                vm.issue(('D',j),f"buffer_load_dwordx4 v4, {SRD_A}, s3 offen lds")
        if i==36:
            vm.wait(('D',2))
            p("s_barrier")
        if i+3<NS: rd(i+3)
        if i+LA<NS: ldB(i+LA)
        rem=min(3,NS-1-i)
        vm.wait(('B',i),extra=f" lgkmcnt({rem*4})")
        b=AB[i%4]
        for cc in range(2):
            a=ACC[cc]
            p(f"v_mfma_f32_32x32x16_bf16 v[{a}:{a+15}], v[{b+4*cc}:{b+4*cc+3}], a[{4*i}:{4*i+3}], {'0' if i==0 else f'v[{a}:{a+15}]'}")
    stamp(p,'E mfma',vt=12)
    pair_reduce(p,ACC,8192)
    for j in range(8): p(f"v_accvgpr_read_b32 v{32+j}, a{248+j}")
    for j in range(8):
        p(f"v_lshlrev_b32 v{96+2*j}, 16, v{32+j}")
        p(f"v_and_b32 v{97+2*j}, 0xffff0000, v{32+j}")
    for j in range(8): p(f"v_pk_add_f32 v[{64+2*j}:{65+2*j}], v[{64+2*j}:{65+2*j}], v[{96+2*j}:{97+2*j}]")
    for j in range(8): p(f"v_cvt_pk_bf16_f32 v{32+j}, v{64+2*j}, v{65+2*j}")
    p("s_lshl_b32 s3, s62, 6")
    p(f"buffer_store_dwordx4 v[32:35], v8, {SRD_O}, s3 offen")
    p(f"buffer_store_dwordx4 v[36:39], v8, {SRD_O}, s3 offen offset:32")

def build(fname):
    p=Prog()
    end="END_K"
    prologue(p,end)
    stamp(p,'start')
    phase_a(p)
    attention(p)
    wo_phase(p)
    ffn1_phase(p)
    ffn2_phase(p)
    stamp(p,'end',vt=12)
    p.label(end)
    p("s_endpgm")
    attention_slow(p)
    ins=p.finalize(name='k')
    print(f"{len(ins)} lines, {p.nops} hazard nops",file=sys.stderr)
    ref=open('sequential_preLN__grouped_kv_mqa__geglu_ffn__prompt.s.ref').read()
    hdr=ref.split('; Override')[0]
    out=hdr+f"; @launch grid=(256,1,1) block=(256,1,1) lds={LDS_TOTAL}\n"
    out+='.amdgcn_target "amdgcn-amd-amdhsa--gfx950"\n.text\n'
    out+=f".globl {KNAME}\n.p2align 8\n.type {KNAME},@function\n{KNAME}:\n"+render(ins)
    out+=f""".section .rodata,"a"
.p2align 6
.amdhsa_kernel {KNAME}
  .amdhsa_next_free_vgpr 512
  .amdhsa_next_free_sgpr 96
  .amdhsa_accum_offset 256
  .amdhsa_group_segment_fixed_size 0
  .amdhsa_kernarg_size 96
  .amdhsa_user_sgpr_count 2
  .amdhsa_user_sgpr_kernarg_segment_ptr 1
  .amdhsa_system_sgpr_workgroup_id_x 1
.end_amdhsa_kernel
"""
    open(fname,'w').write(out)

if __name__=='__main__':
    out=sys.argv[1]
    if len(sys.argv)>2: PROFILE=True
    build(out)
    open(out+'.stamps','w').write('\n'.join(STAMPS))
    if DSTAMPS: print(DSTAMPS)
```

```python
import sys, os, struct
from asm import Prog, render
import layout as L

OPT=set(x for x in os.environ.get('OPT','').split(',') if x)
KNAME='sequential_preLN__grouped_kv_mqa__geglu_ffn__prompt_kernel'
QSCALE=1.4426950408889634/4.0
def f2u(x): return struct.unpack('<I',struct.pack('<f',x))[0]
def hx(x): return '0x%08x'%(x & 0xffffffff)

SRD_WS='s[8:11]'; SRD_X='s[12:15]'; SRD_A='s[16:19]'; SRD_B='s[20:23]'; SRD_O='s[24:27]'; SRD_D='s[56:59]'
P_X,P_WQ,P_WK,P_WV,P_WO,P_WG,P_WU,P_WD,P_OUT,P_WS,P_DBG=32,34,36,38,40,44,46,48,50,52,54
SPIN=1<<17

XH0=0; XH1=33792; WQ=67584; WK=XH1; WV=XH1+16384+128
WO_L=0; OP=65536; QL=139264; MX=147456; MF=MX+4096; QM=153600
SLOT=24576; RED=147456
LDS_TOTAL=163840
F2=L.FLG; F3=L.FLG+4096; F4=L.FLG+8192

def srd(p, d, ptr, size):
    p(f"s_mov_b32 s{d}, s{ptr}")
    p(f"s_mov_b32 s{d+1}, s{ptr+1}")
    p(f"s_mov_b32 s{d+2}, {hx(size)}")
    p(f"s_mov_b32 s{d+3}, 0x20000")
def csel(p,d,a,b):
    p(f"s_mov_b32 {d}, {b}"); p(f"s_cmov_b32 {d}, {a}")

PROFILE=False
HL1=' nt' if 'ldnt' in OPT else ('' if 'ldpl' in OPT else (' sc0' if 'ldsc0' in OPT else ' sc1'))
HS1='' if 'l2h' in OPT else ' sc1'
PF_N=int(os.environ.get('PF_N','3'))
STAMPS=[]
DSTAMPS=[]
def dstamp(p,name,vt):
    slot=len(DSTAMPS)
    if slot>=16: return
    DSTAMPS.append(name)
    lab=f"DST_{slot}_{len(p.lines)}"
    p("s_lshl_b32 s90, s2, 2"); p("s_or_b32 s90, s90, s6")
    p(f"s_cmp_lg_u32 s90, {int(os.environ.get('DWG','40'))*4}"); p(f"s_cbranch_scc1 {lab}")
    p("s_memrealtime s[90:91]")
    p("s_waitcnt lgkmcnt(0) ; nowaitcheck")
    p(f"v_mov_b32 v{vt}, s90"); p(f"v_mov_b32 v{vt+1}, {slot*4}")
    p("s_mov_b64 s[94:95], exec"); p("s_mov_b64 exec, 1")
    p(f"buffer_store_dword v{vt}, v{vt+1}, {SRD_D}, 0 offen")
    p("s_mov_b64 exec, s[94:95]")
    p.label(lab)
DSEL=os.environ.get('DSEL','').split(',')
def stamp(p, name, vt=250, dyn=None, n=1):
    if name in DSEL: dstamp(p,name,vt)
    if not PROFILE: return
    slot=len(STAMPS)
    for i in range(n): STAMPS.append(name+(f"[{i}]" if n>1 else ""))
    lab=f"ST_{slot}_{len(p.lines)}"
    p("s_cmp_lg_u32 s6, 0"); p(f"s_cbranch_scc1 {lab}")
    p("s_memrealtime s[90:91]")
    p("s_memtime s[88:89]")
    p("s_lshl_b32 s92, s2, 3"); p(f"s_add_u32 s92, s92, {L.PROF+slot*2048}")
    if dyn: p(f"s_lshl_b32 s93, {dyn}, 11"); p("s_add_u32 s92, s92, s93")
    p("s_waitcnt lgkmcnt(0) ; nowaitcheck")
    p(f"v_mov_b32 v{vt}, s90"); p(f"v_mov_b32 v{vt+1}, s88"); p(f"v_mov_b32 v{vt+2}, 0")
    p("s_mov_b64 s[94:95], exec"); p("s_mov_b64 exec, 1")
    p(f"buffer_store_dwordx2 v[{vt}:{vt+1}], v{vt+2}, {SRD_WS}, s92 offen")
    p("s_mov_b64 exec, s[94:95]")
    p.label(lab)

class VM:
    def __init__(s,p): s.p=p; s.n=0; s.pos={}
    def issue(s,key,txt):
        s.p(txt); s.pos[key]=s.n; s.n+=1
    def wait(s,*keys,extra=""):
        need=max(s.pos[k] for k in keys)
        c=s.n-1-need
        if c<=63: s.p(f"s_waitcnt vmcnt({c}){extra}")
        elif extra: s.p(f"s_waitcnt{extra}")

def poll(p, name, srd_, soff, vaddr, expect, vt):
    if PROFILE:
        p("s_waitcnt vmcnt(0)")
        stamp(p,name+' own dma',vt=200 if name=='s1' else 14)
    p(f"s_mov_b32 s29, {SPIN}")
    p.label(f"POLL_{name}")
    p(f"buffer_load_dword v{vt}, {vaddr}, {srd_}, {soff} offen sc1")
    p("s_waitcnt vmcnt(0)")
    p(f"v_cmp_ne_u32 vcc, {expect}, v{vt}")
    p("s_cmp_eq_u64 vcc, 0")
    p(f"s_cbranch_scc1 POLLD_{name}")
    p("s_sub_u32 s29, s29, 1")
    p("s_cmp_lg_u32 s29, 0")
    p(f"s_cbranch_scc1 POLL_{name}")
    p.label(f"POLLD_{name}")

def set_flag(p, soff, vt):
    p(f"v_mov_b32 v{vt}, 1"); p(f"v_mov_b32 v{vt+1}, 0")
    p("s_mov_b64 exec, 1")
    p(f"buffer_store_dword v{vt}, v{vt+1}, {SRD_WS}, {soff} offen{HS1}")
    p("s_mov_b64 exec, -1")

def prologue(p, end):
    p(f"s_cmp_ge_u32 s2, {0 if 'empty' in OPT else 256}")
    p(f"s_cbranch_scc1 {end}")
    p("s_load_dwordx4 s[32:35], s[0:1], 0")
    p("s_load_dwordx4 s[36:39], s[0:1], 16")
    p("s_load_dwordx2 s[40:41], s[0:1], 32")
    p("s_load_dwordx4 s[44:47], s[0:1], 48")
    p("s_load_dwordx4 s[48:51], s[0:1], 64")
    p("s_load_dwordx2 s[52:53], s[0:1], 88")
    p("s_load_dwordx2 s[54:55], s[0:1], 80")
    p("v_lshrrev_b32 v1, 6, v0")
    p("v_and_b32 v0, 63, v0")
    p("v_readfirstlane_b32 s6, v1")
    p("s_and_b32 s3, s2, 7")
    p("s_lshr_b32 s7, s2, 3")
    p("s_lshr_b32 s4, s7, 3")
    p("s_lshl_b32 s3, s3, 2")
    p("s_add_u32 s4, s4, s3")
    p("s_and_b32 s5, s7, 7")
    p("v_lshlrev_b32 v9, 4, v0")
    if 'codepf' in OPT:
        p("s_getpc_b64 s[60:61]")
        p.label("PF_HERE")
        p("v_lshlrev_b32 v231, 6, v0")
        p("s_mul_i32 s3, s6, 4096")
        p("v_add_u32 v231, s3, v231")
        for i in range(PF_N):
            p(f"v_min_u32 v230, END_K-PF_HERE-4, v231")
            p(f"global_load_dword v{232+i}, v230, s[60:61] ; nowaitcheck")
            if i<PF_N-1: p("v_add_u32 v231, 16384, v231")
    p("s_waitcnt lgkmcnt(0)")
    srd(p,8,P_WS,L.WS_USED)
    srd(p,56,P_DBG,256)

def ln_tile(p, X, vaddr, off, mid=None):
    S0,S1,Q0,Q1='v80','v81','v82','v83'
    p(f"v_mov_b32 {S0}, 0"); p(f"v_mov_b32 {S1}, 0"); p(f"v_mov_b32 {Q0}, 0"); p(f"v_mov_b32 {Q1}, 0")
    for i in range(0,32,2):
        p(f"v_dot2c_f32_bf16 {S0}, s28, v{X+i}")
        p(f"v_dot2c_f32_bf16 {Q0}, v{X+i}, v{X+i}")
        p(f"v_dot2c_f32_bf16 {S1}, s28, v{X+i+1}")
        p(f"v_dot2c_f32_bf16 {Q1}, v{X+i+1}, v{X+i+1}")
    p(f"v_add_f32 {S0}, {S0}, {S1}")
    p(f"v_add_f32 {Q0}, {Q0}, {Q1}")
    for d in ("quad_perm:[1,0,3,2]","quad_perm:[2,3,0,1]","row_half_mirror"):
        p(f"v_add_f32_dpp {S0}, {S0}, {S0} {d} row_mask:0xf bank_mask:0xf")
        p(f"v_add_f32_dpp {Q0}, {Q0}, {Q0} {d} row_mask:0xf bank_mask:0xf")
    p(f"v_mul_f32 {S0}, {hx(f2u(1/512))}, {S0}")
    p(f"v_mul_f32 {Q0}, {hx(f2u(1/512))}, {Q0}")
    p(f"v_fma_f32 {Q0}, -{S0}, {S0}, {Q0}")
    p(f"v_max_f32 {Q0}, 0, {Q0}")
    p(f"v_add_f32 {Q0}, {hx(f2u(1e-5))}, {Q0}")
    p(f"v_rsq_f32 {Q0}, {Q0}")
    p(f"v_mul_f32 {S0}, {S0}, {Q0}")
    p(f"v_sub_f32 v94, 0, {S0}")
    p(f"v_mov_b32 v95, v94")
    p(f"v_mov_b32 v92, {Q0}")
    p(f"v_mov_b32 v93, {Q0}")
    for cb in range(8):
        for i in range(4):
            r=X+4*cb+i; t0=84+2*i; t1=85+2*i
            p(f"v_lshlrev_b32 v{t0}, 16, v{r}")
            p(f"v_and_b32 v{t1}, 0xffff0000, v{r}")
        for i in range(4):
            t0=84+2*i
            p(f"v_pk_fma_f32 v[{t0}:{t0+1}], v[{t0}:{t0+1}], v[92:93], v[94:95]")
        for i in range(4):
            r=X+4*cb+i; t0=84+2*i; t1=85+2*i
            p(f"v_cvt_pk_bf16_f32 v{r}, v{t0}, v{t1}")
        p(f"ds_write_b128 {vaddr}, v[{X+4*cb}:{X+4*cb+3}] offset:{off+cb*4224}")

def gemm_lds(p, nsteps, readA, readB, mfma, rps, depth=3, nbuf=4):
    for s in range(min(depth,nsteps)):
        readA(s,s%nbuf); readB(s,s%nbuf)
    for s in range(nsteps):
        if s+depth<nsteps:
            readA(s+depth,(s+depth)%nbuf); readB(s+depth,(s+depth)%nbuf)
        rem=min(depth,nsteps-1-s)
        p(f"s_waitcnt lgkmcnt({rem*rps})")
        mfma(s,s%nbuf)

def tr_base128(p, dst, cbit_sgpr, base):
    p("v_and_b32 v97, 1, v13")
    p("v_lshl_add_u32 v97, v15, 1, v97")
    if cbit_sgpr: p(f"v_add_u32 v97, {cbit_sgpr}, v97")
    p("v_lshrrev_b32 v98, 1, v12")
    p("v_lshlrev_b32 v98, 2, v98")
    p("v_xor_b32 v97, v97, v98")
    p("v_lshlrev_b32 v97, 4, v97")
    p("v_lshrrev_b32 v98, 1, v13")
    p("v_lshl_add_u32 v97, v98, 3, v97")
    p("v_lshl_add_u32 v97, v14, 7, v97")
    p(f"v_add_u32 {dst}, {base}, v97")

def lane_params(p):
    p("v_lshrrev_b32 v11, 4, v0")
    p("v_bfe_u32 v12, v0, 2, 2")
    p("v_and_b32 v13, 3, v0")
    p("v_lshrrev_b32 v14, 1, v11")
    p("v_lshl_add_u32 v14, v14, 3, v12")
    p("v_and_b32 v15, 1, v11")
    p("v_and_b32 v96, 1, v13")
    p("v_lshlrev_b32 v96, 4, v96")
    p("v_lshrrev_b32 v97, 1, v13")
    p("v_lshl_add_u32 v96, v97, 3, v96")

def w128_voff(p, dst):
    p("v_lshrrev_b32 v11, 4, v0")
    p("v_and_b32 v11, 1, v11")
    p("v_lshlrev_b32 v11, 2, v11")
    p("v_xor_b32 v11, v11, v10")
    p("v_lshlrev_b32 v11, 4, v11")
    p(f"v_lshl_add_u32 {dst}, v1, 10, v11")
    p("s_lshl_b32 s3, s5, 7")
    p(f"v_add_u32 {dst}, s3, {dst}")

def phase_a(p):
    p("s_mov_b32 s28, 0x3f803f80")
    srd(p,12,P_X,2048*1024)
    srd(p,16,P_WQ,512*1024)
    p("s_and_b32 s3, s5, 1")
    p("s_lshl_b32 s60, s4, 1")
    p("s_add_u32 s60, s60, s3")
    p("v_lshrrev_b32 v1, 3, v0")
    p("v_and_b32 v10, 7, v0")
    p("s_lshl_b32 s3, s60, 5")
    p("s_lshl_b32 s7, s6, 3")
    p("s_add_u32 s3, s3, s7")
    p("v_add_u32 v2, s3, v1")
    p("v_lshlrev_b32 v2, 10, v2")
    p("v_lshl_add_u32 v2, v10, 4, v2")
    p("v_xor_b32 v3, 0x8000, v2")
    p("s_cmp_ge_u32 s5, 2")
    p("s_cbranch_scc1 A_noclr")
    p("s_cmp_lg_u32 s6, 2")
    p("s_cbranch_scc1 A_noclr")
    p("s_mul_i32 s3, s60, 192")
    p(f"s_add_u32 s3, s3, {L.FLG}")
    p("v_lshlrev_b32 v11, 2, v0")
    p("v_mov_b32 v12, 0")
    p("s_mov_b32 exec_hi, 0xffff")
    p(f"buffer_store_dword v12, v11, {SRD_WS}, s3 offen sc1")
    p("s_mov_b64 exec, -1")
    p.label("A_noclr")
    for cb in range(8):
        p(f"buffer_load_dwordx4 v[{16+4*cb}:{19+4*cb}], v2, {SRD_X}, 0 offen offset:{cb*128}")
    p("s_cmp_ge_u32 s5, 2")
    p("s_cbranch_scc1 A_nokvdma")
    p("s_cmp_lt_u32 s6, 2")
    p(f"s_cselect_b32 s20, s{P_WK}, s{P_WV}")
    p(f"s_cselect_b32 s21, s{P_WK+1}, s{P_WV+1}")
    p("s_mov_b32 s22, 16384")
    p("s_mov_b32 s23, 0x20000")
    csel(p,'s30',WK,WV)
    p("s_and_b32 s3, s6, 1")
    p("s_lshl_b32 s3, s3, 13")
    p("s_add_u32 s30, s30, s3")
    for i in range(8):
        p(f"s_add_u32 m0, s30, {i*1024}")
        p(f"s_add_u32 s31, s3, {i*1024}")
        p(f"buffer_load_dwordx4 v9, {SRD_B}, s31 offen lds")
    p.label("A_nokvdma")
    for cb in range(8):
        p(f"buffer_load_dwordx4 v[{48+4*cb}:{51+4*cb}], v3, {SRD_X}, 0 offen offset:{cb*128}")
    w128_voff(p,'v4')
    p("v_lshrrev_b32 v11, 1, v10")
    p("v_mul_u32_u24 v11, 1056, v11")
    p("v_and_b32 v12, 1, v10")
    p("v_mul_u32_u24 v12, 528, v12")
    p("v_add_u32 v5, v11, v12")
    p("s_lshl_b32 s3, s6, 3")
    p("v_add_u32 v11, s3, v1")
    p("v_lshl_add_u32 v5, v11, 4, v5")
    p("v_lshrrev_b32 v11, 5, v0")
    p("v_mul_u32_u24 v11, 528, v11")
    p("v_and_b32 v12, 31, v0")
    p("v_lshl_add_u32 v6, v12, 4, v11")
    lane_params(p)
    p(f"v_mul_u32_u24 v97, {WV-WK}, v15")
    p("v_lshl_add_u32 v97, v14, 5, v97")
    p("v_add_u32 v97, v97, v96")
    p(f"v_add_u32 v8, {WK}, v97")
    p("s_and_b32 s3, s6, 1")
    p("s_lshl_b32 s3, s3, 2")
    tr_base128(p,'v7','s3',WQ)
    stamp(p,'A issued')
    p("s_waitcnt vmcnt(8)")
    stamp(p,'A x arrived')
    ln_tile(p,16,'v5',XH0)
    p("s_waitcnt lgkmcnt(0)")
    p("s_barrier")
    stamp(p,'A lnA done')
    p("s_cmp_ge_u32 s6, 2")
    p("s_cbranch_scc1 A_wqdma")
    p("s_waitcnt vmcnt(0)")
    p("s_cmp_ge_u32 s5, 2")
    p("s_cbranch_scc1 A_kvdone")
    def rA(s,b):
        p(f"ds_read_b64_tr_b16 v[{96+4*b}:{97+4*b}], v8 offset:{s*512}")
        p(f"ds_read_b64_tr_b16 v[{98+4*b}:{99+4*b}], v8 offset:{s*512+128}")
    def rB(s,b):
        p(f"ds_read_b128 v[{112+4*b}:{115+4*b}], v6 offset:{XH0+s*1056}")
    p("s_cmp_eq_u32 s6, 1")
    p("s_cbranch_scc1 A_vwave")
    gemm_lds(p,32,rA,rB,lambda s,b: p(f"v_mfma_f32_32x32x16_bf16 v[128:143], v[{96+4*b}:{99+4*b}], v[{112+4*b}:{115+4*b}], {'0' if s==0 else 'v[128:143]'}"),3)
    for j in range(4): p(f"v_cvt_pk_bf16_f32 v{88+j}, v{128+2*j}, v{129+2*j}")
    p("s_lshl_b32 s3, s60, 10")
    p(f"s_add_u32 s3, s3, {L.KF}")
    p(f"buffer_store_dwordx4 v[88:91], v9, {SRD_WS}, s3 offen sc1")
    p("v_mul_f32 v84, v128, v128")
    for j in range(1,8): p(f"v_fmac_f32 v84, v{128+j}, v{128+j}")
    p("v_mov_b32 v85, v84")
    p("v_permlane32_swap_b32 v84, v85")
    p("v_add_f32 v84, v84, v85")
    for d in ("row_ror:8","row_ror:4","row_ror:2","row_ror:1"):
        p(f"v_max_f32_dpp v84, v84, v84 {d} row_mask:0xf bank_mask:0xf")
    p("v_readlane_b32 s3, v84, 0")
    p("v_readlane_b32 s7, v84, 16")
    p("s_max_u32 s3, s3, s7")
    p("v_mov_b32 v84, s3")
    p("s_lshl_b32 s7, s60, 7")
    p(f"s_add_u32 s7, s7, {L.KM}")
    p("v_lshlrev_b32 v85, 2, v0")
    p("s_mov_b32 exec_hi, 0")
    p(f"buffer_store_dword v84, v85, {SRD_WS}, s7 offen sc1")
    p("s_mov_b64 exec, -1")
    p("s_branch A_kvdone")
    p.label("A_vwave")
    p("v_and_b32 v84, 3, v0")
    p("v_bfe_u32 v85, v0, 2, 1")
    p("v_lshl_add_u32 v84, v85, 3, v84")
    p("v_bfe_u32 v85, v0, 3, 1")
    p("v_lshl_add_u32 v84, v85, 2, v84")
    p("v_and_b32 v85, 16, v0")
    p("v_add_u32 v84, v84, v85")
    p("v_lshrrev_b32 v85, 5, v0")
    p("v_mul_u32_u24 v85, 528, v85")
    p("v_lshl_add_u32 v86, v84, 4, v85")
    def rBv(s,b):
        p(f"ds_read_b128 v[{112+4*b}:{115+4*b}], v86 offset:{XH0+s*1056}")
    gemm_lds(p,32,rA,rBv,lambda s,b: p(f"v_mfma_f32_32x32x16_bf16 v[128:143], v[{112+4*b}:{115+4*b}], v[{96+4*b}:{99+4*b}], {'0' if s==0 else 'v[128:143]'}"),3)
    for j in range(8): p(f"v_cvt_pk_bf16_f32 v{88+j}, v{128+2*j}, v{129+2*j}")
    p("v_lshrrev_b32 v84, 5, v0")
    p("v_and_b32 v85, 15, v0")
    p("v_lshl_add_u32 v84, v84, 4, v85")
    p("v_lshlrev_b32 v84, 4, v84")
    p("s_lshl_b32 s3, s60, 10")
    p(f"s_add_u32 s3, s3, {L.VF}")
    p("s_mov_b32 exec_lo, 0xffff0000")
    p("s_mov_b32 exec_hi, 0xffff0000")
    p(f"buffer_store_dwordx4 v[88:91], v84, {SRD_WS}, s3 offen sc1")
    p(f"buffer_store_dwordx4 v[92:95], v84, {SRD_WS}, s3 offen offset:512 sc1")
    p("s_mov_b64 exec, -1")
    p("s_branch A_kvdone")
    p.label("A_wqdma")
    p("s_sub_u32 s3, s6, 2")
    p("s_lshl_b32 s31, s3, 18")
    p("s_lshl_b32 s30, s3, 15")
    p(f"s_add_u32 s30, s30, {WQ}")
    for i in range(32):
        p(f"s_add_u32 m0, s30, {i*1024}")
        if i>0: p(f"s_add_u32 s31, s31, 8192")
        p(f"buffer_load_dwordx4 v4, {SRD_A}, s31 offen lds")
    p("s_waitcnt vmcnt(32)")
    p.label("A_kvdone")
    stamp(p,'A kvdone')
    p("s_waitcnt lgkmcnt(0)")
    p("s_barrier")
    ln_tile(p,48,'v5',XH1)
    p("s_waitcnt vmcnt(0)")
    p("s_cmp_ge_u32 s5, 2"); p("s_cbranch_scc1 A_nosig")
    p("s_cmp_ge_u32 s6, 2"); p("s_cbranch_scc1 A_nosig")
    p("s_and_b32 s3, s60, 3"); p("s_lshl_b32 s3, s3, 3"); p("s_lshl_b32 s7, 1, s3")
    p("s_lshr_b32 s3, s60, 2"); p("s_lshl_b32 s3, s3, 2"); p("s_add_u32 s3, s3, 64")
    p("v_mov_b32 v84, s7"); p("v_mov_b32 v85, 0")
    p("s_mov_b64 exec, 1")
    p(f"buffer_atomic_add v84, v85, {SRD_D}, s3 offen sc1")
    p("s_mov_b64 exec, -1")
    p.label("A_nosig")
    p("s_waitcnt lgkmcnt(0)")
    p("s_barrier")
    stamp(p,'A lnB done')
    p("s_lshr_b32 s3, s6, 1")
    p(f"s_mul_i32 s7, s3, {XH1}")
    p("v_add_u32 v6, s7, v6")
    def rA(s,b):
        p(f"ds_read_b64_tr_b16 v[{96+4*b}:{97+4*b}], v7 offset:{s*2048}")
        p(f"ds_read_b64_tr_b16 v[{98+4*b}:{99+4*b}], v7 offset:{s*2048+512}")
    def rB(s,b):
        p(f"ds_read_b128 v[{112+4*b}:{115+4*b}], v6 offset:{s*1056}")
    gemm_lds(p,32,rA,rB,lambda s,b: p(f"v_mfma_f32_32x32x16_bf16 v[128:143], v[{96+4*b}:{99+4*b}], v[{112+4*b}:{115+4*b}], {'0' if s==0 else 'v[128:143]'}"),3)
    p(f"s_mov_b32 s30, {hx(f2u(QSCALE))}"); p("s_mov_b32 s31, s30")
    for j in range(8): p(f"v_pk_mul_f32 v[{128+2*j}:{129+2*j}], v[{128+2*j}:{129+2*j}], s[30:31]")
    for j in range(8): p(f"v_cvt_pk_bf16_f32 v{88+j}, v{128+2*j}, v{129+2*j}")
    p("s_xor_b32 s3, s5, s3"); p("s_and_b32 s3, s3, 1"); p("s_lshl_b32 s3, s3, 2")
    p("s_and_b32 s7, s6, 1"); p("s_lshl_b32 s7, s7, 1"); p("s_add_u32 s3, s3, s7")
    p("s_lshl_b32 s3, s3, 10"); p(f"s_add_u32 s3, s3, {QL}")
    p("v_add_u32 v84, s3, v9")
    p("ds_write_b128 v84, v[88:91]")
    p("ds_write_b128 v84, v[92:95] offset:1024")
    p("v_mul_f32 v84, v128, v128"); p("v_mul_f32 v85, v136, v136")
    for j in range(1,8): p(f"v_fmac_f32 v84, v{128+j}, v{128+j}"); p(f"v_fmac_f32 v85, v{136+j}, v{136+j}")
    p("v_mov_b32 v86, v84"); p("v_mov_b32 v87, v85")
    p("v_permlane32_swap_b32 v84, v86"); p("v_permlane32_swap_b32 v85, v87")
    p("v_add_f32 v84, v84, v86"); p("v_add_f32 v85, v85, v87")
    p("v_max_u32 v84, v84, v85")
    for d in ("row_ror:8","row_ror:4","row_ror:2","row_ror:1"):
        p(f"v_max_u32_dpp v84, v84, v84 {d} row_mask:0xf bank_mask:0xf")
    p("v_readlane_b32 s3, v84, 0")
    p("v_readlane_b32 s7, v84, 16")
    p("s_max_u32 s3, s3, s7")
    p("v_mov_b32 v84, s3")
    p("s_lshl_b32 s7, s6, 2"); p(f"s_add_u32 s7, s7, {QM}")
    p("v_mov_b32 v85, s7")
    p("ds_write_b32 v85, v84")
    p("s_waitcnt lgkmcnt(0)")
    p("s_barrier")
    stamp(p,'A q done')
    srd(p,16,P_WO,512*1024)
    p("s_lshl_b32 s31, s6, 17")
    p("s_lshl_b32 s30, s6, 14")
    for i in range(16):
        p(f"s_add_u32 m0, s30, {WO_L+i*1024}")
        if i>0: p(f"s_add_u32 s31, s31, 8192")
        p(f"buffer_load_dwordx4 v4, {SRD_A}, s31 offen lds")
    p("s_lshr_b32 s61, s6, 1"); p("s_lshl_b32 s3, s4, 1"); p("s_add_u32 s61, s61, s3")
    p("s_and_b32 s62, s6, 1"); p("s_lshl_b32 s3, s5, 1"); p("s_add_u32 s62, s62, s3")
    p("v_and_b32 v2, 31, v0"); p("s_lshl_b32 s3, s61, 5"); p("v_add_u32 v2, s3, v2"); p("v_lshlrev_b32 v2, 10, v2")
    p("v_lshrrev_b32 v3, 5, v0"); p("v_lshl_add_u32 v8, v3, 4, v2")
    p("s_lshl_b32 s3, s62, 6")
    p(f"buffer_load_dwordx4 v[240:243], v8, {SRD_X}, s3 offen")
    p(f"buffer_load_dwordx4 v[244:247], v8, {SRD_X}, s3 offen offset:32")

KA=0; VA=64
SB=[16,32]; OB=[64,80]; QB=[96,100]; CB=104; IDX=48; ZR=52; SLA=56; SLB=57; QA=58; TB=120
THRESH=40.0
VMASK='s[80:81]'

def QK(Sn,kn,Qn,slow): return f"v_mfma_f32_32x32x16_bf16 v[{Sn}:{Sn+15}], a[{KA+4*kn}:{KA+4*kn+3}], v[{Qn}:{Qn+3}], {f'v[{CB}:{CB+15}]' if slow else '0'}"
def PV(O,areg,S): return f"v_smfmac_f32_32x32x32_bf16 v[{O}:{O+15}], a[{areg}:{areg+3}], v[{S}:{S+7}], v{IDX}"

def slot_write(p,O):
    p(f"ds_write_b128 v{SLA}, v[{O}:{O+3}]")
    p(f"ds_write_b128 v{SLA}, v[{O+4}:{O+7}] offset:1024")
    p(f"ds_write_b32 v{SLB}, v{O+8}")

def att_pass(p, ps, first=False, slow=False, vm=None):
    for t in range(16):
        S=SB[t%2]; Sn=SB[(t+1)%2]
        O=OB[ps]; Op=OB[ps] if t>0 else OB[1-ps]
        Qn=QB[ps] if t<15 else QB[1-ps]
        kn=(t+1)%16; tp=(t-1)%16
        e=lambda i: f"v_exp_f32 v{S+i}, v{S+i}"
        pv2=PV(Op,VA+8*tp+4,Sn+8)
        I=[e(0),e(1),pv2,e(2),e(3),e(4),QK(Sn,kn,Qn,slow),e(5),e(6),e(7),e(8),e(9),PV(O,VA+8*t,S),e(10),e(11),e(12),e(13),e(14),e(15)]
        ins={}
        def add(pos,txt): ins.setdefault(pos,[]).append(txt)
        if first and t==0: I[2]=None
        if not first:
            if t==2:
                add(4,f"ds_write_b128 v{SLA}, v[{Op if 0 else OB[1-ps]}:{OB[1-ps]+3}]")
                add(8,f"ds_write_b128 v{SLA}, v[{OB[1-ps]+4}:{OB[1-ps]+7}] offset:1024")
                add(10,f"ds_write_b32 v{SLB}, v{OB[1-ps]+8}")
            if t==3:
                add(4,f"v_add_u32 v{SLA}, 9216, v{SLA}"); add(8,f"v_add_u32 v{SLB}, 9216, v{SLB}")
            if t==8:
                Z=OB[1-ps]
                add(16,f"v_mfma_f32_32x32x16_bf16 v[{Z}:{Z+15}], v[{ZR}:{ZR+3}], v[{ZR}:{ZR+3}], 0")
        if t==4:
            Qd=QB[1-ps]
            add(4,f"ds_read_b128 v[{Qd}:{Qd+3}], v{QA}")
            if slow: add(5,f"ds_read_b32 v133, v132")
        if t==5:
            add(4,f"v_add_u32 v{QA}, 1024, v{QA}")
            if slow: add(8,"v_add_u32 v132, 256, v132")
        if 'warm' in OPT and not first and not slow and ps==0:
            if t==6: add(4,f"buffer_load_dword v49, v50, {SRD_A}, s78 offen ; nowaitcheck")
            if t==10: add(4,f"buffer_load_dword v49, v50, {SRD_B}, s78 offen ; nowaitcheck"); add(8,"s_add_u32 s78, s78, 4096")
        if t==14:
            add(0,"s_waitcnt lgkmcnt(0)")
        if t==15 and slow:
            for j in range(16): add(1,f"v_mov_b32 v{CB+j}, v133")
        if vm is not None:
            vm.wait(('V',t,0))
            if t+4<16: add(4,('K',t+4))
            if t+3<16: add(9,('V',t+3))
        for i,x in enumerate(I):
            for y in ins.get(i,[]):
                if isinstance(y,tuple): (ldK if y[0]=='K' else ldV)(p,vm,y[1])
                else: p(y)
            if x: p(x)

def ldK(p,vm,j):
    p(f"s_add_u32 s3, s30, {j*1024}")
    vm.issue(('K',j),f"buffer_load_dwordx4 a[{KA+4*j}:{KA+4*j+3}], v9, {SRD_WS}, s3 offen sc1")
def ldV(p,vm,j):
    p(f"s_add_u32 s3, s31, {j*1024}")
    p(f"s_mov_b64 exec, {VMASK}")
    vm.issue(('V',j,0),f"buffer_load_dwordx4 a[{VA+8*j}:{VA+8*j+3}], v4, {SRD_WS}, s3 offen sc1")
    vm.issue(('V',j,1),f"buffer_load_dwordx4 a[{VA+8*j+4}:{VA+8*j+7}], v4, {SRD_WS}, s3 offen offset:512 sc1")
    p("s_mov_b64 exec, -1")

def o_store(p,O,jj):
    p(f"v_rcp_f32 v{TB}, v{O+8}")
    p(f"v_mov_b32 v{TB+1}, v{O+8}")
    p(f"v_mov_b32 v{TB+1}, v{TB}")
    for j in range(4): p(f"v_pk_mul_f32 v[{O+2*j}:{O+2*j+1}], v[{O+2*j}:{O+2*j+1}], v[{TB}:{TB+1}]")
    for j in range(4): p(f"v_cvt_pk_bf16_f32 v{TB+4+j}, v{O+2*j}, v{O+2*j+1}")
    p(f"buffer_store_dwordx4 v[{TB+4}:{TB+7}], v9, {SRD_WS}, s63 offen offset:{jj*1024}{HS1}")

def attention(p):
    srd(p,16,P_WG,512*2752)
    srd(p,20,P_WU,512*2752)
    p("s_lshr_b32 s78, s2, 3"); p("s_lshl_b32 s78, s78, 2"); p("s_add_u32 s78, s78, s6"); p("s_mul_i32 s78, s78, 11008")
    p("v_lshlrev_b32 v50, 6, v0")
    p("v_mov_b32 v3, 0x3f803f80")
    p("v_and_b32 v4, 27, v0"); p("v_cmp_eq_u32 vcc, 16, v4"); p("v_cndmask_b32 v3, 0, v3, vcc")
    for i in range(128): p(f"v_accvgpr_write_b32 a{VA+i}, v3")
    p(f"v_mov_b32 v{IDX}, 0xdddddddd")
    for i in range(4): p(f"v_mov_b32 v{ZR+i}, 0")
    for i in range(16): p(f"v_mov_b32 v{OB[0]+i}, 0"); p(f"v_mov_b32 v{OB[1]+i}, 0")
    p("s_mov_b32 s80, 0xffff"); p("s_mov_b32 s81, 0xffff")
    p("v_lshrrev_b32 v4, 5, v0")
    p("v_and_b32 v5, 15, v0")
    p("v_lshl_add_u32 v4, v4, 4, v5")
    p("v_lshlrev_b32 v4, 4, v4")
    p("s_mul_i32 s3, s6, 2304"); p(f"s_add_u32 s3, s3, {OP}")
    p(f"v_add_u32 v{SLA}, s3, v9")
    p("s_add_u32 s3, s3, 2048")
    p(f"v_lshl_add_u32 v{SLB}, v0, 2, s3")
    p(f"v_add_u32 v{QA}, {QL+1024}, v9")
    p(f"v_add_u32 v59, {QL}, v9")
    p(f"v_mov_b32 v60, {QM}")
    p(f"ds_read_b128 v[{QB[0]}:{QB[0]+3}], v59")
    p(f"ds_read_b128 v[60:63], v60")
    p("s_lshl_b32 s30, s6, 14")
    p(f"s_add_u32 s31, s30, {L.VF}")
    p(f"s_add_u32 s30, s30, {L.KF}")
    p("v_lshlrev_b32 v2, 7, v0")
    p("s_waitcnt lgkmcnt(0)")
    p("v_max_u32 v60, v60, v61"); p("v_max3_u32 v60, v60, v62, v63")
    stamp(p,'B pre-S1',vt=200)
    p("s_cmp_lg_u32 s6, 0"); p("s_cbranch_scc1 B_s1skip")
    p("v_and_b32 v61, 15, v0"); p("v_lshlrev_b32 v62, 2, v61"); p("s_mov_b32 s3, 0x02020202")
    poll(p,'s1',SRD_D,'64','v62','s3',61)
    p.label("B_s1skip")
    p("s_barrier")
    stamp(p,'B S1 done',vt=200)
    vm=VM(p)
    p(f"s_mov_b32 s3, {L.KM}")
    vm.issue('KM',f"buffer_load_dword v61, v2, {SRD_WS}, s3 offen sc1")
    ldK(p,vm,0); ldK(p,vm,1); ldV(p,vm,0); ldK(p,vm,2); ldV(p,vm,1); ldK(p,vm,3); ldV(p,vm,2)
    vm.wait('KM')
    for d in ("row_ror:8","row_ror:4","row_ror:2","row_ror:1"):
        p(f"v_max_u32_dpp v61, v61, v61 {d} row_mask:0xf bank_mask:0xf")
    p("v_readlane_b32 s3, v61, 0"); p("v_readlane_b32 s7, v61, 16"); p("s_max_u32 s3, s3, s7")
    p("v_readlane_b32 s7, v61, 32"); p("s_max_u32 s3, s3, s7")
    p("v_readlane_b32 s7, v61, 48"); p("s_max_u32 s65, s3, s7")
    p("v_mul_f32 v60, s65, v60")
    p(f"v_cmp_nge_f32 vcc, {hx(f2u(THRESH*THRESH/(1.02*1.02)))}, v60")
    p("s_cmp_lg_u64 vcc, 0")
    p("s_cbranch_scc1 L_slow")
    vm.wait(('K',0))
    p(QK(SB[0],0,QB[0],False))
    stamp(p,'B first',vt=200)
    import copy
    vmf=copy.copy(vm); vmf.pos=dict(vm.pos)
    att_pass(p,0,first=True,vm=vmf)
    p("s_waitcnt vmcnt(0)")
    stamp(p,'B pass0',vt=200)
    p("s_mov_b32 s64, 4")
    p("s_branch L_attY")
    p.label("L_attX")
    att_pass(p,0)
    p.label("L_attY")
    att_pass(p,1)
    p("s_sub_u32 s64, s64, 1")
    p("s_cmp_lg_u32 s64, 0")
    p("s_cbranch_scc1 L_attX")
    p.label("L_att_tail")
    p(PV(OB[1],VA+8*15+4,SB[1]+8))
    slot_write(p,OB[1])
    SLOW.append(vm)
    p.label("L_att_done")
    stamp(p,'B loop done',vt=200)
    p("s_waitcnt lgkmcnt(0)")
    p("s_barrier")
    p("s_mul_i32 s3, s6, 18432"); p(f"s_add_u32 s3, s3, {OP}")
    p("v_add_u32 v60, s3, v9")
    p("s_add_u32 s3, s3, 2048")
    p("v_lshl_add_u32 v61, v0, 2, s3")
    R=[[128+36*jj+9*ww for ww in range(4)] for jj in range(2)]
    for jj in range(2):
        for ww in range(4):
            b=128+(jj*4+ww)*8; off=jj*9216+ww*2304
            p(f"ds_read_b128 v[{b}:{b+3}], v60 offset:{off}")
            p(f"ds_read_b128 v[{b+4}:{b+7}], v60 offset:{off+1024}")
            p(f"ds_read_b32 v{192+jj*4+ww}, v61 offset:{off}")
    p("s_lshr_b32 s3, s6, 1"); p("s_lshl_b32 s7, s4, 1"); p("s_add_u32 s3, s3, s7"); p("s_lshl_b32 s3, s3, 5")
    p("s_lshl_b32 s7, s5, 2"); p("s_add_u32 s3, s3, s7")
    p("s_and_b32 s7, s6, 1"); p("s_lshl_b32 s7, s7, 1"); p("s_add_u32 s3, s3, s7")
    p("s_lshl_b32 s3, s3, 10"); p(f"s_add_u32 s63, s3, {L.OF}")
    for jj in range(2):
        b=128+jj*32; sb=192+jj*4; O=64+16*jj
        p(f"s_waitcnt lgkmcnt({12*(1-jj)})")
        for j in range(4):
            p(f"v_pk_add_f32 v[{b+2*j}:{b+2*j+1}], v[{b+2*j}:{b+2*j+1}], v[{b+8+2*j}:{b+8+2*j+1}]")
            p(f"v_pk_add_f32 v[{b+16+2*j}:{b+16+2*j+1}], v[{b+16+2*j}:{b+16+2*j+1}], v[{b+24+2*j}:{b+24+2*j+1}]")
        p(f"v_add_f32 v{sb}, v{sb}, v{sb+1}"); p(f"v_add_f32 v{sb+2}, v{sb+2}, v{sb+3}")
        for j in range(4):
            p(f"v_pk_add_f32 v[{O+2*j}:{O+2*j+1}], v[{b+2*j}:{b+2*j+1}], v[{b+16+2*j}:{b+16+2*j+1}]")
        p(f"v_add_f32 v{O+8}, v{sb}, v{sb+2}")
        o_store(p,O,jj)

SLOW=[]
def attention_slow(p):
    vm=SLOW[0]
    p.label("L_slow")
    for j in range(4,16): ldK(p,vm,j)
    for j in range(3,16): ldV(p,vm,j)
    p("s_waitcnt vmcnt(0)")
    p("s_mov_b32 s64, 0")
    p.label("L_mx")
    p("s_lshl_b32 s3, s64, 10")
    p("v_add_u32 v132, s3, v59")
    p(f"ds_read_b128 v[{QB[1]}:{QB[1]+3}], v132")
    p("v_mov_b32 v133, 0xff800000")
    p("s_waitcnt lgkmcnt(0)")
    p(QK(SB[0],0,QB[1],False))
    for t in range(16):
        S=SB[t%2]; Sn=SB[(t+1)%2]
        if t<15: p(QK(Sn,t+1,QB[1],False))
        for j in range(8): p(f"v_max3_f32 v133, v{S+2*j}, v{S+2*j+1}, v133")
    p("v_mov_b32 v134, v133")
    p("v_permlane32_swap_b32 v133, v134")
    p("v_max_f32 v133, v133, v134")
    p("s_lshl_b32 s3, s64, 9"); p("s_lshl_b32 s7, s6, 7"); p("s_add_u32 s3, s3, s7")
    p("v_and_b32 v134, 31, v0")
    p("v_lshl_add_u32 v134, v134, 2, s3")
    p(f"v_add_u32 v134, {MX}, v134")
    p(f"ds_write_b32 v134, v133")
    p("s_add_u32 s64, s64, 1"); p("s_cmp_lt_u32 s64, 8"); p("s_cbranch_scc1 L_mx")
    p("s_waitcnt lgkmcnt(0)")
    p("s_barrier")
    p("v_and_b32 v134, 31, v0"); p("v_lshlrev_b32 v134, 2, v134")
    p("s_lshl_b32 s3, s6, 10"); p(f"s_add_u32 s3, s3, {MX}"); p("v_add_u32 v134, s3, v134")
    for qq in range(2):
        for ww in range(4): p(f"ds_read_b32 v{16+4*qq+ww}, v134 offset:{qq*512+ww*128}")
    p("s_waitcnt lgkmcnt(0)")
    p("s_lshl_b32 s3, s6, 9"); p(f"s_add_u32 s3, s3, {MF}")
    p("v_lshl_add_u32 v134, v0, 2, s3")
    for qq in range(2):
        b=16+4*qq
        p(f"v_max3_f32 v{b}, v{b}, v{b+1}, v{b+2}"); p(f"v_max_f32 v{b}, v{b}, v{b+3}"); p(f"v_sub_f32 v{b}, 0, v{b}")
        p(f"ds_write_b32 v134, v{b} offset:{qq*256}")
    p("s_waitcnt lgkmcnt(0)")
    p("s_barrier")
    p(f"v_lshlrev_b32 v132, 2, v0"); p(f"v_add_u32 v132, {MF}, v132")
    p(f"ds_read_b32 v133, v132")
    p("v_add_u32 v132, 256, v132")
    p("s_waitcnt lgkmcnt(0)")
    for j in range(16): p(f"v_mov_b32 v{CB+j}, v133")
    p(QK(SB[0],0,QB[0],True))
    att_pass_slow(p)
    p("s_branch L_att_done")

def att_pass_slow(p):
    att_pass(p,0,first=True,slow=True,vm=None)
    p("s_mov_b32 s64, 4")
    p("s_branch L_sttY")
    p.label("L_sttX")
    att_pass(p,0,slow=True)
    p.label("L_sttY")
    att_pass(p,1,slow=True)
    p("s_sub_u32 s64, s64, 1")
    p("s_cmp_lg_u32 s64, 0")
    p("s_cbranch_scc1 L_sttX")
    p(PV(OB[1],VA+8*15+4,SB[1]+8))
    slot_write(p,OB[1])

def w1_setup(p):
    p("s_and_b32 s3, s4, 1"); p("s_lshl_b32 s3, s3, 3"); p("s_add_u32 s3, s3, s5")
    p("s_min_u32 s7, s3, 11"); p("s_lshl_b32 s7, s7, 1"); p("s_lshl_b32 s66, s3, 2"); p("s_add_u32 s66, s66, s7")
    p("s_cmp_lt_u32 s3, 11"); p("s_cselect_b32 s67, 6, 4")
    for i in range(3):
        p(f"v_add_u32 v11, {64*i}, v0")
        p("v_mul_u32_u24 v12, 5462, v11"); p("v_lshrrev_b32 v12, 16, v12")
        p("v_mul_u32_u24 v13, 12, v12"); p("v_sub_u32 v13, v11, v13")
        p("v_mul_u32_u24 v12, 2752, v12")
        p(f"v_lshl_add_u32 v{2+i}, v13, 4, v12")
        p("v_add_u32 v13, 10, v13"); p("v_subrev_u32 v14, 12, v13"); p("v_min_u32 v13, v13, v14")
        p(f"v_lshl_add_u32 v{5+i}, v13, 4, v12")
    p(f"s_mul_i32 s68, s6, {16*2752}"); p("s_lshl_b32 s3, s66, 5"); p("s_add_u32 s68, s68, s3")
    p("s_mul_i32 s69, s6, 3072")
assert all((c*5462)>>16==c//12 for c in range(192))

def w1_dma(q):
    slot=(q+3)%6
    out=[]
    for mat in range(2):
        for i in range(3):
            out.append([f"s_add_u32 m0, s69, {slot*SLOT+mat*12288+i*1024}",
                        f"s_add_u32 s3, s68, {q*64*2752}",
                        f"buffer_load_dwordx4 v{2+3*mat+i}, {SRD_A if mat==0 else SRD_B}, s3 offen lds"])
    return out

def wo_phase(p):
    w1_setup(p)
    p("s_waitcnt lgkmcnt(0)")
    p("s_barrier")
    n=0
    for q in range(3):
        for g in w1_dma(q):
            for x in g: p(x)
            n+=1
            if n==12:
                p("s_waitcnt vmcnt(12)")
                flag_off(p,F2); set_flag(p,'s3',12)
    stamp(p,'C flag set',vt=200)
    lane_params(p)
    p("s_and_b32 s3, s6, 1"); p("s_lshl_b32 s3, s3, 2")
    tr_base128(p,'v10',"s3",WO_L)
    p("s_and_b32 s3, s6, 1"); p("s_lshl_b32 s3, s3, 15")
    p("v_add_u32 v10, s3, v10")
    p("v_xor_b32 v11, 64, v10")
    p("v_and_b32 v12, 31, v0"); p("v_lshlrev_b32 v12, 2, v12")
    p("s_lshl_b32 s30, s4, 7"); p(f"s_add_u32 s30, s30, {F2}")
    poll(p,'s2',SRD_WS,'s30','v12',1,13)
    stamp(p,'C S2 done',vt=200)
    p("s_lshl_b32 s31, s61, 5"); p("s_and_b32 s3, s6, 1"); p("s_lshl_b32 s3, s3, 4"); p("s_add_u32 s31, s31, s3")
    p("s_lshl_b32 s31, s31, 10"); p(f"s_add_u32 s31, s31, {L.OF}")
    vm=VM(p)
    for i in range(16):
        p(f"s_add_u32 s3, s31, {i*1024}")
        vm.issue(i,f"buffer_load_dwordx4 a[{4*i}:{4*i+3}], v9, {SRD_WS}, s3 offen{HL1}")
    AB=[16+8*b for b in range(4)]
    ACC=[64,80]
    def rd(i):
        b=AB[i%4]
        for cc,va in enumerate(('v10','v11')):
            p(f"ds_read_b64_tr_b16 v[{b+4*cc}:{b+4*cc+1}], {va} offset:{i*2048}")
            p(f"ds_read_b64_tr_b16 v[{b+4*cc+2}:{b+4*cc+3}], {va} offset:{i*2048+512}")
    for i in range(3): rd(i)
    for i in range(16):
        if i+3<16: rd(i+3)
        rem=min(3,15-i)
        p(f"s_waitcnt vmcnt({15-i}) lgkmcnt({rem*4})")
        b=AB[i%4]
        for cc in range(2):
            a=ACC[cc]
            p(f"v_mfma_f32_32x32x16_bf16 v[{a}:{a+15}], v[{b+4*cc}:{b+4*cc+3}], a[{4*i}:{4*i+3}], {'0' if i==0 else f'v[{a}:{a+15}]'}")
    stamp(p,'C mfma',vt=200)
    pair_reduce(p,ACC,RED)
    for j in range(8):
        p(f"v_lshlrev_b32 v{96+2*j}, 16, v{240+j}")
        p(f"v_and_b32 v{97+2*j}, 0xffff0000, v{240+j}")
    for j in range(8): p(f"v_pk_add_f32 v[{64+2*j}:{65+2*j}], v[{64+2*j}:{65+2*j}], v[{96+2*j}:{97+2*j}]")
    for j in range(8): p(f"v_cvt_pk_bf16_f32 v{32+j}, v{64+2*j}, v{65+2*j}")
    p("s_lshl_b32 s3, s61, 5"); p("s_lshl_b32 s7, s62, 1"); p("s_add_u32 s3, s3, s7"); p("s_lshl_b32 s3, s3, 10"); p(f"s_add_u32 s3, s3, {L.HF}")
    p(f"buffer_store_dwordx4 v[32:35], v9, {SRD_WS}, s3 offen{HS1}")
    p(f"buffer_store_dwordx4 v[36:39], v9, {SRD_WS}, s3 offen offset:1024{HS1}")
    p("v_pk_mul_f32 v[42:43], v[64:65], v[64:65]"); p("v_pk_add_f32 v[40:41], v[64:65], v[66:67]")
    p("v_pk_fma_f32 v[42:43], v[66:67], v[66:67], v[42:43]")
    for j in range(2,8):
        p(f"v_pk_add_f32 v[40:41], v[40:41], v[{64+2*j}:{65+2*j}]"); p(f"v_pk_fma_f32 v[42:43], v[{64+2*j}:{65+2*j}], v[{64+2*j}:{65+2*j}], v[42:43]")
    p("v_add_f32 v40, v40, v41"); p("v_add_f32 v41, v42, v43")
    p("v_mov_b32 v42, v40"); p("v_mov_b32 v43, v41")
    p("v_permlane32_swap_b32 v40, v42"); p("v_permlane32_swap_b32 v41, v43")
    p("v_add_f32 v40, v40, v42"); p("v_add_f32 v41, v41, v43")
    p("s_lshl_b32 s3, s61, 12"); p("s_lshl_b32 s7, s62, 8"); p("s_add_u32 s3, s3, s7"); p(f"s_add_u32 s3, s3, {L.HS}")
    p("v_lshlrev_b32 v12, 3, v0")
    p("s_mov_b32 exec_hi, 0")
    p(f"buffer_store_dwordx2 v[40:41], v12, {SRD_WS}, s3 offen{HS1}")
    p("s_mov_b64 exec, -1")
    for j in range(8): p(f"v_accvgpr_write_b32 a{248+j}, v{32+j}")
    n=0
    for q in range(3,6):
        for g in w1_dma(q):
            for x in g: p(x)
            n+=1
            if n==12:
                p("s_waitcnt vmcnt(12)")
                flag_off(p,F3); set_flag(p,'s3',12)
    stamp(p,'C done',vt=200)

def flag_off(p,F):
    p("s_lshl_b32 s3, s4, 7"); p("s_lshl_b32 s7, s5, 4"); p("s_add_u32 s3, s3, s7"); p("s_lshl_b32 s7, s6, 2"); p("s_add_u32 s3, s3, s7")
    p(f"s_add_u32 s3, s3, {F}")

def pair_reduce(p,ACC,base):
    p(f"s_lshl_b32 s3, s6, 12"); p(f"s_add_u32 s3, s3, {base}")
    p("v_add_u32 v12, s3, v9")
    for q in range(4): p(f"ds_write_b128 v12, v[{ACC[1]+4*q}:{ACC[1]+4*q+3}] offset:{q*1024}")
    p("v_xor_b32 v12, 4096, v12")
    p("s_waitcnt lgkmcnt(0)")
    p("s_barrier")
    for q in range(4): p(f"ds_read_b128 v[{ACC[1]+4*q}:{ACC[1]+4*q+3}], v12 offset:{q*1024}")
    for q in range(4):
        p(f"s_waitcnt lgkmcnt({3-q})")
        for j in range(2):
            a=ACC[0]+4*q+2*j; b=ACC[1]+4*q+2*j
            p(f"v_pk_add_f32 v[{a}:{a+1}], v[{a}:{a+1}], v[{b}:{b+1}]")

def ffn1_phase(p):
    p("s_lshr_b32 s70, s4, 1"); p("s_lshl_b32 s70, s70, 2"); p("s_add_u32 s70, s70, s6")
    lane_params(p)
    p("v_mul_u32_u24 v10, 192, v14"); p("v_add_u32 v10, v10, v96")
    p(f"v_mul_u32_u24 v97, {12288+32}, v15"); p("v_add_u32 v28, v10, v97")
    p(f"v_mul_u32_u24 v97, {12288+32-192}, v15"); p("v_add_u32 v29, v10, v97")
    p("v_and_b32 v12, 31, v0"); p("v_lshlrev_b32 v12, 3, v12"); p("v_lshrrev_b32 v13, 5, v0"); p("v_lshl_add_u32 v30, v13, 11, v12")
    p("v_lshlrev_b32 v12, 2, v0")
    p("s_lshr_b32 s30, s4, 1"); p("s_lshl_b32 s30, s30, 8"); p(f"s_add_u32 s30, s30, {F3}")
    poll(p,'s3',SRD_WS,'s30','v12',1,13)
    stamp(p,'D S3 done',vt=12)
    srd(p,24,P_WD,1376*1024)
    p("s_lshr_b32 s79, s2, 3"); p("s_lshl_b32 s79, s79, 2"); p("s_add_u32 s79, s79, s6"); p("s_mul_i32 s79, s79, 11008")
    p("v_lshlrev_b32 v14, 6, v0")
    vm=VM(p)
    p("s_lshl_b32 s30, s70, 15"); p(f"s_add_u32 s30, s30, {L.HF}")
    def ldB(s):
        p(f"s_add_u32 s3, s30, {s*1024}")
        vm.issue(('B',s),f"buffer_load_dwordx4 v[{128+4*s}:{131+4*s}], v9, {SRD_WS}, s3 offen{HL1}")
    p("s_lshl_b32 s31, s70, 12"); p(f"s_add_u32 s31, s31, {L.HS}")
    ldB(0)
    for i in range(8): vm.issue(('S',i),f"buffer_load_dwordx2 v[{32+2*i}:{33+2*i}], v30, {SRD_WS}, s31 offen offset:{i*256}{HL1}")
    LA=8
    for s in range(1,LA): ldB(s)
    p("s_barrier")
    AB=[0,24]
    def rdA(s):
        q,ss=divmod(s,4); b=AB[s%2]; out=[]
        for uu in range(6):
            va='v10' if uu<5 else 'v11'
            off=ss*3072+uu*32
            out.append(f"ds_read_b64_tr_b16 a[{b+4*uu}:{b+4*uu+1}], {va} offset:{off}")
            out.append(f"ds_read_b64_tr_b16 a[{b+4*uu+2}:{b+4*uu+3}], {va} offset:{off+768}")
        return out
    def setbase(q):
        slot=(q+3)%6
        return [f"v_add_u32 v10, {slot*SLOT}, v28", f"v_add_u32 v11, {slot*SLOT}, v29"]
    for x in setbase(0): p(x)
    for x in rdA(0): p(x)
    vm.wait(('S',7))
    for i in range(2):
        p(f"v_pk_add_f32 v[{32+4*i}:{33+4*i}], v[{32+4*i}:{33+4*i}], v[{34+4*i}:{35+4*i}]")
        p(f"v_pk_add_f32 v[{40+4*i}:{41+4*i}], v[{40+4*i}:{41+4*i}], v[{42+4*i}:{43+4*i}]")
    p("v_pk_add_f32 v[32:33], v[32:33], v[36:37]"); p("v_pk_add_f32 v[40:41], v[40:41], v[44:45]")
    p("v_pk_add_f32 v[16:17], v[32:33], v[40:41]")
    p("v_mov_b32 v18, v16"); p("v_mov_b32 v19, v17")
    p("v_permlane32_swap_b32 v16, v18"); p("v_permlane32_swap_b32 v17, v19")
    p("v_add_f32 v16, v16, v18"); p("v_add_f32 v17, v17, v19")
    p(f"v_mul_f32 v16, {hx(f2u(1/512))}, v16"); p(f"v_mul_f32 v17, {hx(f2u(1/512))}, v17")
    p("v_fma_f32 v17, -v16, v16, v17"); p("v_max_f32 v17, 0, v17"); p(f"v_add_f32 v17, {hx(f2u(1e-5))}, v17")
    p("v_rsq_f32 v17, v17"); p("v_mul_f32 v16, v16, v17"); p("v_sub_f32 v18, 0, v16"); p("v_mov_b32 v19, v18"); p("v_mov_b32 v16, v17")
    def norm(s):
        out=[]
        for i in range(4):
            r=128+4*s+i; t0=20+2*i; t1=21+2*i
            out.append(f"v_lshlrev_b32 v{t0}, 16, v{r}"); out.append(f"v_and_b32 v{t1}, 0xffff0000, v{r}")
        for i in range(4):
            t0=20+2*i
            out.append(f"v_pk_fma_f32 v[{t0}:{t0+1}], v[{t0}:{t0+1}], v[16:17], v[18:19]")
        for i in range(4):
            r=128+4*s+i; t0=20+2*i; t1=21+2*i
            out.append(f"v_cvt_pk_bf16_f32 v{r}, v{t0}, v{t1}")
        return out
    vm.wait(('B',0))
    for x in norm(0): p(x)
    stamp(p,'D start',vt=12)
    ACC=[32+16*u for u in range(6)]
    dmas=w1_dma(6)+w1_dma(7)
    for s in range(32):
        nxt=s+1
        pre=[]; rd=[]; fill=[]; mem=[]
        if s==8:
            p("s_barrier")
        if s+LA<32: mem.append(('B',s+LA))
        if 8<=s<20: mem.append(('D',s-8))
        if 'warm' in OPT and 24<=s<27: mem.append(('W',s-24))
        if nxt<32:
            qn,ssn=divmod(nxt,4)
            if nxt==24:
                vm.wait(('D',11))
                p("s_barrier")
            if ssn==0: pre=setbase(qn)
            rd=rdA(nxt); fill=norm(nxt)
        p("s_waitcnt lgkmcnt(0)")
        for x in pre: p(x)
        if nxt<32: vm.wait(('B',nxt))
        b=AB[s%2]
        mf=[f"v_mfma_f32_32x32x16_bf16 v[{ACC[uu]}:{ACC[uu]+15}], a[{b+4*uu}:{b+4*uu+3}], v[{128+4*s}:{131+4*s}], {'0' if s==0 else f'v[{ACC[uu]}:{ACC[uu]+15}]'}" for uu in range(6)]
        fi=0
        for uu in range(6):
            p(mf[uu])
            for x in rd[2*uu:2*uu+2]: p(x)
            k=3 if uu<4 else 2
            for x in fill[fi:fi+k]: p(x)
            fi+=k
            if uu==1 and mem and mem[0][0]=='B': ldB(mem[0][1])
            if uu==3:
                for m in mem:
                    if m[0]=='D':
                        g=dmas[m[1]]; p(g[0]); p(g[1]); vm.issue(('D',m[1]),g[2])
                    if m[0]=='W':
                        p(f"s_add_u32 s3, s79, {m[1]*4096}")
                        vm.issue(('W',m[1]),f"buffer_load_dword v15, v14, {SRD_O}, s3 offen ; nowaitcheck")
        for x in fill[fi:]: p(x)
    stamp(p,'D mfma done',vt=12)
    c1=-2*1.4426950408889634*0.7978845608028654; c2=c1*0.044715
    p(f"s_mov_b32 s72, {hx(f2u(c2))}"); p("s_mov_b32 s73, s72")
    p(f"v_mov_b32 v28, {hx(f2u(c1))}"); p("v_mov_b32 v29, v28")
    p("v_mov_b32 v30, 1.0"); p("v_mov_b32 v31, 1.0")
    p("s_mul_i32 s30, s70, 86"); p("s_add_u32 s30, s30, s66"); p("s_lshl_b32 s30, s30, 10"); p(f"s_add_u32 s30, s30, {L.AF}")
    for uu in range(6):
        a=ACC[uu]; T=16
        if uu==4:
            p("s_cmp_eq_u32 s67, 4"); p("s_cbranch_scc1 F1_done")
        pr=lambda x,j: f"v[{x+2*j}:{x+2*j+1}]"
        for j in range(4): p(f"v_pk_mul_f32 {pr(T,j)}, {pr(a,j)}, {pr(a,j)}")
        for j in range(4): p(f"v_pk_fma_f32 {pr(T,j)}, {pr(T,j)}, s[72:73], v[28:29]")
        for j in range(4): p(f"v_pk_mul_f32 {pr(T,j)}, {pr(T,j)}, {pr(a,j)}")
        for j in range(8): p(f"v_exp_f32 v{T+j}, v{T+j}")
        for j in range(4): p(f"v_pk_mul_f32 {pr(a,j)}, {pr(a,j)}, {pr(a+8,j)}")
        for j in range(4): p(f"v_pk_add_f32 {pr(T,j)}, {pr(T,j)}, v[30:31]")
        for j in range(8): p(f"v_rcp_f32 v{T+j}, v{T+j}")
        for j in range(4): p(f"v_pk_mul_f32 {pr(T,j)}, {pr(T,j)}, {pr(a,j)}")
        for j in range(4): p(f"v_cvt_pk_bf16_f32 v{24+j}, v{T+2*j}, v{T+2*j+1}")
        p(f"buffer_store_dwordx4 v[24:27], v9, {SRD_WS}, s30 offen offset:{(uu%4)*1024}{HS1}")
        if uu==3: p("s_add_u32 s30, s30, 4096")
    p.label("F1_done")
    stamp(p,'D epi done',vt=12)

def ffn2_phase(p):
    srd(p,16,P_WD,1376*1024)
    srd(p,24,P_OUT,2048*1024)
    p("v_lshrrev_b32 v1, 3, v0"); p("v_and_b32 v10, 7, v0")
    w128_voff(p,'v4')
    p("s_barrier")
    p("s_lshr_b32 s3, s6, 1"); p("s_and_b32 s7, s6, 1")
    p(f"s_mul_i32 s30, s3, 81920"); p(f"s_mul_i32 s31, s7, 40960"); p("s_add_u32 s74, s30, s31")
    p(f"s_mul_i32 s75, s3, {43*16*1024}"); p(f"s_mul_i32 s31, s7, {320*1024}"); p("s_add_u32 s31, s31, s75")
    for i in range(40):
        p(f"s_add_u32 m0, s74, {i*1024}")
        if i>0: p("s_add_u32 s31, s31, 8192")
        p(f"buffer_load_dwordx4 v4, {SRD_A}, s31 offen lds")
        if i==19:
            p("s_waitcnt vmcnt(20)")
            flag_off(p,F4); set_flag(p,'s3',12)
    stamp(p,'E flag set',vt=12)
    lane_params(p)
    p("s_and_b32 s3, s6, 1"); p("s_lshl_b32 s3, s3, 2")
    tr_base128(p,'v10',"s3",0)
    p("s_and_b32 s3, s6, 1"); p("s_mul_i32 s3, s3, 81920")
    p("v_add_u32 v10, s3, v10")
    p("v_xor_b32 v11, 64, v10")
    p("v_lshlrev_b32 v12, 2, v0")
    p("s_lshr_b32 s30, s4, 1"); p("s_lshl_b32 s30, s30, 8"); p(f"s_add_u32 s30, s30, {F4}")
    poll(p,'s4',SRD_WS,'s30','v12',1,13)
    stamp(p,'E S4 done',vt=12)
    vm=VM(p)
    p("s_mul_i32 s31, s61, 86"); p("s_and_b32 s3, s6, 1"); p("s_mul_i32 s3, s3, 43"); p("s_add_u32 s31, s31, s3")
    p("s_lshl_b32 s31, s31, 10"); p(f"s_add_u32 s31, s31, {L.AF}")
    def ldB(i):
        p(f"s_add_u32 s3, s31, {i*1024}")
        vm.issue(('B',i),f"buffer_load_dwordx4 a[{4*i}:{4*i+3}], v9, {SRD_WS}, s3 offen{HL1}")
    LA=10; NS=43
    for i in range(LA): ldB(i)
    p("s_barrier")
    AB=[16+8*b for b in range(4)]
    ACC=[64,80]
    def rd(i):
        b=AB[i%4]
        j=i if i<40 else i-40
        off=j*2048
        va=('v10','v11')
        if 24<=i<40: va=('v14','v15'); off-=49152
        for cc in range(2):
            p(f"ds_read_b64_tr_b16 v[{b+4*cc}:{b+4*cc+1}], {va[cc]} offset:{off}")
            p(f"ds_read_b64_tr_b16 v[{b+4*cc+2}:{b+4*cc+3}], {va[cc]} offset:{off+512}")
    p("v_add_u32 v14, 49152, v10"); p("v_add_u32 v15, 49152, v11")
    p("s_and_b32 s7, s6, 1"); p("s_mul_i32 s3, s7, 3")
    p("s_lshl_b32 s76, s3, 13"); p("s_add_u32 s76, s76, s75"); p(f"s_add_u32 s76, s76, {40*16*1024}")
    p("s_lshl_b32 s77, s3, 10"); p("s_lshr_b32 s3, s6, 1"); p("s_mul_i32 s3, s3, 81920"); p("s_add_u32 s77, s77, s3")
    for i in range(3): rd(i)
    for i in range(NS):
        if i==4:
            p("s_barrier")
            for j in range(3):
                p(f"s_add_u32 m0, s77, {j*1024}"); p(f"s_add_u32 s3, s76, {j*8192}")
                vm.issue(('D',j),f"buffer_load_dwordx4 v4, {SRD_A}, s3 offen lds")
        if i==36:
            vm.wait(('D',2))
            p("s_barrier")
        if i+3<NS: rd(i+3)
        if i+LA<NS: ldB(i+LA)
        rem=min(3,NS-1-i)
        vm.wait(('B',i),extra=f" lgkmcnt({rem*4})")
        b=AB[i%4]
        for cc in range(2):
            a=ACC[cc]
            p(f"v_mfma_f32_32x32x16_bf16 v[{a}:{a+15}], v[{b+4*cc}:{b+4*cc+3}], a[{4*i}:{4*i+3}], {'0' if i==0 else f'v[{a}:{a+15}]'}")
    stamp(p,'E mfma',vt=12)
    pair_reduce(p,ACC,8192)
    for j in range(8): p(f"v_accvgpr_read_b32 v{32+j}, a{248+j}")
    for j in range(8):
        p(f"v_lshlrev_b32 v{96+2*j}, 16, v{32+j}")
        p(f"v_and_b32 v{97+2*j}, 0xffff0000, v{32+j}")
    for j in range(8): p(f"v_pk_add_f32 v[{64+2*j}:{65+2*j}], v[{64+2*j}:{65+2*j}], v[{96+2*j}:{97+2*j}]")
    for j in range(8): p(f"v_cvt_pk_bf16_f32 v{32+j}, v{64+2*j}, v{65+2*j}")
    p("s_lshl_b32 s3, s62, 6")
    p(f"buffer_store_dwordx4 v[32:35], v8, {SRD_O}, s3 offen")
    p(f"buffer_store_dwordx4 v[36:39], v8, {SRD_O}, s3 offen offset:32")

def build(fname):
    p=Prog()
    end="END_K"
    prologue(p,end)
    stamp(p,'start')
    phase_a(p)
    attention(p)
    wo_phase(p)
    ffn1_phase(p)
    ffn2_phase(p)
    stamp(p,'end',vt=12)
    p.label(end)
    p("s_endpgm")
    attention_slow(p)
    ins=p.finalize(name='k')
    print(f"{len(ins)} lines, {p.nops} hazard nops",file=sys.stderr)
    ref=open('sequential_preLN__grouped_kv_mqa__geglu_ffn__prompt.s.ref').read()
    hdr=ref.split('; Override')[0]
    out=hdr+f"; @launch grid=(256,1,1) block=(256,1,1) lds={LDS_TOTAL}\n"
    out+='.amdgcn_target "amdgcn-amd-amdhsa--gfx950"\n.text\n'
    out+=f".globl {KNAME}\n.p2align 8\n.type {KNAME},@function\n{KNAME}:\n"+render(ins)
    out+=f""".section .rodata,"a"
.p2align 6
.amdhsa_kernel {KNAME}
  .amdhsa_next_free_vgpr 512
  .amdhsa_next_free_sgpr 96
  .amdhsa_accum_offset 256
  .amdhsa_group_segment_fixed_size 0
  .amdhsa_kernarg_size 96
  .amdhsa_user_sgpr_count 2
  .amdhsa_user_sgpr_kernarg_segment_ptr 1
  .amdhsa_system_sgpr_workgroup_id_x 1
.end_amdhsa_kernel
"""
    open(fname,'w').write(out)

if __name__=='__main__':
    out=sys.argv[1]
    if len(sys.argv)>2: PROFILE=True
    build(out)
    open(out+'.stamps','w').write('\n'.join(STAMPS))
    if DSTAMPS: print(DSTAMPS)
```

```python
import sys, os, struct
from asm import Prog, render
import layout as L

OPT=set(x for x in os.environ.get('OPT','').split(',') if x)
KNAME='sequential_preLN__grouped_kv_mqa__geglu_ffn__prompt_kernel'
QSCALE=1.4426950408889634/4.0
def f2u(x): return struct.unpack('<I',struct.pack('<f',x))[0]
def hx(x): return '0x%08x'%(x & 0xffffffff)

SRD_WS='s[8:11]'; SRD_X='s[12:15]'; SRD_A='s[16:19]'; SRD_B='s[20:23]'; SRD_O='s[24:27]'; SRD_D='s[56:59]'
P_X,P_WQ,P_WK,P_WV,P_WO,P_WG,P_WU,P_WD,P_OUT,P_WS,P_DBG=32,34,36,38,40,44,46,48,50,52,54
SPIN=1<<17

XH0=0; XH1=33792; WQ=67584; WK=XH1; WV=XH1+16384+128
WO_L=0; OP=73728; QL=147456; MX=155648; MF=MX+4096; QM=161792
SLOT=24576; RED=147456
LDS_TOTAL=163840
F2=L.FLG; F3=L.FLG+4096; F4=L.FLG+8192; FX=L.FLG+12288

def srd(p, d, ptr, size):
    p(f"s_mov_b32 s{d}, s{ptr}")
    p(f"s_mov_b32 s{d+1}, s{ptr+1}")
    p(f"s_mov_b32 s{d+2}, {hx(size)}")
    p(f"s_mov_b32 s{d+3}, 0x20000")
def csel(p,d,a,b):
    p(f"s_mov_b32 {d}, {b}"); p(f"s_cmov_b32 {d}, {a}")

PROFILE=False
HL1=' nt' if 'ldnt' in OPT else ('' if 'ldpl' in OPT else (' sc0' if 'ldsc0' in OPT else ' sc1'))
HS1='' if 'l2h' in OPT else ' sc1'
PF_N=int(os.environ.get('PF_N','3'))
PT_STEP=int(os.environ.get('PT_STEP','24'))
FLG_CLR=208
WD_STEP=int(os.environ.get('WD_STEP','24'))
B2='b2' in OPT
PF2_T=int(os.environ.get('PF2_T','8'))
GO_STEP=int(os.environ.get('GO_STEP','16'))
STAMPS=[]
DSTAMPS=[]
def dstamp(p,name,vt):
    slot=len(DSTAMPS)
    if slot>=16: return
    DSTAMPS.append(name)
    lab=f"DST_{slot}_{len(p.lines)}"
    p("s_lshl_b32 s90, s2, 2"); p("s_or_b32 s90, s90, s6")
    p(f"s_cmp_lg_u32 s90, {int(os.environ.get('DWG','40'))*4}"); p(f"s_cbranch_scc1 {lab}")
    p("s_memrealtime s[90:91]")
    p("s_waitcnt lgkmcnt(0) ; nowaitcheck")
    p(f"v_mov_b32 v{vt}, s90"); p(f"v_mov_b32 v{vt+1}, {slot*4}")
    p("s_mov_b64 s[94:95], exec"); p("s_mov_b64 exec, 1")
    p(f"buffer_store_dword v{vt}, v{vt+1}, {SRD_D}, 0 offen")
    p("s_mov_b64 exec, s[94:95]")
    p.label(lab)
DSEL=os.environ.get('DSEL','').split(',')
def stamp(p, name, vt=250, dyn=None, n=1):
    if name in DSEL: dstamp(p,name,vt)
    if not PROFILE: return
    slot=len(STAMPS)
    for i in range(n): STAMPS.append(name+(f"[{i}]" if n>1 else ""))
    lab=f"ST_{slot}_{len(p.lines)}"
    p("s_cmp_lg_u32 s6, 0"); p(f"s_cbranch_scc1 {lab}")
    p("s_memrealtime s[90:91]")
    p("s_memtime s[88:89]")
    p("s_lshl_b32 s92, s2, 3"); p(f"s_add_u32 s92, s92, {L.PROF+slot*2048}")
    if dyn: p(f"s_lshl_b32 s93, {dyn}, 11"); p("s_add_u32 s92, s92, s93")
    p("s_waitcnt lgkmcnt(0) ; nowaitcheck")
    p(f"v_mov_b32 v{vt}, s90"); p(f"v_mov_b32 v{vt+1}, s88"); p(f"v_mov_b32 v{vt+2}, 0")
    p("s_mov_b64 s[94:95], exec"); p("s_mov_b64 exec, 1")
    p(f"buffer_store_dwordx2 v[{vt}:{vt+1}], v{vt+2}, {SRD_WS}, s92 offen")
    p("s_mov_b64 exec, s[94:95]")
    p.label(lab)

class VM:
    def __init__(s,p): s.p=p; s.n=0; s.pos={}
    def issue(s,key,txt):
        s.p(txt); s.pos[key]=s.n; s.n+=1
    def wait(s,*keys,extra=""):
        need=max(s.pos[k] for k in keys)
        c=s.n-1-need
        if c<=63: s.p(f"s_waitcnt vmcnt({c}){extra}")
        elif extra: s.p(f"s_waitcnt{extra}")

def poll(p, name, srd_, soff, vaddr, expect, vt, sleep=0):
    if PROFILE:
        p("s_waitcnt vmcnt(0)")
        stamp(p,name+' own dma',vt=200 if name=='s1' else 14)
    p(f"s_mov_b32 s29, {SPIN}")
    p.label(f"POLL_{name}")
    p(f"buffer_load_dword v{vt}, {vaddr}, {srd_}, {soff} offen sc1")
    p("s_waitcnt vmcnt(0)")
    p(f"v_cmp_ne_u32 vcc, {expect}, v{vt}")
    p("s_cmp_eq_u64 vcc, 0")
    p(f"s_cbranch_scc1 POLLD_{name}")
    if sleep: p(f"s_sleep {sleep}")
    p("s_sub_u32 s29, s29, 1")
    p("s_cmp_lg_u32 s29, 0")
    p(f"s_cbranch_scc1 POLL_{name}")
    p.label(f"POLLD_{name}")

OUTL=[]
def hstore(p, lines):
    if isinstance(lines,str): lines=[lines]
    if 'xcc' not in OPT:
        for x in lines: p(x+HS1)
        return
    k=len(OUTL)
    p("s_cmp_lg_u32 s43, 0"); p(f"s_cbranch_scc1 HST_{k}")
    for x in lines: p(x)
    p.label(f"HSB_{k}")
    OUTL.append((k,[x+' sc1' for x in lines]))
def emit_outl(p):
    for k,lines in OUTL:
        p.label(f"HST_{k}")
        for x in lines: p(x)
        p(f"s_branch HSB_{k}")

def set_flag(p, soff, vt):
    p(f"v_mov_b32 v{vt}, 1"); p(f"v_mov_b32 v{vt+1}, 0")
    p("s_mov_b64 exec, 1")
    hstore(p,f"buffer_store_dword v{vt}, v{vt+1}, {SRD_WS}, {soff} offen")
    p("s_mov_b64 exec, -1")

def prologue(p, end):
    p(f"s_cmp_ge_u32 s2, {0 if 'empty' in OPT else 256}")
    p(f"s_cbranch_scc1 {end}")
    p("s_load_dwordx4 s[32:35], s[0:1], 0")
    p("s_load_dwordx4 s[36:39], s[0:1], 16")
    p("s_load_dwordx2 s[40:41], s[0:1], 32")
    p("s_load_dwordx4 s[44:47], s[0:1], 48")
    p("s_load_dwordx4 s[48:51], s[0:1], 64")
    p("s_load_dwordx2 s[52:53], s[0:1], 88")
    p("s_load_dwordx2 s[54:55], s[0:1], 80")
    p("v_lshrrev_b32 v1, 6, v0")
    p("v_and_b32 v0, 63, v0")
    p("v_readfirstlane_b32 s6, v1")
    p("s_and_b32 s3, s2, 7")
    p("s_lshr_b32 s7, s2, 3")
    p("s_lshr_b32 s4, s7, 3")
    p("s_lshl_b32 s3, s3, 2")
    p("s_add_u32 s4, s4, s3")
    p("s_and_b32 s5, s7, 7")
    p("v_lshlrev_b32 v9, 4, v0")
    if 'codepf' in OPT:
        p("s_getpc_b64 s[60:61]")
        p.label("PF_HERE")
        p("s_lshl_b32 s3, s7, 2"); p("s_add_u32 s3, s3, s6"); p("s_lshl_b32 s3, s3, 9")
        p("v_and_b32 v231, 7, v0"); p("v_lshlrev_b32 v231, 6, v231")
        p("v_add_u32 v231, s3, v231")
        p(f"v_min_u32 v230, END_K-PF_HERE-4, v231")
        p("s_mov_b64 exec, 0xff")
        p(f"global_load_dword v232, v230, s[60:61] ; nowaitcheck")
        p("s_mov_b64 exec, -1")
    p("s_waitcnt lgkmcnt(0)")
    srd(p,8,P_WS,L.WS_USED)
    srd(p,56,P_DBG,256)

def ln_tile(p, X, vaddr, off, extra=None, write=True):
    U=176
    S,S2,Q,Q2=80,82,84,86
    I=[]
    a=I.append
    pr=lambda r: f"v[{r}:{r+1}]"
    for i in range(32):
        a(f"v_lshlrev_b32 v{U+2*i}, 16, v{X+i}")
        a(f"v_and_b32 v{U+2*i+1}, 0xffff0000, v{X+i}")
        if i>=1:
            k=i-1; u=U+2*k; sa=(S,S2)[k%2]; qa=(Q,Q2)[k%2]
            if k<2: a(f"v_pk_mul_f32 {pr(qa)}, {pr(u)}, {pr(u)}")
            else: a(f"v_pk_fma_f32 {pr(qa)}, {pr(u)}, {pr(u)}, {pr(qa)}")
            if k==2 or k==3: a(f"v_pk_add_f32 {pr(sa)}, {pr(U+2*(k-2))}, {pr(u)}")
            elif k>3: a(f"v_pk_add_f32 {pr(sa)}, {pr(sa)}, {pr(u)}")
    u=U+62
    a(f"v_pk_fma_f32 {pr(Q2)}, {pr(u)}, {pr(u)}, {pr(Q2)}")
    a(f"v_pk_add_f32 {pr(S2)}, {pr(S2)}, {pr(u)}")
    a(f"v_pk_add_f32 {pr(S)}, {pr(S)}, {pr(S2)}")
    a(f"v_pk_add_f32 {pr(Q)}, {pr(Q)}, {pr(Q2)}")
    S0,Q0='v80','v82'
    a(f"v_add_f32 v80, v80, v81")
    a(f"v_add_f32 v82, v84, v85")
    for d in ("quad_perm:[1,0,3,2]","quad_perm:[2,3,0,1]","row_half_mirror"):
        a(f"v_add_f32_dpp {S0}, {S0}, {S0} {d} row_mask:0xf bank_mask:0xf")
        a(f"v_add_f32_dpp {Q0}, {Q0}, {Q0} {d} row_mask:0xf bank_mask:0xf")
    a(f"v_mul_f32 {S0}, {hx(f2u(1/512))}, {S0}")
    a(f"v_mul_f32 {Q0}, {hx(f2u(1/512))}, {Q0}")
    a(f"v_fma_f32 {Q0}, -{S0}, {S0}, {Q0}")
    a(f"v_max_f32 {Q0}, 0, {Q0}")
    a(f"v_add_f32 {Q0}, {hx(f2u(1e-5))}, {Q0}")
    a(f"v_rsq_f32 v92, {Q0}")
    a(f"v_sub_f32 v94, 0, {S0}")
    a(f"v_mov_b32 v93, v92")
    a(f"v_mul_f32 v94, v94, v92")
    a(f"v_mov_b32 v95, v94")
    for cb in range(8):
        for i in range(4):
            u=U+2*(4*cb+i)
            a(f"v_pk_fma_f32 {pr(u)}, {pr(u)}, v[92:93], v[94:95]")
        for i in range(4):
            u=U+2*(4*cb+i)
            a(f"v_cvt_pk_bf16_f32 v{X+4*cb+i}, v{u}, v{u+1}")
        if write: a(f"ds_write_b128 {vaddr}, v[{X+4*cb}:{X+4*cb+3}] offset:{off+cb*4224}")
    extra=list(extra or [])
    gap=max(1,(len(I)-8)//max(1,len(extra))) if extra else 0
    for n,x in enumerate(I):
        p(x)
        if extra and n%gap==gap-1:
            for y in extra.pop(0): p(y)
    for g in extra:
        for y in g: p(y)
def ln_write(p, X, vaddr, off):
    for cb in range(8): p(f"ds_write_b128 {vaddr}, v[{X+4*cb}:{X+4*cb+3}] offset:{off+cb*4224}")

def dma128(vregs, srd_, sbase_lds, lds_off, sbase_g, n, sg='s31'):
    out=[]
    for i in range(n):
        j=i%4; g=[]
        if j==0:
            g.append(f"s_add_u32 m0, {sbase_lds}, {lds_off+i*1024}")
            g.append(f"s_add_u32 {sg}, {sbase_g}, {i*8192}")
        g.append(f"buffer_load_dwordx4 {vregs[j]}, {srd_}, {sg} offen offset:{j*1024} lds")
        out.append(g)
    return out

def gemm_lds(p, nsteps, readA, readB, mfma, rps, depth=3, nbuf=4, fill=None, hook=None):
    fill=list(fill or []); hook=hook or {}
    for s in range(min(depth,nsteps)):
        readA(s,s%nbuf); readB(s,s%nbuf)
    for s in range(nsteps):
        if s+depth<nsteps:
            readA(s+depth,(s+depth)%nbuf); readB(s+depth,(s+depth)%nbuf)
        rem=min(depth,nsteps-1-s)
        p(f"s_waitcnt lgkmcnt({rem*rps})")
        mfma(s,s%nbuf)
        if s in hook: hook[s]()
        for _ in range(2):
            if fill: p(fill.pop(0))
    for x in fill: p(x)

def tr_base128(p, dst, cbit_sgpr, base, t=97):
    a=f"v{t}"; b=f"v{t+1}"
    p(f"v_and_b32 {a}, 1, v13")
    p(f"v_lshl_add_u32 {a}, v15, 1, {a}")
    if cbit_sgpr: p(f"v_add_u32 {a}, {cbit_sgpr}, {a}")
    p(f"v_lshrrev_b32 {b}, 1, v12")
    p(f"v_lshlrev_b32 {b}, 2, {b}")
    p(f"v_xor_b32 {a}, {a}, {b}")
    p(f"v_lshlrev_b32 {a}, 4, {a}")
    p(f"v_lshrrev_b32 {b}, 1, v13")
    p(f"v_lshl_add_u32 {a}, {b}, 3, {a}")
    p(f"v_lshl_add_u32 {a}, v14, 7, {a}")
    p(f"v_add_u32 {dst}, {base}, {a}")

def lane_params(p):
    p("v_lshrrev_b32 v11, 4, v0")
    p("v_bfe_u32 v12, v0, 2, 2")
    p("v_and_b32 v13, 3, v0")
    p("v_lshrrev_b32 v14, 1, v11")
    p("v_lshl_add_u32 v14, v14, 3, v12")
    p("v_and_b32 v15, 1, v11")
    p("v_and_b32 v96, 1, v13")
    p("v_lshlrev_b32 v96, 4, v96")
    p("v_lshrrev_b32 v97, 1, v13")
    p("v_lshl_add_u32 v96, v97, 3, v96")

def w128_voff(p, dst):
    p("v_lshrrev_b32 v11, 4, v0")
    p("v_and_b32 v11, 1, v11")
    p("v_lshlrev_b32 v11, 2, v11")
    p("v_xor_b32 v11, v11, v10")
    p("v_lshlrev_b32 v11, 4, v11")
    p(f"v_lshl_add_u32 {dst}, v1, 10, v11")
    p("s_lshl_b32 s3, s5, 7")
    p(f"v_add_u32 {dst}, s3, {dst}")

VA=64
def phase_a(p):
    p("s_mov_b32 s28, 0x3f803f80")
    srd(p,12,P_X,2048*1024)
    p("s_and_b32 s3, s5, 1")
    p("s_lshl_b32 s60, s4, 1")
    p("s_add_u32 s60, s60, s3")
    p("v_lshrrev_b32 v1, 3, v0")
    p("v_and_b32 v10, 7, v0")
    p("s_lshl_b32 s3, s60, 5")
    p("s_lshl_b32 s7, s6, 3")
    p("s_add_u32 s3, s3, s7")
    p("v_add_u32 v2, s3, v1")
    p("v_lshlrev_b32 v2, 10, v2")
    p("v_lshl_add_u32 v2, v10, 4, v2")
    p("v_xor_b32 v3, 0x8000, v2")
    for cb in range(8):
        p(f"buffer_load_dwordx4 v[{16+4*cb}:{19+4*cb}], v2, {SRD_X}, 0 offen offset:{cb*128}")
    srd(p,16,P_WQ,512*1024)
    w128_voff(p,'v4')
    p("v_lshrrev_b32 v11, 1, v10")
    p("v_mul_u32_u24 v11, 1056, v11")
    p("v_and_b32 v12, 1, v10")
    p("v_mul_u32_u24 v12, 528, v12")
    p("v_add_u32 v5, v11, v12")
    p("s_lshl_b32 s3, s6, 3")
    p("v_add_u32 v11, s3, v1")
    p("v_lshl_add_u32 v5, v11, 4, v5")
    p("v_lshrrev_b32 v11, 5, v0")
    p("v_mul_u32_u24 v11, 528, v11")
    p("v_and_b32 v12, 31, v0")
    p("v_lshl_add_u32 v6, v12, 4, v11")
    lane_params(p)
    p(f"v_mul_u32_u24 v97, {WV-WK}, v15")
    p("v_lshl_add_u32 v97, v14, 5, v97")
    p("v_add_u32 v97, v97, v96")
    p(f"v_add_u32 v8, {WK}, v97")
    p("s_and_b32 s3, s6, 1")
    p("s_lshl_b32 s3, s3, 2")
    tr_base128(p,'v7','s3',WQ)
    p("s_cmp_ge_u32 s5, 2")
    p("s_cselect_b32 s77, 4, 8")
    p("s_sub_u32 s3, s6, 2"); p("s_lshl_b32 s3, s3, 1")
    p("s_cmp_ge_u32 s5, 2"); p("s_cselect_b32 s3, s6, s3")
    p("s_lshl_b32 s75, s3, 17")
    p("s_lshl_b32 s76, s3, 14"); p(f"s_add_u32 s76, s76, {WQ}")
    p("s_lshl_b32 s74, s6, 14")
    p("s_cmp_ge_u32 s5, 2")
    p("s_cbranch_scc1 A_nokvdma")
    p("s_cmp_lg_u32 s6, 2")
    p("s_cbranch_scc1 A_noclr")
    p(f"s_mul_i32 s3, s60, {FLG_CLR}")
    p(f"s_add_u32 s3, s3, {L.FLG}")
    p("v_lshlrev_b32 v11, 2, v0")
    p("v_mov_b32 v12, 0")
    p(f"s_mov_b32 exec_hi, {hx((1<<(FLG_CLR//4-32))-1)}")
    p(f"buffer_store_dword v12, v11, {SRD_WS}, s3 offen sc1")
    p("s_mov_b64 exec, -1")
    p.label("A_noclr")
    p("s_cmp_lt_u32 s6, 2")
    p(f"s_cselect_b32 s20, s{P_WK}, s{P_WV}")
    p(f"s_cselect_b32 s21, s{P_WK+1}, s{P_WV+1}")
    p("s_mov_b32 s22, 16384")
    p("s_mov_b32 s23, 0x20000")
    csel(p,'s30',WK,WV)
    p("s_and_b32 s3, s6, 1")
    p("s_lshl_b32 s3, s3, 13")
    p("s_add_u32 s30, s30, s3")
    for i in range(8):
        if i%4==0: p(f"s_add_u32 m0, s30, {i*1024}"); p(f"s_add_u32 s31, s3, {i*1024}")
        p(f"buffer_load_dwordx4 v9, {SRD_B}, s31 offen offset:{(i%4)*1024} lds")
    stamp(p,'A issued')
    p("s_waitcnt vmcnt(8)")
    p("s_branch A_xw")
    p.label("A_nokvdma")
    p("s_waitcnt vmcnt(0)")
    p.label("A_xw")
    stamp(p,'A x arrived')
    ln_tile(p,16,'v5',XH0,extra=[[f"buffer_load_dwordx4 v[{48+4*cb}:{51+4*cb}], v3, {SRD_X}, 0 offen offset:{cb*128}"] for cb in range(8)])
    for j in range(1,4): p(f"v_add_u32 v{175+j+64}, {7168*j}, v4")
    stamp(p,'A lnA done')
    p("s_cmp_ge_u32 s5, 2")
    p("s_cbranch_scc1 A_wqdma")
    p("s_waitcnt vmcnt(8) lgkmcnt(0)")
    p("s_barrier")
    p("s_cmp_ge_u32 s6, 2")
    p("s_cbranch_scc1 A_wqdma")
    AB_=[96+4*b for b in range(6)]; BB_=[144+4*b for b in range(6)]
    def rA(s,b):
        p(f"ds_read_b64_tr_b16 v[{AB_[b]}:{AB_[b]+1}], v8 offset:{s*512}")
        p(f"ds_read_b64_tr_b16 v[{AB_[b]+2}:{AB_[b]+3}], v8 offset:{s*512+128}")
    def rB(s,b):
        p(f"ds_read_b128 v[{BB_[b]}:{BB_[b]+3}], v6 offset:{XH0+s*1056}")
    p("s_cmp_eq_u32 s6, 1")
    p("s_cbranch_scc1 A_vwave")
    gemm_lds(p,32,rA,rB,lambda s,b: p(f"v_mfma_f32_32x32x16_bf16 v[128:143], v[{AB_[b]}:{AB_[b]+3}], v[{BB_[b]}:{BB_[b]+3}], {'0' if s==0 else 'v[128:143]'}"),3,depth=4,nbuf=6)
    for j in range(4): p(f"v_cvt_pk_bf16_f32 v{88+j}, v{128+2*j}, v{129+2*j}")
    p("s_lshl_b32 s3, s60, 10")
    p(f"s_add_u32 s3, s3, {L.KF}")
    p(f"buffer_store_dwordx4 v[88:91], v9, {SRD_WS}, s3 offen sc1")
    p("v_mul_f32 v84, v128, v128")
    for j in range(1,8): p(f"v_fmac_f32 v84, v{128+j}, v{128+j}")
    p("v_mov_b32 v85, v84")
    p("v_permlane32_swap_b32 v84, v85")
    p("v_add_f32 v84, v84, v85")
    for d in ("row_ror:8","row_ror:4","row_ror:2","row_ror:1"):
        p(f"v_max_f32_dpp v84, v84, v84 {d} row_mask:0xf bank_mask:0xf")
    p("v_readlane_b32 s3, v84, 0")
    p("v_readlane_b32 s7, v84, 16")
    p("s_max_u32 s3, s3, s7")
    p("v_mov_b32 v84, s3")
    p("s_lshl_b32 s7, s60, 7")
    p(f"s_add_u32 s7, s7, {L.KM}")
    p("v_lshlrev_b32 v85, 2, v0")
    p("s_mov_b32 exec_hi, 0")
    p(f"buffer_store_dword v84, v85, {SRD_WS}, s7 offen sc1")
    p("s_mov_b64 exec, -1")
    p("s_waitcnt vmcnt(2)")
    p("s_branch A_kvdone")
    p.label("A_vwave")
    p("v_and_b32 v84, 3, v0")
    p("v_bfe_u32 v85, v0, 2, 1")
    p("v_lshl_add_u32 v84, v85, 3, v84")
    p("v_bfe_u32 v85, v0, 3, 1")
    p("v_lshl_add_u32 v84, v85, 2, v84")
    p("v_and_b32 v85, 16, v0")
    p("v_add_u32 v84, v84, v85")
    p("v_lshrrev_b32 v85, 5, v0")
    p("v_mul_u32_u24 v85, 528, v85")
    p("v_lshl_add_u32 v86, v84, 4, v85")
    def rBv(s,b):
        p(f"ds_read_b128 v[{BB_[b]}:{BB_[b]+3}], v86 offset:{XH0+s*1056}")
    gemm_lds(p,32,rA,rBv,lambda s,b: p(f"v_mfma_f32_32x32x16_bf16 v[128:143], v[{BB_[b]}:{BB_[b]+3}], v[{AB_[b]}:{AB_[b]+3}], {'0' if s==0 else 'v[128:143]'}"),3,depth=4,nbuf=6)
    for j in range(8): p(f"v_cvt_pk_bf16_f32 v{88+j}, v{128+2*j}, v{129+2*j}")
    p("v_xor_b32 v84, 256, v9")
    p("s_lshl_b32 s3, s60, 11")
    p(f"s_add_u32 s3, s3, {L.VF}")
    p("s_mov_b32 exec_lo, 0xffff0000")
    p("s_mov_b32 exec_hi, 0xffff0000")
    p(f"buffer_store_dwordx4 v[88:91], v84, {SRD_WS}, s3 offen sc1")
    p(f"buffer_store_dwordx4 v[92:95], v84, {SRD_WS}, s3 offen offset:1024 sc1")
    p("s_mov_b64 exec, -1")
    p("s_waitcnt vmcnt(2)")
    p("s_branch A_kvdone")
    p.label("A_wqdma")
    p("s_waitcnt vmcnt(0)")
    p.label("A_wqloop")
    p("s_mov_b32 m0, s76")
    for j,vr in enumerate(('v4','v240','v241','v242')):
        p(f"buffer_load_dwordx4 {vr}, {SRD_A}, s75 offen offset:{j*1024} lds")
    p("s_add_u32 s76, s76, 4096"); p("s_add_u32 s75, s75, 32768")
    p("s_sub_u32 s77, s77, 1"); p("s_cmp_lg_u32 s77, 0"); p("s_cbranch_scc1 A_wqloop")
    p.label("A_kvdone")
    stamp(p,'A kvdone')
    ln_tile(p,48,'v5',XH1,write=False)
    p("s_cmp_ge_u32 s5, 2"); p("s_cbranch_scc1 A_nosig")
    p("s_cmp_ge_u32 s6, 2"); p("s_cbranch_scc1 A_nosig2")
    p("s_waitcnt vmcnt(0)")
    p("s_barrier")
    p("s_cmp_lg_u32 s6, 0"); p("s_cbranch_scc1 A_nosig3")
    if 'go2' in OPT:
        p("s_lshr_b32 s3, s60, 5"); p("s_lshl_b32 s3, s3, 6"); p("v_mov_b32 v85, s3")
    else: p("v_mov_b32 v85, 0")
    p("v_mov_b32 v243, 1")
    p("s_mov_b64 exec, 1")
    p(f"buffer_atomic_add v243, v85, {SRD_D}, 0 offen sc0 sc1 ; nowaitcheck")
    p("s_mov_b64 exec, -1")
    stamp(p,'A sig')
    p.label("A_nosig3")
    ln_write(p,48,'v5',XH1)
    p("s_branch A_lnbw")
    p.label("A_nosig2")
    p("s_barrier")
    p.label("A_nosig")
    ln_write(p,48,'v5',XH1)
    p("s_waitcnt vmcnt(0)")
    p.label("A_lnbw")
    p("s_waitcnt lgkmcnt(0)")
    p("s_barrier")
    stamp(p,'A lnB done')
    def go():
        N=32 if 'go2' in OPT else 64
        p("s_cmp_ge_u32 s5, 2"); p("s_cbranch_scc1 A_nogo")
        p("s_cmp_lg_u32 s6, 0"); p("s_cbranch_scc1 A_nogo")
        p("s_waitcnt vmcnt(0)")
        stamp(p,'A atom ret')
        p(f"v_readfirstlane_b32 s3, v243"); p(f"s_and_b32 s3, s3, {N-1}"); p(f"s_cmp_lg_u32 s3, {N-1}"); p("s_cbranch_scc1 A_nogo")
        p("v_mov_b32 v243, 1")
        if 'go2' in OPT:
            p("s_lshr_b32 s3, s60, 5"); p("s_lshl_b32 s3, s3, 6"); p("s_add_u32 s3, s3, 128"); p("v_mov_b32 v242, s3")
        else: p("v_mov_b32 v242, 128")
        p("s_mov_b64 exec, 1")
        p(f"buffer_store_dword v243, v242, {SRD_D}, 0 offen sc1")
        p("s_mov_b64 exec, -1")
        p.label("A_nogo")
    p("s_lshr_b32 s3, s6, 1")
    p(f"s_mul_i32 s7, s3, {XH1}")
    p("v_add_u32 v6, s7, v6")
    def rA(s,b):
        p(f"ds_read_b64_tr_b16 v[{AB_[b]}:{AB_[b]+1}], v7 offset:{s*2048}")
        p(f"ds_read_b64_tr_b16 v[{AB_[b]+2}:{AB_[b]+3}], v7 offset:{s*2048+512}")
    def rB(s,b):
        p(f"ds_read_b128 v[{BB_[b]}:{BB_[b]+3}], v6 offset:{s*1056}")
    gemm_lds(p,32,rA,rB,lambda s,b: p(f"v_mfma_f32_32x32x16_bf16 v[128:143], v[{AB_[b]}:{AB_[b]+3}], v[{BB_[b]}:{BB_[b]+3}], {'0' if s==0 else 'v[128:143]'}"),3,depth=4,nbuf=6,fill=att_setup(),hook={GO_STEP:go})
    p(f"s_mov_b32 s30, {hx(f2u(QSCALE))}"); p("s_mov_b32 s31, s30")
    for j in range(1,4): p(f"v_add_u32 v{4+j}, {7168*j}, v4")
    for j in range(8): p(f"v_pk_mul_f32 v[{128+2*j}:{129+2*j}], v[{128+2*j}:{129+2*j}], s[30:31]")
    for j in range(8): p(f"v_cvt_pk_bf16_f32 v{96+j}, v{128+2*j}, v{129+2*j}")
    p("s_lshr_b32 s3, s6, 1")
    p("s_xor_b32 s3, s5, s3"); p("s_and_b32 s3, s3, 1"); p("s_lshl_b32 s3, s3, 2")
    p("s_and_b32 s7, s6, 1"); p("s_lshl_b32 s7, s7, 1"); p("s_add_u32 s3, s3, s7")
    p("s_lshl_b32 s3, s3, 10"); p(f"s_add_u32 s3, s3, {QL}")
    p("v_add_u32 v104, s3, v9")
    p("ds_write_b128 v104, v[96:99]")
    p("ds_write_b128 v104, v[100:103] offset:1024")
    p("v_mul_f32 v104, v128, v128"); p("v_mul_f32 v105, v136, v136")
    for j in range(1,8): p(f"v_fmac_f32 v104, v{128+j}, v{128+j}"); p(f"v_fmac_f32 v105, v{136+j}, v{136+j}")
    p("v_mov_b32 v106, v104"); p("v_mov_b32 v107, v105")
    p("v_permlane32_swap_b32 v104, v106"); p("v_permlane32_swap_b32 v105, v107")
    p("v_add_f32 v104, v104, v106"); p("v_add_f32 v105, v105, v107")
    p("v_max_u32 v104, v104, v105")
    for d in ("row_ror:8","row_ror:4","row_ror:2","row_ror:1"):
        p(f"v_max_u32_dpp v104, v104, v104 {d} row_mask:0xf bank_mask:0xf")
    p("v_readlane_b32 s3, v104, 0")
    p("v_readlane_b32 s7, v104, 16")
    p("s_max_u32 s3, s3, s7")
    p("v_mov_b32 v104, s3")
    p("s_lshl_b32 s7, s6, 2"); p(f"s_add_u32 s7, s7, {QM}")
    p("v_mov_b32 v105, s7")
    p("ds_write_b32 v105, v104")
    stamp(p,'A q done')

def att_setup():
    F=[]; a=F.append
    for i in range(16): a(f"v_mov_b32 v{OB[0]+i}, 0"); a(f"v_mov_b32 v{OB[1]+i}, 0")
    for i in range(4): a(f"v_mov_b32 v{ZR+i}, 0")
    a(f"v_mov_b32 v{IDX}, 0xdddddddd")
    a("s_mov_b32 s80, 0xffff"); a("s_mov_b32 s81, 0xffff")
    a("s_mul_i32 s77, s6, 2304"); a(f"s_add_u32 s77, s77, {OP}")
    a(f"v_add_u32 v{SLA}, s77, v9")
    a("s_add_u32 s77, s77, 2048")
    a(f"v_lshl_add_u32 v{SLB}, v0, 2, s77")
    a(f"v_add_u32 v{QA}, {QL+1024}, v9")
    a(f"v_add_u32 v59, {QL}, v9")
    a(f"v_mov_b32 v60, {QM}")
    a("s_lshl_b32 s42, s6, 14")
    a("s_lshr_b32 s61, s6, 1"); a("s_lshl_b32 s77, s4, 1"); a("s_add_u32 s61, s61, s77")
    a("s_and_b32 s62, s6, 1"); a("s_lshl_b32 s77, s5, 1"); a("s_add_u32 s62, s62, s77")
    a("v_and_b32 v2, 31, v0"); a("s_lshl_b32 s77, s61, 5"); a("v_add_u32 v2, s77, v2"); a("v_lshlrev_b32 v2, 10, v2")
    a("v_lshrrev_b32 v3, 5, v0"); a("v_lshl_add_u32 v8, v3, 4, v2")
    return F

KA=0
SB=[16,32]; OB=[64,80]; QB=[96,100]; CB=104; IDX=48; ZR=52; SLA=56; SLB=57; QA=58; TB=120
THRESH=40.0
VMASK='s[80:81]'

def QK(Sn,kn,Qn,slow): return f"v_mfma_f32_32x32x16_bf16 v[{Sn}:{Sn+15}], a[{KA+4*kn}:{KA+4*kn+3}], v[{Qn}:{Qn+3}], {f'v[{CB}:{CB+15}]' if slow else '0'}"
def PV(O,areg,S): return f"v_smfmac_f32_32x32x32_bf16 v[{O}:{O+15}], a[{areg}:{areg+3}], v[{S}:{S+7}], v{IDX}"

def slot_write(p,O):
    p(f"ds_write_b128 v{SLA}, v[{O}:{O+3}]")
    p(f"ds_write_b128 v{SLA}, v[{O+4}:{O+7}] offset:1024")
    p(f"ds_write_b32 v{SLB}, v{O+8}")

def att_pass(p, ps, first=False, slow=False, vm=None, ev=None):
    ev=ev or {}
    for t in range(16):
        S=SB[t%2]; Sn=SB[(t+1)%2]
        O=OB[ps]; Op=OB[ps] if t>0 else OB[1-ps]
        Qn=QB[ps] if t<15 else QB[1-ps]
        kn=(t+1)%16; tp=(t-1)%16
        e=lambda i: f"v_exp_f32 v{S+i}, v{S+i}"
        pv2=PV(Op,VA+8*tp+4,Sn+8)
        I=[e(0),e(1),pv2,e(2),e(3),e(4),QK(Sn,kn,Qn,slow),e(5),e(6),e(7),e(8),e(9),PV(O,VA+8*t,S),e(10),e(11),e(12),e(13),e(14),e(15)]
        ins={}
        def add(pos,txt): ins.setdefault(pos,[]).append(txt)
        if first and t==0: I[2]=None
        if not first:
            if t==2:
                add(4,f"ds_write_b128 v{SLA}, v[{OB[1-ps]}:{OB[1-ps]+3}]")
                add(8,f"ds_write_b128 v{SLA}, v[{OB[1-ps]+4}:{OB[1-ps]+7}] offset:1024")
                add(10,f"ds_write_b32 v{SLB}, v{OB[1-ps]+8}")
            if t==3:
                add(4,f"v_add_u32 v{SLA}, 9216, v{SLA}"); add(8,f"v_add_u32 v{SLB}, 9216, v{SLB}")
            if t==8:
                Z=OB[1-ps]
                add(16,f"v_mfma_f32_32x32x16_bf16 v[{Z}:{Z+15}], v[{ZR}:{ZR+3}], v[{ZR}:{ZR+3}], 0")
        if t==4:
            Qd=QB[1-ps]
            add(4,f"ds_read_b128 v[{Qd}:{Qd+3}], v{QA}")
            if slow: add(5,f"ds_read_b32 v121, v120")
        if t==5:
            add(4,f"v_add_u32 v{QA}, 1024, v{QA}")
            if slow: add(8,"v_add_u32 v120, 256, v120")
        if t==14:
            add(0,"s_waitcnt lgkmcnt(0)")
        if t==15 and slow:
            for j in range(16): add(1,f"v_mov_b32 v{CB+j}, v121")
        if first and vm is not None:
            vm.wait(('V',t,0))
            if t+4<16: add(4,('K',t+4))
            if t+3<16: add(9,('V',t+3))
        for pos,item in ev.get(t,[]): add(pos,item)
        for i,x in enumerate(I):
            for y in ins.get(i,[]):
                if callable(y): y()
                elif isinstance(y,list): emit_group(p,vm,y)
                elif isinstance(y,tuple): (ldK if y[0]=='K' else ldV)(p,vm,y[1])
                else: p(y)
            if x: p(x)

def spread(ev, items, t0, t1, poss=(1,4,8,11,14,17)):
    n=t1-t0+1; per=-(-len(items)//n); assert per<=len(poss),(per,len(items))
    k=0
    for t in range(t0,t1+1):
        for j in range(per):
            if k<len(items): ev.setdefault(t,[]).append((poss[j*len(poss)//per],items[k])); k+=1

def ldK(p,vm,j):
    p(f"s_add_u32 s3, s30, {j*1024}")
    vm.issue(('K',j),f"buffer_load_dwordx4 a[{KA+4*j}:{KA+4*j+3}], v9, {SRD_WS}, s3 offen sc1")
def ldV(p,vm,j):
    p(f"s_add_u32 s3, s31, {j*2048}")
    p(f"s_mov_b64 exec, {VMASK}")
    vm.issue(('V',j,0),f"buffer_load_dwordx4 a[{VA+8*j}:{VA+8*j+3}], v9, {SRD_WS}, s3 offen sc1")
    vm.issue(('V',j,1),f"buffer_load_dwordx4 a[{VA+8*j+4}:{VA+8*j+7}], v9, {SRD_WS}, s3 offen offset:1024 sc1")
    p("s_mov_b64 exec, -1")

def o_store(p,O,jj):
    p(f"v_rcp_f32 v{TB}, v{O+8}")
    p(f"v_mov_b32 v{TB+1}, v{O+8}")
    p(f"v_mov_b32 v{TB+1}, v{TB}")
    for j in range(4): p(f"v_pk_mul_f32 v[{O+2*j}:{O+2*j+1}], v[{O+2*j}:{O+2*j+1}], v[{TB}:{TB+1}]")
    for j in range(4): p(f"v_cvt_pk_bf16_f32 v{TB+4+j}, v{O+2*j}, v{O+2*j+1}")
    hstore(p,f"buffer_store_dwordx4 v[{TB+4}:{TB+7}], v9, {SRD_WS}, s63 offen offset:{jj*1024}")

def xcc_publish(p,vm):
    lab=f"XP_{len(p.lines)}"
    p("s_getreg_b32 s43, hwreg(HW_REG_XCC_ID, 0, 4)")
    p("s_add_u32 s43, s43, 1")
    p("s_lshr_b32 s86, s4, 1"); p("s_lshl_b32 s86, s86, 6"); p(f"s_add_u32 s86, s86, {FX}")
    p("s_cmp_lg_u32 s6, 0"); p(f"s_cbranch_scc1 {lab}")
    p("s_and_b32 s3, s4, 1"); p("s_lshl_b32 s3, s3, 3"); p("s_add_u32 s3, s3, s5"); p("s_lshl_b32 s3, s3, 2")
    p("v_mov_b32 v12, s43"); p("v_mov_b32 v14, s3")
    p("s_mov_b64 exec, 1")
    vm.issue(('XP',0),f"buffer_store_dword v12, v14, {SRD_WS}, s86 offen sc1")
    p("s_mov_b64 exec, -1")
    p.label(lab)
def xcc_load(p,vm):
    p("v_and_b32 v13, 15, v0"); p("v_lshlrev_b32 v13, 2, v13")
    vm.issue(('XL',0),f"buffer_load_dword v12, v13, {SRD_WS}, s86 offen sc1")
def xcc_check(p):
    p(f"s_mov_b32 s29, {SPIN}")
    p.label("XC_CHK")
    p("v_cmp_eq_u32 vcc, 0, v12")
    p("s_cmp_eq_u64 vcc, 0"); p("s_cbranch_scc1 XC_OK")
    p("s_sub_u32 s29, s29, 1"); p("s_cmp_eq_u32 s29, 0"); p("s_cbranch_scc1 XC_OK")
    p(f"buffer_load_dword v12, v13, {SRD_WS}, s86 offen sc1")
    p("s_waitcnt vmcnt(0)")
    p("s_branch XC_CHK")
    p.label("XC_OK")
    p("v_cmp_ne_u32 vcc, s43, v12")
    p("s_cmp_lg_u64 vcc, 0")
    p("s_cselect_b32 s43, 1, 0")
    if 'xslow' in OPT: p("s_mov_b32 s43, 1")

def wo_dma_groups(vm):
    G=[]
    for n,g in enumerate(dma128(['v4','v5','v6','v7'],SRD_O,'s74',WO_L,'s75',16,sg='s76')):
        G.append([('s',x) for x in g[:-1]]+[('m',('WO',n),g[-1])])
    G.append([('s',"s_lshl_b32 s76, s62, 6"),('m',('XR',0),f"buffer_load_dwordx4 a[192:195], v8, {SRD_X}, s76 offen")])
    G.append([('m',('XR',1),f"buffer_load_dwordx4 a[196:199], v8, {SRD_X}, s76 offen offset:32")])
    return G
def emit_group(p,vm,g):
    for x in g:
        if x[0]=='s': p(x[1])
        else: vm.issue(x[1],x[2])

def attention(p):
    srd(p,24,P_WO,512*1024)
    p("s_lshl_b32 s75, s6, 17")
    srd(p,16,P_WG,512*2752)
    srd(p,20,P_WU,512*2752)
    p("s_lshr_b32 s78, s2, 3"); p("s_lshl_b32 s78, s78, 2"); p("s_add_u32 s78, s78, s6"); p("s_mul_i32 s78, s78, 6880"); p(f"s_add_u32 s78, s78, {192*2752}")
    p("v_lshlrev_b32 v50, 6, v0")
    if 'pt' in OPT:
        p("v_and_b32 v51, 15, v0"); p("v_lshlrev_b32 v51, 7, v51")
        p("s_lshr_b32 s3, s6, 1"); p("s_lshl_b32 s7, s4, 1"); p("s_add_u32 s3, s3, s7"); p("s_lshl_b32 s3, s3, 5")
        p("s_lshl_b32 s7, s5, 2"); p("s_add_u32 s3, s3, s7")
        p("s_and_b32 s7, s6, 1"); p("s_lshl_b32 s7, s7, 1"); p("s_add_u32 s3, s3, s7")
        p("s_lshl_b32 s3, s3, 10"); p(f"s_add_u32 s82, s3, {L.OF}")
        p("s_lshl_b32 s3, s61, 5"); p("s_lshl_b32 s7, s62, 1"); p("s_add_u32 s3, s3, s7"); p("s_lshl_b32 s3, s3, 10"); p(f"s_add_u32 s83, s3, {L.HF}")
        p("s_lshl_b32 s3, s61, 12"); p("s_lshl_b32 s7, s62, 8"); p("s_add_u32 s3, s3, s7"); p(f"s_add_u32 s84, s3, {L.HS}")
    p("s_lshl_b32 s31, s42, 1"); p(f"s_add_u32 s31, s31, {L.VF}")
    p(f"s_add_u32 s30, s42, {L.KF}")
    lane_params(p)
    p("s_and_b32 s3, s6, 1"); p("s_lshl_b32 s3, s3, 2")
    tr_base128(p,'v10',"s3",WO_L)
    p("s_and_b32 s3, s6, 1"); p("s_lshl_b32 s3, s3, 15")
    p("v_add_u32 v10, s3, v10")
    p("v_xor_b32 v1, 64, v10")
    p("v_lshlrev_b32 v11, 7, v0")
    p("v_mov_b32 v16, 0x3f803f80"); p("v_mov_b32 v20, 0x3afe3f80")
    p("v_and_b32 v13, 59, v0"); p("v_cmp_eq_u32 vcc, 16, v13"); p("v_cndmask_b32 v20, 0, v20, vcc")
    for i in (17,18,19,21,22,23): p(f"v_mov_b32 v{i}, 0")
    for i in range(8): p(f"v_mfma_f32_32x32x16_bf16 a[{VA+16*i}:{VA+16*i+15}], v[16:19], v[20:23], 0")
    stamp(p,'B pre-S1',vt=200)
    p("s_cmp_lg_u32 s6, 0"); p("s_cbranch_scc1 B_s1skip")
    if 'go2' in OPT: p("v_and_b32 v62, 1, v0"); p("v_lshlrev_b32 v62, 6, v62"); p("v_add_u32 v62, 128, v62")
    else: p("v_mov_b32 v62, 128")
    poll(p,'s1',SRD_D,'0','v62',1,61,sleep=int(os.environ.get('S1SLEEP','1')))
    p.label("B_s1skip")
    p("s_waitcnt lgkmcnt(0)")
    p("s_barrier")
    stamp(p,'B S1 done',vt=200)
    vm=VM(p)
    p(f"s_mov_b32 s3, {L.KM}")
    vm.issue('KM',f"buffer_load_dword v61, v11, {SRD_WS}, s3 offen sc1")
    ldK(p,vm,0)
    p(f"ds_read_b128 v[{QB[0]}:{QB[0]+3}], v59")
    p(f"ds_read_b128 v[104:107], v60")
    ldK(p,vm,1); ldV(p,vm,0); ldK(p,vm,2); ldV(p,vm,1); ldK(p,vm,3); ldV(p,vm,2)
    p("s_waitcnt lgkmcnt(0)")
    p("v_max_u32 v60, v104, v105"); p("v_max3_u32 v60, v60, v106, v107")
    vm.wait('KM')
    for d in ("row_ror:8","row_ror:4","row_ror:2","row_ror:1"):
        p(f"v_max_u32_dpp v61, v61, v61 {d} row_mask:0xf bank_mask:0xf")
    p("v_readlane_b32 s3, v61, 0"); p("v_readlane_b32 s7, v61, 16"); p("s_max_u32 s3, s3, s7")
    p("v_readlane_b32 s7, v61, 32"); p("s_max_u32 s3, s3, s7")
    p("v_readlane_b32 s7, v61, 48"); p("s_max_u32 s65, s3, s7")
    p("v_mul_f32 v60, s65, v60")
    p(f"v_cmp_nge_f32 vcc, {hx(f2u(THRESH*THRESH/(1.02*1.02)))}, v60")
    p("s_cmp_lg_u64 vcc, 0")
    p("s_cbranch_scc1 L_slow")
    vm.wait(('K',0))
    p(QK(SB[0],0,QB[0],False))
    stamp(p,'B first',vt=200)
    import copy
    SLOW.append(vm)
    vm=copy.copy(vm); vm.pos=dict(vm.pos)
    att_pass(p,0,first=True,vm=vm)
    vm.wait(('V',15,1))
    stamp(p,'B pass0',vt=200)
    ev={}; spread(ev,wo_dma_groups(vm),1,9,poss=(4,11))
    if 'xcc' in OPT:
        class NV:
            def issue(s_,k,t): p(t)
        ev.setdefault(0,[]).append((4,lambda: xcc_publish(p,NV())))
    att_pass(p,1,vm=vm,ev=ev)
    ev={}
    if 'warm' in OPT:
        for n,(t,sr,off) in enumerate(((0,SRD_A,0),(1,SRD_B,0),(2,SRD_A,4096),(3,SRD_B,4096))):
            g=[('m',('WARM',n),f"buffer_load_dword v49, v50, {sr}, s78 offen ; nowaitcheck")]
            if n==2: g=[('s',"s_add_u32 s78, s78, 4096")]+g
            ev.setdefault(t,[]).append((11,g))
    spread(ev,w1_setup(),4,13,poss=(1,4,8,11,14,17))
    att_pass(p,0,vm=vm,ev=ev)
    ev={0:[(0,lambda: vm.wait(('XR',1))),(0,"s_barrier")]}
    spread(ev,wo_frag_reads(),0,12,poss=(1,4,8,11,14))
    att_pass(p,1,vm=vm,ev=ev)
    ev={0:[(0,"s_barrier")]}
    spread(ev,w1_dma(0)+w1_dma(1)+w1_dma(2),1,9,poss=(4,11))
    att_pass(p,0,vm=vm,ev=ev)
    ev={}
    if 'pt' in OPT:
        ev[2]=[(4,[('m',('PT',0),f"buffer_load_dword v49, v51, {SRD_WS}, s82 offen ; nowaitcheck")])]
        ev[6]=[(4,[('m',('PT',1),f"buffer_load_dword v49, v51, {SRD_WS}, s83 offen ; nowaitcheck")])]
        ev[10]=[(4,[('s',"s_mov_b64 exec, 3"),('m',('PT',2),f"buffer_load_dword v49, v51, {SRD_WS}, s84 offen ; nowaitcheck"),('s',"s_mov_b64 exec, -1")])]
    att_pass(p,1,vm=vm,ev=ev)
    ev={}
    if 'codepf2' in OPT:
        NL=int(os.environ.get('PF2_LINES','4'))
        def pf2():
            p("s_getpc_b64 s[84:85]")
            p.label("PF2_HERE")
            p("s_lshr_b32 s3, s2, 3"); p("s_lshl_b32 s3, s3, 2"); p("s_add_u32 s3, s3, s6"); p(f"s_mul_i32 s3, s3, {NL*64}")
            p(f"v_and_b32 v50, {NL-1}, v0"); p("v_lshlrev_b32 v50, 6, v50"); p("v_add_u32 v50, s3, v50")
            p("v_add_u32 v50, L_att_tail-PF2_HERE, v50")
            p("v_min_u32 v50, END_K-PF2_HERE-4, v50")
            p(f"s_mov_b64 exec, {(1<<NL)-1}")
            vm.issue(('PF2',0),"global_load_dword v49, v50, s[84:85] ; nowaitcheck")
            p("s_mov_b64 exec, -1")
        ev[PF2_T]=[(4,pf2)]
    if 'wdatt' in OPT:
        g=[('s',f"s_mov_b32 s24, s{P_WD}"),('s',f"s_mov_b32 s25, s{P_WD+1}"),('s',f"s_mov_b32 s26, {hx(1376*1024)}"),
           ('s',"s_lshr_b32 s79, s2, 3"),('s',"s_lshl_b32 s79, s79, 2"),('s',"s_add_u32 s79, s79, s6"),('s',"s_mul_i32 s79, s79, 11008"),('s',"v_lshlrev_b32 v51, 6, v0")]
        ev.setdefault(0,[]).append((4,g))
        for n in range(3):
            g=[('m',('WDW',n),f"buffer_load_dword v49, v51, {SRD_O}, s79 offen ; nowaitcheck")]
            if n<2: g.append(('s',"s_add_u32 s79, s79, 4096"))
            ev.setdefault(1+2*n,[]).append((11,g))
    if 'xcc' in OPT: ev.setdefault(12,[]).append((4,lambda: xcc_load(p,vm)))
    att_pass(p,0,vm=vm,ev=ev)
    att_pass(p,1,vm=vm)
    p.label("L_att_tail")
    p(PV(OB[1],VA+8*15+4,SB[1]+8))
    slot_write(p,OB[1])
    p.label("L_att_done")
    stamp(p,'B loop done',vt=14)
    p("s_mul_i32 s3, s6, 18432"); p(f"s_add_u32 s3, s3, {OP}")
    p("v_add_u32 v118, s3, v9")
    p("s_add_u32 s3, s3, 2048")
    p("v_lshl_add_u32 v119, v0, 2, s3")
    p("s_lshr_b32 s3, s6, 1"); p("s_lshl_b32 s7, s4, 1"); p("s_add_u32 s3, s3, s7"); p("s_lshl_b32 s3, s3, 5")
    p("s_lshl_b32 s7, s5, 2"); p("s_add_u32 s3, s3, s7")
    p("s_and_b32 s7, s6, 1"); p("s_lshl_b32 s7, s7, 1"); p("s_add_u32 s3, s3, s7")
    p("s_lshl_b32 s3, s3, 10"); p(f"s_add_u32 s63, s3, {L.OF}")
    p("s_waitcnt vmcnt(0) lgkmcnt(0)")
    p("s_barrier")
    if 'xcc' in OPT: xcc_check(p)
    def rds(jj):
        for ww in range(4):
            b=16+(jj*4+ww)*8; off=jj*9216+ww*2304
            p(f"ds_read_b128 v[{b}:{b+3}], v118 offset:{off}")
            p(f"ds_read_b128 v[{b+4}:{b+7}], v118 offset:{off+1024}")
            p(f"ds_read_b32 v{80+jj*4+ww}, v119 offset:{off}")
    rds(0)
    for jj in range(2):
        b=16+jj*32; sb=80+jj*4; O=96+10*jj
        if jj==0:
            p("s_waitcnt lgkmcnt(6)")
            for j in range(4): p(f"v_pk_add_f32 v[{b+2*j}:{b+2*j+1}], v[{b+2*j}:{b+2*j+1}], v[{b+8+2*j}:{b+8+2*j+1}]")
            p(f"v_add_f32 v{sb}, v{sb}, v{sb+1}")
            rds(1)
            p("s_waitcnt lgkmcnt(12)")
        else:
            p("s_waitcnt lgkmcnt(6)")
            for j in range(4): p(f"v_pk_add_f32 v[{b+2*j}:{b+2*j+1}], v[{b+2*j}:{b+2*j+1}], v[{b+8+2*j}:{b+8+2*j+1}]")
            p(f"v_add_f32 v{sb}, v{sb}, v{sb+1}")
            p("s_waitcnt lgkmcnt(0)")
        for j in range(4):
            p(f"v_pk_add_f32 v[{b+16+2*j}:{b+16+2*j+1}], v[{b+16+2*j}:{b+16+2*j+1}], v[{b+24+2*j}:{b+24+2*j+1}]")
        p(f"v_add_f32 v{sb+2}, v{sb+2}, v{sb+3}")
        for j in range(4):
            p(f"v_pk_add_f32 v[{O+2*j}:{O+2*j+1}], v[{b+2*j}:{b+2*j+1}], v[{b+16+2*j}:{b+16+2*j+1}]")
        p(f"v_add_f32 v{O+8}, v{sb}, v{sb+2}")
        o_store(p,O,jj)

SLOW=[]
def attention_slow(p):
    vm=SLOW[0]
    p.label("L_slow")
    if 'xcc' in OPT: xcc_publish(p,vm)
    for j in range(4,16): ldK(p,vm,j)
    for j in range(3,16): ldV(p,vm,j)
    for g in wo_dma_groups(vm): emit_group(p,vm,g)
    p("s_waitcnt vmcnt(0)")
    p("s_barrier")
    for x in wo_frag_reads(): p(x)
    for x in w1_setup():
        if isinstance(x,list): emit_group(p,vm,x)
        else: p(x)
    p("s_waitcnt lgkmcnt(0)")
    p("s_barrier")
    for g in w1_dma(0)+w1_dma(1)+w1_dma(2): emit_group(p,vm,g)
    p("s_mov_b32 s64, 0")
    p.label("L_mx")
    p("s_lshl_b32 s3, s64, 10")
    p("v_add_u32 v120, s3, v59")
    p(f"ds_read_b128 v[{QB[1]}:{QB[1]+3}], v120")
    p("v_mov_b32 v121, 0xff800000")
    p("s_waitcnt lgkmcnt(0)")
    p(QK(SB[0],0,QB[1],False))
    for t in range(16):
        S=SB[t%2]; Sn=SB[(t+1)%2]
        if t<15: p(QK(Sn,t+1,QB[1],False))
        for j in range(8): p(f"v_max3_f32 v121, v{S+2*j}, v{S+2*j+1}, v121")
    p("v_mov_b32 v122, v121")
    p("v_permlane32_swap_b32 v121, v122")
    p("v_max_f32 v121, v121, v122")
    p("s_lshl_b32 s3, s64, 9"); p("s_lshl_b32 s7, s6, 7"); p("s_add_u32 s3, s3, s7")
    p("v_and_b32 v122, 31, v0")
    p("v_lshl_add_u32 v122, v122, 2, s3")
    p(f"v_add_u32 v122, {MX}, v122")
    p(f"ds_write_b32 v122, v121")
    p("s_add_u32 s64, s64, 1"); p("s_cmp_lt_u32 s64, 8"); p("s_cbranch_scc1 L_mx")
    p("s_waitcnt lgkmcnt(0)")
    p("s_barrier")
    p("v_and_b32 v122, 31, v0"); p("v_lshlrev_b32 v122, 2, v122")
    p("s_lshl_b32 s3, s6, 10"); p(f"s_add_u32 s3, s3, {MX}"); p("v_add_u32 v122, s3, v122")
    for qq in range(2):
        for ww in range(4): p(f"ds_read_b32 v{16+4*qq+ww}, v122 offset:{qq*512+ww*128}")
    p("s_waitcnt lgkmcnt(0)")
    p("s_lshl_b32 s3, s6, 9"); p(f"s_add_u32 s3, s3, {MF}")
    p("v_lshl_add_u32 v122, v0, 2, s3")
    for qq in range(2):
        b=16+4*qq
        p(f"v_max3_f32 v{b}, v{b}, v{b+1}, v{b+2}"); p(f"v_max_f32 v{b}, v{b}, v{b+3}"); p(f"v_sub_f32 v{b}, 0, v{b}")
        p(f"ds_write_b32 v122, v{b} offset:{qq*256}")
    p("s_waitcnt lgkmcnt(0)")
    p("s_barrier")
    p(f"v_lshlrev_b32 v120, 2, v0"); p(f"v_add_u32 v120, {MF}, v120")
    p(f"ds_read_b32 v121, v120")
    p("v_add_u32 v120, 256, v120")
    p("s_waitcnt lgkmcnt(0)")
    for j in range(16): p(f"v_mov_b32 v{CB+j}, v121")
    p(QK(SB[0],0,QB[0],True))
    att_pass_slow(p)
    if 'xcc' in OPT: xcc_load(p,vm)
    p("s_branch L_att_done")

def att_pass_slow(p):
    att_pass(p,0,first=True,slow=True,vm=None)
    p("s_mov_b32 s64, 4")
    p("s_branch L_sttY")
    p.label("L_sttX")
    att_pass(p,0,slow=True)
    p.label("L_sttY")
    att_pass(p,1,slow=True)
    p("s_sub_u32 s64, s64, 1")
    p("s_cmp_lg_u32 s64, 0")
    p("s_cbranch_scc1 L_sttX")
    p(PV(OB[1],VA+8*15+4,SB[1]+8))
    slot_write(p,OB[1])

def w1_setup():
    F=[]; p=F.append
    p("s_and_b32 s3, s4, 1"); p("s_lshl_b32 s3, s3, 3"); p("s_add_u32 s3, s3, s5")
    p("s_min_u32 s7, s3, 11"); p("s_lshl_b32 s7, s7, 1"); p("s_lshl_b32 s66, s3, 2"); p("s_add_u32 s66, s66, s7")
    p("s_cmp_lt_u32 s3, 11"); F[-1]=[('s',"s_cmp_lt_u32 s3, 11"),('s',"s_cselect_b32 s67, 6, 4")]
    for i in range(3):
        p(f"v_add_u32 v11, {64*i}, v0")
        p("v_mul_u32_u24 v12, 5462, v11"); p("v_lshrrev_b32 v12, 16, v12")
        p("v_mul_u32_u24 v13, 12, v12"); p("v_sub_u32 v13, v11, v13")
        p("v_mul_u32_u24 v12, 2752, v12")
        if i: p(f"v_subrev_u32 v12, {1024*i}, v12")
        p(f"v_lshl_add_u32 v{2+i}, v13, 4, v12")
        p("v_add_u32 v13, 10, v13"); p("v_subrev_u32 v14, 12, v13"); p("v_min_u32 v13, v13, v14")
        p(f"v_lshl_add_u32 v{5+i}, v13, 4, v12")
    p(f"s_mul_i32 s68, s6, {16*2752}"); p("s_lshl_b32 s3, s66, 5"); p("s_add_u32 s68, s68, s3")
    p("s_mul_i32 s69, s6, 3072")
    return F
assert all((c*5462)>>16==c//12 for c in range(192))

def w1_dma(q):
    slot=q%6
    out=[]
    for mat in range(2):
        for i in range(3):
            g=[]
            if i==0: g.append(('s',f"s_add_u32 m0, s69, {slot*SLOT+mat*12288}"))
            if i==0 and mat==0: g.append(('s',f"s_add_u32 s71, s68, {q*64*2752}"))
            g.append(('m',('W1',q,3*mat+i),f"buffer_load_dwordx4 v{2+3*mat+i}, {SRD_A if mat==0 else SRD_B}, s71 offen offset:{i*1024} lds"))
            out.append(g)
    return out

WOA=128
def wo_frag_reads():
    out=[]
    for i in range(16):
        for cc,va in enumerate(('v10','v1')):
            b=WOA+8*i+4*cc
            out.append(f"ds_read_b64_tr_b16 v[{b}:{b+1}], {va} offset:{i*2048}")
            out.append(f"ds_read_b64_tr_b16 v[{b+2}:{b+3}], {va} offset:{i*2048+512}")
    return out

def wo_phase(p):
    p("s_waitcnt vmcnt(0)")
    flag_off(p,F2); set_flag(p,'s3',12)
    stamp(p,'C flag set',vt=14)
    p("s_barrier")
    p("v_and_b32 v12, 31, v0"); p("v_lshlrev_b32 v12, 2, v12")
    p("s_lshl_b32 s30, s4, 7"); p(f"s_add_u32 s30, s30, {F2}")
    p("s_lshl_b32 s31, s61, 5"); p("s_and_b32 s3, s6, 1"); p("s_lshl_b32 s3, s3, 4"); p("s_add_u32 s31, s31, s3")
    p("s_lshl_b32 s31, s31, 10"); p(f"s_add_u32 s31, s31, {L.OF}")
    poll(p,'s2',SRD_WS,'s30','v12',1,13)
    stamp(p,'C S2 done',vt=14)
    vm=VM(p)
    for i in range(16):
        if i%4==0 and i: p(f"s_add_u32 s31, s31, 4096")
        vm.issue(i,f"buffer_load_dwordx4 a[{4*i}:{4*i+3}], v9, {SRD_WS}, s31 offen offset:{(i%4)*1024}{HL1}")
    ACC=[64,80]
    dm=w1_dma(3)+w1_dma(4)+w1_dma(5)
    for j in range(8): p(f"v_accvgpr_read_b32 v{112+j}, a{192+j}")
    for i in range(16):
        vm.wait(i)
        for cc in range(2):
            a=ACC[cc]; b=WOA+8*i+4*cc
            p(f"v_mfma_f32_32x32x16_bf16 v[{a}:{a+15}], v[{b}:{b+3}], a[{4*i}:{4*i+3}], {'0' if i==0 else f'v[{a}:{a+15}]'}")
            if dm and (cc==0 or i<2): emit_group(p,vm,dm.pop(0))
    assert not dm
    for j in range(8):
        p(f"v_lshlrev_b32 v{96+2*j}, 16, v{112+j}")
        p(f"v_and_b32 v{97+2*j}, 0xffff0000, v{112+j}")
    stamp(p,'C mfma',vt=14)
    pair_reduce(p,ACC,RED)
    for j in range(8): p(f"v_pk_add_f32 v[{64+2*j}:{65+2*j}], v[{64+2*j}:{65+2*j}], v[{96+2*j}:{97+2*j}]")
    for j in range(8): p(f"v_cvt_pk_bf16_f32 v{32+j}, v{64+2*j}, v{65+2*j}")
    p("s_lshl_b32 s3, s61, 5"); p("s_lshl_b32 s7, s62, 1"); p("s_add_u32 s3, s3, s7"); p("s_lshl_b32 s3, s3, 10"); p(f"s_add_u32 s3, s3, {L.HF}")
    hstore(p,[f"buffer_store_dwordx4 v[32:35], v9, {SRD_WS}, s3 offen",
              f"buffer_store_dwordx4 v[36:39], v9, {SRD_WS}, s3 offen offset:1024"])
    p("v_pk_mul_f32 v[42:43], v[64:65], v[64:65]"); p("v_pk_add_f32 v[40:41], v[64:65], v[66:67]")
    p("v_pk_fma_f32 v[42:43], v[66:67], v[66:67], v[42:43]")
    for j in range(2,8):
        p(f"v_pk_add_f32 v[40:41], v[40:41], v[{64+2*j}:{65+2*j}]"); p(f"v_pk_fma_f32 v[42:43], v[{64+2*j}:{65+2*j}], v[{64+2*j}:{65+2*j}], v[42:43]")
    p("v_add_f32 v40, v40, v41"); p("v_add_f32 v41, v42, v43")
    p("v_mov_b32 v42, v40"); p("v_mov_b32 v43, v41")
    p("v_permlane32_swap_b32 v40, v42"); p("v_permlane32_swap_b32 v41, v43")
    p("v_add_f32 v40, v40, v42"); p("v_add_f32 v41, v41, v43")
    p("s_lshl_b32 s3, s61, 12"); p("s_lshl_b32 s7, s62, 8"); p("s_add_u32 s3, s3, s7"); p(f"s_add_u32 s3, s3, {L.HS}")
    p("v_lshlrev_b32 v12, 3, v0")
    p("s_mov_b32 exec_hi, 0")
    hstore(p,f"buffer_store_dwordx2 v[40:41], v12, {SRD_WS}, s3 offen")
    p("s_mov_b64 exec, -1")
    for j in range(8): p(f"v_accvgpr_write_b32 a{248+j}, v{32+j}")
    flag_off(p,F3)
    p("s_waitcnt vmcnt(0)")
    set_flag(p,'s3',12)
    stamp(p,'C done',vt=14)

def flag_off(p,F):
    p("s_lshl_b32 s3, s4, 7"); p("s_lshl_b32 s7, s5, 4"); p("s_add_u32 s3, s3, s7"); p("s_lshl_b32 s7, s6, 2"); p("s_add_u32 s3, s3, s7")
    p(f"s_add_u32 s3, s3, {F}")

def pair_reduce(p,ACC,base):
    p(f"s_lshl_b32 s3, s6, 12"); p(f"s_add_u32 s3, s3, {base}")
    p("v_add_u32 v12, s3, v9")
    for q in range(4): p(f"ds_write_b128 v12, v[{ACC[1]+4*q}:{ACC[1]+4*q+3}] offset:{q*1024}")
    p("v_xor_b32 v12, 4096, v12")
    p("s_waitcnt lgkmcnt(0)")
    p("s_barrier")
    for q in range(4): p(f"ds_read_b128 v[{ACC[1]+4*q}:{ACC[1]+4*q+3}], v12 offset:{q*1024}")
    for q in range(4):
        p(f"s_waitcnt lgkmcnt({3-q})")
        for j in range(2):
            a=ACC[0]+4*q+2*j; b=ACC[1]+4*q+2*j
            p(f"v_pk_add_f32 v[{a}:{a+1}], v[{a}:{a+1}], v[{b}:{b+1}]")

def ffn1_phase(p):
    p("s_lshr_b32 s70, s4, 1"); p("s_lshl_b32 s70, s70, 2"); p("s_add_u32 s70, s70, s6")
    lane_params(p)
    p("v_mul_u32_u24 v10, 192, v14"); p("v_add_u32 v10, v10, v96")
    p(f"v_mul_u32_u24 v97, {12288+32}, v15"); p("v_add_u32 v28, v10, v97")
    p(f"v_mul_u32_u24 v97, {12288+32-192}, v15"); p("v_add_u32 v29, v10, v97")
    p("v_and_b32 v12, 31, v0"); p("v_lshlrev_b32 v12, 3, v12"); p("v_lshrrev_b32 v13, 5, v0"); p("v_lshl_add_u32 v30, v13, 11, v12")
    p("v_lshlrev_b32 v12, 2, v0")
    p("s_lshr_b32 s30, s4, 1"); p("s_lshl_b32 s30, s30, 8"); p(f"s_add_u32 s30, s30, {F3}")
    poll(p,'s3',SRD_WS,'s30','v12',1,13)
    stamp(p,'D S3 done',vt=12)
    srd(p,24,P_WD,1376*1024)
    p("s_lshr_b32 s79, s2, 3"); p("s_lshl_b32 s79, s79, 2"); p("s_add_u32 s79, s79, s6"); p("s_mul_i32 s79, s79, 11008")
    p("v_lshlrev_b32 v14, 6, v0")
    vm=VM(p)
    p("s_lshl_b32 s30, s70, 15"); p(f"s_add_u32 s30, s30, {L.HF}")
    def ldB(s):
        p(f"s_add_u32 s3, s30, {s*1024}")
        vm.issue(('B',s),f"buffer_load_dwordx4 v[{128+4*s}:{131+4*s}], v9, {SRD_WS}, s3 offen{HL1}")
    p("s_lshl_b32 s31, s70, 12"); p(f"s_add_u32 s31, s31, {L.HS}")
    ldB(0)
    for i in range(8): vm.issue(('S',i),f"buffer_load_dwordx2 v[{32+2*i}:{33+2*i}], v30, {SRD_WS}, s31 offen offset:{i*256}{HL1}")
    LA=8
    for s in range(1,LA): ldB(s)
    p("s_barrier")
    AB=[0,24]
    def rdA(s):
        q,ss=divmod(s,4); b=AB[s%2]; out=[]
        for uu in range(6):
            va='v10' if uu<5 else 'v11'
            off=ss*3072+uu*32
            out.append(f"ds_read_b64_tr_b16 a[{b+4*uu}:{b+4*uu+1}], {va} offset:{off}")
            out.append(f"ds_read_b64_tr_b16 a[{b+4*uu+2}:{b+4*uu+3}], {va} offset:{off+768}")
        return out
    def setbase(q):
        slot=q%6
        return [f"v_add_u32 v10, {slot*SLOT}, v28", f"v_add_u32 v11, {slot*SLOT}, v29"]
    for x in setbase(0): p(x)
    for x in rdA(0): p(x)
    vm.wait(('S',7))
    for i in range(2):
        p(f"v_pk_add_f32 v[{32+4*i}:{33+4*i}], v[{32+4*i}:{33+4*i}], v[{34+4*i}:{35+4*i}]")
        p(f"v_pk_add_f32 v[{40+4*i}:{41+4*i}], v[{40+4*i}:{41+4*i}], v[{42+4*i}:{43+4*i}]")
    p("v_pk_add_f32 v[32:33], v[32:33], v[36:37]"); p("v_pk_add_f32 v[40:41], v[40:41], v[44:45]")
    p("v_pk_add_f32 v[16:17], v[32:33], v[40:41]")
    p("v_mov_b32 v18, v16"); p("v_mov_b32 v19, v17")
    p("v_permlane32_swap_b32 v16, v18"); p("v_permlane32_swap_b32 v17, v19")
    p("v_add_f32 v16, v16, v18"); p("v_add_f32 v17, v17, v19")
    p(f"v_mul_f32 v16, {hx(f2u(1/512))}, v16"); p(f"v_mul_f32 v17, {hx(f2u(1/512))}, v17")
    p("v_fma_f32 v17, -v16, v16, v17"); p("v_max_f32 v17, 0, v17"); p(f"v_add_f32 v17, {hx(f2u(1e-5))}, v17")
    p("v_rsq_f32 v17, v17"); p("v_mul_f32 v16, v16, v17"); p("v_sub_f32 v18, 0, v16"); p("v_mov_b32 v19, v18"); p("v_mov_b32 v16, v17")
    def norm(s):
        out=[]
        if 'pknorm' in OPT:
            for i in range(4):
                r=128+4*s+i; t0=20+2*i; t1=21+2*i
                out.append(f"v_lshlrev_b32 v{t0}, 16, v{r}"); out.append(f"v_and_b32 v{t1}, 0xffff0000, v{r}")
            for i in range(4):
                t0=20+2*i
                out.append(f"v_pk_fma_f32 v[{t0}:{t0+1}], v[{t0}:{t0+1}], v[16:17], v[18:19]")
            for i in range(4):
                r=128+4*s+i; t0=20+2*i; t1=21+2*i
                out.append(f"v_cvt_pk_bf16_f32 v{r}, v{t0}, v{t1}")
            return out
        for h2 in range(2):
            for i in (2*h2,2*h2+1):
                r=128+4*s+i; t0=20+2*i; t1=21+2*i
                out.append(f"v_lshlrev_b32 v{t0}, 16, v{r}"); out.append(f"v_and_b32 v{t1}, 0xffff0000, v{r}")
            for i in (2*h2,2*h2+1):
                t0=20+2*i; t1=21+2*i
                out.append(f"v_fma_f32 v{t0}, v{t0}, v16, v18"); out.append(f"v_fma_f32 v{t1}, v{t1}, v16, v18")
            for i in (2*h2,2*h2+1):
                r=128+4*s+i; t0=20+2*i; t1=21+2*i
                out.append(f"v_cvt_pk_bf16_f32 v{r}, v{t0}, v{t1}")
        return out
    vm.wait(('B',0))
    for x in norm(0): p(x)
    stamp(p,'D start',vt=12)
    ACC=[32+16*u for u in range(6)]
    dmas=w1_dma(6)+w1_dma(7)
    for s in range(32):
        nxt=s+1
        pre=[]; rd=[]; fill=[]; mem=[]
        if s==8:
            p("s_barrier")
        if B2:
            for j in (LA+2*s,LA+2*s+1):
                if j<32: mem.append(('B',j))
        elif s+LA<32: mem.append(('B',s+LA))
        if 8<=s<20: mem.append(('D',s-8))
        if 'warm' in OPT and 'wdatt' not in OPT and WD_STEP<=s<WD_STEP+3: mem.append(('W',s-WD_STEP))
        if 'pt' in OPT and s==PT_STEP: mem.append(('P',0))
        if nxt<32:
            qn,ssn=divmod(nxt,4)
            if nxt==24:
                vm.wait(('W1',7,5))
                p("s_barrier")
            if ssn==0: pre=setbase(qn)
            rd=rdA(nxt); fill=norm(nxt)
        if 'x_nofill' in OPT: fill=[]
        if 'x_nord' in OPT: rd=[]
        if 'x_nodma' in OPT and s!=19: mem=[m for m in mem if m[0]!='D']
        if 'x_nodma' in OPT and s==19: mem=[('B',s+LA)]; vm.pos[('W1',7,5)]=vm.n-1
        if 'oldwait' in OPT: p("s_waitcnt lgkmcnt(0)")
        for x in pre: p(x)
        if nxt<32: vm.wait(('B',nxt))
        b=AB[s%2]
        mf=[f"v_mfma_f32_32x32x16_bf16 v[{ACC[uu]}:{ACC[uu]+15}], a[{b+4*uu}:{b+4*uu+3}], v[{128+4*s}:{131+4*s}], {'0' if s==0 else f'v[{ACC[uu]}:{ACC[uu]+15}]'}" for uu in range(6)]
        fi=0
        KS=[3,3,3,3,2,2] if 'pknorm' in OPT else [3,4,3,3,4,3]
        for uu in range(6):
            if 'oldwait' not in OPT:
                if 'wait6' in OPT: p(f"s_waitcnt lgkmcnt({10 if nxt<32 else 2*(5-uu)})")
                elif uu in (0,3): p(f"s_waitcnt lgkmcnt({6 if (nxt<32 or uu==0) else 0})")
            p(mf[uu])
            for x in rd[2*uu:2*uu+2]: p(x)
            k=KS[uu]
            for x in fill[fi:fi+k]: p(x)
            fi+=k
            if uu==1 and mem and mem[0][0]=='B': ldB(mem[0][1])
            if uu==4 and len(mem)>1 and mem[1][0]=='B': ldB(mem[1][1])
            if uu==3:
                for m in mem:
                    if m[0]=='D':
                        emit_group(p,vm,dmas[m[1]])
                    if m[0]=='P':
                        p("s_mul_i32 s3, s70, 86"); p("s_add_u32 s3, s3, s66"); p("s_lshl_b32 s3, s3, 10"); p(f"s_add_u32 s3, s3, {L.AF}")
                        p("v_lshlrev_b32 v13, 7, v0"); p("s_lshl_b32 s7, s67, 3"); p("s_bfm_b64 exec, s7, 0")
                        vm.issue(('P',0),f"buffer_load_dword v15, v13, {SRD_WS}, s3 offen ; nowaitcheck")
                        p("s_mov_b64 exec, -1")
                    if m[0]=='W':
                        p(f"s_add_u32 s3, s79, {m[1]*4096}")
                        vm.issue(('W',m[1]),f"buffer_load_dword v15, v14, {SRD_O}, s3 offen ; nowaitcheck")
        for x in fill[fi:]: p(x)
    stamp(p,'D mfma done',vt=12)
    p("v_lshrrev_b32 v1, 3, v0"); p("v_and_b32 v10, 7, v0")
    w128_voff(p,'v4')
    for j in range(1,4): p(f"v_add_u32 v{4+j}, {7168*j}, v4")
    p("s_lshr_b32 s3, s6, 1"); p("s_and_b32 s7, s6, 1")
    p(f"s_mul_i32 s30, s3, 81920"); p(f"s_mul_i32 s31, s7, 40960"); p("s_add_u32 s74, s30, s31")
    p(f"s_mul_i32 s75, s3, {43*16*1024}"); p(f"s_mul_i32 s31, s7, {320*1024}"); p("s_add_u32 s77, s31, s75")
    WD=dma128(['v4','v5','v6','v7'],SRD_O,'s74',0,'s77',40,sg='s71')
    p("s_barrier")
    c1=-2*1.4426950408889634*0.7978845608028654; c2=c1*0.044715
    p(f"s_mov_b32 s72, {hx(f2u(c2))}"); p("s_mov_b32 s73, s72")
    p(f"v_mov_b32 v28, {hx(f2u(c1))}"); p("v_mov_b32 v29, v28")
    p("v_mov_b32 v30, 1.0"); p("v_mov_b32 v31, 1.0")
    p("s_mul_i32 s30, s70, 86"); p("s_add_u32 s30, s30, s66"); p("s_lshl_b32 s30, s30, 10"); p(f"s_add_u32 s30, s30, {L.AF}")
    NDU=[8,8,8,8,4,4]
    k0=0
    for uu in range(6):
        a=ACC[uu]; T=16
        if uu==4:
            p("s_cmp_eq_u32 s67, 4"); p("s_cbranch_scc1 F1_four")
        pr=lambda x,j: f"v[{x+2*j}:{x+2*j+1}]"
        I=[]
        for j in range(4): I.append(f"v_pk_mul_f32 {pr(T,j)}, {pr(a,j)}, {pr(a,j)}")
        for j in range(4): I.append(f"v_pk_fma_f32 {pr(T,j)}, {pr(T,j)}, s[72:73], v[28:29]")
        for j in range(4): I.append(f"v_pk_mul_f32 {pr(T,j)}, {pr(T,j)}, {pr(a,j)}")
        for j in range(8): I.append(f"v_exp_f32 v{T+j}, v{T+j}")
        for j in range(4): I.append(f"v_pk_mul_f32 {pr(a,j)}, {pr(a,j)}, {pr(a+8,j)}")
        for j in range(4): I.append(f"v_pk_add_f32 {pr(T,j)}, {pr(T,j)}, v[30:31]")
        for j in range(8): I.append(f"v_rcp_f32 v{T+j}, v{T+j}")
        for j in range(4): I.append(f"v_pk_mul_f32 {pr(T,j)}, {pr(T,j)}, {pr(a,j)}")
        for j in range(4): I.append(f"v_cvt_pk_bf16_f32 v{24+j}, v{T+2*j}, v{T+2*j+1}")
        G=WD[k0:k0+NDU[uu]]; k0+=NDU[uu]
        gap=len(I)//len(G)
        for n,x in enumerate(I):
            p(x)
            if n%gap==gap-1 and G:
                for y in G.pop(0): p(y)
        assert not G
        hstore(p,f"buffer_store_dwordx4 v[24:27], v9, {SRD_WS}, s30 offen offset:{(uu%4)*1024}")
        if uu==3: p("s_add_u32 s30, s30, 4096")
    p("s_branch F1_done")
    p.label("F1_four")
    for g in WD[32:40]:
        for y in g: p(y)
    p.label("F1_done")
    stamp(p,'D epi done',vt=12)

def ffn2_phase(p):
    flag_off(p,F4)
    p("s_waitcnt vmcnt(0)")
    set_flag(p,'s3',12)
    stamp(p,'E flag set',vt=12)
    srd(p,16,P_WD,1376*1024)
    srd(p,24,P_OUT,2048*1024)
    lane_params(p)
    p("s_and_b32 s3, s6, 1"); p("s_lshl_b32 s3, s3, 2")
    tr_base128(p,'v10',"s3",0)
    p("s_and_b32 s3, s6, 1"); p("s_mul_i32 s3, s3, 81920")
    p("v_add_u32 v10, s3, v10")
    p("v_xor_b32 v11, 64, v10")
    p("v_lshlrev_b32 v12, 2, v0")
    p("s_lshr_b32 s30, s4, 1"); p("s_lshl_b32 s30, s30, 8"); p(f"s_add_u32 s30, s30, {F4}")
    poll(p,'s4',SRD_WS,'s30','v12',1,13)
    stamp(p,'E S4 done',vt=12)
    vm=VM(p)
    p("s_mul_i32 s31, s61, 86"); p("s_and_b32 s3, s6, 1"); p("s_mul_i32 s3, s3, 43"); p("s_add_u32 s31, s31, s3")
    p("s_lshl_b32 s31, s31, 10"); p(f"s_add_u32 s31, s31, {L.AF}")
    def ldB(i):
        p(f"s_add_u32 s3, s31, {i*1024}")
        vm.issue(('B',i),f"buffer_load_dwordx4 a[{4*i}:{4*i+3}], v9, {SRD_WS}, s3 offen{HL1}")
    LA=int(os.environ.get('LA2','12')); NS=43
    for i in range(LA): ldB(i)
    p("s_barrier")
    AB=[16+8*b for b in range(4)]
    ACC=[64,80]
    def rd(i):
        b=AB[i%4]
        j=i if i<40 else i-40
        off=j*2048
        va=('v10','v11')
        if 24<=i<40: va=('v14','v15'); off-=49152
        for cc in range(2):
            p(f"ds_read_b64_tr_b16 v[{b+4*cc}:{b+4*cc+1}], {va[cc]} offset:{off}")
            p(f"ds_read_b64_tr_b16 v[{b+4*cc+2}:{b+4*cc+3}], {va[cc]} offset:{off+512}")
    p("v_add_u32 v14, 49152, v10"); p("v_add_u32 v15, 49152, v11")
    p("s_and_b32 s7, s6, 1"); p("s_mul_i32 s3, s7, 3")
    p("s_lshl_b32 s76, s3, 13"); p("s_add_u32 s76, s76, s75"); p(f"s_add_u32 s76, s76, {40*16*1024}")
    p("s_lshl_b32 s77, s3, 10"); p("s_lshr_b32 s3, s6, 1"); p("s_mul_i32 s3, s3, 81920"); p("s_add_u32 s77, s77, s3")
    for i in range(3): rd(i)
    for i in range(NS):
        if i==4:
            p("s_barrier")
            for j in range(3):
                p(f"s_add_u32 m0, s77, {j*1024}"); p(f"s_add_u32 s3, s76, {j*8192}")
                vm.issue(('D',j),f"buffer_load_dwordx4 v4, {SRD_A}, s3 offen lds")
        if i==36:
            vm.wait(('D',2))
            p("s_barrier")
        if i+3<NS: rd(i+3)
        if i+LA<NS: ldB(i+LA)
        rem=min(3,NS-1-i)
        vm.wait(('B',i),extra=f" lgkmcnt({rem*4})")
        b=AB[i%4]
        for cc in range(2):
            a=ACC[cc]
            p(f"v_mfma_f32_32x32x16_bf16 v[{a}:{a+15}], v[{b+4*cc}:{b+4*cc+3}], a[{4*i}:{4*i+3}], {'0' if i==0 else f'v[{a}:{a+15}]'}")
    stamp(p,'E mfma',vt=12)
    pair_reduce(p,ACC,8192)
    for j in range(8): p(f"v_accvgpr_read_b32 v{32+j}, a{248+j}")
    for j in range(8):
        p(f"v_lshlrev_b32 v{96+2*j}, 16, v{32+j}")
        p(f"v_and_b32 v{97+2*j}, 0xffff0000, v{32+j}")
    for j in range(8): p(f"v_pk_add_f32 v[{64+2*j}:{65+2*j}], v[{64+2*j}:{65+2*j}], v[{96+2*j}:{97+2*j}]")
    for j in range(8): p(f"v_cvt_pk_bf16_f32 v{32+j}, v{64+2*j}, v{65+2*j}")
    p("s_lshl_b32 s3, s62, 6")
    p(f"buffer_store_dwordx4 v[32:35], v8, {SRD_O}, s3 offen")
    p(f"buffer_store_dwordx4 v[36:39], v8, {SRD_O}, s3 offen offset:32")

def build(fname):
    p=Prog()
    end="END_K"
    prologue(p,end)
    stamp(p,'start')
    phase_a(p)
    attention(p)
    wo_phase(p)
    ffn1_phase(p)
    ffn2_phase(p)
    stamp(p,'end',vt=12)
    p.label(end)
    p("s_endpgm")
    attention_slow(p)
    emit_outl(p)
    ins=p.finalize(name='k',check_waits=not os.environ.get('NOCHECK'))
    print(f"{len(ins)} lines, {p.nops} hazard nops",file=sys.stderr)
    ref=open('sequential_preLN__grouped_kv_mqa__geglu_ffn__prompt.s.ref').read()
    hdr=ref.split('; Override')[0]
    out=hdr+f"; @launch grid=(256,1,1) block=(256,1,1) lds={LDS_TOTAL}\n"
    out+='.amdgcn_target "amdgcn-amd-amdhsa--gfx950"\n.text\n'
    out+=f".globl {KNAME}\n.p2align 8\n.type {KNAME},@function\n{KNAME}:\n"+render(ins)
    out+=f""".section .rodata,"a"
.p2align 6
.amdhsa_kernel {KNAME}
  .amdhsa_next_free_vgpr 512
  .amdhsa_next_free_sgpr 96
  .amdhsa_accum_offset 256
  .amdhsa_group_segment_fixed_size 0
  .amdhsa_kernarg_size 96
  .amdhsa_user_sgpr_count 2
  .amdhsa_user_sgpr_kernarg_segment_ptr 1
  .amdhsa_system_sgpr_workgroup_id_x 1
.end_amdhsa_kernel
"""
    open(fname,'w').write(out)

if __name__=='__main__':
    out=sys.argv[1]
    if len(sys.argv)>2: PROFILE=True
    build(out)
    open(out+'.stamps','w').write('\n'.join(STAMPS))
    if DSTAMPS: print(DSTAMPS)
```

```python
import sys, os, struct
from asm import Prog, render
import layout as L

OPT=set(x for x in os.environ.get('OPT','').split(',') if x)
KNAME='sequential_preLN__grouped_kv_mqa__geglu_ffn__prompt_kernel'
QSCALE=1.4426950408889634/4.0
def f2u(x): return struct.unpack('<I',struct.pack('<f',x))[0]
def hx(x): return '0x%08x'%(x & 0xffffffff)

SRD_WS='s[8:11]'; SRD_X='s[12:15]'; SRD_A='s[16:19]'; SRD_B='s[20:23]'; SRD_O='s[24:27]'; SRD_D='s[56:59]'
P_X,P_WQ,P_WK,P_WV,P_WO,P_WG,P_WU,P_WD,P_OUT,P_WS,P_DBG=32,34,36,38,40,44,46,48,50,52,54
SPIN=1<<17

XH0=0; XH1=33792; WQ=67584; WK=XH1; WV=XH1+16384+128
WO_L=0; OP=73728; QL=147456; MX=155648; MF=MX+4096; QM=161792
SLOT=24576; RED=147456
LDS_TOTAL=163840
F2=L.FLG; F3=L.FLG+4096; F4=L.FLG+8192; FX=L.FLG+12288

def srd(p, d, ptr, size):
    p(f"s_mov_b32 s{d}, s{ptr}")
    p(f"s_mov_b32 s{d+1}, s{ptr+1}")
    p(f"s_mov_b32 s{d+2}, {hx(size)}")
    p(f"s_mov_b32 s{d+3}, 0x20000")
def csel(p,d,a,b):
    p(f"s_mov_b32 {d}, {b}"); p(f"s_cmov_b32 {d}, {a}")

PROFILE=False
HL1=' nt' if 'ldnt' in OPT else ('' if 'ldpl' in OPT else (' sc0' if 'ldsc0' in OPT else ' sc1'))
HS1='' if 'l2h' in OPT else ' sc1'
PF_N=int(os.environ.get('PF_N','3'))
PT_STEP=int(os.environ.get('PT_STEP','24'))
FLG_CLR=208
WD_STEP=int(os.environ.get('WD_STEP','24'))
B2='b2' in OPT
PF2_T=int(os.environ.get('PF2_T','8'))
GO_STEP=int(os.environ.get('GO_STEP','16'))
STAMPS=[]
DSTAMPS=[]
def dstamp(p,name,vt):
    slot=len(DSTAMPS)
    if slot>=16: return
    DSTAMPS.append(name)
    lab=f"DST_{slot}_{len(p.lines)}"
    p("s_lshl_b32 s90, s2, 2"); p("s_or_b32 s90, s90, s6")
    p(f"s_cmp_lg_u32 s90, {int(os.environ.get('DWG','40'))*4}"); p(f"s_cbranch_scc1 {lab}")
    p("s_memrealtime s[90:91]")
    p("s_waitcnt lgkmcnt(0) ; nowaitcheck")
    p(f"v_mov_b32 v{vt}, s90"); p(f"v_mov_b32 v{vt+1}, {slot*4}")
    p("s_mov_b64 s[94:95], exec"); p("s_mov_b64 exec, 1")
    p(f"buffer_store_dword v{vt}, v{vt+1}, {SRD_D}, 0 offen")
    p("s_mov_b64 exec, s[94:95]")
    p.label(lab)
DSEL=os.environ.get('DSEL','').split(',')
def stamp(p, name, vt=250, dyn=None, n=1):
    if name in DSEL: dstamp(p,name,vt)
    if not PROFILE: return
    slot=len(STAMPS)
    for i in range(n): STAMPS.append(name+(f"[{i}]" if n>1 else ""))
    lab=f"ST_{slot}_{len(p.lines)}"
    p("s_cmp_lg_u32 s6, 0"); p(f"s_cbranch_scc1 {lab}")
    p("s_memrealtime s[90:91]")
    p("s_memtime s[88:89]")
    p("s_lshl_b32 s92, s2, 3"); p(f"s_add_u32 s92, s92, {L.PROF+slot*2048}")
    if dyn: p(f"s_lshl_b32 s93, {dyn}, 11"); p("s_add_u32 s92, s92, s93")
    p("s_waitcnt lgkmcnt(0) ; nowaitcheck")
    p(f"v_mov_b32 v{vt}, s90"); p(f"v_mov_b32 v{vt+1}, s88"); p(f"v_mov_b32 v{vt+2}, 0")
    p("s_mov_b64 s[94:95], exec"); p("s_mov_b64 exec, 1")
    p(f"buffer_store_dwordx2 v[{vt}:{vt+1}], v{vt+2}, {SRD_WS}, s92 offen")
    p("s_mov_b64 exec, s[94:95]")
    p.label(lab)

class VM:
    def __init__(s,p): s.p=p; s.n=0; s.pos={}
    def issue(s,key,txt):
        s.p(txt); s.pos[key]=s.n; s.n+=1
    def wait(s,*keys,extra=""):
        need=max(s.pos[k] for k in keys)
        c=s.n-1-need
        if c<=63: s.p(f"s_waitcnt vmcnt({c}){extra}")
        elif extra: s.p(f"s_waitcnt{extra}")

def poll(p, name, srd_, soff, vaddr, expect, vt, sleep=0):
    if PROFILE:
        p("s_waitcnt vmcnt(0)")
        stamp(p,name+' own dma',vt={'s1':200,'s4':100}.get(name,14))
    p(f"s_mov_b32 s29, {SPIN}")
    p.label(f"POLL_{name}")
    p(f"buffer_load_dword v{vt}, {vaddr}, {srd_}, {soff} offen sc1")
    p("s_waitcnt vmcnt(0)")
    p(f"v_cmp_ne_u32 vcc, {expect}, v{vt}")
    p("s_cmp_eq_u64 vcc, 0")
    p(f"s_cbranch_scc1 POLLD_{name}")
    if sleep: p(f"s_sleep {sleep}")
    p("s_sub_u32 s29, s29, 1")
    p("s_cmp_lg_u32 s29, 0")
    p(f"s_cbranch_scc1 POLL_{name}")
    p.label(f"POLLD_{name}")

OUTL=[]
def hstore(p, lines):
    if isinstance(lines,str): lines=[lines]
    if 'xcc' not in OPT:
        for x in lines: p(x+HS1)
        return
    k=len(OUTL)
    p("s_cmp_lg_u32 s43, 0"); p(f"s_cbranch_scc1 HST_{k}")
    for x in lines: p(x)
    p.label(f"HSB_{k}")
    OUTL.append((k,[x+' sc1' for x in lines]))
def emit_outl(p):
    for k,lines in OUTL:
        p.label(f"HST_{k}")
        for x in lines: p(x)
        p(f"s_branch HSB_{k}")

def set_flag(p, soff, vt):
    p(f"v_mov_b32 v{vt}, 1"); p(f"v_mov_b32 v{vt+1}, 0")
    p("s_mov_b64 exec, 1")
    hstore(p,f"buffer_store_dword v{vt}, v{vt+1}, {SRD_WS}, {soff} offen")
    p("s_mov_b64 exec, -1")

def prologue(p, end):
    p(f"s_cmp_ge_u32 s2, {0 if 'empty' in OPT else 256}")
    p(f"s_cbranch_scc1 {end}")
    p("s_load_dwordx4 s[32:35], s[0:1], 0")
    p("s_load_dwordx4 s[36:39], s[0:1], 16")
    p("s_load_dwordx2 s[40:41], s[0:1], 32")
    p("s_load_dwordx4 s[44:47], s[0:1], 48")
    p("s_load_dwordx4 s[48:51], s[0:1], 64")
    p("s_load_dwordx2 s[52:53], s[0:1], 88")
    p("s_load_dwordx2 s[54:55], s[0:1], 80")
    p("v_lshrrev_b32 v1, 6, v0")
    p("v_and_b32 v0, 63, v0")
    p("v_readfirstlane_b32 s6, v1")
    p("s_and_b32 s3, s2, 7")
    p("s_lshr_b32 s7, s2, 3")
    p("s_lshr_b32 s4, s7, 3")
    p("s_lshl_b32 s3, s3, 2")
    p("s_add_u32 s4, s4, s3")
    p("s_and_b32 s5, s7, 7")
    p("v_lshlrev_b32 v9, 4, v0")
    if 'codepf' in OPT:
        p("s_getpc_b64 s[60:61]")
        p.label("PF_HERE")
        p("s_lshl_b32 s3, s7, 2"); p("s_add_u32 s3, s3, s6"); p("s_lshl_b32 s3, s3, 9")
        p("v_and_b32 v231, 7, v0"); p("v_lshlrev_b32 v231, 6, v231")
        p("v_add_u32 v231, s3, v231")
        p(f"v_min_u32 v230, END_K-PF_HERE-4, v231")
        p("s_mov_b64 exec, 0xff")
        p(f"global_load_dword v232, v230, s[60:61] ; nowaitcheck")
        p("s_mov_b64 exec, -1")
    p("s_waitcnt lgkmcnt(0)")
    srd(p,8,P_WS,L.WS_USED)
    srd(p,56,P_DBG,256)

def ln_tile(p, X, vaddr, off, extra=None, write=True):
    U=176
    S,S2,Q,Q2=80,82,84,86
    I=[]
    a=I.append
    pr=lambda r: f"v[{r}:{r+1}]"
    for i in range(32):
        a(f"v_lshlrev_b32 v{U+2*i}, 16, v{X+i}")
        a(f"v_and_b32 v{U+2*i+1}, 0xffff0000, v{X+i}")
        if i>=1:
            k=i-1; u=U+2*k; sa=(S,S2)[k%2]; qa=(Q,Q2)[k%2]
            if k<2: a(f"v_pk_mul_f32 {pr(qa)}, {pr(u)}, {pr(u)}")
            else: a(f"v_pk_fma_f32 {pr(qa)}, {pr(u)}, {pr(u)}, {pr(qa)}")
            if k==2 or k==3: a(f"v_pk_add_f32 {pr(sa)}, {pr(U+2*(k-2))}, {pr(u)}")
            elif k>3: a(f"v_pk_add_f32 {pr(sa)}, {pr(sa)}, {pr(u)}")
    u=U+62
    a(f"v_pk_fma_f32 {pr(Q2)}, {pr(u)}, {pr(u)}, {pr(Q2)}")
    a(f"v_pk_add_f32 {pr(S2)}, {pr(S2)}, {pr(u)}")
    a(f"v_pk_add_f32 {pr(S)}, {pr(S)}, {pr(S2)}")
    a(f"v_pk_add_f32 {pr(Q)}, {pr(Q)}, {pr(Q2)}")
    S0,Q0='v80','v82'
    a(f"v_add_f32 v80, v80, v81")
    a(f"v_add_f32 v82, v84, v85")
    for d in ("quad_perm:[1,0,3,2]","quad_perm:[2,3,0,1]","row_half_mirror"):
        a(f"v_add_f32_dpp {S0}, {S0}, {S0} {d} row_mask:0xf bank_mask:0xf")
        a(f"v_add_f32_dpp {Q0}, {Q0}, {Q0} {d} row_mask:0xf bank_mask:0xf")
    a(f"v_mul_f32 {S0}, {hx(f2u(1/512))}, {S0}")
    a(f"v_mul_f32 {Q0}, {hx(f2u(1/512))}, {Q0}")
    a(f"v_fma_f32 {Q0}, -{S0}, {S0}, {Q0}")
    a(f"v_max_f32 {Q0}, 0, {Q0}")
    a(f"v_add_f32 {Q0}, {hx(f2u(1e-5))}, {Q0}")
    a(f"v_rsq_f32 v92, {Q0}")
    a(f"v_sub_f32 v94, 0, {S0}")
    a(f"v_mov_b32 v93, v92")
    a(f"v_mul_f32 v94, v94, v92")
    a(f"v_mov_b32 v95, v94")
    for cb in range(8):
        for i in range(4):
            u=U+2*(4*cb+i)
            a(f"v_pk_fma_f32 {pr(u)}, {pr(u)}, v[92:93], v[94:95]")
        for i in range(4):
            u=U+2*(4*cb+i)
            a(f"v_cvt_pk_bf16_f32 v{X+4*cb+i}, v{u}, v{u+1}")
        if write: a(f"ds_write_b128 {vaddr}, v[{X+4*cb}:{X+4*cb+3}] offset:{off+cb*4224}")
    extra=list(extra or [])
    gap=max(1,(len(I)-8)//max(1,len(extra))) if extra else 0
    for n,x in enumerate(I):
        p(x)
        if extra and n%gap==gap-1:
            for y in extra.pop(0): p(y)
    for g in extra:
        for y in g: p(y)
def ln_write(p, X, vaddr, off):
    for cb in range(8): p(f"ds_write_b128 {vaddr}, v[{X+4*cb}:{X+4*cb+3}] offset:{off+cb*4224}")

def dma128(vregs, srd_, sbase_lds, lds_off, sbase_g, n, sg='s31', nt=''):
    out=[]
    for i in range(n):
        j=i%4; g=[]
        if j==0:
            g.append(f"s_add_u32 m0, {sbase_lds}, {lds_off+i*1024}")
            g.append(f"s_add_u32 {sg}, {sbase_g}, {i*8192}")
        g.append(f"buffer_load_dwordx4 {vregs[j]}, {srd_}, {sg} offen offset:{j*1024}{nt} lds")
        out.append(g)
    return out

def gemm_lds(p, nsteps, readA, readB, mfma, rps, depth=3, nbuf=4, fill=None, hook=None):
    fill=list(fill or []); hook=hook or {}
    for s in range(min(depth,nsteps)):
        readA(s,s%nbuf); readB(s,s%nbuf)
    for s in range(nsteps):
        if s+depth<nsteps:
            readA(s+depth,(s+depth)%nbuf); readB(s+depth,(s+depth)%nbuf)
        rem=min(depth,nsteps-1-s)
        p(f"s_waitcnt lgkmcnt({rem*rps})")
        mfma(s,s%nbuf)
        if s in hook: hook[s]()
        for _ in range(2):
            if fill: p(fill.pop(0))
    for x in fill: p(x)

def tr_base128(p, dst, cbit_sgpr, base, t=97):
    a=f"v{t}"; b=f"v{t+1}"
    p(f"v_and_b32 {a}, 1, v13")
    p(f"v_lshl_add_u32 {a}, v15, 1, {a}")
    if cbit_sgpr: p(f"v_add_u32 {a}, {cbit_sgpr}, {a}")
    p(f"v_lshrrev_b32 {b}, 1, v12")
    p(f"v_lshlrev_b32 {b}, 2, {b}")
    p(f"v_xor_b32 {a}, {a}, {b}")
    p(f"v_lshlrev_b32 {a}, 4, {a}")
    p(f"v_lshrrev_b32 {b}, 1, v13")
    p(f"v_lshl_add_u32 {a}, {b}, 3, {a}")
    p(f"v_lshl_add_u32 {a}, v14, 7, {a}")
    p(f"v_add_u32 {dst}, {base}, {a}")

def lane_params(p):
    p("v_lshrrev_b32 v11, 4, v0")
    p("v_bfe_u32 v12, v0, 2, 2")
    p("v_and_b32 v13, 3, v0")
    p("v_lshrrev_b32 v14, 1, v11")
    p("v_lshl_add_u32 v14, v14, 3, v12")
    p("v_and_b32 v15, 1, v11")
    p("v_and_b32 v96, 1, v13")
    p("v_lshlrev_b32 v96, 4, v96")
    p("v_lshrrev_b32 v97, 1, v13")
    p("v_lshl_add_u32 v96, v97, 3, v96")

def w128_voff(p, dst):
    p("v_lshrrev_b32 v11, 4, v0")
    p("v_and_b32 v11, 1, v11")
    p("v_lshlrev_b32 v11, 2, v11")
    p("v_xor_b32 v11, v11, v10")
    p("v_lshlrev_b32 v11, 4, v11")
    p(f"v_lshl_add_u32 {dst}, v1, 10, v11")
    if 'x_wdx' in OPT and dst=='v1': p("s_xor_b32 s3, s5, 1"); p("s_lshl_b32 s3, s3, 7")
    else: p("s_lshl_b32 s3, s5, 7")
    p(f"v_add_u32 {dst}, s3, {dst}")

VA=64
def phase_a(p):
    p("s_mov_b32 s28, 0x3f803f80")
    srd(p,12,P_X,2048*1024)
    p("s_and_b32 s3, s5, 1")
    p("s_lshl_b32 s60, s4, 1")
    p("s_add_u32 s60, s60, s3")
    p("v_lshrrev_b32 v1, 3, v0")
    p("v_and_b32 v10, 7, v0")
    p("s_lshl_b32 s3, s60, 5")
    p("s_lshl_b32 s7, s6, 3")
    p("s_add_u32 s3, s3, s7")
    p("v_add_u32 v2, s3, v1")
    p("v_lshlrev_b32 v2, 10, v2")
    p("v_lshl_add_u32 v2, v10, 4, v2")
    p("v_xor_b32 v3, 0x8000, v2")
    for cb in range(8):
        p(f"buffer_load_dwordx4 v[{16+4*cb}:{19+4*cb}], v2, {SRD_X}, 0 offen offset:{cb*128}")
    srd(p,16,P_WQ,512*1024)
    w128_voff(p,'v4')
    p("v_lshrrev_b32 v11, 1, v10")
    p("v_mul_u32_u24 v11, 1056, v11")
    p("v_and_b32 v12, 1, v10")
    p("v_mul_u32_u24 v12, 528, v12")
    p("v_add_u32 v5, v11, v12")
    p("s_lshl_b32 s3, s6, 3")
    p("v_add_u32 v11, s3, v1")
    p("v_lshl_add_u32 v5, v11, 4, v5")
    p("v_lshrrev_b32 v11, 5, v0")
    p("v_mul_u32_u24 v11, 528, v11")
    p("v_and_b32 v12, 31, v0")
    p("v_lshl_add_u32 v6, v12, 4, v11")
    lane_params(p)
    p(f"v_mul_u32_u24 v97, {WV-WK}, v15")
    p("v_lshl_add_u32 v97, v14, 5, v97")
    p("v_add_u32 v97, v97, v96")
    p(f"v_add_u32 v8, {WK}, v97")
    p("s_and_b32 s3, s6, 1")
    p("s_lshl_b32 s3, s3, 2")
    tr_base128(p,'v7','s3',WQ)
    p("s_cmp_ge_u32 s5, 2")
    p("s_cselect_b32 s77, 4, 8")
    p("s_sub_u32 s3, s6, 2"); p("s_lshl_b32 s3, s3, 1")
    p("s_cmp_ge_u32 s5, 2"); p("s_cselect_b32 s3, s6, s3")
    p("s_lshl_b32 s75, s3, 17")
    p("s_lshl_b32 s76, s3, 14"); p(f"s_add_u32 s76, s76, {WQ}")
    p("s_lshl_b32 s74, s6, 14")
    p("s_cmp_ge_u32 s5, 2")
    p("s_cbranch_scc1 A_nokvdma")
    p("s_cmp_lg_u32 s6, 2")
    p("s_cbranch_scc1 A_noclr")
    p(f"s_mul_i32 s3, s60, {FLG_CLR}")
    p(f"s_add_u32 s3, s3, {L.FLG}")
    p("v_lshlrev_b32 v11, 2, v0")
    p("v_mov_b32 v12, 0")
    p(f"s_mov_b32 exec_hi, {hx((1<<(FLG_CLR//4-32))-1)}")
    p(f"buffer_store_dword v12, v11, {SRD_WS}, s3 offen sc1")
    p("s_mov_b64 exec, -1")
    p.label("A_noclr")
    p("s_cmp_lt_u32 s6, 2")
    p(f"s_cselect_b32 s20, s{P_WK}, s{P_WV}")
    p(f"s_cselect_b32 s21, s{P_WK+1}, s{P_WV+1}")
    p("s_mov_b32 s22, 16384")
    p("s_mov_b32 s23, 0x20000")
    csel(p,'s30',WK,WV)
    p("s_and_b32 s3, s6, 1")
    p("s_lshl_b32 s3, s3, 13")
    p("s_add_u32 s30, s30, s3")
    for i in range(8):
        if i%4==0: p(f"s_add_u32 m0, s30, {i*1024}"); p(f"s_add_u32 s31, s3, {i*1024}")
        p(f"buffer_load_dwordx4 v9, {SRD_B}, s31 offen offset:{(i%4)*1024} lds")
    stamp(p,'A issued')
    p("s_waitcnt vmcnt(8)")
    p("s_branch A_xw")
    p.label("A_nokvdma")
    p("s_waitcnt vmcnt(0)")
    p.label("A_xw")
    stamp(p,'A x arrived')
    ln_tile(p,16,'v5',XH0,extra=[[f"buffer_load_dwordx4 v[{48+4*cb}:{51+4*cb}], v3, {SRD_X}, 0 offen offset:{cb*128}"] for cb in range(8)])
    for j in range(1,4): p(f"v_add_u32 v{175+j+64}, {7168*j}, v4")
    stamp(p,'A lnA done')
    p("s_cmp_ge_u32 s5, 2")
    p("s_cbranch_scc1 A_wqdma")
    p("s_waitcnt vmcnt(8) lgkmcnt(0)")
    p("s_barrier")
    p("s_cmp_ge_u32 s6, 2")
    p("s_cbranch_scc1 A_wqdma")
    AB_=[96+4*b for b in range(6)]; BB_=[144+4*b for b in range(6)]
    def rA(s,b):
        p(f"ds_read_b64_tr_b16 v[{AB_[b]}:{AB_[b]+1}], v8 offset:{s*512}")
        p(f"ds_read_b64_tr_b16 v[{AB_[b]+2}:{AB_[b]+3}], v8 offset:{s*512+128}")
    def rB(s,b):
        p(f"ds_read_b128 v[{BB_[b]}:{BB_[b]+3}], v6 offset:{XH0+s*1056}")
    p("s_cmp_eq_u32 s6, 1")
    p("s_cbranch_scc1 A_vwave")
    gemm_lds(p,32,rA,rB,lambda s,b: p(f"v_mfma_f32_32x32x16_bf16 v[128:143], v[{AB_[b]}:{AB_[b]+3}], v[{BB_[b]}:{BB_[b]+3}], {'0' if s==0 else 'v[128:143]'}"),3,depth=4,nbuf=6)
    for j in range(4): p(f"v_cvt_pk_bf16_f32 v{88+j}, v{128+2*j}, v{129+2*j}")
    p("s_lshl_b32 s3, s60, 10")
    p(f"s_add_u32 s3, s3, {L.KF}")
    p(f"buffer_store_dwordx4 v[88:91], v9, {SRD_WS}, s3 offen sc1")
    p("v_mul_f32 v84, v128, v128")
    for j in range(1,8): p(f"v_fmac_f32 v84, v{128+j}, v{128+j}")
    p("v_mov_b32 v85, v84")
    p("v_permlane32_swap_b32 v84, v85")
    p("v_add_f32 v84, v84, v85")
    for d in ("row_ror:8","row_ror:4","row_ror:2","row_ror:1"):
        p(f"v_max_f32_dpp v84, v84, v84 {d} row_mask:0xf bank_mask:0xf")
    p("v_readlane_b32 s3, v84, 0")
    p("v_readlane_b32 s7, v84, 16")
    p("s_max_u32 s3, s3, s7")
    p("v_mov_b32 v84, s3")
    p("s_lshl_b32 s7, s60, 7")
    p(f"s_add_u32 s7, s7, {L.KM}")
    p("v_lshlrev_b32 v85, 2, v0")
    p("s_mov_b32 exec_hi, 0")
    p(f"buffer_store_dword v84, v85, {SRD_WS}, s7 offen sc1")
    p("s_mov_b64 exec, -1")
    p("s_waitcnt vmcnt(2)")
    p("s_branch A_kvdone")
    p.label("A_vwave")
    p("v_and_b32 v84, 3, v0")
    p("v_bfe_u32 v85, v0, 2, 1")
    p("v_lshl_add_u32 v84, v85, 3, v84")
    p("v_bfe_u32 v85, v0, 3, 1")
    p("v_lshl_add_u32 v84, v85, 2, v84")
    p("v_and_b32 v85, 16, v0")
    p("v_add_u32 v84, v84, v85")
    p("v_lshrrev_b32 v85, 5, v0")
    p("v_mul_u32_u24 v85, 528, v85")
    p("v_lshl_add_u32 v86, v84, 4, v85")
    def rBv(s,b):
        p(f"ds_read_b128 v[{BB_[b]}:{BB_[b]+3}], v86 offset:{XH0+s*1056}")
    gemm_lds(p,32,rA,rBv,lambda s,b: p(f"v_mfma_f32_32x32x16_bf16 v[128:143], v[{BB_[b]}:{BB_[b]+3}], v[{AB_[b]}:{AB_[b]+3}], {'0' if s==0 else 'v[128:143]'}"),3,depth=4,nbuf=6)
    for j in range(8): p(f"v_cvt_pk_bf16_f32 v{88+j}, v{128+2*j}, v{129+2*j}")
    p("v_xor_b32 v84, 256, v9")
    p("s_lshl_b32 s3, s60, 11")
    p(f"s_add_u32 s3, s3, {L.VF}")
    p("s_mov_b32 exec_lo, 0xffff0000")
    p("s_mov_b32 exec_hi, 0xffff0000")
    p(f"buffer_store_dwordx4 v[88:91], v84, {SRD_WS}, s3 offen sc1")
    p(f"buffer_store_dwordx4 v[92:95], v84, {SRD_WS}, s3 offen offset:1024 sc1")
    p("s_mov_b64 exec, -1")
    p("s_waitcnt vmcnt(2)")
    p("s_branch A_kvdone")
    p.label("A_wqdma")
    p("s_waitcnt vmcnt(0)")
    p.label("A_wqloop")
    p("s_mov_b32 m0, s76")
    for j,vr in enumerate(('v4','v240','v241','v242')):
        p(f"buffer_load_dwordx4 {vr}, {SRD_A}, s75 offen offset:{j*1024}{' nt' if 'ntwq' in OPT else ''} lds")
    p("s_add_u32 s76, s76, 4096"); p("s_add_u32 s75, s75, 32768")
    p("s_sub_u32 s77, s77, 1"); p("s_cmp_lg_u32 s77, 0"); p("s_cbranch_scc1 A_wqloop")
    p.label("A_kvdone")
    stamp(p,'A kvdone')
    ln_tile(p,48,'v5',XH1,write=False)
    p("s_cmp_ge_u32 s5, 2"); p("s_cbranch_scc1 A_nosig")
    p("s_cmp_ge_u32 s6, 2"); p("s_cbranch_scc1 A_nosig2")
    p("s_waitcnt vmcnt(0)")
    p("s_barrier")
    p("s_cmp_lg_u32 s6, 0"); p("s_cbranch_scc1 A_nosig3")
    if 'go2' in OPT:
        p("s_lshr_b32 s3, s60, 5"); p("s_lshl_b32 s3, s3, 6"); p("v_mov_b32 v85, s3")
    else: p("v_mov_b32 v85, 0")
    p("v_mov_b32 v243, 1")
    p("s_mov_b64 exec, 1")
    p(f"buffer_atomic_add v243, v85, {SRD_D}, 0 offen sc0 sc1 ; nowaitcheck")
    p("s_mov_b64 exec, -1")
    stamp(p,'A sig')
    p.label("A_nosig3")
    ln_write(p,48,'v5',XH1)
    p("s_branch A_lnbw")
    p.label("A_nosig2")
    p("s_barrier")
    p.label("A_nosig")
    ln_write(p,48,'v5',XH1)
    p("s_waitcnt vmcnt(0)")
    p.label("A_lnbw")
    p("s_waitcnt lgkmcnt(0)")
    p("s_barrier")
    stamp(p,'A lnB done')
    if 'wowarm' in OPT:
        srd(p,24,P_WO,512*1024)
        p("s_cmp_lt_u32 s5, 2"); p("s_cbranch_scc1 A_nowarm")
        p("s_and_b32 s3, s4, 3"); p("s_mul_i32 s3, s3, 6"); p("s_add_u32 s3, s3, s5"); p("s_sub_u32 s3, s3, 2")
        p("s_lshl_b32 s3, s3, 2"); p("s_add_u32 s3, s3, s6"); p("s_mul_i32 s3, s3, 5504")
        p("v_lshlrev_b32 v247, 6, v0")
        p(f"buffer_load_dword v246, v247, {SRD_O}, s3 offen ; nowaitcheck")
        p("s_add_u32 s3, s3, 4096")
        p("s_mov_b64 exec, 0x3fffff")
        p(f"buffer_load_dword v246, v247, {SRD_O}, s3 offen ; nowaitcheck")
        p("s_mov_b64 exec, -1")
        p.label("A_nowarm")
    def go():
        N=32 if 'go2' in OPT else 64
        p("s_cmp_ge_u32 s5, 2"); p("s_cbranch_scc1 A_nogo")
        p("s_cmp_lg_u32 s6, 0"); p("s_cbranch_scc1 A_nogo")
        p("s_waitcnt vmcnt(0)")
        stamp(p,'A atom ret')
        p(f"v_readfirstlane_b32 s3, v243"); p(f"s_and_b32 s3, s3, {N-1}"); p(f"s_cmp_lg_u32 s3, {N-1}"); p("s_cbranch_scc1 A_nogo")
        p("v_mov_b32 v243, 1")
        if 'go2' in OPT:
            p("s_lshr_b32 s3, s60, 5"); p("s_lshl_b32 s3, s3, 6"); p("s_add_u32 s3, s3, 128"); p("v_mov_b32 v244, s3")
        else: p("v_mov_b32 v244, 128")
        p("s_mov_b64 exec, 1")
        p(f"buffer_store_dword v243, v244, {SRD_D}, 0 offen sc1")
        p("s_mov_b64 exec, -1")
        p.label("A_nogo")
    p("s_lshr_b32 s3, s6, 1")
    p(f"s_mul_i32 s7, s3, {XH1}")
    p("v_add_u32 v6, s7, v6")
    def rA(s,b):
        p(f"ds_read_b64_tr_b16 v[{AB_[b]}:{AB_[b]+1}], v7 offset:{s*2048}")
        p(f"ds_read_b64_tr_b16 v[{AB_[b]+2}:{AB_[b]+3}], v7 offset:{s*2048+512}")
    def rB(s,b):
        p(f"ds_read_b128 v[{BB_[b]}:{BB_[b]+3}], v6 offset:{s*1056}")
    gemm_lds(p,32,rA,rB,lambda s,b: p(f"v_mfma_f32_32x32x16_bf16 v[128:143], v[{AB_[b]}:{AB_[b]+3}], v[{BB_[b]}:{BB_[b]+3}], {'0' if s==0 else 'v[128:143]'}"),3,depth=4,nbuf=6,fill=att_setup(),hook={GO_STEP:go})
    p(f"s_mov_b32 s30, {hx(f2u(QSCALE))}"); p("s_mov_b32 s31, s30")
    if 'wo2' in OPT: p("v_mov_b32 v239, v4")
    else:
        for j in range(1,4): p(f"v_add_u32 v{4+j}, {7168*j}, v4")
    for j in range(8): p(f"v_pk_mul_f32 v[{128+2*j}:{129+2*j}], v[{128+2*j}:{129+2*j}], s[30:31]")
    for j in range(8): p(f"v_cvt_pk_bf16_f32 v{96+j}, v{128+2*j}, v{129+2*j}")
    p("s_lshr_b32 s3, s6, 1")
    p("s_xor_b32 s3, s5, s3"); p("s_and_b32 s3, s3, 1"); p("s_lshl_b32 s3, s3, 2")
    p("s_and_b32 s7, s6, 1"); p("s_lshl_b32 s7, s7, 1"); p("s_add_u32 s3, s3, s7")
    p("s_lshl_b32 s3, s3, 10"); p(f"s_add_u32 s3, s3, {QL}")
    p("v_add_u32 v104, s3, v9")
    p("ds_write_b128 v104, v[96:99]")
    p("ds_write_b128 v104, v[100:103] offset:1024")
    p("v_mul_f32 v104, v128, v128"); p("v_mul_f32 v105, v136, v136")
    for j in range(1,8): p(f"v_fmac_f32 v104, v{128+j}, v{128+j}"); p(f"v_fmac_f32 v105, v{136+j}, v{136+j}")
    p("v_mov_b32 v106, v104"); p("v_mov_b32 v107, v105")
    p("v_permlane32_swap_b32 v104, v106"); p("v_permlane32_swap_b32 v105, v107")
    p("v_add_f32 v104, v104, v106"); p("v_add_f32 v105, v105, v107")
    p("v_max_u32 v104, v104, v105")
    for d in ("row_ror:8","row_ror:4","row_ror:2","row_ror:1"):
        p(f"v_max_u32_dpp v104, v104, v104 {d} row_mask:0xf bank_mask:0xf")
    p("v_readlane_b32 s3, v104, 0")
    p("v_readlane_b32 s7, v104, 16")
    p("s_max_u32 s3, s3, s7")
    p("v_mov_b32 v104, s3")
    p("s_lshl_b32 s7, s6, 2"); p(f"s_add_u32 s7, s7, {QM}")
    p("v_mov_b32 v105, s7")
    p("ds_write_b32 v105, v104")
    stamp(p,'A q done')

def att_setup():
    F=[]; a=F.append
    for i in range(16): a(f"v_mov_b32 v{OB[0]+i}, 0"); a(f"v_mov_b32 v{OB[1]+i}, 0")
    for i in range(4): a(f"v_mov_b32 v{ZR+i}, 0")
    a(f"v_mov_b32 v{IDX}, 0xdddddddd")
    a("s_mov_b32 s80, 0xffff"); a("s_mov_b32 s81, 0xffff")
    a("s_mul_i32 s77, s6, 2304"); a(f"s_add_u32 s77, s77, {OP}")
    a(f"v_add_u32 v{SLA}, s77, v9")
    a("s_add_u32 s77, s77, 2048")
    a(f"v_lshl_add_u32 v{SLB}, v0, 2, s77")
    a(f"v_add_u32 v{QA}, {QL+1024}, v9")
    a(f"v_add_u32 v59, {QL}, v9")
    a(f"v_mov_b32 v60, {QM}")
    a("s_lshl_b32 s42, s6, 14")
    a("s_lshr_b32 s61, s6, 1"); a("s_lshl_b32 s77, s4, 1"); a("s_add_u32 s61, s61, s77")
    a("s_and_b32 s62, s6, 1"); a("s_lshl_b32 s77, s5, 1"); a("s_add_u32 s62, s62, s77")
    a("v_and_b32 v2, 31, v0"); a("s_lshl_b32 s77, s61, 5"); a("v_add_u32 v2, s77, v2"); a("v_lshlrev_b32 v2, 10, v2")
    a("v_lshrrev_b32 v3, 5, v0"); a("v_lshl_add_u32 v8, v3, 4, v2")
    return F

KA=0
SB=[16,32]; OB=[64,80]; QB=[96,100]; CB=104; IDX=48; ZR=52; SLA=56; SLB=57; QA=58; TB=120
THRESH=40.0
VMASK='s[80:81]'

def QK(Sn,kn,Qn,slow): return f"v_mfma_f32_32x32x16_bf16 v[{Sn}:{Sn+15}], a[{KA+4*kn}:{KA+4*kn+3}], v[{Qn}:{Qn+3}], {f'v[{CB}:{CB+15}]' if slow else '0'}"
def PV(O,areg,S): return f"v_smfmac_f32_32x32x32_bf16 v[{O}:{O+15}], a[{areg}:{areg+3}], v[{S}:{S+7}], v{IDX}"

def slot_write(p,O):
    p(f"ds_write_b128 v{SLA}, v[{O}:{O+3}]")
    p(f"ds_write_b128 v{SLA}, v[{O+4}:{O+7}] offset:1024")
    p(f"ds_write_b32 v{SLB}, v{O+8}")

def att_pass(p, ps, first=False, slow=False, vm=None, ev=None):
    ev=ev or {}
    for t in range(16):
        S=SB[t%2]; Sn=SB[(t+1)%2]
        O=OB[ps]; Op=OB[ps] if t>0 else OB[1-ps]
        Qn=QB[ps] if t<15 else QB[1-ps]
        kn=(t+1)%16; tp=(t-1)%16
        e=lambda i: f"v_exp_f32 v{S+i}, v{S+i}"
        pv2=PV(Op,VA+8*tp+4,Sn+8)
        I=[e(0),e(1),pv2,e(2),e(3),e(4),QK(Sn,kn,Qn,slow),e(5),e(6),e(7),e(8),e(9),PV(O,VA+8*t,S),e(10),e(11),e(12),e(13),e(14),e(15)]
        ins={}
        def add(pos,txt): ins.setdefault(pos,[]).append(txt)
        if first and t==0: I[2]=None
        if not first:
            if t==2:
                add(4,f"ds_write_b128 v{SLA}, v[{OB[1-ps]}:{OB[1-ps]+3}]")
                add(8,f"ds_write_b128 v{SLA}, v[{OB[1-ps]+4}:{OB[1-ps]+7}] offset:1024")
                add(10,f"ds_write_b32 v{SLB}, v{OB[1-ps]+8}")
            if t==3:
                add(4,f"v_add_u32 v{SLA}, 9216, v{SLA}"); add(8,f"v_add_u32 v{SLB}, 9216, v{SLB}")
            if t==8:
                Z=OB[1-ps]
                add(16,f"v_mfma_f32_32x32x16_bf16 v[{Z}:{Z+15}], v[{ZR}:{ZR+3}], v[{ZR}:{ZR+3}], 0")
        if t==4:
            Qd=QB[1-ps]
            add(4,f"ds_read_b128 v[{Qd}:{Qd+3}], v{QA}")
            if slow: add(5,f"ds_read_b32 v121, v120")
        if t==5:
            add(4,f"v_add_u32 v{QA}, 1024, v{QA}")
            if slow: add(8,"v_add_u32 v120, 256, v120")
        if t==14:
            add(0,"s_waitcnt lgkmcnt(0)")
        if t==15 and slow:
            for j in range(16): add(1,f"v_mov_b32 v{CB+j}, v121")
        if first and vm is not None:
            vm.wait(('V',t,0))
            if t+4<16: add(4,('K',t+4))
            if t+3<16: add(9,('V',t+3))
        for pos,item in ev.get(t,[]): add(pos,item)
        for i,x in enumerate(I):
            for y in ins.get(i,[]):
                if callable(y): y()
                elif isinstance(y,list): emit_group(p,vm,y)
                elif isinstance(y,tuple): (ldK if y[0]=='K' else ldV)(p,vm,y[1])
                else: p(y)
            if x: p(x)

def spread(ev, items, t0, t1, poss=(1,4,8,11,14,17)):
    n=t1-t0+1; per=-(-len(items)//n); assert per<=len(poss),(per,len(items))
    k=0
    for t in range(t0,t1+1):
        for j in range(per):
            if k<len(items): ev.setdefault(t,[]).append((poss[j*len(poss)//per],items[k])); k+=1

def ldK(p,vm,j):
    p(f"s_add_u32 s3, s30, {j*1024}")
    vm.issue(('K',j),f"buffer_load_dwordx4 a[{KA+4*j}:{KA+4*j+3}], v9, {SRD_WS}, s3 offen sc1")
def ldV(p,vm,j):
    p(f"s_add_u32 s3, s31, {j*2048}")
    p(f"s_mov_b64 exec, {VMASK}")
    vm.issue(('V',j,0),f"buffer_load_dwordx4 a[{VA+8*j}:{VA+8*j+3}], v9, {SRD_WS}, s3 offen sc1")
    vm.issue(('V',j,1),f"buffer_load_dwordx4 a[{VA+8*j+4}:{VA+8*j+7}], v9, {SRD_WS}, s3 offen offset:1024 sc1")
    p("s_mov_b64 exec, -1")

def o_store(p,O,jj):
    p(f"v_rcp_f32 v{TB}, v{O+8}")
    p(f"v_mov_b32 v{TB+1}, v{O+8}")
    p(f"v_mov_b32 v{TB+1}, v{TB}")
    for j in range(4): p(f"v_pk_mul_f32 v[{O+2*j}:{O+2*j+1}], v[{O+2*j}:{O+2*j+1}], v[{TB}:{TB+1}]")
    for j in range(4): p(f"v_cvt_pk_bf16_f32 v{TB+4+j}, v{O+2*j}, v{O+2*j+1}")
    hstore(p,f"buffer_store_dwordx4 v[{TB+4}:{TB+7}], v9, {SRD_WS}, s63 offen offset:{jj*1024}")

def xcc_publish(p,vm):
    lab=f"XP_{len(p.lines)}"
    p("s_getreg_b32 s43, hwreg(HW_REG_XCC_ID, 0, 4)")
    p("s_add_u32 s43, s43, 1")
    p("s_lshr_b32 s86, s4, 1"); p("s_lshl_b32 s86, s86, 6"); p(f"s_add_u32 s86, s86, {FX}")
    p("s_cmp_lg_u32 s6, 0"); p(f"s_cbranch_scc1 {lab}")
    p("s_and_b32 s3, s4, 1"); p("s_lshl_b32 s3, s3, 3"); p("s_add_u32 s3, s3, s5"); p("s_lshl_b32 s3, s3, 2")
    p("v_mov_b32 v12, s43"); p("v_mov_b32 v14, s3")
    p("s_mov_b64 exec, 1")
    vm.issue(('XP',0),f"buffer_store_dword v12, v14, {SRD_WS}, s86 offen sc1")
    p("s_mov_b64 exec, -1")
    p.label(lab)
def xcc_load(p,vm):
    p("v_and_b32 v13, 15, v0"); p("v_lshlrev_b32 v13, 2, v13")
    vm.issue(('XL',0),f"buffer_load_dword v12, v13, {SRD_WS}, s86 offen sc1")
def xcc_check(p):
    p(f"s_mov_b32 s29, {SPIN}")
    p.label("XC_CHK")
    p("v_cmp_eq_u32 vcc, 0, v12")
    p("s_cmp_eq_u64 vcc, 0"); p("s_cbranch_scc1 XC_OK")
    p("s_sub_u32 s29, s29, 1"); p("s_cmp_eq_u32 s29, 0"); p("s_cbranch_scc1 XC_OK")
    p(f"buffer_load_dword v12, v13, {SRD_WS}, s86 offen sc1")
    p("s_waitcnt vmcnt(0)")
    p("s_branch XC_CHK")
    p.label("XC_OK")
    p("v_cmp_ne_u32 vcc, s43, v12")
    p("s_cmp_lg_u64 vcc, 0")
    p("s_cselect_b32 s43, 1, 0")
    if 'xslow' in OPT: p("s_mov_b32 s43, 1")

def wo_dma_groups(vm):
    G=[]
    for n,g in enumerate(dma128(['v239','v240','v241','v242'] if 'wo2' in OPT else ['v4','v5','v6','v7'],SRD_O,'s74',WO_L,'s75',16,sg='s76',nt=' nt' if 'ntwo' in OPT else '')):
        G.append([('s',x) for x in g[:-1]]+[('m',('WO',n),g[-1])])
    G.append([('s',"s_lshl_b32 s76, s62, 6"),('m',('XR',0),f"buffer_load_dwordx4 a[192:195], v8, {SRD_X}, s76 offen")])
    G.append([('m',('XR',1),f"buffer_load_dwordx4 a[196:199], v8, {SRD_X}, s76 offen offset:32")])
    return G
def emit_group(p,vm,g):
    for x in g:
        if x[0]=='s': p(x[1])
        else: vm.issue(x[1],x[2])

def attention(p):
    srd(p,24,P_WO,512*1024)
    p("s_lshl_b32 s75, s6, 17")
    srd(p,16,P_WG,512*2752)
    srd(p,20,P_WU,512*2752)
    p("s_lshr_b32 s78, s2, 3"); p("s_lshl_b32 s78, s78, 2"); p("s_add_u32 s78, s78, s6"); p("s_mul_i32 s78, s78, 6880"); p(f"s_add_u32 s78, s78, {192*2752}")
    p("v_lshlrev_b32 v50, 6, v0")
    if 'pt' in OPT:
        p("v_and_b32 v51, 15, v0"); p("v_lshlrev_b32 v51, 7, v51")
        p("s_lshr_b32 s3, s6, 1"); p("s_lshl_b32 s7, s4, 1"); p("s_add_u32 s3, s3, s7"); p("s_lshl_b32 s3, s3, 5")
        p("s_lshl_b32 s7, s5, 2"); p("s_add_u32 s3, s3, s7")
        p("s_and_b32 s7, s6, 1"); p("s_lshl_b32 s7, s7, 1"); p("s_add_u32 s3, s3, s7")
        p("s_lshl_b32 s3, s3, 10"); p(f"s_add_u32 s82, s3, {L.OF}")
        p("s_lshl_b32 s3, s61, 5"); p("s_lshl_b32 s7, s62, 1"); p("s_add_u32 s3, s3, s7"); p("s_lshl_b32 s3, s3, 10"); p(f"s_add_u32 s83, s3, {L.HF}")
        p("s_lshl_b32 s3, s61, 12"); p("s_lshl_b32 s7, s62, 8"); p("s_add_u32 s3, s3, s7"); p(f"s_add_u32 s84, s3, {L.HS}")
    p("s_lshl_b32 s31, s42, 1"); p(f"s_add_u32 s31, s31, {L.VF}")
    p(f"s_add_u32 s30, s42, {L.KF}")
    lane_params(p)
    p("s_and_b32 s3, s6, 1"); p("s_lshl_b32 s3, s3, 2")
    tr_base128(p,'v10',"s3",WO_L)
    p("s_and_b32 s3, s6, 1"); p("s_lshl_b32 s3, s3, 15")
    p("v_add_u32 v10, s3, v10")
    p("v_xor_b32 v1, 64, v10")
    p("v_lshlrev_b32 v11, 7, v0")
    p("v_mov_b32 v16, 0x3f803f80"); p("v_mov_b32 v20, 0x3afe3f80")
    p("v_and_b32 v13, 59, v0"); p("v_cmp_eq_u32 vcc, 16, v13"); p("v_cndmask_b32 v20, 0, v20, vcc")
    for i in (17,18,19,21,22,23): p(f"v_mov_b32 v{i}, 0")
    for i in range(8): p(f"v_mfma_f32_32x32x16_bf16 a[{VA+16*i}:{VA+16*i+15}], v[16:19], v[20:23], 0")
    stamp(p,'B pre-S1',vt=200)
    p("s_cmp_lg_u32 s6, 0"); p("s_cbranch_scc1 B_s1skip")
    if 'go2' in OPT: p("v_and_b32 v62, 1, v0"); p("v_lshlrev_b32 v62, 6, v62"); p("v_add_u32 v62, 128, v62")
    else: p("v_mov_b32 v62, 128")
    poll(p,'s1',SRD_D,'0','v62',1,61,sleep=int(os.environ.get('S1SLEEP','1')))
    p.label("B_s1skip")
    p("s_waitcnt lgkmcnt(0)")
    p("s_barrier")
    stamp(p,'B S1 done',vt=200)
    vm=VM(p)
    p(f"s_mov_b32 s3, {L.KM}")
    vm.issue('KM',f"buffer_load_dword v61, v11, {SRD_WS}, s3 offen sc1")
    ldK(p,vm,0)
    p(f"ds_read_b128 v[{QB[0]}:{QB[0]+3}], v59")
    p(f"ds_read_b128 v[104:107], v60")
    ldK(p,vm,1); ldV(p,vm,0); ldK(p,vm,2); ldV(p,vm,1); ldK(p,vm,3); ldV(p,vm,2)
    p("s_waitcnt lgkmcnt(0)")
    p("v_max_u32 v60, v104, v105"); p("v_max3_u32 v60, v60, v106, v107")
    vm.wait('KM')
    for d in ("row_ror:8","row_ror:4","row_ror:2","row_ror:1"):
        p(f"v_max_u32_dpp v61, v61, v61 {d} row_mask:0xf bank_mask:0xf")
    p("v_readlane_b32 s3, v61, 0"); p("v_readlane_b32 s7, v61, 16"); p("s_max_u32 s3, s3, s7")
    p("v_readlane_b32 s7, v61, 32"); p("s_max_u32 s3, s3, s7")
    p("v_readlane_b32 s7, v61, 48"); p("s_max_u32 s65, s3, s7")
    p("v_mul_f32 v60, s65, v60")
    p(f"v_cmp_nge_f32 vcc, {hx(f2u(THRESH*THRESH/(1.02*1.02)))}, v60")
    p("s_cmp_lg_u64 vcc, 0")
    p("s_cbranch_scc1 L_slow")
    vm.wait(('K',0))
    p(QK(SB[0],0,QB[0],False))
    stamp(p,'B first',vt=200)
    import copy
    SLOW.append(vm)
    vm=copy.copy(vm); vm.pos=dict(vm.pos)
    ev0={}
    if 'wowarm2' in OPT:
        ev0[int(os.environ.get('WOT','13'))]=[(11,[('s',"s_lshr_b32 s85, s2, 3"),('s',"s_lshl_b32 s85, s85, 2"),('s',"s_add_u32 s85, s85, s6"),('s',"s_lshl_b32 s85, s85, 12"),
              ('m',('WOW',0),f"buffer_load_dword v49, v50, {SRD_O}, s85 offen ; nowaitcheck")])]
    att_pass(p,0,first=True,vm=vm,ev=ev0)
    vm.wait(('V',15,1))
    stamp(p,'B pass0',vt=200)
    if 'wo2' in OPT:
        DPOS=tuple(int(x) for x in os.environ.get('DPOS','13,13').split(',')); DT1=18//len(DPOS)
        THIN=0
        WOG=wo_dma_groups(vm)
        ev={}
        ev[0]=[(11,[('s',"s_lshr_b32 s85, s2, 3"),('s',"s_lshl_b32 s85, s85, 2"),('s',"s_add_u32 s85, s85, s6"),('s',"s_lshl_b32 s85, s85, 12"),
              ('m',('WOW',0),f"buffer_load_dword v49, v50, {SRD_O}, s85 offen ; nowaitcheck")])]
        if 'xcc' in OPT:
            class NV:
                def issue(s_,k,t): p(t)
            ev.setdefault(1,[]).append((4,lambda: xcc_publish(p,NV())))
        W1T=int(os.environ.get('W1T','10'))
        for n,(t,sr,off) in enumerate(((0,SRD_A,0),(1,SRD_B,0),(2,SRD_A,4096),(3,SRD_B,4096))):
            g=[('m',('WARM',n),f"buffer_load_dword v49, v50, {sr}, s78 offen ; nowaitcheck")]
            if n==2: g=[('s',"s_add_u32 s78, s78, 4096")]+g
            ev.setdefault(W1T+t,[]).append((11,g))
        spread(ev,w1_setup(),2,9,poss=(1,4,8,11,14,17))
        att_pass(p,1,vm=vm,ev=ev)
        ev={}
        W0=int(os.environ.get('WOD0','0')); spread(ev,WOG,W0,W0+DT1-1,poss=DPOS)
        att_pass(p,0,vm=vm,ev=ev)
    else:
        DPOS=tuple(int(x) for x in os.environ.get('DPOS','13,13').split(',')); DT1=18//len(DPOS)
        THIN=int(os.environ.get('THIN','0')); TPOS=int(os.environ.get('TPOS','4'))
        WOG=wo_dma_groups(vm)
        ev={}
        if THIN: spread(ev,WOG[:16],0,15,poss=(TPOS,))
        else:
            W0=int(os.environ.get('WOD0','7' if 'wowarm3' in OPT else '1')); spread(ev,WOG,W0,W0+DT1-1,poss=DPOS)
        if 'xcc' in OPT:
            class NV:
                def issue(s_,k,t): p(t)
            ev.setdefault(0,[]).append((4,lambda: xcc_publish(p,NV())))
        if 'wowarm3' in OPT:
            ev.setdefault(int(os.environ.get('WOT','0')),[]).append((11,[('s',"s_lshr_b32 s85, s2, 3"),('s',"s_lshl_b32 s85, s85, 2"),('s',"s_add_u32 s85, s85, s6"),('s',"s_lshl_b32 s85, s85, 12"),
              ('m',('WOW',0),f"buffer_load_dword v49, v50, {SRD_O}, s85 offen ; nowaitcheck")]))
        att_pass(p,1,vm=vm,ev=ev)
        ev={}
        if 'warm' in OPT:
            for n,(t,sr,off) in enumerate(((0,SRD_A,0),(1,SRD_B,0),(2,SRD_A,4096),(3,SRD_B,4096))):
                g=[('m',('WARM',n),f"buffer_load_dword v49, v50, {sr}, s78 offen ; nowaitcheck")]
                if n==2: g=[('s',"s_add_u32 s78, s78, 4096")]+g
                ev.setdefault(t,[]).append((11,g))
        if THIN:
            for n,g in enumerate(WOG[16:]): ev.setdefault(4+n,[]).append((TPOS,g))
        spread(ev,w1_setup(),4,13,poss=(1,4,8,11,14,17))
        att_pass(p,0,vm=vm,ev=ev)
    ev={0:[(0,lambda: vm.wait(('XR',1))),(0,"s_barrier")]}
    spread(ev,wo_frag_reads(),0,12,poss=(1,4,8,11,14))
    att_pass(p,1,vm=vm,ev=ev)
    ev={0:[(0,"s_barrier")]}
    W1G=w1_dma(0)+w1_dma(1)+w1_dma(2)
    if THIN: spread(ev,W1G[:15],1,15,poss=(TPOS,))
    else: spread(ev,W1G,1,DT1,poss=DPOS)
    att_pass(p,0,vm=vm,ev=ev)
    ev={}
    if THIN:
        for n,g in enumerate(W1G[15:]): ev.setdefault((0,1,3)[n],[]).append((TPOS,g))
    if 'pt' in OPT:
        ev.setdefault(2,[]); ev[2]+=[(4,[('m',('PT',0),f"buffer_load_dword v49, v51, {SRD_WS}, s82 offen ; nowaitcheck")])]
        ev[6]=[(4,[('m',('PT',1),f"buffer_load_dword v49, v51, {SRD_WS}, s83 offen ; nowaitcheck")])]
        ev[10]=[(4,[('s',"s_mov_b64 exec, 3"),('m',('PT',2),f"buffer_load_dword v49, v51, {SRD_WS}, s84 offen ; nowaitcheck"),('s',"s_mov_b64 exec, -1")])]
    att_pass(p,1,vm=vm,ev=ev)
    ev={}
    if 'codepf2' in OPT:
        NL=int(os.environ.get('PF2_LINES','4'))
        def pf2():
            p("s_getpc_b64 s[84:85]")
            p.label("PF2_HERE")
            p("s_lshr_b32 s3, s2, 3"); p("s_lshl_b32 s3, s3, 2"); p("s_add_u32 s3, s3, s6"); p(f"s_mul_i32 s3, s3, {NL*64}")
            p(f"v_and_b32 v50, {NL-1}, v0"); p("v_lshlrev_b32 v50, 6, v50"); p("v_add_u32 v50, s3, v50")
            p("v_add_u32 v50, L_att_tail-PF2_HERE, v50")
            p("v_min_u32 v50, END_K-PF2_HERE-4, v50")
            p(f"s_mov_b64 exec, {(1<<NL)-1}")
            vm.issue(('PF2',0),"global_load_dword v49, v50, s[84:85] ; nowaitcheck")
            p("s_mov_b64 exec, -1")
        ev[PF2_T]=[(4,pf2)]
    if 'wdatt' in OPT:
        g=[('s',f"s_mov_b32 s24, s{P_WD}"),('s',f"s_mov_b32 s25, s{P_WD+1}"),('s',f"s_mov_b32 s26, {hx(1376*1024)}"),
           ('s',"s_lshr_b32 s79, s2, 3"),('s',"s_lshl_b32 s79, s79, 2"),('s',"s_add_u32 s79, s79, s6"),('s',"s_mul_i32 s79, s79, 11008"),('s',"v_lshlrev_b32 v51, 6, v0")]
        ev.setdefault(0,[]).append((4,g))
        WDT=int(os.environ.get('WDT','1'))
        for n in range(0 if 'x_nowd' in OPT else 3):
            g=[('m',('WDW',n),f"buffer_load_dword v49, v51, {SRD_O}, s79 offen ; nowaitcheck")]
            if n<2: g.append(('s',"s_add_u32 s79, s79, 4096"))
            ev.setdefault(WDT+2*n,[]).append((11,g))
    if 'xcc' in OPT: ev.setdefault(12,[]).append((4,lambda: xcc_load(p,vm)))
    att_pass(p,0,vm=vm,ev=ev)
    att_pass(p,1,vm=vm)
    p.label("L_att_tail")
    p(PV(OB[1],VA+8*15+4,SB[1]+8))
    slot_write(p,OB[1])
    p.label("L_att_done")
    stamp(p,'B loop done',vt=14)
    p("s_mul_i32 s3, s6, 18432"); p(f"s_add_u32 s3, s3, {OP}")
    p("v_add_u32 v118, s3, v9")
    p("s_add_u32 s3, s3, 2048")
    p("v_lshl_add_u32 v119, v0, 2, s3")
    p("s_lshr_b32 s3, s6, 1"); p("s_lshl_b32 s7, s4, 1"); p("s_add_u32 s3, s3, s7"); p("s_lshl_b32 s3, s3, 5")
    p("s_lshl_b32 s7, s5, 2"); p("s_add_u32 s3, s3, s7")
    p("s_and_b32 s7, s6, 1"); p("s_lshl_b32 s7, s7, 1"); p("s_add_u32 s3, s3, s7")
    p("s_lshl_b32 s3, s3, 10"); p(f"s_add_u32 s63, s3, {L.OF}")
    p("s_waitcnt vmcnt(0) lgkmcnt(0)")
    p("s_barrier")
    if 'xcc' in OPT: xcc_check(p)
    def rds(jj):
        for ww in range(4):
            b=16+(jj*4+ww)*8; off=jj*9216+ww*2304
            p(f"ds_read_b128 v[{b}:{b+3}], v118 offset:{off}")
            p(f"ds_read_b128 v[{b+4}:{b+7}], v118 offset:{off+1024}")
            p(f"ds_read_b32 v{80+jj*4+ww}, v119 offset:{off}")
    rds(0)
    for jj in range(2):
        b=16+jj*32; sb=80+jj*4; O=96+10*jj
        if jj==0:
            p("s_waitcnt lgkmcnt(6)")
            for j in range(4): p(f"v_pk_add_f32 v[{b+2*j}:{b+2*j+1}], v[{b+2*j}:{b+2*j+1}], v[{b+8+2*j}:{b+8+2*j+1}]")
            p(f"v_add_f32 v{sb}, v{sb}, v{sb+1}")
            rds(1)
            p("s_waitcnt lgkmcnt(12)")
        else:
            p("s_waitcnt lgkmcnt(6)")
            for j in range(4): p(f"v_pk_add_f32 v[{b+2*j}:{b+2*j+1}], v[{b+2*j}:{b+2*j+1}], v[{b+8+2*j}:{b+8+2*j+1}]")
            p(f"v_add_f32 v{sb}, v{sb}, v{sb+1}")
            p("s_waitcnt lgkmcnt(0)")
        for j in range(4):
            p(f"v_pk_add_f32 v[{b+16+2*j}:{b+16+2*j+1}], v[{b+16+2*j}:{b+16+2*j+1}], v[{b+24+2*j}:{b+24+2*j+1}]")
        p(f"v_add_f32 v{sb+2}, v{sb+2}, v{sb+3}")
        for j in range(4):
            p(f"v_pk_add_f32 v[{O+2*j}:{O+2*j+1}], v[{b+2*j}:{b+2*j+1}], v[{b+16+2*j}:{b+16+2*j+1}]")
        p(f"v_add_f32 v{O+8}, v{sb}, v{sb+2}")
        o_store(p,O,jj)

SLOW=[]
def attention_slow(p):
    vm=SLOW[0]
    p.label("L_slow")
    if 'xcc' in OPT: xcc_publish(p,vm)
    for j in range(4,16): ldK(p,vm,j)
    for j in range(3,16): ldV(p,vm,j)
    for g in wo_dma_groups(vm): emit_group(p,vm,g)
    p("s_waitcnt vmcnt(0)")
    p("s_barrier")
    for x in wo_frag_reads(): p(x)
    for x in w1_setup():
        if isinstance(x,list): emit_group(p,vm,x)
        else: p(x)
    p("s_waitcnt lgkmcnt(0)")
    p("s_barrier")
    for g in w1_dma(0)+w1_dma(1)+w1_dma(2): emit_group(p,vm,g)
    p("s_mov_b32 s64, 0")
    p.label("L_mx")
    p("s_lshl_b32 s3, s64, 10")
    p("v_add_u32 v120, s3, v59")
    p(f"ds_read_b128 v[{QB[1]}:{QB[1]+3}], v120")
    p("v_mov_b32 v121, 0xff800000")
    p("s_waitcnt lgkmcnt(0)")
    p(QK(SB[0],0,QB[1],False))
    for t in range(16):
        S=SB[t%2]; Sn=SB[(t+1)%2]
        if t<15: p(QK(Sn,t+1,QB[1],False))
        for j in range(8): p(f"v_max3_f32 v121, v{S+2*j}, v{S+2*j+1}, v121")
    p("v_mov_b32 v122, v121")
    p("v_permlane32_swap_b32 v121, v122")
    p("v_max_f32 v121, v121, v122")
    p("s_lshl_b32 s3, s64, 9"); p("s_lshl_b32 s7, s6, 7"); p("s_add_u32 s3, s3, s7")
    p("v_and_b32 v122, 31, v0")
    p("v_lshl_add_u32 v122, v122, 2, s3")
    p(f"v_add_u32 v122, {MX}, v122")
    p(f"ds_write_b32 v122, v121")
    p("s_add_u32 s64, s64, 1"); p("s_cmp_lt_u32 s64, 8"); p("s_cbranch_scc1 L_mx")
    p("s_waitcnt lgkmcnt(0)")
    p("s_barrier")
    p("v_and_b32 v122, 31, v0"); p("v_lshlrev_b32 v122, 2, v122")
    p("s_lshl_b32 s3, s6, 10"); p(f"s_add_u32 s3, s3, {MX}"); p("v_add_u32 v122, s3, v122")
    for qq in range(2):
        for ww in range(4): p(f"ds_read_b32 v{16+4*qq+ww}, v122 offset:{qq*512+ww*128}")
    p("s_waitcnt lgkmcnt(0)")
    p("s_lshl_b32 s3, s6, 9"); p(f"s_add_u32 s3, s3, {MF}")
    p("v_lshl_add_u32 v122, v0, 2, s3")
    for qq in range(2):
        b=16+4*qq
        p(f"v_max3_f32 v{b}, v{b}, v{b+1}, v{b+2}"); p(f"v_max_f32 v{b}, v{b}, v{b+3}"); p(f"v_sub_f32 v{b}, 0, v{b}")
        p(f"ds_write_b32 v122, v{b} offset:{qq*256}")
    p("s_waitcnt lgkmcnt(0)")
    p("s_barrier")
    p(f"v_lshlrev_b32 v120, 2, v0"); p(f"v_add_u32 v120, {MF}, v120")
    p(f"ds_read_b32 v121, v120")
    p("v_add_u32 v120, 256, v120")
    p("s_waitcnt lgkmcnt(0)")
    for j in range(16): p(f"v_mov_b32 v{CB+j}, v121")
    p(QK(SB[0],0,QB[0],True))
    att_pass_slow(p)
    if 'xcc' in OPT: xcc_load(p,vm)
    p("s_branch L_att_done")

def att_pass_slow(p):
    att_pass(p,0,first=True,slow=True,vm=None)
    p("s_mov_b32 s64, 4")
    p("s_branch L_sttY")
    p.label("L_sttX")
    att_pass(p,0,slow=True)
    p.label("L_sttY")
    att_pass(p,1,slow=True)
    p("s_sub_u32 s64, s64, 1")
    p("s_cmp_lg_u32 s64, 0")
    p("s_cbranch_scc1 L_sttX")
    p(PV(OB[1],VA+8*15+4,SB[1]+8))
    slot_write(p,OB[1])

def w1_setup():
    F=[]; p=F.append
    p("s_and_b32 s3, s4, 1"); p("s_lshl_b32 s3, s3, 3"); p("s_add_u32 s3, s3, s5")
    p("s_min_u32 s7, s3, 11"); p("s_lshl_b32 s7, s7, 1"); p("s_lshl_b32 s66, s3, 2"); p("s_add_u32 s66, s66, s7")
    p("s_cmp_lt_u32 s3, 11"); F[-1]=[('s',"s_cmp_lt_u32 s3, 11"),('s',"s_cselect_b32 s67, 6, 4")]
    for i in range(3):
        p(f"v_add_u32 v11, {64*i}, v0")
        p("v_mul_u32_u24 v12, 5462, v11"); p("v_lshrrev_b32 v12, 16, v12")
        p("v_mul_u32_u24 v13, 12, v12"); p("v_sub_u32 v13, v11, v13")
        p("v_mul_u32_u24 v12, 2752, v12")
        if i: p(f"v_subrev_u32 v12, {1024*i}, v12")
        p(f"v_lshl_add_u32 v{2+i}, v13, 4, v12")
        p("v_add_u32 v13, 10, v13"); p("v_subrev_u32 v14, 12, v13"); p("v_min_u32 v13, v13, v14")
        p(f"v_lshl_add_u32 v{5+i}, v13, 4, v12")
    p(f"s_mul_i32 s68, s6, {16*2752}"); p("s_lshl_b32 s3, s66, 5"); p("s_add_u32 s68, s68, s3")
    p("s_mul_i32 s69, s6, 3072")
    return F
assert all((c*5462)>>16==c//12 for c in range(192))

def w1_dma(q):
    slot=q%6
    out=[]
    for mat in range(2):
        for i in range(3):
            g=[]
            if i==0: g.append(('s',f"s_add_u32 m0, s69, {slot*SLOT+mat*12288}"))
            if i==0 and mat==0: g.append(('s',f"s_add_u32 s71, s68, {q*64*2752}"))
            nt=' nt' if (('ntw1e' in OPT and q<3) or ('ntw1l' in OPT and q>=3)) else ''
            g.append(('m',('W1',q,3*mat+i),f"buffer_load_dwordx4 v{2+3*mat+i}, {SRD_A if mat==0 else SRD_B}, s71 offen offset:{i*1024}{nt} lds"))
            out.append(g)
    return out

WOA=128
def wo_frag_reads():
    out=[]
    for i in range(16):
        for cc,va in enumerate(('v10','v1')):
            b=WOA+8*i+4*cc
            out.append(f"ds_read_b64_tr_b16 v[{b}:{b+1}], {va} offset:{i*2048}")
            out.append(f"ds_read_b64_tr_b16 v[{b+2}:{b+3}], {va} offset:{i*2048+512}")
    return out

def wo_phase(p):
    p("s_waitcnt vmcnt(0)")
    flag_off(p,F2); set_flag(p,'s3',12)
    stamp(p,'C flag set',vt=14)
    p("s_barrier")
    p("v_and_b32 v12, 31, v0"); p("v_lshlrev_b32 v12, 2, v12")
    p("s_lshl_b32 s30, s4, 7"); p(f"s_add_u32 s30, s30, {F2}")
    p("s_lshl_b32 s31, s61, 5"); p("s_and_b32 s3, s6, 1"); p("s_lshl_b32 s3, s3, 4"); p("s_add_u32 s31, s31, s3")
    p("s_lshl_b32 s31, s31, 10"); p(f"s_add_u32 s31, s31, {L.OF}")
    poll(p,'s2',SRD_WS,'s30','v12',1,13)
    stamp(p,'C S2 done',vt=14)
    vm=VM(p)
    for i in range(16):
        if i%4==0 and i: p(f"s_add_u32 s31, s31, 4096")
        vm.issue(i,f"buffer_load_dwordx4 a[{4*i}:{4*i+3}], v9, {SRD_WS}, s31 offen offset:{(i%4)*1024}{HL1}")
    ACC=[64,80]
    dm=[] if 'w1late' in OPT else w1_dma(3)+w1_dma(4)+w1_dma(5)
    for j in range(8): p(f"v_accvgpr_read_b32 v{112+j}, a{192+j}")
    for i in range(16):
        vm.wait(i)
        for cc in range(2):
            a=ACC[cc]; b=WOA+8*i+4*cc
            p(f"v_mfma_f32_32x32x16_bf16 v[{a}:{a+15}], v[{b}:{b+3}], a[{4*i}:{4*i+3}], {'0' if i==0 else f'v[{a}:{a+15}]'}")
            if dm and (cc==0 or i<2): emit_group(p,vm,dm.pop(0))
    assert not dm
    for j in range(8):
        p(f"v_lshlrev_b32 v{96+2*j}, 16, v{112+j}")
        p(f"v_and_b32 v{97+2*j}, 0xffff0000, v{112+j}")
    stamp(p,'C mfma',vt=14)
    pair_reduce(p,ACC,RED)
    for j in range(8): p(f"v_pk_add_f32 v[{64+2*j}:{65+2*j}], v[{64+2*j}:{65+2*j}], v[{96+2*j}:{97+2*j}]")
    for j in range(8): p(f"v_cvt_pk_bf16_f32 v{32+j}, v{64+2*j}, v{65+2*j}")
    p("s_lshl_b32 s3, s61, 5"); p("s_lshl_b32 s7, s62, 1"); p("s_add_u32 s3, s3, s7"); p("s_lshl_b32 s3, s3, 10"); p(f"s_add_u32 s3, s3, {L.HF}")
    hstore(p,[f"buffer_store_dwordx4 v[32:35], v9, {SRD_WS}, s3 offen",
              f"buffer_store_dwordx4 v[36:39], v9, {SRD_WS}, s3 offen offset:1024"])
    p("v_pk_mul_f32 v[42:43], v[64:65], v[64:65]"); p("v_pk_add_f32 v[40:41], v[64:65], v[66:67]")
    p("v_pk_fma_f32 v[42:43], v[66:67], v[66:67], v[42:43]")
    for j in range(2,8):
        p(f"v_pk_add_f32 v[40:41], v[40:41], v[{64+2*j}:{65+2*j}]"); p(f"v_pk_fma_f32 v[42:43], v[{64+2*j}:{65+2*j}], v[{64+2*j}:{65+2*j}], v[42:43]")
    p("v_add_f32 v40, v40, v41"); p("v_add_f32 v41, v42, v43")
    p("v_mov_b32 v42, v40"); p("v_mov_b32 v43, v41")
    p("v_permlane32_swap_b32 v40, v42"); p("v_permlane32_swap_b32 v41, v43")
    p("v_add_f32 v40, v40, v42"); p("v_add_f32 v41, v41, v43")
    p("s_lshl_b32 s3, s61, 12"); p("s_lshl_b32 s7, s62, 8"); p("s_add_u32 s3, s3, s7"); p(f"s_add_u32 s3, s3, {L.HS}")
    p("v_lshlrev_b32 v12, 3, v0")
    p("s_mov_b32 exec_hi, 0")
    hstore(p,f"buffer_store_dwordx2 v[40:41], v12, {SRD_WS}, s3 offen")
    p("s_mov_b64 exec, -1")
    for j in range(8): p(f"v_accvgpr_write_b32 a{248+j}, v{32+j}")
    flag_off(p,F3)
    p("s_waitcnt vmcnt(0)")
    set_flag(p,'s3',12)
    stamp(p,'C done',vt=14)

def flag_off(p,F):
    p("s_lshl_b32 s3, s4, 7"); p("s_lshl_b32 s7, s5, 4"); p("s_add_u32 s3, s3, s7"); p("s_lshl_b32 s7, s6, 2"); p("s_add_u32 s3, s3, s7")
    p(f"s_add_u32 s3, s3, {F}")

def pair_reduce(p,ACC,base):
    p(f"s_lshl_b32 s3, s6, 12"); p(f"s_add_u32 s3, s3, {base}")
    p("v_add_u32 v12, s3, v9")
    for q in range(4): p(f"ds_write_b128 v12, v[{ACC[1]+4*q}:{ACC[1]+4*q+3}] offset:{q*1024}")
    p("v_xor_b32 v12, 4096, v12")
    p("s_waitcnt lgkmcnt(0)")
    p("s_barrier")
    for q in range(4): p(f"ds_read_b128 v[{ACC[1]+4*q}:{ACC[1]+4*q+3}], v12 offset:{q*1024}")
    for q in range(4):
        p(f"s_waitcnt lgkmcnt({3-q})")
        for j in range(2):
            a=ACC[0]+4*q+2*j; b=ACC[1]+4*q+2*j
            p(f"v_pk_add_f32 v[{a}:{a+1}], v[{a}:{a+1}], v[{b}:{b+1}]")

def ffn1_phase(p):
    p("s_lshr_b32 s70, s4, 1"); p("s_lshl_b32 s70, s70, 2"); p("s_add_u32 s70, s70, s6")
    if 'wdpf' in OPT:
        p("v_lshrrev_b32 v1, 3, v0"); p("v_and_b32 v10, 7, v0")
        w128_voff(p,'v1')
        p("s_lshl_b32 s74, s6, 12"); p("s_lshl_b32 s77, s6, 15")
        p("s_lshr_b32 s3, s6, 1"); p(f"s_mul_i32 s75, s3, {43*16*1024}")
    lane_params(p)
    p("v_mul_u32_u24 v10, 192, v14"); p("v_add_u32 v10, v10, v96")
    p(f"v_mul_u32_u24 v97, {12288+32}, v15"); p("v_add_u32 v28, v10, v97")
    p(f"v_mul_u32_u24 v97, {12288+32-192}, v15"); p("v_add_u32 v29, v10, v97")
    p("v_and_b32 v12, 31, v0"); p("v_lshlrev_b32 v12, 3, v12"); p("v_lshrrev_b32 v13, 5, v0"); p("v_lshl_add_u32 v30, v13, 11, v12")
    p("v_lshlrev_b32 v12, 2, v0")
    p("s_lshr_b32 s30, s4, 1"); p("s_lshl_b32 s30, s30, 8"); p(f"s_add_u32 s30, s30, {F3}")
    poll(p,'s3',SRD_WS,'s30','v12',1,13)
    stamp(p,'D S3 done',vt=12)
    srd(p,24,P_WD,1376*1024)
    p("s_lshr_b32 s79, s2, 3"); p("s_lshl_b32 s79, s79, 2"); p("s_add_u32 s79, s79, s6"); p("s_mul_i32 s79, s79, 11008")
    p("v_lshlrev_b32 v14, 6, v0")
    vm=VM(p)
    p("s_lshl_b32 s30, s70, 15"); p(f"s_add_u32 s30, s30, {L.HF}")
    def ldB(s):
        p(f"s_add_u32 s3, s30, {s*1024}")
        vm.issue(('B',s),f"buffer_load_dwordx4 v[{128+4*s}:{131+4*s}], v9, {SRD_WS}, s3 offen{HL1}")
    p("s_lshl_b32 s31, s70, 12"); p(f"s_add_u32 s31, s31, {L.HS}")
    ldB(0)
    for i in range(8): vm.issue(('S',i),f"buffer_load_dwordx2 v[{32+2*i}:{33+2*i}], v30, {SRD_WS}, s31 offen offset:{i*256}{HL1}")
    LA=int(os.environ.get('LA1','8'))
    for s in range(1,LA): ldB(s)
    NEW='w1late' in OPT
    if not NEW: p("s_barrier")
    AB=[0,24]
    def rdA(s):
        q,ss=divmod(s,4); b=AB[s%2]; out=[]
        for uu in range(6):
            va='v10' if uu<5 else 'v11'
            off=ss*3072+uu*32
            out.append(f"ds_read_b64_tr_b16 a[{b+4*uu}:{b+4*uu+1}], {va} offset:{off}")
            out.append(f"ds_read_b64_tr_b16 a[{b+4*uu+2}:{b+4*uu+3}], {va} offset:{off+768}")
        return out
    def setbase(q):
        slot=q%6
        return [f"v_add_u32 v10, {slot*SLOT}, v28", f"v_add_u32 v11, {slot*SLOT}, v29"]
    for x in setbase(0): p(x)
    for x in rdA(0): p(x)
    vm.wait(('S',7))
    for i in range(2):
        p(f"v_pk_add_f32 v[{32+4*i}:{33+4*i}], v[{32+4*i}:{33+4*i}], v[{34+4*i}:{35+4*i}]")
        p(f"v_pk_add_f32 v[{40+4*i}:{41+4*i}], v[{40+4*i}:{41+4*i}], v[{42+4*i}:{43+4*i}]")
    p("v_pk_add_f32 v[32:33], v[32:33], v[36:37]"); p("v_pk_add_f32 v[40:41], v[40:41], v[44:45]")
    p("v_pk_add_f32 v[16:17], v[32:33], v[40:41]")
    p("v_mov_b32 v18, v16"); p("v_mov_b32 v19, v17")
    p("v_permlane32_swap_b32 v16, v18"); p("v_permlane32_swap_b32 v17, v19")
    p("v_add_f32 v16, v16, v18"); p("v_add_f32 v17, v17, v19")
    p(f"v_mul_f32 v16, {hx(f2u(1/512))}, v16"); p(f"v_mul_f32 v17, {hx(f2u(1/512))}, v17")
    p("v_fma_f32 v17, -v16, v16, v17"); p("v_max_f32 v17, 0, v17"); p(f"v_add_f32 v17, {hx(f2u(1e-5))}, v17")
    p("v_rsq_f32 v17, v17"); p("v_mul_f32 v16, v16, v17"); p("v_sub_f32 v18, 0, v16"); p("v_mov_b32 v19, v18"); p("v_mov_b32 v16, v17")
    def norm(s):
        out=[]
        if 'pknorm' in OPT:
            for i in range(4):
                r=128+4*s+i; t0=20+2*i; t1=21+2*i
                out.append(f"v_lshlrev_b32 v{t0}, 16, v{r}"); out.append(f"v_and_b32 v{t1}, 0xffff0000, v{r}")
            for i in range(4):
                t0=20+2*i
                out.append(f"v_pk_fma_f32 v[{t0}:{t0+1}], v[{t0}:{t0+1}], v[16:17], v[18:19]")
            for i in range(4):
                r=128+4*s+i; t0=20+2*i; t1=21+2*i
                out.append(f"v_cvt_pk_bf16_f32 v{r}, v{t0}, v{t1}")
            return out
        for h2 in range(2):
            for i in (2*h2,2*h2+1):
                r=128+4*s+i; t0=20+2*i; t1=21+2*i
                out.append(f"v_lshlrev_b32 v{t0}, 16, v{r}"); out.append(f"v_and_b32 v{t1}, 0xffff0000, v{r}")
            for i in (2*h2,2*h2+1):
                t0=20+2*i; t1=21+2*i
                out.append(f"v_fma_f32 v{t0}, v{t0}, v16, v18"); out.append(f"v_fma_f32 v{t1}, v{t1}, v16, v18")
            for i in (2*h2,2*h2+1):
                r=128+4*s+i; t0=20+2*i; t1=21+2*i
                out.append(f"v_cvt_pk_bf16_f32 v{r}, v{t0}, v{t1}")
        return out
    vm.wait(('B',0))
    for x in norm(0): p(x)
    stamp(p,'D start',vt=12)
    ACC=[32+16*u for u in range(6)]
    dmas=w1_dma(6)+w1_dma(7)
    DS={}; BAR={}
    def wd_group(g0):
        out=[]
        for j in range(4):
            g=[]
            if j==0:
                g.append(('s',f"s_add_u32 m0, s74, {g0*4096}"))
                g.append(('s',f"s_add_u32 s71, s77, {(g0//20)*43*16*1024+(g0%20)*32768}"))
            g.append(('m',('WD',g0,j),f"buffer_load_dwordx4 v{4+j}, {SRD_O}, s71 offen offset:{j*1024}{' nt' if 'ntwd' in OPT else ''} lds"))
            out.append(g)
        return out
    WDPF='wdpf' in OPT
    if NEW:
        def put(items,s0,per):
            for n,g in enumerate(items): DS.setdefault(s0+n//per,[]).append(g)
        put(w1_dma(3),0,2); put(w1_dma(4)+w1_dma(5),3,2); put(dmas,9,2)
        BAR={8:[('W1',3,5)],14:[('W1',5,5)],20:[('W1',7,5)]}
        if WDPF:
            put(wd_group(36),16,1)
            put(sum((wd_group(g) for g in (12,16,20,24)),[]),20,2)
            put(sum((wd_group(g) for g in (28,32)),[]),28,2)
            BAR[24]=[]
    DPL=tuple(int(x) for x in os.environ.get('DPL','3,5').split(','))
    for s in range(32):
        nxt=s+1
        pre=[]; rd=[]; fill=[]; mem=[]
        if NEW:
            if s in BAR:
                if BAR[s]: vm.wait(*BAR[s])
                p("s_barrier")
        elif s==8:
            p("s_barrier")
        if B2:
            for j in (LA+2*s,LA+2*s+1):
                if j<32: mem.append(('B',j))
        elif s+LA<32: mem.append(('B',s+LA))
        if not NEW and 8<=s<20: mem.append(('D',s-8))
        if 'warm' in OPT and 'wdatt' not in OPT and WD_STEP<=s<WD_STEP+3: mem.append(('W',s-WD_STEP))
        if 'pt' in OPT and s==PT_STEP: mem.append(('P',0))
        if nxt<32:
            qn,ssn=divmod(nxt,4)
            if nxt==24 and not NEW:
                vm.wait(('W1',7,5))
                p("s_barrier")
            if ssn==0: pre=setbase(qn)
            rd=rdA(nxt); fill=norm(nxt)
        if 'x_nofill' in OPT: fill=[]
        if 'x_nord' in OPT: rd=[]
        if 'x_nodma' in OPT and s!=19: mem=[m for m in mem if m[0]!='D']
        if 'x_nodma' in OPT and s==19: mem=[('B',s+LA)]; vm.pos[('W1',7,5)]=vm.n-1
        if 'oldwait' in OPT: p("s_waitcnt lgkmcnt(0)")
        for x in pre: p(x)
        if nxt<32: vm.wait(('B',nxt))
        b=AB[s%2]
        mf=[f"v_mfma_f32_32x32x16_bf16 v[{ACC[uu]}:{ACC[uu]+15}], a[{b+4*uu}:{b+4*uu+3}], v[{128+4*s}:{131+4*s}], {'0' if s==0 else f'v[{ACC[uu]}:{ACC[uu]+15}]'}" for uu in range(6)]
        fi=0
        KS=[3,3,3,3,2,2] if 'pknorm' in OPT else [3,4,3,3,4,3]
        for uu in range(6):
            if 'oldwait' not in OPT:
                if 'wait6' in OPT: p(f"s_waitcnt lgkmcnt({10 if nxt<32 else 2*(5-uu)})")
                elif uu in (0,3): p(f"s_waitcnt lgkmcnt({6 if (nxt<32 or uu==0) else 0})")
            p(mf[uu])
            for x in rd[2*uu:2*uu+2]: p(x)
            k=KS[uu]
            for x in fill[fi:fi+k]: p(x)
            fi+=k
            if uu==1 and mem and mem[0][0]=='B': ldB(mem[0][1])
            if NEW:
                for n,g in enumerate(DS.get(s,[])):
                    if DPL[n]==uu: emit_group(p,vm,g)
                if WDPF and s==15 and uu==5:
                    p("v_mov_b32 v4, v1")
                    for j in range(1,4): p(f"v_add_u32 v{4+j}, {7168*j}, v1")
            if uu==4 and len(mem)>1 and mem[1][0]=='B': ldB(mem[1][1])
            if uu==3:
                for m in mem:
                    if m[0]=='D':
                        emit_group(p,vm,dmas[m[1]])
                    if m[0]=='P':
                        p("s_mul_i32 s3, s70, 86"); p("s_add_u32 s3, s3, s66"); p("s_lshl_b32 s3, s3, 10"); p(f"s_add_u32 s3, s3, {L.AF}")
                        p("v_lshlrev_b32 v13, 7, v0"); p("s_lshl_b32 s7, s67, 3"); p("s_bfm_b64 exec, s7, 0")
                        vm.issue(('P',0),f"buffer_load_dword v15, v13, {SRD_WS}, s3 offen ; nowaitcheck")
                        p("s_mov_b64 exec, -1")
                    if m[0]=='W':
                        p(f"s_add_u32 s3, s79, {m[1]*4096}")
                        vm.issue(('W',m[1]),f"buffer_load_dword v15, v14, {SRD_O}, s3 offen ; nowaitcheck")
        for x in fill[fi:]: p(x)
    stamp(p,'D mfma done',vt=12)
    if NEW and WDPF:
        WD=[[x[1] if x[0]=='s' else x[2] for x in g] for g0 in (0,4,8) for g in wd_group(g0)]
    else:
        p("v_lshrrev_b32 v1, 3, v0"); p("v_and_b32 v10, 7, v0")
        w128_voff(p,'v4')
        for j in range(1,4): p(f"v_add_u32 v{4+j}, {7168*j}, v4")
        p("s_lshr_b32 s3, s6, 1"); p("s_and_b32 s7, s6, 1")
        p(f"s_mul_i32 s30, s3, 81920"); p(f"s_mul_i32 s31, s7, 40960"); p("s_add_u32 s74, s30, s31")
        p(f"s_mul_i32 s75, s3, {43*16*1024}"); p(f"s_mul_i32 s31, s7, {320*1024}"); p("s_add_u32 s77, s31, s75")
        WD=dma128(['v4','v5','v6','v7'],SRD_O,'s74',0,'s77',40,sg='s71')
    p("s_barrier")
    c1=-2*1.4426950408889634*0.7978845608028654; c2=c1*0.044715
    p(f"s_mov_b32 s72, {hx(f2u(c2))}"); p("s_mov_b32 s73, s72")
    p(f"v_mov_b32 v28, {hx(f2u(c1))}"); p("v_mov_b32 v29, v28")
    p("v_mov_b32 v30, 1.0"); p("v_mov_b32 v31, 1.0")
    p("s_mul_i32 s30, s70, 86"); p("s_add_u32 s30, s30, s66"); p("s_lshl_b32 s30, s30, 10"); p(f"s_add_u32 s30, s30, {L.AF}")
    NDU=[8,8,8,8,4,4]
    if NEW and WDPF: NDU=[int(x) for x in os.environ.get('NDU','3,3,3,3,0,0').split(',')]
    k0=0
    for uu in range(6):
        a=ACC[uu]; T=16
        if uu==4:
            p("s_cmp_eq_u32 s67, 4"); p("s_cbranch_scc1 F1_four")
        pr=lambda x,j: f"v[{x+2*j}:{x+2*j+1}]"
        I=[]
        for j in range(4): I.append(f"v_pk_mul_f32 {pr(T,j)}, {pr(a,j)}, {pr(a,j)}")
        for j in range(4): I.append(f"v_pk_fma_f32 {pr(T,j)}, {pr(T,j)}, s[72:73], v[28:29]")
        for j in range(4): I.append(f"v_pk_mul_f32 {pr(T,j)}, {pr(T,j)}, {pr(a,j)}")
        for j in range(8): I.append(f"v_exp_f32 v{T+j}, v{T+j}")
        for j in range(4): I.append(f"v_pk_mul_f32 {pr(a,j)}, {pr(a,j)}, {pr(a+8,j)}")
        for j in range(4): I.append(f"v_pk_add_f32 {pr(T,j)}, {pr(T,j)}, v[30:31]")
        for j in range(8): I.append(f"v_rcp_f32 v{T+j}, v{T+j}")
        for j in range(4): I.append(f"v_pk_mul_f32 {pr(T,j)}, {pr(T,j)}, {pr(a,j)}")
        for j in range(4): I.append(f"v_cvt_pk_bf16_f32 v{24+j}, v{T+2*j}, v{T+2*j+1}")
        G=WD[k0:k0+NDU[uu]]; k0+=NDU[uu]
        gap=len(I)//max(len(G),1)
        for n,x in enumerate(I):
            p(x)
            if n%gap==gap-1 and G:
                for y in G.pop(0): p(y)
        assert not G
        hstore(p,f"buffer_store_dwordx4 v[24:27], v9, {SRD_WS}, s30 offen offset:{(uu%4)*1024}")
        if uu==3: p("s_add_u32 s30, s30, 4096")
    p("s_branch F1_done")
    p.label("F1_four")
    for g in WD[sum(NDU[:4]):]:
        for y in g: p(y)
    p.label("F1_done")
    stamp(p,'D epi done',vt=12)

def ffn2_phase(p):
    flag_off(p,F4)
    p("s_waitcnt vmcnt(0)")
    set_flag(p,'s3',12)
    stamp(p,'E flag set',vt=12)
    srd(p,16,P_WD,1376*1024)
    srd(p,24,P_OUT,2048*1024)
    lane_params(p)
    p("s_and_b32 s3, s6, 1"); p("s_lshl_b32 s3, s3, 2")
    tr_base128(p,'v10',"s3",0)
    p("s_and_b32 s3, s6, 1"); p("s_mul_i32 s3, s3, 81920")
    p("v_add_u32 v10, s3, v10")
    p("v_xor_b32 v11, 64, v10")
    p("v_add_u32 v14, 49152, v10"); p("v_add_u32 v15, 49152, v11")
    p("s_barrier")
    AB=[16+8*b for b in range(4)]
    ACC=[64,80]; NS=43
    def rd(i,ccs=(0,1)):
        b=AB[i%4]
        j=i if i<40 else i-40
        off=j*2048
        va=('v10','v11')
        if 24<=i<40: va=('v14','v15'); off-=49152
        for cc in ccs:
            p(f"ds_read_b64_tr_b16 v[{b+4*cc}:{b+4*cc+1}], {va[cc]} offset:{off}")
            p(f"ds_read_b64_tr_b16 v[{b+4*cc+2}:{b+4*cc+3}], {va[cc]} offset:{off+512}")
    for i in range(3): rd(i)
    p("s_and_b32 s7, s6, 1"); p("s_mul_i32 s3, s7, 3")
    p("s_lshl_b32 s76, s3, 13"); p("s_add_u32 s76, s76, s75"); p(f"s_add_u32 s76, s76, {40*16*1024}")
    p("s_lshl_b32 s77, s3, 10"); p("s_lshr_b32 s3, s6, 1"); p("s_mul_i32 s3, s3, 81920"); p("s_add_u32 s77, s77, s3")
    p("s_mul_i32 s31, s61, 86"); p("s_and_b32 s3, s6, 1"); p("s_mul_i32 s3, s3, 43"); p("s_add_u32 s31, s31, s3")
    p("s_lshl_b32 s31, s31, 10"); p(f"s_add_u32 s31, s31, {L.AF}")
    p("v_lshlrev_b32 v12, 2, v0")
    p("s_lshr_b32 s30, s4, 1"); p("s_lshl_b32 s30, s30, 8"); p(f"s_add_u32 s30, s30, {F4}")
    poll(p,'s4',SRD_WS,'s30','v12',1,13)
    stamp(p,'E S4 done',vt=100)
    vm=VM(p)
    def ldB(i):
        if i%4==0 and i: p(f"s_add_u32 s31, s31, 4096")
        vm.issue(('B',i),f"buffer_load_dwordx4 a[{4*i}:{4*i+3}], v9, {SRD_WS}, s31 offen offset:{(i%4)*1024}{HL1}")
    LA=int(os.environ.get('LA2','8'))
    for i in range(LA): ldB(i)
    for i in range(NS):
        if i==4:
            p("s_barrier")
            for j in range(3):
                p(f"s_add_u32 m0, s77, {j*1024}"); p(f"s_add_u32 s3, s76, {j*8192}")
                vm.issue(('D',j),f"buffer_load_dwordx4 v4, {SRD_A}, s3 offen lds")
        if i==36:
            vm.wait(('D',2))
            p("s_barrier")
        rem=min(2,NS-1-i)
        vm.wait(('B',i),extra=f" lgkmcnt({rem*4})")
        b=AB[i%4]
        for cc in range(2):
            a=ACC[cc]
            p(f"v_mfma_f32_32x32x16_bf16 v[{a}:{a+15}], v[{b+4*cc}:{b+4*cc+3}], a[{4*i}:{4*i+3}], {'0' if i==0 else f'v[{a}:{a+15}]'}")
            if cc==0 and i+LA<NS: ldB(i+LA)
            if i+3<NS: rd(i+3,(cc,))
    stamp(p,'E mfma',vt=12)
    pair_reduce(p,ACC,8192)
    for j in range(8): p(f"v_accvgpr_read_b32 v{32+j}, a{248+j}")
    for j in range(8):
        p(f"v_lshlrev_b32 v{96+2*j}, 16, v{32+j}")
        p(f"v_and_b32 v{97+2*j}, 0xffff0000, v{32+j}")
    for j in range(8): p(f"v_pk_add_f32 v[{64+2*j}:{65+2*j}], v[{64+2*j}:{65+2*j}], v[{96+2*j}:{97+2*j}]")
    for j in range(8): p(f"v_cvt_pk_bf16_f32 v{32+j}, v{64+2*j}, v{65+2*j}")
    p("s_lshl_b32 s3, s62, 6")
    p(f"buffer_store_dwordx4 v[32:35], v8, {SRD_O}, s3 offen")
    p(f"buffer_store_dwordx4 v[36:39], v8, {SRD_O}, s3 offen offset:32")

def build(fname):
    p=Prog()
    end="END_K"
    prologue(p,end)
    stamp(p,'start')
    phase_a(p)
    attention(p)
    wo_phase(p)
    ffn1_phase(p)
    ffn2_phase(p)
    stamp(p,'end',vt=12)
    p.label(end)
    p("s_endpgm")
    attention_slow(p)
    emit_outl(p)
    ins=p.finalize(name='k',check_waits=not os.environ.get('NOCHECK'))
    print(f"{len(ins)} lines, {p.nops} hazard nops",file=sys.stderr)
    ref=open('sequential_preLN__grouped_kv_mqa__geglu_ffn__prompt.s.ref').read()
    hdr=ref.split('; Override')[0]
    out=hdr+f"; @launch grid=(256,1,1) block=(256,1,1) lds={LDS_TOTAL}\n"
    out+='.amdgcn_target "amdgcn-amd-amdhsa--gfx950"\n.text\n'
    out+=f".globl {KNAME}\n.p2align 8\n.type {KNAME},@function\n{KNAME}:\n"+render(ins)
    out+=f""".section .rodata,"a"
.p2align 6
.amdhsa_kernel {KNAME}
  .amdhsa_next_free_vgpr 512
  .amdhsa_next_free_sgpr 96
  .amdhsa_accum_offset 256
  .amdhsa_group_segment_fixed_size 0
  .amdhsa_kernarg_size 96
  .amdhsa_user_sgpr_count 2
  .amdhsa_user_sgpr_kernarg_segment_ptr 1
  .amdhsa_system_sgpr_workgroup_id_x 1
.end_amdhsa_kernel
"""
    open(fname,'w').write(out)

if __name__=='__main__':
    out=sys.argv[1]
    if len(sys.argv)>2: PROFILE=True
    build(out)
    open(out+'.stamps','w').write('\n'.join(STAMPS))
    if DSTAMPS: print(DSTAMPS)
```

```python
import sys, os, struct
from asm import Prog, render
import layout as L

OPT=set(x for x in os.environ.get('OPT','').split(',') if x)
KNAME='sequential_preLN__grouped_kv_mqa__geglu_ffn__prompt_kernel'
QSCALE=1.4426950408889634/4.0
def f2u(x): return struct.unpack('<I',struct.pack('<f',x))[0]
def hx(x): return '0x%08x'%(x & 0xffffffff)

SRD_WS='s[8:11]'; SRD_X='s[12:15]'; SRD_A='s[16:19]'; SRD_B='s[20:23]'; SRD_O='s[24:27]'; SRD_D='s[56:59]'
P_X,P_WQ,P_WK,P_WV,P_WO,P_WG,P_WU,P_WD,P_OUT,P_WS,P_DBG=32,34,36,38,40,44,46,48,50,52,54
SPIN=1<<17

XH0=0; XH1=33792; WQ=67584; WK=XH1; WV=XH1+16384+128
WO_L=0; OP=73728; QL=147456; MX=155648; MF=MX+4096; QM=161792
SLOT=24576; RED=147456
LDS_TOTAL=163840
F2=L.FLG; F3=L.FLG+4096; F4=L.FLG+8192; FX=L.FLG+12288

def srd(p, d, ptr, size):
    p(f"s_mov_b32 s{d}, s{ptr}")
    p(f"s_mov_b32 s{d+1}, s{ptr+1}")
    p(f"s_mov_b32 s{d+2}, {hx(size)}")
    p(f"s_mov_b32 s{d+3}, 0x20000")
def csel(p,d,a,b):
    p(f"s_mov_b32 {d}, {b}"); p(f"s_cmov_b32 {d}, {a}")

PROFILE=False
HL1=' nt' if 'ldnt' in OPT else ('' if 'ldpl' in OPT else (' sc0' if 'ldsc0' in OPT else ' sc1'))
HS1='' if 'l2h' in OPT else ' sc1'
PF_N=int(os.environ.get('PF_N','3'))
PT_STEP=int(os.environ.get('PT_STEP','24'))
FLG_CLR=208
WD_STEP=int(os.environ.get('WD_STEP','24'))
B2='b2' in OPT
PF2_T=int(os.environ.get('PF2_T','8'))
GO_STEP=int(os.environ.get('GO_STEP','16'))
STAMPS=[]
DSTAMPS=[]
def dstamp(p,name,vt):
    slot=len(DSTAMPS)
    if slot>=16: return
    DSTAMPS.append(name)
    lab=f"DST_{slot}_{len(p.lines)}"
    p("s_lshl_b32 s90, s2, 2"); p("s_or_b32 s90, s90, s6")
    p(f"s_cmp_lg_u32 s90, {int(os.environ.get('DWG','40'))*4}"); p(f"s_cbranch_scc1 {lab}")
    p("s_memrealtime s[90:91]")
    p("s_waitcnt lgkmcnt(0) ; nowaitcheck")
    p(f"v_mov_b32 v{vt}, s90"); p(f"v_mov_b32 v{vt+1}, {slot*4}")
    p("s_mov_b64 s[94:95], exec"); p("s_mov_b64 exec, 1")
    p(f"buffer_store_dword v{vt}, v{vt+1}, {SRD_D}, 0 offen")
    p("s_mov_b64 exec, s[94:95]")
    p.label(lab)
DSEL=os.environ.get('DSEL','').split(',')
def stamp(p, name, vt=250, dyn=None, n=1):
    if name in DSEL: dstamp(p,name,vt)
    if not PROFILE: return
    slot=len(STAMPS)
    for i in range(n): STAMPS.append(name+(f"[{i}]" if n>1 else ""))
    lab=f"ST_{slot}_{len(p.lines)}"
    p("s_cmp_lg_u32 s6, 0"); p(f"s_cbranch_scc1 {lab}")
    p("s_memrealtime s[90:91]")
    p("s_memtime s[88:89]")
    p("s_lshl_b32 s92, s2, 3"); p(f"s_add_u32 s92, s92, {L.PROF+slot*2048}")
    if dyn: p(f"s_lshl_b32 s93, {dyn}, 11"); p("s_add_u32 s92, s92, s93")
    p("s_waitcnt lgkmcnt(0) ; nowaitcheck")
    p(f"v_mov_b32 v{vt}, s90"); p(f"v_mov_b32 v{vt+1}, s88"); p(f"v_mov_b32 v{vt+2}, 0")
    p("s_mov_b64 s[94:95], exec"); p("s_mov_b64 exec, 1")
    p(f"buffer_store_dwordx2 v[{vt}:{vt+1}], v{vt+2}, {SRD_WS}, s92 offen")
    p("s_mov_b64 exec, s[94:95]")
    p.label(lab)

class VM:
    def __init__(s,p): s.p=p; s.n=0; s.pos={}
    def issue(s,key,txt):
        s.p(txt); s.pos[key]=s.n; s.n+=1
    def wait(s,*keys,extra=""):
        need=max(s.pos[k] for k in keys)
        c=s.n-1-need
        if c<=63: s.p(f"s_waitcnt vmcnt({c}){extra}")
        elif extra: s.p(f"s_waitcnt{extra}")

def poll(p, name, srd_, soff, vaddr, expect, vt, sleep=0):
    if PROFILE:
        p("s_waitcnt vmcnt(0)")
        stamp(p,name+' own dma',vt={'s1':200,'s4':100}.get(name,14))
    p(f"s_mov_b32 s29, {SPIN}")
    p.label(f"POLL_{name}")
    p(f"buffer_load_dword v{vt}, {vaddr}, {srd_}, {soff} offen sc1")
    p("s_waitcnt vmcnt(0)")
    p(f"v_cmp_ne_u32 vcc, {expect}, v{vt}")
    p("s_cmp_eq_u64 vcc, 0")
    p(f"s_cbranch_scc1 POLLD_{name}")
    if sleep: p(f"s_sleep {sleep}")
    p("s_sub_u32 s29, s29, 1")
    p("s_cmp_lg_u32 s29, 0")
    p(f"s_cbranch_scc1 POLL_{name}")
    p.label(f"POLLD_{name}")

OUTL=[]
def hstore(p, lines):
    if isinstance(lines,str): lines=[lines]
    if 'xcc' not in OPT:
        for x in lines: p(x+HS1)
        return
    k=len(OUTL)
    p("s_cmp_lg_u32 s43, 0"); p(f"s_cbranch_scc1 HST_{k}")
    for x in lines: p(x)
    p.label(f"HSB_{k}")
    OUTL.append((k,[x+' sc1' for x in lines]))
def emit_outl(p):
    for k,lines in OUTL:
        p.label(f"HST_{k}")
        for x in lines: p(x)
        p(f"s_branch HSB_{k}")

def set_flag(p, soff, vt):
    p(f"v_mov_b32 v{vt}, 1"); p(f"v_mov_b32 v{vt+1}, 0")
    p("s_mov_b64 exec, 1")
    hstore(p,f"buffer_store_dword v{vt}, v{vt+1}, {SRD_WS}, {soff} offen")
    p("s_mov_b64 exec, -1")

def prologue(p, end):
    p(f"s_cmp_ge_u32 s2, {0 if 'empty' in OPT else 256}")
    p(f"s_cbranch_scc1 {end}")
    p("s_load_dwordx4 s[32:35], s[0:1], 0")
    p("s_load_dwordx4 s[36:39], s[0:1], 16")
    p("s_load_dwordx2 s[40:41], s[0:1], 32")
    p("s_load_dwordx4 s[44:47], s[0:1], 48")
    p("s_load_dwordx4 s[48:51], s[0:1], 64")
    p("s_load_dwordx2 s[52:53], s[0:1], 88")
    p("s_load_dwordx2 s[54:55], s[0:1], 80")
    p("v_lshrrev_b32 v1, 6, v0")
    p("v_and_b32 v0, 63, v0")
    p("v_readfirstlane_b32 s6, v1")
    p("s_and_b32 s3, s2, 7")
    p("s_lshr_b32 s7, s2, 3")
    p("s_lshr_b32 s4, s7, 3")
    p("s_lshl_b32 s3, s3, 2")
    p("s_add_u32 s4, s4, s3")
    p("s_and_b32 s5, s7, 7")
    p("v_lshlrev_b32 v9, 4, v0")
    if 'codepf' in OPT:
        p("s_getpc_b64 s[60:61]")
        p.label("PF_HERE")
        p("s_lshl_b32 s3, s7, 2"); p("s_add_u32 s3, s3, s6"); p("s_lshl_b32 s3, s3, 9")
        p("v_and_b32 v231, 7, v0"); p("v_lshlrev_b32 v231, 6, v231")
        p("v_add_u32 v231, s3, v231")
        p(f"v_min_u32 v230, END_K-PF_HERE-4, v231")
        p("s_mov_b64 exec, 0xff")
        p(f"global_load_dword v232, v230, s[60:61] ; nowaitcheck")
        p("s_mov_b64 exec, -1")
    p("s_waitcnt lgkmcnt(0)")
    srd(p,8,P_WS,L.WS_USED)
    srd(p,56,P_DBG,256)

def ln_tile(p, X, vaddr, off, extra=None, write=True):
    U=176
    S,S2,Q,Q2=80,82,84,86
    I=[]
    a=I.append
    pr=lambda r: f"v[{r}:{r+1}]"
    for i in range(32):
        a(f"v_lshlrev_b32 v{U+2*i}, 16, v{X+i}")
        a(f"v_and_b32 v{U+2*i+1}, 0xffff0000, v{X+i}")
        if i>=1:
            k=i-1; u=U+2*k; sa=(S,S2)[k%2]; qa=(Q,Q2)[k%2]
            if k<2: a(f"v_pk_mul_f32 {pr(qa)}, {pr(u)}, {pr(u)}")
            else: a(f"v_pk_fma_f32 {pr(qa)}, {pr(u)}, {pr(u)}, {pr(qa)}")
            if k==2 or k==3: a(f"v_pk_add_f32 {pr(sa)}, {pr(U+2*(k-2))}, {pr(u)}")
            elif k>3: a(f"v_pk_add_f32 {pr(sa)}, {pr(sa)}, {pr(u)}")
    u=U+62
    a(f"v_pk_fma_f32 {pr(Q2)}, {pr(u)}, {pr(u)}, {pr(Q2)}")
    a(f"v_pk_add_f32 {pr(S2)}, {pr(S2)}, {pr(u)}")
    a(f"v_pk_add_f32 {pr(S)}, {pr(S)}, {pr(S2)}")
    a(f"v_pk_add_f32 {pr(Q)}, {pr(Q)}, {pr(Q2)}")
    S0,Q0='v80','v82'
    a(f"v_add_f32 v80, v80, v81")
    a(f"v_add_f32 v82, v84, v85")
    for d in ("quad_perm:[1,0,3,2]","quad_perm:[2,3,0,1]","row_half_mirror"):
        a(f"v_add_f32_dpp {S0}, {S0}, {S0} {d} row_mask:0xf bank_mask:0xf")
        a(f"v_add_f32_dpp {Q0}, {Q0}, {Q0} {d} row_mask:0xf bank_mask:0xf")
    a(f"v_mul_f32 {S0}, {hx(f2u(1/512))}, {S0}")
    a(f"v_mul_f32 {Q0}, {hx(f2u(1/512))}, {Q0}")
    a(f"v_fma_f32 {Q0}, -{S0}, {S0}, {Q0}")
    a(f"v_max_f32 {Q0}, 0, {Q0}")
    a(f"v_add_f32 {Q0}, {hx(f2u(1e-5))}, {Q0}")
    a(f"v_rsq_f32 v92, {Q0}")
    a(f"v_sub_f32 v94, 0, {S0}")
    a(f"v_mov_b32 v93, v92")
    a(f"v_mul_f32 v94, v94, v92")
    a(f"v_mov_b32 v95, v94")
    for cb in range(8):
        for i in range(4):
            u=U+2*(4*cb+i)
            a(f"v_pk_fma_f32 {pr(u)}, {pr(u)}, v[92:93], v[94:95]")
        for i in range(4):
            u=U+2*(4*cb+i)
            a(f"v_cvt_pk_bf16_f32 v{X+4*cb+i}, v{u}, v{u+1}")
        if write: a(f"ds_write_b128 {vaddr}, v[{X+4*cb}:{X+4*cb+3}] offset:{off+cb*4224}")
    extra=list(extra or [])
    gap=max(1,(len(I)-8)//max(1,len(extra))) if extra else 0
    for n,x in enumerate(I):
        p(x)
        if extra and n%gap==gap-1:
            for y in extra.pop(0): p(y)
    for g in extra:
        for y in g: p(y)
def ln_write(p, X, vaddr, off):
    for cb in range(8): p(f"ds_write_b128 {vaddr}, v[{X+4*cb}:{X+4*cb+3}] offset:{off+cb*4224}")

def dma128(vregs, srd_, sbase_lds, lds_off, sbase_g, n, sg='s31', nt=''):
    out=[]
    for i in range(n):
        j=i%4; g=[]
        if j==0:
            g.append(f"s_add_u32 m0, {sbase_lds}, {lds_off+i*1024}")
            g.append(f"s_add_u32 {sg}, {sbase_g}, {i*8192}")
        g.append(f"buffer_load_dwordx4 {vregs[j]}, {srd_}, {sg} offen offset:{j*1024}{nt} lds")
        out.append(g)
    return out

def gemm_lds(p, nsteps, readA, readB, mfma, rps, depth=3, nbuf=4, fill=None, hook=None):
    fill=list(fill or []); hook=hook or {}
    for s in range(min(depth,nsteps)):
        readA(s,s%nbuf); readB(s,s%nbuf)
    for s in range(nsteps):
        if s+depth<nsteps:
            readA(s+depth,(s+depth)%nbuf); readB(s+depth,(s+depth)%nbuf)
        rem=min(depth,nsteps-1-s)
        p(f"s_waitcnt lgkmcnt({rem*rps})")
        mfma(s,s%nbuf)
        if s in hook: hook[s]()
        for _ in range(2):
            if fill: p(fill.pop(0))
    for x in fill: p(x)

def tr_base128(p, dst, cbit_sgpr, base, t=97):
    a=f"v{t}"; b=f"v{t+1}"
    p(f"v_and_b32 {a}, 1, v13")
    p(f"v_lshl_add_u32 {a}, v15, 1, {a}")
    if cbit_sgpr: p(f"v_add_u32 {a}, {cbit_sgpr}, {a}")
    p(f"v_lshrrev_b32 {b}, 1, v12")
    p(f"v_lshlrev_b32 {b}, 2, {b}")
    p(f"v_xor_b32 {a}, {a}, {b}")
    p(f"v_lshlrev_b32 {a}, 4, {a}")
    p(f"v_lshrrev_b32 {b}, 1, v13")
    p(f"v_lshl_add_u32 {a}, {b}, 3, {a}")
    p(f"v_lshl_add_u32 {a}, v14, 7, {a}")
    p(f"v_add_u32 {dst}, {base}, {a}")

def lane_params(p):
    p("v_lshrrev_b32 v11, 4, v0")
    p("v_bfe_u32 v12, v0, 2, 2")
    p("v_and_b32 v13, 3, v0")
    p("v_lshrrev_b32 v14, 1, v11")
    p("v_lshl_add_u32 v14, v14, 3, v12")
    p("v_and_b32 v15, 1, v11")
    p("v_and_b32 v96, 1, v13")
    p("v_lshlrev_b32 v96, 4, v96")
    p("v_lshrrev_b32 v97, 1, v13")
    p("v_lshl_add_u32 v96, v97, 3, v96")

def w128_voff(p, dst):
    p("v_lshrrev_b32 v11, 4, v0")
    p("v_and_b32 v11, 1, v11")
    p("v_lshlrev_b32 v11, 2, v11")
    p("v_xor_b32 v11, v11, v10")
    p("v_lshlrev_b32 v11, 4, v11")
    p(f"v_lshl_add_u32 {dst}, v1, 10, v11")
    if 'x_wdx' in OPT and dst=='v1': p("s_xor_b32 s3, s5, 1"); p("s_lshl_b32 s3, s3, 7")
    else: p("s_lshl_b32 s3, s5, 7")
    p(f"v_add_u32 {dst}, s3, {dst}")

VA=64
def phase_a(p):
    p("s_mov_b32 s28, 0x3f803f80")
    srd(p,12,P_X,2048*1024)
    p("s_and_b32 s3, s5, 1")
    p("s_lshl_b32 s60, s4, 1")
    p("s_add_u32 s60, s60, s3")
    p("v_lshrrev_b32 v1, 3, v0")
    p("v_and_b32 v10, 7, v0")
    p("s_lshl_b32 s3, s60, 5")
    p("s_lshl_b32 s7, s6, 3")
    p("s_add_u32 s3, s3, s7")
    p("v_add_u32 v2, s3, v1")
    p("v_lshlrev_b32 v2, 10, v2")
    p("v_lshl_add_u32 v2, v10, 4, v2")
    p("v_xor_b32 v3, 0x8000, v2")
    for cb in range(8):
        p(f"buffer_load_dwordx4 v[{16+4*cb}:{19+4*cb}], v2, {SRD_X}, 0 offen offset:{cb*128}")
    srd(p,16,P_WQ,512*1024)
    w128_voff(p,'v4')
    p("v_lshrrev_b32 v11, 1, v10")
    p("v_mul_u32_u24 v11, 1056, v11")
    p("v_and_b32 v12, 1, v10")
    p("v_mul_u32_u24 v12, 528, v12")
    p("v_add_u32 v5, v11, v12")
    p("s_lshl_b32 s3, s6, 3")
    p("v_add_u32 v11, s3, v1")
    p("v_lshl_add_u32 v5, v11, 4, v5")
    p("v_lshrrev_b32 v11, 5, v0")
    p("v_mul_u32_u24 v11, 528, v11")
    p("v_and_b32 v12, 31, v0")
    p("v_lshl_add_u32 v6, v12, 4, v11")
    lane_params(p)
    p(f"v_mul_u32_u24 v97, {WV-WK}, v15")
    p("v_lshl_add_u32 v97, v14, 5, v97")
    p("v_add_u32 v97, v97, v96")
    p(f"v_add_u32 v8, {WK}, v97")
    p("s_and_b32 s3, s6, 1")
    p("s_lshl_b32 s3, s3, 2")
    tr_base128(p,'v7','s3',WQ)
    p("s_cmp_ge_u32 s5, 2")
    p("s_cselect_b32 s77, 4, 8")
    p("s_sub_u32 s3, s6, 2"); p("s_lshl_b32 s3, s3, 1")
    p("s_cmp_ge_u32 s5, 2"); p("s_cselect_b32 s3, s6, s3")
    p("s_lshl_b32 s75, s3, 17")
    p("s_lshl_b32 s76, s3, 14"); p(f"s_add_u32 s76, s76, {WQ}")
    p("s_lshl_b32 s74, s6, 14")
    p("s_cmp_ge_u32 s5, 2")
    p("s_cbranch_scc1 A_nokvdma")
    p("s_cmp_lg_u32 s6, 2")
    p("s_cbranch_scc1 A_noclr")
    p(f"s_mul_i32 s3, s60, {FLG_CLR}")
    p(f"s_add_u32 s3, s3, {L.FLG}")
    p("v_lshlrev_b32 v11, 2, v0")
    p("v_mov_b32 v12, 0")
    p(f"s_mov_b32 exec_hi, {hx((1<<(FLG_CLR//4-32))-1)}")
    p(f"buffer_store_dword v12, v11, {SRD_WS}, s3 offen sc1")
    p("s_mov_b64 exec, -1")
    p.label("A_noclr")
    p("s_cmp_lt_u32 s6, 2")
    p(f"s_cselect_b32 s20, s{P_WK}, s{P_WV}")
    p(f"s_cselect_b32 s21, s{P_WK+1}, s{P_WV+1}")
    p("s_mov_b32 s22, 16384")
    p("s_mov_b32 s23, 0x20000")
    csel(p,'s30',WK,WV)
    p("s_and_b32 s3, s6, 1")
    p("s_lshl_b32 s3, s3, 13")
    p("s_add_u32 s30, s30, s3")
    for i in range(8):
        if i%4==0: p(f"s_add_u32 m0, s30, {i*1024}"); p(f"s_add_u32 s31, s3, {i*1024}")
        p(f"buffer_load_dwordx4 v9, {SRD_B}, s31 offen offset:{(i%4)*1024} lds")
    stamp(p,'A issued')
    p("s_waitcnt vmcnt(8)")
    p("s_branch A_xw")
    p.label("A_nokvdma")
    p("s_waitcnt vmcnt(0)")
    p.label("A_xw")
    stamp(p,'A x arrived')
    ln_tile(p,16,'v5',XH0,extra=[[f"buffer_load_dwordx4 v[{48+4*cb}:{51+4*cb}], v3, {SRD_X}, 0 offen offset:{cb*128}"] for cb in range(8)])
    for j in range(1,4): p(f"v_add_u32 v{175+j+64}, {7168*j}, v4")
    stamp(p,'A lnA done')
    p("s_cmp_ge_u32 s5, 2")
    p("s_cbranch_scc1 A_wqdma")
    p("s_waitcnt vmcnt(8) lgkmcnt(0)")
    p("s_barrier")
    p("s_cmp_ge_u32 s6, 2")
    p("s_cbranch_scc1 A_wqdma")
    AB_=[96+4*b for b in range(6)]; BB_=[144+4*b for b in range(6)]
    def rA(s,b):
        p(f"ds_read_b64_tr_b16 v[{AB_[b]}:{AB_[b]+1}], v8 offset:{s*512}")
        p(f"ds_read_b64_tr_b16 v[{AB_[b]+2}:{AB_[b]+3}], v8 offset:{s*512+128}")
    def rB(s,b):
        p(f"ds_read_b128 v[{BB_[b]}:{BB_[b]+3}], v6 offset:{XH0+s*1056}")
    p("s_cmp_eq_u32 s6, 1")
    p("s_cbranch_scc1 A_vwave")
    gemm_lds(p,32,rA,rB,lambda s,b: p(f"v_mfma_f32_32x32x16_bf16 v[128:143], v[{AB_[b]}:{AB_[b]+3}], v[{BB_[b]}:{BB_[b]+3}], {'0' if s==0 else 'v[128:143]'}"),3,depth=4,nbuf=6)
    for j in range(4): p(f"v_cvt_pk_bf16_f32 v{88+j}, v{128+2*j}, v{129+2*j}")
    p("s_lshl_b32 s3, s60, 10")
    p(f"s_add_u32 s3, s3, {L.KF}")
    p(f"buffer_store_dwordx4 v[88:91], v9, {SRD_WS}, s3 offen sc1")
    p("v_mul_f32 v84, v128, v128")
    for j in range(1,8): p(f"v_fmac_f32 v84, v{128+j}, v{128+j}")
    p("v_mov_b32 v85, v84")
    p("v_permlane32_swap_b32 v84, v85")
    p("v_add_f32 v84, v84, v85")
    for d in ("row_ror:8","row_ror:4","row_ror:2","row_ror:1"):
        p(f"v_max_f32_dpp v84, v84, v84 {d} row_mask:0xf bank_mask:0xf")
    p("v_readlane_b32 s3, v84, 0")
    p("v_readlane_b32 s7, v84, 16")
    p("s_max_u32 s3, s3, s7")
    p("v_mov_b32 v84, s3")
    p("s_lshl_b32 s7, s60, 7")
    p(f"s_add_u32 s7, s7, {L.KM}")
    p("v_lshlrev_b32 v85, 2, v0")
    p("s_mov_b32 exec_hi, 0")
    p(f"buffer_store_dword v84, v85, {SRD_WS}, s7 offen sc1")
    p("s_mov_b64 exec, -1")
    p("s_waitcnt vmcnt(2)")
    p("s_branch A_kvdone")
    p.label("A_vwave")
    p("v_and_b32 v84, 3, v0")
    p("v_bfe_u32 v85, v0, 2, 1")
    p("v_lshl_add_u32 v84, v85, 3, v84")
    p("v_bfe_u32 v85, v0, 3, 1")
    p("v_lshl_add_u32 v84, v85, 2, v84")
    p("v_and_b32 v85, 16, v0")
    p("v_add_u32 v84, v84, v85")
    p("v_lshrrev_b32 v85, 5, v0")
    p("v_mul_u32_u24 v85, 528, v85")
    p("v_lshl_add_u32 v86, v84, 4, v85")
    def rBv(s,b):
        p(f"ds_read_b128 v[{BB_[b]}:{BB_[b]+3}], v86 offset:{XH0+s*1056}")
    gemm_lds(p,32,rA,rBv,lambda s,b: p(f"v_mfma_f32_32x32x16_bf16 v[128:143], v[{BB_[b]}:{BB_[b]+3}], v[{AB_[b]}:{AB_[b]+3}], {'0' if s==0 else 'v[128:143]'}"),3,depth=4,nbuf=6)
    for j in range(8): p(f"v_cvt_pk_bf16_f32 v{88+j}, v{128+2*j}, v{129+2*j}")
    p("v_xor_b32 v84, 256, v9")
    p("s_lshl_b32 s3, s60, 11")
    p(f"s_add_u32 s3, s3, {L.VF}")
    p("s_mov_b32 exec_lo, 0xffff0000")
    p("s_mov_b32 exec_hi, 0xffff0000")
    p(f"buffer_store_dwordx4 v[88:91], v84, {SRD_WS}, s3 offen sc1")
    p(f"buffer_store_dwordx4 v[92:95], v84, {SRD_WS}, s3 offen offset:1024 sc1")
    p("s_mov_b64 exec, -1")
    p("s_waitcnt vmcnt(2)")
    p("s_branch A_kvdone")
    p.label("A_wqdma")
    p("s_waitcnt vmcnt(0)")
    p.label("A_wqloop")
    p("s_mov_b32 m0, s76")
    for j,vr in enumerate(('v4','v240','v241','v242')):
        p(f"buffer_load_dwordx4 {vr}, {SRD_A}, s75 offen offset:{j*1024}{' nt' if 'ntwq' in OPT else ''} lds")
    p("s_add_u32 s76, s76, 4096"); p("s_add_u32 s75, s75, 32768")
    p("s_sub_u32 s77, s77, 1"); p("s_cmp_lg_u32 s77, 0"); p("s_cbranch_scc1 A_wqloop")
    p.label("A_kvdone")
    stamp(p,'A kvdone')
    ln_tile(p,48,'v5',XH1,write=False)
    p("s_cmp_ge_u32 s5, 2"); p("s_cbranch_scc1 A_nosig")
    p("s_cmp_ge_u32 s6, 2"); p("s_cbranch_scc1 A_nosig2")
    p("s_waitcnt vmcnt(0)")
    p("s_barrier")
    p("s_cmp_lg_u32 s6, 0"); p("s_cbranch_scc1 A_nosig3")
    if 'go2' in OPT:
        p("s_lshr_b32 s3, s60, 5"); p("s_lshl_b32 s3, s3, 6"); p("v_mov_b32 v85, s3")
    else: p("v_mov_b32 v85, 0")
    p("v_mov_b32 v243, 1")
    p("s_mov_b64 exec, 1")
    p(f"buffer_atomic_add v243, v85, {SRD_D}, 0 offen sc0 sc1 ; nowaitcheck")
    p("s_mov_b64 exec, -1")
    stamp(p,'A sig')
    p.label("A_nosig3")
    ln_write(p,48,'v5',XH1)
    p("s_branch A_lnbw")
    p.label("A_nosig2")
    p("s_barrier")
    p.label("A_nosig")
    ln_write(p,48,'v5',XH1)
    p("s_waitcnt vmcnt(0)")
    p.label("A_lnbw")
    p("s_waitcnt lgkmcnt(0)")
    p("s_barrier")
    stamp(p,'A lnB done')
    if 'wowarm' in OPT:
        srd(p,24,P_WO,512*1024)
        p("s_cmp_lt_u32 s5, 2"); p("s_cbranch_scc1 A_nowarm")
        p("s_and_b32 s3, s4, 3"); p("s_mul_i32 s3, s3, 6"); p("s_add_u32 s3, s3, s5"); p("s_sub_u32 s3, s3, 2")
        p("s_lshl_b32 s3, s3, 2"); p("s_add_u32 s3, s3, s6"); p("s_mul_i32 s3, s3, 5504")
        p("v_lshlrev_b32 v247, 6, v0")
        p(f"buffer_load_dword v246, v247, {SRD_O}, s3 offen ; nowaitcheck")
        p("s_add_u32 s3, s3, 4096")
        p("s_mov_b64 exec, 0x3fffff")
        p(f"buffer_load_dword v246, v247, {SRD_O}, s3 offen ; nowaitcheck")
        p("s_mov_b64 exec, -1")
        p.label("A_nowarm")
    def go():
        N=32 if 'go2' in OPT else 64
        p("s_cmp_ge_u32 s5, 2"); p("s_cbranch_scc1 A_nogo")
        p("s_cmp_lg_u32 s6, 0"); p("s_cbranch_scc1 A_nogo")
        p("s_waitcnt vmcnt(0)")
        stamp(p,'A atom ret')
        p(f"v_readfirstlane_b32 s3, v243"); p(f"s_and_b32 s3, s3, {N-1}"); p(f"s_cmp_lg_u32 s3, {N-1}"); p("s_cbranch_scc1 A_nogo")
        p("v_mov_b32 v243, 1")
        if 'go2' in OPT:
            p("s_lshr_b32 s3, s60, 5"); p("s_lshl_b32 s3, s3, 6"); p("s_add_u32 s3, s3, 128"); p("v_mov_b32 v244, s3")
        else: p("v_mov_b32 v244, 128")
        p("s_mov_b64 exec, 1")
        p(f"buffer_store_dword v243, v244, {SRD_D}, 0 offen sc1")
        p("s_mov_b64 exec, -1")
        p.label("A_nogo")
    p("s_lshr_b32 s3, s6, 1")
    p(f"s_mul_i32 s7, s3, {XH1}")
    p("v_add_u32 v6, s7, v6")
    def rA(s,b):
        p(f"ds_read_b64_tr_b16 v[{AB_[b]}:{AB_[b]+1}], v7 offset:{s*2048}")
        p(f"ds_read_b64_tr_b16 v[{AB_[b]+2}:{AB_[b]+3}], v7 offset:{s*2048+512}")
    def rB(s,b):
        p(f"ds_read_b128 v[{BB_[b]}:{BB_[b]+3}], v6 offset:{s*1056}")
    gemm_lds(p,32,rA,rB,lambda s,b: p(f"v_mfma_f32_32x32x16_bf16 v[128:143], v[{AB_[b]}:{AB_[b]+3}], v[{BB_[b]}:{BB_[b]+3}], {'0' if s==0 else 'v[128:143]'}"),3,depth=4,nbuf=6,fill=att_setup(),hook={GO_STEP:go})
    p(f"s_mov_b32 s30, {hx(f2u(QSCALE))}"); p("s_mov_b32 s31, s30")
    if 'wo2' in OPT: p("v_mov_b32 v239, v4")
    else:
        for j in range(1,4): p(f"v_add_u32 v{4+j}, {7168*j}, v4")
    for j in range(8): p(f"v_pk_mul_f32 v[{128+2*j}:{129+2*j}], v[{128+2*j}:{129+2*j}], s[30:31]")
    for j in range(8): p(f"v_cvt_pk_bf16_f32 v{96+j}, v{128+2*j}, v{129+2*j}")
    p("s_lshr_b32 s3, s6, 1")
    p("s_xor_b32 s3, s5, s3"); p("s_and_b32 s3, s3, 1"); p("s_lshl_b32 s3, s3, 2")
    p("s_and_b32 s7, s6, 1"); p("s_lshl_b32 s7, s7, 1"); p("s_add_u32 s3, s3, s7")
    p("s_lshl_b32 s3, s3, 10"); p(f"s_add_u32 s3, s3, {QL}")
    p("v_add_u32 v104, s3, v9")
    p("ds_write_b128 v104, v[96:99]")
    p("ds_write_b128 v104, v[100:103] offset:1024")
    p("v_mul_f32 v104, v128, v128"); p("v_mul_f32 v105, v136, v136")
    for j in range(1,8): p(f"v_fmac_f32 v104, v{128+j}, v{128+j}"); p(f"v_fmac_f32 v105, v{136+j}, v{136+j}")
    p("v_mov_b32 v106, v104"); p("v_mov_b32 v107, v105")
    p("v_permlane32_swap_b32 v104, v106"); p("v_permlane32_swap_b32 v105, v107")
    p("v_add_f32 v104, v104, v106"); p("v_add_f32 v105, v105, v107")
    p("v_max_u32 v104, v104, v105")
    for d in ("row_ror:8","row_ror:4","row_ror:2","row_ror:1"):
        p(f"v_max_u32_dpp v104, v104, v104 {d} row_mask:0xf bank_mask:0xf")
    p("v_readlane_b32 s3, v104, 0")
    p("v_readlane_b32 s7, v104, 16")
    p("s_max_u32 s3, s3, s7")
    p("v_mov_b32 v104, s3")
    p("s_lshl_b32 s7, s6, 2"); p(f"s_add_u32 s7, s7, {QM}")
    p("v_mov_b32 v105, s7")
    p("ds_write_b32 v105, v104")
    stamp(p,'A q done')

def att_setup():
    F=[]; a=F.append
    for i in range(16): a(f"v_mov_b32 v{OB[0]+i}, 0"); a(f"v_mov_b32 v{OB[1]+i}, 0")
    for i in range(4): a(f"v_mov_b32 v{ZR+i}, 0")
    a(f"v_mov_b32 v{IDX}, 0xdddddddd")
    a("s_mov_b32 s80, 0xffff"); a("s_mov_b32 s81, 0xffff")
    a("s_mul_i32 s77, s6, 2304"); a(f"s_add_u32 s77, s77, {OP}")
    a(f"v_add_u32 v{SLA}, s77, v9")
    a("s_add_u32 s77, s77, 2048")
    a(f"v_lshl_add_u32 v{SLB}, v0, 2, s77")
    a(f"v_add_u32 v{QA}, {QL+1024}, v9")
    a(f"v_add_u32 v59, {QL}, v9")
    a(f"v_mov_b32 v60, {QM}")
    a("s_lshl_b32 s42, s6, 14")
    a("s_lshr_b32 s61, s6, 1"); a("s_lshl_b32 s77, s4, 1"); a("s_add_u32 s61, s61, s77")
    a("s_and_b32 s62, s6, 1"); a("s_lshl_b32 s77, s5, 1"); a("s_add_u32 s62, s62, s77")
    a("v_and_b32 v2, 31, v0"); a("s_lshl_b32 s77, s61, 5"); a("v_add_u32 v2, s77, v2"); a("v_lshlrev_b32 v2, 10, v2")
    a("v_lshrrev_b32 v3, 5, v0"); a("v_lshl_add_u32 v8, v3, 4, v2")
    return F

KA=0
SB=[16,32]; OB=[64,80]; QB=[96,100]; CB=104; IDX=48; ZR=52; SLA=56; SLB=57; QA=58; TB=120
THRESH=40.0
VMASK='s[80:81]'

def QK(Sn,kn,Qn,slow): return f"v_mfma_f32_32x32x16_bf16 v[{Sn}:{Sn+15}], a[{KA+4*kn}:{KA+4*kn+3}], v[{Qn}:{Qn+3}], {f'v[{CB}:{CB+15}]' if slow else '0'}"
def PV(O,areg,S): return f"v_smfmac_f32_32x32x32_bf16 v[{O}:{O+15}], a[{areg}:{areg+3}], v[{S}:{S+7}], v{IDX}"

def slot_write(p,O):
    p(f"ds_write_b128 v{SLA}, v[{O}:{O+3}]")
    p(f"ds_write_b128 v{SLA}, v[{O+4}:{O+7}] offset:1024")
    p(f"ds_write_b32 v{SLB}, v{O+8}")

def att_pass(p, ps, first=False, slow=False, vm=None, ev=None):
    ev=ev or {}
    for t in range(16):
        S=SB[t%2]; Sn=SB[(t+1)%2]
        O=OB[ps]; Op=OB[ps] if t>0 else OB[1-ps]
        Qn=QB[ps] if t<15 else QB[1-ps]
        kn=(t+1)%16; tp=(t-1)%16
        e=lambda i: f"v_exp_f32 v{S+i}, v{S+i}"
        pv2=PV(Op,VA+8*tp+4,Sn+8)
        I=[e(0),e(1),pv2,e(2),e(3),e(4),QK(Sn,kn,Qn,slow),e(5),e(6),e(7),e(8),e(9),PV(O,VA+8*t,S),e(10),e(11),e(12),e(13),e(14),e(15)]
        ins={}
        def add(pos,txt): ins.setdefault(pos,[]).append(txt)
        if first and t==0: I[2]=None
        if not first:
            if t==2:
                add(4,f"ds_write_b128 v{SLA}, v[{OB[1-ps]}:{OB[1-ps]+3}]")
                add(8,f"ds_write_b128 v{SLA}, v[{OB[1-ps]+4}:{OB[1-ps]+7}] offset:1024")
                add(10,f"ds_write_b32 v{SLB}, v{OB[1-ps]+8}")
            if t==3:
                add(4,f"v_add_u32 v{SLA}, 9216, v{SLA}"); add(8,f"v_add_u32 v{SLB}, 9216, v{SLB}")
            if t==8:
                Z=OB[1-ps]
                add(16,f"v_mfma_f32_32x32x16_bf16 v[{Z}:{Z+15}], v[{ZR}:{ZR+3}], v[{ZR}:{ZR+3}], 0")
        if t==4:
            Qd=QB[1-ps]
            add(4,f"ds_read_b128 v[{Qd}:{Qd+3}], v{QA}")
            if slow: add(5,f"ds_read_b32 v121, v120")
        if t==5:
            add(4,f"v_add_u32 v{QA}, 1024, v{QA}")
            if slow: add(8,"v_add_u32 v120, 256, v120")
        if t==14:
            add(0,"s_waitcnt lgkmcnt(0)")
        if t==15 and slow:
            for j in range(16): add(1,f"v_mov_b32 v{CB+j}, v121")
        if first and vm is not None:
            vm.wait(('V',t,0))
            if t+4<16: add(4,('K',t+4))
            if t+3<16: add(9,('V',t+3))
        for pos,item in ev.get(t,[]): add(pos,item)
        for i,x in enumerate(I):
            for y in ins.get(i,[]):
                if callable(y): y()
                elif isinstance(y,list): emit_group(p,vm,y)
                elif isinstance(y,tuple): (ldK if y[0]=='K' else ldV)(p,vm,y[1])
                else: p(y)
            if x: p(x)

def spread(ev, items, t0, t1, poss=(1,4,8,11,14,17)):
    n=t1-t0+1; per=-(-len(items)//n); assert per<=len(poss),(per,len(items))
    k=0
    for t in range(t0,t1+1):
        for j in range(per):
            if k<len(items): ev.setdefault(t,[]).append((poss[j*len(poss)//per],items[k])); k+=1

def ldK(p,vm,j):
    p(f"s_add_u32 s3, s30, {j*1024}")
    vm.issue(('K',j),f"buffer_load_dwordx4 a[{KA+4*j}:{KA+4*j+3}], v9, {SRD_WS}, s3 offen sc1")
def ldV(p,vm,j):
    p(f"s_add_u32 s3, s31, {j*2048}")
    p(f"s_mov_b64 exec, {VMASK}")
    vm.issue(('V',j,0),f"buffer_load_dwordx4 a[{VA+8*j}:{VA+8*j+3}], v9, {SRD_WS}, s3 offen sc1")
    vm.issue(('V',j,1),f"buffer_load_dwordx4 a[{VA+8*j+4}:{VA+8*j+7}], v9, {SRD_WS}, s3 offen offset:1024 sc1")
    p("s_mov_b64 exec, -1")

def o_store(p,O,jj):
    p(f"v_rcp_f32 v{TB}, v{O+8}")
    p(f"v_mov_b32 v{TB+1}, v{O+8}")
    p(f"v_mov_b32 v{TB+1}, v{TB}")
    for j in range(4): p(f"v_pk_mul_f32 v[{O+2*j}:{O+2*j+1}], v[{O+2*j}:{O+2*j+1}], v[{TB}:{TB+1}]")
    for j in range(4): p(f"v_cvt_pk_bf16_f32 v{TB+4+j}, v{O+2*j}, v{O+2*j+1}")
    hstore(p,f"buffer_store_dwordx4 v[{TB+4}:{TB+7}], v9, {SRD_WS}, s63 offen offset:{jj*1024}")

def xcc_publish(p,vm):
    lab=f"XP_{len(p.lines)}"
    p("s_getreg_b32 s43, hwreg(HW_REG_XCC_ID, 0, 4)")
    p("s_add_u32 s43, s43, 1")
    p("s_lshr_b32 s86, s4, 1"); p("s_lshl_b32 s86, s86, 6"); p(f"s_add_u32 s86, s86, {FX}")
    p("s_cmp_lg_u32 s6, 0"); p(f"s_cbranch_scc1 {lab}")
    p("s_and_b32 s3, s4, 1"); p("s_lshl_b32 s3, s3, 3"); p("s_add_u32 s3, s3, s5"); p("s_lshl_b32 s3, s3, 2")
    p("v_mov_b32 v12, s43"); p("v_mov_b32 v14, s3")
    p("s_mov_b64 exec, 1")
    vm.issue(('XP',0),f"buffer_store_dword v12, v14, {SRD_WS}, s86 offen sc1")
    p("s_mov_b64 exec, -1")
    p.label(lab)
def xcc_load(p,vm):
    p("v_and_b32 v13, 15, v0"); p("v_lshlrev_b32 v13, 2, v13")
    vm.issue(('XL',0),f"buffer_load_dword v12, v13, {SRD_WS}, s86 offen sc1")
def xcc_check(p):
    p(f"s_mov_b32 s29, {SPIN}")
    p.label("XC_CHK")
    p("v_cmp_eq_u32 vcc, 0, v12")
    p("s_cmp_eq_u64 vcc, 0"); p("s_cbranch_scc1 XC_OK")
    p("s_sub_u32 s29, s29, 1"); p("s_cmp_eq_u32 s29, 0"); p("s_cbranch_scc1 XC_OK")
    p(f"buffer_load_dword v12, v13, {SRD_WS}, s86 offen sc1")
    p("s_waitcnt vmcnt(0)")
    p("s_branch XC_CHK")
    p.label("XC_OK")
    p("v_cmp_ne_u32 vcc, s43, v12")
    p("s_cmp_lg_u64 vcc, 0")
    p("s_cselect_b32 s43, 1, 0")
    if 'xslow' in OPT: p("s_mov_b32 s43, 1")

def wo_dma_groups(vm):
    G=[]
    for n,g in enumerate(dma128(['v239','v240','v241','v242'] if 'wo2' in OPT else ['v4','v5','v6','v7'],SRD_O,'s74',WO_L,'s75',16,sg='s76',nt=' nt' if 'ntwo' in OPT else '')):
        G.append([('s',x) for x in g[:-1]]+[('m',('WO',n),g[-1])])
    G.append([('s',"s_lshl_b32 s76, s62, 6"),('m',('XR',0),f"buffer_load_dwordx4 a[192:195], v8, {SRD_X}, s76 offen")])
    G.append([('m',('XR',1),f"buffer_load_dwordx4 a[196:199], v8, {SRD_X}, s76 offen offset:32")])
    return G
def emit_group(p,vm,g):
    for x in g:
        if x[0]=='s': p(x[1])
        else: vm.issue(x[1],x[2])

def attention(p):
    srd(p,24,P_WO,512*1024)
    p("s_lshl_b32 s75, s6, 17")
    srd(p,16,P_WG,512*2752)
    srd(p,20,P_WU,512*2752)
    p("s_lshr_b32 s78, s2, 3"); p("s_lshl_b32 s78, s78, 2"); p("s_add_u32 s78, s78, s6"); p("s_mul_i32 s78, s78, 6880"); p(f"s_add_u32 s78, s78, {192*2752}")
    p("v_lshlrev_b32 v50, 6, v0")
    if 'pt' in OPT:
        p("v_and_b32 v51, 15, v0"); p("v_lshlrev_b32 v51, 7, v51")
        p("s_lshr_b32 s3, s6, 1"); p("s_lshl_b32 s7, s4, 1"); p("s_add_u32 s3, s3, s7"); p("s_lshl_b32 s3, s3, 5")
        p("s_lshl_b32 s7, s5, 2"); p("s_add_u32 s3, s3, s7")
        p("s_and_b32 s7, s6, 1"); p("s_lshl_b32 s7, s7, 1"); p("s_add_u32 s3, s3, s7")
        p("s_lshl_b32 s3, s3, 10"); p(f"s_add_u32 s82, s3, {L.OF}")
        p("s_lshl_b32 s3, s61, 5"); p("s_lshl_b32 s7, s62, 1"); p("s_add_u32 s3, s3, s7"); p("s_lshl_b32 s3, s3, 10"); p(f"s_add_u32 s83, s3, {L.HF}")
        p("s_lshl_b32 s3, s61, 12"); p("s_lshl_b32 s7, s62, 8"); p("s_add_u32 s3, s3, s7"); p(f"s_add_u32 s84, s3, {L.HS}")
    p("s_lshl_b32 s31, s42, 1"); p(f"s_add_u32 s31, s31, {L.VF}")
    p(f"s_add_u32 s30, s42, {L.KF}")
    lane_params(p)
    p("s_and_b32 s3, s6, 1"); p("s_lshl_b32 s3, s3, 2")
    tr_base128(p,'v10',"s3",WO_L)
    p("s_and_b32 s3, s6, 1"); p("s_lshl_b32 s3, s3, 15")
    p("v_add_u32 v10, s3, v10")
    p("v_xor_b32 v1, 64, v10")
    p("v_lshlrev_b32 v11, 7, v0")
    p("v_mov_b32 v16, 0x3f803f80"); p("v_mov_b32 v20, 0x3afe3f80")
    p("v_and_b32 v13, 59, v0"); p("v_cmp_eq_u32 vcc, 16, v13"); p("v_cndmask_b32 v20, 0, v20, vcc")
    for i in (17,18,19,21,22,23): p(f"v_mov_b32 v{i}, 0")
    for i in range(8): p(f"v_mfma_f32_32x32x16_bf16 a[{VA+16*i}:{VA+16*i+15}], v[16:19], v[20:23], 0")
    stamp(p,'B pre-S1',vt=200)
    p("s_cmp_lg_u32 s6, 0"); p("s_cbranch_scc1 B_s1skip")
    if 'go2' in OPT: p("v_and_b32 v62, 1, v0"); p("v_lshlrev_b32 v62, 6, v62"); p("v_add_u32 v62, 128, v62")
    else: p("v_mov_b32 v62, 128")
    poll(p,'s1',SRD_D,'0','v62',1,61,sleep=int(os.environ.get('S1SLEEP','1')))
    p.label("B_s1skip")
    p("s_waitcnt lgkmcnt(0)")
    p("s_barrier")
    stamp(p,'B S1 done',vt=200)
    vm=VM(p)
    p(f"s_mov_b32 s3, {L.KM}")
    vm.issue('KM',f"buffer_load_dword v61, v11, {SRD_WS}, s3 offen sc1")
    ldK(p,vm,0)
    p(f"ds_read_b128 v[{QB[0]}:{QB[0]+3}], v59")
    p(f"ds_read_b128 v[104:107], v60")
    ldK(p,vm,1); ldV(p,vm,0); ldK(p,vm,2); ldV(p,vm,1); ldK(p,vm,3); ldV(p,vm,2)
    p("s_waitcnt lgkmcnt(0)")
    p("v_max_u32 v60, v104, v105"); p("v_max3_u32 v60, v60, v106, v107")
    vm.wait('KM')
    for d in ("row_ror:8","row_ror:4","row_ror:2","row_ror:1"):
        p(f"v_max_u32_dpp v61, v61, v61 {d} row_mask:0xf bank_mask:0xf")
    p("v_readlane_b32 s3, v61, 0"); p("v_readlane_b32 s7, v61, 16"); p("s_max_u32 s3, s3, s7")
    p("v_readlane_b32 s7, v61, 32"); p("s_max_u32 s3, s3, s7")
    p("v_readlane_b32 s7, v61, 48"); p("s_max_u32 s65, s3, s7")
    p("v_mul_f32 v60, s65, v60")
    p(f"v_cmp_nge_f32 vcc, {hx(f2u(THRESH*THRESH/(1.02*1.02)))}, v60")
    p("s_cmp_lg_u64 vcc, 0")
    p("s_cbranch_scc1 L_slow")
    vm.wait(('K',0))
    p(QK(SB[0],0,QB[0],False))
    stamp(p,'B first',vt=200)
    import copy
    SLOW.append(vm)
    vm=copy.copy(vm); vm.pos=dict(vm.pos)
    ev0={}
    if 'wowarm2' in OPT:
        ev0[int(os.environ.get('WOT','13'))]=[(11,[('s',"s_lshr_b32 s85, s2, 3"),('s',"s_lshl_b32 s85, s85, 2"),('s',"s_add_u32 s85, s85, s6"),('s',"s_lshl_b32 s85, s85, 12"),
              ('m',('WOW',0),f"buffer_load_dword v49, v50, {SRD_O}, s85 offen ; nowaitcheck")])]
    att_pass(p,0,first=True,vm=vm,ev=ev0)
    vm.wait(('V',15,1))
    stamp(p,'B pass0',vt=200)
    if 'wo2' in OPT:
        DPOS=tuple(int(x) for x in os.environ.get('DPOS','13,13').split(',')); DT1=18//len(DPOS)
        THIN=0
        WOG=wo_dma_groups(vm)
        ev={}
        ev[0]=[(11,[('s',"s_lshr_b32 s85, s2, 3"),('s',"s_lshl_b32 s85, s85, 2"),('s',"s_add_u32 s85, s85, s6"),('s',"s_lshl_b32 s85, s85, 12"),
              ('m',('WOW',0),f"buffer_load_dword v49, v50, {SRD_O}, s85 offen ; nowaitcheck")])]
        if 'xcc' in OPT:
            class NV:
                def issue(s_,k,t): p(t)
            ev.setdefault(1,[]).append((4,lambda: xcc_publish(p,NV())))
        W1T=int(os.environ.get('W1T','10'))
        for n,(t,sr,off) in enumerate(((0,SRD_A,0),(1,SRD_B,0),(2,SRD_A,4096),(3,SRD_B,4096))):
            g=[('m',('WARM',n),f"buffer_load_dword v49, v50, {sr}, s78 offen ; nowaitcheck")]
            if n==2: g=[('s',"s_add_u32 s78, s78, 4096")]+g
            ev.setdefault(W1T+t,[]).append((11,g))
        spread(ev,w1_setup(),2,9,poss=(1,4,8,11,14,17))
        att_pass(p,1,vm=vm,ev=ev)
        ev={}
        W0=int(os.environ.get('WOD0','0')); spread(ev,WOG,W0,W0+DT1-1,poss=DPOS)
        att_pass(p,0,vm=vm,ev=ev)
    else:
        DPOS=tuple(int(x) for x in os.environ.get('DPOS','13,13').split(',')); DT1=18//len(DPOS)
        THIN=int(os.environ.get('THIN','0')); TPOS=int(os.environ.get('TPOS','4'))
        WOG=wo_dma_groups(vm)
        ev={}
        if THIN: spread(ev,WOG[:16],0,15,poss=(TPOS,))
        else:
            W0=int(os.environ.get('WOD0','7' if 'wowarm3' in OPT else '1')); spread(ev,WOG,W0,W0+DT1-1,poss=DPOS)
        if 'xcc' in OPT:
            class NV:
                def issue(s_,k,t): p(t)
            ev.setdefault(0,[]).append((4,lambda: xcc_publish(p,NV())))
        if 'wowarm3' in OPT:
            ev.setdefault(int(os.environ.get('WOT','0')),[]).append((11,[('s',"s_lshr_b32 s85, s2, 3"),('s',"s_lshl_b32 s85, s85, 2"),('s',"s_add_u32 s85, s85, s6"),('s',"s_lshl_b32 s85, s85, 12"),
              ('m',('WOW',0),f"buffer_load_dword v49, v50, {SRD_O}, s85 offen ; nowaitcheck")]))
        att_pass(p,1,vm=vm,ev=ev)
        ev={}
        if 'warm' in OPT:
            for n,(t,sr,off) in enumerate(((0,SRD_A,0),(1,SRD_B,0),(2,SRD_A,4096),(3,SRD_B,4096))):
                g=[('m',('WARM',n),f"buffer_load_dword v49, v50, {sr}, s78 offen ; nowaitcheck")]
                if n==2: g=[('s',"s_add_u32 s78, s78, 4096")]+g
                ev.setdefault(t,[]).append((11,g))
        if THIN:
            for n,g in enumerate(WOG[16:]): ev.setdefault(4+n,[]).append((TPOS,g))
        spread(ev,w1_setup(),4,13,poss=(1,4,8,11,14,17))
        att_pass(p,0,vm=vm,ev=ev)
    ev={0:[(0,lambda: vm.wait(('XR',1))),(0,"s_barrier")]}
    spread(ev,wo_frag_reads(),0,12,poss=(1,4,8,11,14))
    att_pass(p,1,vm=vm,ev=ev)
    ev={0:[(0,"s_barrier")]}
    W1G=w1_dma(0)+w1_dma(1)+w1_dma(2)
    if THIN: spread(ev,W1G[:15],1,15,poss=(TPOS,))
    else: spread(ev,W1G,1,DT1,poss=DPOS)
    att_pass(p,0,vm=vm,ev=ev)
    ev={}
    if THIN:
        for n,g in enumerate(W1G[15:]): ev.setdefault((0,1,3)[n],[]).append((TPOS,g))
    if 'pt' in OPT:
        ev.setdefault(2,[]); ev[2]+=[(4,[('m',('PT',0),f"buffer_load_dword v49, v51, {SRD_WS}, s82 offen ; nowaitcheck")])]
        ev[6]=[(4,[('m',('PT',1),f"buffer_load_dword v49, v51, {SRD_WS}, s83 offen ; nowaitcheck")])]
        ev[10]=[(4,[('s',"s_mov_b64 exec, 3"),('m',('PT',2),f"buffer_load_dword v49, v51, {SRD_WS}, s84 offen ; nowaitcheck"),('s',"s_mov_b64 exec, -1")])]
    att_pass(p,1,vm=vm,ev=ev)
    ev={}
    if 'codepf2' in OPT:
        NL=int(os.environ.get('PF2_LINES','4'))
        def pf2():
            p("s_getpc_b64 s[84:85]")
            p.label("PF2_HERE")
            p("s_lshr_b32 s3, s2, 3"); p("s_lshl_b32 s3, s3, 2"); p("s_add_u32 s3, s3, s6"); p(f"s_mul_i32 s3, s3, {NL*64}")
            p(f"v_and_b32 v50, {NL-1}, v0"); p("v_lshlrev_b32 v50, 6, v50"); p("v_add_u32 v50, s3, v50")
            p("v_add_u32 v50, L_att_tail-PF2_HERE, v50")
            p("v_min_u32 v50, END_K-PF2_HERE-4, v50")
            p(f"s_mov_b64 exec, {(1<<NL)-1}")
            vm.issue(('PF2',0),"global_load_dword v49, v50, s[84:85] ; nowaitcheck")
            p("s_mov_b64 exec, -1")
        ev[PF2_T]=[(4,pf2)]
    if 'wdatt' in OPT:
        g=[('s',f"s_mov_b32 s24, s{P_WD}"),('s',f"s_mov_b32 s25, s{P_WD+1}"),('s',f"s_mov_b32 s26, {hx(1376*1024)}"),
           ('s',"s_lshr_b32 s79, s2, 3"),('s',"s_lshl_b32 s79, s79, 2"),('s',"s_add_u32 s79, s79, s6"),('s',"s_mul_i32 s79, s79, 11008"),('s',"v_lshlrev_b32 v51, 6, v0")]
        ev.setdefault(0,[]).append((4,g))
        WDT=int(os.environ.get('WDT','1'))
        for n in range(0 if 'x_nowd' in OPT else 3):
            g=[('m',('WDW',n),f"buffer_load_dword v49, v51, {SRD_O}, s79 offen ; nowaitcheck")]
            if n<2: g.append(('s',"s_add_u32 s79, s79, 4096"))
            ev.setdefault(WDT+2*n,[]).append((11,g))
    if 'xcc' in OPT: ev.setdefault(12,[]).append((4,lambda: xcc_load(p,vm)))
    att_pass(p,0,vm=vm,ev=ev)
    att_pass(p,1,vm=vm)
    p.label("L_att_tail")
    p(PV(OB[1],VA+8*15+4,SB[1]+8))
    slot_write(p,OB[1])
    p.label("L_att_done")
    stamp(p,'B loop done',vt=14)
    p("s_mul_i32 s3, s6, 18432"); p(f"s_add_u32 s3, s3, {OP}")
    p("v_add_u32 v118, s3, v9")
    p("s_add_u32 s3, s3, 2048")
    p("v_lshl_add_u32 v119, v0, 2, s3")
    p("s_lshr_b32 s3, s6, 1"); p("s_lshl_b32 s7, s4, 1"); p("s_add_u32 s3, s3, s7"); p("s_lshl_b32 s3, s3, 5")
    p("s_lshl_b32 s7, s5, 2"); p("s_add_u32 s3, s3, s7")
    p("s_and_b32 s7, s6, 1"); p("s_lshl_b32 s7, s7, 1"); p("s_add_u32 s3, s3, s7")
    p("s_lshl_b32 s3, s3, 10"); p(f"s_add_u32 s63, s3, {L.OF}")
    p("s_waitcnt vmcnt(0) lgkmcnt(0)")
    p("s_barrier")
    if 'xcc' in OPT: xcc_check(p)
    if 'pnorm' in OPT:
        p("s_lshl_b32 s3, s61, 12"); p("s_lshl_b32 s7, s62, 8"); p("s_add_u32 s3, s3, s7"); p(f"s_add_u32 s3, s3, {L.HS}")
        p("v_mov_b32 v122, -1"); p("v_mov_b32 v123, -1"); p("v_lshlrev_b32 v124, 3, v0")
        p("s_mov_b32 exec_hi, 0")
        hstore(p,f"buffer_store_dwordx2 v[122:123], v124, {SRD_WS}, s3 offen")
        p("s_mov_b64 exec, -1")
    def rds(jj):
        for ww in range(4):
            b=16+(jj*4+ww)*8; off=jj*9216+ww*2304
            p(f"ds_read_b128 v[{b}:{b+3}], v118 offset:{off}")
            p(f"ds_read_b128 v[{b+4}:{b+7}], v118 offset:{off+1024}")
            p(f"ds_read_b32 v{80+jj*4+ww}, v119 offset:{off}")
    rds(0)
    for jj in range(2):
        b=16+jj*32; sb=80+jj*4; O=96+10*jj
        if jj==0:
            p("s_waitcnt lgkmcnt(6)")
            for j in range(4): p(f"v_pk_add_f32 v[{b+2*j}:{b+2*j+1}], v[{b+2*j}:{b+2*j+1}], v[{b+8+2*j}:{b+8+2*j+1}]")
            p(f"v_add_f32 v{sb}, v{sb}, v{sb+1}")
            rds(1)
            p("s_waitcnt lgkmcnt(12)")
        else:
            p("s_waitcnt lgkmcnt(6)")
            for j in range(4): p(f"v_pk_add_f32 v[{b+2*j}:{b+2*j+1}], v[{b+2*j}:{b+2*j+1}], v[{b+8+2*j}:{b+8+2*j+1}]")
            p(f"v_add_f32 v{sb}, v{sb}, v{sb+1}")
            p("s_waitcnt lgkmcnt(0)")
        for j in range(4):
            p(f"v_pk_add_f32 v[{b+16+2*j}:{b+16+2*j+1}], v[{b+16+2*j}:{b+16+2*j+1}], v[{b+24+2*j}:{b+24+2*j+1}]")
        p(f"v_add_f32 v{sb+2}, v{sb+2}, v{sb+3}")
        for j in range(4):
            p(f"v_pk_add_f32 v[{O+2*j}:{O+2*j+1}], v[{b+2*j}:{b+2*j+1}], v[{b+16+2*j}:{b+16+2*j+1}]")
        p(f"v_add_f32 v{O+8}, v{sb}, v{sb+2}")
        o_store(p,O,jj)

SLOW=[]
def attention_slow(p):
    vm=SLOW[0]
    p.label("L_slow")
    if 'xcc' in OPT: xcc_publish(p,vm)
    for j in range(4,16): ldK(p,vm,j)
    for j in range(3,16): ldV(p,vm,j)
    for g in wo_dma_groups(vm): emit_group(p,vm,g)
    p("s_waitcnt vmcnt(0)")
    p("s_barrier")
    for x in wo_frag_reads(): p(x)
    for x in w1_setup():
        if isinstance(x,list): emit_group(p,vm,x)
        else: p(x)
    p("s_waitcnt lgkmcnt(0)")
    p("s_barrier")
    for g in w1_dma(0)+w1_dma(1)+w1_dma(2): emit_group(p,vm,g)
    p("s_mov_b32 s64, 0")
    p.label("L_mx")
    p("s_lshl_b32 s3, s64, 10")
    p("v_add_u32 v120, s3, v59")
    p(f"ds_read_b128 v[{QB[1]}:{QB[1]+3}], v120")
    p("v_mov_b32 v121, 0xff800000")
    p("s_waitcnt lgkmcnt(0)")
    p(QK(SB[0],0,QB[1],False))
    for t in range(16):
        S=SB[t%2]; Sn=SB[(t+1)%2]
        if t<15: p(QK(Sn,t+1,QB[1],False))
        for j in range(8): p(f"v_max3_f32 v121, v{S+2*j}, v{S+2*j+1}, v121")
    p("v_mov_b32 v122, v121")
    p("v_permlane32_swap_b32 v121, v122")
    p("v_max_f32 v121, v121, v122")
    p("s_lshl_b32 s3, s64, 9"); p("s_lshl_b32 s7, s6, 7"); p("s_add_u32 s3, s3, s7")
    p("v_and_b32 v122, 31, v0")
    p("v_lshl_add_u32 v122, v122, 2, s3")
    p(f"v_add_u32 v122, {MX}, v122")
    p(f"ds_write_b32 v122, v121")
    p("s_add_u32 s64, s64, 1"); p("s_cmp_lt_u32 s64, 8"); p("s_cbranch_scc1 L_mx")
    p("s_waitcnt lgkmcnt(0)")
    p("s_barrier")
    p("v_and_b32 v122, 31, v0"); p("v_lshlrev_b32 v122, 2, v122")
    p("s_lshl_b32 s3, s6, 10"); p(f"s_add_u32 s3, s3, {MX}"); p("v_add_u32 v122, s3, v122")
    for qq in range(2):
        for ww in range(4): p(f"ds_read_b32 v{16+4*qq+ww}, v122 offset:{qq*512+ww*128}")
    p("s_waitcnt lgkmcnt(0)")
    p("s_lshl_b32 s3, s6, 9"); p(f"s_add_u32 s3, s3, {MF}")
    p("v_lshl_add_u32 v122, v0, 2, s3")
    for qq in range(2):
        b=16+4*qq
        p(f"v_max3_f32 v{b}, v{b}, v{b+1}, v{b+2}"); p(f"v_max_f32 v{b}, v{b}, v{b+3}"); p(f"v_sub_f32 v{b}, 0, v{b}")
        p(f"ds_write_b32 v122, v{b} offset:{qq*256}")
    p("s_waitcnt lgkmcnt(0)")
    p("s_barrier")
    p(f"v_lshlrev_b32 v120, 2, v0"); p(f"v_add_u32 v120, {MF}, v120")
    p(f"ds_read_b32 v121, v120")
    p("v_add_u32 v120, 256, v120")
    p("s_waitcnt lgkmcnt(0)")
    for j in range(16): p(f"v_mov_b32 v{CB+j}, v121")
    p(QK(SB[0],0,QB[0],True))
    att_pass_slow(p)
    if 'xcc' in OPT: xcc_load(p,vm)
    p("s_branch L_att_done")

def att_pass_slow(p):
    att_pass(p,0,first=True,slow=True,vm=None)
    p("s_mov_b32 s64, 4")
    p("s_branch L_sttY")
    p.label("L_sttX")
    att_pass(p,0,slow=True)
    p.label("L_sttY")
    att_pass(p,1,slow=True)
    p("s_sub_u32 s64, s64, 1")
    p("s_cmp_lg_u32 s64, 0")
    p("s_cbranch_scc1 L_sttX")
    p(PV(OB[1],VA+8*15+4,SB[1]+8))
    slot_write(p,OB[1])

def w1_setup():
    F=[]; p=F.append
    p("s_and_b32 s3, s4, 1"); p("s_lshl_b32 s3, s3, 3"); p("s_add_u32 s3, s3, s5")
    p("s_min_u32 s7, s3, 11"); p("s_lshl_b32 s7, s7, 1"); p("s_lshl_b32 s66, s3, 2"); p("s_add_u32 s66, s66, s7")
    p("s_cmp_lt_u32 s3, 11"); F[-1]=[('s',"s_cmp_lt_u32 s3, 11"),('s',"s_cselect_b32 s67, 6, 4")]
    for i in range(3):
        p(f"v_add_u32 v11, {64*i}, v0")
        p("v_mul_u32_u24 v12, 5462, v11"); p("v_lshrrev_b32 v12, 16, v12")
        p("v_mul_u32_u24 v13, 12, v12"); p("v_sub_u32 v13, v11, v13")
        p("v_mul_u32_u24 v12, 2752, v12")
        if i: p(f"v_subrev_u32 v12, {1024*i}, v12")
        p(f"v_lshl_add_u32 v{2+i}, v13, 4, v12")
        p("v_add_u32 v13, 10, v13"); p("v_subrev_u32 v14, 12, v13"); p("v_min_u32 v13, v13, v14")
        p(f"v_lshl_add_u32 v{5+i}, v13, 4, v12")
    p(f"s_mul_i32 s68, s6, {16*2752}"); p("s_lshl_b32 s3, s66, 5"); p("s_add_u32 s68, s68, s3")
    p("s_mul_i32 s69, s6, 3072")
    return F
assert all((c*5462)>>16==c//12 for c in range(192))

def w1_dma(q):
    slot=q%6
    out=[]
    for mat in range(2):
        for i in range(3):
            g=[]
            if i==0 or ('w1wait' in OPT and q>=3): g.append(('s',f"s_add_u32 m0, s69, {slot*SLOT+mat*12288}"))
            if i==0 and mat==0: g.append(('s',f"s_add_u32 s71, s68, {q*64*2752}"))
            nt=' nt' if (('ntw1e' in OPT and q<3) or ('ntw1l' in OPT and q>=3)) else ''
            g.append(('m',('W1',q,3*mat+i),f"buffer_load_dwordx4 v{2+3*mat+i}, {SRD_A if mat==0 else SRD_B}, s71 offen offset:{i*1024}{nt} lds"))
            out.append(g)
    return out

WOA=128
def wo_frag_reads():
    out=[]
    for i in range(16):
        for cc,va in enumerate(('v10','v1')):
            b=WOA+8*i+4*cc
            out.append(f"ds_read_b64_tr_b16 v[{b}:{b+1}], {va} offset:{i*2048}")
            out.append(f"ds_read_b64_tr_b16 v[{b+2}:{b+3}], {va} offset:{i*2048+512}")
    return out

def wo_phase(p):
    p("s_waitcnt vmcnt(0)")
    flag_off(p,F2); set_flag(p,'s3',12)
    stamp(p,'C flag set',vt=14)
    p("s_barrier")
    WW=os.environ.get('WW','3,4,5').split(',') if 'w1wait' in OPT else []
    class NV2:
        def issue(s_,k,t): p(t)
    def wdma(q):
        for g in w1_dma(q): emit_group(p,NV2(),g)
    if '3' in WW: wdma(3)
    p("v_and_b32 v12, 31, v0"); p("v_lshlrev_b32 v12, 2, v12")
    p("s_lshl_b32 s30, s4, 7"); p(f"s_add_u32 s30, s30, {F2}")
    p("s_lshl_b32 s31, s61, 5"); p("s_and_b32 s3, s6, 1"); p("s_lshl_b32 s3, s3, 4"); p("s_add_u32 s31, s31, s3")
    p("s_lshl_b32 s31, s31, 10"); p(f"s_add_u32 s31, s31, {L.OF}")
    poll(p,'s2',SRD_WS,'s30','v12',1,13)
    stamp(p,'C S2 done',vt=14)
    vm=VM(p)
    for i in range(16):
        if i%4==0 and i: p(f"s_add_u32 s31, s31, 4096")
        vm.issue(i,f"buffer_load_dwordx4 a[{4*i}:{4*i+3}], v9, {SRD_WS}, s31 offen offset:{(i%4)*1024}{HL1}")
    ACC=[64,80]
    dm=[] if 'w1late' in OPT else w1_dma(3)+w1_dma(4)+w1_dma(5)
    for j in range(8): p(f"v_accvgpr_read_b32 v{112+j}, a{192+j}")
    for i in range(16):
        vm.wait(i)
        for cc in range(2):
            a=ACC[cc]; b=WOA+8*i+4*cc
            p(f"v_mfma_f32_32x32x16_bf16 v[{a}:{a+15}], v[{b}:{b+3}], a[{4*i}:{4*i+3}], {'0' if i==0 else f'v[{a}:{a+15}]'}")
            if dm and (cc==0 or i<2): emit_group(p,vm,dm.pop(0))
    assert not dm
    for j in range(8):
        p(f"v_lshlrev_b32 v{96+2*j}, 16, v{112+j}")
        p(f"v_and_b32 v{97+2*j}, 0xffff0000, v{112+j}")
    stamp(p,'C mfma',vt=14)
    if '4' in WW: wdma(4)
    pair_reduce(p,ACC,RED)
    for j in range(8): p(f"v_pk_add_f32 v[{64+2*j}:{65+2*j}], v[{64+2*j}:{65+2*j}], v[{96+2*j}:{97+2*j}]")
    if 'pnorm' in OPT:
        wo_tail_pnorm(p); return
    for j in range(8): p(f"v_cvt_pk_bf16_f32 v{32+j}, v{64+2*j}, v{65+2*j}")
    p("s_lshl_b32 s3, s61, 5"); p("s_lshl_b32 s7, s62, 1"); p("s_add_u32 s3, s3, s7"); p("s_lshl_b32 s3, s3, 10"); p(f"s_add_u32 s3, s3, {L.HF}")
    hstore(p,[f"buffer_store_dwordx4 v[32:35], v9, {SRD_WS}, s3 offen",
              f"buffer_store_dwordx4 v[36:39], v9, {SRD_WS}, s3 offen offset:1024"])
    p("v_pk_mul_f32 v[42:43], v[64:65], v[64:65]"); p("v_pk_add_f32 v[40:41], v[64:65], v[66:67]")
    p("v_pk_fma_f32 v[42:43], v[66:67], v[66:67], v[42:43]")
    for j in range(2,8):
        p(f"v_pk_add_f32 v[40:41], v[40:41], v[{64+2*j}:{65+2*j}]"); p(f"v_pk_fma_f32 v[42:43], v[{64+2*j}:{65+2*j}], v[{64+2*j}:{65+2*j}], v[42:43]")
    p("v_add_f32 v40, v40, v41"); p("v_add_f32 v41, v42, v43")
    p("v_mov_b32 v42, v40"); p("v_mov_b32 v43, v41")
    p("v_permlane32_swap_b32 v40, v42"); p("v_permlane32_swap_b32 v41, v43")
    p("v_add_f32 v40, v40, v42"); p("v_add_f32 v41, v41, v43")
    p("s_lshl_b32 s3, s61, 12"); p("s_lshl_b32 s7, s62, 8"); p("s_add_u32 s3, s3, s7"); p(f"s_add_u32 s3, s3, {L.HS}")
    p("v_lshlrev_b32 v12, 3, v0")
    p("s_mov_b32 exec_hi, 0")
    hstore(p,f"buffer_store_dwordx2 v[40:41], v12, {SRD_WS}, s3 offen")
    p("s_mov_b64 exec, -1")
    for j in range(8): p(f"v_accvgpr_write_b32 a{248+j}, v{32+j}")
    flag_off(p,F3)
    p("s_waitcnt vmcnt(0)")
    set_flag(p,'s3',12)
    stamp(p,'C done',vt=14)

def ln_stats(p,b):
    for i in range(2):
        p(f"v_pk_add_f32 v[{b+4*i}:{b+1+4*i}], v[{b+4*i}:{b+1+4*i}], v[{b+2+4*i}:{b+3+4*i}]")
        p(f"v_pk_add_f32 v[{b+8+4*i}:{b+9+4*i}], v[{b+8+4*i}:{b+9+4*i}], v[{b+10+4*i}:{b+11+4*i}]")
    p(f"v_pk_add_f32 v[{b}:{b+1}], v[{b}:{b+1}], v[{b+4}:{b+5}]"); p(f"v_pk_add_f32 v[{b+8}:{b+9}], v[{b+8}:{b+9}], v[{b+12}:{b+13}]")
    p(f"v_pk_add_f32 v[16:17], v[{b}:{b+1}], v[{b+8}:{b+9}]")
    p("v_mov_b32 v18, v16"); p("v_mov_b32 v19, v17")
    p("v_permlane32_swap_b32 v16, v18"); p("v_permlane32_swap_b32 v17, v19")
    p("v_add_f32 v16, v16, v18"); p("v_add_f32 v17, v17, v19")
    p(f"v_mul_f32 v16, {hx(f2u(1/512))}, v16"); p(f"v_mul_f32 v17, {hx(f2u(1/512))}, v17")
    p("v_fma_f32 v17, -v16, v16, v17"); p("v_max_f32 v17, 0, v17"); p(f"v_add_f32 v17, {hx(f2u(1e-5))}, v17")
    p("v_rsq_f32 v17, v17"); p("v_mul_f32 v16, v16, v17"); p("v_sub_f32 v18, 0, v16"); p("v_mov_b32 v19, v18"); p("v_mov_b32 v16, v17")

def wo_tail_pnorm(p):
    p("v_pk_mul_f32 v[42:43], v[64:65], v[64:65]"); p("v_pk_add_f32 v[40:41], v[64:65], v[66:67]")
    p("v_pk_fma_f32 v[42:43], v[66:67], v[66:67], v[42:43]")
    for j in range(2,8):
        p(f"v_pk_add_f32 v[40:41], v[40:41], v[{64+2*j}:{65+2*j}]"); p(f"v_pk_fma_f32 v[42:43], v[{64+2*j}:{65+2*j}], v[{64+2*j}:{65+2*j}], v[42:43]")
    p("v_add_f32 v40, v40, v41"); p("v_add_f32 v41, v42, v43")
    p("v_mov_b32 v42, v40"); p("v_mov_b32 v43, v41")
    p("v_permlane32_swap_b32 v40, v42"); p("v_permlane32_swap_b32 v41, v43")
    p("s_lshl_b32 s31, s61, 12"); p(f"s_add_u32 s31, s31, {L.HS}"); p("s_lshl_b32 s7, s62, 8"); p("s_add_u32 s3, s31, s7")
    p("v_add_f32 v40, v40, v42"); p("v_add_f32 v41, v41, v43")
    p("v_lshlrev_b32 v12, 3, v0")
    p("s_mov_b32 exec_hi, 0")
    hstore(p,f"buffer_store_dwordx2 v[40:41], v12, {SRD_WS}, s3 offen")
    p("s_mov_b64 exec, -1")
    p("v_and_b32 v12, 31, v0"); p("v_lshlrev_b32 v12, 3, v12"); p("v_lshrrev_b32 v13, 5, v0"); p("v_lshl_add_u32 v30, v13, 11, v12")
    def lds_():
        for i in range(8): p(f"buffer_load_dwordx2 v[{96+2*i}:{97+2*i}], v30, {SRD_WS}, s31 offen offset:{i*256} sc1")
    lds_()
    for j in range(8): p(f"v_cvt_pk_bf16_f32 v{32+j}, v{64+2*j}, v{65+2*j}")
    for j in range(8): p(f"v_accvgpr_write_b32 a{248+j}, v{32+j}")
    p("s_lshl_b32 s3, s61, 5"); p("s_lshl_b32 s7, s62, 1"); p("s_add_u32 s3, s3, s7"); p("s_lshl_b32 s3, s3, 10"); p(f"s_add_u32 s30, s3, {L.HF}")
    p(f"s_mov_b32 s29, {SPIN}")
    p.label("POLL_hs")
    p("s_waitcnt vmcnt(0)")
    p("v_max3_u32 v112, v97, v99, v101"); p("v_max3_u32 v113, v103, v105, v107"); p("v_max3_u32 v112, v112, v109, v111"); p("v_max_u32 v112, v112, v113")
    p("v_cmp_eq_u32 vcc, -1, v112")
    p("s_cmp_eq_u64 vcc, 0"); p("s_cbranch_scc1 POLLD_hs")
    p("s_sub_u32 s29, s29, 1"); p("s_cmp_eq_u32 s29, 0"); p("s_cbranch_scc1 POLLD_hs")
    lds_()
    p("s_branch POLL_hs")
    p.label("POLLD_hs")
    stamp(p,'C stats',vt=12)
    ln_stats(p,96)
    for j in range(8): p(f"v_pk_fma_f32 v[{64+2*j}:{65+2*j}], v[{64+2*j}:{65+2*j}], v[16:17], v[18:19]")
    for j in range(8): p(f"v_cvt_pk_bf16_f32 v{32+j}, v{64+2*j}, v{65+2*j}")
    hstore(p,[f"buffer_store_dwordx4 v[32:35], v9, {SRD_WS}, s30 offen",
              f"buffer_store_dwordx4 v[36:39], v9, {SRD_WS}, s30 offen offset:1024"])
    flag_off(p,F3)
    p("s_waitcnt vmcnt(0)")
    set_flag(p,'s3',12)
    stamp(p,'C done',vt=14)
    if 'w1wait' in OPT and '5' in os.environ.get('WW','3,4,5').split(','):
        class NV2:
            def issue(s_,k,t): p(t)
        for g in w1_dma(5): emit_group(p,NV2(),g)

def flag_off(p,F):
    p("s_lshl_b32 s3, s4, 7"); p("s_lshl_b32 s7, s5, 4"); p("s_add_u32 s3, s3, s7"); p("s_lshl_b32 s7, s6, 2"); p("s_add_u32 s3, s3, s7")
    p(f"s_add_u32 s3, s3, {F}")

def pair_reduce(p,ACC,base):
    p(f"s_lshl_b32 s3, s6, 12"); p(f"s_add_u32 s3, s3, {base}")
    p("v_add_u32 v12, s3, v9")
    for q in range(4): p(f"ds_write_b128 v12, v[{ACC[1]+4*q}:{ACC[1]+4*q+3}] offset:{q*1024}")
    p("v_xor_b32 v12, 4096, v12")
    p("s_waitcnt lgkmcnt(0)")
    p("s_barrier")
    for q in range(4): p(f"ds_read_b128 v[{ACC[1]+4*q}:{ACC[1]+4*q+3}], v12 offset:{q*1024}")
    for q in range(4):
        p(f"s_waitcnt lgkmcnt({3-q})")
        for j in range(2):
            a=ACC[0]+4*q+2*j; b=ACC[1]+4*q+2*j
            p(f"v_pk_add_f32 v[{a}:{a+1}], v[{a}:{a+1}], v[{b}:{b+1}]")

def ffn1_phase(p):
    p("s_lshr_b32 s70, s4, 1"); p("s_lshl_b32 s70, s70, 2"); p("s_add_u32 s70, s70, s6")
    if 'wdpf' in OPT:
        p("v_lshrrev_b32 v1, 3, v0"); p("v_and_b32 v10, 7, v0")
        w128_voff(p,'v1')
        p("s_lshl_b32 s74, s6, 12"); p("s_lshl_b32 s77, s6, 15")
        p("s_lshr_b32 s3, s6, 1"); p(f"s_mul_i32 s75, s3, {43*16*1024}")
    lane_params(p)
    p("v_mul_u32_u24 v10, 192, v14"); p("v_add_u32 v10, v10, v96")
    p(f"v_mul_u32_u24 v97, {12288+32}, v15"); p("v_add_u32 v28, v10, v97")
    p(f"v_mul_u32_u24 v97, {12288+32-192}, v15"); p("v_add_u32 v29, v10, v97")
    p("v_and_b32 v12, 31, v0"); p("v_lshlrev_b32 v12, 3, v12"); p("v_lshrrev_b32 v13, 5, v0"); p("v_lshl_add_u32 v30, v13, 11, v12")
    p("v_lshlrev_b32 v12, 2, v0")
    p("s_lshr_b32 s30, s4, 1"); p("s_lshl_b32 s30, s30, 8"); p(f"s_add_u32 s30, s30, {F3}")
    poll(p,'s3',SRD_WS,'s30','v12',1,13)
    stamp(p,'D S3 done',vt=12)
    srd(p,24,P_WD,1376*1024)
    p("s_lshr_b32 s79, s2, 3"); p("s_lshl_b32 s79, s79, 2"); p("s_add_u32 s79, s79, s6"); p("s_mul_i32 s79, s79, 11008")
    p("v_lshlrev_b32 v14, 6, v0")
    vm=VM(p)
    p("s_lshl_b32 s30, s70, 15"); p(f"s_add_u32 s30, s30, {L.HF}")
    def ldB(s):
        p(f"s_add_u32 s3, s30, {s*1024}")
        vm.issue(('B',s),f"buffer_load_dwordx4 v[{128+4*s}:{131+4*s}], v9, {SRD_WS}, s3 offen{HL1}")
    p("s_lshl_b32 s31, s70, 12"); p(f"s_add_u32 s31, s31, {L.HS}")
    PN='pnorm' in OPT
    ldB(0)
    if not PN:
        for i in range(8): vm.issue(('S',i),f"buffer_load_dwordx2 v[{32+2*i}:{33+2*i}], v30, {SRD_WS}, s31 offen offset:{i*256}{HL1}")
    LA=int(os.environ.get('LA1','8'))
    for s in range(1,LA): ldB(s)
    NEW='w1late' in OPT
    if not NEW: p("s_barrier")
    AB=[0,24]
    def rdA(s):
        q,ss=divmod(s,4); b=AB[s%2]; out=[]
        for uu in range(6):
            va='v10' if uu<5 else 'v11'
            off=ss*3072+uu*32
            out.append(f"ds_read_b64_tr_b16 a[{b+4*uu}:{b+4*uu+1}], {va} offset:{off}")
            out.append(f"ds_read_b64_tr_b16 a[{b+4*uu+2}:{b+4*uu+3}], {va} offset:{off+768}")
        return out
    def setbase(q):
        slot=q%6
        return [f"v_add_u32 v10, {slot*SLOT}, v28", f"v_add_u32 v11, {slot*SLOT}, v29"]
    for x in setbase(0): p(x)
    for x in rdA(0): p(x)
    if not PN:
        vm.wait(('S',7))
        ln_stats(p,32)
    def norm(s):
        out=[]
        if PN: return out
        if 'pknorm' in OPT:
            for i in range(4):
                r=128+4*s+i; t0=20+2*i; t1=21+2*i
                out.append(f"v_lshlrev_b32 v{t0}, 16, v{r}"); out.append(f"v_and_b32 v{t1}, 0xffff0000, v{r}")
            for i in range(4):
                t0=20+2*i
                out.append(f"v_pk_fma_f32 v[{t0}:{t0+1}], v[{t0}:{t0+1}], v[16:17], v[18:19]")
            for i in range(4):
                r=128+4*s+i; t0=20+2*i; t1=21+2*i
                out.append(f"v_cvt_pk_bf16_f32 v{r}, v{t0}, v{t1}")
            return out
        for h2 in range(2):
            for i in (2*h2,2*h2+1):
                r=128+4*s+i; t0=20+2*i; t1=21+2*i
                out.append(f"v_lshlrev_b32 v{t0}, 16, v{r}"); out.append(f"v_and_b32 v{t1}, 0xffff0000, v{r}")
            for i in (2*h2,2*h2+1):
                t0=20+2*i; t1=21+2*i
                out.append(f"v_fma_f32 v{t0}, v{t0}, v16, v18"); out.append(f"v_fma_f32 v{t1}, v{t1}, v16, v18")
            for i in (2*h2,2*h2+1):
                r=128+4*s+i; t0=20+2*i; t1=21+2*i
                out.append(f"v_cvt_pk_bf16_f32 v{r}, v{t0}, v{t1}")
        return out
    vm.wait(('B',0))
    for x in norm(0): p(x)
    stamp(p,'D start',vt=12)
    ACC=[32+16*u for u in range(6)]
    dmas=w1_dma(6)+w1_dma(7)
    DS={}; BAR={}
    def wd_group(g0,vb=4):
        out=[]
        for j in range(4):
            g=[]
            if j==0 or 'w1wait' in OPT: g.append(('s',f"s_add_u32 m0, s74, {g0*4096}"))
            if j==0:
                g.append(('s',f"s_add_u32 s76, s77, {(g0//20)*43*16*1024+(g0%20)*32768}"))
            g.append(('m',('WD',g0,j),f"buffer_load_dwordx4 v{vb+j}, {SRD_O}, s76 offen offset:{j*1024}{' nt' if 'ntwd' in OPT else ''} lds"))
            out.append(g)
        return out
    WDPF='wdpf' in OPT
    if NEW:
        def put(items,s0,per):
            for n,g in enumerate(items): DS.setdefault(s0+n//per,[]).append(g)
        SWS=15
        if 'w1wait' in OPT:
            assert WDPF and PN
            WW=os.environ.get('WW','3,4,5').split(',')
            late=[q for q in (3,4,5) if str(q) not in WW]
            put(sum((w1_dma(q) for q in late),[]),0,2)
            put(w1_dma(6),8,1); put(w1_dma(7),14,1)
            BAR={8:[('W1',q,5) for q in late],20:[('W1',6,5)]}
            SWS=19
            p("v_mov_b32 v20, v1")
            for j in range(1,4): p(f"v_add_u32 v{20+j}, {7168*j}, v1")
            put(wd_group(36,20),int(os.environ.get('RA0','2')),1)
        else:
            put(w1_dma(3),0,2); put(w1_dma(4)+w1_dma(5),3,2); put(dmas,9,2)
            BAR={8:[('W1',3,5)],14:[('W1',5,5)],20:[('W1',7,5)]}
        if WDPF:
            if 'w1wait' not in OPT: put(wd_group(36),16,1)
            put(sum((wd_group(g) for g in (12,16,20,24)),[]),20,2)
            put(sum((wd_group(g) for g in (28,32)),[]),28,2)
            BAR[24]=[('W1',7,5)] if 'w1wait' in OPT else []
    DPL=tuple(int(x) for x in os.environ.get('DPL','3,5,4').split(','))
    SKP={int(x):n for n,x in enumerate(os.environ.get('SKP','0,1,2,3').split(','))}
    if 'skew0' in OPT: BAR[int(os.environ.get('SK0','1'))]=[]
    for s in range(32):
        nxt=s+1
        pre=[]; rd=[]; fill=[]; mem=[]
        SKEW='skew' in OPT
        if NEW:
            if s in BAR and not SKEW:
                if BAR[s]: vm.wait(*BAR[s])
                p("s_barrier")
        elif s==8:
            p("s_barrier")
        if B2:
            for j in (LA+2*s,LA+2*s+1):
                if j<32: mem.append(('B',j))
        elif s+LA<32: mem.append(('B',s+LA))
        if not NEW and 8<=s<20: mem.append(('D',s-8))
        if 'warm' in OPT and 'wdatt' not in OPT and WD_STEP<=s<WD_STEP+3: mem.append(('W',s-WD_STEP))
        if 'pt' in OPT and s==PT_STEP: mem.append(('P',0))
        if nxt<32:
            qn,ssn=divmod(nxt,4)
            if nxt==24 and not NEW:
                vm.wait(('W1',7,5))
                p("s_barrier")
            if ssn==0: pre=setbase(qn)
            rd=rdA(nxt); fill=norm(nxt)
        if 'x_nofill' in OPT: fill=[]
        if 'x_nord' in OPT: rd=[]
        if 'x_nodma' in OPT and s!=19: mem=[m for m in mem if m[0]!='D']
        if 'x_nodma' in OPT and s==19: mem=[('B',s+LA)]; vm.pos[('W1',7,5)]=vm.n-1
        if 'oldwait' in OPT: p("s_waitcnt lgkmcnt(0)")
        for x in pre: p(x)
        if PN: vm.wait(('B',s))
        elif nxt<32: vm.wait(('B',nxt))
        b=AB[s%2]
        mf=[f"v_mfma_f32_32x32x16_bf16 v[{ACC[uu]}:{ACC[uu]+15}], a[{b+4*uu}:{b+4*uu+3}], v[{128+4*s}:{131+4*s}], {'0' if s==0 else f'v[{ACC[uu]}:{ACC[uu]+15}]'}" for uu in range(6)]
        fi=0
        KS=[3,3,3,3,2,2] if 'pknorm' in OPT else [3,4,3,3,4,3]
        for uu in range(6):
            if 'oldwait' not in OPT:
                if 'wait6' in OPT: p(f"s_waitcnt lgkmcnt({10 if nxt<32 else 2*(5-uu)})")
                elif uu in (0,3): p(f"s_waitcnt lgkmcnt({6 if (nxt<32 or uu==0) else 0})")
            p(mf[uu])
            for x in rd[2*uu:2*uu+2]: p(x)
            k=KS[uu]
            for x in fill[fi:fi+k]: p(x)
            fi+=k
            if NEW and SKEW and s in BAR and uu in SKP:
                lab=f"SKW_{s}_{uu}"
                p(f"s_cmp_lg_u32 s6, {SKP[uu]}"); p(f"s_cbranch_scc1 {lab}")
                if BAR[s]: vm.wait(*BAR[s])
                p("s_barrier")
                p.label(lab)
            if uu==1 and mem and mem[0][0]=='B': ldB(mem[0][1])
            if NEW:
                for n,g in enumerate(DS.get(s,[])):
                    if DPL[n]==uu: emit_group(p,vm,g)
                if WDPF and s==SWS and uu==5:
                    p("v_mov_b32 v4, v1")
                    for j in range(1,4): p(f"v_add_u32 v{4+j}, {7168*j}, v1")
            if uu==4 and len(mem)>1 and mem[1][0]=='B': ldB(mem[1][1])
            if uu==3:
                for m in mem:
                    if m[0]=='D':
                        emit_group(p,vm,dmas[m[1]])
                    if m[0]=='P':
                        p("s_mul_i32 s3, s70, 86"); p("s_add_u32 s3, s3, s66"); p("s_lshl_b32 s3, s3, 10"); p(f"s_add_u32 s3, s3, {L.AF}")
                        p("v_lshlrev_b32 v13, 7, v0"); p("s_lshl_b32 s7, s67, 3"); p("s_bfm_b64 exec, s7, 0")
                        vm.issue(('P',0),f"buffer_load_dword v15, v13, {SRD_WS}, s3 offen ; nowaitcheck")
                        p("s_mov_b64 exec, -1")
                    if m[0]=='W':
                        p(f"s_add_u32 s3, s79, {m[1]*4096}")
                        vm.issue(('W',m[1]),f"buffer_load_dword v15, v14, {SRD_O}, s3 offen ; nowaitcheck")
        for x in fill[fi:]: p(x)
    stamp(p,'D mfma done',vt=12)
    if NEW and WDPF:
        WD=[[x[1] if x[0]=='s' else x[2] for x in g] for g0 in (0,4,8) for g in wd_group(g0)]
    else:
        p("v_lshrrev_b32 v1, 3, v0"); p("v_and_b32 v10, 7, v0")
        w128_voff(p,'v4')
        for j in range(1,4): p(f"v_add_u32 v{4+j}, {7168*j}, v4")
        p("s_lshr_b32 s3, s6, 1"); p("s_and_b32 s7, s6, 1")
        p(f"s_mul_i32 s30, s3, 81920"); p(f"s_mul_i32 s31, s7, 40960"); p("s_add_u32 s74, s30, s31")
        p(f"s_mul_i32 s75, s3, {43*16*1024}"); p(f"s_mul_i32 s31, s7, {320*1024}"); p("s_add_u32 s77, s31, s75")
        WD=dma128(['v4','v5','v6','v7'],SRD_O,'s74',0,'s77',40,sg='s71')
    p("s_barrier")
    c1=-2*1.4426950408889634*0.7978845608028654; c2=c1*0.044715
    p(f"s_mov_b32 s72, {hx(f2u(c2))}"); p("s_mov_b32 s73, s72")
    p(f"v_mov_b32 v28, {hx(f2u(c1))}"); p("v_mov_b32 v29, v28")
    p("v_mov_b32 v30, 1.0"); p("v_mov_b32 v31, 1.0")
    p("s_mul_i32 s30, s70, 86"); p("s_add_u32 s30, s30, s66"); p("s_lshl_b32 s30, s30, 10"); p(f"s_add_u32 s30, s30, {L.AF}")
    NDU=[8,8,8,8,4,4]
    if NEW and WDPF: NDU=[int(x) for x in os.environ.get('NDU','3,3,3,3,0,0').split(',')]
    k0=0
    for uu in range(6):
        a=ACC[uu]; T=16
        if uu==4:
            p("s_cmp_eq_u32 s67, 4"); p("s_cbranch_scc1 F1_four")
        pr=lambda x,j: f"v[{x+2*j}:{x+2*j+1}]"
        I=[]
        for j in range(4): I.append(f"v_pk_mul_f32 {pr(T,j)}, {pr(a,j)}, {pr(a,j)}")
        for j in range(4): I.append(f"v_pk_fma_f32 {pr(T,j)}, {pr(T,j)}, s[72:73], v[28:29]")
        for j in range(4): I.append(f"v_pk_mul_f32 {pr(T,j)}, {pr(T,j)}, {pr(a,j)}")
        for j in range(8): I.append(f"v_exp_f32 v{T+j}, v{T+j}")
        for j in range(4): I.append(f"v_pk_mul_f32 {pr(a,j)}, {pr(a,j)}, {pr(a+8,j)}")
        for j in range(4): I.append(f"v_pk_add_f32 {pr(T,j)}, {pr(T,j)}, v[30:31]")
        for j in range(8): I.append(f"v_rcp_f32 v{T+j}, v{T+j}")
        for j in range(4): I.append(f"v_pk_mul_f32 {pr(T,j)}, {pr(T,j)}, {pr(a,j)}")
        for j in range(4): I.append(f"v_cvt_pk_bf16_f32 v{24+j}, v{T+2*j}, v{T+2*j+1}")
        G=WD[k0:k0+NDU[uu]]; k0+=NDU[uu]
        gap=len(I)//max(len(G),1)
        for n,x in enumerate(I):
            p(x)
            if n%gap==gap-1 and G:
                for y in G.pop(0): p(y)
        assert not G
        hstore(p,f"buffer_store_dwordx4 v[24:27], v9, {SRD_WS}, s30 offen offset:{(uu%4)*1024}")
        if uu==3: p("s_add_u32 s30, s30, 4096")
    p("s_branch F1_done")
    p.label("F1_four")
    for g in WD[sum(NDU[:4]):]:
        for y in g: p(y)
    p.label("F1_done")
    stamp(p,'D epi done',vt=12)

def ffn2_phase(p):
    flag_off(p,F4)
    p("s_waitcnt vmcnt(0)")
    set_flag(p,'s3',12)
    stamp(p,'E flag set',vt=12)
    srd(p,16,P_WD,1376*1024)
    srd(p,24,P_OUT,2048*1024)
    lane_params(p)
    p("s_and_b32 s3, s6, 1"); p("s_lshl_b32 s3, s3, 2")
    tr_base128(p,'v10',"s3",0)
    p("s_and_b32 s3, s6, 1"); p("s_mul_i32 s3, s3, 81920")
    p("v_add_u32 v10, s3, v10")
    p("v_xor_b32 v11, 64, v10")
    p("v_add_u32 v14, 49152, v10"); p("v_add_u32 v15, 49152, v11")
    p("s_barrier")
    AB=[16+8*b for b in range(4)]
    ACC=[64,80]; NS=43
    def rd(i,ccs=(0,1)):
        b=AB[i%4]
        j=i if i<40 else i-40
        off=j*2048
        va=('v10','v11')
        if 24<=i<40: va=('v14','v15'); off-=49152
        for cc in ccs:
            p(f"ds_read_b64_tr_b16 v[{b+4*cc}:{b+4*cc+1}], {va[cc]} offset:{off}")
            p(f"ds_read_b64_tr_b16 v[{b+4*cc+2}:{b+4*cc+3}], {va[cc]} offset:{off+512}")
    for i in range(3): rd(i)
    p("s_and_b32 s7, s6, 1"); p("s_mul_i32 s3, s7, 3")
    p("s_lshl_b32 s76, s3, 13"); p("s_add_u32 s76, s76, s75"); p(f"s_add_u32 s76, s76, {40*16*1024}")
    p("s_lshl_b32 s77, s3, 10"); p("s_lshr_b32 s3, s6, 1"); p("s_mul_i32 s3, s3, 81920"); p("s_add_u32 s77, s77, s3")
    p("s_mul_i32 s31, s61, 86"); p("s_and_b32 s3, s6, 1"); p("s_mul_i32 s3, s3, 43"); p("s_add_u32 s31, s31, s3")
    p("s_lshl_b32 s31, s31, 10"); p(f"s_add_u32 s31, s31, {L.AF}")
    p("v_lshlrev_b32 v12, 2, v0")
    p("s_lshr_b32 s30, s4, 1"); p("s_lshl_b32 s30, s30, 8"); p(f"s_add_u32 s30, s30, {F4}")
    poll(p,'s4',SRD_WS,'s30','v12',1,13)
    stamp(p,'E S4 done',vt=100)
    if 'wbl2' in OPT:
        p("s_cmp_lg_u32 s6, 3"); p("s_cbranch_scc1 E_nowb"); p("s_cmp_lg_u32 s5, 0"); p("s_cbranch_scc1 E_nowb")
        p("buffer_wbl2 sc1")
        p.label("E_nowb")
    vm=VM(p)
    def ldB(i):
        if i%4==0 and i: p(f"s_add_u32 s31, s31, 4096")
        vm.issue(('B',i),f"buffer_load_dwordx4 a[{4*i}:{4*i+3}], v9, {SRD_WS}, s31 offen offset:{(i%4)*1024}{HL1}")
    LA=int(os.environ.get('LA2','8'))
    for i in range(LA): ldB(i)
    for i in range(NS):
        if i==4:
            p("s_barrier")
            for j in range(3):
                p(f"s_add_u32 m0, s77, {j*1024}"); p(f"s_add_u32 s3, s76, {j*8192}")
                vm.issue(('D',j),f"buffer_load_dwordx4 v4, {SRD_A}, s3 offen lds")
        if i==36:
            vm.wait(('D',2))
            p("s_barrier")
        rem=min(2,NS-1-i)
        vm.wait(('B',i),extra=f" lgkmcnt({rem*4})")
        b=AB[i%4]
        for cc in range(2):
            a=ACC[cc]
            p(f"v_mfma_f32_32x32x16_bf16 v[{a}:{a+15}], v[{b+4*cc}:{b+4*cc+3}], a[{4*i}:{4*i+3}], {'0' if i==0 else f'v[{a}:{a+15}]'}")
            if cc==0 and i+LA<NS: ldB(i+LA)
            if i+3<NS: rd(i+3,(cc,))
    stamp(p,'E mfma',vt=12)
    pair_reduce(p,ACC,8192)
    for j in range(8): p(f"v_accvgpr_read_b32 v{32+j}, a{248+j}")
    for j in range(8):
        p(f"v_lshlrev_b32 v{96+2*j}, 16, v{32+j}")
        p(f"v_and_b32 v{97+2*j}, 0xffff0000, v{32+j}")
    for j in range(8): p(f"v_pk_add_f32 v[{64+2*j}:{65+2*j}], v[{64+2*j}:{65+2*j}], v[{96+2*j}:{97+2*j}]")
    for j in range(8): p(f"v_cvt_pk_bf16_f32 v{32+j}, v{64+2*j}, v{65+2*j}")
    p("s_lshl_b32 s3, s62, 6")
    OF_=os.environ.get('OUTF','').replace('_',' ')
    p(f"buffer_store_dwordx4 v[32:35], v8, {SRD_O}, s3 offen {OF_}")
    p(f"buffer_store_dwordx4 v[36:39], v8, {SRD_O}, s3 offen offset:32 {OF_}")

def build(fname):
    p=Prog()
    end="END_K"
    prologue(p,end)
    stamp(p,'start')
    phase_a(p)
    attention(p)
    wo_phase(p)
    ffn1_phase(p)
    ffn2_phase(p)
    stamp(p,'end',vt=12)
    p.label(end)
    p("s_endpgm")
    attention_slow(p)
    emit_outl(p)
    ins=p.finalize(name='k',check_waits=not os.environ.get('NOCHECK'))
    print(f"{len(ins)} lines, {p.nops} hazard nops",file=sys.stderr)
    ref=open('sequential_preLN__grouped_kv_mqa__geglu_ffn__prompt.s.ref').read()
    hdr=ref.split('; Override')[0]
    out=hdr+f"; @launch grid=(256,1,1) block=(256,1,1) lds={LDS_TOTAL}\n"
    out+='.amdgcn_target "amdgcn-amd-amdhsa--gfx950"\n.text\n'
    out+=f".globl {KNAME}\n.p2align 8\n.type {KNAME},@function\n{KNAME}:\n"+render(ins)
    out+=f""".section .rodata,"a"
.p2align 6
.amdhsa_kernel {KNAME}
  .amdhsa_next_free_vgpr 512
  .amdhsa_next_free_sgpr 96
  .amdhsa_accum_offset 256
  .amdhsa_group_segment_fixed_size 0
  .amdhsa_kernarg_size 96
  .amdhsa_user_sgpr_count 2
  .amdhsa_user_sgpr_kernarg_segment_ptr 1
  .amdhsa_system_sgpr_workgroup_id_x 1
.end_amdhsa_kernel
"""
    open(fname,'w').write(out)

if __name__=='__main__':
    out=sys.argv[1]
    if len(sys.argv)>2: PROFILE=True
    build(out)
    open(out+'.stamps','w').write('\n'.join(STAMPS))
    if DSTAMPS: print(DSTAMPS)
```

```python
import sys, os, struct
from asm import Prog, render
import layout as L

OPT=set(x for x in os.environ.get('OPT','').split(',') if x)
KNAME='sequential_preLN__grouped_kv_mqa__geglu_ffn__prompt_kernel'
QSCALE=1.4426950408889634/4.0
def f2u(x): return struct.unpack('<I',struct.pack('<f',x))[0]
def hx(x): return '0x%08x'%(x & 0xffffffff)

SRD_WS='s[8:11]'; SRD_X='s[12:15]'; SRD_A='s[16:19]'; SRD_B='s[20:23]'; SRD_O='s[24:27]'; SRD_D='s[56:59]'
P_X,P_WQ,P_WK,P_WV,P_WO,P_WG,P_WU,P_WD,P_OUT,P_WS,P_DBG=32,34,36,38,40,44,46,48,50,52,54
SPIN=1<<17

XH0=0; XH1=33792; WQ=67584; WK=XH1; WV=XH1+16384+128
WO_L=0; OP=73728; QL=147456; MX=155648; MF=MX+4096; QM=161792
SLOT=24576; RED=147456
LDS_TOTAL=163840
F2=L.FLG; F3=L.FLG+4096; F4=L.FLG+8192; FX=L.FLG+12288

def srd(p, d, ptr, size):
    p(f"s_mov_b32 s{d}, s{ptr}")
    p(f"s_mov_b32 s{d+1}, s{ptr+1}")
    p(f"s_mov_b32 s{d+2}, {hx(size)}")
    p(f"s_mov_b32 s{d+3}, 0x20000")
def csel(p,d,a,b):
    p(f"s_mov_b32 {d}, {b}"); p(f"s_cmov_b32 {d}, {a}")

PROFILE=False
HL1=' nt' if 'ldnt' in OPT else ('' if 'ldpl' in OPT else (' sc0' if 'ldsc0' in OPT else ' sc1'))
HS1='' if 'l2h' in OPT else ' sc1'
PF_N=int(os.environ.get('PF_N','3'))
PT_STEP=int(os.environ.get('PT_STEP','24'))
FLG_CLR=208
WD_STEP=int(os.environ.get('WD_STEP','24'))
B2='b2' in OPT
PF2_T=int(os.environ.get('PF2_T','8'))
GO_STEP=int(os.environ.get('GO_STEP','7'))
STAMPS=[]
DSTAMPS=[]
def dstamp(p,name,vt):
    slot=len(DSTAMPS)
    if slot>=16: return
    DSTAMPS.append(name)
    lab=f"DST_{slot}_{len(p.lines)}"
    p("s_lshl_b32 s90, s2, 2"); p("s_or_b32 s90, s90, s6")
    p(f"s_cmp_lg_u32 s90, {int(os.environ.get('DWG','40'))*4}"); p(f"s_cbranch_scc1 {lab}")
    p("s_memrealtime s[90:91]")
    p("s_waitcnt lgkmcnt(0) ; nowaitcheck")
    p(f"v_mov_b32 v{vt}, s90"); p(f"v_mov_b32 v{vt+1}, {slot*4}")
    p("s_mov_b64 s[94:95], exec"); p("s_mov_b64 exec, 1")
    p(f"buffer_store_dword v{vt}, v{vt+1}, {SRD_D}, 0 offen")
    p("s_mov_b64 exec, s[94:95]")
    p.label(lab)
DSEL=os.environ.get('DSEL','').split(',')
def stamp(p, name, vt=250, dyn=None, n=1):
    if name in DSEL: dstamp(p,name,vt)
    if not PROFILE: return
    slot=len(STAMPS)
    for i in range(n): STAMPS.append(name+(f"[{i}]" if n>1 else ""))
    lab=f"ST_{slot}_{len(p.lines)}"
    p("s_cmp_lg_u32 s6, 0"); p(f"s_cbranch_scc1 {lab}")
    p("s_memrealtime s[90:91]")
    p("s_memtime s[88:89]")
    p("s_lshl_b32 s92, s2, 3"); p(f"s_add_u32 s92, s92, {L.PROF+slot*2048}")
    if dyn: p(f"s_lshl_b32 s93, {dyn}, 11"); p("s_add_u32 s92, s92, s93")
    p("s_waitcnt lgkmcnt(0) ; nowaitcheck")
    p(f"v_mov_b32 v{vt}, s90"); p(f"v_mov_b32 v{vt+1}, s88"); p(f"v_mov_b32 v{vt+2}, 0")
    p("s_mov_b64 s[94:95], exec"); p("s_mov_b64 exec, 1")
    p(f"buffer_store_dwordx2 v[{vt}:{vt+1}], v{vt+2}, {SRD_WS}, s92 offen")
    p("s_mov_b64 exec, s[94:95]")
    p.label(lab)

class VM:
    def __init__(s,p): s.p=p; s.n=0; s.pos={}
    def issue(s,key,txt):
        s.p(txt); s.pos[key]=s.n; s.n+=1
    def wait(s,*keys,extra=""):
        need=max(s.pos[k] for k in keys)
        c=s.n-1-need
        if c<=63: s.p(f"s_waitcnt vmcnt({c}){extra}")
        elif extra: s.p(f"s_waitcnt{extra}")

def poll(p, name, srd_, soff, vaddr, expect, vt, sleep=0):
    if PROFILE:
        p("s_waitcnt vmcnt(0)")
        stamp(p,name+' own dma',vt={'s1':200,'s4':100}.get(name,14))
    p(f"s_mov_b32 s29, {SPIN}")
    p.label(f"POLL_{name}")
    p(f"buffer_load_dword v{vt}, {vaddr}, {srd_}, {soff} offen sc1")
    p("s_waitcnt vmcnt(0)")
    p(f"v_cmp_ne_u32 vcc, {expect}, v{vt}")
    p("s_cmp_eq_u64 vcc, 0")
    p(f"s_cbranch_scc1 POLLD_{name}")
    if sleep: p(f"s_sleep {sleep}")
    p("s_sub_u32 s29, s29, 1")
    p("s_cmp_lg_u32 s29, 0")
    p(f"s_cbranch_scc1 POLL_{name}")
    p.label(f"POLLD_{name}")

OUTL=[]
def hstore(p, lines):
    if isinstance(lines,str): lines=[lines]
    if 'xcc' not in OPT:
        for x in lines: p(x+HS1)
        return
    k=len(OUTL)
    p("s_cmp_lg_u32 s43, 0"); p(f"s_cbranch_scc1 HST_{k}")
    for x in lines: p(x)
    p.label(f"HSB_{k}")
    OUTL.append((k,[x+' sc1' for x in lines]))
def emit_outl(p):
    for k,lines in OUTL:
        p.label(f"HST_{k}")
        for x in lines: p(x)
        p(f"s_branch HSB_{k}")

def set_flag(p, soff, vt):
    p(f"v_mov_b32 v{vt}, 1"); p(f"v_mov_b32 v{vt+1}, 0")
    p("s_mov_b64 exec, 1")
    hstore(p,f"buffer_store_dword v{vt}, v{vt+1}, {SRD_WS}, {soff} offen")
    p("s_mov_b64 exec, -1")

def prologue(p, end):
    p(f"s_cmp_ge_u32 s2, {0 if 'empty' in OPT else 256}")
    p(f"s_cbranch_scc1 {end}")
    p("s_load_dwordx4 s[32:35], s[0:1], 0")
    p("s_load_dwordx4 s[36:39], s[0:1], 16")
    p("s_load_dwordx2 s[40:41], s[0:1], 32")
    p("s_load_dwordx4 s[44:47], s[0:1], 48")
    p("s_load_dwordx4 s[48:51], s[0:1], 64")
    p("s_load_dwordx2 s[52:53], s[0:1], 88")
    p("s_load_dwordx2 s[54:55], s[0:1], 80")
    p("v_lshrrev_b32 v1, 6, v0")
    p("v_and_b32 v0, 63, v0")
    p("v_readfirstlane_b32 s6, v1")
    p("s_and_b32 s3, s2, 7")
    p("s_lshr_b32 s7, s2, 3")
    p("s_lshr_b32 s4, s7, 3")
    p("s_lshl_b32 s3, s3, 2")
    p("s_add_u32 s4, s4, s3")
    p("s_and_b32 s5, s7, 7")
    p("v_lshlrev_b32 v9, 4, v0")
    if 'codepf' in OPT:
        p("s_getpc_b64 s[60:61]")
        p.label("PF_HERE")
        p("s_lshl_b32 s3, s7, 2"); p("s_add_u32 s3, s3, s6"); p("s_lshl_b32 s3, s3, 9")
        p("v_and_b32 v231, 7, v0"); p("v_lshlrev_b32 v231, 6, v231")
        p("v_add_u32 v231, s3, v231")
        p(f"v_min_u32 v230, END_K-PF_HERE-4, v231")
        p("s_mov_b64 exec, 0xff")
        p(f"global_load_dword v232, v230, s[60:61] ; nowaitcheck")
        p("s_mov_b64 exec, -1")
    p("s_waitcnt lgkmcnt(0)")
    srd(p,8,P_WS,L.WS_USED)
    srd(p,56,P_DBG,256)

def ln_tile(p, X, vaddr, off, extra=None, write=True):
    U=176
    S,S2,Q,Q2=80,82,84,86
    I=[]
    a=I.append
    pr=lambda r: f"v[{r}:{r+1}]"
    for i in range(32):
        a(f"v_lshlrev_b32 v{U+2*i}, 16, v{X+i}")
        a(f"v_and_b32 v{U+2*i+1}, 0xffff0000, v{X+i}")
        if i>=1:
            k=i-1; u=U+2*k; sa=(S,S2)[k%2]; qa=(Q,Q2)[k%2]
            if k<2: a(f"v_pk_mul_f32 {pr(qa)}, {pr(u)}, {pr(u)}")
            else: a(f"v_pk_fma_f32 {pr(qa)}, {pr(u)}, {pr(u)}, {pr(qa)}")
            if k==2 or k==3: a(f"v_pk_add_f32 {pr(sa)}, {pr(U+2*(k-2))}, {pr(u)}")
            elif k>3: a(f"v_pk_add_f32 {pr(sa)}, {pr(sa)}, {pr(u)}")
    u=U+62
    a(f"v_pk_fma_f32 {pr(Q2)}, {pr(u)}, {pr(u)}, {pr(Q2)}")
    a(f"v_pk_add_f32 {pr(S2)}, {pr(S2)}, {pr(u)}")
    a(f"v_pk_add_f32 {pr(S)}, {pr(S)}, {pr(S2)}")
    a(f"v_pk_add_f32 {pr(Q)}, {pr(Q)}, {pr(Q2)}")
    S0,Q0='v80','v82'
    a(f"v_add_f32 v80, v80, v81")
    a(f"v_add_f32 v82, v84, v85")
    for d in ("quad_perm:[1,0,3,2]","quad_perm:[2,3,0,1]","row_half_mirror"):
        a(f"v_add_f32_dpp {S0}, {S0}, {S0} {d} row_mask:0xf bank_mask:0xf")
        a(f"v_add_f32_dpp {Q0}, {Q0}, {Q0} {d} row_mask:0xf bank_mask:0xf")
    a(f"v_mul_f32 {S0}, {hx(f2u(1/512))}, {S0}")
    a(f"v_mul_f32 {Q0}, {hx(f2u(1/512))}, {Q0}")
    a(f"v_fma_f32 {Q0}, -{S0}, {S0}, {Q0}")
    a(f"v_max_f32 {Q0}, 0, {Q0}")
    a(f"v_add_f32 {Q0}, {hx(f2u(1e-5))}, {Q0}")
    a(f"v_rsq_f32 v92, {Q0}")
    a(f"v_sub_f32 v94, 0, {S0}")
    a(f"v_mov_b32 v93, v92")
    a(f"v_mul_f32 v94, v94, v92")
    a(f"v_mov_b32 v95, v94")
    for cb in range(8):
        for i in range(4):
            u=U+2*(4*cb+i)
            a(f"v_pk_fma_f32 {pr(u)}, {pr(u)}, v[92:93], v[94:95]")
        for i in range(4):
            u=U+2*(4*cb+i)
            a(f"v_cvt_pk_bf16_f32 v{X+4*cb+i}, v{u}, v{u+1}")
        if write: a(f"ds_write_b128 {vaddr}, v[{X+4*cb}:{X+4*cb+3}] offset:{off+cb*4224}")
    extra=list(extra or [])
    gap=max(1,(len(I)-8)//max(1,len(extra))) if extra else 0
    for n,x in enumerate(I):
        p(x)
        if extra and n%gap==gap-1:
            for y in extra.pop(0): p(y)
    for g in extra:
        for y in g: p(y)
def ln_write(p, X, vaddr, off):
    for cb in range(8): p(f"ds_write_b128 {vaddr}, v[{X+4*cb}:{X+4*cb+3}] offset:{off+cb*4224}")

def dma128(vregs, srd_, sbase_lds, lds_off, sbase_g, n, sg='s31', nt=''):
    out=[]
    for i in range(n):
        j=i%4; g=[]
        if j==0:
            g.append(f"s_add_u32 m0, {sbase_lds}, {lds_off+i*1024}")
            g.append(f"s_add_u32 {sg}, {sbase_g}, {i*8192}")
        g.append(f"buffer_load_dwordx4 {vregs[j]}, {srd_}, {sg} offen offset:{j*1024}{nt} lds")
        out.append(g)
    return out

def gemm_lds(p, nsteps, readA, readB, mfma, rps, depth=3, nbuf=4, fill=None, hook=None):
    fill=list(fill or []); hook=hook or {}
    for s in range(min(depth,nsteps)):
        readA(s,s%nbuf); readB(s,s%nbuf)
    for s in range(nsteps):
        if s+depth<nsteps:
            readA(s+depth,(s+depth)%nbuf); readB(s+depth,(s+depth)%nbuf)
        rem=min(depth,nsteps-1-s)
        p(f"s_waitcnt lgkmcnt({rem*rps})")
        mfma(s,s%nbuf)
        if s in hook: hook[s]()
        for _ in range(2):
            if fill: p(fill.pop(0))
    for x in fill: p(x)

def tr_base128(p, dst, cbit_sgpr, base, t=97):
    a=f"v{t}"; b=f"v{t+1}"
    p(f"v_and_b32 {a}, 1, v13")
    p(f"v_lshl_add_u32 {a}, v15, 1, {a}")
    if cbit_sgpr: p(f"v_add_u32 {a}, {cbit_sgpr}, {a}")
    p(f"v_lshrrev_b32 {b}, 1, v12")
    p(f"v_lshlrev_b32 {b}, 2, {b}")
    p(f"v_xor_b32 {a}, {a}, {b}")
    p(f"v_lshlrev_b32 {a}, 4, {a}")
    p(f"v_lshrrev_b32 {b}, 1, v13")
    p(f"v_lshl_add_u32 {a}, {b}, 3, {a}")
    p(f"v_lshl_add_u32 {a}, v14, 7, {a}")
    p(f"v_add_u32 {dst}, {base}, {a}")

def lane_params(p):
    p("v_lshrrev_b32 v11, 4, v0")
    p("v_bfe_u32 v12, v0, 2, 2")
    p("v_and_b32 v13, 3, v0")
    p("v_lshrrev_b32 v14, 1, v11")
    p("v_lshl_add_u32 v14, v14, 3, v12")
    p("v_and_b32 v15, 1, v11")
    p("v_and_b32 v96, 1, v13")
    p("v_lshlrev_b32 v96, 4, v96")
    p("v_lshrrev_b32 v97, 1, v13")
    p("v_lshl_add_u32 v96, v97, 3, v96")

def w128_voff(p, dst):
    p("v_lshrrev_b32 v11, 4, v0")
    p("v_and_b32 v11, 1, v11")
    p("v_lshlrev_b32 v11, 2, v11")
    p("v_xor_b32 v11, v11, v10")
    p("v_lshlrev_b32 v11, 4, v11")
    p(f"v_lshl_add_u32 {dst}, v1, 10, v11")
    if 'x_wdx' in OPT and dst=='v1': p("s_xor_b32 s3, s5, 1"); p("s_lshl_b32 s3, s3, 7")
    else: p("s_lshl_b32 s3, s5, 7")
    p(f"v_add_u32 {dst}, s3, {dst}")

VA=64
def phase_a(p):
    p("s_mov_b32 s28, 0x3f803f80")
    srd(p,12,P_X,2048*1024)
    p("s_and_b32 s3, s5, 1")
    p("s_lshl_b32 s60, s4, 1")
    p("s_add_u32 s60, s60, s3")
    p("v_lshrrev_b32 v1, 3, v0")
    p("v_and_b32 v10, 7, v0")
    p("s_lshl_b32 s3, s60, 5")
    p("s_lshl_b32 s7, s6, 3")
    p("s_add_u32 s3, s3, s7")
    p("v_add_u32 v2, s3, v1")
    p("v_lshlrev_b32 v2, 10, v2")
    p("v_lshl_add_u32 v2, v10, 4, v2")
    p("v_xor_b32 v3, 0x8000, v2")
    for cb in range(8):
        p(f"buffer_load_dwordx4 v[{16+4*cb}:{19+4*cb}], v2, {SRD_X}, 0 offen offset:{cb*128}")
    srd(p,16,P_WQ,512*1024)
    w128_voff(p,'v4')
    p("v_lshrrev_b32 v11, 1, v10")
    p("v_mul_u32_u24 v11, 1056, v11")
    p("v_and_b32 v12, 1, v10")
    p("v_mul_u32_u24 v12, 528, v12")
    p("v_add_u32 v5, v11, v12")
    p("s_lshl_b32 s3, s6, 3")
    p("v_add_u32 v11, s3, v1")
    p("v_lshl_add_u32 v5, v11, 4, v5")
    p("v_lshrrev_b32 v11, 5, v0")
    p("v_mul_u32_u24 v11, 528, v11")
    p("v_and_b32 v12, 31, v0")
    p("v_lshl_add_u32 v6, v12, 4, v11")
    lane_params(p)
    p(f"v_mul_u32_u24 v97, {WV-WK}, v15")
    p("v_lshl_add_u32 v97, v14, 5, v97")
    p("v_add_u32 v97, v97, v96")
    p(f"v_add_u32 v8, {WK}, v97")
    p("s_and_b32 s3, s6, 1")
    p("s_lshl_b32 s3, s3, 2")
    tr_base128(p,'v7','s3',WQ)
    p("s_cmp_ge_u32 s5, 2")
    p("s_cselect_b32 s77, 4, 8")
    p("s_sub_u32 s3, s6, 2"); p("s_lshl_b32 s3, s3, 1")
    p("s_cmp_ge_u32 s5, 2"); p("s_cselect_b32 s3, s6, s3")
    p("s_lshl_b32 s75, s3, 17")
    p("s_lshl_b32 s76, s3, 14"); p(f"s_add_u32 s76, s76, {WQ}")
    p("s_lshl_b32 s74, s6, 14")
    p("s_cmp_ge_u32 s5, 2")
    p("s_cbranch_scc1 A_nokvdma")
    p("s_cmp_lg_u32 s6, 2")
    p("s_cbranch_scc1 A_noclr")
    p(f"s_mul_i32 s3, s60, {FLG_CLR}")
    p(f"s_add_u32 s3, s3, {L.FLG}")
    p("v_lshlrev_b32 v11, 2, v0")
    p("v_mov_b32 v12, 0")
    p(f"s_mov_b32 exec_hi, {hx((1<<(FLG_CLR//4-32))-1)}")
    p(f"buffer_store_dword v12, v11, {SRD_WS}, s3 offen sc1")
    p("s_mov_b64 exec, -1")
    p.label("A_noclr")
    p("s_cmp_lt_u32 s6, 2")
    p(f"s_cselect_b32 s20, s{P_WK}, s{P_WV}")
    p(f"s_cselect_b32 s21, s{P_WK+1}, s{P_WV+1}")
    p("s_mov_b32 s22, 16384")
    p("s_mov_b32 s23, 0x20000")
    csel(p,'s30',WK,WV)
    p("s_and_b32 s3, s6, 1")
    p("s_lshl_b32 s3, s3, 13")
    p("s_add_u32 s30, s30, s3")
    for i in range(8):
        if i%4==0: p(f"s_add_u32 m0, s30, {i*1024}"); p(f"s_add_u32 s31, s3, {i*1024}")
        p(f"buffer_load_dwordx4 v9, {SRD_B}, s31 offen offset:{(i%4)*1024} lds")
    stamp(p,'A issued')
    if 'vones' in OPT: v_ones(p,88)
    p("s_waitcnt vmcnt(8)")
    p("s_branch A_xw")
    p.label("A_nokvdma")
    if 'wqwarm' in OPT:
        p("s_and_b32 s3, s4, 3"); p("s_mul_i32 s3, s3, 6"); p("s_add_u32 s3, s3, s5"); p("s_sub_u32 s3, s3, 2")
        p("s_lshl_b32 s3, s3, 2"); p("s_add_u32 s3, s3, s6"); p("s_mul_i32 s3, s3, 22")
        p("v_add_u32 v247, s3, v0"); p("v_lshrrev_b32 v246, 2, v247"); p("v_and_b32 v247, 3, v247"); p("v_lshlrev_b32 v247, 6, v247")
        p("v_lshl_add_u32 v247, v246, 10, v247")
        p("s_mov_b64 exec, 0x3fffff")
        p(f"buffer_load_dword v246, v247, {SRD_A}, 0 offen ; nowaitcheck")
        p("s_mov_b64 exec, -1")
    if 'vones' in OPT: v_ones(p,88)
    p("s_waitcnt vmcnt(1)" if 'wqwarm' in OPT else "s_waitcnt vmcnt(0)")
    p.label("A_xw")
    stamp(p,'A x arrived')
    ln_tile(p,16,'v5',XH0,extra=[[f"buffer_load_dwordx4 v[{48+4*cb}:{51+4*cb}], v3, {SRD_X}, 0 offen offset:{cb*128}"] for cb in range(8)])
    for j in range(1,4): p(f"v_add_u32 v{175+j+64}, {7168*j}, v4")
    stamp(p,'A lnA done')
    p("s_cmp_ge_u32 s5, 2")
    p("s_cbranch_scc1 A_wqdma")
    p("s_waitcnt vmcnt(8) lgkmcnt(0)")
    p("s_barrier")
    p("s_cmp_ge_u32 s6, 2")
    p("s_cbranch_scc1 A_wqdma")
    AB_=[96+4*b for b in range(6)]; BB_=[144+4*b for b in range(6)]
    def rA(s,b):
        p(f"ds_read_b64_tr_b16 v[{AB_[b]}:{AB_[b]+1}], v8 offset:{s*512}")
        p(f"ds_read_b64_tr_b16 v[{AB_[b]+2}:{AB_[b]+3}], v8 offset:{s*512+128}")
    def rB(s,b):
        p(f"ds_read_b128 v[{BB_[b]}:{BB_[b]+3}], v6 offset:{XH0+s*1056}")
    p("s_cmp_eq_u32 s6, 1")
    p("s_cbranch_scc1 A_vwave")
    gemm_lds(p,32,rA,rB,lambda s,b: p(f"v_mfma_f32_32x32x16_bf16 v[128:143], v[{AB_[b]}:{AB_[b]+3}], v[{BB_[b]}:{BB_[b]+3}], {'0' if s==0 else 'v[128:143]'}"),3,depth=4,nbuf=6)
    for j in range(4): p(f"v_cvt_pk_bf16_f32 v{88+j}, v{128+2*j}, v{129+2*j}")
    p("s_lshl_b32 s3, s60, 10")
    p(f"s_add_u32 s3, s3, {L.KF}")
    p(f"buffer_store_dwordx4 v[88:91], v9, {SRD_WS}, s3 offen sc1")
    p("v_mul_f32 v84, v128, v128")
    for j in range(1,8): p(f"v_fmac_f32 v84, v{128+j}, v{128+j}")
    p("v_mov_b32 v85, v84")
    p("v_permlane32_swap_b32 v84, v85")
    p("v_add_f32 v84, v84, v85")
    for d in ("row_ror:8","row_ror:4","row_ror:2","row_ror:1"):
        p(f"v_max_f32_dpp v84, v84, v84 {d} row_mask:0xf bank_mask:0xf")
    p("v_readlane_b32 s3, v84, 0")
    p("v_readlane_b32 s7, v84, 16")
    p("s_max_u32 s3, s3, s7")
    p("v_mov_b32 v84, s3")
    p("s_lshl_b32 s7, s60, 7")
    p(f"s_add_u32 s7, s7, {L.KM}")
    p("v_lshlrev_b32 v85, 2, v0")
    p("s_mov_b32 exec_hi, 0")
    p(f"buffer_store_dword v84, v85, {SRD_WS}, s7 offen sc1")
    p("s_mov_b64 exec, -1")
    p("s_waitcnt vmcnt(2)")
    p("s_branch A_kvdone")
    p.label("A_vwave")
    p("v_and_b32 v84, 3, v0")
    p("v_bfe_u32 v85, v0, 2, 1")
    p("v_lshl_add_u32 v84, v85, 3, v84")
    p("v_bfe_u32 v85, v0, 3, 1")
    p("v_lshl_add_u32 v84, v85, 2, v84")
    p("v_and_b32 v85, 16, v0")
    p("v_add_u32 v84, v84, v85")
    p("v_lshrrev_b32 v85, 5, v0")
    p("v_mul_u32_u24 v85, 528, v85")
    p("v_lshl_add_u32 v86, v84, 4, v85")
    def rBv(s,b):
        p(f"ds_read_b128 v[{BB_[b]}:{BB_[b]+3}], v86 offset:{XH0+s*1056}")
    gemm_lds(p,32,rA,rBv,lambda s,b: p(f"v_mfma_f32_32x32x16_bf16 v[128:143], v[{BB_[b]}:{BB_[b]+3}], v[{AB_[b]}:{AB_[b]+3}], {'0' if s==0 else 'v[128:143]'}"),3,depth=4,nbuf=6)
    for j in range(8): p(f"v_cvt_pk_bf16_f32 v{88+j}, v{128+2*j}, v{129+2*j}")
    p("v_xor_b32 v84, 256, v9")
    p("s_lshl_b32 s3, s60, 11")
    p(f"s_add_u32 s3, s3, {L.VF}")
    p("s_mov_b32 exec_lo, 0xffff0000")
    p("s_mov_b32 exec_hi, 0xffff0000")
    p(f"buffer_store_dwordx4 v[88:91], v84, {SRD_WS}, s3 offen sc1")
    p(f"buffer_store_dwordx4 v[92:95], v84, {SRD_WS}, s3 offen offset:1024 sc1")
    p("s_mov_b64 exec, -1")
    p("s_waitcnt vmcnt(2)")
    p("s_branch A_kvdone")
    p.label("A_wqdma")
    p("s_waitcnt vmcnt(0)")
    p.label("A_wqloop")
    p("s_mov_b32 m0, s76")
    for j,vr in enumerate(('v4','v240','v241','v242')):
        p(f"buffer_load_dwordx4 {vr}, {SRD_A}, s75 offen offset:{j*1024}{' nt' if 'ntwq' in OPT else ''} lds")
    p("s_add_u32 s76, s76, 4096"); p("s_add_u32 s75, s75, 32768")
    p("s_sub_u32 s77, s77, 1"); p("s_cmp_lg_u32 s77, 0"); p("s_cbranch_scc1 A_wqloop")
    p.label("A_kvdone")
    stamp(p,'A kvdone')
    ln_tile(p,48,'v5',XH1,write=False)
    KE='kvearly' in OPT
    if KE:
        p("s_cmp_ge_u32 s5, 2"); p("s_cbranch_scc1 A_nosig")
        p("s_barrier")
        p("s_cmp_ge_u32 s6, 2"); p("s_cbranch_scc1 A_nosig")
        ln_write(p,48,'v5',XH1)
        p("s_branch A_lnbw")
        p.label("A_nosig")
        ln_write(p,48,'v5',XH1)
        p("s_waitcnt vmcnt(0)")
        p.label("A_lnbw")
        p("s_waitcnt lgkmcnt(0)")
        p("s_barrier")
        stamp(p,'A lnB done')
        phase_a_q(p,KE,AB_,BB_)
        return
    p("s_cmp_ge_u32 s5, 2"); p("s_cbranch_scc1 A_nosig")
    p("s_cmp_ge_u32 s6, 2"); p("s_cbranch_scc1 A_nosig2")
    p("s_waitcnt vmcnt(0)")
    p("s_barrier")
    p("s_cmp_lg_u32 s6, 0"); p("s_cbranch_scc1 A_nosig3")
    if 'go2' in OPT:
        p("s_lshr_b32 s3, s60, 5"); p("s_lshl_b32 s3, s3, 6"); p("v_mov_b32 v85, s3")
    else: p("v_mov_b32 v85, 0")
    p("v_mov_b32 v243, 1")
    p("s_mov_b64 exec, 1")
    p(f"buffer_atomic_add v243, v85, {SRD_D}, 0 offen sc0 sc1 ; nowaitcheck")
    p("s_mov_b64 exec, -1")
    stamp(p,'A sig')
    p.label("A_nosig3")
    ln_write(p,48,'v5',XH1)
    p("s_branch A_lnbw")
    p.label("A_nosig2")
    p("s_barrier")
    p.label("A_nosig")
    ln_write(p,48,'v5',XH1)
    p("s_waitcnt vmcnt(0)")
    p.label("A_lnbw")
    p("s_waitcnt lgkmcnt(0)")
    p("s_barrier")
    stamp(p,'A lnB done')
    phase_a_q(p,False,AB_,BB_)

GOFN=[]
def phase_a_q(p,KE,AB_,BB_):
    if 'wowarm' in OPT:
        srd(p,24,P_WO,512*1024)
        p("s_cmp_lt_u32 s5, 2"); p("s_cbranch_scc1 A_nowarm")
        p("s_and_b32 s3, s4, 3"); p("s_mul_i32 s3, s3, 6"); p("s_add_u32 s3, s3, s5"); p("s_sub_u32 s3, s3, 2")
        p("s_lshl_b32 s3, s3, 2"); p("s_add_u32 s3, s3, s6"); p("s_mul_i32 s3, s3, 5504")
        p("v_lshlrev_b32 v247, 6, v0")
        p(f"buffer_load_dword v246, v247, {SRD_O}, s3 offen ; nowaitcheck")
        p("s_add_u32 s3, s3, 4096")
        p("s_mov_b64 exec, 0x3fffff")
        p(f"buffer_load_dword v246, v247, {SRD_O}, s3 offen ; nowaitcheck")
        p("s_mov_b64 exec, -1")
        p.label("A_nowarm")
    def go():
        N=32 if 'go2' in OPT else 64
        p("s_cmp_ge_u32 s5, 2"); p("s_cbranch_scc1 A_nogo")
        p("s_cmp_lg_u32 s6, 0"); p("s_cbranch_scc1 A_nogo")
        p("s_waitcnt vmcnt(0)")
        stamp(p,'A atom ret')
        p(f"v_readfirstlane_b32 s3, v243"); p(f"s_and_b32 s3, s3, {N-1}"); p(f"s_cmp_lg_u32 s3, {N-1}"); p("s_cbranch_scc1 A_nogo")
        p("v_mov_b32 v243, 1")
        if 'go2' in OPT:
            p("s_lshr_b32 s3, s60, 5"); p("s_lshl_b32 s3, s3, 6"); p("s_add_u32 s3, s3, 128"); p("v_mov_b32 v244, s3")
        else: p("v_mov_b32 v244, 128")
        p("s_mov_b64 exec, 1")
        p(f"buffer_store_dword v243, v244, {SRD_D}, 0 offen sc1")
        p("s_mov_b64 exec, -1")
        p.label("A_nogo")
    def kvsig():
        p("s_cmp_ge_u32 s5, 2"); p("s_cbranch_scc1 A_nosig9")
        p("s_waitcnt vmcnt(0)")
        p("s_barrier")
        p("s_cmp_lg_u32 s6, 0"); p("s_cbranch_scc1 A_nosig9")
        p("s_lshr_b32 s3, s60, 5"); p("s_lshl_b32 s3, s3, 6"); p("v_mov_b32 v245, s3")
        p("v_mov_b32 v243, 1")
        p("s_mov_b64 exec, 1")
        p(f"buffer_atomic_add v243, v245, {SRD_D}, 0 offen sc0 sc1 ; nowaitcheck")
        p("s_mov_b64 exec, -1")
        stamp(p,'A sig')
        p.label("A_nosig9")
    GOP=os.environ.get('GOP','q')
    hooks={GO_STEP:go}
    if KE:
        hooks={int(os.environ.get('KA','12')):kvsig}
        if GOP=='hook': hooks[GO_STEP]=go
        elif GOP=='pre': GOFN.append(go)
    p("s_lshr_b32 s3, s6, 1")
    p(f"s_mul_i32 s7, s3, {XH1}")
    p("v_add_u32 v6, s7, v6")
    def rA(s,b):
        p(f"ds_read_b64_tr_b16 v[{AB_[b]}:{AB_[b]+1}], v7 offset:{s*2048}")
        p(f"ds_read_b64_tr_b16 v[{AB_[b]+2}:{AB_[b]+3}], v7 offset:{s*2048+512}")
    def rB(s,b):
        p(f"ds_read_b128 v[{BB_[b]}:{BB_[b]+3}], v6 offset:{s*1056}")
    gemm_lds(p,32,rA,rB,lambda s,b: p(f"v_mfma_f32_32x32x16_bf16 v[128:143], v[{AB_[b]}:{AB_[b]+3}], v[{BB_[b]}:{BB_[b]+3}], {'0' if s==0 else 'v[128:143]'}"),3,depth=4,nbuf=6,fill=att_setup(),hook=hooks)
    if KE and GOP=='q0': go()
    p(f"s_mov_b32 s30, {hx(f2u(QSCALE))}"); p("s_mov_b32 s31, s30")
    if 'wo2' in OPT: p("v_mov_b32 v239, v4")
    else:
        for j in range(1,4): p(f"v_add_u32 v{4+j}, {7168*j}, v4")
    for j in range(8): p(f"v_pk_mul_f32 v[{128+2*j}:{129+2*j}], v[{128+2*j}:{129+2*j}], s[30:31]")
    for j in range(8): p(f"v_cvt_pk_bf16_f32 v{96+j}, v{128+2*j}, v{129+2*j}")
    p("s_lshr_b32 s3, s6, 1")
    p("s_xor_b32 s3, s5, s3"); p("s_and_b32 s3, s3, 1"); p("s_lshl_b32 s3, s3, 2")
    p("s_and_b32 s7, s6, 1"); p("s_lshl_b32 s7, s7, 1"); p("s_add_u32 s3, s3, s7")
    p("s_lshl_b32 s3, s3, 10"); p(f"s_add_u32 s3, s3, {QL}")
    p("v_add_u32 v104, s3, v9")
    p("ds_write_b128 v104, v[96:99]")
    p("ds_write_b128 v104, v[100:103] offset:1024")
    p("v_mul_f32 v104, v128, v128"); p("v_mul_f32 v105, v136, v136")
    for j in range(1,8): p(f"v_fmac_f32 v104, v{128+j}, v{128+j}"); p(f"v_fmac_f32 v105, v{136+j}, v{136+j}")
    p("v_mov_b32 v106, v104"); p("v_mov_b32 v107, v105")
    p("v_permlane32_swap_b32 v104, v106"); p("v_permlane32_swap_b32 v105, v107")
    p("v_add_f32 v104, v104, v106"); p("v_add_f32 v105, v105, v107")
    p("v_max_u32 v104, v104, v105")
    for d in ("row_ror:8","row_ror:4","row_ror:2","row_ror:1"):
        p(f"v_max_u32_dpp v104, v104, v104 {d} row_mask:0xf bank_mask:0xf")
    p("v_readlane_b32 s3, v104, 0")
    p("v_readlane_b32 s7, v104, 16")
    p("s_max_u32 s3, s3, s7")
    p("v_mov_b32 v104, s3")
    p("s_lshl_b32 s7, s6, 2"); p(f"s_add_u32 s7, s7, {QM}")
    p("v_mov_b32 v105, s7")
    p("ds_write_b32 v105, v104")
    if KE and GOP=='q': go()
    stamp(p,'A q done')

def att_setup():
    F=[]; a=F.append
    for i in range(16): a(f"v_mov_b32 v{OB[0]+i}, 0"); a(f"v_mov_b32 v{OB[1]+i}, 0")
    for i in range(4): a(f"v_mov_b32 v{ZR+i}, 0")
    a(f"v_mov_b32 v{IDX}, 0xdddddddd")
    a("s_mov_b32 s80, 0xffff"); a("s_mov_b32 s81, 0xffff")
    a("s_mul_i32 s77, s6, 2304"); a(f"s_add_u32 s77, s77, {OP}")
    a(f"v_add_u32 v{SLA}, s77, v9")
    a("s_add_u32 s77, s77, 2048")
    a(f"v_lshl_add_u32 v{SLB}, v0, 2, s77")
    a(f"v_add_u32 v{QA}, {QL+1024}, v9")
    a(f"v_add_u32 v59, {QL}, v9")
    a(f"v_mov_b32 v60, {QM}")
    a("s_lshl_b32 s42, s6, 14")
    a("s_lshr_b32 s61, s6, 1"); a("s_lshl_b32 s77, s4, 1"); a("s_add_u32 s61, s61, s77")
    a("s_and_b32 s62, s6, 1"); a("s_lshl_b32 s77, s5, 1"); a("s_add_u32 s62, s62, s77")
    a("v_and_b32 v2, 31, v0"); a("s_lshl_b32 s77, s61, 5"); a("v_add_u32 v2, s77, v2"); a("v_lshlrev_b32 v2, 10, v2")
    a("v_lshrrev_b32 v3, 5, v0"); a("v_lshl_add_u32 v8, v3, 4, v2")
    return F

KA=0
SB=[16,32]; OB=[64,80]; QB=[96,100]; CB=104; IDX=48; ZR=52; SLA=56; SLB=57; QA=58; TB=120
THRESH=40.0
VMASK='s[80:81]'

def QK(Sn,kn,Qn,slow): return f"v_mfma_f32_32x32x16_bf16 v[{Sn}:{Sn+15}], a[{KA+4*kn}:{KA+4*kn+3}], v[{Qn}:{Qn+3}], {f'v[{CB}:{CB+15}]' if slow else '0'}"
def PV(O,areg,S): return f"v_smfmac_f32_32x32x32_bf16 v[{O}:{O+15}], a[{areg}:{areg+3}], v[{S}:{S+7}], v{IDX}"

def slot_write(p,O):
    p(f"ds_write_b128 v{SLA}, v[{O}:{O+3}]")
    p(f"ds_write_b128 v{SLA}, v[{O+4}:{O+7}] offset:1024")
    p(f"ds_write_b32 v{SLB}, v{O+8}")

def att_pass(p, ps, first=False, slow=False, vm=None, ev=None):
    ev=ev or {}
    for t in range(16):
        S=SB[t%2]; Sn=SB[(t+1)%2]
        O=OB[ps]; Op=OB[ps] if t>0 else OB[1-ps]
        Qn=QB[ps] if t<15 else QB[1-ps]
        kn=(t+1)%16; tp=(t-1)%16
        e=lambda i: f"v_exp_f32 v{S+i}, v{S+i}"
        pv2=PV(Op,VA+8*tp+4,Sn+8)
        I=[e(0),e(1),pv2,e(2),e(3),e(4),QK(Sn,kn,Qn,slow),e(5),e(6),e(7),e(8),e(9),PV(O,VA+8*t,S),e(10),e(11),e(12),e(13),e(14),e(15)]
        if not first:
            oa,ob,oc=[int(x) for x in os.environ.get('ORD','3,5,11').split(',')]
            I=[e(i) for i in range(16)]
            I.insert(oc,PV(O,VA+8*t,S)); I.insert(ob,QK(Sn,kn,Qn,slow)); I.insert(oa,pv2)
        ins={}
        def add(pos,txt): ins.setdefault(pos,[]).append(txt)
        if first and t==0: I[2]=None
        if not first:
            if t==2:
                add(4,f"ds_write_b128 v{SLA}, v[{OB[1-ps]}:{OB[1-ps]+3}]")
                add(8,f"ds_write_b128 v{SLA}, v[{OB[1-ps]+4}:{OB[1-ps]+7}] offset:1024")
                add(10,f"ds_write_b32 v{SLB}, v{OB[1-ps]+8}")
            if t==3:
                add(4,f"v_add_u32 v{SLA}, 9216, v{SLA}"); add(8,f"v_add_u32 v{SLB}, 9216, v{SLB}")
            if t==8:
                Z=OB[1-ps]
                add(16,f"v_mfma_f32_32x32x16_bf16 v[{Z}:{Z+15}], v[{ZR}:{ZR+3}], v[{ZR}:{ZR+3}], 0")
        if t==4:
            Qd=QB[1-ps]
            add(4,f"ds_read_b128 v[{Qd}:{Qd+3}], v{QA}")
            if slow: add(5,f"ds_read_b32 v121, v120")
        if t==5:
            add(4,f"v_add_u32 v{QA}, 1024, v{QA}")
            if slow: add(8,"v_add_u32 v120, 256, v120")
        if t==14:
            add(0,"s_waitcnt lgkmcnt(0)")
        if t==15 and slow:
            for j in range(16): add(1,f"v_mov_b32 v{CB+j}, v121")
        if first and vm is not None:
            vm.wait(('V',t,0))
            if t+4<16: add(4,('K',t+4))
            if t+3<16: add(9,('V',t+3))
        for pos,item in ev.get(t,[]): add(pos,item)
        for i,x in enumerate(I):
            for y in ins.get(i,[]):
                if callable(y): y()
                elif isinstance(y,list): emit_group(p,vm,y)
                elif isinstance(y,tuple): (ldK if y[0]=='K' else ldV)(p,vm,y[1])
                else: p(y)
            if x: p(x)

def spread(ev, items, t0, t1, poss=(1,4,8,11,14,17)):
    n=t1-t0+1; per=-(-len(items)//n); assert per<=len(poss),(per,len(items))
    k=0
    for t in range(t0,t1+1):
        for j in range(per):
            if k<len(items): ev.setdefault(t,[]).append((poss[j*len(poss)//per],items[k])); k+=1

def ldK(p,vm,j):
    p(f"s_add_u32 s3, s30, {j*1024}")
    vm.issue(('K',j),f"buffer_load_dwordx4 a[{KA+4*j}:{KA+4*j+3}], v9, {SRD_WS}, s3 offen sc1")
def ldV(p,vm,j):
    p(f"s_add_u32 s3, s31, {j*2048}")
    p(f"s_mov_b64 exec, {VMASK}")
    vm.issue(('V',j,0),f"buffer_load_dwordx4 a[{VA+8*j}:{VA+8*j+3}], v9, {SRD_WS}, s3 offen sc1")
    vm.issue(('V',j,1),f"buffer_load_dwordx4 a[{VA+8*j+4}:{VA+8*j+7}], v9, {SRD_WS}, s3 offen offset:1024 sc1")
    p("s_mov_b64 exec, -1")

def o_store(p,O,jj):
    p(f"v_rcp_f32 v{TB}, v{O+8}")
    p(f"v_mov_b32 v{TB+1}, v{O+8}")
    p(f"v_mov_b32 v{TB+1}, v{TB}")
    for j in range(4): p(f"v_pk_mul_f32 v[{O+2*j}:{O+2*j+1}], v[{O+2*j}:{O+2*j+1}], v[{TB}:{TB+1}]")
    for j in range(4): p(f"v_cvt_pk_bf16_f32 v{TB+4+j}, v{O+2*j}, v{O+2*j+1}")
    hstore(p,f"buffer_store_dwordx4 v[{TB+4}:{TB+7}], v9, {SRD_WS}, s63 offen offset:{jj*1024}")

def xcc_publish(p,vm):
    lab=f"XP_{len(p.lines)}"
    p("s_getreg_b32 s43, hwreg(HW_REG_XCC_ID, 0, 4)")
    p("s_add_u32 s43, s43, 1")
    p("s_lshr_b32 s86, s4, 1"); p("s_lshl_b32 s86, s86, 6"); p(f"s_add_u32 s86, s86, {FX}")
    p("s_cmp_lg_u32 s6, 0"); p(f"s_cbranch_scc1 {lab}")
    p("s_and_b32 s3, s4, 1"); p("s_lshl_b32 s3, s3, 3"); p("s_add_u32 s3, s3, s5"); p("s_lshl_b32 s3, s3, 2")
    p("v_mov_b32 v12, s43"); p("v_mov_b32 v14, s3")
    p("s_mov_b64 exec, 1")
    vm.issue(('XP',0),f"buffer_store_dword v12, v14, {SRD_WS}, s86 offen sc1")
    p("s_mov_b64 exec, -1")
    p.label(lab)
def xcc_load(p,vm):
    p("v_and_b32 v13, 15, v0"); p("v_lshlrev_b32 v13, 2, v13")
    vm.issue(('XL',0),f"buffer_load_dword v12, v13, {SRD_WS}, s86 offen sc1")
def xcc_check(p):
    p(f"s_mov_b32 s29, {SPIN}")
    p.label("XC_CHK")
    p("v_cmp_eq_u32 vcc, 0, v12")
    p("s_cmp_eq_u64 vcc, 0"); p("s_cbranch_scc1 XC_OK")
    p("s_sub_u32 s29, s29, 1"); p("s_cmp_eq_u32 s29, 0"); p("s_cbranch_scc1 XC_OK")
    p(f"buffer_load_dword v12, v13, {SRD_WS}, s86 offen sc1")
    p("s_waitcnt vmcnt(0)")
    p("s_branch XC_CHK")
    p.label("XC_OK")
    p("v_cmp_ne_u32 vcc, s43, v12")
    p("s_cmp_lg_u64 vcc, 0")
    p("s_cselect_b32 s43, 1, 0")
    if 'xslow' in OPT: p("s_mov_b32 s43, 1")

def wo_dma_groups(vm):
    G=[]
    for n,g in enumerate(dma128(['v239','v240','v241','v242'] if 'wo2' in OPT else ['v4','v5','v6','v7'],SRD_O,'s74',WO_L,'s75',16,sg='s76',nt=' nt' if 'ntwo' in OPT else '')):
        G.append([('s',x) for x in g[:-1]]+[('m',('WO',n),g[-1])])
    G.append([('s',"s_lshl_b32 s76, s62, 6"),('m',('XR',0),f"buffer_load_dwordx4 a[192:195], v8, {SRD_X}, s76 offen")])
    G.append([('m',('XR',1),f"buffer_load_dwordx4 a[196:199], v8, {SRD_X}, s76 offen offset:32")])
    return G
def emit_group(p,vm,g):
    for x in g:
        if x[0]=='s': p(x[1])
        else: vm.issue(x[1],x[2])

def v_ones(p,b):
    p(f"v_mov_b32 v{b}, 0x3f803f80"); p(f"v_mov_b32 v{b+4}, 0x3afe3f80")
    p(f"v_and_b32 v{b+1}, 59, v0"); p(f"v_cmp_eq_u32 vcc, 16, v{b+1}"); p(f"v_cndmask_b32 v{b+4}, 0, v{b+4}, vcc")
    for i in (1,2,3,5,6,7): p(f"v_mov_b32 v{b+i}, 0")
    for i in range(8): p(f"v_mfma_f32_32x32x16_bf16 a[{VA+16*i}:{VA+16*i+15}], v[{b}:{b+3}], v[{b+4}:{b+7}], 0")

def attention(p):
    srd(p,24,P_WO,512*1024)
    p("s_lshl_b32 s75, s6, 17")
    srd(p,16,P_WG,512*2752)
    srd(p,20,P_WU,512*2752)
    p("s_lshr_b32 s78, s2, 3"); p("s_lshl_b32 s78, s78, 2"); p("s_add_u32 s78, s78, s6"); p("s_mul_i32 s78, s78, 6880"); p(f"s_add_u32 s78, s78, {192*2752}")
    p("v_lshlrev_b32 v50, 6, v0")
    if 'pt' in OPT:
        p("v_and_b32 v51, 15, v0"); p("v_lshlrev_b32 v51, 7, v51")
        p("s_lshr_b32 s3, s6, 1"); p("s_lshl_b32 s7, s4, 1"); p("s_add_u32 s3, s3, s7"); p("s_lshl_b32 s3, s3, 5")
        p("s_lshl_b32 s7, s5, 2"); p("s_add_u32 s3, s3, s7")
        p("s_and_b32 s7, s6, 1"); p("s_lshl_b32 s7, s7, 1"); p("s_add_u32 s3, s3, s7")
        p("s_lshl_b32 s3, s3, 10"); p(f"s_add_u32 s82, s3, {L.OF}")
        p("s_lshl_b32 s3, s61, 5"); p("s_lshl_b32 s7, s62, 1"); p("s_add_u32 s3, s3, s7"); p("s_lshl_b32 s3, s3, 10"); p(f"s_add_u32 s83, s3, {L.HF}")
        p("s_lshl_b32 s3, s61, 12"); p("s_lshl_b32 s7, s62, 8"); p("s_add_u32 s3, s3, s7"); p(f"s_add_u32 s84, s3, {L.HS}")
    p("s_lshl_b32 s31, s42, 1"); p(f"s_add_u32 s31, s31, {L.VF}")
    p(f"s_add_u32 s30, s42, {L.KF}")
    lane_params(p)
    p("s_and_b32 s3, s6, 1"); p("s_lshl_b32 s3, s3, 2")
    tr_base128(p,'v10',"s3",WO_L)
    p("s_and_b32 s3, s6, 1"); p("s_lshl_b32 s3, s3, 15")
    p("v_add_u32 v10, s3, v10")
    p("v_xor_b32 v1, 64, v10")
    p("v_lshlrev_b32 v11, 7, v0")
    if 'vones' not in OPT: v_ones(p,16)
    stamp(p,'B pre-S1',vt=200)
    for f in GOFN: f()
    p("s_cmp_lg_u32 s6, 0"); p("s_cbranch_scc1 B_s1skip")
    if 'go2' in OPT: p("v_and_b32 v62, 1, v0"); p("v_lshlrev_b32 v62, 6, v62"); p("v_add_u32 v62, 128, v62")
    else: p("v_mov_b32 v62, 128")
    poll(p,'s1',SRD_D,'0','v62',1,61,sleep=int(os.environ.get('S1SLEEP','1')))
    p.label("B_s1skip")
    p("s_waitcnt lgkmcnt(0)")
    p("s_barrier")
    stamp(p,'B S1 done',vt=200)
    vm=VM(p)
    p(f"s_mov_b32 s3, {L.KM}")
    vm.issue('KM',f"buffer_load_dword v61, v11, {SRD_WS}, s3 offen sc1")
    ldK(p,vm,0)
    p(f"ds_read_b128 v[{QB[0]}:{QB[0]+3}], v59")
    p(f"ds_read_b128 v[104:107], v60")
    ldK(p,vm,1); ldV(p,vm,0); ldK(p,vm,2); ldV(p,vm,1); ldK(p,vm,3); ldV(p,vm,2)
    p("s_waitcnt lgkmcnt(0)")
    p("v_max_u32 v60, v104, v105"); p("v_max3_u32 v60, v60, v106, v107")
    vm.wait('KM')
    for d in ("row_ror:8","row_ror:4","row_ror:2","row_ror:1"):
        p(f"v_max_u32_dpp v61, v61, v61 {d} row_mask:0xf bank_mask:0xf")
    p("v_readlane_b32 s3, v61, 0"); p("v_readlane_b32 s7, v61, 16"); p("s_max_u32 s3, s3, s7")
    p("v_readlane_b32 s7, v61, 32"); p("s_max_u32 s3, s3, s7")
    p("v_readlane_b32 s7, v61, 48"); p("s_max_u32 s65, s3, s7")
    p("v_mul_f32 v60, s65, v60")
    p(f"v_cmp_nge_f32 vcc, {hx(f2u(THRESH*THRESH/(1.02*1.02)))}, v60")
    p("s_cmp_lg_u64 vcc, 0")
    p("s_cbranch_scc1 L_slow")
    vm.wait(('K',0))
    p(QK(SB[0],0,QB[0],False))
    stamp(p,'B first',vt=200)
    import copy
    SLOW.append(vm)
    vm=copy.copy(vm); vm.pos=dict(vm.pos)
    ev0={}
    if 'wowarm2' in OPT:
        ev0[int(os.environ.get('WOT','13'))]=[(11,[('s',"s_lshr_b32 s85, s2, 3"),('s',"s_lshl_b32 s85, s85, 2"),('s',"s_add_u32 s85, s85, s6"),('s',"s_lshl_b32 s85, s85, 12"),
              ('m',('WOW',0),f"buffer_load_dword v49, v50, {SRD_O}, s85 offen ; nowaitcheck")])]
    att_pass(p,0,first=True,vm=vm,ev=ev0)
    vm.wait(('V',15,1))
    stamp(p,'B pass0',vt=200)
    if 'wo2' in OPT:
        DPOS=tuple(int(x) for x in os.environ.get('DPOS','13,13').split(',')); DT1=18//len(DPOS)
        THIN=0
        WOG=wo_dma_groups(vm)
        ev={}
        ev[0]=[(11,[('s',"s_lshr_b32 s85, s2, 3"),('s',"s_lshl_b32 s85, s85, 2"),('s',"s_add_u32 s85, s85, s6"),('s',"s_lshl_b32 s85, s85, 12"),
              ('m',('WOW',0),f"buffer_load_dword v49, v50, {SRD_O}, s85 offen ; nowaitcheck")])]
        if 'xcc' in OPT:
            class NV:
                def issue(s_,k,t): p(t)
            ev.setdefault(1,[]).append((4,lambda: xcc_publish(p,NV())))
        W1T=int(os.environ.get('W1T','10'))
        for n,(t,sr,off) in enumerate(((0,SRD_A,0),(1,SRD_B,0),(2,SRD_A,4096),(3,SRD_B,4096))):
            g=[('m',('WARM',n),f"buffer_load_dword v49, v50, {sr}, s78 offen ; nowaitcheck")]
            if n==2: g=[('s',"s_add_u32 s78, s78, 4096")]+g
            ev.setdefault(W1T+t,[]).append((11,g))
        spread(ev,w1_setup(),2,9,poss=(1,4,8,11,14,17))
        att_pass(p,1,vm=vm,ev=ev)
        ev={}
        W0=int(os.environ.get('WOD0','0')); spread(ev,WOG,W0,W0+DT1-1,poss=DPOS)
        att_pass(p,0,vm=vm,ev=ev)
    else:
        DPOS=tuple(int(x) for x in os.environ.get('DPOS','13,13').split(',')); DT1=18//len(DPOS)
        THIN=int(os.environ.get('THIN','0')); TPOS=int(os.environ.get('TPOS','4'))
        WOG=wo_dma_groups(vm)
        ev={}
        if THIN: spread(ev,WOG[:16],0,15,poss=(TPOS,))
        else:
            W0=int(os.environ.get('WOD0','7' if 'wowarm3' in OPT else '1')); spread(ev,WOG,W0,W0+DT1-1,poss=DPOS)
        if 'xcc' in OPT:
            class NV:
                def issue(s_,k,t): p(t)
            ev.setdefault(0,[]).append((4,lambda: xcc_publish(p,NV())))
        if 'wowarm3' in OPT:
            ev.setdefault(int(os.environ.get('WOT','0')),[]).append((11,[('s',"s_lshr_b32 s85, s2, 3"),('s',"s_lshl_b32 s85, s85, 2"),('s',"s_add_u32 s85, s85, s6"),('s',"s_lshl_b32 s85, s85, 12"),
              ('m',('WOW',0),f"buffer_load_dword v49, v50, {SRD_O}, s85 offen ; nowaitcheck")]))
        att_pass(p,1,vm=vm,ev=ev)
        ev={}
        if 'warm' in OPT:
            for n,(t,sr,off) in enumerate(((0,SRD_A,0),(1,SRD_B,0),(2,SRD_A,4096),(3,SRD_B,4096))):
                g=[('m',('WARM',n),f"buffer_load_dword v49, v50, {sr}, s78 offen ; nowaitcheck")]
                if n==2: g=[('s',"s_add_u32 s78, s78, 4096")]+g
                ev.setdefault(t,[]).append((11,g))
        if THIN:
            for n,g in enumerate(WOG[16:]): ev.setdefault(4+n,[]).append((TPOS,g))
        spread(ev,w1_setup(),4,14 if 'w1mask' in OPT else 13,poss=(1,4,8,11,14,17))
        att_pass(p,0,vm=vm,ev=ev)
    ev={0:[(0,lambda: vm.wait(('XR',1))),(0,"s_barrier")]}
    spread(ev,wo_frag_reads(),0,12,poss=(1,4,8,11,14))
    att_pass(p,1,vm=vm,ev=ev)
    ev={0:[(0,"s_barrier")]}
    W1G=w1_dma(0)+w1_dma(1)+w1_dma(2)
    if THIN: spread(ev,W1G[:15],1,15,poss=(TPOS,))
    else: spread(ev,W1G,1,DT1,poss=DPOS)
    att_pass(p,0,vm=vm,ev=ev)
    ev={}
    if THIN:
        for n,g in enumerate(W1G[15:]): ev.setdefault((0,1,3)[n],[]).append((TPOS,g))
    if 'pt' in OPT:
        ev.setdefault(2,[]); ev[2]+=[(4,[('m',('PT',0),f"buffer_load_dword v49, v51, {SRD_WS}, s82 offen ; nowaitcheck")])]
        ev[6]=[(4,[('m',('PT',1),f"buffer_load_dword v49, v51, {SRD_WS}, s83 offen ; nowaitcheck")])]
        ev[10]=[(4,[('s',"s_mov_b64 exec, 3"),('m',('PT',2),f"buffer_load_dword v49, v51, {SRD_WS}, s84 offen ; nowaitcheck"),('s',"s_mov_b64 exec, -1")])]
    att_pass(p,1,vm=vm,ev=ev)
    ev={}
    if 'codepf2' in OPT:
        NL=int(os.environ.get('PF2_LINES','4'))
        def pf2():
            p("s_getpc_b64 s[84:85]")
            p.label("PF2_HERE")
            p("s_lshr_b32 s3, s2, 3"); p("s_lshl_b32 s3, s3, 2"); p("s_add_u32 s3, s3, s6"); p(f"s_mul_i32 s3, s3, {NL*64}")
            p(f"v_and_b32 v50, {NL-1}, v0"); p("v_lshlrev_b32 v50, 6, v50"); p("v_add_u32 v50, s3, v50")
            p("v_add_u32 v50, L_att_tail-PF2_HERE, v50")
            p("v_min_u32 v50, END_K-PF2_HERE-4, v50")
            p(f"s_mov_b64 exec, {(1<<NL)-1}")
            vm.issue(('PF2',0),"global_load_dword v49, v50, s[84:85] ; nowaitcheck")
            p("s_mov_b64 exec, -1")
        ev[PF2_T]=[(4,pf2)]
    if 'wdatt' in OPT:
        g=[('s',f"s_mov_b32 s24, s{P_WD}"),('s',f"s_mov_b32 s25, s{P_WD+1}"),('s',f"s_mov_b32 s26, {hx(1376*1024)}"),
           ('s',"s_lshr_b32 s79, s2, 3"),('s',"s_lshl_b32 s79, s79, 2"),('s',"s_add_u32 s79, s79, s6"),('s',"s_mul_i32 s79, s79, 11008"),('s',"v_lshlrev_b32 v51, 6, v0")]
        ev.setdefault(0,[]).append((4,g))
        WDT=int(os.environ.get('WDT','1'))
        for n in range(0 if 'x_nowd' in OPT else 3):
            g=[('m',('WDW',n),f"buffer_load_dword v49, v51, {SRD_O}, s79 offen ; nowaitcheck")]
            if n<2: g.append(('s',"s_add_u32 s79, s79, 4096"))
            ev.setdefault(WDT+2*n,[]).append((11,g))
    if 'xcc' in OPT: ev.setdefault(12,[]).append((4,lambda: xcc_load(p,vm)))
    att_pass(p,0,vm=vm,ev=ev)
    att_pass(p,1,vm=vm)
    p.label("L_att_tail")
    p(PV(OB[1],VA+8*15+4,SB[1]+8))
    slot_write(p,OB[1])
    p.label("L_att_done")
    stamp(p,'B loop done',vt=14)
    p("s_mul_i32 s3, s6, 18432"); p(f"s_add_u32 s3, s3, {OP}")
    p("v_add_u32 v118, s3, v9")
    p("s_add_u32 s3, s3, 2048")
    p("v_lshl_add_u32 v119, v0, 2, s3")
    p("s_lshr_b32 s3, s6, 1"); p("s_lshl_b32 s7, s4, 1"); p("s_add_u32 s3, s3, s7"); p("s_lshl_b32 s3, s3, 5")
    p("s_lshl_b32 s7, s5, 2"); p("s_add_u32 s3, s3, s7")
    p("s_and_b32 s7, s6, 1"); p("s_lshl_b32 s7, s7, 1"); p("s_add_u32 s3, s3, s7")
    p("s_lshl_b32 s3, s3, 10"); p(f"s_add_u32 s63, s3, {L.OF}")
    p("s_waitcnt vmcnt(0) lgkmcnt(0)")
    p("s_barrier")
    if 'xcc' in OPT: xcc_check(p)
    if 'pnorm' in OPT:
        p("s_lshl_b32 s3, s61, 12"); p("s_lshl_b32 s7, s62, 8"); p("s_add_u32 s3, s3, s7"); p(f"s_add_u32 s3, s3, {L.HS}")
        p("v_mov_b32 v122, -1"); p("v_mov_b32 v123, -1"); p("v_lshlrev_b32 v124, 3, v0")
        p("s_mov_b32 exec_hi, 0")
        hstore(p,f"buffer_store_dwordx2 v[122:123], v124, {SRD_WS}, s3 offen")
        p("s_mov_b64 exec, -1")
    def rds(jj):
        for ww in range(4):
            b=16+(jj*4+ww)*8; off=jj*9216+ww*2304
            p(f"ds_read_b128 v[{b}:{b+3}], v118 offset:{off}")
            p(f"ds_read_b128 v[{b+4}:{b+7}], v118 offset:{off+1024}")
            p(f"ds_read_b32 v{80+jj*4+ww}, v119 offset:{off}")
    rds(0)
    for jj in range(2):
        b=16+jj*32; sb=80+jj*4; O=96+10*jj
        if jj==0:
            p("s_waitcnt lgkmcnt(6)")
            for j in range(4): p(f"v_pk_add_f32 v[{b+2*j}:{b+2*j+1}], v[{b+2*j}:{b+2*j+1}], v[{b+8+2*j}:{b+8+2*j+1}]")
            p(f"v_add_f32 v{sb}, v{sb}, v{sb+1}")
            rds(1)
            p("s_waitcnt lgkmcnt(12)")
        else:
            p("s_waitcnt lgkmcnt(6)")
            for j in range(4): p(f"v_pk_add_f32 v[{b+2*j}:{b+2*j+1}], v[{b+2*j}:{b+2*j+1}], v[{b+8+2*j}:{b+8+2*j+1}]")
            p(f"v_add_f32 v{sb}, v{sb}, v{sb+1}")
            p("s_waitcnt lgkmcnt(0)")
        for j in range(4):
            p(f"v_pk_add_f32 v[{b+16+2*j}:{b+16+2*j+1}], v[{b+16+2*j}:{b+16+2*j+1}], v[{b+24+2*j}:{b+24+2*j+1}]")
        p(f"v_add_f32 v{sb+2}, v{sb+2}, v{sb+3}")
        for j in range(4):
            p(f"v_pk_add_f32 v[{O+2*j}:{O+2*j+1}], v[{b+2*j}:{b+2*j+1}], v[{b+16+2*j}:{b+16+2*j+1}]")
        p(f"v_add_f32 v{O+8}, v{sb}, v{sb+2}")
        o_store(p,O,jj)

SLOW=[]
def attention_slow(p):
    vm=SLOW[0]
    p.label("L_slow")
    if 'xcc' in OPT: xcc_publish(p,vm)
    for j in range(4,16): ldK(p,vm,j)
    for j in range(3,16): ldV(p,vm,j)
    for g in wo_dma_groups(vm): emit_group(p,vm,g)
    p("s_waitcnt vmcnt(0)")
    p("s_barrier")
    for x in wo_frag_reads(): p(x)
    for x in w1_setup():
        if isinstance(x,list): emit_group(p,vm,x)
        else: p(x)
    p("s_waitcnt lgkmcnt(0)")
    p("s_barrier")
    for g in w1_dma(0)+w1_dma(1)+w1_dma(2): emit_group(p,vm,g)
    p("s_mov_b32 s64, 0")
    p.label("L_mx")
    p("s_lshl_b32 s3, s64, 10")
    p("v_add_u32 v120, s3, v59")
    p(f"ds_read_b128 v[{QB[1]}:{QB[1]+3}], v120")
    p("v_mov_b32 v121, 0xff800000")
    p("s_waitcnt lgkmcnt(0)")
    p(QK(SB[0],0,QB[1],False))
    for t in range(16):
        S=SB[t%2]; Sn=SB[(t+1)%2]
        if t<15: p(QK(Sn,t+1,QB[1],False))
        for j in range(8): p(f"v_max3_f32 v121, v{S+2*j}, v{S+2*j+1}, v121")
    p("v_mov_b32 v122, v121")
    p("v_permlane32_swap_b32 v121, v122")
    p("v_max_f32 v121, v121, v122")
    p("s_lshl_b32 s3, s64, 9"); p("s_lshl_b32 s7, s6, 7"); p("s_add_u32 s3, s3, s7")
    p("v_and_b32 v122, 31, v0")
    p("v_lshl_add_u32 v122, v122, 2, s3")
    p(f"v_add_u32 v122, {MX}, v122")
    p(f"ds_write_b32 v122, v121")
    p("s_add_u32 s64, s64, 1"); p("s_cmp_lt_u32 s64, 8"); p("s_cbranch_scc1 L_mx")
    p("s_waitcnt lgkmcnt(0)")
    p("s_barrier")
    p("v_and_b32 v122, 31, v0"); p("v_lshlrev_b32 v122, 2, v122")
    p("s_lshl_b32 s3, s6, 10"); p(f"s_add_u32 s3, s3, {MX}"); p("v_add_u32 v122, s3, v122")
    for qq in range(2):
        for ww in range(4): p(f"ds_read_b32 v{16+4*qq+ww}, v122 offset:{qq*512+ww*128}")
    p("s_waitcnt lgkmcnt(0)")
    p("s_lshl_b32 s3, s6, 9"); p(f"s_add_u32 s3, s3, {MF}")
    p("v_lshl_add_u32 v122, v0, 2, s3")
    for qq in range(2):
        b=16+4*qq
        p(f"v_max3_f32 v{b}, v{b}, v{b+1}, v{b+2}"); p(f"v_max_f32 v{b}, v{b}, v{b+3}"); p(f"v_sub_f32 v{b}, 0, v{b}")
        p(f"ds_write_b32 v122, v{b} offset:{qq*256}")
    p("s_waitcnt lgkmcnt(0)")
    p("s_barrier")
    p(f"v_lshlrev_b32 v120, 2, v0"); p(f"v_add_u32 v120, {MF}, v120")
    p(f"ds_read_b32 v121, v120")
    p("v_add_u32 v120, 256, v120")
    p("s_waitcnt lgkmcnt(0)")
    for j in range(16): p(f"v_mov_b32 v{CB+j}, v121")
    p(QK(SB[0],0,QB[0],True))
    att_pass_slow(p)
    if 'xcc' in OPT: xcc_load(p,vm)
    p("s_branch L_att_done")

def att_pass_slow(p):
    att_pass(p,0,first=True,slow=True,vm=None)
    p("s_mov_b32 s64, 4")
    p("s_branch L_sttY")
    p.label("L_sttX")
    att_pass(p,0,slow=True)
    p.label("L_sttY")
    att_pass(p,1,slow=True)
    p("s_sub_u32 s64, s64, 1")
    p("s_cmp_lg_u32 s64, 0")
    p("s_cbranch_scc1 L_sttX")
    p(PV(OB[1],VA+8*15+4,SB[1]+8))
    slot_write(p,OB[1])

def w1_setup():
    F=[]; p=F.append
    p("s_and_b32 s3, s4, 1"); p("s_lshl_b32 s3, s3, 3"); p("s_add_u32 s3, s3, s5")
    p("s_min_u32 s7, s3, 11"); p("s_lshl_b32 s7, s7, 1"); p("s_lshl_b32 s66, s3, 2"); p("s_add_u32 s66, s66, s7")
    p("s_cmp_lt_u32 s3, 11"); F[-1]=[('s',"s_cmp_lt_u32 s3, 11"),('s',"s_cselect_b32 s67, 6, 4")]
    MK='w1mask' in OPT
    if MK:
        p("s_lshl_b32 s7, s67, 1"); p("v_mov_b32 v15, 0x40000000")
    for i in range(3):
        p(f"v_add_u32 v11, {64*i}, v0")
        p("v_mul_u32_u24 v12, 5462, v11"); p("v_lshrrev_b32 v12, 16, v12")
        p("v_mul_u32_u24 v13, 12, v12"); p("v_sub_u32 v13, v11, v13")
        p("v_mul_u32_u24 v12, 2752, v12")
        if i: p(f"v_subrev_u32 v12, {1024*i}, v12")
        p(f"v_lshl_add_u32 v{2+i}, v13, 4, v12")
        if MK: p("v_cmp_le_u32 vcc, s7, v13"); p(f"v_cndmask_b32 v{2+i}, v{2+i}, v15, vcc")
        p("v_add_u32 v13, 10, v13"); p("v_subrev_u32 v14, 12, v13"); p("v_min_u32 v13, v13, v14")
        p(f"v_lshl_add_u32 v{5+i}, v13, 4, v12")
        if MK: p("v_cmp_le_u32 vcc, s7, v13"); p(f"v_cndmask_b32 v{5+i}, v{5+i}, v15, vcc")
    p(f"s_mul_i32 s68, s6, {16*2752}"); p("s_lshl_b32 s3, s66, 5"); p("s_add_u32 s68, s68, s3")
    p("s_mul_i32 s69, s6, 3072")
    return F
assert all((c*5462)>>16==c//12 for c in range(192))

def w1_dma(q):
    slot=q%6
    out=[]
    for mat in range(2):
        for i in range(3):
            g=[]
            if i==0 or ('w1wait' in OPT and q>=3): g.append(('s',f"s_add_u32 m0, s69, {slot*SLOT+mat*12288}"))
            if i==0 and mat==0: g.append(('s',f"s_add_u32 s71, s68, {q*64*2752}"))
            nt=' nt' if (('ntw1e' in OPT and q<3) or ('ntw1l' in OPT and q>=3)) else ''
            g.append(('m',('W1',q,3*mat+i),f"buffer_load_dwordx4 v{2+3*mat+i}, {SRD_A if mat==0 else SRD_B}, s71 offen offset:{i*1024}{nt} lds"))
            out.append(g)
    return out

WOA=128
def wo_frag_reads():
    out=[]
    for i in range(16):
        for cc,va in enumerate(('v10','v1')):
            b=WOA+8*i+4*cc
            out.append(f"ds_read_b64_tr_b16 v[{b}:{b+1}], {va} offset:{i*2048}")
            out.append(f"ds_read_b64_tr_b16 v[{b+2}:{b+3}], {va} offset:{i*2048+512}")
    return out

def wo_phase(p):
    p("s_waitcnt vmcnt(0)")
    flag_off(p,F2); set_flag(p,'s3',12)
    stamp(p,'C flag set',vt=14)
    p("s_barrier")
    WW=os.environ.get('WW','3,4,5').split(',') if 'w1wait' in OPT else []
    class NV2:
        def issue(s_,k,t): p(t)
    def wdma(q):
        for g in w1_dma(q): emit_group(p,NV2(),g)
    if '3' in WW: wdma(3)
    p("v_and_b32 v12, 31, v0"); p("v_lshlrev_b32 v12, 2, v12")
    p("s_lshl_b32 s30, s4, 7"); p(f"s_add_u32 s30, s30, {F2}")
    p("s_lshl_b32 s31, s61, 5"); p("s_and_b32 s3, s6, 1"); p("s_lshl_b32 s3, s3, 4"); p("s_add_u32 s31, s31, s3")
    p("s_lshl_b32 s31, s31, 10"); p(f"s_add_u32 s31, s31, {L.OF}")
    poll(p,'s2',SRD_WS,'s30','v12',1,13)
    stamp(p,'C S2 done',vt=14)
    vm=VM(p)
    for i in range(16):
        if i%4==0 and i: p(f"s_add_u32 s31, s31, 4096")
        vm.issue(i,f"buffer_load_dwordx4 a[{4*i}:{4*i+3}], v9, {SRD_WS}, s31 offen offset:{(i%4)*1024}{HL1}")
    ACC=[64,80]
    dm=[] if 'w1late' in OPT else w1_dma(3)+w1_dma(4)+w1_dma(5)
    for j in range(8): p(f"v_accvgpr_read_b32 v{112+j}, a{192+j}")
    for i in range(16):
        vm.wait(i)
        for cc in range(2):
            a=ACC[cc]; b=WOA+8*i+4*cc
            p(f"v_mfma_f32_32x32x16_bf16 v[{a}:{a+15}], v[{b}:{b+3}], a[{4*i}:{4*i+3}], {'0' if i==0 else f'v[{a}:{a+15}]'}")
            if dm and (cc==0 or i<2): emit_group(p,vm,dm.pop(0))
    assert not dm
    for j in range(8):
        p(f"v_lshlrev_b32 v{96+2*j}, 16, v{112+j}")
        p(f"v_and_b32 v{97+2*j}, 0xffff0000, v{112+j}")
    stamp(p,'C mfma',vt=14)
    if '4' in WW: wdma(4)
    pair_reduce(p,ACC,RED)
    for j in range(8): p(f"v_pk_add_f32 v[{64+2*j}:{65+2*j}], v[{64+2*j}:{65+2*j}], v[{96+2*j}:{97+2*j}]")
    if 'pnorm' in OPT:
        wo_tail_pnorm(p); return
    for j in range(8): p(f"v_cvt_pk_bf16_f32 v{32+j}, v{64+2*j}, v{65+2*j}")
    p("s_lshl_b32 s3, s61, 5"); p("s_lshl_b32 s7, s62, 1"); p("s_add_u32 s3, s3, s7"); p("s_lshl_b32 s3, s3, 10"); p(f"s_add_u32 s3, s3, {L.HF}")
    hstore(p,[f"buffer_store_dwordx4 v[32:35], v9, {SRD_WS}, s3 offen",
              f"buffer_store_dwordx4 v[36:39], v9, {SRD_WS}, s3 offen offset:1024"])
    p("v_pk_mul_f32 v[42:43], v[64:65], v[64:65]"); p("v_pk_add_f32 v[40:41], v[64:65], v[66:67]")
    p("v_pk_fma_f32 v[42:43], v[66:67], v[66:67], v[42:43]")
    for j in range(2,8):
        p(f"v_pk_add_f32 v[40:41], v[40:41], v[{64+2*j}:{65+2*j}]"); p(f"v_pk_fma_f32 v[42:43], v[{64+2*j}:{65+2*j}], v[{64+2*j}:{65+2*j}], v[42:43]")
    p("v_add_f32 v40, v40, v41"); p("v_add_f32 v41, v42, v43")
    p("v_mov_b32 v42, v40"); p("v_mov_b32 v43, v41")
    p("v_permlane32_swap_b32 v40, v42"); p("v_permlane32_swap_b32 v41, v43")
    p("v_add_f32 v40, v40, v42"); p("v_add_f32 v41, v41, v43")
    p("s_lshl_b32 s3, s61, 12"); p("s_lshl_b32 s7, s62, 8"); p("s_add_u32 s3, s3, s7"); p(f"s_add_u32 s3, s3, {L.HS}")
    p("v_lshlrev_b32 v12, 3, v0")
    p("s_mov_b32 exec_hi, 0")
    hstore(p,f"buffer_store_dwordx2 v[40:41], v12, {SRD_WS}, s3 offen")
    p("s_mov_b64 exec, -1")
    for j in range(8): p(f"v_accvgpr_write_b32 a{248+j}, v{32+j}")
    flag_off(p,F3)
    p("s_waitcnt vmcnt(0)")
    set_flag(p,'s3',12)
    stamp(p,'C done',vt=14)

def ln_stats(p,b):
    for i in range(2):
        p(f"v_pk_add_f32 v[{b+4*i}:{b+1+4*i}], v[{b+4*i}:{b+1+4*i}], v[{b+2+4*i}:{b+3+4*i}]")
        p(f"v_pk_add_f32 v[{b+8+4*i}:{b+9+4*i}], v[{b+8+4*i}:{b+9+4*i}], v[{b+10+4*i}:{b+11+4*i}]")
    p(f"v_pk_add_f32 v[{b}:{b+1}], v[{b}:{b+1}], v[{b+4}:{b+5}]"); p(f"v_pk_add_f32 v[{b+8}:{b+9}], v[{b+8}:{b+9}], v[{b+12}:{b+13}]")
    p(f"v_pk_add_f32 v[16:17], v[{b}:{b+1}], v[{b+8}:{b+9}]")
    p("v_mov_b32 v18, v16"); p("v_mov_b32 v19, v17")
    p("v_permlane32_swap_b32 v16, v18"); p("v_permlane32_swap_b32 v17, v19")
    p("v_add_f32 v16, v16, v18"); p("v_add_f32 v17, v17, v19")
    p(f"v_mul_f32 v16, {hx(f2u(1/512))}, v16"); p(f"v_mul_f32 v17, {hx(f2u(1/512))}, v17")
    p("v_fma_f32 v17, -v16, v16, v17"); p("v_max_f32 v17, 0, v17"); p(f"v_add_f32 v17, {hx(f2u(1e-5))}, v17")
    p("v_rsq_f32 v17, v17"); p("v_mul_f32 v16, v16, v17"); p("v_sub_f32 v18, 0, v16"); p("v_mov_b32 v19, v18"); p("v_mov_b32 v16, v17")

def wo_tail_pnorm(p):
    p("v_pk_mul_f32 v[42:43], v[64:65], v[64:65]"); p("v_pk_add_f32 v[40:41], v[64:65], v[66:67]")
    p("v_pk_fma_f32 v[42:43], v[66:67], v[66:67], v[42:43]")
    for j in range(2,8):
        p(f"v_pk_add_f32 v[40:41], v[40:41], v[{64+2*j}:{65+2*j}]"); p(f"v_pk_fma_f32 v[42:43], v[{64+2*j}:{65+2*j}], v[{64+2*j}:{65+2*j}], v[42:43]")
    p("v_add_f32 v40, v40, v41"); p("v_add_f32 v41, v42, v43")
    p("v_mov_b32 v42, v40"); p("v_mov_b32 v43, v41")
    p("v_permlane32_swap_b32 v40, v42"); p("v_permlane32_swap_b32 v41, v43")
    p("s_lshl_b32 s31, s61, 12"); p(f"s_add_u32 s31, s31, {L.HS}"); p("s_lshl_b32 s7, s62, 8"); p("s_add_u32 s3, s31, s7")
    p("v_add_f32 v40, v40, v42"); p("v_add_f32 v41, v41, v43")
    p("v_lshlrev_b32 v12, 3, v0")
    p("s_mov_b32 exec_hi, 0")
    hstore(p,f"buffer_store_dwordx2 v[40:41], v12, {SRD_WS}, s3 offen")
    p("s_mov_b64 exec, -1")
    p("v_and_b32 v12, 31, v0"); p("v_lshlrev_b32 v12, 3, v12"); p("v_lshrrev_b32 v13, 5, v0"); p("v_lshl_add_u32 v30, v13, 11, v12")
    def lds_():
        for i in range(8): p(f"buffer_load_dwordx2 v[{96+2*i}:{97+2*i}], v30, {SRD_WS}, s31 offen offset:{i*256} sc1")
    lds_()
    for j in range(8): p(f"v_cvt_pk_bf16_f32 v{32+j}, v{64+2*j}, v{65+2*j}")
    for j in range(8): p(f"v_accvgpr_write_b32 a{248+j}, v{32+j}")
    p("s_lshl_b32 s3, s61, 5"); p("s_lshl_b32 s7, s62, 1"); p("s_add_u32 s3, s3, s7"); p("s_lshl_b32 s3, s3, 10"); p(f"s_add_u32 s30, s3, {L.HF}")
    p(f"s_mov_b32 s29, {SPIN}")
    p.label("POLL_hs")
    p("s_waitcnt vmcnt(0)")
    p("v_max3_u32 v112, v97, v99, v101"); p("v_max3_u32 v113, v103, v105, v107"); p("v_max3_u32 v112, v112, v109, v111"); p("v_max_u32 v112, v112, v113")
    p("v_cmp_eq_u32 vcc, -1, v112")
    p("s_cmp_eq_u64 vcc, 0"); p("s_cbranch_scc1 POLLD_hs")
    p("s_sub_u32 s29, s29, 1"); p("s_cmp_eq_u32 s29, 0"); p("s_cbranch_scc1 POLLD_hs")
    lds_()
    p("s_branch POLL_hs")
    p.label("POLLD_hs")
    stamp(p,'C stats',vt=12)
    ln_stats(p,96)
    for j in range(8): p(f"v_pk_fma_f32 v[{64+2*j}:{65+2*j}], v[{64+2*j}:{65+2*j}], v[16:17], v[18:19]")
    for j in range(8): p(f"v_cvt_pk_bf16_f32 v{32+j}, v{64+2*j}, v{65+2*j}")
    hstore(p,[f"buffer_store_dwordx4 v[32:35], v9, {SRD_WS}, s30 offen",
              f"buffer_store_dwordx4 v[36:39], v9, {SRD_WS}, s30 offen offset:1024"])
    flag_off(p,F3)
    p("s_waitcnt vmcnt(0)")
    set_flag(p,'s3',12)
    stamp(p,'C done',vt=14)
    if 'w1wait' in OPT and '5' in os.environ.get('WW','3,4,5').split(','):
        class NV2:
            def issue(s_,k,t): p(t)
        for g in w1_dma(5): emit_group(p,NV2(),g)

def flag_off(p,F):
    p("s_lshl_b32 s3, s4, 7"); p("s_lshl_b32 s7, s5, 4"); p("s_add_u32 s3, s3, s7"); p("s_lshl_b32 s7, s6, 2"); p("s_add_u32 s3, s3, s7")
    p(f"s_add_u32 s3, s3, {F}")

def pair_reduce(p,ACC,base):
    p(f"s_lshl_b32 s3, s6, 12"); p(f"s_add_u32 s3, s3, {base}")
    p("v_add_u32 v12, s3, v9")
    for q in range(4): p(f"ds_write_b128 v12, v[{ACC[1]+4*q}:{ACC[1]+4*q+3}] offset:{q*1024}")
    p("v_xor_b32 v12, 4096, v12")
    p("s_waitcnt lgkmcnt(0)")
    p("s_barrier")
    for q in range(4): p(f"ds_read_b128 v[{ACC[1]+4*q}:{ACC[1]+4*q+3}], v12 offset:{q*1024}")
    for q in range(4):
        p(f"s_waitcnt lgkmcnt({3-q})")
        for j in range(2):
            a=ACC[0]+4*q+2*j; b=ACC[1]+4*q+2*j
            p(f"v_pk_add_f32 v[{a}:{a+1}], v[{a}:{a+1}], v[{b}:{b+1}]")

def ffn1_phase(p):
    p("s_lshr_b32 s70, s4, 1"); p("s_lshl_b32 s70, s70, 2"); p("s_add_u32 s70, s70, s6")
    if 'wdpf' in OPT:
        p("v_lshrrev_b32 v1, 3, v0"); p("v_and_b32 v10, 7, v0")
        w128_voff(p,'v1')
        p("s_lshl_b32 s74, s6, 12"); p("s_lshl_b32 s77, s6, 15")
        p("s_lshr_b32 s3, s6, 1"); p(f"s_mul_i32 s75, s3, {43*16*1024}")
    lane_params(p)
    p("v_mul_u32_u24 v10, 192, v14"); p("v_add_u32 v10, v10, v96")
    p(f"v_mul_u32_u24 v97, {12288+32}, v15"); p("v_add_u32 v28, v10, v97")
    p(f"v_mul_u32_u24 v97, {12288+32-192}, v15"); p("v_add_u32 v29, v10, v97")
    p("v_and_b32 v12, 31, v0"); p("v_lshlrev_b32 v12, 3, v12"); p("v_lshrrev_b32 v13, 5, v0"); p("v_lshl_add_u32 v30, v13, 11, v12")
    p("v_lshlrev_b32 v12, 2, v0")
    p("s_lshr_b32 s30, s4, 1"); p("s_lshl_b32 s30, s30, 8"); p(f"s_add_u32 s30, s30, {F3}")
    poll(p,'s3',SRD_WS,'s30','v12',1,13)
    stamp(p,'D S3 done',vt=12)
    srd(p,24,P_WD,1376*1024)
    p("s_lshr_b32 s79, s2, 3"); p("s_lshl_b32 s79, s79, 2"); p("s_add_u32 s79, s79, s6"); p("s_mul_i32 s79, s79, 11008")
    p("v_lshlrev_b32 v14, 6, v0")
    vm=VM(p)
    p("s_lshl_b32 s30, s70, 15"); p(f"s_add_u32 s30, s30, {L.HF}")
    def ldB(s):
        p(f"s_add_u32 s3, s30, {s*1024}")
        vm.issue(('B',s),f"buffer_load_dwordx4 v[{128+4*s}:{131+4*s}], v9, {SRD_WS}, s3 offen{HL1}")
    p("s_lshl_b32 s31, s70, 12"); p(f"s_add_u32 s31, s31, {L.HS}")
    PN='pnorm' in OPT
    ldB(0)
    if not PN:
        for i in range(8): vm.issue(('S',i),f"buffer_load_dwordx2 v[{32+2*i}:{33+2*i}], v30, {SRD_WS}, s31 offen offset:{i*256}{HL1}")
    LA=int(os.environ.get('LA1','8'))
    for s in range(1,LA): ldB(s)
    NEW='w1late' in OPT
    if not NEW: p("s_barrier")
    AB=[0,24]
    def rdA(s):
        q,ss=divmod(s,4); b=AB[s%2]; out=[]
        for uu in range(6):
            va='v10' if uu<5 else 'v11'
            off=ss*3072+uu*32
            out.append(f"ds_read_b64_tr_b16 a[{b+4*uu}:{b+4*uu+1}], {va} offset:{off}")
            out.append(f"ds_read_b64_tr_b16 a[{b+4*uu+2}:{b+4*uu+3}], {va} offset:{off+768}")
        return out
    def setbase(q):
        slot=q%6
        return [f"v_add_u32 v10, {slot*SLOT}, v28", f"v_add_u32 v11, {slot*SLOT}, v29"]
    for x in setbase(0): p(x)
    for x in rdA(0): p(x)
    if not PN:
        vm.wait(('S',7))
        ln_stats(p,32)
    def norm(s):
        out=[]
        if PN: return out
        if 'pknorm' in OPT:
            for i in range(4):
                r=128+4*s+i; t0=20+2*i; t1=21+2*i
                out.append(f"v_lshlrev_b32 v{t0}, 16, v{r}"); out.append(f"v_and_b32 v{t1}, 0xffff0000, v{r}")
            for i in range(4):
                t0=20+2*i
                out.append(f"v_pk_fma_f32 v[{t0}:{t0+1}], v[{t0}:{t0+1}], v[16:17], v[18:19]")
            for i in range(4):
                r=128+4*s+i; t0=20+2*i; t1=21+2*i
                out.append(f"v_cvt_pk_bf16_f32 v{r}, v{t0}, v{t1}")
            return out
        for h2 in range(2):
            for i in (2*h2,2*h2+1):
                r=128+4*s+i; t0=20+2*i; t1=21+2*i
                out.append(f"v_lshlrev_b32 v{t0}, 16, v{r}"); out.append(f"v_and_b32 v{t1}, 0xffff0000, v{r}")
            for i in (2*h2,2*h2+1):
                t0=20+2*i; t1=21+2*i
                out.append(f"v_fma_f32 v{t0}, v{t0}, v16, v18"); out.append(f"v_fma_f32 v{t1}, v{t1}, v16, v18")
            for i in (2*h2,2*h2+1):
                r=128+4*s+i; t0=20+2*i; t1=21+2*i
                out.append(f"v_cvt_pk_bf16_f32 v{r}, v{t0}, v{t1}")
        return out
    vm.wait(('B',0))
    for x in norm(0): p(x)
    stamp(p,'D start',vt=12)
    ACC=[32+16*u for u in range(6)]
    dmas=w1_dma(6)+w1_dma(7)
    DS={}; BAR={}
    def wd_group(g0,vb=4):
        out=[]
        for j in range(4):
            g=[]
            if j==0 or 'w1wait' in OPT: g.append(('s',f"s_add_u32 m0, s74, {g0*4096}"))
            if j==0:
                g.append(('s',f"s_add_u32 s76, s77, {(g0//20)*43*16*1024+(g0%20)*32768}"))
            g.append(('m',('WD',g0,j),f"buffer_load_dwordx4 v{vb+j}, {SRD_O}, s76 offen offset:{j*1024}{' nt' if 'ntwd' in OPT else ''} lds"))
            out.append(g)
        return out
    WDPF='wdpf' in OPT
    if NEW:
        def put(items,s0,per):
            for n,g in enumerate(items): DS.setdefault(s0+n//per,[]).append(g)
        SWS=15
        if 'w1wait' in OPT:
            assert WDPF and PN
            WW=os.environ.get('WW','3,4,5').split(',')
            late=[q for q in (3,4,5) if str(q) not in WW]
            put(sum((w1_dma(q) for q in late),[]),0,2)
            put(w1_dma(6),8,1); put(w1_dma(7),14,1)
            BAR={8:[('W1',q,5) for q in late],20:[('W1',6,5)]}
            SWS=19
            p("v_mov_b32 v20, v1")
            for j in range(1,4): p(f"v_add_u32 v{20+j}, {7168*j}, v1")
            put(wd_group(36,20),int(os.environ.get('RA0','2')),1)
        else:
            put(w1_dma(3),0,2); put(w1_dma(4)+w1_dma(5),3,2); put(dmas,9,2)
            BAR={8:[('W1',3,5)],14:[('W1',5,5)],20:[('W1',7,5)]}
        if WDPF:
            if 'w1wait' not in OPT: put(wd_group(36),16,1)
            put(sum((wd_group(g) for g in (12,16,20,24)),[]),20,2)
            put(sum((wd_group(g) for g in (28,32)),[]),28,2)
            BAR[24]=[('W1',7,5)] if 'w1wait' in OPT else []
    if 'x_nods' in OPT:
        DS={}; BAR={k:[] for k in BAR}
    if 'x_nods2' in OPT:
        DS={k:v for k,v in DS.items() if k<15};
    DPL=tuple(int(x) for x in os.environ.get('DPL','3,5,4').split(','))
    SKP={int(x):n for n,x in enumerate(os.environ.get('SKP','0,1,2,3').split(','))}
    if 'skew0' in OPT: BAR[int(os.environ.get('SK0','1'))]=[]
    def f1loop(NU,vm):
      H=NU//2
      def ldB(s):
          if 'x_nob' in OPT:
              vm.pos[('B',s)]=vm.pos[('B',0)]; return
          p(f"s_add_u32 s3, s30, {s*1024}")
          vm.issue(('B',s),f"buffer_load_dwordx4 v[{128+4*s}:{131+4*s}], v9, {SRD_WS}, s3 offen{HL1}")
      for s in range(32):
          nxt=s+1
          pre=[]; rd=[]; fill=[]; mem=[]
          SKEW='skew' in OPT
          if NEW:
              if s in BAR and not SKEW:
                  if BAR[s]: vm.wait(*BAR[s])
                  p("s_barrier")
          elif s==8:
              p("s_barrier")
          if B2:
              for j in (LA+2*s,LA+2*s+1):
                  if j<32: mem.append(('B',j))
          elif s+LA<32: mem.append(('B',s+LA))
          if not NEW and 8<=s<20: mem.append(('D',s-8))
          if 'warm' in OPT and 'wdatt' not in OPT and WD_STEP<=s<WD_STEP+3: mem.append(('W',s-WD_STEP))
          if 'pt' in OPT and s==PT_STEP: mem.append(('P',0))
          if 'ptout' in OPT and s==int(os.environ.get('PTO_STEP','29')): mem.append(('O',0))
          if nxt<32:
              qn,ssn=divmod(nxt,4)
              if nxt==24 and not NEW:
                  vm.wait(('W1',7,5))
                  p("s_barrier")
              if ssn==0: pre=setbase(qn)
              rd=rdA(nxt)[:2*NU]; fill=norm(nxt)
          if 'x_nofill' in OPT: fill=[]
          if 'x_nord' in OPT: rd=[]
          if 'x_nodma' in OPT and s!=19: mem=[m for m in mem if m[0]!='D']
          if 'x_nodma' in OPT and s==19: mem=[('B',s+LA)]; vm.pos[('W1',7,5)]=vm.n-1
          if 'oldwait' in OPT: p("s_waitcnt lgkmcnt(0)")
          for x in pre: p(x)
          if PN: vm.wait(('B',s))
          elif nxt<32: vm.wait(('B',nxt))
          b=AB[s%2]
          mf=[f"v_mfma_f32_32x32x16_bf16 v[{ACC[uu]}:{ACC[uu]+15}], a[{b+4*uu}:{b+4*uu+3}], v[{128+4*s}:{131+4*s}], {'0' if s==0 else f'v[{ACC[uu]}:{ACC[uu]+15}]'}" for uu in range(NU)]
          fi=0
          KS=[3,3,3,3,2,2] if 'pknorm' in OPT else ([3,4,3,3,4,3] if NU==6 else [5,5,5,5])
          for uu in range(NU):
              if 'oldwait' not in OPT:
                  if 'wait6' in OPT: p(f"s_waitcnt lgkmcnt({10 if nxt<32 else 2*(5-uu)})")
                  elif uu in (0,H): p(f"s_waitcnt lgkmcnt({2*H if (nxt<32 or uu==0) else 0})")
              p(mf[uu])
              for x in rd[2*uu:2*uu+2]: p(x)
              k=KS[uu]
              for x in fill[fi:fi+k]: p(x)
              fi+=k
              if NEW and SKEW and s in BAR and uu in SKP:
                  lab=f"SKW_{s}_{uu}"
                  p(f"s_cmp_lg_u32 s6, {SKP[uu]}"); p(f"s_cbranch_scc1 {lab}")
                  if BAR[s]: vm.wait(*BAR[s])
                  p("s_barrier")
                  p.label(lab)
              if uu==1 and mem and mem[0][0]=='B': ldB(mem[0][1])
              if NEW:
                  for n,g in enumerate(DS.get(s,[])):
                      if (DPL if NU==6 else (2,3,3))[n]==uu: emit_group(p,vm,g)
                  if WDPF and s==SWS and uu==NU-1:
                      p("v_mov_b32 v4, v1")
                      for j in range(1,4): p(f"v_add_u32 v{4+j}, {7168*j}, v1")
              if uu==4 and len(mem)>1 and mem[1][0]=='B': ldB(mem[1][1])
              if uu==3:
                  for m in mem:
                      if m[0]=='D':
                          emit_group(p,vm,dmas[m[1]])
                      if m[0]=='P':
                          p("s_mul_i32 s3, s70, 86"); p("s_add_u32 s3, s3, s66"); p("s_lshl_b32 s3, s3, 10"); p(f"s_add_u32 s3, s3, {L.AF}")
                          p("v_lshlrev_b32 v13, 7, v0"); p("s_lshl_b32 s7, s67, 3"); p("s_bfm_b64 exec, s7, 0")
                          vm.issue(('P',0),f"buffer_load_dword v15, v13, {SRD_WS}, s3 offen ; nowaitcheck")
                          p("s_mov_b64 exec, -1")
                      if m[0]=='O':
                          srd(p,16,P_OUT,2048*1024)
                          p("s_lshl_b32 s3, s62, 6")
                          vm.issue(('O',0),f"buffer_load_dword v15, v8, {SRD_A}, s3 offen ; nowaitcheck")
                      if m[0]=='W':
                          p(f"s_add_u32 s3, s79, {m[1]*4096}")
                          vm.issue(('W',m[1]),f"buffer_load_dword v15, v14, {SRD_O}, s3 offen ; nowaitcheck")
          for x in fill[fi:]: p(x)
    if 'four' in OPT:
        import copy
        vm4=copy.copy(vm); vm4.pos=dict(vm.pos)
        p("s_cmp_eq_u32 s67, 4"); p("s_cbranch_scc1 F1L_4")
        f1loop(6,vm)
        p("s_branch F1L_end")
        p.label("F1L_4")
        f1loop(4,vm4)
        p.label("F1L_end")
    else: f1loop(6,vm)
    stamp(p,'D mfma done',vt=12)
    if NEW and WDPF:
        WD=[[x[1] if x[0]=='s' else x[2] for x in g] for g0 in (0,4,8) for g in wd_group(g0)]
    else:
        p("v_lshrrev_b32 v1, 3, v0"); p("v_and_b32 v10, 7, v0")
        w128_voff(p,'v4')
        for j in range(1,4): p(f"v_add_u32 v{4+j}, {7168*j}, v4")
        p("s_lshr_b32 s3, s6, 1"); p("s_and_b32 s7, s6, 1")
        p(f"s_mul_i32 s30, s3, 81920"); p(f"s_mul_i32 s31, s7, 40960"); p("s_add_u32 s74, s30, s31")
        p(f"s_mul_i32 s75, s3, {43*16*1024}"); p(f"s_mul_i32 s31, s7, {320*1024}"); p("s_add_u32 s77, s31, s75")
        WD=dma128(['v4','v5','v6','v7'],SRD_O,'s74',0,'s77',40,sg='s71')
    p("s_barrier")
    c1=-2*1.4426950408889634*0.7978845608028654; c2=c1*0.044715
    p(f"s_mov_b32 s72, {hx(f2u(c2))}"); p("s_mov_b32 s73, s72")
    p(f"v_mov_b32 v28, {hx(f2u(c1))}"); p("v_mov_b32 v29, v28")
    p("v_mov_b32 v30, 1.0"); p("v_mov_b32 v31, 1.0")
    p("s_mul_i32 s30, s70, 86"); p("s_add_u32 s30, s30, s66"); p("s_lshl_b32 s30, s30, 10"); p(f"s_add_u32 s30, s30, {L.AF}")
    NDU=[8,8,8,8,4,4]
    if NEW and WDPF: NDU=[int(x) for x in os.environ.get('NDU','3,3,3,3,0,0').split(',')]
    k0=0
    for uu in range(6):
        a=ACC[uu]; T=16
        if uu==4:
            p("s_cmp_eq_u32 s67, 4"); p("s_cbranch_scc1 F1_four")
        pr=lambda x,j: f"v[{x+2*j}:{x+2*j+1}]"
        I=[]
        for j in range(4): I.append(f"v_pk_mul_f32 {pr(T,j)}, {pr(a,j)}, {pr(a,j)}")
        for j in range(4): I.append(f"v_pk_fma_f32 {pr(T,j)}, {pr(T,j)}, s[72:73], v[28:29]")
        for j in range(4): I.append(f"v_pk_mul_f32 {pr(T,j)}, {pr(T,j)}, {pr(a,j)}")
        for j in range(8): I.append(f"v_exp_f32 v{T+j}, v{T+j}")
        for j in range(4): I.append(f"v_pk_mul_f32 {pr(a,j)}, {pr(a,j)}, {pr(a+8,j)}")
        for j in range(4): I.append(f"v_pk_add_f32 {pr(T,j)}, {pr(T,j)}, v[30:31]")
        for j in range(8): I.append(f"v_rcp_f32 v{T+j}, v{T+j}")
        for j in range(4): I.append(f"v_pk_mul_f32 {pr(T,j)}, {pr(T,j)}, {pr(a,j)}")
        for j in range(4): I.append(f"v_cvt_pk_bf16_f32 v{24+j}, v{T+2*j}, v{T+2*j+1}")
        G=WD[k0:k0+NDU[uu]]; k0+=NDU[uu]
        gap=len(I)//max(len(G),1)
        for n,x in enumerate(I):
            p(x)
            if n%gap==gap-1 and G:
                for y in G.pop(0): p(y)
        assert not G
        hstore(p,f"buffer_store_dwordx4 v[24:27], v9, {SRD_WS}, s30 offen offset:{(uu%4)*1024}")
        if uu==3: p("s_add_u32 s30, s30, 4096")
    p("s_branch F1_done")
    p.label("F1_four")
    for g in WD[sum(NDU[:4]):]:
        for y in g: p(y)
    p.label("F1_done")
    stamp(p,'D epi done',vt=12)

def ffn2_phase(p):
    flag_off(p,F4)
    p("s_waitcnt vmcnt(0)")
    set_flag(p,'s3',12)
    stamp(p,'E flag set',vt=12)
    srd(p,16,P_WD,1376*1024)
    srd(p,24,P_OUT,2048*1024)
    lane_params(p)
    p("s_and_b32 s3, s6, 1"); p("s_lshl_b32 s3, s3, 2")
    tr_base128(p,'v10',"s3",0)
    p("s_and_b32 s3, s6, 1"); p("s_mul_i32 s3, s3, 81920")
    p("v_add_u32 v10, s3, v10")
    p("v_xor_b32 v11, 64, v10")
    p("v_add_u32 v14, 49152, v10"); p("v_add_u32 v15, 49152, v11")
    p("s_barrier")
    AB=[16+8*b for b in range(4)]
    ACC=[64,80]; NS=43
    def rd(i,ccs=(0,1)):
        b=AB[i%4]
        j=i if i<40 else i-40
        off=j*2048
        va=('v10','v11')
        if 24<=i<40: va=('v14','v15'); off-=49152
        for cc in ccs:
            p(f"ds_read_b64_tr_b16 v[{b+4*cc}:{b+4*cc+1}], {va[cc]} offset:{off}")
            p(f"ds_read_b64_tr_b16 v[{b+4*cc+2}:{b+4*cc+3}], {va[cc]} offset:{off+512}")
    for i in range(3): rd(i)
    p("s_and_b32 s7, s6, 1"); p("s_mul_i32 s3, s7, 3")
    p("s_lshl_b32 s76, s3, 13"); p("s_add_u32 s76, s76, s75"); p(f"s_add_u32 s76, s76, {40*16*1024}")
    p("s_lshl_b32 s77, s3, 10"); p("s_lshr_b32 s3, s6, 1"); p("s_mul_i32 s3, s3, 81920"); p("s_add_u32 s77, s77, s3")
    p("s_mul_i32 s31, s61, 86"); p("s_and_b32 s3, s6, 1"); p("s_mul_i32 s3, s3, 43"); p("s_add_u32 s31, s31, s3")
    p("s_lshl_b32 s31, s31, 10"); p(f"s_add_u32 s31, s31, {L.AF}")
    p("v_lshlrev_b32 v12, 2, v0")
    p("s_lshr_b32 s30, s4, 1"); p("s_lshl_b32 s30, s30, 8"); p(f"s_add_u32 s30, s30, {F4}")
    poll(p,'s4',SRD_WS,'s30','v12',1,13)
    stamp(p,'E S4 done',vt=100)
    if 'wbl2' in OPT:
        p("s_cmp_lg_u32 s6, 3"); p("s_cbranch_scc1 E_nowb"); p("s_cmp_lg_u32 s5, 0"); p("s_cbranch_scc1 E_nowb")
        p("buffer_wbl2 sc1")
        p.label("E_nowb")
    vm=VM(p)
    def ldB(i):
        if i%4==0 and i: p(f"s_add_u32 s31, s31, 4096")
        vm.issue(('B',i),f"buffer_load_dwordx4 a[{4*i}:{4*i+3}], v9, {SRD_WS}, s31 offen offset:{(i%4)*1024}{HL1}")
    LA=int(os.environ.get('LA2','8'))
    for i in range(LA): ldB(i)
    for i in range(NS):
        if i==4:
            p("s_barrier")
            for j in range(3):
                p(f"s_add_u32 m0, s77, {j*1024}"); p(f"s_add_u32 s3, s76, {j*8192}")
                vm.issue(('D',j),f"buffer_load_dwordx4 v4, {SRD_A}, s3 offen lds")
        if i==36:
            vm.wait(('D',2))
            p("s_barrier")
        rem=min(2,NS-1-i)
        vm.wait(('B',i),extra=f" lgkmcnt({rem*4})")
        b=AB[i%4]
        for cc in range(2):
            a=ACC[cc]
            p(f"v_mfma_f32_32x32x16_bf16 v[{a}:{a+15}], v[{b+4*cc}:{b+4*cc+3}], a[{4*i}:{4*i+3}], {'0' if i==0 else f'v[{a}:{a+15}]'}")
            if cc==0 and i+LA<NS: ldB(i+LA)
            if i+3<NS: rd(i+3,(cc,))
    stamp(p,'E mfma',vt=12)
    pair_reduce(p,ACC,8192)
    for j in range(8): p(f"v_accvgpr_read_b32 v{32+j}, a{248+j}")
    for j in range(8):
        p(f"v_lshlrev_b32 v{96+2*j}, 16, v{32+j}")
        p(f"v_and_b32 v{97+2*j}, 0xffff0000, v{32+j}")
    for j in range(8): p(f"v_pk_add_f32 v[{64+2*j}:{65+2*j}], v[{64+2*j}:{65+2*j}], v[{96+2*j}:{97+2*j}]")
    for j in range(8): p(f"v_cvt_pk_bf16_f32 v{32+j}, v{64+2*j}, v{65+2*j}")
    p("s_lshl_b32 s3, s62, 6")
    OF_=os.environ.get('OUTF','').replace('_',' ')
    if 'x_outfull' in OPT:
        p("v_lshrrev_b32 v8, 3, v0"); p("v_lshlrev_b32 v8, 10, v8"); p("v_and_b32 v13, 7, v0"); p("v_lshl_add_u32 v8, v13, 4, v8")
        p("s_lshl_b32 s3, s61, 15"); p("s_and_b32 s7, s6, 1"); p("s_lshl_b32 s7, s7, 14"); p("s_add_u32 s3, s3, s7"); p("s_lshl_b32 s7, s5, 7"); p("s_add_u32 s3, s3, s7")
        p(f"buffer_store_dwordx4 v[32:35], v8, {SRD_O}, s3 offen {OF_}")
        p("s_add_u32 s3, s3, 8192")
        p(f"buffer_store_dwordx4 v[36:39], v8, {SRD_O}, s3 offen {OF_}")
        return
    p(f"buffer_store_dwordx4 v[32:35], v8, {SRD_O}, s3 offen {OF_}")
    p(f"buffer_store_dwordx4 v[36:39], v8, {SRD_O}, s3 offen offset:32 {OF_}")

def build(fname):
    p=Prog()
    end="END_K"
    prologue(p,end)
    stamp(p,'start')
    phase_a(p)
    attention(p)
    wo_phase(p)
    ffn1_phase(p)
    ffn2_phase(p)
    stamp(p,'end',vt=12)
    p.label(end)
    p("s_endpgm")
    attention_slow(p)
    emit_outl(p)
    ins=p.finalize(name='k',check_waits=not os.environ.get('NOCHECK'))
    print(f"{len(ins)} lines, {p.nops} hazard nops",file=sys.stderr)
    ref=open('sequential_preLN__grouped_kv_mqa__geglu_ffn__prompt.s.ref').read()
    hdr=ref.split('; Override')[0]
    out=hdr+f"; @launch grid=(256,1,1) block=(256,1,1) lds={LDS_TOTAL}\n"
    out+='.amdgcn_target "amdgcn-amd-amdhsa--gfx950"\n.text\n'
    out+=f".globl {KNAME}\n.p2align 8\n.type {KNAME},@function\n{KNAME}:\n"+render(ins)
    out+=f""".section .rodata,"a"
.p2align 6
.amdhsa_kernel {KNAME}
  .amdhsa_next_free_vgpr 512
  .amdhsa_next_free_sgpr 96
  .amdhsa_accum_offset 256
  .amdhsa_group_segment_fixed_size 0
  .amdhsa_kernarg_size 96
  .amdhsa_user_sgpr_count 2
  .amdhsa_user_sgpr_kernarg_segment_ptr 1
  .amdhsa_system_sgpr_workgroup_id_x 1
.end_amdhsa_kernel
"""
    open(fname,'w').write(out)

if __name__=='__main__':
    out=sys.argv[1]
    if len(sys.argv)>2: PROFILE=True
    build(out)
    open(out+'.stamps','w').write('\n'.join(STAMPS))
    if DSTAMPS: print(DSTAMPS)
```

```python
import re, sys

TRANS = ("v_exp_f32","v_log_f32","v_rcp_f32","v_rsq_f32","v_sqrt_f32","v_sin_f32","v_cos_f32","v_rcp_iflag_f32",
         "v_exp_f16","v_rcp_f16","v_rsq_f16","v_sqrt_f16","v_log_f16")

def regs_of(tok):
    tok = tok.strip()
    tok = tok.lstrip('-')
    if tok.startswith('abs(') or tok.startswith('|'):
        tok = tok.replace('abs(','').replace(')','').replace('|','')
    m = re.fullmatch(r'([vas])\[(\d+):(\d+)\]', tok)
    if m:
        return [(m.group(1), i) for i in range(int(m.group(2)), int(m.group(3))+1)]
    m = re.fullmatch(r'([vas])(\d+)', tok)
    if m:
        return [(m.group(1), int(m.group(2)))]
    if tok == 'vcc': return [('s','vcc_lo'),('s','vcc_hi')]
    if tok in ('vcc_lo','vcc_hi'): return [('s',tok)]
    if tok == 'exec': return [('s','exec_lo'),('s','exec_hi')]
    if tok in ('exec_lo','exec_hi'): return [('s',tok)]
    if tok == 'm0': return [('s','m0')]
    if tok == 'scc': return [('s','scc')]
    return []

class Ins:
    __slots__=('text','op','ops','mods','dst','src','kind','line','label','target','srcA','srcB','srcC','passes','comment','nop')
    def __init__(self, text):
        self.text=text; self.label=None; self.target=None
        self.dst=[]; self.src=[]; self.kind='other'; self.srcA=[]; self.srcB=[]; self.srcC=[]; self.passes=0; self.nop=0
        t=text.split(';')[0].strip()
        if t.endswith(':'):
            self.label=t[:-1]; self.kind='label'; self.op=''; self.ops=[]; self.mods=''; return
        if t.startswith('.') or t=='':
            self.kind='directive'; self.op=t; self.ops=[]; self.mods=''; return
        parts=t.split(None,1)
        self.op=parts[0]
        rest=parts[1] if len(parts)>1 else ''
        ops=[]; cur=''; depth=0
        for ch in rest:
            if ch in '[(': depth+=1
            if ch in '])': depth-=1
            if ch==',' and depth==0:
                ops.append(cur.strip()); cur=''
            else: cur+=ch
        if cur.strip(): ops.append(cur.strip())
        mods=''
        if ops:
            last=ops[-1].split()
            ops[-1]=last[0] if last else ''
            mods=' '.join(last[1:])
        self.ops=ops; self.mods=mods
        self.classify()
    def classify(s):
        op=s.op; ops=s.ops; R=regs_of
        base=re.sub(r'_(e32|e64|dpp|sdwa)$','',op)
        if op.startswith('v_smfmac'):
            s.kind='mfma'
            s.dst=R(ops[0]); s.srcA=R(ops[1]); s.srcB=R(ops[2])+R(ops[3]); s.srcC=R(ops[0])
            s.src=s.srcA+s.srcB+s.srcC
            s.passes = 8 if '32x32' in op else 4
        elif op.startswith('v_mfma'):
            s.kind='mfma'
            s.dst=R(ops[0]); s.srcA=R(ops[1]); s.srcB=R(ops[2]); s.srcC=R(ops[3])
            s.src=s.srcA+s.srcB+s.srcC
            s.passes = 8 if '32x32' in op else 4
        elif op.startswith('v_'):
            s.kind='valu'
            if base in TRANS: s.kind='trans'
            if base.startswith('v_cmp'):
                s.dst=R(ops[0]); s.src=sum((R(o) for o in ops[1:]),[])
                if base.startswith('v_cmpx'): s.dst+=R('exec')
            elif base in ('v_add_co_u32','v_sub_co_u32','v_subrev_co_u32'):
                s.dst=R(ops[0])+R(ops[1]); s.src=sum((R(o) for o in ops[2:]),[])
            elif base in ('v_addc_co_u32','v_subb_co_u32'):
                s.dst=R(ops[0])+R(ops[1]); s.src=sum((R(o) for o in ops[2:]),[])
            elif base.startswith('v_permlane') and 'swap' in base:
                s.dst=R(ops[0])+R(ops[1]); s.src=R(ops[0])+R(ops[1]); s.kind='permlane'
            elif base in ('v_readfirstlane_b32','v_readlane_b32'):
                s.dst=R(ops[0]); s.src=sum((R(o) for o in ops[1:]),[]); s.kind='readlane'
            elif base=='v_writelane_b32':
                s.dst=R(ops[0]); s.src=sum((R(o) for o in ops[1:]),[])+R(ops[0])
            elif base in ('v_fmac_f32','v_dot2c_f32_bf16','v_mac_f32','v_pk_fmac_f16','v_fmac_f16'):
                s.dst=R(ops[0]); s.src=sum((R(o) for o in ops),[])
            else:
                s.dst=R(ops[0]); s.src=sum((R(o) for o in ops[1:]),[])
                if base=='v_cndmask_b32' and len(ops)==3: s.src+=R('vcc')
            if op.endswith('_dpp') or 'quad_perm' in s.mods or 'row_' in s.mods or 'wave_' in s.mods:
                s.kind='dpp'
                s.src+=s.dst
        elif op.startswith('ds_'):
            s.kind='ds'
            if op.startswith('ds_read') or op.startswith('ds_bpermute') or op.startswith('ds_permute') or op.startswith('ds_swizzle') or '_rtn' in op:
                s.dst=R(ops[0]); s.src=sum((R(o) for o in ops[1:]),[])
            else:
                s.src=sum((R(o) for o in ops),[])
        elif op.startswith('buffer_') or op.startswith('global_'):
            s.kind='vmem'
            islds = ('lds' in s.mods.split()) or ('_lds_' in op)
            if op in ('buffer_inv','buffer_wbl2'):
                s.kind='vmem'; return
            if islds:
                s.src=sum((R(o) for o in ops),[])+R('m0'); s.kind='dma'
            elif 'load' in op:
                s.dst=R(ops[0]); s.src=sum((R(o) for o in ops[1:]),[])
            elif 'store' in op:
                s.src=sum((R(o) for o in ops),[]); s.kind='vstore'
            elif 'atomic' in op:
                ret = 'sc0' in s.mods.split()
                if op.startswith('global_') and ret:
                    s.dst=R(ops[0]); s.src=sum((R(o) for o in ops[1:]),[])
                elif op.startswith('buffer_') and ret:
                    s.dst=R(ops[0]); s.src=sum((R(o) for o in ops),[])
                else:
                    s.src=sum((R(o) for o in ops),[])
        elif op.startswith('s_'):
            s.kind='salu'
            if op=='s_nop': s.kind='nop'; s.nop=int(ops[0],0)+1
            elif op=='s_waitcnt': s.kind='waitcnt'
            elif op=='s_barrier': s.kind='barrier'
            elif op=='s_endpgm': s.kind='end'
            elif op=='s_branch': s.kind='branch'; s.target=ops[0]
            elif op.startswith('s_cbranch'):
                s.kind='cbranch'; s.target=ops[0]
                if 'scc' in op: s.src=R('scc')
                elif 'exec' in op: s.src=R('exec')
                else: s.src=R('vcc')
            elif op.startswith('s_load') or op in ('s_memtime','s_memrealtime'):
                s.kind='smem'; s.dst=R(ops[0]); s.src=sum((R(o) for o in ops[1:]),[])
            elif op.startswith('s_cmp') or op.startswith('s_bitcmp'):
                s.dst=R('scc'); s.src=sum((R(o) for o in ops),[])
            elif op in ('s_sleep','s_setprio','s_setreg_b32','s_setreg_imm32_b32','s_sendmsg','s_inst_prefetch'):
                s.src=sum((R(o) for o in ops),[])
            elif 'saveexec' in op:
                s.dst=R(ops[0])+R('exec')+R('scc'); s.src=R(ops[1])+R('exec')
            else:
                s.dst=R(ops[0]); s.src=sum((R(o) for o in ops[1:]),[])
                if op.startswith('s_cselect') or op.startswith('s_addc') or op.startswith('s_subb') or op.startswith('s_cmov'): s.src+=R('scc')
                if op in ('s_addk_i32','s_mulk_i32','s_cmov_b32','s_cmov_b64'): s.src+=s.dst
                if not (op.startswith('s_mov') or op.startswith('s_getpc') or op.startswith('s_getreg') or op.startswith('s_cselect') or op.startswith('s_mul') or op.startswith('s_cmov')):
                    s.dst=s.dst+R('scc')
        else:
            raise ValueError("unknown instr "+s.text)

VALUK=('valu','trans','dpp','permlane','readlane')
import os
EXP2=bool(os.environ.get('EXP2'))
def isv(r): return r[0] in ('v','a')
def iss(r): return r[0]=='s'

def need(p, c):
    n=0
    pd=set(p.dst); cs=set(c.src); cd=set(c.dst)
    if p.kind in VALUK:
        pv={r for r in pd if isv(r)}; ps={r for r in pd if iss(r)}
        if c.kind=='mfma' and pv & cs: n=max(n,2)
        if p.kind=='trans' and (pv & (cs)) : n=max(n,1)
        if c.kind=='permlane' and pv & cs: n=max(n,2)
        if c.kind=='dpp' and pv & cs: n=max(n,2)
        if c.kind=='readlane' and pv & cs: n=max(n,1)
        if ps:
            if c.kind in VALUK+('mfma',) and ps & cs: n=max(n,2)
            if c.kind=='readlane' and len(c.ops)>2 and ps & set(regs_of(c.ops[2])): n=max(n,4)
            if c.kind in ('vmem','vstore','dma') and ps & cs: n=max(n,5)
            if c.kind in ('salu','cbranch','smem') and ps & cs: n=max(n,1)
            if ('s','exec_lo') in ps and c.kind=='mfma': n=max(n,4)
            if ('s','exec_lo') in ps and c.kind in ('dpp',): n=max(n,5)
            if ('s','exec_lo') in ps and c.kind in ('permlane','readlane'): n=max(n,4)
    if p.kind in VALUK and p.op.startswith('v_dot'):
        pv={r for r in pd if isv(r)}
        if pv & (cs|cd):
            same = (re.sub(r'_(e32|e64)$','',c.op)==re.sub(r'_(e32|e64)$','',p.op))
            if not same: n=max(n,3)
            else:
                ab=set()
                if 'dot2c' in c.op: ab=set(sum((regs_of(o) for o in c.ops[1:]),[]))
                else: ab=set(sum((regs_of(o) for o in c.ops[1:3]),[]))
                if pv & ab: n=max(n,3)
    if p.kind=='mfma':
        P=p.passes
        big=12 if P==8 else 8
        ov=10 if P==8 else 6
        war=7 if P==8 else 3
        if c.kind=='mfma':
            if pd & (set(c.srcA)|set(c.srcB)): n=max(n,big)
            if pd & set(c.srcC):
                if not (c.srcC==p.dst and c.passes==P): n=max(n,ov)
            if pd & cd and not (c.dst==p.dst and c.passes==P): n=max(n,ov)
        elif c.kind in VALUK:
            if pd & (cs|cd): n=max(n,big)
            if set(p.srcC) & cd: n=max(n,war)
        elif c.kind in ('ds','vmem','vstore','dma'):
            if pd & (cs|cd): n=max(n,big)
            if set(p.srcC) & cd: n=max(n,war)
    if p.kind=='salu' and ('s','m0') in pd and c.kind=='dma': n=max(n,1)
    if p.kind=='vstore' and ('x4' in p.op or 'x3' in p.op):
        data=set(regs_of(p.ops[0])) if p.op.startswith('buffer_') else set(regs_of(p.ops[1]))
        if data & cd:
            n=max(n, 2 if c.kind in VALUK+('mfma',) else 1)
    if p.kind=='ds' and ('b128' in p.op or 'b96' in p.op) and p.op.startswith('ds_write'):
        pass
    return n

class Prog:
    def __init__(self): self.lines=[]
    def __call__(self, text):
        for l in text.split('\n'):
            if l.strip(): self.lines.append(l.strip())
        return self
    def label(self, n): self.lines.append(n+':')
    def finalize(self, check_waits=True, name=''):
        ins=[Ins(l) for l in self.lines]
        MAXD=13
        total_nops=0
        changed=True; it=0
        def real(x): return x.kind not in ('label','directive')
        while changed:
            changed=False; it+=1
            def mkpreds():
                pr={}
                for k,x in enumerate(ins):
                    if x.target is not None: pr.setdefault(x.target,[]).append(k)
                return pr
            preds=mkpreds()
            i=0
            while i<len(ins):
                c=ins[i]
                if real(c) and c.kind not in ('nop','waitcnt','barrier','branch','end'):
                    worst=0
                    stack=[(i-1,0)]
                    seen=set()
                    while stack:
                        j,d=stack.pop()
                        while j>=0 and d<MAXD:
                            if (j,d) in seen: break
                            seen.add((j,d))
                            p=ins[j]
                            if p.kind=='label':
                                for b_ in preds.get(p.label,[]): stack.append((b_,d))
                                k=j-1
                                while k>=0 and not real(ins[k]) : k-=1
                                if k>=0 and ins[k].kind in ('branch','end'): break
                                j-=1; continue
                            if p.kind=='directive': j-=1; continue
                            nn=need(p,c)
                            if nn>d: worst=max(worst,nn-d)
                            d+= p.nop if p.kind=='nop' else (2 if (EXP2 and p.kind=='trans') else 1)
                            j-=1
                    if worst>0:
                        ins.insert(i,Ins(f"s_nop {worst-1}   ; hazard"))
                        total_nops+=1
                        changed=True
                        preds=mkpreds()
                        i+=1
                i+=1
            if it>8: raise RuntimeError("hazard fix did not converge")
        if check_waits: check_waitcnt(ins, name)
        self.nops=total_nops
        return ins

def parse_wait(x):
    vm=None; lg=None
    t=x.text.split(';')[0]
    m=re.search(r'vmcnt\((\d+)\)',t); vm=int(m.group(1)) if m else None
    m=re.search(r'lgkmcnt\((\d+)\)',t); lg=int(m.group(1)) if m else None
    return vm,lg

def check_waitcnt(ins, name=''):
    for s5 in (0,1,2,3):
        for s6 in range(4): check_waitcnt1(ins,name,{'s5':s5,'s6':s6})

def scc_after(x,env,scc):
    t=x.text.split(';')[0].strip()
    m=re.match(r's_cmp_(eq|lg|lt|le|gt|ge)_u32 (s\d+), (\d+)$',t)
    if m and m.group(2) in env:
        a=env[m.group(2)]; b=int(m.group(3))
        return int({'eq':a==b,'lg':a!=b,'lt':a<b,'le':a<=b,'gt':a>b,'ge':a>=b}[m.group(1)])
    if t.startswith('s_') and not t.startswith(('s_cbranch','s_waitcnt','s_barrier','s_nop','s_mov','s_branch','s_sleep','s_cselect','s_mul_i32')): return None
    return scc

def check_waitcnt1(ins, name, env):
    labels={x.label:i for i,x in enumerate(ins) if x.kind=='label'}
    errors=set()
    visits={}
    scc=None
    stack=[(0,(),())]
    steps=0
    while stack:
        i,vm,lg=stack.pop()
        vm=list(vm); lg=list(lg); scc=None
        while i<len(ins):
            steps+=1
            if steps>5_000_000:
                print("waitcheck: too many steps",file=sys.stderr); return
            x=ins[i]
            if x.kind=='label':
                key=(i,tuple(vm),tuple(lg))
                if key in visits: break
                visits[key]=1
                cnt=visits.get(('n',i),0)
                if cnt>=6: break
                visits[('n',i)]=cnt+1
                i+=1; continue
            if x.kind=='directive': i+=1; continue
            if x.kind=='waitcnt':
                a,b=parse_wait(x)
                if a is not None:
                    while len(vm)>a: vm.pop(0)
                if b is not None:
                    if any(k=='smem' for k,_ in lg) and b>0:
                        pass
                    else:
                        while len(lg)>b: lg.pop(0)
                i+=1; continue
            touched=set(x.src)|set(x.dst)
            if 'nowaitcheck' in x.text: touched=set()
            for d in vm:
                if touched & set(d): errors.add((i,'vm',x.text))
            for k,d in lg:
                if touched & set(d): errors.add((i,'lgkm',x.text))
            if x.kind in ('vmem','vstore','dma'):
                vm.append(tuple(x.dst))
                if len(vm)>63: vm.pop(0)
            elif x.kind=='ds':
                lg.append(('ds',tuple(x.dst)))
                if len(lg)>15 and not any(k=='smem' for k,_ in lg): lg.pop(0)
            elif x.kind=='smem':
                lg.append(('smem',tuple(x.dst)))
            if x.kind=='end': break
            if x.kind=='branch':
                i=labels[x.target]; continue
            if x.kind=='cbranch' and x.target in labels:
                op=x.text.split()[0]
                if scc is not None and op in ('s_cbranch_scc0','s_cbranch_scc1'):
                    if scc==int(op[-1]): i=labels[x.target]; continue
                else: stack.append((labels[x.target],tuple(vm),tuple(lg)))
            scc=scc_after(x,env,scc)
            i+=1
    if errors:
        for e in sorted(errors)[:8]:
            print(f"WAITCNT ERROR [{name}] ins#{e[0]} {e[1]}: {e[2]}",file=sys.stderr)
        raise RuntimeError("waitcnt check failed")

def render(ins):
    out=[]
    for x in ins:
        if x.kind=='label': out.append(x.text)
        else: out.append('    '+x.text)
    return '\n'.join(out)+'\n'
```

```python
import sys, os, struct
from asm import Prog, render
import layout as L

OPT=set(x for x in os.environ.get('OPT','').split(',') if x)
KNAME='sequential_preLN__grouped_kv_mqa__geglu_ffn__prompt_kernel'
QSCALE=1.4426950408889634/4.0
def f2u(x): return struct.unpack('<I',struct.pack('<f',x))[0]
def hx(x): return '0x%08x'%(x & 0xffffffff)

SRD_WS='s[8:11]'; SRD_X='s[12:15]'; SRD_A='s[16:19]'; SRD_B='s[20:23]'; SRD_O='s[24:27]'; SRD_D='s[56:59]'
P_X,P_WQ,P_WK,P_WV,P_WO,P_WG,P_WU,P_WD,P_OUT,P_WS,P_DBG=32,34,36,38,40,44,46,48,50,52,54
SPIN=1<<17

XH0=0; XH1=33792; WQ=67584; WK=XH1; WV=XH1+16384+128
WO_L=0; OP=73728; QL=147456; MX=155648; MF=MX+4096; QM=161792
SLOT=24576; RED=147456
LDS_TOTAL=163840
F2=L.FLG; F3=L.FLG+4096; F4=L.FLG+8192; FX=L.FLG+12288

def srd(p, d, ptr, size):
    p(f"s_mov_b32 s{d}, s{ptr}")
    p(f"s_mov_b32 s{d+1}, s{ptr+1}")
    p(f"s_mov_b32 s{d+2}, {hx(size)}")
    p(f"s_mov_b32 s{d+3}, 0x20000")
def csel(p,d,a,b):
    p(f"s_mov_b32 {d}, {b}"); p(f"s_cmov_b32 {d}, {a}")

PROFILE=False
HL1=' nt' if 'ldnt' in OPT else ('' if 'ldpl' in OPT else (' sc0' if 'ldsc0' in OPT else ' sc1'))
HS1='' if 'l2h' in OPT else ' sc1'
PF_N=int(os.environ.get('PF_N','3'))
PT_STEP=int(os.environ.get('PT_STEP','24'))
FLG_CLR=208
WD_STEP=int(os.environ.get('WD_STEP','24'))
B2='b2' in OPT
PF2_T=int(os.environ.get('PF2_T','8'))
GO_STEP=int(os.environ.get('GO_STEP','7'))
STAMPS=[]
DSTAMPS=[]
def dstamp(p,name,vt):
    slot=len(DSTAMPS)
    if slot>=16: return
    DSTAMPS.append(name)
    lab=f"DST_{slot}_{len(p.lines)}"
    p("s_lshl_b32 s90, s2, 2"); p("s_or_b32 s90, s90, s6")
    p(f"s_cmp_lg_u32 s90, {int(os.environ.get('DWG','40'))*4}"); p(f"s_cbranch_scc1 {lab}")
    p("s_memrealtime s[90:91]")
    p("s_waitcnt lgkmcnt(0) ; nowaitcheck")
    p(f"v_mov_b32 v{vt}, s90"); p(f"v_mov_b32 v{vt+1}, {slot*4}")
    p("s_mov_b64 s[94:95], exec"); p("s_mov_b64 exec, 1")
    p(f"buffer_store_dword v{vt}, v{vt+1}, {SRD_D}, 0 offen")
    p("s_mov_b64 exec, s[94:95]")
    p.label(lab)
DSEL=os.environ.get('DSEL','').split(',')
def stamp(p, name, vt=250, dyn=None, n=1):
    if name in DSEL: dstamp(p,name,vt)
    if not PROFILE: return
    slot=len(STAMPS)
    for i in range(n): STAMPS.append(name+(f"[{i}]" if n>1 else ""))
    lab=f"ST_{slot}_{len(p.lines)}"
    p("s_cmp_lg_u32 s6, 0"); p(f"s_cbranch_scc1 {lab}")
    p("s_memrealtime s[90:91]")
    p("s_memtime s[88:89]")
    p("s_lshl_b32 s92, s2, 3"); p(f"s_add_u32 s92, s92, {L.PROF+slot*2048}")
    if dyn: p(f"s_lshl_b32 s93, {dyn}, 11"); p("s_add_u32 s92, s92, s93")
    p("s_waitcnt lgkmcnt(0) ; nowaitcheck")
    p(f"v_mov_b32 v{vt}, s90"); p(f"v_mov_b32 v{vt+1}, s88"); p(f"v_mov_b32 v{vt+2}, 0")
    p("s_mov_b64 s[94:95], exec"); p("s_mov_b64 exec, 1")
    p(f"buffer_store_dwordx2 v[{vt}:{vt+1}], v{vt+2}, {SRD_WS}, s92 offen")
    p("s_mov_b64 exec, s[94:95]")
    p.label(lab)

class VM:
    def __init__(s,p): s.p=p; s.n=0; s.pos={}
    def issue(s,key,txt):
        s.p(txt); s.pos[key]=s.n; s.n+=1
    def wait(s,*keys,extra=""):
        need=max(s.pos[k] for k in keys)
        c=s.n-1-need
        if c<=63: s.p(f"s_waitcnt vmcnt({c}){extra}")
        elif extra: s.p(f"s_waitcnt{extra}")

def poll(p, name, srd_, soff, vaddr, expect, vt, sleep=0):
    if PROFILE:
        p("s_waitcnt vmcnt(0)")
        stamp(p,name+' own dma',vt={'s1':200,'s4':100}.get(name,14))
    p(f"s_mov_b32 s29, {SPIN}")
    p.label(f"POLL_{name}")
    p(f"buffer_load_dword v{vt}, {vaddr}, {srd_}, {soff} offen sc1")
    p("s_waitcnt vmcnt(0)")
    p(f"v_cmp_ne_u32 vcc, {expect}, v{vt}")
    p("s_cmp_eq_u64 vcc, 0")
    p(f"s_cbranch_scc1 POLLD_{name}")
    if sleep: p(f"s_sleep {sleep}")
    p("s_sub_u32 s29, s29, 1")
    p("s_cmp_lg_u32 s29, 0")
    p(f"s_cbranch_scc1 POLL_{name}")
    p.label(f"POLLD_{name}")

OUTL=[]
def hstore(p, lines):
    if isinstance(lines,str): lines=[lines]
    if 'xcc' not in OPT:
        for x in lines: p(x+HS1)
        return
    k=len(OUTL)
    p("s_cmp_lg_u32 s43, 0"); p(f"s_cbranch_scc1 HST_{k}")
    for x in lines: p(x)
    p.label(f"HSB_{k}")
    OUTL.append((k,[x+' sc1' for x in lines]))
def emit_outl(p):
    for k,lines in OUTL:
        p.label(f"HST_{k}")
        for x in lines: p(x)
        p(f"s_branch HSB_{k}")

def set_flag(p, soff, vt):
    p(f"v_mov_b32 v{vt}, 1"); p(f"v_mov_b32 v{vt+1}, 0")
    p("s_mov_b64 exec, 1")
    hstore(p,f"buffer_store_dword v{vt}, v{vt+1}, {SRD_WS}, {soff} offen")
    p("s_mov_b64 exec, -1")

def prologue(p, end):
    p(f"s_cmp_ge_u32 s2, {0 if 'empty' in OPT else 256}")
    p(f"s_cbranch_scc1 {end}")
    p("s_load_dwordx4 s[32:35], s[0:1], 0")
    p("s_load_dwordx4 s[36:39], s[0:1], 16")
    p("s_load_dwordx2 s[40:41], s[0:1], 32")
    p("s_load_dwordx4 s[44:47], s[0:1], 48")
    p("s_load_dwordx4 s[48:51], s[0:1], 64")
    p("s_load_dwordx2 s[52:53], s[0:1], 88")
    p("s_load_dwordx2 s[54:55], s[0:1], 80")
    p("v_lshrrev_b32 v1, 6, v0")
    p("v_and_b32 v0, 63, v0")
    p("v_readfirstlane_b32 s6, v1")
    p("s_and_b32 s3, s2, 7")
    p("s_lshr_b32 s7, s2, 3")
    p("s_lshr_b32 s4, s7, 3")
    p("s_lshl_b32 s3, s3, 2")
    p("s_add_u32 s4, s4, s3")
    p("s_and_b32 s5, s7, 7")
    p("v_lshlrev_b32 v9, 4, v0")
    if 'codepf' in OPT:
        p("s_getpc_b64 s[60:61]")
        p.label("PF_HERE")
        p("s_lshl_b32 s3, s7, 2"); p("s_add_u32 s3, s3, s6"); p("s_lshl_b32 s3, s3, 9")
        p("v_and_b32 v231, 7, v0"); p("v_lshlrev_b32 v231, 6, v231")
        p("v_add_u32 v231, s3, v231")
        p(f"v_min_u32 v230, END_K-PF_HERE-4, v231")
        p("s_mov_b64 exec, 0xff")
        p(f"global_load_dword v232, v230, s[60:61] ; nowaitcheck")
        p("s_mov_b64 exec, -1")
    p("s_waitcnt lgkmcnt(0)")
    srd(p,8,P_WS,L.WS_USED)
    srd(p,56,P_DBG,256)

def ln_tile(p, X, vaddr, off, extra=None, write=True):
    U=176
    S,S2,Q,Q2=80,82,84,86
    I=[]
    a=I.append
    pr=lambda r: f"v[{r}:{r+1}]"
    for i in range(32):
        a(f"v_lshlrev_b32 v{U+2*i}, 16, v{X+i}")
        a(f"v_and_b32 v{U+2*i+1}, 0xffff0000, v{X+i}")
        if i>=1:
            k=i-1; u=U+2*k; sa=(S,S2)[k%2]; qa=(Q,Q2)[k%2]
            if k<2: a(f"v_pk_mul_f32 {pr(qa)}, {pr(u)}, {pr(u)}")
            else: a(f"v_pk_fma_f32 {pr(qa)}, {pr(u)}, {pr(u)}, {pr(qa)}")
            if k==2 or k==3: a(f"v_pk_add_f32 {pr(sa)}, {pr(U+2*(k-2))}, {pr(u)}")
            elif k>3: a(f"v_pk_add_f32 {pr(sa)}, {pr(sa)}, {pr(u)}")
    u=U+62
    a(f"v_pk_fma_f32 {pr(Q2)}, {pr(u)}, {pr(u)}, {pr(Q2)}")
    a(f"v_pk_add_f32 {pr(S2)}, {pr(S2)}, {pr(u)}")
    a(f"v_pk_add_f32 {pr(S)}, {pr(S)}, {pr(S2)}")
    a(f"v_pk_add_f32 {pr(Q)}, {pr(Q)}, {pr(Q2)}")
    S0,Q0='v80','v82'
    a(f"v_add_f32 v80, v80, v81")
    a(f"v_add_f32 v82, v84, v85")
    for d in ("quad_perm:[1,0,3,2]","quad_perm:[2,3,0,1]","row_half_mirror"):
        a(f"v_add_f32_dpp {S0}, {S0}, {S0} {d} row_mask:0xf bank_mask:0xf")
        a(f"v_add_f32_dpp {Q0}, {Q0}, {Q0} {d} row_mask:0xf bank_mask:0xf")
    a(f"v_mul_f32 {S0}, {hx(f2u(1/512))}, {S0}")
    a(f"v_mul_f32 {Q0}, {hx(f2u(1/512))}, {Q0}")
    a(f"v_fma_f32 {Q0}, -{S0}, {S0}, {Q0}")
    a(f"v_max_f32 {Q0}, 0, {Q0}")
    a(f"v_add_f32 {Q0}, {hx(f2u(1e-5))}, {Q0}")
    a(f"v_rsq_f32 v92, {Q0}")
    a(f"v_sub_f32 v94, 0, {S0}")
    a(f"v_mov_b32 v93, v92")
    a(f"v_mul_f32 v94, v94, v92")
    a(f"v_mov_b32 v95, v94")
    for cb in range(8):
        for i in range(4):
            u=U+2*(4*cb+i)
            a(f"v_pk_fma_f32 {pr(u)}, {pr(u)}, v[92:93], v[94:95]")
        for i in range(4):
            u=U+2*(4*cb+i)
            a(f"v_cvt_pk_bf16_f32 v{X+4*cb+i}, v{u}, v{u+1}")
        if write: a(f"ds_write_b128 {vaddr}, v[{X+4*cb}:{X+4*cb+3}] offset:{off+cb*4224}")
    extra=list(extra or [])
    gap=max(1,(len(I)-8)//max(1,len(extra))) if extra else 0
    for n,x in enumerate(I):
        p(x)
        if extra and n%gap==gap-1:
            for y in extra.pop(0): p(y)
    for g in extra:
        for y in g: p(y)
def ln_write(p, X, vaddr, off):
    for cb in range(8): p(f"ds_write_b128 {vaddr}, v[{X+4*cb}:{X+4*cb+3}] offset:{off+cb*4224}")

def dma128(vregs, srd_, sbase_lds, lds_off, sbase_g, n, sg='s31', nt=''):
    out=[]
    for i in range(n):
        j=i%4; g=[]
        if j==0:
            g.append(f"s_add_u32 m0, {sbase_lds}, {lds_off+i*1024}")
            g.append(f"s_add_u32 {sg}, {sbase_g}, {i*8192}")
        g.append(f"buffer_load_dwordx4 {vregs[j]}, {srd_}, {sg} offen offset:{j*1024}{nt} lds")
        out.append(g)
    return out

def gemm_lds(p, nsteps, readA, readB, mfma, rps, depth=3, nbuf=4, fill=None, hook=None):
    fill=list(fill or []); hook=hook or {}
    for s in range(min(depth,nsteps)):
        readA(s,s%nbuf); readB(s,s%nbuf)
    for s in range(nsteps):
        if s+depth<nsteps:
            readA(s+depth,(s+depth)%nbuf); readB(s+depth,(s+depth)%nbuf)
        rem=min(depth,nsteps-1-s)
        p(f"s_waitcnt lgkmcnt({rem*rps})")
        mfma(s,s%nbuf)
        if s in hook: hook[s]()
        for _ in range(2):
            if fill: p(fill.pop(0))
    for x in fill: p(x)

def tr_base128(p, dst, cbit_sgpr, base, t=97):
    a=f"v{t}"; b=f"v{t+1}"
    p(f"v_and_b32 {a}, 1, v13")
    p(f"v_lshl_add_u32 {a}, v15, 1, {a}")
    if cbit_sgpr: p(f"v_add_u32 {a}, {cbit_sgpr}, {a}")
    p(f"v_lshrrev_b32 {b}, 1, v12")
    p(f"v_lshlrev_b32 {b}, 2, {b}")
    p(f"v_xor_b32 {a}, {a}, {b}")
    p(f"v_lshlrev_b32 {a}, 4, {a}")
    p(f"v_lshrrev_b32 {b}, 1, v13")
    p(f"v_lshl_add_u32 {a}, {b}, 3, {a}")
    p(f"v_lshl_add_u32 {a}, v14, 7, {a}")
    p(f"v_add_u32 {dst}, {base}, {a}")

def lane_params(p):
    p("v_lshrrev_b32 v11, 4, v0")
    p("v_bfe_u32 v12, v0, 2, 2")
    p("v_and_b32 v13, 3, v0")
    p("v_lshrrev_b32 v14, 1, v11")
    p("v_lshl_add_u32 v14, v14, 3, v12")
    p("v_and_b32 v15, 1, v11")
    p("v_and_b32 v96, 1, v13")
    p("v_lshlrev_b32 v96, 4, v96")
    p("v_lshrrev_b32 v97, 1, v13")
    p("v_lshl_add_u32 v96, v97, 3, v96")

def w128_voff(p, dst):
    p("v_lshrrev_b32 v11, 4, v0")
    p("v_and_b32 v11, 1, v11")
    p("v_lshlrev_b32 v11, 2, v11")
    p("v_xor_b32 v11, v11, v10")
    p("v_lshlrev_b32 v11, 4, v11")
    p(f"v_lshl_add_u32 {dst}, v1, 10, v11")
    if 'x_wdx' in OPT and dst=='v1': p("s_xor_b32 s3, s5, 1"); p("s_lshl_b32 s3, s3, 7")
    else: p("s_lshl_b32 s3, s5, 7")
    p(f"v_add_u32 {dst}, s3, {dst}")

def hs_sentinel(p,w):
    if 'hsflag' not in OPT: return
    p("s_lshl_b32 s3, s60, 12"); p(f"s_add_u32 s3, s3, {L.HS+w*2048}")
    for i in range(4): p(f"v_mov_b32 v{120+i}, -1")
    p(f"buffer_store_dwordx4 v[120:123], v9, {SRD_WS}, s3 offen sc1")
    p(f"buffer_store_dwordx4 v[120:123], v9, {SRD_WS}, s3 offen offset:1024 sc1")

VA=64
def phase_a(p):
    p("s_mov_b32 s28, 0x3f803f80")
    srd(p,12,P_X,2048*1024)
    p("s_and_b32 s3, s5, 1")
    p("s_lshl_b32 s60, s4, 1")
    p("s_add_u32 s60, s60, s3")
    p("v_lshrrev_b32 v1, 3, v0")
    p("v_and_b32 v10, 7, v0")
    p("s_lshl_b32 s3, s60, 5")
    p("s_lshl_b32 s7, s6, 3")
    p("s_add_u32 s3, s3, s7")
    p("v_add_u32 v2, s3, v1")
    p("v_lshlrev_b32 v2, 10, v2")
    p("v_lshl_add_u32 v2, v10, 4, v2")
    p("v_xor_b32 v3, 0x8000, v2")
    for cb in range(8):
        p(f"buffer_load_dwordx4 v[{16+4*cb}:{19+4*cb}], v2, {SRD_X}, 0 offen offset:{cb*128}")
    srd(p,16,P_WQ,512*1024)
    w128_voff(p,'v4')
    p("v_lshrrev_b32 v11, 1, v10")
    p("v_mul_u32_u24 v11, 1056, v11")
    p("v_and_b32 v12, 1, v10")
    p("v_mul_u32_u24 v12, 528, v12")
    p("v_add_u32 v5, v11, v12")
    p("s_lshl_b32 s3, s6, 3")
    p("v_add_u32 v11, s3, v1")
    p("v_lshl_add_u32 v5, v11, 4, v5")
    p("v_lshrrev_b32 v11, 5, v0")
    p("v_mul_u32_u24 v11, 528, v11")
    p("v_and_b32 v12, 31, v0")
    p("v_lshl_add_u32 v6, v12, 4, v11")
    lane_params(p)
    p(f"v_mul_u32_u24 v97, {WV-WK}, v15")
    p("v_lshl_add_u32 v97, v14, 5, v97")
    p("v_add_u32 v97, v97, v96")
    p(f"v_add_u32 v8, {WK}, v97")
    p("s_and_b32 s3, s6, 1")
    p("s_lshl_b32 s3, s3, 2")
    tr_base128(p,'v7','s3',WQ)
    p("s_cmp_ge_u32 s5, 2")
    p("s_cselect_b32 s77, 4, 8")
    p("s_sub_u32 s3, s6, 2"); p("s_lshl_b32 s3, s3, 1")
    p("s_cmp_ge_u32 s5, 2"); p("s_cselect_b32 s3, s6, s3")
    p("s_lshl_b32 s75, s3, 17")
    p("s_lshl_b32 s76, s3, 14"); p(f"s_add_u32 s76, s76, {WQ}")
    p("s_lshl_b32 s74, s6, 14")
    p("s_cmp_ge_u32 s5, 2")
    p("s_cbranch_scc1 A_nokvdma")
    p("s_cmp_lg_u32 s6, 2")
    p("s_cbranch_scc1 A_noclr")
    p(f"s_mul_i32 s3, s60, {FLG_CLR}")
    p(f"s_add_u32 s3, s3, {L.FLG}")
    p("v_lshlrev_b32 v11, 2, v0")
    p("v_mov_b32 v12, 0")
    p(f"s_mov_b32 exec_hi, {hx((1<<(FLG_CLR//4-32))-1)}")
    p(f"buffer_store_dword v12, v11, {SRD_WS}, s3 offen sc1")
    p("s_mov_b64 exec, -1")
    p.label("A_noclr")
    p("s_cmp_lt_u32 s6, 2")
    p(f"s_cselect_b32 s20, s{P_WK}, s{P_WV}")
    p(f"s_cselect_b32 s21, s{P_WK+1}, s{P_WV+1}")
    p("s_mov_b32 s22, 16384")
    p("s_mov_b32 s23, 0x20000")
    csel(p,'s30',WK,WV)
    p("s_and_b32 s3, s6, 1")
    p("s_lshl_b32 s3, s3, 13")
    p("s_add_u32 s30, s30, s3")
    for i in range(8):
        if i%4==0: p(f"s_add_u32 m0, s30, {i*1024}"); p(f"s_add_u32 s31, s3, {i*1024}")
        p(f"buffer_load_dwordx4 v9, {SRD_B}, s31 offen offset:{(i%4)*1024} lds")
    stamp(p,'A issued')
    WE='wqearly' in OPT
    if WE:
        p("s_cmp_lt_u32 s6, 2"); p("s_cbranch_scc1 A_noweq")
        p("v_add_u32 v240, 7168, v4"); p("v_add_u32 v241, 14336, v4"); p("v_add_u32 v242, 21504, v4")
        for g in range(8):
            p(f"s_add_u32 m0, s76, {g*4096}"); p(f"s_add_u32 s3, s75, {g*32768}")
            for j,vr in enumerate(('v4','v240','v241','v242')):
                p(f"buffer_load_dwordx4 {vr}, {SRD_A}, s3 offen offset:{j*1024} lds")
        if 'vones' in OPT: v_ones(p,88)
        p("s_waitcnt vmcnt(40)")
        p("s_branch A_xw")
        p.label("A_noweq")
    if 'vones' in OPT: v_ones(p,88)
    p("s_waitcnt vmcnt(8)")
    p("s_branch A_xw")
    p.label("A_nokvdma")
    if 'wqwarm' in OPT:
        p("s_and_b32 s3, s4, 3"); p("s_mul_i32 s3, s3, 6"); p("s_add_u32 s3, s3, s5"); p("s_sub_u32 s3, s3, 2")
        p("s_lshl_b32 s3, s3, 2"); p("s_add_u32 s3, s3, s6"); p("s_mul_i32 s3, s3, 22")
        p("v_add_u32 v247, s3, v0"); p("v_lshrrev_b32 v246, 2, v247"); p("v_and_b32 v247, 3, v247"); p("v_lshlrev_b32 v247, 6, v247")
        p("v_lshl_add_u32 v247, v246, 10, v247")
        p("s_mov_b64 exec, 0x3fffff")
        p(f"buffer_load_dword v246, v247, {SRD_A}, 0 offen ; nowaitcheck")
        p("s_mov_b64 exec, -1")
    if 'vones' in OPT: v_ones(p,88)
    p("s_waitcnt vmcnt(1)" if 'wqwarm' in OPT else "s_waitcnt vmcnt(0)")
    p.label("A_xw")
    stamp(p,'A x arrived')
    ln_tile(p,16,'v5',XH0,extra=[[f"buffer_load_dwordx4 v[{48+4*cb}:{51+4*cb}], v3, {SRD_X}, 0 offen offset:{cb*128}"] for cb in range(8)])
    for j in range(1,4): p(f"v_add_u32 v{175+j+64}, {7168*j}, v4")
    stamp(p,'A lnA done')
    p("s_cmp_ge_u32 s5, 2")
    p("s_cbranch_scc1 A_wqdma")
    if 'wqearly' in OPT:
        p("s_cmp_lt_u32 s6, 2"); p("s_cbranch_scc1 A_kw01")
        p("s_waitcnt vmcnt(40) lgkmcnt(0)")
        p("s_barrier")
        p("s_waitcnt vmcnt(0)")
        p("s_branch A_kvdone")
        p.label("A_kw01")
    p("s_waitcnt vmcnt(8) lgkmcnt(0)")
    p("s_barrier")
    p("s_cmp_ge_u32 s6, 2")
    p("s_cbranch_scc1 A_wqdma")
    AB_=[96+4*b for b in range(6)]; BB_=[144+4*b for b in range(6)]
    def rA(s,b):
        p(f"ds_read_b64_tr_b16 v[{AB_[b]}:{AB_[b]+1}], v8 offset:{s*512}")
        p(f"ds_read_b64_tr_b16 v[{AB_[b]+2}:{AB_[b]+3}], v8 offset:{s*512+128}")
    def rB(s,b):
        p(f"ds_read_b128 v[{BB_[b]}:{BB_[b]+3}], v6 offset:{XH0+s*1056}")
    p("s_cmp_eq_u32 s6, 1")
    p("s_cbranch_scc1 A_vwave")
    gemm_lds(p,32,rA,rB,lambda s,b: p(f"v_mfma_f32_32x32x16_bf16 v[128:143], v[{AB_[b]}:{AB_[b]+3}], v[{BB_[b]}:{BB_[b]+3}], {'0' if s==0 else 'v[128:143]'}"),3,depth=4,nbuf=6)
    for j in range(4): p(f"v_cvt_pk_bf16_f32 v{88+j}, v{128+2*j}, v{129+2*j}")
    p("s_lshl_b32 s3, s60, 10")
    p(f"s_add_u32 s3, s3, {L.KF}")
    p(f"buffer_store_dwordx4 v[88:91], v9, {SRD_WS}, s3 offen sc1")
    p("v_mul_f32 v84, v128, v128")
    for j in range(1,8): p(f"v_fmac_f32 v84, v{128+j}, v{128+j}")
    p("v_mov_b32 v85, v84")
    p("v_permlane32_swap_b32 v84, v85")
    p("v_add_f32 v84, v84, v85")
    for d in ("row_ror:8","row_ror:4","row_ror:2","row_ror:1"):
        p(f"v_max_f32_dpp v84, v84, v84 {d} row_mask:0xf bank_mask:0xf")
    p("v_readlane_b32 s3, v84, 0")
    p("v_readlane_b32 s7, v84, 16")
    p("s_max_u32 s3, s3, s7")
    p("v_mov_b32 v84, s3")
    p("s_lshl_b32 s7, s60, 7")
    p(f"s_add_u32 s7, s7, {L.KM}")
    p("v_lshlrev_b32 v85, 2, v0")
    p("s_mov_b32 exec_hi, 0")
    p(f"buffer_store_dword v84, v85, {SRD_WS}, s7 offen sc1")
    p("s_mov_b64 exec, -1")
    p("s_waitcnt vmcnt(2)")
    hs_sentinel(p,0)
    p("s_branch A_kvdone")
    p.label("A_vwave")
    p("v_and_b32 v84, 3, v0")
    p("v_bfe_u32 v85, v0, 2, 1")
    p("v_lshl_add_u32 v84, v85, 3, v84")
    p("v_bfe_u32 v85, v0, 3, 1")
    p("v_lshl_add_u32 v84, v85, 2, v84")
    p("v_and_b32 v85, 16, v0")
    p("v_add_u32 v84, v84, v85")
    p("v_lshrrev_b32 v85, 5, v0")
    p("v_mul_u32_u24 v85, 528, v85")
    p("v_lshl_add_u32 v86, v84, 4, v85")
    def rBv(s,b):
        p(f"ds_read_b128 v[{BB_[b]}:{BB_[b]+3}], v86 offset:{XH0+s*1056}")
    gemm_lds(p,32,rA,rBv,lambda s,b: p(f"v_mfma_f32_32x32x16_bf16 v[128:143], v[{BB_[b]}:{BB_[b]+3}], v[{AB_[b]}:{AB_[b]+3}], {'0' if s==0 else 'v[128:143]'}"),3,depth=4,nbuf=6)
    for j in range(8): p(f"v_cvt_pk_bf16_f32 v{88+j}, v{128+2*j}, v{129+2*j}")
    p("v_xor_b32 v84, 256, v9")
    p("s_lshl_b32 s3, s60, 11")
    p(f"s_add_u32 s3, s3, {L.VF}")
    p("s_mov_b32 exec_lo, 0xffff0000")
    p("s_mov_b32 exec_hi, 0xffff0000")
    p(f"buffer_store_dwordx4 v[88:91], v84, {SRD_WS}, s3 offen sc1")
    p(f"buffer_store_dwordx4 v[92:95], v84, {SRD_WS}, s3 offen offset:1024 sc1")
    p("s_mov_b64 exec, -1")
    p("s_waitcnt vmcnt(2)")
    hs_sentinel(p,1)
    p("s_branch A_kvdone")
    p.label("A_wqdma")
    p("s_waitcnt vmcnt(0)")
    p.label("A_wqloop")
    p("s_mov_b32 m0, s76")
    for j,vr in enumerate(('v4','v240','v241','v242')):
        p(f"buffer_load_dwordx4 {vr}, {SRD_A}, s75 offen offset:{j*1024}{' nt' if 'ntwq' in OPT else ''} lds")
    p("s_add_u32 s76, s76, 4096"); p("s_add_u32 s75, s75, 32768")
    p("s_sub_u32 s77, s77, 1"); p("s_cmp_lg_u32 s77, 0"); p("s_cbranch_scc1 A_wqloop")
    p.label("A_kvdone")
    stamp(p,'A kvdone')
    ln_tile(p,48,'v5',XH1,write=False)
    KE='kvearly' in OPT
    if KE:
        p("s_cmp_ge_u32 s5, 2"); p("s_cbranch_scc1 A_nosig")
        p("s_barrier")
        p("s_cmp_ge_u32 s6, 2"); p("s_cbranch_scc1 A_nosig")
        ln_write(p,48,'v5',XH1)
        p("s_branch A_lnbw")
        p.label("A_nosig")
        ln_write(p,48,'v5',XH1)
        p("s_waitcnt vmcnt(0)")
        p.label("A_lnbw")
        p("s_waitcnt lgkmcnt(0)")
        p("s_barrier")
        stamp(p,'A lnB done')
        phase_a_q(p,KE,AB_,BB_)
        return
    p("s_cmp_ge_u32 s5, 2"); p("s_cbranch_scc1 A_nosig")
    p("s_cmp_ge_u32 s6, 2"); p("s_cbranch_scc1 A_nosig2")
    p("s_waitcnt vmcnt(0)")
    p("s_barrier")
    p("s_cmp_lg_u32 s6, 0"); p("s_cbranch_scc1 A_nosig3")
    if 'go2' in OPT:
        p("s_lshr_b32 s3, s60, 5"); p("s_lshl_b32 s3, s3, 6"); p("v_mov_b32 v85, s3")
    else: p("v_mov_b32 v85, 0")
    p("v_mov_b32 v243, 1")
    p("s_mov_b64 exec, 1")
    p(f"buffer_atomic_add v243, v85, {SRD_D}, 0 offen sc0 sc1 ; nowaitcheck")
    p("s_mov_b64 exec, -1")
    stamp(p,'A sig')
    p.label("A_nosig3")
    ln_write(p,48,'v5',XH1)
    p("s_branch A_lnbw")
    p.label("A_nosig2")
    p("s_barrier")
    p.label("A_nosig")
    ln_write(p,48,'v5',XH1)
    p("s_waitcnt vmcnt(0)")
    p.label("A_lnbw")
    p("s_waitcnt lgkmcnt(0)")
    p("s_barrier")
    stamp(p,'A lnB done')
    phase_a_q(p,False,AB_,BB_)

GOFN=[]
def phase_a_q(p,KE,AB_,BB_):
    if 'wowarm' in OPT:
        srd(p,24,P_WO,512*1024)
        p("s_cmp_lt_u32 s5, 2"); p("s_cbranch_scc1 A_nowarm")
        p("s_and_b32 s3, s4, 3"); p("s_mul_i32 s3, s3, 6"); p("s_add_u32 s3, s3, s5"); p("s_sub_u32 s3, s3, 2")
        p("s_lshl_b32 s3, s3, 2"); p("s_add_u32 s3, s3, s6"); p("s_mul_i32 s3, s3, 5504")
        p("v_lshlrev_b32 v247, 6, v0")
        p(f"buffer_load_dword v246, v247, {SRD_O}, s3 offen ; nowaitcheck")
        p("s_add_u32 s3, s3, 4096")
        p("s_mov_b64 exec, 0x3fffff")
        p(f"buffer_load_dword v246, v247, {SRD_O}, s3 offen ; nowaitcheck")
        p("s_mov_b64 exec, -1")
        p.label("A_nowarm")
    def go():
        N=32 if 'go2' in OPT else 64
        p("s_cmp_ge_u32 s5, 2"); p("s_cbranch_scc1 A_nogo")
        p("s_cmp_lg_u32 s6, 0"); p("s_cbranch_scc1 A_nogo")
        p("s_waitcnt vmcnt(0)")
        stamp(p,'A atom ret')
        p(f"v_readfirstlane_b32 s3, v243"); p(f"s_and_b32 s3, s3, {N-1}"); p(f"s_cmp_lg_u32 s3, {N-1}"); p("s_cbranch_scc1 A_nogo")
        p("v_mov_b32 v243, 1")
        if 'go2' in OPT:
            p("s_lshr_b32 s3, s60, 5"); p("s_lshl_b32 s3, s3, 6"); p("s_add_u32 s3, s3, 128"); p("v_mov_b32 v244, s3")
        else: p("v_mov_b32 v244, 128")
        p("s_mov_b64 exec, 1")
        p(f"buffer_store_dword v243, v244, {SRD_D}, 0 offen sc1")
        p("s_mov_b64 exec, -1")
        p.label("A_nogo")
    def kvsig():
        p("s_cmp_ge_u32 s5, 2"); p("s_cbranch_scc1 A_nosig9")
        p("s_waitcnt vmcnt(0)")
        p("s_barrier")
        p("s_cmp_lg_u32 s6, 0"); p("s_cbranch_scc1 A_nosig9")
        p("s_lshr_b32 s3, s60, 5"); p("s_lshl_b32 s3, s3, 6"); p("v_mov_b32 v245, s3")
        p("v_mov_b32 v243, 1")
        p("s_mov_b64 exec, 1")
        p(f"buffer_atomic_add v243, v245, {SRD_D}, 0 offen sc0 sc1 ; nowaitcheck")
        p("s_mov_b64 exec, -1")
        stamp(p,'A sig')
        p.label("A_nosig9")
    GOP=os.environ.get('GOP','q')
    hooks={GO_STEP:go}
    if KE:
        hooks={int(os.environ.get('KA','12')):kvsig}
        if GOP=='hook': hooks[GO_STEP]=go
        elif GOP=='pre': GOFN.append(go)
    p("s_lshr_b32 s3, s6, 1")
    p(f"s_mul_i32 s7, s3, {XH1}")
    p("v_add_u32 v6, s7, v6")
    def rA(s,b):
        p(f"ds_read_b64_tr_b16 v[{AB_[b]}:{AB_[b]+1}], v7 offset:{s*2048}")
        p(f"ds_read_b64_tr_b16 v[{AB_[b]+2}:{AB_[b]+3}], v7 offset:{s*2048+512}")
    def rB(s,b):
        p(f"ds_read_b128 v[{BB_[b]}:{BB_[b]+3}], v6 offset:{s*1056}")
    gemm_lds(p,32,rA,rB,lambda s,b: p(f"v_mfma_f32_32x32x16_bf16 v[128:143], v[{AB_[b]}:{AB_[b]+3}], v[{BB_[b]}:{BB_[b]+3}], {'0' if s==0 else 'v[128:143]'}"),3,depth=4,nbuf=6,fill=att_setup(),hook=hooks)
    if KE and GOP=='q0': go()
    p(f"s_mov_b32 s30, {hx(f2u(QSCALE))}"); p("s_mov_b32 s31, s30")
    if 'wo2' in OPT: p("v_mov_b32 v239, v4")
    else:
        for j in range(1,4): p(f"v_add_u32 v{4+j}, {7168*j}, v4")
    for j in range(8): p(f"v_pk_mul_f32 v[{128+2*j}:{129+2*j}], v[{128+2*j}:{129+2*j}], s[30:31]")
    for j in range(8): p(f"v_cvt_pk_bf16_f32 v{96+j}, v{128+2*j}, v{129+2*j}")
    p("s_lshr_b32 s3, s6, 1")
    p("s_xor_b32 s3, s5, s3"); p("s_and_b32 s3, s3, 1"); p("s_lshl_b32 s3, s3, 2")
    p("s_and_b32 s7, s6, 1"); p("s_lshl_b32 s7, s7, 1"); p("s_add_u32 s3, s3, s7")
    p("s_lshl_b32 s3, s3, 10"); p(f"s_add_u32 s3, s3, {QL}")
    p("v_add_u32 v104, s3, v9")
    p("ds_write_b128 v104, v[96:99]")
    p("ds_write_b128 v104, v[100:103] offset:1024")
    p("v_mul_f32 v104, v128, v128"); p("v_mul_f32 v105, v136, v136")
    for j in range(1,8): p(f"v_fmac_f32 v104, v{128+j}, v{128+j}"); p(f"v_fmac_f32 v105, v{136+j}, v{136+j}")
    p("v_mov_b32 v106, v104"); p("v_mov_b32 v107, v105")
    p("v_permlane32_swap_b32 v104, v106"); p("v_permlane32_swap_b32 v105, v107")
    p("v_add_f32 v104, v104, v106"); p("v_add_f32 v105, v105, v107")
    p("v_max_u32 v104, v104, v105")
    for d in ("row_ror:8","row_ror:4","row_ror:2","row_ror:1"):
        p(f"v_max_u32_dpp v104, v104, v104 {d} row_mask:0xf bank_mask:0xf")
    p("v_readlane_b32 s3, v104, 0")
    p("v_readlane_b32 s7, v104, 16")
    p("s_max_u32 s3, s3, s7")
    p("v_mov_b32 v104, s3")
    p("s_lshl_b32 s7, s6, 2"); p(f"s_add_u32 s7, s7, {QM}")
    p("v_mov_b32 v105, s7")
    p("ds_write_b32 v105, v104")
    if KE and GOP=='q': go()
    stamp(p,'A q done')

def att_setup():
    F=[]; a=F.append
    for i in range(16): a(f"v_mov_b32 v{OB[0]+i}, 0"); a(f"v_mov_b32 v{OB[1]+i}, 0")
    for i in range(4): a(f"v_mov_b32 v{ZR+i}, 0")
    a(f"v_mov_b32 v{IDX}, 0xdddddddd")
    a("s_mov_b32 s80, 0xffff"); a("s_mov_b32 s81, 0xffff")
    a("s_mul_i32 s77, s6, 2304"); a(f"s_add_u32 s77, s77, {OP}")
    a(f"v_add_u32 v{SLA}, s77, v9")
    a("s_add_u32 s77, s77, 2048")
    a(f"v_lshl_add_u32 v{SLB}, v0, 2, s77")
    a(f"v_add_u32 v{QA}, {QL+1024}, v9")
    a(f"v_add_u32 v59, {QL}, v9")
    a(f"v_mov_b32 v60, {QM}")
    a("s_lshl_b32 s42, s6, 14")
    a("s_lshr_b32 s61, s6, 1"); a("s_lshl_b32 s77, s4, 1"); a("s_add_u32 s61, s61, s77")
    a("s_and_b32 s62, s6, 1"); a("s_lshl_b32 s77, s5, 1"); a("s_add_u32 s62, s62, s77")
    a("v_and_b32 v2, 31, v0"); a("s_lshl_b32 s77, s61, 5"); a("v_add_u32 v2, s77, v2"); a("v_lshlrev_b32 v2, 10, v2")
    a("v_lshrrev_b32 v3, 5, v0"); a("v_lshl_add_u32 v8, v3, 4, v2")
    return F

KA=0
SB=[16,32]; OB=[64,80]; QB=[96,100]; CB=104; IDX=48; ZR=52; SLA=56; SLB=57; QA=58; TB=120
THRESH=40.0
VMASK='s[80:81]'

def QK(Sn,kn,Qn,slow): return f"v_mfma_f32_32x32x16_bf16 v[{Sn}:{Sn+15}], a[{KA+4*kn}:{KA+4*kn+3}], v[{Qn}:{Qn+3}], {f'v[{CB}:{CB+15}]' if slow else '0'}"
def PV(O,areg,S): return f"v_smfmac_f32_32x32x32_bf16 v[{O}:{O+15}], a[{areg}:{areg+3}], v[{S}:{S+7}], v{IDX}"

def slot_write(p,O):
    p(f"ds_write_b128 v{SLA}, v[{O}:{O+3}]")
    p(f"ds_write_b128 v{SLA}, v[{O+4}:{O+7}] offset:1024")
    p(f"ds_write_b32 v{SLB}, v{O+8}")

def att_pass(p, ps, first=False, slow=False, vm=None, ev=None):
    ev=ev or {}
    for t in range(16):
        S=SB[t%2]; Sn=SB[(t+1)%2]
        O=OB[ps]; Op=OB[ps] if t>0 else OB[1-ps]
        Qn=QB[ps] if t<15 else QB[1-ps]
        kn=(t+1)%16; tp=(t-1)%16
        e=lambda i: f"v_exp_f32 v{S+i}, v{S+i}"
        pv2=PV(Op,VA+8*tp+4,Sn+8)
        I=[e(0),e(1),pv2,e(2),e(3),e(4),QK(Sn,kn,Qn,slow),e(5),e(6),e(7),e(8),e(9),PV(O,VA+8*t,S),e(10),e(11),e(12),e(13),e(14),e(15)]
        if not first:
            oa,ob,oc=[int(x) for x in os.environ.get('ORD','3,5,11').split(',')]
            I=[e(i) for i in range(16)]
            I.insert(oc,PV(O,VA+8*t,S)); I.insert(ob,QK(Sn,kn,Qn,slow)); I.insert(oa,pv2)
        ins={}
        def add(pos,txt): ins.setdefault(pos,[]).append(txt)
        if first and t==0: I[2]=None
        if not first:
            if t==2:
                add(4,f"ds_write_b128 v{SLA}, v[{OB[1-ps]}:{OB[1-ps]+3}]")
                add(8,f"ds_write_b128 v{SLA}, v[{OB[1-ps]+4}:{OB[1-ps]+7}] offset:1024")
                add(10,f"ds_write_b32 v{SLB}, v{OB[1-ps]+8}")
            if t==3:
                add(4,f"v_add_u32 v{SLA}, 9216, v{SLA}"); add(8,f"v_add_u32 v{SLB}, 9216, v{SLB}")
            if t==8:
                Z=OB[1-ps]
                add(16,f"v_mfma_f32_32x32x16_bf16 v[{Z}:{Z+15}], v[{ZR}:{ZR+3}], v[{ZR}:{ZR+3}], 0")
        if t==4:
            Qd=QB[1-ps]
            add(4,f"ds_read_b128 v[{Qd}:{Qd+3}], v{QA}")
            if slow: add(5,f"ds_read_b32 v121, v120")
        if t==5:
            add(4,f"v_add_u32 v{QA}, 1024, v{QA}")
            if slow: add(8,"v_add_u32 v120, 256, v120")
        if t==14:
            add(0,"s_waitcnt lgkmcnt(0)")
        if t==15 and slow:
            for j in range(16): add(1,f"v_mov_b32 v{CB+j}, v121")
        if first and vm is not None:
            vm.wait(('V',t,0))
            if t+4<16: add(4,('K',t+4))
            if t+3<16: add(9,('V',t+3))
        for pos,item in ev.get(t,[]): add(pos,item)
        for i,x in enumerate(I):
            for y in ins.get(i,[]):
                if callable(y): y()
                elif isinstance(y,list): emit_group(p,vm,y)
                elif isinstance(y,tuple): (ldK if y[0]=='K' else ldV)(p,vm,y[1])
                else: p(y)
            if x: p(x)

def spread(ev, items, t0, t1, poss=(1,4,8,11,14,17)):
    n=t1-t0+1; per=-(-len(items)//n); assert per<=len(poss),(per,len(items))
    k=0
    for t in range(t0,t1+1):
        for j in range(per):
            if k<len(items): ev.setdefault(t,[]).append((poss[j*len(poss)//per],items[k])); k+=1

def ldK(p,vm,j):
    p(f"s_add_u32 s3, s30, {j*1024}")
    vm.issue(('K',j),f"buffer_load_dwordx4 a[{KA+4*j}:{KA+4*j+3}], v9, {SRD_WS}, s3 offen sc1")
def ldV(p,vm,j):
    p(f"s_add_u32 s3, s31, {j*2048}")
    p(f"s_mov_b64 exec, {VMASK}")
    vm.issue(('V',j,0),f"buffer_load_dwordx4 a[{VA+8*j}:{VA+8*j+3}], v9, {SRD_WS}, s3 offen sc1")
    vm.issue(('V',j,1),f"buffer_load_dwordx4 a[{VA+8*j+4}:{VA+8*j+7}], v9, {SRD_WS}, s3 offen offset:1024 sc1")
    p("s_mov_b64 exec, -1")

def o_store(p,O,jj):
    p(f"v_rcp_f32 v{TB}, v{O+8}")
    p(f"v_mov_b32 v{TB+1}, v{O+8}")
    p(f"v_mov_b32 v{TB+1}, v{TB}")
    for j in range(4): p(f"v_pk_mul_f32 v[{O+2*j}:{O+2*j+1}], v[{O+2*j}:{O+2*j+1}], v[{TB}:{TB+1}]")
    for j in range(4): p(f"v_cvt_pk_bf16_f32 v{TB+4+j}, v{O+2*j}, v{O+2*j+1}")
    hstore(p,f"buffer_store_dwordx4 v[{TB+4}:{TB+7}], v9, {SRD_WS}, s63 offen offset:{jj*1024}")

def xcc_publish(p,vm):
    lab=f"XP_{len(p.lines)}"
    p("s_getreg_b32 s43, hwreg(HW_REG_XCC_ID, 0, 4)")
    p("s_add_u32 s43, s43, 1")
    p("s_lshr_b32 s86, s4, 1"); p("s_lshl_b32 s86, s86, 6"); p(f"s_add_u32 s86, s86, {FX}")
    p("s_cmp_lg_u32 s6, 0"); p(f"s_cbranch_scc1 {lab}")
    p("s_and_b32 s3, s4, 1"); p("s_lshl_b32 s3, s3, 3"); p("s_add_u32 s3, s3, s5"); p("s_lshl_b32 s3, s3, 2")
    p("v_mov_b32 v12, s43"); p("v_mov_b32 v14, s3")
    p("s_mov_b64 exec, 1")
    vm.issue(('XP',0),f"buffer_store_dword v12, v14, {SRD_WS}, s86 offen sc1")
    p("s_mov_b64 exec, -1")
    p.label(lab)
def xcc_load(p,vm):
    p("v_and_b32 v13, 15, v0"); p("v_lshlrev_b32 v13, 2, v13")
    vm.issue(('XL',0),f"buffer_load_dword v12, v13, {SRD_WS}, s86 offen sc1")
def xcc_check(p):
    p(f"s_mov_b32 s29, {SPIN}")
    p.label("XC_CHK")
    p("v_cmp_eq_u32 vcc, 0, v12")
    p("s_cmp_eq_u64 vcc, 0"); p("s_cbranch_scc1 XC_OK")
    p("s_sub_u32 s29, s29, 1"); p("s_cmp_eq_u32 s29, 0"); p("s_cbranch_scc1 XC_OK")
    p(f"buffer_load_dword v12, v13, {SRD_WS}, s86 offen sc1")
    p("s_waitcnt vmcnt(0)")
    p("s_branch XC_CHK")
    p.label("XC_OK")
    p("v_cmp_ne_u32 vcc, s43, v12")
    p("s_cmp_lg_u64 vcc, 0")
    p("s_cselect_b32 s43, 1, 0")
    if 'xslow' in OPT: p("s_mov_b32 s43, 1")

def wo_dma_groups(vm):
    G=[]
    for n,g in enumerate(dma128(['v239','v240','v241','v242'] if 'wo2' in OPT else ['v4','v5','v6','v7'],SRD_O,'s74',WO_L,'s75',16,sg='s76',nt=' nt' if 'ntwo' in OPT else '')):
        G.append([('s',x) for x in g[:-1]]+[('m',('WO',n),g[-1])])
    G.append([('s',"s_lshl_b32 s76, s62, 6"),('m',('XR',0),f"buffer_load_dwordx4 a[192:195], v8, {SRD_X}, s76 offen")])
    G.append([('m',('XR',1),f"buffer_load_dwordx4 a[196:199], v8, {SRD_X}, s76 offen offset:32")])
    return G
def emit_group(p,vm,g):
    for x in g:
        if x[0]=='s': p(x[1])
        else: vm.issue(x[1],x[2])

def v_ones(p,b):
    p(f"v_mov_b32 v{b}, 0x3f803f80"); p(f"v_mov_b32 v{b+4}, 0x3afe3f80")
    p(f"v_and_b32 v{b+1}, 59, v0"); p(f"v_cmp_eq_u32 vcc, 16, v{b+1}"); p(f"v_cndmask_b32 v{b+4}, 0, v{b+4}, vcc")
    for i in (1,2,3,5,6,7): p(f"v_mov_b32 v{b+i}, 0")
    for i in range(8): p(f"v_mfma_f32_32x32x16_bf16 a[{VA+16*i}:{VA+16*i+15}], v[{b}:{b+3}], v[{b+4}:{b+7}], 0")

def attention(p):
    srd(p,24,P_WO,512*1024)
    p("s_lshl_b32 s75, s6, 17")
    srd(p,16,P_WG,512*2752)
    srd(p,20,P_WU,512*2752)
    p("s_lshr_b32 s78, s2, 3"); p("s_lshl_b32 s78, s78, 2"); p("s_add_u32 s78, s78, s6"); p("s_mul_i32 s78, s78, 6880"); p(f"s_add_u32 s78, s78, {192*2752}")
    p("v_lshlrev_b32 v50, 7, v0" if 'w128' in OPT else "v_lshlrev_b32 v50, 6, v0")
    if 'pt' in OPT:
        p("v_and_b32 v51, 15, v0"); p("v_lshlrev_b32 v51, 7, v51")
        p("s_lshr_b32 s3, s6, 1"); p("s_lshl_b32 s7, s4, 1"); p("s_add_u32 s3, s3, s7"); p("s_lshl_b32 s3, s3, 5")
        p("s_lshl_b32 s7, s5, 2"); p("s_add_u32 s3, s3, s7")
        p("s_and_b32 s7, s6, 1"); p("s_lshl_b32 s7, s7, 1"); p("s_add_u32 s3, s3, s7")
        p("s_lshl_b32 s3, s3, 10"); p(f"s_add_u32 s82, s3, {L.OF}")
        p("s_lshl_b32 s3, s61, 5"); p("s_lshl_b32 s7, s62, 1"); p("s_add_u32 s3, s3, s7"); p("s_lshl_b32 s3, s3, 10"); p(f"s_add_u32 s83, s3, {L.HF}")
        p("s_lshl_b32 s3, s61, 12"); p("s_lshl_b32 s7, s62, 8"); p("s_add_u32 s3, s3, s7"); p(f"s_add_u32 s84, s3, {L.HS}")
    p("s_lshl_b32 s31, s42, 1"); p(f"s_add_u32 s31, s31, {L.VF}")
    p(f"s_add_u32 s30, s42, {L.KF}")
    lane_params(p)
    p("s_and_b32 s3, s6, 1"); p("s_lshl_b32 s3, s3, 2")
    tr_base128(p,'v10',"s3",WO_L)
    p("s_and_b32 s3, s6, 1"); p("s_lshl_b32 s3, s3, 15")
    p("v_add_u32 v10, s3, v10")
    p("v_xor_b32 v1, 64, v10")
    p("v_lshlrev_b32 v11, 7, v0")
    if 'vones' not in OPT: v_ones(p,16)
    stamp(p,'B pre-S1',vt=200)
    for f in GOFN: f()
    p("s_cmp_lg_u32 s6, 0"); p("s_cbranch_scc1 B_s1skip")
    if 'go2' in OPT: p("v_and_b32 v62, 1, v0"); p("v_lshlrev_b32 v62, 6, v62"); p("v_add_u32 v62, 128, v62")
    else: p("v_mov_b32 v62, 128")
    poll(p,'s1',SRD_D,'0','v62',1,61,sleep=int(os.environ.get('S1SLEEP','1')))
    p.label("B_s1skip")
    p("s_waitcnt lgkmcnt(0)")
    p("s_barrier")
    stamp(p,'B S1 done',vt=200)
    vm=VM(p)
    p(f"s_mov_b32 s3, {L.KM}")
    vm.issue('KM',f"buffer_load_dword v61, v11, {SRD_WS}, s3 offen sc1")
    ldK(p,vm,0)
    p(f"ds_read_b128 v[{QB[0]}:{QB[0]+3}], v59")
    p(f"ds_read_b128 v[104:107], v60")
    ldK(p,vm,1); ldV(p,vm,0); ldK(p,vm,2); ldV(p,vm,1); ldK(p,vm,3); ldV(p,vm,2)
    p("s_waitcnt lgkmcnt(0)")
    p("v_max_u32 v60, v104, v105"); p("v_max3_u32 v60, v60, v106, v107")
    vm.wait('KM')
    for d in ("row_ror:8","row_ror:4","row_ror:2","row_ror:1"):
        p(f"v_max_u32_dpp v61, v61, v61 {d} row_mask:0xf bank_mask:0xf")
    p("v_readlane_b32 s3, v61, 0"); p("v_readlane_b32 s7, v61, 16"); p("s_max_u32 s3, s3, s7")
    p("v_readlane_b32 s7, v61, 32"); p("s_max_u32 s3, s3, s7")
    p("v_readlane_b32 s7, v61, 48"); p("s_max_u32 s65, s3, s7")
    p("v_mul_f32 v60, s65, v60")
    p(f"v_cmp_nge_f32 vcc, {hx(f2u(THRESH*THRESH/(1.02*1.02)))}, v60")
    p("s_cmp_lg_u64 vcc, 0")
    p("s_cbranch_scc1 L_slow")
    vm.wait(('K',0))
    p(QK(SB[0],0,QB[0],False))
    stamp(p,'B first',vt=200)
    import copy
    SLOW.append(vm)
    vm=copy.copy(vm); vm.pos=dict(vm.pos)
    ev0={}
    if 'wowarm2' in OPT:
        ev0[int(os.environ.get('WOT','13'))]=[(11,[('s',"s_lshr_b32 s85, s2, 3"),('s',"s_lshl_b32 s85, s85, 2"),('s',"s_add_u32 s85, s85, s6"),('s',"s_lshl_b32 s85, s85, 12"),
              ('m',('WOW',0),f"buffer_load_dword v49, v50, {SRD_O}, s85 offen ; nowaitcheck")])]
    att_pass(p,0,first=True,vm=vm,ev=ev0)
    vm.wait(('V',15,1))
    stamp(p,'B pass0',vt=200)
    if 'wo2' in OPT:
        DPOS=tuple(int(x) for x in os.environ.get('DPOS','13,13').split(',')); DT1=18//len(DPOS)
        THIN=0
        WOG=wo_dma_groups(vm)
        ev={}
        ev[0]=[(11,[('s',"s_lshr_b32 s85, s2, 3"),('s',"s_lshl_b32 s85, s85, 2"),('s',"s_add_u32 s85, s85, s6"),('s',"s_lshl_b32 s85, s85, 12"),
              ('m',('WOW',0),f"buffer_load_dword v49, v50, {SRD_O}, s85 offen ; nowaitcheck")])]
        if 'xcc' in OPT:
            class NV:
                def issue(s_,k,t): p(t)
            ev.setdefault(1,[]).append((4,lambda: xcc_publish(p,NV())))
        W1T=int(os.environ.get('W1T','10'))
        for n,(t,sr,off) in enumerate(((0,SRD_A,0),(1,SRD_B,0),(2,SRD_A,4096),(3,SRD_B,4096))):
            g=[('m',('WARM',n),f"buffer_load_dword v49, v50, {sr}, s78 offen ; nowaitcheck")]
            if n==2: g=[('s',"s_add_u32 s78, s78, 4096")]+g
            ev.setdefault(W1T+t,[]).append((11,g))
        spread(ev,w1_setup(),2,9,poss=(1,4,8,11,14,17))
        att_pass(p,1,vm=vm,ev=ev)
        ev={}
        W0=int(os.environ.get('WOD0','0')); spread(ev,WOG,W0,W0+DT1-1,poss=DPOS)
        att_pass(p,0,vm=vm,ev=ev)
    else:
        DPOS=tuple(int(x) for x in os.environ.get('DPOS','13,13').split(',')); DT1=18//len(DPOS)
        THIN=int(os.environ.get('THIN','0')); TPOS=int(os.environ.get('TPOS','4'))
        WOG=wo_dma_groups(vm)
        ev={}
        if THIN: spread(ev,WOG[:16],0,15,poss=(TPOS,))
        else:
            W0=int(os.environ.get('WOD0','7' if 'wowarm3' in OPT else '1')); spread(ev,WOG,W0,W0+DT1-1,poss=DPOS)
        if 'xcc' in OPT:
            class NV:
                def issue(s_,k,t): p(t)
            ev.setdefault(0,[]).append((4,lambda: xcc_publish(p,NV())))
        if 'wowarm3' in OPT:
            g=[('s',"s_lshr_b32 s85, s2, 3"),('s',"s_lshl_b32 s85, s85, 2"),('s',"s_add_u32 s85, s85, s6"),('s',"s_lshl_b32 s85, s85, 12")]
            if 'w128' in OPT: g.append(('s',"s_mov_b32 exec_hi, 0"))
            g.append(('m',('WOW',0),f"buffer_load_dword v49, v50, {SRD_O}, s85 offen ; nowaitcheck"))
            if 'w128' in OPT: g.append(('s',"s_mov_b64 exec, -1"))
            ev.setdefault(int(os.environ.get('WOT','0')),[]).append((11,g))
        att_pass(p,1,vm=vm,ev=ev)
        ev={}
        if 'warm' in OPT:
            for n,(t,sr,off) in enumerate(((0,SRD_A,0),(1,SRD_B,0),(2,SRD_A,4096),(3,SRD_B,4096))[:2 if 'w128' in OPT else 4]):
                g=[('m',('WARM',n),f"buffer_load_dword v49, v50, {sr}, s78 offen ; nowaitcheck")]
                if n==2: g=[('s',"s_add_u32 s78, s78, 4096")]+g
                ev.setdefault(t,[]).append((11,g))
        if THIN:
            for n,g in enumerate(WOG[16:]): ev.setdefault(4+n,[]).append((TPOS,g))
        spread(ev,w1_setup(),4,14 if 'w1mask' in OPT else 13,poss=(1,4,8,11,14,17))
        att_pass(p,0,vm=vm,ev=ev)
    ev={0:[(0,lambda: vm.wait(('XR',1))),(0,"s_barrier")]}
    spread(ev,wo_frag_reads(),0,12,poss=(1,4,8,11,14))
    att_pass(p,1,vm=vm,ev=ev)
    ev={0:[(0,"s_barrier")]}
    W1G=w1_dma(0)+w1_dma(1)+w1_dma(2)
    if THIN: spread(ev,W1G[:15],1,15,poss=(TPOS,))
    else: spread(ev,W1G,1,DT1,poss=DPOS)
    att_pass(p,0,vm=vm,ev=ev)
    ev={}
    if THIN:
        for n,g in enumerate(W1G[15:]): ev.setdefault((0,1,3)[n],[]).append((TPOS,g))
    if 'pt' in OPT:
        ev.setdefault(2,[]); ev[2]+=[(4,[('m',('PT',0),f"buffer_load_dword v49, v51, {SRD_WS}, s82 offen ; nowaitcheck")])]
        ev[6]=[(4,[('m',('PT',1),f"buffer_load_dword v49, v51, {SRD_WS}, s83 offen ; nowaitcheck")])]
        ev[10]=[(4,[('s',"s_mov_b64 exec, 3"),('m',('PT',2),f"buffer_load_dword v49, v51, {SRD_WS}, s84 offen ; nowaitcheck"),('s',"s_mov_b64 exec, -1")])]
    att_pass(p,1,vm=vm,ev=ev)
    ev={}
    if 'codepf2' in OPT:
        NL=int(os.environ.get('PF2_LINES','4'))
        def pf2():
            p("s_getpc_b64 s[84:85]")
            p.label("PF2_HERE")
            p("s_lshr_b32 s3, s2, 3"); p("s_lshl_b32 s3, s3, 2"); p("s_add_u32 s3, s3, s6"); p(f"s_mul_i32 s3, s3, {NL*64}")
            p(f"v_and_b32 v50, {NL-1}, v0"); p("v_lshlrev_b32 v50, 6, v50"); p("v_add_u32 v50, s3, v50")
            p("v_add_u32 v50, L_att_tail-PF2_HERE, v50")
            p("v_min_u32 v50, END_K-PF2_HERE-4, v50")
            p(f"s_mov_b64 exec, {(1<<NL)-1}")
            vm.issue(('PF2',0),"global_load_dword v49, v50, s[84:85] ; nowaitcheck")
            p("s_mov_b64 exec, -1")
        ev[PF2_T]=[(4,pf2)]
    if 'wdatt' in OPT:
        g=[('s',f"s_mov_b32 s24, s{P_WD}"),('s',f"s_mov_b32 s25, s{P_WD+1}"),('s',f"s_mov_b32 s26, {hx(1376*1024)}"),
           ('s',"s_lshr_b32 s79, s2, 3"),('s',"s_lshl_b32 s79, s79, 2"),('s',"s_add_u32 s79, s79, s6"),('s',"s_mul_i32 s79, s79, 11008"),('s',f"v_lshlrev_b32 v51, {7 if 'w128' in OPT else 6}, v0")]
        ev.setdefault(0,[]).append((4,g))
        WDT=int(os.environ.get('WDT','1'))
        for n in range(0 if 'x_nowd' in OPT else (2 if 'w128' in OPT else 3)):
            g=[('m',('WDW',n),f"buffer_load_dword v49, v51, {SRD_O}, s79 offen ; nowaitcheck")]
            if 'w128' in OPT:
                if n==0: g.append(('s',"s_add_u32 s79, s79, 8192"))
                else: g=[('s',"s_mov_b64 exec, 0x3fffff")]+g+[('s',"s_mov_b64 exec, -1")]
            elif n<2: g.append(('s',"s_add_u32 s79, s79, 4096"))
            ev.setdefault(WDT+2*n,[]).append((11,g))
    if 'xcc' in OPT: ev.setdefault(12,[]).append((4,lambda: xcc_load(p,vm)))
    att_pass(p,0,vm=vm,ev=ev)
    att_pass(p,1,vm=vm)
    p.label("L_att_tail")
    p(PV(OB[1],VA+8*15+4,SB[1]+8))
    slot_write(p,OB[1])
    p.label("L_att_done")
    stamp(p,'B loop done',vt=14)
    p("s_mul_i32 s3, s6, 18432"); p(f"s_add_u32 s3, s3, {OP}")
    p("v_add_u32 v118, s3, v9")
    p("s_add_u32 s3, s3, 2048")
    p("v_lshl_add_u32 v119, v0, 2, s3")
    p("s_lshr_b32 s3, s6, 1"); p("s_lshl_b32 s7, s4, 1"); p("s_add_u32 s3, s3, s7"); p("s_lshl_b32 s3, s3, 5")
    p("s_lshl_b32 s7, s5, 2"); p("s_add_u32 s3, s3, s7")
    p("s_and_b32 s7, s6, 1"); p("s_lshl_b32 s7, s7, 1"); p("s_add_u32 s3, s3, s7")
    p("s_lshl_b32 s3, s3, 10"); p(f"s_add_u32 s63, s3, {L.OF}")
    p("s_waitcnt vmcnt(0) lgkmcnt(0)")
    p("s_barrier")
    if 'xcc' in OPT: xcc_check(p)
    if 'pnorm' in OPT:
        p("s_lshl_b32 s3, s61, 12"); p("s_lshl_b32 s7, s62, 8"); p("s_add_u32 s3, s3, s7"); p(f"s_add_u32 s3, s3, {L.HS}")
        p("v_mov_b32 v122, -1"); p("v_mov_b32 v123, -1"); p("v_lshlrev_b32 v124, 3, v0")
        p("s_mov_b32 exec_hi, 0")
        hstore(p,f"buffer_store_dwordx2 v[122:123], v124, {SRD_WS}, s3 offen")
        p("s_mov_b64 exec, -1")
    def rds(jj):
        for ww in range(4):
            b=16+(jj*4+ww)*8; off=jj*9216+ww*2304
            p(f"ds_read_b128 v[{b}:{b+3}], v118 offset:{off}")
            p(f"ds_read_b128 v[{b+4}:{b+7}], v118 offset:{off+1024}")
            p(f"ds_read_b32 v{80+jj*4+ww}, v119 offset:{off}")
    rds(0)
    for jj in range(2):
        b=16+jj*32; sb=80+jj*4; O=96+10*jj
        if jj==0:
            p("s_waitcnt lgkmcnt(6)")
            for j in range(4): p(f"v_pk_add_f32 v[{b+2*j}:{b+2*j+1}], v[{b+2*j}:{b+2*j+1}], v[{b+8+2*j}:{b+8+2*j+1}]")
            p(f"v_add_f32 v{sb}, v{sb}, v{sb+1}")
            rds(1)
            p("s_waitcnt lgkmcnt(12)")
        else:
            p("s_waitcnt lgkmcnt(6)")
            for j in range(4): p(f"v_pk_add_f32 v[{b+2*j}:{b+2*j+1}], v[{b+2*j}:{b+2*j+1}], v[{b+8+2*j}:{b+8+2*j+1}]")
            p(f"v_add_f32 v{sb}, v{sb}, v{sb+1}")
            p("s_waitcnt lgkmcnt(0)")
        for j in range(4):
            p(f"v_pk_add_f32 v[{b+16+2*j}:{b+16+2*j+1}], v[{b+16+2*j}:{b+16+2*j+1}], v[{b+24+2*j}:{b+24+2*j+1}]")
        p(f"v_add_f32 v{sb+2}, v{sb+2}, v{sb+3}")
        for j in range(4):
            p(f"v_pk_add_f32 v[{O+2*j}:{O+2*j+1}], v[{b+2*j}:{b+2*j+1}], v[{b+16+2*j}:{b+16+2*j+1}]")
        p(f"v_add_f32 v{O+8}, v{sb}, v{sb+2}")
        o_store(p,O,jj)

SLOW=[]
def attention_slow(p):
    vm=SLOW[0]
    p.label("L_slow")
    if 'xcc' in OPT: xcc_publish(p,vm)
    for j in range(4,16): ldK(p,vm,j)
    for j in range(3,16): ldV(p,vm,j)
    for g in wo_dma_groups(vm): emit_group(p,vm,g)
    p("s_waitcnt vmcnt(0)")
    p("s_barrier")
    for x in wo_frag_reads(): p(x)
    for x in w1_setup():
        if isinstance(x,list): emit_group(p,vm,x)
        else: p(x)
    p("s_waitcnt lgkmcnt(0)")
    p("s_barrier")
    for g in w1_dma(0)+w1_dma(1)+w1_dma(2): emit_group(p,vm,g)
    p("s_mov_b32 s64, 0")
    p.label("L_mx")
    p("s_lshl_b32 s3, s64, 10")
    p("v_add_u32 v120, s3, v59")
    p(f"ds_read_b128 v[{QB[1]}:{QB[1]+3}], v120")
    p("v_mov_b32 v121, 0xff800000")
    p("s_waitcnt lgkmcnt(0)")
    p(QK(SB[0],0,QB[1],False))
    for t in range(16):
        S=SB[t%2]; Sn=SB[(t+1)%2]
        if t<15: p(QK(Sn,t+1,QB[1],False))
        for j in range(8): p(f"v_max3_f32 v121, v{S+2*j}, v{S+2*j+1}, v121")
    p("v_mov_b32 v122, v121")
    p("v_permlane32_swap_b32 v121, v122")
    p("v_max_f32 v121, v121, v122")
    p("s_lshl_b32 s3, s64, 9"); p("s_lshl_b32 s7, s6, 7"); p("s_add_u32 s3, s3, s7")
    p("v_and_b32 v122, 31, v0")
    p("v_lshl_add_u32 v122, v122, 2, s3")
    p(f"v_add_u32 v122, {MX}, v122")
    p(f"ds_write_b32 v122, v121")
    p("s_add_u32 s64, s64, 1"); p("s_cmp_lt_u32 s64, 8"); p("s_cbranch_scc1 L_mx")
    p("s_waitcnt lgkmcnt(0)")
    p("s_barrier")
    p("v_and_b32 v122, 31, v0"); p("v_lshlrev_b32 v122, 2, v122")
    p("s_lshl_b32 s3, s6, 10"); p(f"s_add_u32 s3, s3, {MX}"); p("v_add_u32 v122, s3, v122")
    for qq in range(2):
        for ww in range(4): p(f"ds_read_b32 v{16+4*qq+ww}, v122 offset:{qq*512+ww*128}")
    p("s_waitcnt lgkmcnt(0)")
    p("s_lshl_b32 s3, s6, 9"); p(f"s_add_u32 s3, s3, {MF}")
    p("v_lshl_add_u32 v122, v0, 2, s3")
    for qq in range(2):
        b=16+4*qq
        p(f"v_max3_f32 v{b}, v{b}, v{b+1}, v{b+2}"); p(f"v_max_f32 v{b}, v{b}, v{b+3}"); p(f"v_sub_f32 v{b}, 0, v{b}")
        p(f"ds_write_b32 v122, v{b} offset:{qq*256}")
    p("s_waitcnt lgkmcnt(0)")
    p("s_barrier")
    p(f"v_lshlrev_b32 v120, 2, v0"); p(f"v_add_u32 v120, {MF}, v120")
    p(f"ds_read_b32 v121, v120")
    p("v_add_u32 v120, 256, v120")
    p("s_waitcnt lgkmcnt(0)")
    for j in range(16): p(f"v_mov_b32 v{CB+j}, v121")
    p(QK(SB[0],0,QB[0],True))
    att_pass_slow(p)
    if 'xcc' in OPT: xcc_load(p,vm)
    p("s_branch L_att_done")

def att_pass_slow(p):
    att_pass(p,0,first=True,slow=True,vm=None)
    p("s_mov_b32 s64, 4")
    p("s_branch L_sttY")
    p.label("L_sttX")
    att_pass(p,0,slow=True)
    p.label("L_sttY")
    att_pass(p,1,slow=True)
    p("s_sub_u32 s64, s64, 1")
    p("s_cmp_lg_u32 s64, 0")
    p("s_cbranch_scc1 L_sttX")
    p(PV(OB[1],VA+8*15+4,SB[1]+8))
    slot_write(p,OB[1])

def w1_setup():
    F=[]; p=F.append
    p("s_and_b32 s3, s4, 1"); p("s_lshl_b32 s3, s3, 3"); p("s_add_u32 s3, s3, s5")
    p("s_min_u32 s7, s3, 11"); p("s_lshl_b32 s7, s7, 1"); p("s_lshl_b32 s66, s3, 2"); p("s_add_u32 s66, s66, s7")
    p("s_cmp_lt_u32 s3, 11"); F[-1]=[('s',"s_cmp_lt_u32 s3, 11"),('s',"s_cselect_b32 s67, 6, 4")]
    MK='w1mask' in OPT
    if MK:
        p("s_lshl_b32 s7, s67, 1"); p("v_mov_b32 v15, 0x40000000")
    for i in range(3):
        p(f"v_add_u32 v11, {64*i}, v0")
        p("v_mul_u32_u24 v12, 5462, v11"); p("v_lshrrev_b32 v12, 16, v12")
        p("v_mul_u32_u24 v13, 12, v12"); p("v_sub_u32 v13, v11, v13")
        p("v_mul_u32_u24 v12, 2752, v12")
        if i: p(f"v_subrev_u32 v12, {1024*i}, v12")
        p(f"v_lshl_add_u32 v{2+i}, v13, 4, v12")
        if MK: p("v_cmp_le_u32 vcc, s7, v13"); p(f"v_cndmask_b32 v{2+i}, v{2+i}, v15, vcc")
        p("v_add_u32 v13, 10, v13"); p("v_subrev_u32 v14, 12, v13"); p("v_min_u32 v13, v13, v14")
        p(f"v_lshl_add_u32 v{5+i}, v13, 4, v12")
        if MK: p("v_cmp_le_u32 vcc, s7, v13"); p(f"v_cndmask_b32 v{5+i}, v{5+i}, v15, vcc")
    p(f"s_mul_i32 s68, s6, {16*2752}"); p("s_lshl_b32 s3, s66, 5"); p("s_add_u32 s68, s68, s3")
    p("s_mul_i32 s69, s6, 3072")
    return F
assert all((c*5462)>>16==c//12 for c in range(192))

def w1_dma(q):
    slot=q%6
    out=[]
    for mat in range(2):
        for i in range(3):
            g=[]
            if i==0 or ('w1wait' in OPT and q>=3): g.append(('s',f"s_add_u32 m0, s69, {slot*SLOT+mat*12288}"))
            if i==0 and mat==0: g.append(('s',f"s_add_u32 s71, s68, {q*64*2752}"))
            nt=' nt' if (('ntw1e' in OPT and q<3) or ('ntw1l' in OPT and q>=3)) else ''
            g.append(('m',('W1',q,3*mat+i),f"buffer_load_dwordx4 v{2+3*mat+i}, {SRD_A if mat==0 else SRD_B}, s71 offen offset:{i*1024}{nt} lds"))
            out.append(g)
    return out

WOA=128
def wo_frag_reads():
    out=[]
    for i in range(16):
        for cc,va in enumerate(('v10','v1')):
            b=WOA+8*i+4*cc
            out.append(f"ds_read_b64_tr_b16 v[{b}:{b+1}], {va} offset:{i*2048}")
            out.append(f"ds_read_b64_tr_b16 v[{b+2}:{b+3}], {va} offset:{i*2048+512}")
    return out

def wo_phase(p):
    p("s_waitcnt vmcnt(0)")
    flag_off(p,F2); set_flag(p,'s3',12)
    stamp(p,'C flag set',vt=14)
    p("s_barrier")
    WW=os.environ.get('WW','3,4,5').split(',') if 'w1wait' in OPT else []
    class NV2:
        def issue(s_,k,t): p(t)
    def wdma(q):
        for g in w1_dma(q): emit_group(p,NV2(),g)
    if '3' in WW: wdma(3)
    p("v_and_b32 v12, 31, v0"); p("v_lshlrev_b32 v12, 2, v12")
    p("s_lshl_b32 s30, s4, 7"); p(f"s_add_u32 s30, s30, {F2}")
    p("s_lshl_b32 s31, s61, 5"); p("s_and_b32 s3, s6, 1"); p("s_lshl_b32 s3, s3, 4"); p("s_add_u32 s31, s31, s3")
    p("s_lshl_b32 s31, s31, 10"); p(f"s_add_u32 s31, s31, {L.OF}")
    poll(p,'s2',SRD_WS,'s30','v12',1,13)
    stamp(p,'C S2 done',vt=14)
    vm=VM(p)
    for i in range(16):
        if i%4==0 and i: p(f"s_add_u32 s31, s31, 4096")
        vm.issue(i,f"buffer_load_dwordx4 a[{4*i}:{4*i+3}], v9, {SRD_WS}, s31 offen offset:{(i%4)*1024}{HL1}")
    ACC=[64,80]
    dm=[] if 'w1late' in OPT else w1_dma(3)+w1_dma(4)+w1_dma(5)
    for j in range(8): p(f"v_accvgpr_read_b32 v{112+j}, a{192+j}")
    for i in range(16):
        vm.wait(i)
        for cc in range(2):
            a=ACC[cc]; b=WOA+8*i+4*cc
            p(f"v_mfma_f32_32x32x16_bf16 v[{a}:{a+15}], v[{b}:{b+3}], a[{4*i}:{4*i+3}], {'0' if i==0 else f'v[{a}:{a+15}]'}")
            if dm and (cc==0 or i<2): emit_group(p,vm,dm.pop(0))
    assert not dm
    for j in range(8):
        p(f"v_lshlrev_b32 v{96+2*j}, 16, v{112+j}")
        p(f"v_and_b32 v{97+2*j}, 0xffff0000, v{112+j}")
    stamp(p,'C mfma',vt=14)
    if '4' in WW: wdma(4)
    pair_reduce(p,ACC,RED)
    for j in range(8): p(f"v_pk_add_f32 v[{64+2*j}:{65+2*j}], v[{64+2*j}:{65+2*j}], v[{96+2*j}:{97+2*j}]")
    if 'pnorm' in OPT:
        wo_tail_pnorm(p); return
    for j in range(8): p(f"v_cvt_pk_bf16_f32 v{32+j}, v{64+2*j}, v{65+2*j}")
    p("s_lshl_b32 s3, s61, 5"); p("s_lshl_b32 s7, s62, 1"); p("s_add_u32 s3, s3, s7"); p("s_lshl_b32 s3, s3, 10"); p(f"s_add_u32 s3, s3, {L.HF}")
    hstore(p,[f"buffer_store_dwordx4 v[32:35], v9, {SRD_WS}, s3 offen",
              f"buffer_store_dwordx4 v[36:39], v9, {SRD_WS}, s3 offen offset:1024"])
    p("v_pk_mul_f32 v[42:43], v[64:65], v[64:65]"); p("v_pk_add_f32 v[40:41], v[64:65], v[66:67]")
    p("v_pk_fma_f32 v[42:43], v[66:67], v[66:67], v[42:43]")
    for j in range(2,8):
        p(f"v_pk_add_f32 v[40:41], v[40:41], v[{64+2*j}:{65+2*j}]"); p(f"v_pk_fma_f32 v[42:43], v[{64+2*j}:{65+2*j}], v[{64+2*j}:{65+2*j}], v[42:43]")
    p("v_add_f32 v40, v40, v41"); p("v_add_f32 v41, v42, v43")
    p("v_mov_b32 v42, v40"); p("v_mov_b32 v43, v41")
    p("v_permlane32_swap_b32 v40, v42"); p("v_permlane32_swap_b32 v41, v43")
    p("v_add_f32 v40, v40, v42"); p("v_add_f32 v41, v41, v43")
    p("s_lshl_b32 s3, s61, 12"); p("s_lshl_b32 s7, s62, 8"); p("s_add_u32 s3, s3, s7"); p(f"s_add_u32 s3, s3, {L.HS}")
    p("v_lshlrev_b32 v12, 3, v0")
    if 'hsflag' in OPT:
        for j in range(8): p(f"v_accvgpr_write_b32 a{248+j}, v{32+j}")
        p("s_waitcnt vmcnt(0)")
        p("s_mov_b32 exec_hi, 0")
        hstore(p,f"buffer_store_dwordx2 v[40:41], v12, {SRD_WS}, s3 offen")
        p("s_mov_b64 exec, -1")
        stamp(p,'C done',vt=14)
        return
    p("s_mov_b32 exec_hi, 0")
    hstore(p,f"buffer_store_dwordx2 v[40:41], v12, {SRD_WS}, s3 offen")
    p("s_mov_b64 exec, -1")
    for j in range(8): p(f"v_accvgpr_write_b32 a{248+j}, v{32+j}")
    flag_off(p,F3)
    p("s_waitcnt vmcnt(0)")
    set_flag(p,'s3',12)
    stamp(p,'C done',vt=14)

def ln_stats(p,b):
    for i in range(2):
        p(f"v_pk_add_f32 v[{b+4*i}:{b+1+4*i}], v[{b+4*i}:{b+1+4*i}], v[{b+2+4*i}:{b+3+4*i}]")
        p(f"v_pk_add_f32 v[{b+8+4*i}:{b+9+4*i}], v[{b+8+4*i}:{b+9+4*i}], v[{b+10+4*i}:{b+11+4*i}]")
    p(f"v_pk_add_f32 v[{b}:{b+1}], v[{b}:{b+1}], v[{b+4}:{b+5}]"); p(f"v_pk_add_f32 v[{b+8}:{b+9}], v[{b+8}:{b+9}], v[{b+12}:{b+13}]")
    p(f"v_pk_add_f32 v[16:17], v[{b}:{b+1}], v[{b+8}:{b+9}]")
    p("v_mov_b32 v18, v16"); p("v_mov_b32 v19, v17")
    p("v_permlane32_swap_b32 v16, v18"); p("v_permlane32_swap_b32 v17, v19")
    p("v_add_f32 v16, v16, v18"); p("v_add_f32 v17, v17, v19")
    p(f"v_mul_f32 v16, {hx(f2u(1/512))}, v16"); p(f"v_mul_f32 v17, {hx(f2u(1/512))}, v17")
    p("v_fma_f32 v17, -v16, v16, v17"); p("v_max_f32 v17, 0, v17"); p(f"v_add_f32 v17, {hx(f2u(1e-5))}, v17")
    p("v_rsq_f32 v17, v17"); p("v_mul_f32 v16, v16, v17"); p("v_sub_f32 v18, 0, v16"); p("v_mov_b32 v19, v18"); p("v_mov_b32 v16, v17")

def wo_tail_pnorm(p):
    p("v_pk_mul_f32 v[42:43], v[64:65], v[64:65]"); p("v_pk_add_f32 v[40:41], v[64:65], v[66:67]")
    p("v_pk_fma_f32 v[42:43], v[66:67], v[66:67], v[42:43]")
    for j in range(2,8):
        p(f"v_pk_add_f32 v[40:41], v[40:41], v[{64+2*j}:{65+2*j}]"); p(f"v_pk_fma_f32 v[42:43], v[{64+2*j}:{65+2*j}], v[{64+2*j}:{65+2*j}], v[42:43]")
    p("v_add_f32 v40, v40, v41"); p("v_add_f32 v41, v42, v43")
    p("v_mov_b32 v42, v40"); p("v_mov_b32 v43, v41")
    p("v_permlane32_swap_b32 v40, v42"); p("v_permlane32_swap_b32 v41, v43")
    p("s_lshl_b32 s31, s61, 12"); p(f"s_add_u32 s31, s31, {L.HS}"); p("s_lshl_b32 s7, s62, 8"); p("s_add_u32 s3, s31, s7")
    p("v_add_f32 v40, v40, v42"); p("v_add_f32 v41, v41, v43")
    p("v_lshlrev_b32 v12, 3, v0")
    p("s_mov_b32 exec_hi, 0")
    hstore(p,f"buffer_store_dwordx2 v[40:41], v12, {SRD_WS}, s3 offen")
    p("s_mov_b64 exec, -1")
    p("v_and_b32 v12, 31, v0"); p("v_lshlrev_b32 v12, 3, v12"); p("v_lshrrev_b32 v13, 5, v0"); p("v_lshl_add_u32 v30, v13, 11, v12")
    def lds_():
        for i in range(8): p(f"buffer_load_dwordx2 v[{96+2*i}:{97+2*i}], v30, {SRD_WS}, s31 offen offset:{i*256} sc1")
    lds_()
    for j in range(8): p(f"v_cvt_pk_bf16_f32 v{32+j}, v{64+2*j}, v{65+2*j}")
    for j in range(8): p(f"v_accvgpr_write_b32 a{248+j}, v{32+j}")
    p("s_lshl_b32 s3, s61, 5"); p("s_lshl_b32 s7, s62, 1"); p("s_add_u32 s3, s3, s7"); p("s_lshl_b32 s3, s3, 10"); p(f"s_add_u32 s30, s3, {L.HF}")
    p(f"s_mov_b32 s29, {SPIN}")
    p.label("POLL_hs")
    p("s_waitcnt vmcnt(0)")
    p("v_max3_u32 v112, v97, v99, v101"); p("v_max3_u32 v113, v103, v105, v107"); p("v_max3_u32 v112, v112, v109, v111"); p("v_max_u32 v112, v112, v113")
    p("v_cmp_eq_u32 vcc, -1, v112")
    p("s_cmp_eq_u64 vcc, 0"); p("s_cbranch_scc1 POLLD_hs")
    p("s_sub_u32 s29, s29, 1"); p("s_cmp_eq_u32 s29, 0"); p("s_cbranch_scc1 POLLD_hs")
    lds_()
    p("s_branch POLL_hs")
    p.label("POLLD_hs")
    stamp(p,'C stats',vt=12)
    ln_stats(p,96)
    for j in range(8): p(f"v_pk_fma_f32 v[{64+2*j}:{65+2*j}], v[{64+2*j}:{65+2*j}], v[16:17], v[18:19]")
    for j in range(8): p(f"v_cvt_pk_bf16_f32 v{32+j}, v{64+2*j}, v{65+2*j}")
    hstore(p,[f"buffer_store_dwordx4 v[32:35], v9, {SRD_WS}, s30 offen",
              f"buffer_store_dwordx4 v[36:39], v9, {SRD_WS}, s30 offen offset:1024"])
    flag_off(p,F3)
    p("s_waitcnt vmcnt(0)")
    set_flag(p,'s3',12)
    stamp(p,'C done',vt=14)
    if 'w1wait' in OPT and '5' in os.environ.get('WW','3,4,5').split(','):
        class NV2:
            def issue(s_,k,t): p(t)
        for g in w1_dma(5): emit_group(p,NV2(),g)

def flag_off(p,F):
    p("s_lshl_b32 s3, s4, 7"); p("s_lshl_b32 s7, s5, 4"); p("s_add_u32 s3, s3, s7"); p("s_lshl_b32 s7, s6, 2"); p("s_add_u32 s3, s3, s7")
    p(f"s_add_u32 s3, s3, {F}")

def pair_reduce(p,ACC,base):
    p(f"s_lshl_b32 s3, s6, 12"); p(f"s_add_u32 s3, s3, {base}")
    p("v_add_u32 v12, s3, v9")
    for q in range(4): p(f"ds_write_b128 v12, v[{ACC[1]+4*q}:{ACC[1]+4*q+3}] offset:{q*1024}")
    p("v_xor_b32 v12, 4096, v12")
    p("s_waitcnt lgkmcnt(0)")
    p("s_barrier")
    for q in range(4): p(f"ds_read_b128 v[{ACC[1]+4*q}:{ACC[1]+4*q+3}], v12 offset:{q*1024}")
    for q in range(4):
        p(f"s_waitcnt lgkmcnt({3-q})")
        for j in range(2):
            a=ACC[0]+4*q+2*j; b=ACC[1]+4*q+2*j
            p(f"v_pk_add_f32 v[{a}:{a+1}], v[{a}:{a+1}], v[{b}:{b+1}]")

def ffn1_phase(p):
    p("s_lshr_b32 s70, s4, 1"); p("s_lshl_b32 s70, s70, 2"); p("s_add_u32 s70, s70, s6")
    if 'wdpf' in OPT:
        p("v_lshrrev_b32 v1, 3, v0"); p("v_and_b32 v10, 7, v0")
        w128_voff(p,'v1')
        p("s_lshl_b32 s74, s6, 12"); p("s_lshl_b32 s77, s6, 15")
        p("s_lshr_b32 s3, s6, 1"); p(f"s_mul_i32 s75, s3, {43*16*1024}")
    lane_params(p)
    p("v_mul_u32_u24 v10, 192, v14"); p("v_add_u32 v10, v10, v96")
    p(f"v_mul_u32_u24 v97, {12288+32}, v15"); p("v_add_u32 v28, v10, v97")
    p(f"v_mul_u32_u24 v97, {12288+32-192}, v15"); p("v_add_u32 v29, v10, v97")
    p("v_and_b32 v12, 31, v0"); p("v_lshlrev_b32 v12, 3, v12"); p("v_lshrrev_b32 v13, 5, v0"); p("v_lshl_add_u32 v30, v13, 11, v12")
    p("v_lshlrev_b32 v12, 2, v0")
    p("s_lshr_b32 s30, s4, 1"); p("s_lshl_b32 s30, s30, 8"); p(f"s_add_u32 s30, s30, {F3}")
    HSF='hsflag' in OPT
    if HSF:
        p("s_lshl_b32 s31, s70, 12"); p(f"s_add_u32 s31, s31, {L.HS}")
        p(f"s_mov_b32 s29, {SPIN}")
        p.label("POLL_hs3")
        for i in range(8): p(f"buffer_load_dwordx2 v[{32+2*i}:{33+2*i}], v30, {SRD_WS}, s31 offen offset:{i*256} sc1")
        p("s_waitcnt vmcnt(0)")
        p("v_max3_u32 v48, v33, v35, v37"); p("v_max3_u32 v49, v39, v41, v43"); p("v_max3_u32 v48, v48, v45, v47"); p("v_max_u32 v48, v48, v49")
        p("v_cmp_eq_u32 vcc, -1, v48")
        p("s_cmp_eq_u64 vcc, 0"); p("s_cbranch_scc1 POLLD_hs3")
        p("s_sub_u32 s29, s29, 1"); p("s_cmp_lg_u32 s29, 0"); p("s_cbranch_scc1 POLL_hs3")
        p.label("POLLD_hs3")
    else: poll(p,'s3',SRD_WS,'s30','v12',1,13)
    stamp(p,'D S3 done',vt=12)
    srd(p,24,P_WD,1376*1024)
    p("s_lshr_b32 s79, s2, 3"); p("s_lshl_b32 s79, s79, 2"); p("s_add_u32 s79, s79, s6"); p("s_mul_i32 s79, s79, 11008")
    p("v_lshlrev_b32 v14, 6, v0")
    vm=VM(p)
    p("s_lshl_b32 s30, s70, 15"); p(f"s_add_u32 s30, s30, {L.HF}")
    def ldB(s):
        p(f"s_add_u32 s3, s30, {s*1024}")
        vm.issue(('B',s),f"buffer_load_dwordx4 v[{128+4*s}:{131+4*s}], v9, {SRD_WS}, s3 offen{HL1}")
    p("s_lshl_b32 s31, s70, 12"); p(f"s_add_u32 s31, s31, {L.HS}")
    PN='pnorm' in OPT
    ldB(0)
    if not PN and not HSF:
        for i in range(8): vm.issue(('S',i),f"buffer_load_dwordx2 v[{32+2*i}:{33+2*i}], v30, {SRD_WS}, s31 offen offset:{i*256}{HL1}")
    LA=int(os.environ.get('LA1','8'))
    for s in range(1,LA): ldB(s)
    NEW='w1late' in OPT
    if not NEW: p("s_barrier")
    AB=[0,24]
    def rdA(s):
        q,ss=divmod(s,4); b=AB[s%2]; out=[]
        for uu in range(6):
            va='v10' if uu<5 else 'v11'
            off=ss*3072+uu*32
            out.append(f"ds_read_b64_tr_b16 a[{b+4*uu}:{b+4*uu+1}], {va} offset:{off}")
            out.append(f"ds_read_b64_tr_b16 a[{b+4*uu+2}:{b+4*uu+3}], {va} offset:{off+768}")
        return out
    def setbase(q):
        slot=q%6
        return [f"v_add_u32 v10, {slot*SLOT}, v28", f"v_add_u32 v11, {slot*SLOT}, v29"]
    for x in setbase(0): p(x)
    for x in rdA(0): p(x)
    if not PN:
        if not HSF: vm.wait(('S',7))
        ln_stats(p,32)
    def norm(s):
        out=[]
        if PN: return out
        if 'pknorm' in OPT:
            for i in range(4):
                r=128+4*s+i; t0=20+2*i; t1=21+2*i
                out.append(f"v_lshlrev_b32 v{t0}, 16, v{r}"); out.append(f"v_and_b32 v{t1}, 0xffff0000, v{r}")
            for i in range(4):
                t0=20+2*i
                out.append(f"v_pk_fma_f32 v[{t0}:{t0+1}], v[{t0}:{t0+1}], v[16:17], v[18:19]")
            for i in range(4):
                r=128+4*s+i; t0=20+2*i; t1=21+2*i
                out.append(f"v_cvt_pk_bf16_f32 v{r}, v{t0}, v{t1}")
            return out
        for h2 in range(2):
            for i in (2*h2,2*h2+1):
                r=128+4*s+i; t0=20+2*i; t1=21+2*i
                out.append(f"v_lshlrev_b32 v{t0}, 16, v{r}"); out.append(f"v_and_b32 v{t1}, 0xffff0000, v{r}")
            for i in (2*h2,2*h2+1):
                t0=20+2*i; t1=21+2*i
                out.append(f"v_fma_f32 v{t0}, v{t0}, v16, v18"); out.append(f"v_fma_f32 v{t1}, v{t1}, v16, v18")
            for i in (2*h2,2*h2+1):
                r=128+4*s+i; t0=20+2*i; t1=21+2*i
                out.append(f"v_cvt_pk_bf16_f32 v{r}, v{t0}, v{t1}")
        return out
    vm.wait(('B',0))
    for x in norm(0): p(x)
    stamp(p,'D start',vt=12)
    ACC=[32+16*u for u in range(6)]
    dmas=w1_dma(6)+w1_dma(7)
    DS={}; BAR={}
    def wd_group(g0,vb=4):
        out=[]
        for j in range(4):
            g=[]
            if j==0 or 'w1wait' in OPT: g.append(('s',f"s_add_u32 m0, s74, {g0*4096}"))
            if j==0:
                g.append(('s',f"s_add_u32 s76, s77, {(g0//20)*43*16*1024+(g0%20)*32768}"))
            g.append(('m',('WD',g0,j),f"buffer_load_dwordx4 v{vb+j}, {SRD_O}, s76 offen offset:{j*1024}{' nt' if 'ntwd' in OPT else ''} lds"))
            out.append(g)
        return out
    WDPF='wdpf' in OPT
    if NEW:
        def put(items,s0,per):
            for n,g in enumerate(items): DS.setdefault(s0+n//per,[]).append(g)
        SWS=15
        if 'w1wait' in OPT:
            assert WDPF and PN
            WW=os.environ.get('WW','3,4,5').split(',')
            late=[q for q in (3,4,5) if str(q) not in WW]
            put(sum((w1_dma(q) for q in late),[]),0,2)
            put(w1_dma(6),8,1); put(w1_dma(7),14,1)
            BAR={8:[('W1',q,5) for q in late],20:[('W1',6,5)]}
            SWS=19
            p("v_mov_b32 v20, v1")
            for j in range(1,4): p(f"v_add_u32 v{20+j}, {7168*j}, v1")
            put(wd_group(36,20),int(os.environ.get('RA0','2')),1)
        else:
            put(w1_dma(3),0,2); put(w1_dma(4)+w1_dma(5),3,2); put(dmas,9,2)
            BAR={8:[('W1',3,5)],14:[('W1',5,5)],20:[('W1',7,5)]}
        if WDPF:
            if 'w1wait' not in OPT: put(wd_group(36),16,1)
            put(sum((wd_group(g) for g in (12,16,20,24)),[]),20,2)
            put(sum((wd_group(g) for g in (28,32)),[]),28,2)
            BAR[24]=[('W1',7,5)] if 'w1wait' in OPT else []
    if 'x_nods' in OPT:
        DS={}; BAR={k:[] for k in BAR}
    if 'x_nods2' in OPT:
        DS={k:v for k,v in DS.items() if k<15};
    DPL=tuple(int(x) for x in os.environ.get('DPL','3,5,4').split(','))
    SKP={int(x):n for n,x in enumerate(os.environ.get('SKP','0,1,2,3').split(','))}
    if 'skew0' in OPT: BAR[int(os.environ.get('SK0','1'))]=[]
    def f1loop(NU,vm):
      H=NU//2
      def ldB(s):
          if 'x_nob' in OPT:
              vm.pos[('B',s)]=vm.pos[('B',0)]; return
          p(f"s_add_u32 s3, s30, {s*1024}")
          vm.issue(('B',s),f"buffer_load_dwordx4 v[{128+4*s}:{131+4*s}], v9, {SRD_WS}, s3 offen{HL1}")
      for s in range(32):
          nxt=s+1
          pre=[]; rd=[]; fill=[]; mem=[]
          SKEW='skew' in OPT
          if NEW:
              if s in BAR and not SKEW:
                  if BAR[s]: vm.wait(*BAR[s])
                  p("s_barrier")
          elif s==8:
              p("s_barrier")
          if B2:
              for j in (LA+2*s,LA+2*s+1):
                  if j<32: mem.append(('B',j))
          elif s+LA<32: mem.append(('B',s+LA))
          if not NEW and 8<=s<20: mem.append(('D',s-8))
          if 'warm' in OPT and 'wdatt' not in OPT and WD_STEP<=s<WD_STEP+3: mem.append(('W',s-WD_STEP))
          if 'pt' in OPT and s==PT_STEP: mem.append(('P',0))
          if 'ptout' in OPT and s==int(os.environ.get('PTO_STEP','29')): mem.append(('O',0))
          if nxt<32:
              qn,ssn=divmod(nxt,4)
              if nxt==24 and not NEW:
                  vm.wait(('W1',7,5))
                  p("s_barrier")
              if ssn==0: pre=setbase(qn)
              rd=rdA(nxt)[:2*NU]; fill=norm(nxt)
          if 'x_nofill' in OPT: fill=[]
          if 'x_nord' in OPT: rd=[]
          if 'x_nodma' in OPT and s!=19: mem=[m for m in mem if m[0]!='D']
          if 'x_nodma' in OPT and s==19: mem=[('B',s+LA)]; vm.pos[('W1',7,5)]=vm.n-1
          if 'oldwait' in OPT: p("s_waitcnt lgkmcnt(0)")
          for x in pre: p(x)
          if PN: vm.wait(('B',s))
          elif nxt<32: vm.wait(('B',nxt))
          b=AB[s%2]
          mf=[f"v_mfma_f32_32x32x16_bf16 v[{ACC[uu]}:{ACC[uu]+15}], a[{b+4*uu}:{b+4*uu+3}], v[{128+4*s}:{131+4*s}], {'0' if s==0 else f'v[{ACC[uu]}:{ACC[uu]+15}]'}" for uu in range(NU)]
          fi=0
          KS=[3,3,3,3,2,2] if 'pknorm' in OPT else ([3,4,3,3,4,3] if NU==6 else [5,5,5,5])
          for uu in range(NU):
              if 'oldwait' not in OPT:
                  if 'wait6' in OPT: p(f"s_waitcnt lgkmcnt({10 if nxt<32 else 2*(5-uu)})")
                  elif uu in (0,H): p(f"s_waitcnt lgkmcnt({2*H if (nxt<32 or uu==0) else 0})")
              p(mf[uu])
              for x in rd[2*uu:2*uu+2]: p(x)
              k=KS[uu]
              for x in fill[fi:fi+k]: p(x)
              fi+=k
              if NEW and SKEW and s in BAR and uu in SKP:
                  lab=f"SKW_{s}_{uu}"
                  p(f"s_cmp_lg_u32 s6, {SKP[uu]}"); p(f"s_cbranch_scc1 {lab}")
                  if BAR[s]: vm.wait(*BAR[s])
                  p("s_barrier")
                  p.label(lab)
              if uu==1 and mem and mem[0][0]=='B': ldB(mem[0][1])
              if NEW:
                  for n,g in enumerate(DS.get(s,[])):
                      if (DPL if NU==6 else (2,3,3))[n]==uu: emit_group(p,vm,g)
                  if WDPF and s==SWS and uu==NU-1:
                      p("v_mov_b32 v4, v1")
                      for j in range(1,4): p(f"v_add_u32 v{4+j}, {7168*j}, v1")
              if uu==4 and len(mem)>1 and mem[1][0]=='B': ldB(mem[1][1])
              if uu==3:
                  for m in mem:
                      if m[0]=='D':
                          emit_group(p,vm,dmas[m[1]])
                      if m[0]=='P':
                          p("s_mul_i32 s3, s70, 86"); p("s_add_u32 s3, s3, s66"); p("s_lshl_b32 s3, s3, 10"); p(f"s_add_u32 s3, s3, {L.AF}")
                          p("v_lshlrev_b32 v13, 7, v0"); p("s_lshl_b32 s7, s67, 3"); p("s_bfm_b64 exec, s7, 0")
                          vm.issue(('P',0),f"buffer_load_dword v15, v13, {SRD_WS}, s3 offen ; nowaitcheck")
                          p("s_mov_b64 exec, -1")
                      if m[0]=='O':
                          srd(p,16,P_OUT,2048*1024)
                          p("s_lshl_b32 s3, s62, 6")
                          vm.issue(('O',0),f"buffer_load_dword v15, v8, {SRD_A}, s3 offen ; nowaitcheck")
                      if m[0]=='W':
                          p(f"s_add_u32 s3, s79, {m[1]*4096}")
                          vm.issue(('W',m[1]),f"buffer_load_dword v15, v14, {SRD_O}, s3 offen ; nowaitcheck")
          for x in fill[fi:]: p(x)
    if 'four' in OPT:
        import copy
        vm4=copy.copy(vm); vm4.pos=dict(vm.pos)
        p("s_cmp_eq_u32 s67, 4"); p("s_cbranch_scc1 F1L_4")
        f1loop(6,vm)
        p("s_branch F1L_end")
        p.label("F1L_4")
        f1loop(4,vm4)
        p.label("F1L_end")
    else: f1loop(6,vm)
    stamp(p,'D mfma done',vt=12)
    if NEW and WDPF:
        WD=[[x[1] if x[0]=='s' else x[2] for x in g] for g0 in (0,4,8) for g in wd_group(g0)]
    else:
        p("v_lshrrev_b32 v1, 3, v0"); p("v_and_b32 v10, 7, v0")
        w128_voff(p,'v4')
        for j in range(1,4): p(f"v_add_u32 v{4+j}, {7168*j}, v4")
        p("s_lshr_b32 s3, s6, 1"); p("s_and_b32 s7, s6, 1")
        p(f"s_mul_i32 s30, s3, 81920"); p(f"s_mul_i32 s31, s7, 40960"); p("s_add_u32 s74, s30, s31")
        p(f"s_mul_i32 s75, s3, {43*16*1024}"); p(f"s_mul_i32 s31, s7, {320*1024}"); p("s_add_u32 s77, s31, s75")
        WD=dma128(['v4','v5','v6','v7'],SRD_O,'s74',0,'s77',40,sg='s71')
    p("s_barrier")
    c1=-2*1.4426950408889634*0.7978845608028654; c2=c1*0.044715
    p(f"s_mov_b32 s72, {hx(f2u(c2))}"); p("s_mov_b32 s73, s72")
    p(f"v_mov_b32 v28, {hx(f2u(c1))}"); p("v_mov_b32 v29, v28")
    p("v_mov_b32 v30, 1.0"); p("v_mov_b32 v31, 1.0")
    p("s_mul_i32 s30, s70, 86"); p("s_add_u32 s30, s30, s66"); p("s_lshl_b32 s30, s30, 10"); p(f"s_add_u32 s30, s30, {L.AF}")
    NDU=[8,8,8,8,4,4]
    if NEW and WDPF: NDU=[int(x) for x in os.environ.get('NDU','3,3,3,3,0,0').split(',')]
    k0=0
    for uu in range(6):
        a=ACC[uu]; T=16
        if uu==4:
            p("s_cmp_eq_u32 s67, 4"); p("s_cbranch_scc1 F1_four")
        pr=lambda x,j: f"v[{x+2*j}:{x+2*j+1}]"
        I=[]
        for j in range(4): I.append(f"v_pk_mul_f32 {pr(T,j)}, {pr(a,j)}, {pr(a,j)}")
        for j in range(4): I.append(f"v_pk_fma_f32 {pr(T,j)}, {pr(T,j)}, s[72:73], v[28:29]")
        for j in range(4): I.append(f"v_pk_mul_f32 {pr(T,j)}, {pr(T,j)}, {pr(a,j)}")
        for j in range(8): I.append(f"v_exp_f32 v{T+j}, v{T+j}")
        for j in range(4): I.append(f"v_pk_mul_f32 {pr(a,j)}, {pr(a,j)}, {pr(a+8,j)}")
        for j in range(4): I.append(f"v_pk_add_f32 {pr(T,j)}, {pr(T,j)}, v[30:31]")
        for j in range(8): I.append(f"v_rcp_f32 v{T+j}, v{T+j}")
        for j in range(4): I.append(f"v_pk_mul_f32 {pr(T,j)}, {pr(T,j)}, {pr(a,j)}")
        for j in range(4): I.append(f"v_cvt_pk_bf16_f32 v{24+j}, v{T+2*j}, v{T+2*j+1}")
        G=WD[k0:k0+NDU[uu]]; k0+=NDU[uu]
        gap=len(I)//max(len(G),1)
        for n,x in enumerate(I):
            p(x)
            if n%gap==gap-1 and G:
                for y in G.pop(0): p(y)
        assert not G
        hstore(p,f"buffer_store_dwordx4 v[24:27], v9, {SRD_WS}, s30 offen offset:{(uu%4)*1024}")
        if uu==3: p("s_add_u32 s30, s30, 4096")
    p("s_branch F1_done")
    p.label("F1_four")
    for g in WD[sum(NDU[:4]):]:
        for y in g: p(y)
    p.label("F1_done")
    stamp(p,'D epi done',vt=12)

def ffn2_phase(p):
    flag_off(p,F4)
    p("s_waitcnt vmcnt(0)")
    set_flag(p,'s3',12)
    stamp(p,'E flag set',vt=12)
    srd(p,16,P_WD,1376*1024)
    srd(p,24,P_OUT,2048*1024)
    lane_params(p)
    p("s_and_b32 s3, s6, 1"); p("s_lshl_b32 s3, s3, 2")
    tr_base128(p,'v10',"s3",0)
    p("s_and_b32 s3, s6, 1"); p("s_mul_i32 s3, s3, 81920")
    p("v_add_u32 v10, s3, v10")
    p("v_xor_b32 v11, 64, v10")
    p("v_add_u32 v14, 49152, v10"); p("v_add_u32 v15, 49152, v11")
    p("s_barrier")
    AB=[16+8*b for b in range(4)]
    ACC=[64,80]; NS=43
    def rd(i,ccs=(0,1)):
        b=AB[i%4]
        j=i if i<40 else i-40
        off=j*2048
        va=('v10','v11')
        if 24<=i<40: va=('v14','v15'); off-=49152
        for cc in ccs:
            p(f"ds_read_b64_tr_b16 v[{b+4*cc}:{b+4*cc+1}], {va[cc]} offset:{off}")
            p(f"ds_read_b64_tr_b16 v[{b+4*cc+2}:{b+4*cc+3}], {va[cc]} offset:{off+512}")
    for i in range(3): rd(i)
    p("s_and_b32 s7, s6, 1"); p("s_mul_i32 s3, s7, 3")
    p("s_lshl_b32 s76, s3, 13"); p("s_add_u32 s76, s76, s75"); p(f"s_add_u32 s76, s76, {40*16*1024}")
    p("s_lshl_b32 s77, s3, 10"); p("s_lshr_b32 s3, s6, 1"); p("s_mul_i32 s3, s3, 81920"); p("s_add_u32 s77, s77, s3")
    p("s_mul_i32 s31, s61, 86"); p("s_and_b32 s3, s6, 1"); p("s_mul_i32 s3, s3, 43"); p("s_add_u32 s31, s31, s3")
    p("s_lshl_b32 s31, s31, 10"); p(f"s_add_u32 s31, s31, {L.AF}")
    p("v_lshlrev_b32 v12, 2, v0")
    p("s_lshr_b32 s30, s4, 1"); p("s_lshl_b32 s30, s30, 8"); p(f"s_add_u32 s30, s30, {F4}")
    poll(p,'s4',SRD_WS,'s30','v12',1,13)
    stamp(p,'E S4 done',vt=100)
    if 'wbl2' in OPT:
        p("s_cmp_lg_u32 s6, 3"); p("s_cbranch_scc1 E_nowb"); p("s_cmp_lg_u32 s5, 0"); p("s_cbranch_scc1 E_nowb")
        p("buffer_wbl2 sc1")
        p.label("E_nowb")
    vm=VM(p)
    def ldB(i):
        if i%4==0 and i: p(f"s_add_u32 s31, s31, 4096")
        vm.issue(('B',i),f"buffer_load_dwordx4 a[{4*i}:{4*i+3}], v9, {SRD_WS}, s31 offen offset:{(i%4)*1024}{HL1}")
    LA=int(os.environ.get('LA2','8'))
    for i in range(LA): ldB(i)
    for i in range(NS):
        if i==4:
            p("s_barrier")
            for j in range(3):
                p(f"s_add_u32 m0, s77, {j*1024}"); p(f"s_add_u32 s3, s76, {j*8192}")
                vm.issue(('D',j),f"buffer_load_dwordx4 v4, {SRD_A}, s3 offen lds")
        if i==36:
            vm.wait(('D',2))
            p("s_barrier")
        rem=min(2,NS-1-i)
        vm.wait(('B',i),extra=f" lgkmcnt({rem*4})")
        b=AB[i%4]
        for cc in range(2):
            a=ACC[cc]
            p(f"v_mfma_f32_32x32x16_bf16 v[{a}:{a+15}], v[{b+4*cc}:{b+4*cc+3}], a[{4*i}:{4*i+3}], {'0' if i==0 else f'v[{a}:{a+15}]'}")
            if cc==0 and i+LA<NS: ldB(i+LA)
            if i+3<NS: rd(i+3,(cc,))
    stamp(p,'E mfma',vt=12)
    pair_reduce(p,ACC,8192)
    for j in range(8): p(f"v_accvgpr_read_b32 v{32+j}, a{248+j}")
    for j in range(8):
        p(f"v_lshlrev_b32 v{96+2*j}, 16, v{32+j}")
        p(f"v_and_b32 v{97+2*j}, 0xffff0000, v{32+j}")
    for j in range(8): p(f"v_pk_add_f32 v[{64+2*j}:{65+2*j}], v[{64+2*j}:{65+2*j}], v[{96+2*j}:{97+2*j}]")
    for j in range(8): p(f"v_cvt_pk_bf16_f32 v{32+j}, v{64+2*j}, v{65+2*j}")
    p("s_lshl_b32 s3, s62, 6")
    OF_=os.environ.get('OUTF','').replace('_',' ')
    if 'x_outfull' in OPT:
        p("v_lshrrev_b32 v8, 3, v0"); p("v_lshlrev_b32 v8, 10, v8"); p("v_and_b32 v13, 7, v0"); p("v_lshl_add_u32 v8, v13, 4, v8")
        p("s_lshl_b32 s3, s61, 15"); p("s_and_b32 s7, s6, 1"); p("s_lshl_b32 s7, s7, 14"); p("s_add_u32 s3, s3, s7"); p("s_lshl_b32 s7, s5, 7"); p("s_add_u32 s3, s3, s7")
        p(f"buffer_store_dwordx4 v[32:35], v8, {SRD_O}, s3 offen {OF_}")
        p("s_add_u32 s3, s3, 8192")
        p(f"buffer_store_dwordx4 v[36:39], v8, {SRD_O}, s3 offen {OF_}")
        return
    p(f"buffer_store_dwordx4 v[32:35], v8, {SRD_O}, s3 offen {OF_}")
    p(f"buffer_store_dwordx4 v[36:39], v8, {SRD_O}, s3 offen offset:32 {OF_}")

def build(fname):
    p=Prog()
    end="END_K"
    prologue(p,end)
    stamp(p,'start')
    phase_a(p)
    attention(p)
    wo_phase(p)
    ffn1_phase(p)
    ffn2_phase(p)
    stamp(p,'end',vt=12)
    p.label(end)
    p("s_endpgm")
    attention_slow(p)
    emit_outl(p)
    ins=p.finalize(name='k',check_waits=not os.environ.get('NOCHECK'))
    print(f"{len(ins)} lines, {p.nops} hazard nops",file=sys.stderr)
    ref=open('sequential_preLN__grouped_kv_mqa__geglu_ffn__prompt.s.ref').read()
    hdr=ref.split('; Override')[0]
    out=hdr+f"; @launch grid=(256,1,1) block=(256,1,1) lds={LDS_TOTAL}\n"
    out+='.amdgcn_target "amdgcn-amd-amdhsa--gfx950"\n.text\n'
    out+=f".globl {KNAME}\n.p2align 8\n.type {KNAME},@function\n{KNAME}:\n"+render(ins)
    out+=f""".section .rodata,"a"
.p2align 6
.amdhsa_kernel {KNAME}
  .amdhsa_next_free_vgpr 512
  .amdhsa_next_free_sgpr 96
  .amdhsa_accum_offset 256
  .amdhsa_group_segment_fixed_size 0
  .amdhsa_kernarg_size 96
  .amdhsa_user_sgpr_count 2
  .amdhsa_user_sgpr_kernarg_segment_ptr 1
  .amdhsa_system_sgpr_workgroup_id_x 1
.end_amdhsa_kernel
"""
    open(fname,'w').write(out)

if __name__=='__main__':
    out=sys.argv[1]
    if len(sys.argv)>2: PROFILE=True
    build(out)
    open(out+'.stamps','w').write('\n'.join(STAMPS))
    if DSTAMPS: print(DSTAMPS)
```

```python
import sys, os, struct
from asm import Prog, render
import layout as L

OPT=set(x for x in os.environ.get('OPT','').split(',') if x)
KNAME='sequential_preLN__grouped_kv_mqa__geglu_ffn__prompt_kernel'
QSCALE=1.4426950408889634/4.0
def f2u(x): return struct.unpack('<I',struct.pack('<f',x))[0]
def hx(x): return '0x%08x'%(x & 0xffffffff)

SRD_WS='s[8:11]'; SRD_X='s[12:15]'; SRD_A='s[16:19]'; SRD_B='s[20:23]'; SRD_O='s[24:27]'; SRD_D='s[56:59]'
P_X,P_WQ,P_WK,P_WV,P_WO,P_WG,P_WU,P_WD,P_OUT,P_WS,P_DBG=32,34,36,38,40,44,46,48,50,52,54
SPIN=1<<17

XH0=0; XH1=33792; WQ=67584; WK=XH1; WV=XH1+16384+128
WO_L=0; OP=73728; QL=147456; MX=155648; MF=MX+4096; QM=161792
SLOT=24576; RED=147456
LDS_TOTAL=163840
F2=L.FLG; F3=L.FLG+4096; F4=L.FLG+8192; FX=L.FLG+12288

def srd(p, d, ptr, size):
    p(f"s_mov_b32 s{d}, s{ptr}")
    p(f"s_mov_b32 s{d+1}, s{ptr+1}")
    p(f"s_mov_b32 s{d+2}, {hx(size)}")
    p(f"s_mov_b32 s{d+3}, 0x20000")
def csel(p,d,a,b):
    p(f"s_mov_b32 {d}, {b}"); p(f"s_cmov_b32 {d}, {a}")

PROFILE=False
HL1=' nt' if 'ldnt' in OPT else ('' if 'ldpl' in OPT else (' sc0' if 'ldsc0' in OPT else ' sc1'))
HS1='' if 'l2h' in OPT else ' sc1'
PF_N=int(os.environ.get('PF_N','3'))
PT_STEP=int(os.environ.get('PT_STEP','24'))
FLG_CLR=208
WD_STEP=int(os.environ.get('WD_STEP','24'))
B2='b2' in OPT
PF2_T=int(os.environ.get('PF2_T','8'))
GO_STEP=int(os.environ.get('GO_STEP','7'))
STAMPS=[]
DSTAMPS=[]
def dstamp(p,name,vt):
    slot=len(DSTAMPS)
    if slot>=16: return
    DSTAMPS.append(name)
    lab=f"DST_{slot}_{len(p.lines)}"
    p("s_lshl_b32 s90, s2, 2"); p("s_or_b32 s90, s90, s6")
    p(f"s_cmp_lg_u32 s90, {int(os.environ.get('DWG','40'))*4}"); p(f"s_cbranch_scc1 {lab}")
    p("s_memrealtime s[90:91]")
    p("s_waitcnt lgkmcnt(0) ; nowaitcheck")
    p(f"v_mov_b32 v{vt}, s90"); p(f"v_mov_b32 v{vt+1}, {slot*4}")
    p("s_mov_b64 s[94:95], exec"); p("s_mov_b64 exec, 1")
    p(f"buffer_store_dword v{vt}, v{vt+1}, {SRD_D}, 0 offen")
    p("s_mov_b64 exec, s[94:95]")
    p.label(lab)
DSEL=os.environ.get('DSEL','').split(',')
def stamp(p, name, vt=250, dyn=None, n=1):
    if name in DSEL: dstamp(p,name,vt)
    if not PROFILE: return
    slot=len(STAMPS)
    for i in range(n): STAMPS.append(name+(f"[{i}]" if n>1 else ""))
    lab=f"ST_{slot}_{len(p.lines)}"
    p("s_cmp_lg_u32 s6, 0"); p(f"s_cbranch_scc1 {lab}")
    p("s_memrealtime s[90:91]")
    p("s_memtime s[88:89]")
    p("s_lshl_b32 s92, s2, 3"); p(f"s_add_u32 s92, s92, {L.PROF+slot*2048}")
    if dyn: p(f"s_lshl_b32 s93, {dyn}, 11"); p("s_add_u32 s92, s92, s93")
    p("s_waitcnt lgkmcnt(0) ; nowaitcheck")
    p(f"v_mov_b32 v{vt}, s90"); p(f"v_mov_b32 v{vt+1}, s88"); p(f"v_mov_b32 v{vt+2}, 0")
    p("s_mov_b64 s[94:95], exec"); p("s_mov_b64 exec, 1")
    p(f"buffer_store_dwordx2 v[{vt}:{vt+1}], v{vt+2}, {SRD_WS}, s92 offen")
    p("s_mov_b64 exec, s[94:95]")
    p.label(lab)

class VM:
    def __init__(s,p): s.p=p; s.n=0; s.pos={}
    def issue(s,key,txt):
        s.p(txt); s.pos[key]=s.n; s.n+=1
    def wait(s,*keys,extra=""):
        need=max(s.pos[k] for k in keys)
        c=s.n-1-need
        if c<=63: s.p(f"s_waitcnt vmcnt({c}){extra}")
        elif extra: s.p(f"s_waitcnt{extra}")

def poll(p, name, srd_, soff, vaddr, expect, vt, sleep=0):
    if PROFILE:
        p("s_waitcnt vmcnt(0)")
        stamp(p,name+' own dma',vt={'s1':200,'s4':100}.get(name,14))
    p(f"s_mov_b32 s29, {SPIN}")
    p.label(f"POLL_{name}")
    p(f"buffer_load_dword v{vt}, {vaddr}, {srd_}, {soff} offen sc1")
    p("s_waitcnt vmcnt(0)")
    p(f"v_cmp_ne_u32 vcc, {expect}, v{vt}")
    p("s_cmp_eq_u64 vcc, 0")
    p(f"s_cbranch_scc1 POLLD_{name}")
    if sleep: p(f"s_sleep {sleep}")
    p("s_sub_u32 s29, s29, 1")
    p("s_cmp_lg_u32 s29, 0")
    p(f"s_cbranch_scc1 POLL_{name}")
    p.label(f"POLLD_{name}")

OUTL=[]
def hstore(p, lines):
    if isinstance(lines,str): lines=[lines]
    if 'xcc' not in OPT:
        for x in lines: p(x+HS1)
        return
    k=len(OUTL)
    p("s_cmp_lg_u32 s43, 0"); p(f"s_cbranch_scc1 HST_{k}")
    for x in lines: p(x)
    p.label(f"HSB_{k}")
    OUTL.append((k,[x+' sc1' for x in lines]))
def emit_outl(p):
    for k,lines in OUTL:
        p.label(f"HST_{k}")
        for x in lines: p(x)
        p(f"s_branch HSB_{k}")

def set_flag(p, soff, vt):
    p(f"v_mov_b32 v{vt}, 1"); p(f"v_mov_b32 v{vt+1}, 0")
    p("s_mov_b64 exec, 1")
    hstore(p,f"buffer_store_dword v{vt}, v{vt+1}, {SRD_WS}, {soff} offen")
    p("s_mov_b64 exec, -1")

def prologue(p, end):
    p(f"s_cmp_ge_u32 s2, {0 if 'empty' in OPT else 256}")
    p(f"s_cbranch_scc1 {end}")
    p("s_load_dwordx4 s[32:35], s[0:1], 0")
    p("s_load_dwordx4 s[36:39], s[0:1], 16")
    p("s_load_dwordx2 s[40:41], s[0:1], 32")
    p("s_load_dwordx4 s[44:47], s[0:1], 48")
    p("s_load_dwordx4 s[48:51], s[0:1], 64")
    p("s_load_dwordx2 s[52:53], s[0:1], 88")
    p("s_load_dwordx2 s[54:55], s[0:1], 80")
    p("v_lshrrev_b32 v1, 6, v0")
    p("v_and_b32 v0, 63, v0")
    p("v_readfirstlane_b32 s6, v1")
    p("s_and_b32 s3, s2, 7")
    p("s_lshr_b32 s7, s2, 3")
    p("s_lshr_b32 s4, s7, 3")
    p("s_lshl_b32 s3, s3, 2")
    p("s_add_u32 s4, s4, s3")
    p("s_and_b32 s5, s7, 7")
    p("v_lshlrev_b32 v9, 4, v0")
    if 'codepf' in OPT:
        p("s_getpc_b64 s[60:61]")
        p.label("PF_HERE")
        p("s_lshl_b32 s3, s7, 2"); p("s_add_u32 s3, s3, s6"); p("s_lshl_b32 s3, s3, 9")
        p("v_and_b32 v231, 7, v0"); p("v_lshlrev_b32 v231, 6, v231")
        p("v_add_u32 v231, s3, v231")
        p(f"v_min_u32 v230, END_K-PF_HERE-4, v231")
        p("s_mov_b64 exec, 0xff")
        p(f"global_load_dword v232, v230, s[60:61] ; nowaitcheck")
        p("s_mov_b64 exec, -1")
    p("s_waitcnt lgkmcnt(0)")
    srd(p,8,P_WS,L.WS_USED)
    srd(p,56,P_DBG,256)

def ln_tile(p, X, vaddr, off, extra=None, write=True):
    U=176
    S,S2,Q,Q2=80,82,84,86
    I=[]
    a=I.append
    pr=lambda r: f"v[{r}:{r+1}]"
    for i in range(32):
        a(f"v_lshlrev_b32 v{U+2*i}, 16, v{X+i}")
        a(f"v_and_b32 v{U+2*i+1}, 0xffff0000, v{X+i}")
        if i>=1:
            k=i-1; u=U+2*k; sa=(S,S2)[k%2]; qa=(Q,Q2)[k%2]
            if k<2: a(f"v_pk_mul_f32 {pr(qa)}, {pr(u)}, {pr(u)}")
            else: a(f"v_pk_fma_f32 {pr(qa)}, {pr(u)}, {pr(u)}, {pr(qa)}")
            if k==2 or k==3: a(f"v_pk_add_f32 {pr(sa)}, {pr(U+2*(k-2))}, {pr(u)}")
            elif k>3: a(f"v_pk_add_f32 {pr(sa)}, {pr(sa)}, {pr(u)}")
    u=U+62
    a(f"v_pk_fma_f32 {pr(Q2)}, {pr(u)}, {pr(u)}, {pr(Q2)}")
    a(f"v_pk_add_f32 {pr(S2)}, {pr(S2)}, {pr(u)}")
    a(f"v_pk_add_f32 {pr(S)}, {pr(S)}, {pr(S2)}")
    a(f"v_pk_add_f32 {pr(Q)}, {pr(Q)}, {pr(Q2)}")
    S0,Q0='v80','v82'
    a(f"v_add_f32 v80, v80, v81")
    a(f"v_add_f32 v82, v84, v85")
    for d in ("quad_perm:[1,0,3,2]","quad_perm:[2,3,0,1]","row_half_mirror"):
        a(f"v_add_f32_dpp {S0}, {S0}, {S0} {d} row_mask:0xf bank_mask:0xf")
        a(f"v_add_f32_dpp {Q0}, {Q0}, {Q0} {d} row_mask:0xf bank_mask:0xf")
    a(f"v_mul_f32 {S0}, {hx(f2u(1/512))}, {S0}")
    a(f"v_mul_f32 {Q0}, {hx(f2u(1/512))}, {Q0}")
    a(f"v_fma_f32 {Q0}, -{S0}, {S0}, {Q0}")
    a(f"v_max_f32 {Q0}, 0, {Q0}")
    a(f"v_add_f32 {Q0}, {hx(f2u(1e-5))}, {Q0}")
    a(f"v_rsq_f32 v92, {Q0}")
    a(f"v_sub_f32 v94, 0, {S0}")
    a(f"v_mov_b32 v93, v92")
    a(f"v_mul_f32 v94, v94, v92")
    a(f"v_mov_b32 v95, v94")
    for cb in range(8):
        for i in range(4):
            u=U+2*(4*cb+i)
            a(f"v_pk_fma_f32 {pr(u)}, {pr(u)}, v[92:93], v[94:95]")
        for i in range(4):
            u=U+2*(4*cb+i)
            a(f"v_cvt_pk_bf16_f32 v{X+4*cb+i}, v{u}, v{u+1}")
        if write: a(f"ds_write_b128 {vaddr}, v[{X+4*cb}:{X+4*cb+3}] offset:{off+cb*4224}")
    extra=list(extra or [])
    gap=max(1,(len(I)-8)//max(1,len(extra))) if extra else 0
    for n,x in enumerate(I):
        p(x)
        if extra and n%gap==gap-1:
            for y in extra.pop(0): p(y)
    for g in extra:
        for y in g: p(y)
def ln_write(p, X, vaddr, off):
    for cb in range(8): p(f"ds_write_b128 {vaddr}, v[{X+4*cb}:{X+4*cb+3}] offset:{off+cb*4224}")

def dma128(vregs, srd_, sbase_lds, lds_off, sbase_g, n, sg='s31', nt=''):
    out=[]
    for i in range(n):
        j=i%4; g=[]
        if j==0:
            g.append(f"s_add_u32 m0, {sbase_lds}, {lds_off+i*1024}")
            g.append(f"s_add_u32 {sg}, {sbase_g}, {i*8192}")
        g.append(f"buffer_load_dwordx4 {vregs[j]}, {srd_}, {sg} offen offset:{j*1024}{nt} lds")
        out.append(g)
    return out

def gemm_lds(p, nsteps, readA, readB, mfma, rps, depth=3, nbuf=4, fill=None, hook=None):
    fill=list(fill or []); hook=hook or {}
    for s in range(min(depth,nsteps)):
        readA(s,s%nbuf); readB(s,s%nbuf)
    for s in range(nsteps):
        if s+depth<nsteps:
            readA(s+depth,(s+depth)%nbuf); readB(s+depth,(s+depth)%nbuf)
        rem=min(depth,nsteps-1-s)
        p(f"s_waitcnt lgkmcnt({rem*rps})")
        mfma(s,s%nbuf)
        if s in hook: hook[s]()
        for _ in range(2):
            if fill: p(fill.pop(0))
    for x in fill: p(x)

def tr_base128(p, dst, cbit_sgpr, base, t=97):
    a=f"v{t}"; b=f"v{t+1}"
    p(f"v_and_b32 {a}, 1, v13")
    p(f"v_lshl_add_u32 {a}, v15, 1, {a}")
    if cbit_sgpr: p(f"v_add_u32 {a}, {cbit_sgpr}, {a}")
    p(f"v_lshrrev_b32 {b}, 1, v12")
    p(f"v_lshlrev_b32 {b}, 2, {b}")
    p(f"v_xor_b32 {a}, {a}, {b}")
    p(f"v_lshlrev_b32 {a}, 4, {a}")
    p(f"v_lshrrev_b32 {b}, 1, v13")
    p(f"v_lshl_add_u32 {a}, {b}, 3, {a}")
    p(f"v_lshl_add_u32 {a}, v14, 7, {a}")
    p(f"v_add_u32 {dst}, {base}, {a}")

def lane_params(p):
    p("v_lshrrev_b32 v11, 4, v0")
    p("v_bfe_u32 v12, v0, 2, 2")
    p("v_and_b32 v13, 3, v0")
    p("v_lshrrev_b32 v14, 1, v11")
    p("v_lshl_add_u32 v14, v14, 3, v12")
    p("v_and_b32 v15, 1, v11")
    p("v_and_b32 v96, 1, v13")
    p("v_lshlrev_b32 v96, 4, v96")
    p("v_lshrrev_b32 v97, 1, v13")
    p("v_lshl_add_u32 v96, v97, 3, v96")

def w128_voff(p, dst):
    p("v_lshrrev_b32 v11, 4, v0")
    p("v_and_b32 v11, 1, v11")
    p("v_lshlrev_b32 v11, 2, v11")
    p("v_xor_b32 v11, v11, v10")
    p("v_lshlrev_b32 v11, 4, v11")
    p(f"v_lshl_add_u32 {dst}, v1, 10, v11")
    if 'x_wdx' in OPT and dst=='v1': p("s_xor_b32 s3, s5, 1"); p("s_lshl_b32 s3, s3, 7")
    else: p("s_lshl_b32 s3, s5, 7")
    p(f"v_add_u32 {dst}, s3, {dst}")

def hs_sentinel(p,w):
    if 'hsflag' not in OPT: return
    p("s_lshl_b32 s3, s60, 12"); p(f"s_add_u32 s3, s3, {L.HS+w*2048}")
    for i in range(4): p(f"v_mov_b32 v{120+i}, -1")
    p(f"buffer_store_dwordx4 v[120:123], v9, {SRD_WS}, s3 offen sc1")
    p(f"buffer_store_dwordx4 v[120:123], v9, {SRD_WS}, s3 offen offset:1024 sc1")

VA=64
def phase_a(p):
    p("s_mov_b32 s28, 0x3f803f80")
    srd(p,12,P_X,2048*1024)
    p("s_and_b32 s3, s5, 1")
    p("s_lshl_b32 s60, s4, 1")
    p("s_add_u32 s60, s60, s3")
    p("v_lshrrev_b32 v1, 3, v0")
    p("v_and_b32 v10, 7, v0")
    p("s_lshl_b32 s3, s60, 5")
    p("s_lshl_b32 s7, s6, 3")
    p("s_add_u32 s3, s3, s7")
    p("v_add_u32 v2, s3, v1")
    p("v_lshlrev_b32 v2, 10, v2")
    p("v_lshl_add_u32 v2, v10, 4, v2")
    p("v_xor_b32 v3, 0x8000, v2")
    for cb in range(8):
        p(f"buffer_load_dwordx4 v[{16+4*cb}:{19+4*cb}], v2, {SRD_X}, 0 offen offset:{cb*128}")
    srd(p,16,P_WQ,512*1024)
    w128_voff(p,'v4')
    p("v_lshrrev_b32 v11, 1, v10")
    p("v_mul_u32_u24 v11, 1056, v11")
    p("v_and_b32 v12, 1, v10")
    p("v_mul_u32_u24 v12, 528, v12")
    p("v_add_u32 v5, v11, v12")
    p("s_lshl_b32 s3, s6, 3")
    p("v_add_u32 v11, s3, v1")
    p("v_lshl_add_u32 v5, v11, 4, v5")
    p("v_lshrrev_b32 v11, 5, v0")
    p("v_mul_u32_u24 v11, 528, v11")
    p("v_and_b32 v12, 31, v0")
    p("v_lshl_add_u32 v6, v12, 4, v11")
    lane_params(p)
    p(f"v_mul_u32_u24 v97, {WV-WK}, v15")
    p("v_lshl_add_u32 v97, v14, 5, v97")
    p("v_add_u32 v97, v97, v96")
    p(f"v_add_u32 v8, {WK}, v97")
    p("s_and_b32 s3, s6, 1")
    p("s_lshl_b32 s3, s3, 2")
    tr_base128(p,'v7','s3',WQ)
    p("s_cmp_ge_u32 s5, 2")
    p("s_cselect_b32 s77, 4, 8")
    p("s_sub_u32 s3, s6, 2"); p("s_lshl_b32 s3, s3, 1")
    p("s_cmp_ge_u32 s5, 2"); p("s_cselect_b32 s3, s6, s3")
    p("s_lshl_b32 s75, s3, 17")
    p("s_lshl_b32 s76, s3, 14"); p(f"s_add_u32 s76, s76, {WQ}")
    p("s_lshl_b32 s74, s6, 14")
    p("s_cmp_ge_u32 s5, 2")
    p("s_cbranch_scc1 A_nokvdma")
    p("s_cmp_lg_u32 s6, 2")
    p("s_cbranch_scc1 A_noclr")
    p(f"s_mul_i32 s3, s60, {FLG_CLR}")
    p(f"s_add_u32 s3, s3, {L.FLG}")
    p("v_lshlrev_b32 v11, 2, v0")
    p("v_mov_b32 v12, 0")
    p(f"s_mov_b32 exec_hi, {hx((1<<(FLG_CLR//4-32))-1)}")
    p(f"buffer_store_dword v12, v11, {SRD_WS}, s3 offen sc1")
    p("s_mov_b64 exec, -1")
    p.label("A_noclr")
    p("s_cmp_lt_u32 s6, 2")
    p(f"s_cselect_b32 s20, s{P_WK}, s{P_WV}")
    p(f"s_cselect_b32 s21, s{P_WK+1}, s{P_WV+1}")
    p("s_mov_b32 s22, 16384")
    p("s_mov_b32 s23, 0x20000")
    csel(p,'s30',WK,WV)
    p("s_and_b32 s3, s6, 1")
    p("s_lshl_b32 s3, s3, 13")
    p("s_add_u32 s30, s30, s3")
    for i in range(8):
        if i%4==0: p(f"s_add_u32 m0, s30, {i*1024}"); p(f"s_add_u32 s31, s3, {i*1024}")
        p(f"buffer_load_dwordx4 v9, {SRD_B}, s31 offen offset:{(i%4)*1024} lds")
    stamp(p,'A issued')
    WE='wqearly' in OPT
    if WE:
        p("s_cmp_lt_u32 s6, 2"); p("s_cbranch_scc1 A_noweq")
        p("v_add_u32 v240, 7168, v4"); p("v_add_u32 v241, 14336, v4"); p("v_add_u32 v242, 21504, v4")
        for g in range(8):
            p(f"s_add_u32 m0, s76, {g*4096}"); p(f"s_add_u32 s3, s75, {g*32768}")
            for j,vr in enumerate(('v4','v240','v241','v242')):
                p(f"buffer_load_dwordx4 {vr}, {SRD_A}, s3 offen offset:{j*1024} lds")
        if 'vones' in OPT: v_ones(p,88)
        p("s_waitcnt vmcnt(40)")
        p("s_branch A_xw")
        p.label("A_noweq")
    if 'vones' in OPT: v_ones(p,88)
    p("s_waitcnt vmcnt(8)")
    p("s_branch A_xw")
    p.label("A_nokvdma")
    if 'wqwarm' in OPT:
        p("s_and_b32 s3, s4, 3"); p("s_mul_i32 s3, s3, 6"); p("s_add_u32 s3, s3, s5"); p("s_sub_u32 s3, s3, 2")
        p("s_lshl_b32 s3, s3, 2"); p("s_add_u32 s3, s3, s6"); p("s_mul_i32 s3, s3, 22")
        p("v_add_u32 v247, s3, v0"); p("v_lshrrev_b32 v246, 2, v247"); p("v_and_b32 v247, 3, v247"); p("v_lshlrev_b32 v247, 6, v247")
        p("v_lshl_add_u32 v247, v246, 10, v247")
        p("s_mov_b64 exec, 0x3fffff")
        p(f"buffer_load_dword v246, v247, {SRD_A}, 0 offen ; nowaitcheck")
        p("s_mov_b64 exec, -1")
    if 'vones' in OPT: v_ones(p,88)
    p("s_waitcnt vmcnt(1)" if 'wqwarm' in OPT else "s_waitcnt vmcnt(0)")
    p.label("A_xw")
    stamp(p,'A x arrived')
    ln_tile(p,16,'v5',XH0,extra=[[f"buffer_load_dwordx4 v[{48+4*cb}:{51+4*cb}], v3, {SRD_X}, 0 offen offset:{cb*128}"] for cb in range(8)])
    for j in range(1,4): p(f"v_add_u32 v{175+j+64}, {7168*j}, v4")
    stamp(p,'A lnA done')
    p("s_cmp_ge_u32 s5, 2")
    p("s_cbranch_scc1 A_wqdma")
    if 'wqearly' in OPT:
        p("s_cmp_lt_u32 s6, 2"); p("s_cbranch_scc1 A_kw01")
        p("s_waitcnt vmcnt(40) lgkmcnt(0)")
        p("s_barrier")
        p("s_waitcnt vmcnt(0)")
        p("s_branch A_kvdone")
        p.label("A_kw01")
    p("s_waitcnt vmcnt(8) lgkmcnt(0)")
    p("s_barrier")
    p("s_cmp_ge_u32 s6, 2")
    p("s_cbranch_scc1 A_wqdma")
    AB_=[96+4*b for b in range(6)]; BB_=[144+4*b for b in range(6)]
    def rA(s,b):
        p(f"ds_read_b64_tr_b16 v[{AB_[b]}:{AB_[b]+1}], v8 offset:{s*512}")
        p(f"ds_read_b64_tr_b16 v[{AB_[b]+2}:{AB_[b]+3}], v8 offset:{s*512+128}")
    def rB(s,b):
        p(f"ds_read_b128 v[{BB_[b]}:{BB_[b]+3}], v6 offset:{XH0+s*1056}")
    p("s_cmp_eq_u32 s6, 1")
    p("s_cbranch_scc1 A_vwave")
    gemm_lds(p,32,rA,rB,lambda s,b: p(f"v_mfma_f32_32x32x16_bf16 v[128:143], v[{AB_[b]}:{AB_[b]+3}], v[{BB_[b]}:{BB_[b]+3}], {'0' if s==0 else 'v[128:143]'}"),3,depth=4,nbuf=6)
    for j in range(4): p(f"v_cvt_pk_bf16_f32 v{88+j}, v{128+2*j}, v{129+2*j}")
    p("s_lshl_b32 s3, s60, 10")
    p(f"s_add_u32 s3, s3, {L.KF}")
    p(f"buffer_store_dwordx4 v[88:91], v9, {SRD_WS}, s3 offen sc1")
    p("v_mul_f32 v84, v128, v128")
    for j in range(1,8): p(f"v_fmac_f32 v84, v{128+j}, v{128+j}")
    p("v_mov_b32 v85, v84")
    p("v_permlane32_swap_b32 v84, v85")
    p("v_add_f32 v84, v84, v85")
    for d in ("row_ror:8","row_ror:4","row_ror:2","row_ror:1"):
        p(f"v_max_f32_dpp v84, v84, v84 {d} row_mask:0xf bank_mask:0xf")
    p("v_readlane_b32 s3, v84, 0")
    p("v_readlane_b32 s7, v84, 16")
    p("s_max_u32 s3, s3, s7")
    p("v_mov_b32 v84, s3")
    p("s_lshl_b32 s7, s60, 7")
    p(f"s_add_u32 s7, s7, {L.KM}")
    p("v_lshlrev_b32 v85, 2, v0")
    p("s_mov_b32 exec_hi, 0")
    p(f"buffer_store_dword v84, v85, {SRD_WS}, s7 offen sc1")
    p("s_mov_b64 exec, -1")
    p("s_waitcnt vmcnt(2)")
    hs_sentinel(p,0)
    p("s_branch A_kvdone")
    p.label("A_vwave")
    p("v_and_b32 v84, 3, v0")
    p("v_bfe_u32 v85, v0, 2, 1")
    p("v_lshl_add_u32 v84, v85, 3, v84")
    p("v_bfe_u32 v85, v0, 3, 1")
    p("v_lshl_add_u32 v84, v85, 2, v84")
    p("v_and_b32 v85, 16, v0")
    p("v_add_u32 v84, v84, v85")
    p("v_lshrrev_b32 v85, 5, v0")
    p("v_mul_u32_u24 v85, 528, v85")
    p("v_lshl_add_u32 v86, v84, 4, v85")
    def rBv(s,b):
        p(f"ds_read_b128 v[{BB_[b]}:{BB_[b]+3}], v86 offset:{XH0+s*1056}")
    gemm_lds(p,32,rA,rBv,lambda s,b: p(f"v_mfma_f32_32x32x16_bf16 v[128:143], v[{BB_[b]}:{BB_[b]+3}], v[{AB_[b]}:{AB_[b]+3}], {'0' if s==0 else 'v[128:143]'}"),3,depth=4,nbuf=6)
    for j in range(8): p(f"v_cvt_pk_bf16_f32 v{88+j}, v{128+2*j}, v{129+2*j}")
    p("v_xor_b32 v84, 256, v9")
    p("s_lshl_b32 s3, s60, 11")
    p(f"s_add_u32 s3, s3, {L.VF}")
    p("s_mov_b32 exec_lo, 0xffff0000")
    p("s_mov_b32 exec_hi, 0xffff0000")
    p(f"buffer_store_dwordx4 v[88:91], v84, {SRD_WS}, s3 offen sc1")
    p(f"buffer_store_dwordx4 v[92:95], v84, {SRD_WS}, s3 offen offset:1024 sc1")
    p("s_mov_b64 exec, -1")
    p("s_waitcnt vmcnt(2)")
    hs_sentinel(p,1)
    p("s_branch A_kvdone")
    p.label("A_wqdma")
    p("s_waitcnt vmcnt(0)")
    p.label("A_wqloop")
    p("s_mov_b32 m0, s76")
    for j,vr in enumerate(('v4','v240','v241','v242')):
        p(f"buffer_load_dwordx4 {vr}, {SRD_A}, s75 offen offset:{j*1024}{' nt' if 'ntwq' in OPT else ''} lds")
    p("s_add_u32 s76, s76, 4096"); p("s_add_u32 s75, s75, 32768")
    p("s_sub_u32 s77, s77, 1"); p("s_cmp_lg_u32 s77, 0"); p("s_cbranch_scc1 A_wqloop")
    p.label("A_kvdone")
    stamp(p,'A kvdone')
    ln_tile(p,48,'v5',XH1,write=False)
    KE='kvearly' in OPT
    if KE:
        p("s_cmp_ge_u32 s5, 2"); p("s_cbranch_scc1 A_nosig")
        p("s_barrier")
        p("s_cmp_ge_u32 s6, 2"); p("s_cbranch_scc1 A_nosig")
        ln_write(p,48,'v5',XH1)
        p("s_branch A_lnbw")
        p.label("A_nosig")
        ln_write(p,48,'v5',XH1)
        p("s_waitcnt vmcnt(0)")
        p.label("A_lnbw")
        p("s_waitcnt lgkmcnt(0)")
        p("s_barrier")
        stamp(p,'A lnB done')
        phase_a_q(p,KE,AB_,BB_)
        return
    p("s_cmp_ge_u32 s5, 2"); p("s_cbranch_scc1 A_nosig")
    p("s_cmp_ge_u32 s6, 2"); p("s_cbranch_scc1 A_nosig2")
    p("s_waitcnt vmcnt(0)")
    p("s_barrier")
    p("s_cmp_lg_u32 s6, 0"); p("s_cbranch_scc1 A_nosig3")
    if 'go2' in OPT:
        p("s_lshr_b32 s3, s60, 5"); p("s_lshl_b32 s3, s3, 6"); p("v_mov_b32 v85, s3")
    else: p("v_mov_b32 v85, 0")
    p("v_mov_b32 v243, 1")
    p("s_mov_b64 exec, 1")
    p(f"buffer_atomic_add v243, v85, {SRD_D}, 0 offen sc0 sc1 ; nowaitcheck")
    p("s_mov_b64 exec, -1")
    stamp(p,'A sig')
    p.label("A_nosig3")
    ln_write(p,48,'v5',XH1)
    p("s_branch A_lnbw")
    p.label("A_nosig2")
    p("s_barrier")
    p.label("A_nosig")
    ln_write(p,48,'v5',XH1)
    p("s_waitcnt vmcnt(0)")
    p.label("A_lnbw")
    p("s_waitcnt lgkmcnt(0)")
    p("s_barrier")
    stamp(p,'A lnB done')
    phase_a_q(p,False,AB_,BB_)

GOFN=[]
def phase_a_q(p,KE,AB_,BB_):
    if 'wowarm' in OPT:
        srd(p,24,P_WO,512*1024)
        p("s_cmp_lt_u32 s5, 2"); p("s_cbranch_scc1 A_nowarm")
        p("s_and_b32 s3, s4, 3"); p("s_mul_i32 s3, s3, 6"); p("s_add_u32 s3, s3, s5"); p("s_sub_u32 s3, s3, 2")
        p("s_lshl_b32 s3, s3, 2"); p("s_add_u32 s3, s3, s6"); p("s_mul_i32 s3, s3, 5504")
        p("v_lshlrev_b32 v247, 6, v0")
        p(f"buffer_load_dword v246, v247, {SRD_O}, s3 offen ; nowaitcheck")
        p("s_add_u32 s3, s3, 4096")
        p("s_mov_b64 exec, 0x3fffff")
        p(f"buffer_load_dword v246, v247, {SRD_O}, s3 offen ; nowaitcheck")
        p("s_mov_b64 exec, -1")
        p.label("A_nowarm")
    def go():
        N=32 if 'go2' in OPT else 64
        p("s_cmp_ge_u32 s5, 2"); p("s_cbranch_scc1 A_nogo")
        p("s_cmp_lg_u32 s6, 0"); p("s_cbranch_scc1 A_nogo")
        p("s_waitcnt vmcnt(0)")
        stamp(p,'A atom ret')
        p(f"v_readfirstlane_b32 s3, v243"); p(f"s_and_b32 s3, s3, {N-1}"); p(f"s_cmp_lg_u32 s3, {N-1}"); p("s_cbranch_scc1 A_nogo")
        p("v_mov_b32 v243, 1")
        if 'go2' in OPT:
            p("s_lshr_b32 s3, s60, 5"); p("s_lshl_b32 s3, s3, 6"); p("s_add_u32 s3, s3, 128"); p("v_mov_b32 v244, s3")
        else: p("v_mov_b32 v244, 128")
        p("s_mov_b64 exec, 1")
        p(f"buffer_store_dword v243, v244, {SRD_D}, 0 offen sc1")
        p("s_mov_b64 exec, -1")
        p.label("A_nogo")
    def kvsig():
        p("s_cmp_ge_u32 s5, 2"); p("s_cbranch_scc1 A_nosig9")
        p("s_waitcnt vmcnt(0)")
        p("s_barrier")
        p("s_cmp_lg_u32 s6, 0"); p("s_cbranch_scc1 A_nosig9")
        p("s_lshr_b32 s3, s60, 5"); p("s_lshl_b32 s3, s3, 6"); p("v_mov_b32 v245, s3")
        p("v_mov_b32 v243, 1")
        p("s_mov_b64 exec, 1")
        p(f"buffer_atomic_add v243, v245, {SRD_D}, 0 offen sc0 sc1 ; nowaitcheck")
        p("s_mov_b64 exec, -1")
        stamp(p,'A sig')
        p.label("A_nosig9")
    GOP=os.environ.get('GOP','q')
    hooks={GO_STEP:go}
    if KE:
        hooks={int(os.environ.get('KA','12')):kvsig}
        if GOP=='hook': hooks[GO_STEP]=go
        elif GOP=='pre': GOFN.append(go)
    p("s_lshr_b32 s3, s6, 1")
    p(f"s_mul_i32 s7, s3, {XH1}")
    p("v_add_u32 v6, s7, v6")
    def rA(s,b):
        p(f"ds_read_b64_tr_b16 v[{AB_[b]}:{AB_[b]+1}], v7 offset:{s*2048}")
        p(f"ds_read_b64_tr_b16 v[{AB_[b]+2}:{AB_[b]+3}], v7 offset:{s*2048+512}")
    def rB(s,b):
        p(f"ds_read_b128 v[{BB_[b]}:{BB_[b]+3}], v6 offset:{s*1056}")
    gemm_lds(p,32,rA,rB,lambda s,b: p(f"v_mfma_f32_32x32x16_bf16 v[128:143], v[{AB_[b]}:{AB_[b]+3}], v[{BB_[b]}:{BB_[b]+3}], {'0' if s==0 else 'v[128:143]'}"),3,depth=4,nbuf=6,fill=att_setup(),hook=hooks)
    if KE and GOP=='q0': go()
    p(f"s_mov_b32 s30, {hx(f2u(QSCALE))}"); p("s_mov_b32 s31, s30")
    if 'wo2' in OPT: p("v_mov_b32 v239, v4")
    else:
        for j in range(1,4): p(f"v_add_u32 v{4+j}, {7168*j}, v4")
    for j in range(8): p(f"v_pk_mul_f32 v[{128+2*j}:{129+2*j}], v[{128+2*j}:{129+2*j}], s[30:31]")
    for j in range(8): p(f"v_cvt_pk_bf16_f32 v{96+j}, v{128+2*j}, v{129+2*j}")
    p("s_lshr_b32 s3, s6, 1")
    p("s_xor_b32 s3, s5, s3"); p("s_and_b32 s3, s3, 1"); p("s_lshl_b32 s3, s3, 2")
    p("s_and_b32 s7, s6, 1"); p("s_lshl_b32 s7, s7, 1"); p("s_add_u32 s3, s3, s7")
    p("s_lshl_b32 s3, s3, 10"); p(f"s_add_u32 s3, s3, {QL}")
    p("v_add_u32 v104, s3, v9")
    p("ds_write_b128 v104, v[96:99]")
    p("ds_write_b128 v104, v[100:103] offset:1024")
    p("v_mul_f32 v104, v128, v128"); p("v_mul_f32 v105, v136, v136")
    for j in range(1,8): p(f"v_fmac_f32 v104, v{128+j}, v{128+j}"); p(f"v_fmac_f32 v105, v{136+j}, v{136+j}")
    p("v_mov_b32 v106, v104"); p("v_mov_b32 v107, v105")
    p("v_permlane32_swap_b32 v104, v106"); p("v_permlane32_swap_b32 v105, v107")
    p("v_add_f32 v104, v104, v106"); p("v_add_f32 v105, v105, v107")
    p("v_max_u32 v104, v104, v105")
    for d in ("row_ror:8","row_ror:4","row_ror:2","row_ror:1"):
        p(f"v_max_u32_dpp v104, v104, v104 {d} row_mask:0xf bank_mask:0xf")
    p("v_readlane_b32 s3, v104, 0")
    p("v_readlane_b32 s7, v104, 16")
    p("s_max_u32 s3, s3, s7")
    p("v_mov_b32 v104, s3")
    p("s_lshl_b32 s7, s6, 2"); p(f"s_add_u32 s7, s7, {QM}")
    p("v_mov_b32 v105, s7")
    p("ds_write_b32 v105, v104")
    if KE and GOP=='q': go()
    stamp(p,'A q done')

def att_setup():
    F=[]; a=F.append
    for i in range(16): a(f"v_mov_b32 v{OB[0]+i}, 0"); a(f"v_mov_b32 v{OB[1]+i}, 0")
    for i in range(4): a(f"v_mov_b32 v{ZR+i}, 0")
    a(f"v_mov_b32 v{IDX}, 0xdddddddd")
    a("s_mov_b32 s80, 0xffff"); a("s_mov_b32 s81, 0xffff")
    a("s_mul_i32 s77, s6, 2304"); a(f"s_add_u32 s77, s77, {OP}")
    a(f"v_add_u32 v{SLA}, s77, v9")
    a("s_add_u32 s77, s77, 2048")
    a(f"v_lshl_add_u32 v{SLB}, v0, 2, s77")
    a(f"v_add_u32 v{QA}, {QL+1024}, v9")
    a(f"v_add_u32 v59, {QL}, v9")
    a(f"v_mov_b32 v60, {QM}")
    a("s_lshl_b32 s42, s6, 14")
    a("s_lshr_b32 s61, s6, 1"); a("s_lshl_b32 s77, s4, 1"); a("s_add_u32 s61, s61, s77")
    a("s_and_b32 s62, s6, 1"); a("s_lshl_b32 s77, s5, 1"); a("s_add_u32 s62, s62, s77")
    a("v_and_b32 v2, 31, v0"); a("s_lshl_b32 s77, s61, 5"); a("v_add_u32 v2, s77, v2"); a("v_lshlrev_b32 v2, 10, v2")
    a("v_lshrrev_b32 v3, 5, v0"); a("v_lshl_add_u32 v8, v3, 4, v2")
    return F

KA=0
SB=[16,32]; OB=[64,80]; QB=[96,100]; CB=104; IDX=48; ZR=52; SLA=56; SLB=57; QA=58; TB=120
THRESH=40.0
VMASK='s[80:81]'

def QK(Sn,kn,Qn,slow): return f"v_mfma_f32_32x32x16_bf16 v[{Sn}:{Sn+15}], a[{KA+4*kn}:{KA+4*kn+3}], v[{Qn}:{Qn+3}], {f'v[{CB}:{CB+15}]' if slow else '0'}"
def PV(O,areg,S): return f"v_smfmac_f32_32x32x32_bf16 v[{O}:{O+15}], a[{areg}:{areg+3}], v[{S}:{S+7}], v{IDX}"

def slot_write(p,O):
    p(f"ds_write_b128 v{SLA}, v[{O}:{O+3}]")
    p(f"ds_write_b128 v{SLA}, v[{O+4}:{O+7}] offset:1024")
    p(f"ds_write_b32 v{SLB}, v{O+8}")

def att_pass(p, ps, first=False, slow=False, vm=None, ev=None):
    ev=ev or {}
    for t in range(16):
        S=SB[t%2]; Sn=SB[(t+1)%2]
        O=OB[ps]; Op=OB[ps] if t>0 else OB[1-ps]
        Qn=QB[ps] if t<15 else QB[1-ps]
        kn=(t+1)%16; tp=(t-1)%16
        e=lambda i: f"v_exp_f32 v{S+i}, v{S+i}"
        pv2=PV(Op,VA+8*tp+4,Sn+8)
        I=[e(0),e(1),pv2,e(2),e(3),e(4),QK(Sn,kn,Qn,slow),e(5),e(6),e(7),e(8),e(9),PV(O,VA+8*t,S),e(10),e(11),e(12),e(13),e(14),e(15)]
        if not first:
            oa,ob,oc=[int(x) for x in os.environ.get('ORD','3,5,11').split(',')]
            I=[e(i) for i in range(16)]
            I.insert(oc,PV(O,VA+8*t,S)); I.insert(ob,QK(Sn,kn,Qn,slow)); I.insert(oa,pv2)
        ins={}
        def add(pos,txt): ins.setdefault(pos,[]).append(txt)
        if first and t==0: I[2]=None
        if not first:
            if t==2:
                add(4,f"ds_write_b128 v{SLA}, v[{OB[1-ps]}:{OB[1-ps]+3}]")
                add(8,f"ds_write_b128 v{SLA}, v[{OB[1-ps]+4}:{OB[1-ps]+7}] offset:1024")
                add(10,f"ds_write_b32 v{SLB}, v{OB[1-ps]+8}")
            if t==3:
                add(4,f"v_add_u32 v{SLA}, 9216, v{SLA}"); add(8,f"v_add_u32 v{SLB}, 9216, v{SLB}")
            if t==8:
                Z=OB[1-ps]
                add(16,f"v_mfma_f32_32x32x16_bf16 v[{Z}:{Z+15}], v[{ZR}:{ZR+3}], v[{ZR}:{ZR+3}], 0")
        if t==4:
            Qd=QB[1-ps]
            add(4,f"ds_read_b128 v[{Qd}:{Qd+3}], v{QA}")
            if slow: add(5,f"ds_read_b32 v121, v120")
        if t==5:
            add(4,f"v_add_u32 v{QA}, 1024, v{QA}")
            if slow: add(8,"v_add_u32 v120, 256, v120")
        if t==14:
            add(0,"s_waitcnt lgkmcnt(0)")
        if t==15 and slow:
            for j in range(16): add(1,f"v_mov_b32 v{CB+j}, v121")
        if first and vm is not None:
            vm.wait(('V',t,0))
            if t+4<16: add(4,('K',t+4))
            if t+3<16: add(9,('V',t+3))
        for pos,item in ev.get(t,[]): add(pos,item)
        for i,x in enumerate(I):
            for y in ins.get(i,[]):
                if callable(y): y()
                elif isinstance(y,list): emit_group(p,vm,y)
                elif isinstance(y,tuple): (ldK if y[0]=='K' else ldV)(p,vm,y[1])
                else: p(y)
            if x: p(x)

def spread(ev, items, t0, t1, poss=(1,4,8,11,14,17)):
    n=t1-t0+1; per=-(-len(items)//n); assert per<=len(poss),(per,len(items))
    k=0
    for t in range(t0,t1+1):
        for j in range(per):
            if k<len(items): ev.setdefault(t,[]).append((poss[j*len(poss)//per],items[k])); k+=1

def ldK(p,vm,j):
    p(f"s_add_u32 s3, s30, {j*1024}")
    vm.issue(('K',j),f"buffer_load_dwordx4 a[{KA+4*j}:{KA+4*j+3}], v9, {SRD_WS}, s3 offen sc1")
def ldV(p,vm,j):
    p(f"s_add_u32 s3, s31, {j*2048}")
    p(f"s_mov_b64 exec, {VMASK}")
    vm.issue(('V',j,0),f"buffer_load_dwordx4 a[{VA+8*j}:{VA+8*j+3}], v9, {SRD_WS}, s3 offen sc1")
    vm.issue(('V',j,1),f"buffer_load_dwordx4 a[{VA+8*j+4}:{VA+8*j+7}], v9, {SRD_WS}, s3 offen offset:1024 sc1")
    p("s_mov_b64 exec, -1")

def o_store(p,O,jj):
    p(f"v_rcp_f32 v{TB}, v{O+8}")
    p(f"v_mov_b32 v{TB+1}, v{O+8}")
    p(f"v_mov_b32 v{TB+1}, v{TB}")
    for j in range(4): p(f"v_pk_mul_f32 v[{O+2*j}:{O+2*j+1}], v[{O+2*j}:{O+2*j+1}], v[{TB}:{TB+1}]")
    for j in range(4): p(f"v_cvt_pk_bf16_f32 v{TB+4+j}, v{O+2*j}, v{O+2*j+1}")
    hstore(p,f"buffer_store_dwordx4 v[{TB+4}:{TB+7}], v9, {SRD_WS}, s63 offen offset:{jj*1024}")

def xcc_publish(p,vm):
    lab=f"XP_{len(p.lines)}"
    p("s_getreg_b32 s43, hwreg(HW_REG_XCC_ID, 0, 4)")
    p("s_add_u32 s43, s43, 1")
    p("s_lshr_b32 s86, s4, 1"); p("s_lshl_b32 s86, s86, 6"); p(f"s_add_u32 s86, s86, {FX}")
    p("s_cmp_lg_u32 s6, 0"); p(f"s_cbranch_scc1 {lab}")
    p("s_and_b32 s3, s4, 1"); p("s_lshl_b32 s3, s3, 3"); p("s_add_u32 s3, s3, s5"); p("s_lshl_b32 s3, s3, 2")
    p("v_mov_b32 v12, s43"); p("v_mov_b32 v14, s3")
    p("s_mov_b64 exec, 1")
    vm.issue(('XP',0),f"buffer_store_dword v12, v14, {SRD_WS}, s86 offen sc1")
    p("s_mov_b64 exec, -1")
    p.label(lab)
def xcc_load(p,vm):
    p("v_and_b32 v13, 15, v0"); p("v_lshlrev_b32 v13, 2, v13")
    vm.issue(('XL',0),f"buffer_load_dword v12, v13, {SRD_WS}, s86 offen sc1")
def xcc_check(p,sfx=''):
    p(f"s_mov_b32 s29, {SPIN}")
    p.label("XC_CHK"+sfx)
    p("v_cmp_eq_u32 vcc, 0, v12")
    p("s_cmp_eq_u64 vcc, 0"); p("s_cbranch_scc1 XC_OK"+sfx)
    p("s_sub_u32 s29, s29, 1"); p("s_cmp_eq_u32 s29, 0"); p("s_cbranch_scc1 XC_OK"+sfx)
    p(f"buffer_load_dword v12, v13, {SRD_WS}, s86 offen sc1")
    p("s_waitcnt vmcnt(0)")
    p("s_branch XC_CHK"+sfx)
    p.label("XC_OK"+sfx)
    p("v_cmp_ne_u32 vcc, s43, v12")
    p("s_cmp_lg_u64 vcc, 0")
    p("s_cselect_b32 s43, 1, 0")
    if 'xslow' in OPT: p("s_mov_b32 s43, 1")

def wo_dma_groups(vm):
    G=[]
    for n,g in enumerate(dma128(['v239','v240','v241','v242'] if 'wo2' in OPT else ['v4','v5','v6','v7'],SRD_O,'s74',WO_L,'s75',16,sg='s76',nt=' nt' if 'ntwo' in OPT else '')):
        G.append([('s',x) for x in g[:-1]]+[('m',('WO',n),g[-1])])
    G.append([('s',"s_lshl_b32 s76, s62, 6"),('m',('XR',0),f"buffer_load_dwordx4 a[192:195], v8, {SRD_X}, s76 offen")])
    G.append([('m',('XR',1),f"buffer_load_dwordx4 a[196:199], v8, {SRD_X}, s76 offen offset:32")])
    return G
def emit_group(p,vm,g):
    for x in g:
        if x[0]=='s': p(x[1])
        else: vm.issue(x[1],x[2])

def v_ones(p,b):
    p(f"v_mov_b32 v{b}, 0x3f803f80"); p(f"v_mov_b32 v{b+4}, 0x3afe3f80")
    p(f"v_and_b32 v{b+1}, 59, v0"); p(f"v_cmp_eq_u32 vcc, 16, v{b+1}"); p(f"v_cndmask_b32 v{b+4}, 0, v{b+4}, vcc")
    for i in (1,2,3,5,6,7): p(f"v_mov_b32 v{b+i}, 0")
    for i in range(8): p(f"v_mfma_f32_32x32x16_bf16 a[{VA+16*i}:{VA+16*i+15}], v[{b}:{b+3}], v[{b+4}:{b+7}], 0")

def tail_addr(p):
    p("s_mul_i32 s3, s6, 18432"); p(f"s_add_u32 s3, s3, {OP}")
    p("v_add_u32 v118, s3, v9")
    p("s_add_u32 s3, s3, 2048")
    p("v_lshl_add_u32 v119, v0, 2, s3")
    p("s_lshr_b32 s3, s6, 1"); p("s_lshl_b32 s7, s4, 1"); p("s_add_u32 s3, s3, s7"); p("s_lshl_b32 s3, s3, 5")
    p("s_lshl_b32 s7, s5, 2"); p("s_add_u32 s3, s3, s7")
    p("s_and_b32 s7, s6, 1"); p("s_lshl_b32 s7, s7, 1"); p("s_add_u32 s3, s3, s7")
    p("s_lshl_b32 s3, s3, 10"); p(f"s_add_u32 s63, s3, {L.OF}")
def tail_setup(p,sfx):
    tail_addr(p)
    if 'xcc' in OPT:
        p("s_waitcnt vmcnt(0)")
        xcc_check(p,sfx)
def attention(p):
    srd(p,24,P_WO,512*1024)
    p("s_lshl_b32 s75, s6, 17")
    srd(p,16,P_WG,512*2752)
    srd(p,20,P_WU,512*2752)
    p("s_lshr_b32 s78, s2, 3"); p("s_lshl_b32 s78, s78, 2"); p("s_add_u32 s78, s78, s6"); p("s_mul_i32 s78, s78, 6880"); p(f"s_add_u32 s78, s78, {192*2752}")
    p("v_lshlrev_b32 v50, 7, v0" if 'w128' in OPT else "v_lshlrev_b32 v50, 6, v0")
    if 'pt' in OPT:
        p("v_and_b32 v51, 15, v0"); p("v_lshlrev_b32 v51, 7, v51")
        p("s_lshr_b32 s3, s6, 1"); p("s_lshl_b32 s7, s4, 1"); p("s_add_u32 s3, s3, s7"); p("s_lshl_b32 s3, s3, 5")
        p("s_lshl_b32 s7, s5, 2"); p("s_add_u32 s3, s3, s7")
        p("s_and_b32 s7, s6, 1"); p("s_lshl_b32 s7, s7, 1"); p("s_add_u32 s3, s3, s7")
        p("s_lshl_b32 s3, s3, 10"); p(f"s_add_u32 s82, s3, {L.OF}")
        p("s_lshl_b32 s3, s61, 5"); p("s_lshl_b32 s7, s62, 1"); p("s_add_u32 s3, s3, s7"); p("s_lshl_b32 s3, s3, 10"); p(f"s_add_u32 s83, s3, {L.HF}")
        p("s_lshl_b32 s3, s61, 12"); p("s_lshl_b32 s7, s62, 8"); p("s_add_u32 s3, s3, s7"); p(f"s_add_u32 s84, s3, {L.HS}")
    p("s_lshl_b32 s31, s42, 1"); p(f"s_add_u32 s31, s31, {L.VF}")
    p(f"s_add_u32 s30, s42, {L.KF}")
    lane_params(p)
    p("s_and_b32 s3, s6, 1"); p("s_lshl_b32 s3, s3, 2")
    tr_base128(p,'v10',"s3",WO_L)
    p("s_and_b32 s3, s6, 1"); p("s_lshl_b32 s3, s3, 15")
    p("v_add_u32 v10, s3, v10")
    p("v_xor_b32 v1, 64, v10")
    p("v_lshlrev_b32 v11, 7, v0")
    if 'vones' not in OPT: v_ones(p,16)
    stamp(p,'B pre-S1',vt=200)
    for f in GOFN: f()
    p("s_cmp_lg_u32 s6, 0"); p("s_cbranch_scc1 B_s1skip")
    if 'go2' in OPT: p("v_and_b32 v62, 1, v0"); p("v_lshlrev_b32 v62, 6, v62"); p("v_add_u32 v62, 128, v62")
    else: p("v_mov_b32 v62, 128")
    poll(p,'s1',SRD_D,'0','v62',1,61,sleep=int(os.environ.get('S1SLEEP','1')))
    p.label("B_s1skip")
    p("s_waitcnt lgkmcnt(0)")
    p("s_barrier")
    stamp(p,'B S1 done',vt=200)
    vm=VM(p)
    p(f"s_mov_b32 s3, {L.KM}")
    vm.issue('KM',f"buffer_load_dword v61, v11, {SRD_WS}, s3 offen sc1")
    ldK(p,vm,0)
    p(f"ds_read_b128 v[{QB[0]}:{QB[0]+3}], v59")
    p(f"ds_read_b128 v[104:107], v60")
    ldK(p,vm,1); ldV(p,vm,0); ldK(p,vm,2); ldV(p,vm,1); ldK(p,vm,3); ldV(p,vm,2)
    p("s_waitcnt lgkmcnt(0)")
    p("v_max_u32 v60, v104, v105"); p("v_max3_u32 v60, v60, v106, v107")
    vm.wait('KM')
    for d in ("row_ror:8","row_ror:4","row_ror:2","row_ror:1"):
        p(f"v_max_u32_dpp v61, v61, v61 {d} row_mask:0xf bank_mask:0xf")
    p("v_readlane_b32 s3, v61, 0"); p("v_readlane_b32 s7, v61, 16"); p("s_max_u32 s3, s3, s7")
    p("v_readlane_b32 s7, v61, 32"); p("s_max_u32 s3, s3, s7")
    p("v_readlane_b32 s7, v61, 48"); p("s_max_u32 s65, s3, s7")
    p("v_mul_f32 v60, s65, v60")
    p(f"v_cmp_nge_f32 vcc, {hx(f2u(THRESH*THRESH/(1.02*1.02)))}, v60")
    p("s_cmp_lg_u64 vcc, 0")
    p("s_cbranch_scc1 L_slow")
    vm.wait(('K',0))
    p(QK(SB[0],0,QB[0],False))
    stamp(p,'B first',vt=200)
    import copy
    SLOW.append(vm)
    vm=copy.copy(vm); vm.pos=dict(vm.pos)
    ev0={}
    if 'wowarm2' in OPT:
        ev0[int(os.environ.get('WOT','13'))]=[(11,[('s',"s_lshr_b32 s85, s2, 3"),('s',"s_lshl_b32 s85, s85, 2"),('s',"s_add_u32 s85, s85, s6"),('s',"s_lshl_b32 s85, s85, 12"),
              ('m',('WOW',0),f"buffer_load_dword v49, v50, {SRD_O}, s85 offen ; nowaitcheck")])]
    att_pass(p,0,first=True,vm=vm,ev=ev0)
    vm.wait(('V',15,1))
    stamp(p,'B pass0',vt=200)
    if 'wo2' in OPT:
        DPOS=tuple(int(x) for x in os.environ.get('DPOS','13,13').split(',')); DT1=18//len(DPOS)
        THIN=0
        WOG=wo_dma_groups(vm)
        ev={}
        ev[0]=[(11,[('s',"s_lshr_b32 s85, s2, 3"),('s',"s_lshl_b32 s85, s85, 2"),('s',"s_add_u32 s85, s85, s6"),('s',"s_lshl_b32 s85, s85, 12"),
              ('m',('WOW',0),f"buffer_load_dword v49, v50, {SRD_O}, s85 offen ; nowaitcheck")])]
        if 'xcc' in OPT:
            class NV:
                def issue(s_,k,t): p(t)
            ev.setdefault(1,[]).append((4,lambda: xcc_publish(p,NV())))
        W1T=int(os.environ.get('W1T','10'))
        for n,(t,sr,off) in enumerate(((0,SRD_A,0),(1,SRD_B,0),(2,SRD_A,4096),(3,SRD_B,4096))):
            g=[('m',('WARM',n),f"buffer_load_dword v49, v50, {sr}, s78 offen ; nowaitcheck")]
            if n==2: g=[('s',"s_add_u32 s78, s78, 4096")]+g
            ev.setdefault(W1T+t,[]).append((11,g))
        spread(ev,w1_setup(),2,9,poss=(1,4,8,11,14,17))
        att_pass(p,1,vm=vm,ev=ev)
        ev={}
        W0=int(os.environ.get('WOD0','0')); spread(ev,WOG,W0,W0+DT1-1,poss=DPOS)
        att_pass(p,0,vm=vm,ev=ev)
    else:
        DPOS=tuple(int(x) for x in os.environ.get('DPOS','13,13').split(',')); DT1=18//len(DPOS)
        THIN=int(os.environ.get('THIN','0')); TPOS=int(os.environ.get('TPOS','4'))
        WOG=wo_dma_groups(vm)
        ev={}
        if THIN: spread(ev,WOG[:16],0,15,poss=(TPOS,))
        else:
            W0=int(os.environ.get('WOD0','7' if 'wowarm3' in OPT else '1')); spread(ev,WOG,W0,W0+DT1-1,poss=DPOS)
        if 'xcc' in OPT:
            class NV:
                def issue(s_,k,t): p(t)
            ev.setdefault(0,[]).append((4,lambda: xcc_publish(p,NV())))
        if 'wowarm3' in OPT:
            g=[('s',"s_lshr_b32 s85, s2, 3"),('s',"s_lshl_b32 s85, s85, 2"),('s',"s_add_u32 s85, s85, s6"),('s',"s_lshl_b32 s85, s85, 12")]
            if 'w128' in OPT: g.append(('s',"s_mov_b32 exec_hi, 0"))
            g.append(('m',('WOW',0),f"buffer_load_dword v49, v50, {SRD_O}, s85 offen ; nowaitcheck"))
            if 'w128' in OPT: g.append(('s',"s_mov_b64 exec, -1"))
            ev.setdefault(int(os.environ.get('WOT','0')),[]).append((11,g))
        att_pass(p,1,vm=vm,ev=ev)
        ev={}
        if 'warm' in OPT:
            for n,(t,sr,off) in enumerate(((0,SRD_A,0),(1,SRD_B,0),(2,SRD_A,4096),(3,SRD_B,4096))[:2 if 'w128' in OPT else 4]):
                g=[('m',('WARM',n),f"buffer_load_dword v49, v50, {sr}, s78 offen ; nowaitcheck")]
                if n==2: g=[('s',"s_add_u32 s78, s78, 4096")]+g
                ev.setdefault(t,[]).append((11,g))
        if THIN:
            for n,g in enumerate(WOG[16:]): ev.setdefault(4+n,[]).append((TPOS,g))
        spread(ev,w1_setup(),4,14 if 'w1mask' in OPT else 13,poss=(1,4,8,11,14,17))
        att_pass(p,0,vm=vm,ev=ev)
    ev={0:[(0,lambda: vm.wait(('XR',1))),(0,"s_barrier")]}
    spread(ev,wo_frag_reads(),0,12,poss=(1,4,8,11,14))
    att_pass(p,1,vm=vm,ev=ev)
    ev={0:[(0,"s_barrier")]}
    W1G=w1_dma(0)+w1_dma(1)+w1_dma(2)
    if THIN: spread(ev,W1G[:15],1,15,poss=(TPOS,))
    else: spread(ev,W1G,1,DT1,poss=DPOS)
    att_pass(p,0,vm=vm,ev=ev)
    ev={}
    if THIN:
        for n,g in enumerate(W1G[15:]): ev.setdefault((0,1,3)[n],[]).append((TPOS,g))
    if 'pt' in OPT:
        ev.setdefault(2,[]); ev[2]+=[(4,[('m',('PT',0),f"buffer_load_dword v49, v51, {SRD_WS}, s82 offen ; nowaitcheck")])]
        ev[6]=[(4,[('m',('PT',1),f"buffer_load_dword v49, v51, {SRD_WS}, s83 offen ; nowaitcheck")])]
        ev[10]=[(4,[('s',"s_mov_b64 exec, 3"),('m',('PT',2),f"buffer_load_dword v49, v51, {SRD_WS}, s84 offen ; nowaitcheck"),('s',"s_mov_b64 exec, -1")])]
    att_pass(p,1,vm=vm,ev=ev)
    ev={}
    if 'codepf2' in OPT:
        NL=int(os.environ.get('PF2_LINES','4'))
        def pf2():
            p("s_getpc_b64 s[84:85]")
            p.label("PF2_HERE")
            p("s_lshr_b32 s3, s2, 3"); p("s_lshl_b32 s3, s3, 2"); p("s_add_u32 s3, s3, s6"); p(f"s_mul_i32 s3, s3, {NL*64}")
            p(f"v_and_b32 v50, {NL-1}, v0"); p("v_lshlrev_b32 v50, 6, v50"); p("v_add_u32 v50, s3, v50")
            p("v_add_u32 v50, L_att_tail-PF2_HERE, v50")
            p("v_min_u32 v50, END_K-PF2_HERE-4, v50")
            p(f"s_mov_b64 exec, {(1<<NL)-1}")
            vm.issue(('PF2',0),"global_load_dword v49, v50, s[84:85] ; nowaitcheck")
            p("s_mov_b64 exec, -1")
        ev[PF2_T]=[(4,pf2)]
    if 'wdatt' in OPT:
        g=[('s',f"s_mov_b32 s24, s{P_WD}"),('s',f"s_mov_b32 s25, s{P_WD+1}"),('s',f"s_mov_b32 s26, {hx(1376*1024)}"),
           ('s',"s_lshr_b32 s79, s2, 3"),('s',"s_lshl_b32 s79, s79, 2"),('s',"s_add_u32 s79, s79, s6"),('s',"s_mul_i32 s79, s79, 11008"),('s',f"v_lshlrev_b32 v51, {7 if 'w128' in OPT else 6}, v0")]
        ev.setdefault(0,[]).append((4,g))
        WDT=int(os.environ.get('WDT','1'))
        for n in range(0 if 'x_nowd' in OPT else (2 if 'w128' in OPT else 3)):
            g=[('m',('WDW',n),f"buffer_load_dword v49, v51, {SRD_O}, s79 offen ; nowaitcheck")]
            if 'w128' in OPT:
                if n==0: g.append(('s',"s_add_u32 s79, s79, 8192"))
                else: g=[('s',"s_mov_b64 exec, 0x3fffff")]+g+[('s',"s_mov_b64 exec, -1")]
            elif n<2: g.append(('s',"s_add_u32 s79, s79, 4096"))
            ev.setdefault(WDT+2*n,[]).append((11,g))
    if 'xcc' in OPT: ev.setdefault(12,[]).append((4,lambda: xcc_load(p,vm)))
    att_pass(p,0,vm=vm,ev=ev)
    att_pass(p,1,vm=vm)
    p.label("L_att_tail")
    p(PV(OB[1],VA+8*15+4,SB[1]+8))
    G1='glue1' in OPT
    if G1: tail_setup(p,'M')
    slot_write(p,OB[1])
    p.label("L_att_done")
    stamp(p,'B loop done',vt=14)
    if not G1: tail_addr(p)
    p("s_waitcnt vmcnt(0) lgkmcnt(0)")
    p("s_barrier")
    if 'xcc' in OPT and not G1: xcc_check(p)
    if 'pnorm' in OPT:
        p("s_lshl_b32 s3, s61, 12"); p("s_lshl_b32 s7, s62, 8"); p("s_add_u32 s3, s3, s7"); p(f"s_add_u32 s3, s3, {L.HS}")
        p("v_mov_b32 v122, -1"); p("v_mov_b32 v123, -1"); p("v_lshlrev_b32 v124, 3, v0")
        p("s_mov_b32 exec_hi, 0")
        hstore(p,f"buffer_store_dwordx2 v[122:123], v124, {SRD_WS}, s3 offen")
        p("s_mov_b64 exec, -1")
    def rds(jj):
        for ww in range(4):
            b=16+(jj*4+ww)*8; off=jj*9216+ww*2304
            p(f"ds_read_b128 v[{b}:{b+3}], v118 offset:{off}")
            p(f"ds_read_b128 v[{b+4}:{b+7}], v118 offset:{off+1024}")
            p(f"ds_read_b32 v{80+jj*4+ww}, v119 offset:{off}")
    rds(0)
    for jj in range(2):
        b=16+jj*32; sb=80+jj*4; O=96+10*jj
        if jj==0:
            p("s_waitcnt lgkmcnt(6)")
            for j in range(4): p(f"v_pk_add_f32 v[{b+2*j}:{b+2*j+1}], v[{b+2*j}:{b+2*j+1}], v[{b+8+2*j}:{b+8+2*j+1}]")
            p(f"v_add_f32 v{sb}, v{sb}, v{sb+1}")
            rds(1)
            p("s_waitcnt lgkmcnt(12)")
        else:
            p("s_waitcnt lgkmcnt(6)")
            for j in range(4): p(f"v_pk_add_f32 v[{b+2*j}:{b+2*j+1}], v[{b+2*j}:{b+2*j+1}], v[{b+8+2*j}:{b+8+2*j+1}]")
            p(f"v_add_f32 v{sb}, v{sb}, v{sb+1}")
            p("s_waitcnt lgkmcnt(0)")
        for j in range(4):
            p(f"v_pk_add_f32 v[{b+16+2*j}:{b+16+2*j+1}], v[{b+16+2*j}:{b+16+2*j+1}], v[{b+24+2*j}:{b+24+2*j+1}]")
        p(f"v_add_f32 v{sb+2}, v{sb+2}, v{sb+3}")
        for j in range(4):
            p(f"v_pk_add_f32 v[{O+2*j}:{O+2*j+1}], v[{b+2*j}:{b+2*j+1}], v[{b+16+2*j}:{b+16+2*j+1}]")
        p(f"v_add_f32 v{O+8}, v{sb}, v{sb+2}")
        o_store(p,O,jj)

SLOW=[]
def attention_slow(p):
    vm=SLOW[0]
    p.label("L_slow")
    if 'xcc' in OPT: xcc_publish(p,vm)
    for j in range(4,16): ldK(p,vm,j)
    for j in range(3,16): ldV(p,vm,j)
    for g in wo_dma_groups(vm): emit_group(p,vm,g)
    p("s_waitcnt vmcnt(0)")
    p("s_barrier")
    for x in wo_frag_reads(): p(x)
    for x in w1_setup():
        if isinstance(x,list): emit_group(p,vm,x)
        else: p(x)
    p("s_waitcnt lgkmcnt(0)")
    p("s_barrier")
    for g in w1_dma(0)+w1_dma(1)+w1_dma(2): emit_group(p,vm,g)
    p("s_mov_b32 s64, 0")
    p.label("L_mx")
    p("s_lshl_b32 s3, s64, 10")
    p("v_add_u32 v120, s3, v59")
    p(f"ds_read_b128 v[{QB[1]}:{QB[1]+3}], v120")
    p("v_mov_b32 v121, 0xff800000")
    p("s_waitcnt lgkmcnt(0)")
    p(QK(SB[0],0,QB[1],False))
    for t in range(16):
        S=SB[t%2]; Sn=SB[(t+1)%2]
        if t<15: p(QK(Sn,t+1,QB[1],False))
        for j in range(8): p(f"v_max3_f32 v121, v{S+2*j}, v{S+2*j+1}, v121")
    p("v_mov_b32 v122, v121")
    p("v_permlane32_swap_b32 v121, v122")
    p("v_max_f32 v121, v121, v122")
    p("s_lshl_b32 s3, s64, 9"); p("s_lshl_b32 s7, s6, 7"); p("s_add_u32 s3, s3, s7")
    p("v_and_b32 v122, 31, v0")
    p("v_lshl_add_u32 v122, v122, 2, s3")
    p(f"v_add_u32 v122, {MX}, v122")
    p(f"ds_write_b32 v122, v121")
    p("s_add_u32 s64, s64, 1"); p("s_cmp_lt_u32 s64, 8"); p("s_cbranch_scc1 L_mx")
    p("s_waitcnt lgkmcnt(0)")
    p("s_barrier")
    p("v_and_b32 v122, 31, v0"); p("v_lshlrev_b32 v122, 2, v122")
    p("s_lshl_b32 s3, s6, 10"); p(f"s_add_u32 s3, s3, {MX}"); p("v_add_u32 v122, s3, v122")
    for qq in range(2):
        for ww in range(4): p(f"ds_read_b32 v{16+4*qq+ww}, v122 offset:{qq*512+ww*128}")
    p("s_waitcnt lgkmcnt(0)")
    p("s_lshl_b32 s3, s6, 9"); p(f"s_add_u32 s3, s3, {MF}")
    p("v_lshl_add_u32 v122, v0, 2, s3")
    for qq in range(2):
        b=16+4*qq
        p(f"v_max3_f32 v{b}, v{b}, v{b+1}, v{b+2}"); p(f"v_max_f32 v{b}, v{b}, v{b+3}"); p(f"v_sub_f32 v{b}, 0, v{b}")
        p(f"ds_write_b32 v122, v{b} offset:{qq*256}")
    p("s_waitcnt lgkmcnt(0)")
    p("s_barrier")
    p(f"v_lshlrev_b32 v120, 2, v0"); p(f"v_add_u32 v120, {MF}, v120")
    p(f"ds_read_b32 v121, v120")
    p("v_add_u32 v120, 256, v120")
    p("s_waitcnt lgkmcnt(0)")
    for j in range(16): p(f"v_mov_b32 v{CB+j}, v121")
    p(QK(SB[0],0,QB[0],True))
    att_pass_slow(p)
    if 'xcc' in OPT: xcc_load(p,vm)
    if 'glue1' in OPT: tail_setup(p,'S')
    p("s_branch L_att_done")

def att_pass_slow(p):
    att_pass(p,0,first=True,slow=True,vm=None)
    p("s_mov_b32 s64, 4")
    p("s_branch L_sttY")
    p.label("L_sttX")
    att_pass(p,0,slow=True)
    p.label("L_sttY")
    att_pass(p,1,slow=True)
    p("s_sub_u32 s64, s64, 1")
    p("s_cmp_lg_u32 s64, 0")
    p("s_cbranch_scc1 L_sttX")
    p(PV(OB[1],VA+8*15+4,SB[1]+8))
    slot_write(p,OB[1])

def w1_setup():
    F=[]; p=F.append
    p("s_and_b32 s3, s4, 1"); p("s_lshl_b32 s3, s3, 3"); p("s_add_u32 s3, s3, s5")
    p("s_min_u32 s7, s3, 11"); p("s_lshl_b32 s7, s7, 1"); p("s_lshl_b32 s66, s3, 2"); p("s_add_u32 s66, s66, s7")
    p("s_cmp_lt_u32 s3, 11"); F[-1]=[('s',"s_cmp_lt_u32 s3, 11"),('s',"s_cselect_b32 s67, 6, 4")]
    MK='w1mask' in OPT
    if MK:
        p("s_lshl_b32 s7, s67, 1"); p("v_mov_b32 v15, 0x40000000")
    for i in range(3):
        p(f"v_add_u32 v11, {64*i}, v0")
        p("v_mul_u32_u24 v12, 5462, v11"); p("v_lshrrev_b32 v12, 16, v12")
        p("v_mul_u32_u24 v13, 12, v12"); p("v_sub_u32 v13, v11, v13")
        p("v_mul_u32_u24 v12, 2752, v12")
        if i: p(f"v_subrev_u32 v12, {1024*i}, v12")
        p(f"v_lshl_add_u32 v{2+i}, v13, 4, v12")
        if MK: p("v_cmp_le_u32 vcc, s7, v13"); p(f"v_cndmask_b32 v{2+i}, v{2+i}, v15, vcc")
        p("v_add_u32 v13, 10, v13"); p("v_subrev_u32 v14, 12, v13"); p("v_min_u32 v13, v13, v14")
        p(f"v_lshl_add_u32 v{5+i}, v13, 4, v12")
        if MK: p("v_cmp_le_u32 vcc, s7, v13"); p(f"v_cndmask_b32 v{5+i}, v{5+i}, v15, vcc")
    p(f"s_mul_i32 s68, s6, {16*2752}"); p("s_lshl_b32 s3, s66, 5"); p("s_add_u32 s68, s68, s3")
    p("s_mul_i32 s69, s6, 3072")
    return F
assert all((c*5462)>>16==c//12 for c in range(192))

def w1_dma(q):
    slot=q%6
    out=[]
    for mat in range(2):
        for i in range(3):
            g=[]
            if i==0 or ('w1wait' in OPT and q>=3): g.append(('s',f"s_add_u32 m0, s69, {slot*SLOT+mat*12288}"))
            if i==0 and mat==0: g.append(('s',f"s_add_u32 s71, s68, {q*64*2752}"))
            nt=' nt' if (('ntw1e' in OPT and q<3) or ('ntw1l' in OPT and q>=3)) else ''
            g.append(('m',('W1',q,3*mat+i),f"buffer_load_dwordx4 v{2+3*mat+i}, {SRD_A if mat==0 else SRD_B}, s71 offen offset:{i*1024}{nt} lds"))
            out.append(g)
    return out

WOA=128
def wo_frag_reads():
    out=[]
    for i in range(16):
        for cc,va in enumerate(('v10','v1')):
            b=WOA+8*i+4*cc
            out.append(f"ds_read_b64_tr_b16 v[{b}:{b+1}], {va} offset:{i*2048}")
            out.append(f"ds_read_b64_tr_b16 v[{b+2}:{b+3}], {va} offset:{i*2048+512}")
    return out

def wo_phase(p):
    if 'glue2' in OPT:
        flag_off(p,F2); p("s_waitcnt vmcnt(0)"); set_flag(p,'s3',12)
    else:
        p("s_waitcnt vmcnt(0)")
        flag_off(p,F2); set_flag(p,'s3',12)
    stamp(p,'C flag set',vt=14)
    p("s_barrier")
    WW=os.environ.get('WW','3,4,5').split(',') if 'w1wait' in OPT else []
    class NV2:
        def issue(s_,k,t): p(t)
    def wdma(q):
        for g in w1_dma(q): emit_group(p,NV2(),g)
    if '3' in WW: wdma(3)
    p("v_and_b32 v12, 31, v0"); p("v_lshlrev_b32 v12, 2, v12")
    p("s_lshl_b32 s30, s4, 7"); p(f"s_add_u32 s30, s30, {F2}")
    p("s_lshl_b32 s31, s61, 5"); p("s_and_b32 s3, s6, 1"); p("s_lshl_b32 s3, s3, 4"); p("s_add_u32 s31, s31, s3")
    p("s_lshl_b32 s31, s31, 10"); p(f"s_add_u32 s31, s31, {L.OF}")
    poll(p,'s2',SRD_WS,'s30','v12',1,13)
    stamp(p,'C S2 done',vt=14)
    vm=VM(p)
    for i in range(16):
        if i%4==0 and i: p(f"s_add_u32 s31, s31, 4096")
        vm.issue(i,f"buffer_load_dwordx4 a[{4*i}:{4*i+3}], v9, {SRD_WS}, s31 offen offset:{(i%4)*1024}{HL1}")
    ACC=[64,80]
    dm=[] if 'w1late' in OPT else w1_dma(3)+w1_dma(4)+w1_dma(5)
    for j in range(8): p(f"v_accvgpr_read_b32 v{112+j}, a{192+j}")
    RC='rescin' in OPT
    if RC:
        for j in range(8):
            p(f"v_lshlrev_b32 v{64+2*j}, 16, v{112+j}")
            p(f"v_and_b32 v{65+2*j}, 0xffff0000, v{112+j}")
    for i in range(16):
        vm.wait(i)
        for cc in ((1,0) if 'last10' in OPT else (0,1)):
            a=ACC[cc]; b=WOA+8*i+4*cc
            p(f"v_mfma_f32_32x32x16_bf16 v[{a}:{a+15}], v[{b}:{b+3}], a[{4*i}:{4*i+3}], {'0' if (i==0 and not (RC and cc==0)) else f'v[{a}:{a+15}]'}")
            if dm and (cc==0 or i<2): emit_group(p,vm,dm.pop(0))
    assert not dm
    for j in range(8):
        if RC: break
        p(f"v_lshlrev_b32 v{96+2*j}, 16, v{112+j}")
        p(f"v_and_b32 v{97+2*j}, 0xffff0000, v{112+j}")
    stamp(p,'C mfma',vt=14)
    if '4' in WW: wdma(4)
    if 'glue2' in OPT:
        p("s_lshl_b32 s71, s61, 5"); p("s_lshl_b32 s7, s62, 1"); p("s_add_u32 s71, s71, s7"); p("s_lshl_b32 s71, s71, 10"); p(f"s_add_u32 s71, s71, {L.HF}")
    pair_reduce(p,ACC,RED)
    for j in range(0 if RC else 8): p(f"v_pk_add_f32 v[{64+2*j}:{65+2*j}], v[{64+2*j}:{65+2*j}], v[{96+2*j}:{97+2*j}]")
    if 'pnorm' in OPT:
        wo_tail_pnorm(p); return
    for j in range(8): p(f"v_cvt_pk_bf16_f32 v{32+j}, v{64+2*j}, v{65+2*j}")
    hb='s3'
    if 'glue2' in OPT: hb='s71'
    else: p("s_lshl_b32 s3, s61, 5"); p("s_lshl_b32 s7, s62, 1"); p("s_add_u32 s3, s3, s7"); p("s_lshl_b32 s3, s3, 10"); p(f"s_add_u32 s3, s3, {L.HF}")
    hstore(p,[f"buffer_store_dwordx4 v[32:35], v9, {SRD_WS}, {hb} offen",
              f"buffer_store_dwordx4 v[36:39], v9, {SRD_WS}, {hb} offen offset:1024"])
    p("v_pk_mul_f32 v[42:43], v[64:65], v[64:65]"); p("v_pk_add_f32 v[40:41], v[64:65], v[66:67]")
    p("v_pk_fma_f32 v[42:43], v[66:67], v[66:67], v[42:43]")
    for j in range(2,8):
        p(f"v_pk_add_f32 v[40:41], v[40:41], v[{64+2*j}:{65+2*j}]"); p(f"v_pk_fma_f32 v[42:43], v[{64+2*j}:{65+2*j}], v[{64+2*j}:{65+2*j}], v[42:43]")
    p("v_add_f32 v40, v40, v41"); p("v_add_f32 v41, v42, v43")
    p("v_mov_b32 v42, v40"); p("v_mov_b32 v43, v41")
    p("v_permlane32_swap_b32 v40, v42"); p("v_permlane32_swap_b32 v41, v43")
    p("v_add_f32 v40, v40, v42"); p("v_add_f32 v41, v41, v43")
    p("s_lshl_b32 s3, s61, 12"); p("s_lshl_b32 s7, s62, 8"); p("s_add_u32 s3, s3, s7"); p(f"s_add_u32 s3, s3, {L.HS}")
    p("v_lshlrev_b32 v12, 3, v0")
    if 'hsflag' in OPT:
        for j in range(8): p(f"v_accvgpr_write_b32 a{248+j}, v{32+j}")
        p("s_waitcnt vmcnt(0)")
        p("s_mov_b32 exec_hi, 0")
        hstore(p,f"buffer_store_dwordx2 v[40:41], v12, {SRD_WS}, s3 offen")
        p("s_mov_b64 exec, -1")
        stamp(p,'C done',vt=14)
        return
    p("s_mov_b32 exec_hi, 0")
    hstore(p,f"buffer_store_dwordx2 v[40:41], v12, {SRD_WS}, s3 offen")
    p("s_mov_b64 exec, -1")
    for j in range(8): p(f"v_accvgpr_write_b32 a{248+j}, v{32+j}")
    flag_off(p,F3)
    p("s_waitcnt vmcnt(0)")
    set_flag(p,'s3',12)
    stamp(p,'C done',vt=14)

def ln_stats(p,b):
    for i in range(2):
        p(f"v_pk_add_f32 v[{b+4*i}:{b+1+4*i}], v[{b+4*i}:{b+1+4*i}], v[{b+2+4*i}:{b+3+4*i}]")
        p(f"v_pk_add_f32 v[{b+8+4*i}:{b+9+4*i}], v[{b+8+4*i}:{b+9+4*i}], v[{b+10+4*i}:{b+11+4*i}]")
    p(f"v_pk_add_f32 v[{b}:{b+1}], v[{b}:{b+1}], v[{b+4}:{b+5}]"); p(f"v_pk_add_f32 v[{b+8}:{b+9}], v[{b+8}:{b+9}], v[{b+12}:{b+13}]")
    p(f"v_pk_add_f32 v[16:17], v[{b}:{b+1}], v[{b+8}:{b+9}]")
    p("v_mov_b32 v18, v16"); p("v_mov_b32 v19, v17")
    p("v_permlane32_swap_b32 v16, v18"); p("v_permlane32_swap_b32 v17, v19")
    p("v_add_f32 v16, v16, v18"); p("v_add_f32 v17, v17, v19")
    p(f"v_mul_f32 v16, {hx(f2u(1/512))}, v16"); p(f"v_mul_f32 v17, {hx(f2u(1/512))}, v17")
    p("v_fma_f32 v17, -v16, v16, v17"); p("v_max_f32 v17, 0, v17"); p(f"v_add_f32 v17, {hx(f2u(1e-5))}, v17")
    p("v_rsq_f32 v17, v17"); p("v_mul_f32 v16, v16, v17"); p("v_sub_f32 v18, 0, v16"); p("v_mov_b32 v19, v18"); p("v_mov_b32 v16, v17")

def wo_tail_pnorm(p):
    p("v_pk_mul_f32 v[42:43], v[64:65], v[64:65]"); p("v_pk_add_f32 v[40:41], v[64:65], v[66:67]")
    p("v_pk_fma_f32 v[42:43], v[66:67], v[66:67], v[42:43]")
    for j in range(2,8):
        p(f"v_pk_add_f32 v[40:41], v[40:41], v[{64+2*j}:{65+2*j}]"); p(f"v_pk_fma_f32 v[42:43], v[{64+2*j}:{65+2*j}], v[{64+2*j}:{65+2*j}], v[42:43]")
    p("v_add_f32 v40, v40, v41"); p("v_add_f32 v41, v42, v43")
    p("v_mov_b32 v42, v40"); p("v_mov_b32 v43, v41")
    p("v_permlane32_swap_b32 v40, v42"); p("v_permlane32_swap_b32 v41, v43")
    p("s_lshl_b32 s31, s61, 12"); p(f"s_add_u32 s31, s31, {L.HS}"); p("s_lshl_b32 s7, s62, 8"); p("s_add_u32 s3, s31, s7")
    p("v_add_f32 v40, v40, v42"); p("v_add_f32 v41, v41, v43")
    p("v_lshlrev_b32 v12, 3, v0")
    p("s_mov_b32 exec_hi, 0")
    hstore(p,f"buffer_store_dwordx2 v[40:41], v12, {SRD_WS}, s3 offen")
    p("s_mov_b64 exec, -1")
    p("v_and_b32 v12, 31, v0"); p("v_lshlrev_b32 v12, 3, v12"); p("v_lshrrev_b32 v13, 5, v0"); p("v_lshl_add_u32 v30, v13, 11, v12")
    def lds_():
        for i in range(8): p(f"buffer_load_dwordx2 v[{96+2*i}:{97+2*i}], v30, {SRD_WS}, s31 offen offset:{i*256} sc1")
    lds_()
    for j in range(8): p(f"v_cvt_pk_bf16_f32 v{32+j}, v{64+2*j}, v{65+2*j}")
    for j in range(8): p(f"v_accvgpr_write_b32 a{248+j}, v{32+j}")
    p("s_lshl_b32 s3, s61, 5"); p("s_lshl_b32 s7, s62, 1"); p("s_add_u32 s3, s3, s7"); p("s_lshl_b32 s3, s3, 10"); p(f"s_add_u32 s30, s3, {L.HF}")
    p(f"s_mov_b32 s29, {SPIN}")
    p.label("POLL_hs")
    p("s_waitcnt vmcnt(0)")
    p("v_max3_u32 v112, v97, v99, v101"); p("v_max3_u32 v113, v103, v105, v107"); p("v_max3_u32 v112, v112, v109, v111"); p("v_max_u32 v112, v112, v113")
    p("v_cmp_eq_u32 vcc, -1, v112")
    p("s_cmp_eq_u64 vcc, 0"); p("s_cbranch_scc1 POLLD_hs")
    p("s_sub_u32 s29, s29, 1"); p("s_cmp_eq_u32 s29, 0"); p("s_cbranch_scc1 POLLD_hs")
    lds_()
    p("s_branch POLL_hs")
    p.label("POLLD_hs")
    stamp(p,'C stats',vt=12)
    ln_stats(p,96)
    for j in range(8): p(f"v_pk_fma_f32 v[{64+2*j}:{65+2*j}], v[{64+2*j}:{65+2*j}], v[16:17], v[18:19]")
    for j in range(8): p(f"v_cvt_pk_bf16_f32 v{32+j}, v{64+2*j}, v{65+2*j}")
    hstore(p,[f"buffer_store_dwordx4 v[32:35], v9, {SRD_WS}, s30 offen",
              f"buffer_store_dwordx4 v[36:39], v9, {SRD_WS}, s30 offen offset:1024"])
    flag_off(p,F3)
    p("s_waitcnt vmcnt(0)")
    set_flag(p,'s3',12)
    stamp(p,'C done',vt=14)
    if 'w1wait' in OPT and '5' in os.environ.get('WW','3,4,5').split(','):
        class NV2:
            def issue(s_,k,t): p(t)
        for g in w1_dma(5): emit_group(p,NV2(),g)

def flag_off(p,F):
    p("s_lshl_b32 s3, s4, 7"); p("s_lshl_b32 s7, s5, 4"); p("s_add_u32 s3, s3, s7"); p("s_lshl_b32 s7, s6, 2"); p("s_add_u32 s3, s3, s7")
    p(f"s_add_u32 s3, s3, {F}")

def pair_reduce(p,ACC,base):
    p(f"s_lshl_b32 s3, s6, 12"); p(f"s_add_u32 s3, s3, {base}")
    p("v_add_u32 v12, s3, v9")
    for q in range(4): p(f"ds_write_b128 v12, v[{ACC[1]+4*q}:{ACC[1]+4*q+3}] offset:{q*1024}")
    p("v_xor_b32 v12, 4096, v12")
    p("s_waitcnt lgkmcnt(0)")
    p("s_barrier")
    for q in range(4): p(f"ds_read_b128 v[{ACC[1]+4*q}:{ACC[1]+4*q+3}], v12 offset:{q*1024}")
    for q in range(4):
        p(f"s_waitcnt lgkmcnt({3-q})")
        for j in range(2):
            a=ACC[0]+4*q+2*j; b=ACC[1]+4*q+2*j
            p(f"v_pk_add_f32 v[{a}:{a+1}], v[{a}:{a+1}], v[{b}:{b+1}]")

def ffn1_phase(p):
    p("s_lshr_b32 s70, s4, 1"); p("s_lshl_b32 s70, s70, 2"); p("s_add_u32 s70, s70, s6")
    if 'wdpf' in OPT:
        p("v_lshrrev_b32 v1, 3, v0"); p("v_and_b32 v10, 7, v0")
        w128_voff(p,'v1')
        p("s_lshl_b32 s74, s6, 12"); p("s_lshl_b32 s77, s6, 15")
        p("s_lshr_b32 s3, s6, 1"); p(f"s_mul_i32 s75, s3, {43*16*1024}")
    lane_params(p)
    p("v_mul_u32_u24 v10, 192, v14"); p("v_add_u32 v10, v10, v96")
    p(f"v_mul_u32_u24 v97, {12288+32}, v15"); p("v_add_u32 v28, v10, v97")
    p(f"v_mul_u32_u24 v97, {12288+32-192}, v15"); p("v_add_u32 v29, v10, v97")
    p("v_and_b32 v12, 31, v0"); p("v_lshlrev_b32 v12, 3, v12"); p("v_lshrrev_b32 v13, 5, v0"); p("v_lshl_add_u32 v30, v13, 11, v12")
    p("v_lshlrev_b32 v12, 2, v0")
    p("s_lshr_b32 s30, s4, 1"); p("s_lshl_b32 s30, s30, 8"); p(f"s_add_u32 s30, s30, {F3}")
    HSF='hsflag' in OPT
    G2='glue2' in OPT and HSF
    def pre_b():
        srd(p,24,P_WD,1376*1024)
        p("s_lshr_b32 s79, s2, 3"); p("s_lshl_b32 s79, s79, 2"); p("s_add_u32 s79, s79, s6"); p("s_mul_i32 s79, s79, 11008")
        p("v_lshlrev_b32 v14, 6, v0")
        p("s_lshl_b32 s30, s70, 15"); p(f"s_add_u32 s30, s30, {L.HF}")
    if G2: pre_b()
    if HSF:
        p("s_lshl_b32 s31, s70, 12"); p(f"s_add_u32 s31, s31, {L.HS}")
        p(f"s_mov_b32 s29, {SPIN}")
        p.label("POLL_hs3")
        for i in range(8): p(f"buffer_load_dwordx2 v[{32+2*i}:{33+2*i}], v30, {SRD_WS}, s31 offen offset:{i*256} sc1")
        p("s_waitcnt vmcnt(0)")
        p("v_max3_u32 v48, v33, v35, v37"); p("v_max3_u32 v49, v39, v41, v43"); p("v_max3_u32 v48, v48, v45, v47"); p("v_max_u32 v48, v48, v49")
        p("v_cmp_eq_u32 vcc, -1, v48")
        p("s_cmp_eq_u64 vcc, 0"); p("s_cbranch_scc1 POLLD_hs3")
        p("s_sub_u32 s29, s29, 1"); p("s_cmp_lg_u32 s29, 0"); p("s_cbranch_scc1 POLL_hs3")
        p.label("POLLD_hs3")
    else: poll(p,'s3',SRD_WS,'s30','v12',1,13)
    stamp(p,'D S3 done',vt=12)
    if not G2: pre_b()
    vm=VM(p)
    def ldB(s):
        p(f"s_add_u32 s3, s30, {s*1024}")
        vm.issue(('B',s),f"buffer_load_dwordx4 v[{128+4*s}:{131+4*s}], v9, {SRD_WS}, s3 offen{HL1}")
    if not G2: p("s_lshl_b32 s31, s70, 12"); p(f"s_add_u32 s31, s31, {L.HS}")
    PN='pnorm' in OPT
    ldB(0)
    if not PN and not HSF:
        for i in range(8): vm.issue(('S',i),f"buffer_load_dwordx2 v[{32+2*i}:{33+2*i}], v30, {SRD_WS}, s31 offen offset:{i*256}{HL1}")
    LA=int(os.environ.get('LA1','8'))
    for s in range(1,LA): ldB(s)
    NEW='w1late' in OPT
    if not NEW: p("s_barrier")
    AB=[0,24]
    def rdA(s):
        q,ss=divmod(s,4); b=AB[s%2]; out=[]
        for uu in range(6):
            va='v10' if uu<5 else 'v11'
            off=ss*3072+uu*32
            out.append(f"ds_read_b64_tr_b16 a[{b+4*uu}:{b+4*uu+1}], {va} offset:{off}")
            out.append(f"ds_read_b64_tr_b16 a[{b+4*uu+2}:{b+4*uu+3}], {va} offset:{off+768}")
        return out
    def setbase(q):
        slot=q%6
        return [f"v_add_u32 v10, {slot*SLOT}, v28", f"v_add_u32 v11, {slot*SLOT}, v29"]
    for x in setbase(0): p(x)
    for x in rdA(0): p(x)
    if not PN:
        if not HSF: vm.wait(('S',7))
        ln_stats(p,32)
    def norm(s):
        out=[]
        if PN: return out
        if 'pknorm' in OPT:
            for i in range(4):
                r=128+4*s+i; t0=20+2*i; t1=21+2*i
                out.append(f"v_lshlrev_b32 v{t0}, 16, v{r}"); out.append(f"v_and_b32 v{t1}, 0xffff0000, v{r}")
            for i in range(4):
                t0=20+2*i
                out.append(f"v_pk_fma_f32 v[{t0}:{t0+1}], v[{t0}:{t0+1}], v[16:17], v[18:19]")
            for i in range(4):
                r=128+4*s+i; t0=20+2*i; t1=21+2*i
                out.append(f"v_cvt_pk_bf16_f32 v{r}, v{t0}, v{t1}")
            return out
        for h2 in range(2):
            for i in (2*h2,2*h2+1):
                r=128+4*s+i; t0=20+2*i; t1=21+2*i
                out.append(f"v_lshlrev_b32 v{t0}, 16, v{r}"); out.append(f"v_and_b32 v{t1}, 0xffff0000, v{r}")
            for i in (2*h2,2*h2+1):
                t0=20+2*i; t1=21+2*i
                out.append(f"v_fma_f32 v{t0}, v{t0}, v16, v18"); out.append(f"v_fma_f32 v{t1}, v{t1}, v16, v18")
            for i in (2*h2,2*h2+1):
                r=128+4*s+i; t0=20+2*i; t1=21+2*i
                out.append(f"v_cvt_pk_bf16_f32 v{r}, v{t0}, v{t1}")
        return out
    vm.wait(('B',0))
    for x in norm(0): p(x)
    stamp(p,'D start',vt=12)
    ACC=[32+16*u for u in range(6)]
    dmas=w1_dma(6)+w1_dma(7)
    DS={}; BAR={}
    def wd_group(g0,vb=4):
        out=[]
        for j in range(4):
            g=[]
            if j==0 or 'w1wait' in OPT: g.append(('s',f"s_add_u32 m0, s74, {g0*4096}"))
            if j==0:
                g.append(('s',f"s_add_u32 s76, s77, {(g0//20)*43*16*1024+(g0%20)*32768}"))
            g.append(('m',('WD',g0,j),f"buffer_load_dwordx4 v{vb+j}, {SRD_O}, s76 offen offset:{j*1024}{' nt' if 'ntwd' in OPT else ''} lds"))
            out.append(g)
        return out
    WDPF='wdpf' in OPT
    if NEW:
        def put(items,s0,per):
            for n,g in enumerate(items): DS.setdefault(s0+n//per,[]).append(g)
        SWS=15
        if 'w1wait' in OPT:
            assert WDPF and PN
            WW=os.environ.get('WW','3,4,5').split(',')
            late=[q for q in (3,4,5) if str(q) not in WW]
            put(sum((w1_dma(q) for q in late),[]),0,2)
            put(w1_dma(6),8,1); put(w1_dma(7),14,1)
            BAR={8:[('W1',q,5) for q in late],20:[('W1',6,5)]}
            SWS=19
            p("v_mov_b32 v20, v1")
            for j in range(1,4): p(f"v_add_u32 v{20+j}, {7168*j}, v1")
            put(wd_group(36,20),int(os.environ.get('RA0','2')),1)
        else:
            put(w1_dma(3),0,2); put(w1_dma(4)+w1_dma(5),3,2); put(dmas,9,2)
            BAR={8:[('W1',3,5)],14:[('W1',5,5)],20:[('W1',7,5)]}
        if WDPF:
            if 'w1wait' not in OPT: put(wd_group(36),16,1)
            put(sum((wd_group(g) for g in (12,16,20,24)),[]),20,2)
            put(sum((wd_group(g) for g in (28,32)),[]),28,2)
            BAR[24]=[('W1',7,5)] if 'w1wait' in OPT else []
    if 'x_nods' in OPT:
        DS={}; BAR={k:[] for k in BAR}
    if 'x_nods2' in OPT:
        DS={k:v for k,v in DS.items() if k<15};
    DPL=tuple(int(x) for x in os.environ.get('DPL','3,5,4').split(','))
    SKP={int(x):n for n,x in enumerate(os.environ.get('SKP','0,1,2,3').split(','))}
    if 'skew0' in OPT: BAR[int(os.environ.get('SK0','1'))]=[]
    def f1loop(NU,vm):
      H=NU//2
      def ldB(s):
          if 'x_nob' in OPT:
              vm.pos[('B',s)]=vm.pos[('B',0)]; return
          p(f"s_add_u32 s3, s30, {s*1024}")
          vm.issue(('B',s),f"buffer_load_dwordx4 v[{128+4*s}:{131+4*s}], v9, {SRD_WS}, s3 offen{HL1}")
      for s in range(32):
          nxt=s+1
          pre=[]; rd=[]; fill=[]; mem=[]
          SKEW='skew' in OPT
          if NEW:
              if s in BAR and not SKEW:
                  if BAR[s]: vm.wait(*BAR[s])
                  p("s_barrier")
          elif s==8:
              p("s_barrier")
          if B2:
              for j in (LA+2*s,LA+2*s+1):
                  if j<32: mem.append(('B',j))
          elif s+LA<32: mem.append(('B',s+LA))
          if not NEW and 8<=s<20: mem.append(('D',s-8))
          if 'warm' in OPT and 'wdatt' not in OPT and WD_STEP<=s<WD_STEP+3: mem.append(('W',s-WD_STEP))
          if 'pt' in OPT and s==PT_STEP: mem.append(('P',0))
          if 'ptout' in OPT and s==int(os.environ.get('PTO_STEP','29')): mem.append(('O',0))
          if nxt<32:
              qn,ssn=divmod(nxt,4)
              if nxt==24 and not NEW:
                  vm.wait(('W1',7,5))
                  p("s_barrier")
              if ssn==0: pre=setbase(qn)
              rd=rdA(nxt)[:2*NU]; fill=norm(nxt)
          if 'x_nofill' in OPT: fill=[]
          if 'x_nord' in OPT: rd=[]
          if 'x_nodma' in OPT and s!=19: mem=[m for m in mem if m[0]!='D']
          if 'x_nodma' in OPT and s==19: mem=[('B',s+LA)]; vm.pos[('W1',7,5)]=vm.n-1
          if 'oldwait' in OPT: p("s_waitcnt lgkmcnt(0)")
          for x in pre: p(x)
          if PN: vm.wait(('B',s))
          elif nxt<32: vm.wait(('B',nxt))
          b=AB[s%2]
          mf=[f"v_mfma_f32_32x32x16_bf16 v[{ACC[uu]}:{ACC[uu]+15}], a[{b+4*uu}:{b+4*uu+3}], v[{128+4*s}:{131+4*s}], {'0' if s==0 else f'v[{ACC[uu]}:{ACC[uu]+15}]'}" for uu in range(NU)]
          fi=0
          KS=[3,3,3,3,2,2] if 'pknorm' in OPT else ([3,4,3,3,4,3] if NU==6 else [5,5,5,5])
          for uu in range(NU):
              if 'oldwait' not in OPT:
                  if 'wait6' in OPT: p(f"s_waitcnt lgkmcnt({10 if nxt<32 else 2*(5-uu)})")
                  elif uu in (0,H): p(f"s_waitcnt lgkmcnt({2*H if (nxt<32 or uu==0) else 0})")
              p(mf[uu])
              for x in rd[2*uu:2*uu+2]: p(x)
              k=KS[uu]
              for x in fill[fi:fi+k]: p(x)
              fi+=k
              if NEW and SKEW and s in BAR and uu in SKP:
                  lab=f"SKW_{s}_{uu}"
                  p(f"s_cmp_lg_u32 s6, {SKP[uu]}"); p(f"s_cbranch_scc1 {lab}")
                  if BAR[s]: vm.wait(*BAR[s])
                  p("s_barrier")
                  p.label(lab)
              if uu==1 and mem and mem[0][0]=='B': ldB(mem[0][1])
              if NEW:
                  for n,g in enumerate(DS.get(s,[])):
                      if (DPL if NU==6 else (2,3,3))[n]==uu: emit_group(p,vm,g)
                  if WDPF and s==SWS and uu==NU-1:
                      p("v_mov_b32 v4, v1")
                      for j in range(1,4): p(f"v_add_u32 v{4+j}, {7168*j}, v1")
              if uu==4 and len(mem)>1 and mem[1][0]=='B': ldB(mem[1][1])
              if uu==3:
                  for m in mem:
                      if m[0]=='D':
                          emit_group(p,vm,dmas[m[1]])
                      if m[0]=='P':
                          p("s_mul_i32 s3, s70, 86"); p("s_add_u32 s3, s3, s66"); p("s_lshl_b32 s3, s3, 10"); p(f"s_add_u32 s3, s3, {L.AF}")
                          p("v_lshlrev_b32 v13, 7, v0"); p("s_lshl_b32 s7, s67, 3"); p("s_bfm_b64 exec, s7, 0")
                          vm.issue(('P',0),f"buffer_load_dword v15, v13, {SRD_WS}, s3 offen ; nowaitcheck")
                          p("s_mov_b64 exec, -1")
                      if m[0]=='O':
                          srd(p,16,P_OUT,2048*1024)
                          p("s_lshl_b32 s3, s62, 6")
                          vm.issue(('O',0),f"buffer_load_dword v15, v8, {SRD_A}, s3 offen ; nowaitcheck")
                      if m[0]=='W':
                          p(f"s_add_u32 s3, s79, {m[1]*4096}")
                          vm.issue(('W',m[1]),f"buffer_load_dword v15, v14, {SRD_O}, s3 offen ; nowaitcheck")
          for x in fill[fi:]: p(x)
    if 'four' in OPT:
        import copy
        vm4=copy.copy(vm); vm4.pos=dict(vm.pos)
        p("s_cmp_eq_u32 s67, 4"); p("s_cbranch_scc1 F1L_4")
        f1loop(6,vm)
        p("s_branch F1L_end")
        p.label("F1L_4")
        f1loop(4,vm4)
        p.label("F1L_end")
    else: f1loop(6,vm)
    stamp(p,'D mfma done',vt=12)
    if NEW and WDPF:
        WD=[[x[1] if x[0]=='s' else x[2] for x in g] for g0 in (0,4,8) for g in wd_group(g0)]
    else:
        p("v_lshrrev_b32 v1, 3, v0"); p("v_and_b32 v10, 7, v0")
        w128_voff(p,'v4')
        for j in range(1,4): p(f"v_add_u32 v{4+j}, {7168*j}, v4")
        p("s_lshr_b32 s3, s6, 1"); p("s_and_b32 s7, s6, 1")
        p(f"s_mul_i32 s30, s3, 81920"); p(f"s_mul_i32 s31, s7, 40960"); p("s_add_u32 s74, s30, s31")
        p(f"s_mul_i32 s75, s3, {43*16*1024}"); p(f"s_mul_i32 s31, s7, {320*1024}"); p("s_add_u32 s77, s31, s75")
        WD=dma128(['v4','v5','v6','v7'],SRD_O,'s74',0,'s77',40,sg='s71')
    if 'glue2' not in OPT: p("s_barrier")
    c1=-2*1.4426950408889634*0.7978845608028654; c2=c1*0.044715
    p(f"s_mov_b32 s72, {hx(f2u(c2))}"); p("s_mov_b32 s73, s72")
    p(f"v_mov_b32 v28, {hx(f2u(c1))}"); p("v_mov_b32 v29, v28")
    p("v_mov_b32 v30, 1.0"); p("v_mov_b32 v31, 1.0")
    p("s_mul_i32 s30, s70, 86"); p("s_add_u32 s30, s30, s66"); p("s_lshl_b32 s30, s30, 10"); p(f"s_add_u32 s30, s30, {L.AF}")
    if 'glue2' in OPT: p("s_barrier")
    S4S='s4split' in OPT
    if S4S: flag_off(p,F3); p("s_mov_b32 s80, s3")
    NDU=[8,8,8,8,4,4]
    if NEW and WDPF: NDU=[int(x) for x in os.environ.get('NDU','3,3,3,3,0,0').split(',')]
    k0=0
    for uu in range(6):
        a=ACC[uu]; T=16
        if uu==4:
            p("s_cmp_eq_u32 s67, 4"); p("s_cbranch_scc1 F1_four")
        pr=lambda x,j: f"v[{x+2*j}:{x+2*j+1}]"
        I=[]
        for j in range(4): I.append(f"v_pk_mul_f32 {pr(T,j)}, {pr(a,j)}, {pr(a,j)}")
        for j in range(4): I.append(f"v_pk_fma_f32 {pr(T,j)}, {pr(T,j)}, s[72:73], v[28:29]")
        for j in range(4): I.append(f"v_pk_mul_f32 {pr(T,j)}, {pr(T,j)}, {pr(a,j)}")
        for j in range(8): I.append(f"v_exp_f32 v{T+j}, v{T+j}")
        for j in range(4): I.append(f"v_pk_mul_f32 {pr(a,j)}, {pr(a,j)}, {pr(a+8,j)}")
        for j in range(4): I.append(f"v_pk_add_f32 {pr(T,j)}, {pr(T,j)}, v[30:31]")
        for j in range(8): I.append(f"v_rcp_f32 v{T+j}, v{T+j}")
        for j in range(4): I.append(f"v_pk_mul_f32 {pr(T,j)}, {pr(T,j)}, {pr(a,j)}")
        for j in range(4): I.append(f"v_cvt_pk_bf16_f32 v{24+j}, v{T+2*j}, v{T+2*j+1}")
        G=WD[k0:k0+NDU[uu]]; k0+=NDU[uu]
        gap=len(I)//max(len(G),1)
        for n,x in enumerate(I):
            p(x)
            if n%gap==gap-1 and G:
                for y in G.pop(0): p(y)
        assert not G
        hstore(p,f"buffer_store_dwordx4 v[24:27], v9, {SRD_WS}, s30 offen offset:{(uu%4)*1024}")
        if uu==3: p("s_add_u32 s30, s30, 4096")
        if S4S and uu==int(os.environ.get('F4A','4')):
            p(f"s_waitcnt vmcnt({sum(NDU[3:uu+1])+uu-2})")
            set_flag(p,'s80',12)
    p("s_branch F1_done")
    p.label("F1_four")
    for g in WD[sum(NDU[:4]):]:
        for y in g: p(y)
    if S4S:
        p("s_waitcnt vmcnt(0)")
        set_flag(p,'s80',12)
    p.label("F1_done")
    stamp(p,'D epi done',vt=12)

def ffn2_phase(p):
    S4S='s4split' in OPT
    flag_off(p,F4)
    if S4S:
        p("v_lshlrev_b32 v50, 2, v0")
        p("s_lshr_b32 s30, s4, 1"); p("s_lshl_b32 s30, s30, 8"); p(f"s_add_u32 s81, s30, {F4}"); p(f"s_add_u32 s30, s30, {F3}")
        p(f"buffer_load_dword v48, v50, {SRD_WS}, s30 offen sc1")
    p("s_waitcnt vmcnt(0)")
    set_flag(p,'s3',12)
    stamp(p,'E flag set',vt=12)
    srd(p,16,P_WD,1376*1024)
    srd(p,24,P_OUT,2048*1024)
    lane_params(p)
    p("s_and_b32 s3, s6, 1"); p("s_lshl_b32 s3, s3, 2")
    tr_base128(p,'v10',"s3",0)
    p("s_and_b32 s3, s6, 1"); p("s_mul_i32 s3, s3, 81920")
    p("v_add_u32 v10, s3, v10")
    p("v_xor_b32 v11, 64, v10")
    p("v_add_u32 v14, 49152, v10"); p("v_add_u32 v15, 49152, v11")
    RC='rescin' in OPT
    if RC:
        for j in range(8): p(f"v_accvgpr_read_b32 v{52+j}, a{248+j}")
        for j in range(8):
            p(f"v_lshlrev_b32 v{64+2*j}, 16, v{52+j}")
            p(f"v_and_b32 v{65+2*j}, 0xffff0000, v{52+j}")
    p("s_barrier")
    AB=[16+8*b for b in range(4)]
    ACC=[64,80]; NS=43
    LA=int(os.environ.get('LA2','8'))
    def orders(kh):
        if not S4S: return list(range(NS)),0,[0,1,2]
        u0=[4*m+2*min(m,11) for m in range(16)]; nu=[6 if m<11 else 4 for m in range(16)]
        early=set()
        for m in range(16):
            for k in range(3 if nu[m]==6 else 4): early.add(u0[m]+k)
        e=[s for s in range(40) if 43*kh+s in early]; l=[s for s in range(40) if 43*kh+s not in early]
        o=e+l+[40,41,42]
        return o,len(e),o[:3]
    def mkrd(order,reuse):
        def rd(i,ccs=(0,1)):
            b=AB[i%4]; st=order[i]
            j=st if st<40 else reuse[st-40]
            off=j*2048
            va=('v10','v11')
            if j>=24: va=('v14','v15'); off-=49152
            for cc in ccs:
                p(f"ds_read_b64_tr_b16 v[{b+4*cc}:{b+4*cc+1}], {va[cc]} offset:{off}")
                p(f"ds_read_b64_tr_b16 v[{b+4*cc+2}:{b+4*cc+3}], {va[cc]} offset:{off+512}")
        return rd
    if not S4S:
        rd=mkrd(*orders(0)[::2])
        for i in range(3): rd(i)
    p("s_and_b32 s7, s6, 1"); p("s_mul_i32 s3, s7, 3")
    p("s_lshl_b32 s76, s3, 13"); p("s_add_u32 s76, s76, s75"); p(f"s_add_u32 s76, s76, {40*16*1024}")
    p("s_lshl_b32 s77, s3, 10"); p("s_lshr_b32 s3, s6, 1"); p("s_mul_i32 s3, s3, 81920"); p("s_add_u32 s77, s77, s3")
    if S4S:
        assert orders(0)[2]==[0,1,2] and orders(1)[2]==[0,1,5]
        p("s_cmp_eq_u32 s6, 3"); p("s_cselect_b32 s78, 6144, 0"); p("s_add_u32 s78, s78, s77")
    p("s_mul_i32 s31, s61, 86"); p("s_and_b32 s3, s6, 1"); p("s_mul_i32 s3, s3, 43"); p("s_add_u32 s31, s31, s3")
    p("s_lshl_b32 s31, s31, 10"); p(f"s_add_u32 s31, s31, {L.AF}")
    if 'wbl2' in OPT: raise RuntimeError
    def check_flags(name,reg,soff,waitf):
        waitf()
        p(f"v_cmp_ne_u32 vcc, 1, v{reg}")
        p("s_cmp_eq_u64 vcc, 0"); p(f"s_cbranch_scc1 POLLD_{name}")
        p(f"s_mov_b32 s29, {SPIN}")
        p.label(f"POLL_{name}")
        p(f"buffer_load_dword v{reg}, v50, {SRD_WS}, {soff} offen sc1")
        p("s_waitcnt vmcnt(0)")
        p(f"v_cmp_ne_u32 vcc, 1, v{reg}")
        p("s_cmp_eq_u64 vcc, 0")
        p(f"s_cbranch_scc1 POLLD_{name}")
        p("s_sub_u32 s29, s29, 1"); p("s_cmp_lg_u32 s29, 0"); p(f"s_cbranch_scc1 POLL_{name}")
        p.label(f"POLLD_{name}")
    def loop(kh):
        order,ne,reuse=orders(kh)
        rd=mkrd(order,reuse)
        vm=VM(p)
        def ldB(i):
            if S4S:
                st=order[i]
                if st>=4: p(f"s_add_u32 s3, s31, {(st//4)*4096}")
                vm.issue(('B',i),f"buffer_load_dwordx4 a[{4*i}:{4*i+3}], v9, {SRD_WS}, {'s3' if st>=4 else 's31'} offen offset:{(st%4)*1024}{HL1}")
                return
            if i%4==0 and i: p(f"s_add_u32 s31, s31, 4096")
            vm.issue(('B',i),f"buffer_load_dwordx4 a[{4*i}:{4*i+3}], v9, {SRD_WS}, s31 offen offset:{(i%4)*1024}{HL1}")
        for i in range(LA): ldB(i)
        if S4S:
            for i in range(3): rd(i)
        PQ=ne-LA-int(os.environ.get('PD',str(LA)))
        assert not S4S or (0<=PQ<ne-LA and LA<=ne)
        for i in range(NS):
            if i==4:
                p("s_barrier")
                for j in range(3):
                    p(f"s_add_u32 m0, {'s78' if (S4S and j) else 's77'}, {j*1024}"); p(f"s_add_u32 s3, s76, {j*8192}")
                    vm.issue(('D',j),f"buffer_load_dwordx4 v4, {SRD_A}, s3 offen lds")
            if i==36:
                vm.wait(('D',2))
                p("s_barrier")
            if S4S and i==PQ: vm.issue(('F',0),f"buffer_load_dword v49, v50, {SRD_WS}, s81 offen sc1")
            rem=min(2,NS-1-i)
            vm.wait(('B',i),extra=f" lgkmcnt({rem*4})")
            b=AB[i%4]
            CO=(1,0) if 'last10' in OPT else (0,1)
            for cc in CO:
                a=ACC[cc]
                p(f"v_mfma_f32_32x32x16_bf16 v[{a}:{a+15}], v[{b+4*cc}:{b+4*cc+3}], a[{4*i}:{4*i+3}], {'0' if (i==0 and not (RC and cc==0)) else f'v[{a}:{a+15}]'}")
                if cc==CO[0] and i+LA<NS:
                    if S4S and i+LA==ne:
                        if kh==0: stamp(p,'E pre b',vt=52)
                        check_flags(f's4b{kh}',49,'s81',lambda: vm.wait(('F',0)))
                        if kh==0: stamp(p,'E post b',vt=52)
                    ldB(i+LA)
                if i+3<NS: rd(i+3,(cc,))
    if S4S:
        check_flags('s4a',48,'s30',lambda: None)
        stamp(p,'E S4 done',vt=100)
        p("s_bitcmp1_b32 s6, 0"); p("s_cbranch_scc1 F2_K1")
        loop(0)
        p("s_branch F2_end")
        p.label("F2_K1")
        loop(1)
        p.label("F2_end")
    else:
        p("v_lshlrev_b32 v12, 2, v0")
        p("s_lshr_b32 s30, s4, 1"); p("s_lshl_b32 s30, s30, 8"); p(f"s_add_u32 s30, s30, {F4}")
        poll(p,'s4',SRD_WS,'s30','v12',1,13)
        stamp(p,'E S4 done',vt=100)
        loop(0)
    stamp(p,'E mfma',vt=12)
    pair_reduce(p,ACC,8192)
    if not RC:
        for j in range(8): p(f"v_accvgpr_read_b32 v{32+j}, a{248+j}")
        for j in range(8):
            p(f"v_lshlrev_b32 v{96+2*j}, 16, v{32+j}")
            p(f"v_and_b32 v{97+2*j}, 0xffff0000, v{32+j}")
        for j in range(8): p(f"v_pk_add_f32 v[{64+2*j}:{65+2*j}], v[{64+2*j}:{65+2*j}], v[{96+2*j}:{97+2*j}]")
    for j in range(8): p(f"v_cvt_pk_bf16_f32 v{32+j}, v{64+2*j}, v{65+2*j}")
    p("s_lshl_b32 s3, s62, 6")
    OF_=os.environ.get('OUTF','').replace('_',' ')
    if 'x_outfull' in OPT:
        p("v_lshrrev_b32 v8, 3, v0"); p("v_lshlrev_b32 v8, 10, v8"); p("v_and_b32 v13, 7, v0"); p("v_lshl_add_u32 v8, v13, 4, v8")
        p("s_lshl_b32 s3, s61, 15"); p("s_and_b32 s7, s6, 1"); p("s_lshl_b32 s7, s7, 14"); p("s_add_u32 s3, s3, s7"); p("s_lshl_b32 s7, s5, 7"); p("s_add_u32 s3, s3, s7")
        p(f"buffer_store_dwordx4 v[32:35], v8, {SRD_O}, s3 offen {OF_}")
        p("s_add_u32 s3, s3, 8192")
        p(f"buffer_store_dwordx4 v[36:39], v8, {SRD_O}, s3 offen {OF_}")
        return
    p(f"buffer_store_dwordx4 v[32:35], v8, {SRD_O}, s3 offen {OF_}")
    p(f"buffer_store_dwordx4 v[36:39], v8, {SRD_O}, s3 offen offset:32 {OF_}")

def build(fname):
    p=Prog()
    end="END_K"
    prologue(p,end)
    stamp(p,'start')
    phase_a(p)
    attention(p)
    wo_phase(p)
    ffn1_phase(p)
    ffn2_phase(p)
    stamp(p,'end',vt=12)
    p.label(end)
    p("s_endpgm")
    attention_slow(p)
    emit_outl(p)
    ins=p.finalize(name='k',check_waits=not os.environ.get('NOCHECK'))
    print(f"{len(ins)} lines, {p.nops} hazard nops",file=sys.stderr)
    ref=open('sequential_preLN__grouped_kv_mqa__geglu_ffn__prompt.s.ref').read()
    hdr=ref.split('; Override')[0]
    out=hdr+f"; @launch grid=(256,1,1) block=(256,1,1) lds={LDS_TOTAL}\n"
    out+='.amdgcn_target "amdgcn-amd-amdhsa--gfx950"\n.text\n'
    out+=f".globl {KNAME}\n.p2align 8\n.type {KNAME},@function\n{KNAME}:\n"+render(ins)
    out+=f""".section .rodata,"a"
.p2align 6
.amdhsa_kernel {KNAME}
  .amdhsa_next_free_vgpr 512
  .amdhsa_next_free_sgpr 96
  .amdhsa_accum_offset 256
  .amdhsa_group_segment_fixed_size 0
  .amdhsa_kernarg_size 96
  .amdhsa_user_sgpr_count 2
  .amdhsa_user_sgpr_kernarg_segment_ptr 1
  .amdhsa_system_sgpr_workgroup_id_x 1
.end_amdhsa_kernel
"""
    open(fname,'w').write(out)

if __name__=='__main__':
    out=sys.argv[1]
    if len(sys.argv)>2: PROFILE=True
    build(out)
    open(out+'.stamps','w').write('\n'.join(STAMPS))
    if DSTAMPS: print(DSTAMPS)
```

```python
import sys, os, struct
from asm import Prog, render
import layout as L

OPT=set(x for x in os.environ.get('OPT','').split(',') if x)
KNAME='sequential_preLN__grouped_kv_mqa__geglu_ffn__prompt_kernel'
QSCALE=1.4426950408889634/4.0
def f2u(x): return struct.unpack('<I',struct.pack('<f',x))[0]
def hx(x): return '0x%08x'%(x & 0xffffffff)

SRD_WS='s[8:11]'; SRD_X='s[12:15]'; SRD_A='s[16:19]'; SRD_B='s[20:23]'; SRD_O='s[24:27]'; SRD_D='s[56:59]'
P_X,P_WQ,P_WK,P_WV,P_WO,P_WG,P_WU,P_WD,P_OUT,P_WS,P_DBG=32,34,36,38,40,44,46,48,50,52,54
SPIN=1<<17

XH0=0; XH1=33792; WQ=67584; WK=XH1; WV=XH1+16384+128
WO_L=0; OP=73728; QL=147456; MX=155648; MF=MX+4096; QM=161792
SLOT=24576; RED=147456
LDS_TOTAL=163840
F2=L.FLG; F3=L.FLG+4096; F4=L.FLG+8192; FX=L.FLG+12288

def srd(p, d, ptr, size):
    p(f"s_mov_b32 s{d}, s{ptr}")
    p(f"s_mov_b32 s{d+1}, s{ptr+1}")
    p(f"s_mov_b32 s{d+2}, {hx(size)}")
    p(f"s_mov_b32 s{d+3}, 0x20000")
def csel(p,d,a,b):
    p(f"s_mov_b32 {d}, {b}"); p(f"s_cmov_b32 {d}, {a}")

PROFILE=False
HL1=' nt' if 'ldnt' in OPT else ('' if 'ldpl' in OPT else (' sc0' if 'ldsc0' in OPT else ' sc1'))
HS1='' if 'l2h' in OPT else ' sc1'
PF_N=int(os.environ.get('PF_N','3'))
PT_STEP=int(os.environ.get('PT_STEP','24'))
FLG_CLR=208
WD_STEP=int(os.environ.get('WD_STEP','24'))
B2='b2' in OPT
PF2_T=int(os.environ.get('PF2_T','8'))
GO_STEP=int(os.environ.get('GO_STEP','7'))
STAMPS=[]
DSTAMPS=[]
def dstamp(p,name,vt):
    slot=len(DSTAMPS)
    if slot>=16: return
    DSTAMPS.append(name)
    lab=f"DST_{slot}_{len(p.lines)}"
    p("s_lshl_b32 s90, s2, 2"); p("s_or_b32 s90, s90, s6")
    p(f"s_cmp_lg_u32 s90, {int(os.environ.get('DWG','40'))*4}"); p(f"s_cbranch_scc1 {lab}")
    p("s_memrealtime s[90:91]")
    p("s_waitcnt lgkmcnt(0) ; nowaitcheck")
    p(f"v_mov_b32 v{vt}, s90"); p(f"v_mov_b32 v{vt+1}, {slot*4}")
    p("s_mov_b64 s[94:95], exec"); p("s_mov_b64 exec, 1")
    p(f"buffer_store_dword v{vt}, v{vt+1}, {SRD_D}, 0 offen")
    p("s_mov_b64 exec, s[94:95]")
    p.label(lab)
DSEL=os.environ.get('DSEL','').split(',')
def stamp(p, name, vt=250, dyn=None, n=1):
    if name in DSEL: dstamp(p,name,vt)
    if not PROFILE: return
    slot=len(STAMPS)
    for i in range(n): STAMPS.append(name+(f"[{i}]" if n>1 else ""))
    lab=f"ST_{slot}_{len(p.lines)}"
    p("s_cmp_lg_u32 s6, 0"); p(f"s_cbranch_scc1 {lab}")
    p("s_memrealtime s[90:91]")
    p("s_memtime s[88:89]")
    p("s_lshl_b32 s92, s2, 3"); p(f"s_add_u32 s92, s92, {L.PROF+slot*2048}")
    if dyn: p(f"s_lshl_b32 s93, {dyn}, 11"); p("s_add_u32 s92, s92, s93")
    p("s_waitcnt lgkmcnt(0) ; nowaitcheck")
    p(f"v_mov_b32 v{vt}, s90"); p(f"v_mov_b32 v{vt+1}, s88"); p(f"v_mov_b32 v{vt+2}, 0")
    p("s_mov_b64 s[94:95], exec"); p("s_mov_b64 exec, 1")
    p(f"buffer_store_dwordx2 v[{vt}:{vt+1}], v{vt+2}, {SRD_WS}, s92 offen")
    p("s_mov_b64 exec, s[94:95]")
    p.label(lab)

class VM:
    def __init__(s,p): s.p=p; s.n=0; s.pos={}
    def issue(s,key,txt):
        s.p(txt); s.pos[key]=s.n; s.n+=1
    def wait(s,*keys,extra=""):
        need=max(s.pos[k] for k in keys)
        c=s.n-1-need
        if c<=63: s.p(f"s_waitcnt vmcnt({c}){extra}")
        elif extra: s.p(f"s_waitcnt{extra}")

def poll(p, name, srd_, soff, vaddr, expect, vt, sleep=0):
    if PROFILE:
        p("s_waitcnt vmcnt(0)")
        stamp(p,name+' own dma',vt={'s1':200,'s4':100}.get(name,14))
    p(f"s_mov_b32 s29, {SPIN}")
    p.label(f"POLL_{name}")
    p(f"buffer_load_dword v{vt}, {vaddr}, {srd_}, {soff} offen sc1")
    p("s_waitcnt vmcnt(0)")
    p(f"v_cmp_ne_u32 vcc, {expect}, v{vt}")
    p("s_cmp_eq_u64 vcc, 0")
    p(f"s_cbranch_scc1 POLLD_{name}")
    if sleep: p(f"s_sleep {sleep}")
    p("s_sub_u32 s29, s29, 1")
    p("s_cmp_lg_u32 s29, 0")
    p(f"s_cbranch_scc1 POLL_{name}")
    p.label(f"POLLD_{name}")

OUTL=[]
def hstore(p, lines):
    if isinstance(lines,str): lines=[lines]
    if 'xcc' not in OPT:
        for x in lines: p(x+HS1)
        return
    k=len(OUTL)
    p("s_cmp_lg_u32 s43, 0"); p(f"s_cbranch_scc1 HST_{k}")
    for x in lines: p(x)
    p.label(f"HSB_{k}")
    OUTL.append((k,[x+' sc1' for x in lines]))
def emit_outl(p):
    for k,lines in OUTL:
        p.label(f"HST_{k}")
        for x in lines: p(x)
        p(f"s_branch HSB_{k}")

def set_flag(p, soff, vt):
    p(f"v_mov_b32 v{vt}, 1"); p(f"v_mov_b32 v{vt+1}, 0")
    p("s_mov_b64 exec, 1")
    hstore(p,f"buffer_store_dword v{vt}, v{vt+1}, {SRD_WS}, {soff} offen")
    p("s_mov_b64 exec, -1")

def prologue(p, end):
    p(f"s_cmp_ge_u32 s2, {0 if 'empty' in OPT else 256}")
    p(f"s_cbranch_scc1 {end}")
    p("s_load_dwordx4 s[32:35], s[0:1], 0")
    p("s_load_dwordx4 s[36:39], s[0:1], 16")
    p("s_load_dwordx2 s[40:41], s[0:1], 32")
    p("s_load_dwordx4 s[44:47], s[0:1], 48")
    p("s_load_dwordx4 s[48:51], s[0:1], 64")
    p("s_load_dwordx2 s[52:53], s[0:1], 88")
    p("s_load_dwordx2 s[54:55], s[0:1], 80")
    p("v_lshrrev_b32 v1, 6, v0")
    p("v_and_b32 v0, 63, v0")
    p("v_readfirstlane_b32 s6, v1")
    p("s_and_b32 s3, s2, 7")
    p("s_lshr_b32 s7, s2, 3")
    p("s_lshr_b32 s4, s7, 3")
    p("s_lshl_b32 s3, s3, 2")
    p("s_add_u32 s4, s4, s3")
    p("s_and_b32 s5, s7, 7")
    p("v_lshlrev_b32 v9, 4, v0")
    if 'codepf' in OPT:
        p("s_getpc_b64 s[60:61]")
        p.label("PF_HERE")
        p("s_lshl_b32 s3, s7, 2"); p("s_add_u32 s3, s3, s6"); p("s_lshl_b32 s3, s3, 9")
        p("v_and_b32 v231, 7, v0"); p("v_lshlrev_b32 v231, 6, v231")
        p("v_add_u32 v231, s3, v231")
        p(f"v_min_u32 v230, END_K-PF_HERE-4, v231")
        p("s_mov_b64 exec, 0xff")
        p(f"global_load_dword v232, v230, s[60:61] ; nowaitcheck")
        p("s_mov_b64 exec, -1")
    p("s_waitcnt lgkmcnt(0)")
    srd(p,8,P_WS,L.WS_USED)
    srd(p,56,P_DBG,256)

def ln_tile(p, X, vaddr, off, extra=None, write=True):
    U=176
    S,S2,Q,Q2=80,82,84,86
    I=[]
    a=I.append
    pr=lambda r: f"v[{r}:{r+1}]"
    for i in range(32):
        a(f"v_lshlrev_b32 v{U+2*i}, 16, v{X+i}")
        a(f"v_and_b32 v{U+2*i+1}, 0xffff0000, v{X+i}")
        if i>=1:
            k=i-1; u=U+2*k; sa=(S,S2)[k%2]; qa=(Q,Q2)[k%2]
            if k<2: a(f"v_pk_mul_f32 {pr(qa)}, {pr(u)}, {pr(u)}")
            else: a(f"v_pk_fma_f32 {pr(qa)}, {pr(u)}, {pr(u)}, {pr(qa)}")
            if k==2 or k==3: a(f"v_pk_add_f32 {pr(sa)}, {pr(U+2*(k-2))}, {pr(u)}")
            elif k>3: a(f"v_pk_add_f32 {pr(sa)}, {pr(sa)}, {pr(u)}")
    u=U+62
    a(f"v_pk_fma_f32 {pr(Q2)}, {pr(u)}, {pr(u)}, {pr(Q2)}")
    a(f"v_pk_add_f32 {pr(S2)}, {pr(S2)}, {pr(u)}")
    a(f"v_pk_add_f32 {pr(S)}, {pr(S)}, {pr(S2)}")
    a(f"v_pk_add_f32 {pr(Q)}, {pr(Q)}, {pr(Q2)}")
    S0,Q0='v80','v82'
    a(f"v_add_f32 v80, v80, v81")
    a(f"v_add_f32 v82, v84, v85")
    for d in ("quad_perm:[1,0,3,2]","quad_perm:[2,3,0,1]","row_half_mirror"):
        a(f"v_add_f32_dpp {S0}, {S0}, {S0} {d} row_mask:0xf bank_mask:0xf")
        a(f"v_add_f32_dpp {Q0}, {Q0}, {Q0} {d} row_mask:0xf bank_mask:0xf")
    a(f"v_mul_f32 {S0}, {hx(f2u(1/512))}, {S0}")
    a(f"v_mul_f32 {Q0}, {hx(f2u(1/512))}, {Q0}")
    a(f"v_fma_f32 {Q0}, -{S0}, {S0}, {Q0}")
    a(f"v_max_f32 {Q0}, 0, {Q0}")
    a(f"v_add_f32 {Q0}, {hx(f2u(1e-5))}, {Q0}")
    a(f"v_rsq_f32 v92, {Q0}")
    a(f"v_sub_f32 v94, 0, {S0}")
    a(f"v_mov_b32 v93, v92")
    a(f"v_mul_f32 v94, v94, v92")
    a(f"v_mov_b32 v95, v94")
    for cb in range(8):
        for i in range(4):
            u=U+2*(4*cb+i)
            a(f"v_pk_fma_f32 {pr(u)}, {pr(u)}, v[92:93], v[94:95]")
        for i in range(4):
            u=U+2*(4*cb+i)
            a(f"v_cvt_pk_bf16_f32 v{X+4*cb+i}, v{u}, v{u+1}")
        if write: a(f"ds_write_b128 {vaddr}, v[{X+4*cb}:{X+4*cb+3}] offset:{off+cb*4224}")
    extra=list(extra or [])
    gap=max(1,(len(I)-8)//max(1,len(extra))) if extra else 0
    for n,x in enumerate(I):
        p(x)
        if extra and n%gap==gap-1:
            for y in extra.pop(0): p(y)
    for g in extra:
        for y in g: p(y)
def ln_write(p, X, vaddr, off):
    for cb in range(8): p(f"ds_write_b128 {vaddr}, v[{X+4*cb}:{X+4*cb+3}] offset:{off+cb*4224}")

def dma128(vregs, srd_, sbase_lds, lds_off, sbase_g, n, sg='s31', nt=''):
    out=[]
    for i in range(n):
        j=i%4; g=[]
        if j==0:
            g.append(f"s_add_u32 m0, {sbase_lds}, {lds_off+i*1024}")
            g.append(f"s_add_u32 {sg}, {sbase_g}, {i*8192}")
        g.append(f"buffer_load_dwordx4 {vregs[j]}, {srd_}, {sg} offen offset:{j*1024}{nt} lds")
        out.append(g)
    return out

def gemm_lds(p, nsteps, readA, readB, mfma, rps, depth=3, nbuf=4, fill=None, hook=None):
    fill=list(fill or []); hook=hook or {}
    for s in range(min(depth,nsteps)):
        readA(s,s%nbuf); readB(s,s%nbuf)
    for s in range(nsteps):
        if s+depth<nsteps:
            readA(s+depth,(s+depth)%nbuf); readB(s+depth,(s+depth)%nbuf)
        rem=min(depth,nsteps-1-s)
        p(f"s_waitcnt lgkmcnt({rem*rps})")
        mfma(s,s%nbuf)
        if s in hook: hook[s]()
        for _ in range(2):
            if fill: p(fill.pop(0))
    for x in fill: p(x)

def tr_base128(p, dst, cbit_sgpr, base, t=97):
    a=f"v{t}"; b=f"v{t+1}"
    p(f"v_and_b32 {a}, 1, v13")
    p(f"v_lshl_add_u32 {a}, v15, 1, {a}")
    if cbit_sgpr: p(f"v_add_u32 {a}, {cbit_sgpr}, {a}")
    p(f"v_lshrrev_b32 {b}, 1, v12")
    p(f"v_lshlrev_b32 {b}, 2, {b}")
    p(f"v_xor_b32 {a}, {a}, {b}")
    p(f"v_lshlrev_b32 {a}, 4, {a}")
    p(f"v_lshrrev_b32 {b}, 1, v13")
    p(f"v_lshl_add_u32 {a}, {b}, 3, {a}")
    p(f"v_lshl_add_u32 {a}, v14, 7, {a}")
    p(f"v_add_u32 {dst}, {base}, {a}")

def lane_params(p):
    p("v_lshrrev_b32 v11, 4, v0")
    p("v_bfe_u32 v12, v0, 2, 2")
    p("v_and_b32 v13, 3, v0")
    p("v_lshrrev_b32 v14, 1, v11")
    p("v_lshl_add_u32 v14, v14, 3, v12")
    p("v_and_b32 v15, 1, v11")
    p("v_and_b32 v96, 1, v13")
    p("v_lshlrev_b32 v96, 4, v96")
    p("v_lshrrev_b32 v97, 1, v13")
    p("v_lshl_add_u32 v96, v97, 3, v96")

def w128_voff(p, dst):
    p("v_lshrrev_b32 v11, 4, v0")
    p("v_and_b32 v11, 1, v11")
    p("v_lshlrev_b32 v11, 2, v11")
    p("v_xor_b32 v11, v11, v10")
    p("v_lshlrev_b32 v11, 4, v11")
    p(f"v_lshl_add_u32 {dst}, v1, 10, v11")
    if 'x_wdx' in OPT and dst=='v1': p("s_xor_b32 s3, s5, 1"); p("s_lshl_b32 s3, s3, 7")
    else: p("s_lshl_b32 s3, s5, 7")
    p(f"v_add_u32 {dst}, s3, {dst}")

def hs_sentinel(p,w):
    if 'hsflag' not in OPT: return
    p("s_lshl_b32 s3, s60, 12"); p(f"s_add_u32 s3, s3, {L.HS+w*2048}")
    for i in range(4): p(f"v_mov_b32 v{120+i}, -1")
    p(f"buffer_store_dwordx4 v[120:123], v9, {SRD_WS}, s3 offen sc1")
    p(f"buffer_store_dwordx4 v[120:123], v9, {SRD_WS}, s3 offen offset:1024 sc1")

VA=64
def phase_a(p):
    p("s_mov_b32 s28, 0x3f803f80")
    srd(p,12,P_X,2048*1024)
    p("s_and_b32 s3, s5, 1")
    p("s_lshl_b32 s60, s4, 1")
    p("s_add_u32 s60, s60, s3")
    p("v_lshrrev_b32 v1, 3, v0")
    p("v_and_b32 v10, 7, v0")
    p("s_lshl_b32 s3, s60, 5")
    p("s_lshl_b32 s7, s6, 3")
    p("s_add_u32 s3, s3, s7")
    p("v_add_u32 v2, s3, v1")
    p("v_lshlrev_b32 v2, 10, v2")
    p("v_lshl_add_u32 v2, v10, 4, v2")
    p("v_xor_b32 v3, 0x8000, v2")
    for cb in range(8):
        p(f"buffer_load_dwordx4 v[{16+4*cb}:{19+4*cb}], v2, {SRD_X}, 0 offen offset:{cb*128}")
    srd(p,16,P_WQ,512*1024)
    w128_voff(p,'v4')
    p("v_lshrrev_b32 v11, 1, v10")
    p("v_mul_u32_u24 v11, 1056, v11")
    p("v_and_b32 v12, 1, v10")
    p("v_mul_u32_u24 v12, 528, v12")
    p("v_add_u32 v5, v11, v12")
    p("s_lshl_b32 s3, s6, 3")
    p("v_add_u32 v11, s3, v1")
    p("v_lshl_add_u32 v5, v11, 4, v5")
    p("v_lshrrev_b32 v11, 5, v0")
    p("v_mul_u32_u24 v11, 528, v11")
    p("v_and_b32 v12, 31, v0")
    p("v_lshl_add_u32 v6, v12, 4, v11")
    lane_params(p)
    p(f"v_mul_u32_u24 v97, {WV-WK}, v15")
    p("v_lshl_add_u32 v97, v14, 5, v97")
    p("v_add_u32 v97, v97, v96")
    p(f"v_add_u32 v8, {WK}, v97")
    p("s_and_b32 s3, s6, 1")
    p("s_lshl_b32 s3, s3, 2")
    tr_base128(p,'v7','s3',WQ)
    p("s_cmp_ge_u32 s5, 2")
    p("s_cselect_b32 s77, 4, 8")
    p("s_sub_u32 s3, s6, 2"); p("s_lshl_b32 s3, s3, 1")
    p("s_cmp_ge_u32 s5, 2"); p("s_cselect_b32 s3, s6, s3")
    p("s_lshl_b32 s75, s3, 17")
    p("s_lshl_b32 s76, s3, 14"); p(f"s_add_u32 s76, s76, {WQ}")
    p("s_lshl_b32 s74, s6, 14")
    p("s_cmp_ge_u32 s5, 2")
    p("s_cbranch_scc1 A_nokvdma")
    p("s_cmp_lg_u32 s6, 2")
    p("s_cbranch_scc1 A_noclr")
    p(f"s_mul_i32 s3, s60, {FLG_CLR}")
    p(f"s_add_u32 s3, s3, {L.FLG}")
    p("v_lshlrev_b32 v11, 2, v0")
    p("v_mov_b32 v12, 0")
    p(f"s_mov_b32 exec_hi, {hx((1<<(FLG_CLR//4-32))-1)}")
    p(f"buffer_store_dword v12, v11, {SRD_WS}, s3 offen sc1")
    p("s_mov_b64 exec, -1")
    p.label("A_noclr")
    p("s_cmp_lt_u32 s6, 2")
    p(f"s_cselect_b32 s20, s{P_WK}, s{P_WV}")
    p(f"s_cselect_b32 s21, s{P_WK+1}, s{P_WV+1}")
    p("s_mov_b32 s22, 16384")
    p("s_mov_b32 s23, 0x20000")
    csel(p,'s30',WK,WV)
    p("s_and_b32 s3, s6, 1")
    p("s_lshl_b32 s3, s3, 13")
    p("s_add_u32 s30, s30, s3")
    for i in range(8):
        if i%4==0: p(f"s_add_u32 m0, s30, {i*1024}"); p(f"s_add_u32 s31, s3, {i*1024}")
        p(f"buffer_load_dwordx4 v9, {SRD_B}, s31 offen offset:{(i%4)*1024} lds")
    stamp(p,'A issued')
    WE='wqearly' in OPT
    if WE:
        p("s_cmp_lt_u32 s6, 2"); p("s_cbranch_scc1 A_noweq")
        p("v_add_u32 v240, 7168, v4"); p("v_add_u32 v241, 14336, v4"); p("v_add_u32 v242, 21504, v4")
        for g in range(8):
            p(f"s_add_u32 m0, s76, {g*4096}"); p(f"s_add_u32 s3, s75, {g*32768}")
            for j,vr in enumerate(('v4','v240','v241','v242')):
                p(f"buffer_load_dwordx4 {vr}, {SRD_A}, s3 offen offset:{j*1024} lds")
        if 'vones' in OPT: v_ones(p,88)
        p("s_waitcnt vmcnt(40)")
        p("s_branch A_xw")
        p.label("A_noweq")
    if 'vones' in OPT: v_ones(p,88)
    p("s_waitcnt vmcnt(8)")
    p("s_branch A_xw")
    p.label("A_nokvdma")
    if 'wqwarm' in OPT:
        p("s_and_b32 s3, s4, 3"); p("s_mul_i32 s3, s3, 6"); p("s_add_u32 s3, s3, s5"); p("s_sub_u32 s3, s3, 2")
        p("s_lshl_b32 s3, s3, 2"); p("s_add_u32 s3, s3, s6"); p("s_mul_i32 s3, s3, 22")
        p("v_add_u32 v247, s3, v0"); p("v_lshrrev_b32 v246, 2, v247"); p("v_and_b32 v247, 3, v247"); p("v_lshlrev_b32 v247, 6, v247")
        p("v_lshl_add_u32 v247, v246, 10, v247")
        p("s_mov_b64 exec, 0x3fffff")
        p(f"buffer_load_dword v246, v247, {SRD_A}, 0 offen ; nowaitcheck")
        p("s_mov_b64 exec, -1")
    if 'vones' in OPT: v_ones(p,88)
    p("s_waitcnt vmcnt(1)" if 'wqwarm' in OPT else "s_waitcnt vmcnt(0)")
    p.label("A_xw")
    stamp(p,'A x arrived')
    ln_tile(p,16,'v5',XH0,extra=[[f"buffer_load_dwordx4 v[{48+4*cb}:{51+4*cb}], v3, {SRD_X}, 0 offen offset:{cb*128}"] for cb in range(8)])
    for j in range(1,4): p(f"v_add_u32 v{175+j+64}, {7168*j}, v4")
    stamp(p,'A lnA done')
    p("s_cmp_ge_u32 s5, 2")
    p("s_cbranch_scc1 A_wqdma")
    if 'wqearly' in OPT:
        p("s_cmp_lt_u32 s6, 2"); p("s_cbranch_scc1 A_kw01")
        p("s_waitcnt vmcnt(40) lgkmcnt(0)")
        p("s_barrier")
        p("s_waitcnt vmcnt(0)")
        p("s_branch A_kvdone")
        p.label("A_kw01")
    p("s_waitcnt vmcnt(8) lgkmcnt(0)")
    p("s_barrier")
    p("s_cmp_ge_u32 s6, 2")
    p("s_cbranch_scc1 A_wqdma")
    AB_=[96+4*b for b in range(6)]; BB_=[144+4*b for b in range(6)]
    def rA(s,b):
        p(f"ds_read_b64_tr_b16 v[{AB_[b]}:{AB_[b]+1}], v8 offset:{s*512}")
        p(f"ds_read_b64_tr_b16 v[{AB_[b]+2}:{AB_[b]+3}], v8 offset:{s*512+128}")
    def rB(s,b):
        p(f"ds_read_b128 v[{BB_[b]}:{BB_[b]+3}], v6 offset:{XH0+s*1056}")
    p("s_cmp_eq_u32 s6, 1")
    p("s_cbranch_scc1 A_vwave")
    gemm_lds(p,32,rA,rB,lambda s,b: p(f"v_mfma_f32_32x32x16_bf16 v[128:143], v[{AB_[b]}:{AB_[b]+3}], v[{BB_[b]}:{BB_[b]+3}], {'0' if s==0 else 'v[128:143]'}"),3,depth=4,nbuf=6)
    for j in range(4): p(f"v_cvt_pk_bf16_f32 v{88+j}, v{128+2*j}, v{129+2*j}")
    p("s_lshl_b32 s3, s60, 10")
    p(f"s_add_u32 s3, s3, {L.KF}")
    p(f"buffer_store_dwordx4 v[88:91], v9, {SRD_WS}, s3 offen sc1")
    p("v_mul_f32 v84, v128, v128")
    for j in range(1,8): p(f"v_fmac_f32 v84, v{128+j}, v{128+j}")
    p("v_mov_b32 v85, v84")
    p("v_permlane32_swap_b32 v84, v85")
    p("v_add_f32 v84, v84, v85")
    for d in ("row_ror:8","row_ror:4","row_ror:2","row_ror:1"):
        p(f"v_max_f32_dpp v84, v84, v84 {d} row_mask:0xf bank_mask:0xf")
    p("v_readlane_b32 s3, v84, 0")
    p("v_readlane_b32 s7, v84, 16")
    p("s_max_u32 s3, s3, s7")
    p("v_mov_b32 v84, s3")
    p("s_lshl_b32 s7, s60, 7")
    p(f"s_add_u32 s7, s7, {L.KM}")
    p("v_lshlrev_b32 v85, 2, v0")
    p("s_mov_b32 exec_hi, 0")
    p(f"buffer_store_dword v84, v85, {SRD_WS}, s7 offen sc1")
    p("s_mov_b64 exec, -1")
    p("s_waitcnt vmcnt(2)")
    hs_sentinel(p,0)
    p("s_branch A_kvdone")
    p.label("A_vwave")
    p("v_and_b32 v84, 3, v0")
    p("v_bfe_u32 v85, v0, 2, 1")
    p("v_lshl_add_u32 v84, v85, 3, v84")
    p("v_bfe_u32 v85, v0, 3, 1")
    p("v_lshl_add_u32 v84, v85, 2, v84")
    p("v_and_b32 v85, 16, v0")
    p("v_add_u32 v84, v84, v85")
    p("v_lshrrev_b32 v85, 5, v0")
    p("v_mul_u32_u24 v85, 528, v85")
    p("v_lshl_add_u32 v86, v84, 4, v85")
    def rBv(s,b):
        p(f"ds_read_b128 v[{BB_[b]}:{BB_[b]+3}], v86 offset:{XH0+s*1056}")
    gemm_lds(p,32,rA,rBv,lambda s,b: p(f"v_mfma_f32_32x32x16_bf16 v[128:143], v[{BB_[b]}:{BB_[b]+3}], v[{AB_[b]}:{AB_[b]+3}], {'0' if s==0 else 'v[128:143]'}"),3,depth=4,nbuf=6)
    for j in range(8): p(f"v_cvt_pk_bf16_f32 v{88+j}, v{128+2*j}, v{129+2*j}")
    p("v_xor_b32 v84, 256, v9")
    p("s_lshl_b32 s3, s60, 11")
    p(f"s_add_u32 s3, s3, {L.VF}")
    p("s_mov_b32 exec_lo, 0xffff0000")
    p("s_mov_b32 exec_hi, 0xffff0000")
    p(f"buffer_store_dwordx4 v[88:91], v84, {SRD_WS}, s3 offen sc1")
    p(f"buffer_store_dwordx4 v[92:95], v84, {SRD_WS}, s3 offen offset:1024 sc1")
    p("s_mov_b64 exec, -1")
    p("s_waitcnt vmcnt(2)")
    hs_sentinel(p,1)
    p("s_branch A_kvdone")
    p.label("A_wqdma")
    p("s_waitcnt vmcnt(0)")
    p.label("A_wqloop")
    p("s_mov_b32 m0, s76")
    for j,vr in enumerate(('v4','v240','v241','v242')):
        p(f"buffer_load_dwordx4 {vr}, {SRD_A}, s75 offen offset:{j*1024}{' nt' if 'ntwq' in OPT else ''} lds")
    p("s_add_u32 s76, s76, 4096"); p("s_add_u32 s75, s75, 32768")
    p("s_sub_u32 s77, s77, 1"); p("s_cmp_lg_u32 s77, 0"); p("s_cbranch_scc1 A_wqloop")
    p.label("A_kvdone")
    stamp(p,'A kvdone')
    ln_tile(p,48,'v5',XH1,write=False)
    KE='kvearly' in OPT
    if KE:
        p("s_cmp_ge_u32 s5, 2"); p("s_cbranch_scc1 A_nosig")
        p("s_barrier")
        p("s_cmp_ge_u32 s6, 2"); p("s_cbranch_scc1 A_nosig")
        ln_write(p,48,'v5',XH1)
        p("s_branch A_lnbw")
        p.label("A_nosig")
        ln_write(p,48,'v5',XH1)
        p("s_waitcnt vmcnt(0)")
        p.label("A_lnbw")
        p("s_waitcnt lgkmcnt(0)")
        p("s_barrier")
        stamp(p,'A lnB done')
        phase_a_q(p,KE,AB_,BB_)
        return
    p("s_cmp_ge_u32 s5, 2"); p("s_cbranch_scc1 A_nosig")
    p("s_cmp_ge_u32 s6, 2"); p("s_cbranch_scc1 A_nosig2")
    p("s_waitcnt vmcnt(0)")
    p("s_barrier")
    p("s_cmp_lg_u32 s6, 0"); p("s_cbranch_scc1 A_nosig3")
    if 'go2' in OPT:
        p("s_lshr_b32 s3, s60, 5"); p("s_lshl_b32 s3, s3, 6"); p("v_mov_b32 v85, s3")
    else: p("v_mov_b32 v85, 0")
    p("v_mov_b32 v243, 1")
    p("s_mov_b64 exec, 1")
    p(f"buffer_atomic_add v243, v85, {SRD_D}, 0 offen sc0 sc1 ; nowaitcheck")
    p("s_mov_b64 exec, -1")
    stamp(p,'A sig')
    p.label("A_nosig3")
    ln_write(p,48,'v5',XH1)
    p("s_branch A_lnbw")
    p.label("A_nosig2")
    p("s_barrier")
    p.label("A_nosig")
    ln_write(p,48,'v5',XH1)
    p("s_waitcnt vmcnt(0)")
    p.label("A_lnbw")
    p("s_waitcnt lgkmcnt(0)")
    p("s_barrier")
    stamp(p,'A lnB done')
    phase_a_q(p,False,AB_,BB_)

GOFN=[]
def phase_a_q(p,KE,AB_,BB_):
    if 'wowarm' in OPT:
        srd(p,24,P_WO,512*1024)
        p("s_cmp_lt_u32 s5, 2"); p("s_cbranch_scc1 A_nowarm")
        p("s_and_b32 s3, s4, 3"); p("s_mul_i32 s3, s3, 6"); p("s_add_u32 s3, s3, s5"); p("s_sub_u32 s3, s3, 2")
        p("s_lshl_b32 s3, s3, 2"); p("s_add_u32 s3, s3, s6"); p("s_mul_i32 s3, s3, 5504")
        p("v_lshlrev_b32 v247, 6, v0")
        p(f"buffer_load_dword v246, v247, {SRD_O}, s3 offen ; nowaitcheck")
        p("s_add_u32 s3, s3, 4096")
        p("s_mov_b64 exec, 0x3fffff")
        p(f"buffer_load_dword v246, v247, {SRD_O}, s3 offen ; nowaitcheck")
        p("s_mov_b64 exec, -1")
        p.label("A_nowarm")
    def go():
        N=32 if 'go2' in OPT else 64
        p("s_cmp_ge_u32 s5, 2"); p("s_cbranch_scc1 A_nogo")
        p("s_cmp_lg_u32 s6, 0"); p("s_cbranch_scc1 A_nogo")
        p("s_waitcnt vmcnt(0)")
        stamp(p,'A atom ret')
        p(f"v_readfirstlane_b32 s3, v243"); p(f"s_and_b32 s3, s3, {N-1}"); p(f"s_cmp_lg_u32 s3, {N-1}"); p("s_cbranch_scc1 A_nogo")
        p("v_mov_b32 v243, 1")
        if 'go2' in OPT:
            p("s_lshr_b32 s3, s60, 5"); p("s_lshl_b32 s3, s3, 6"); p("s_add_u32 s3, s3, 128"); p("v_mov_b32 v244, s3")
        else: p("v_mov_b32 v244, 128")
        p("s_mov_b64 exec, 1")
        p(f"buffer_store_dword v243, v244, {SRD_D}, 0 offen sc1")
        p("s_mov_b64 exec, -1")
        p.label("A_nogo")
    def kvsig():
        p("s_cmp_ge_u32 s5, 2"); p("s_cbranch_scc1 A_nosig9")
        p("s_waitcnt vmcnt(0)")
        p("s_barrier")
        p("s_cmp_lg_u32 s6, 0"); p("s_cbranch_scc1 A_nosig9")
        p("s_lshr_b32 s3, s60, 5"); p("s_lshl_b32 s3, s3, 6"); p("v_mov_b32 v245, s3")
        p("v_mov_b32 v243, 1")
        p("s_mov_b64 exec, 1")
        p(f"buffer_atomic_add v243, v245, {SRD_D}, 0 offen sc0 sc1 ; nowaitcheck")
        p("s_mov_b64 exec, -1")
        stamp(p,'A sig')
        p.label("A_nosig9")
    GOP=os.environ.get('GOP','q')
    hooks={GO_STEP:go}
    if KE:
        hooks={int(os.environ.get('KA','12')):kvsig}
        if GOP=='hook': hooks[GO_STEP]=go
        elif GOP=='pre': GOFN.append(go)
    p("s_lshr_b32 s3, s6, 1")
    p(f"s_mul_i32 s7, s3, {XH1}")
    p("v_add_u32 v6, s7, v6")
    def rA(s,b):
        p(f"ds_read_b64_tr_b16 v[{AB_[b]}:{AB_[b]+1}], v7 offset:{s*2048}")
        p(f"ds_read_b64_tr_b16 v[{AB_[b]+2}:{AB_[b]+3}], v7 offset:{s*2048+512}")
    def rB(s,b):
        p(f"ds_read_b128 v[{BB_[b]}:{BB_[b]+3}], v6 offset:{s*1056}")
    gemm_lds(p,32,rA,rB,lambda s,b: p(f"v_mfma_f32_32x32x16_bf16 v[128:143], v[{AB_[b]}:{AB_[b]+3}], v[{BB_[b]}:{BB_[b]+3}], {'0' if s==0 else 'v[128:143]'}"),3,depth=4,nbuf=6,fill=att_setup(),hook=hooks)
    if KE and GOP=='q0': go()
    p(f"s_mov_b32 s30, {hx(f2u(QSCALE))}"); p("s_mov_b32 s31, s30")
    if 'wo2' in OPT: p("v_mov_b32 v239, v4")
    else:
        for j in range(1,4): p(f"v_add_u32 v{4+j}, {7168*j}, v4")
    for j in range(8): p(f"v_pk_mul_f32 v[{128+2*j}:{129+2*j}], v[{128+2*j}:{129+2*j}], s[30:31]")
    for j in range(8): p(f"v_cvt_pk_bf16_f32 v{96+j}, v{128+2*j}, v{129+2*j}")
    p("s_lshr_b32 s3, s6, 1")
    p("s_xor_b32 s3, s5, s3"); p("s_and_b32 s3, s3, 1"); p("s_lshl_b32 s3, s3, 2")
    p("s_and_b32 s7, s6, 1"); p("s_lshl_b32 s7, s7, 1"); p("s_add_u32 s3, s3, s7")
    p("s_lshl_b32 s3, s3, 10"); p(f"s_add_u32 s3, s3, {QL}")
    p("v_add_u32 v104, s3, v9")
    p("ds_write_b128 v104, v[96:99]")
    p("ds_write_b128 v104, v[100:103] offset:1024")
    p("v_mul_f32 v104, v128, v128"); p("v_mul_f32 v105, v136, v136")
    for j in range(1,8): p(f"v_fmac_f32 v104, v{128+j}, v{128+j}"); p(f"v_fmac_f32 v105, v{136+j}, v{136+j}")
    p("v_mov_b32 v106, v104"); p("v_mov_b32 v107, v105")
    p("v_permlane32_swap_b32 v104, v106"); p("v_permlane32_swap_b32 v105, v107")
    p("v_add_f32 v104, v104, v106"); p("v_add_f32 v105, v105, v107")
    p("v_max_u32 v104, v104, v105")
    for d in ("row_ror:8","row_ror:4","row_ror:2","row_ror:1"):
        p(f"v_max_u32_dpp v104, v104, v104 {d} row_mask:0xf bank_mask:0xf")
    p("v_readlane_b32 s3, v104, 0")
    p("v_readlane_b32 s7, v104, 16")
    p("s_max_u32 s3, s3, s7")
    p("v_mov_b32 v104, s3")
    p("s_lshl_b32 s7, s6, 2"); p(f"s_add_u32 s7, s7, {QM}")
    p("v_mov_b32 v105, s7")
    p("ds_write_b32 v105, v104")
    if KE and GOP=='q': go()
    stamp(p,'A q done')

def att_setup():
    F=[]; a=F.append
    for i in range(16): a(f"v_mov_b32 v{OB[0]+i}, 0"); a(f"v_mov_b32 v{OB[1]+i}, 0")
    for i in range(4): a(f"v_mov_b32 v{ZR+i}, 0")
    a(f"v_mov_b32 v{IDX}, 0xdddddddd")
    a("s_mov_b32 s80, 0xffff"); a("s_mov_b32 s81, 0xffff")
    a("s_mul_i32 s77, s6, 2304"); a(f"s_add_u32 s77, s77, {OP}")
    a(f"v_add_u32 v{SLA}, s77, v9")
    a("s_add_u32 s77, s77, 2048")
    a(f"v_lshl_add_u32 v{SLB}, v0, 2, s77")
    a(f"v_add_u32 v{QA}, {QL+1024}, v9")
    a(f"v_add_u32 v59, {QL}, v9")
    a(f"v_mov_b32 v60, {QM}")
    a("s_lshl_b32 s42, s6, 14")
    a("s_lshr_b32 s61, s6, 1"); a("s_lshl_b32 s77, s4, 1"); a("s_add_u32 s61, s61, s77")
    a("s_and_b32 s62, s6, 1"); a("s_lshl_b32 s77, s5, 1"); a("s_add_u32 s62, s62, s77")
    a("v_and_b32 v2, 31, v0"); a("s_lshl_b32 s77, s61, 5"); a("v_add_u32 v2, s77, v2"); a("v_lshlrev_b32 v2, 10, v2")
    a("v_lshrrev_b32 v3, 5, v0"); a("v_lshl_add_u32 v8, v3, 4, v2")
    return F

KA=0
SB=[16,32]; OB=[64,80]; QB=[96,100]; CB=104; IDX=48; ZR=52; SLA=56; SLB=57; QA=58; TB=120
THRESH=40.0
VMASK='s[80:81]'

def QK(Sn,kn,Qn,slow): return f"v_mfma_f32_32x32x16_bf16 v[{Sn}:{Sn+15}], a[{KA+4*kn}:{KA+4*kn+3}], v[{Qn}:{Qn+3}], {f'v[{CB}:{CB+15}]' if slow else '0'}"
def PV(O,areg,S): return f"v_smfmac_f32_32x32x32_bf16 v[{O}:{O+15}], a[{areg}:{areg+3}], v[{S}:{S+7}], v{IDX}"

def slot_write(p,O):
    p(f"ds_write_b128 v{SLA}, v[{O}:{O+3}]")
    p(f"ds_write_b128 v{SLA}, v[{O+4}:{O+7}] offset:1024")
    p(f"ds_write_b32 v{SLB}, v{O+8}")

def att_pass(p, ps, first=False, slow=False, vm=None, ev=None):
    ev=ev or {}
    for t in range(16):
        S=SB[t%2]; Sn=SB[(t+1)%2]
        O=OB[ps]; Op=OB[ps] if t>0 else OB[1-ps]
        Qn=QB[ps] if t<15 else QB[1-ps]
        kn=(t+1)%16; tp=(t-1)%16
        e=lambda i: f"v_exp_f32 v{S+i}, v{S+i}"
        pv2=PV(Op,VA+8*tp+4,Sn+8)
        I=[e(0),e(1),pv2,e(2),e(3),e(4),QK(Sn,kn,Qn,slow),e(5),e(6),e(7),e(8),e(9),PV(O,VA+8*t,S),e(10),e(11),e(12),e(13),e(14),e(15)]
        if not first:
            oa,ob,oc=[int(x) for x in os.environ.get('ORD','3,5,11').split(',')]
            I=[e(i) for i in range(16)]
            I.insert(oc,PV(O,VA+8*t,S)); I.insert(ob,QK(Sn,kn,Qn,slow)); I.insert(oa,pv2)
        ins={}
        def add(pos,txt): ins.setdefault(pos,[]).append(txt)
        if first and t==0: I[2]=None
        if not first:
            if t==2:
                add(4,f"ds_write_b128 v{SLA}, v[{OB[1-ps]}:{OB[1-ps]+3}]")
                add(8,f"ds_write_b128 v{SLA}, v[{OB[1-ps]+4}:{OB[1-ps]+7}] offset:1024")
                add(10,f"ds_write_b32 v{SLB}, v{OB[1-ps]+8}")
            if t==3:
                add(4,f"v_add_u32 v{SLA}, 9216, v{SLA}"); add(8,f"v_add_u32 v{SLB}, 9216, v{SLB}")
            if t==8:
                Z=OB[1-ps]
                add(16,f"v_mfma_f32_32x32x16_bf16 v[{Z}:{Z+15}], v[{ZR}:{ZR+3}], v[{ZR}:{ZR+3}], 0")
        if t==4:
            Qd=QB[1-ps]
            add(4,f"ds_read_b128 v[{Qd}:{Qd+3}], v{QA}")
            if slow: add(5,f"ds_read_b32 v121, v120")
        if t==5:
            add(4,f"v_add_u32 v{QA}, 1024, v{QA}")
            if slow: add(8,"v_add_u32 v120, 256, v120")
        if t==14:
            add(0,"s_waitcnt lgkmcnt(0)")
        if t==15 and slow:
            for j in range(16): add(1,f"v_mov_b32 v{CB+j}, v121")
        if first and vm is not None:
            vm.wait(('V',t,0))
            if t+4<16: add(4,('K',t+4))
            if t+3<16: add(9,('V',t+3))
        for pos,item in ev.get(t,[]): add(pos,item)
        for i,x in enumerate(I):
            for y in ins.get(i,[]):
                if callable(y): y()
                elif isinstance(y,list): emit_group(p,vm,y)
                elif isinstance(y,tuple): (ldK if y[0]=='K' else ldV)(p,vm,y[1])
                else: p(y)
            if x: p(x)

def spread(ev, items, t0, t1, poss=(1,4,8,11,14,17)):
    n=t1-t0+1; per=-(-len(items)//n); assert per<=len(poss),(per,len(items))
    k=0
    for t in range(t0,t1+1):
        for j in range(per):
            if k<len(items): ev.setdefault(t,[]).append((poss[j*len(poss)//per],items[k])); k+=1

def ldK(p,vm,j):
    p(f"s_add_u32 s3, s30, {j*1024}")
    vm.issue(('K',j),f"buffer_load_dwordx4 a[{KA+4*j}:{KA+4*j+3}], v9, {SRD_WS}, s3 offen sc1")
def ldV(p,vm,j):
    p(f"s_add_u32 s3, s31, {j*2048}")
    p(f"s_mov_b64 exec, {VMASK}")
    vm.issue(('V',j,0),f"buffer_load_dwordx4 a[{VA+8*j}:{VA+8*j+3}], v9, {SRD_WS}, s3 offen sc1")
    vm.issue(('V',j,1),f"buffer_load_dwordx4 a[{VA+8*j+4}:{VA+8*j+7}], v9, {SRD_WS}, s3 offen offset:1024 sc1")
    p("s_mov_b64 exec, -1")

def o_store(p,O,jj):
    p(f"v_rcp_f32 v{TB}, v{O+8}")
    p(f"v_mov_b32 v{TB+1}, v{O+8}")
    p(f"v_mov_b32 v{TB+1}, v{TB}")
    for j in range(4): p(f"v_pk_mul_f32 v[{O+2*j}:{O+2*j+1}], v[{O+2*j}:{O+2*j+1}], v[{TB}:{TB+1}]")
    for j in range(4): p(f"v_cvt_pk_bf16_f32 v{TB+4+j}, v{O+2*j}, v{O+2*j+1}")
    hstore(p,f"buffer_store_dwordx4 v[{TB+4}:{TB+7}], v9, {SRD_WS}, s63 offen offset:{jj*1024}")

def xcc_publish(p,vm):
    lab=f"XP_{len(p.lines)}"
    p("s_getreg_b32 s43, hwreg(HW_REG_XCC_ID, 0, 4)")
    p("s_add_u32 s43, s43, 1")
    p("s_lshr_b32 s86, s4, 1"); p("s_lshl_b32 s86, s86, 6"); p(f"s_add_u32 s86, s86, {FX}")
    p("s_cmp_lg_u32 s6, 0"); p(f"s_cbranch_scc1 {lab}")
    p("s_and_b32 s3, s4, 1"); p("s_lshl_b32 s3, s3, 3"); p("s_add_u32 s3, s3, s5"); p("s_lshl_b32 s3, s3, 2")
    p("v_mov_b32 v12, s43"); p("v_mov_b32 v14, s3")
    p("s_mov_b64 exec, 1")
    vm.issue(('XP',0),f"buffer_store_dword v12, v14, {SRD_WS}, s86 offen sc1")
    p("s_mov_b64 exec, -1")
    p.label(lab)
def xcc_load(p,vm):
    p("v_and_b32 v13, 15, v0"); p("v_lshlrev_b32 v13, 2, v13")
    vm.issue(('XL',0),f"buffer_load_dword v12, v13, {SRD_WS}, s86 offen sc1")
def xcc_check(p,sfx=''):
    p(f"s_mov_b32 s29, {SPIN}")
    p.label("XC_CHK"+sfx)
    p("v_cmp_eq_u32 vcc, 0, v12")
    p("s_cmp_eq_u64 vcc, 0"); p("s_cbranch_scc1 XC_OK"+sfx)
    p("s_sub_u32 s29, s29, 1"); p("s_cmp_eq_u32 s29, 0"); p("s_cbranch_scc1 XC_OK"+sfx)
    p(f"buffer_load_dword v12, v13, {SRD_WS}, s86 offen sc1")
    p("s_waitcnt vmcnt(0)")
    p("s_branch XC_CHK"+sfx)
    p.label("XC_OK"+sfx)
    p("v_cmp_ne_u32 vcc, s43, v12")
    p("s_cmp_lg_u64 vcc, 0")
    p("s_cselect_b32 s43, 1, 0")
    if 'xslow' in OPT: p("s_mov_b32 s43, 1")

def wo_dma_groups(vm):
    G=[]
    for n,g in enumerate(dma128(['v239','v240','v241','v242'] if 'wo2' in OPT else ['v4','v5','v6','v7'],SRD_O,'s74',WO_L,'s75',16,sg='s76',nt=' nt' if 'ntwo' in OPT else '')):
        G.append([('s',x) for x in g[:-1]]+[('m',('WO',n),g[-1])])
    G.append([('s',"s_lshl_b32 s76, s62, 6"),('m',('XR',0),f"buffer_load_dwordx4 a[192:195], v8, {SRD_X}, s76 offen")])
    G.append([('m',('XR',1),f"buffer_load_dwordx4 a[196:199], v8, {SRD_X}, s76 offen offset:32")])
    return G
def emit_group(p,vm,g):
    for x in g:
        if x[0]=='s': p(x[1])
        else: vm.issue(x[1],x[2])

def v_ones(p,b):
    p(f"v_mov_b32 v{b}, 0x3f803f80"); p(f"v_mov_b32 v{b+4}, 0x3afe3f80")
    p(f"v_and_b32 v{b+1}, 59, v0"); p(f"v_cmp_eq_u32 vcc, 16, v{b+1}"); p(f"v_cndmask_b32 v{b+4}, 0, v{b+4}, vcc")
    for i in (1,2,3,5,6,7): p(f"v_mov_b32 v{b+i}, 0")
    for i in range(8): p(f"v_mfma_f32_32x32x16_bf16 a[{VA+16*i}:{VA+16*i+15}], v[{b}:{b+3}], v[{b+4}:{b+7}], 0")

def tail_addr(p):
    p("s_mul_i32 s3, s6, 18432"); p(f"s_add_u32 s3, s3, {OP}")
    p("v_add_u32 v118, s3, v9")
    p("s_add_u32 s3, s3, 2048")
    p("v_lshl_add_u32 v119, v0, 2, s3")
    p("s_lshr_b32 s3, s6, 1"); p("s_lshl_b32 s7, s4, 1"); p("s_add_u32 s3, s3, s7"); p("s_lshl_b32 s3, s3, 5")
    p("s_lshl_b32 s7, s5, 2"); p("s_add_u32 s3, s3, s7")
    p("s_and_b32 s7, s6, 1"); p("s_lshl_b32 s7, s7, 1"); p("s_add_u32 s3, s3, s7")
    p("s_lshl_b32 s3, s3, 10"); p(f"s_add_u32 s63, s3, {L.OF}")
def tail_setup(p,sfx):
    tail_addr(p)
    if 'xcc' in OPT:
        p("s_waitcnt vmcnt(0)")
        xcc_check(p,sfx)
def attention(p):
    srd(p,24,P_WO,512*1024)
    p("s_lshl_b32 s75, s6, 17")
    srd(p,16,P_WG,512*2752)
    srd(p,20,P_WU,512*2752)
    p("s_lshr_b32 s78, s2, 3"); p("s_lshl_b32 s78, s78, 2"); p("s_add_u32 s78, s78, s6"); p("s_mul_i32 s78, s78, 6880"); p(f"s_add_u32 s78, s78, {192*2752}")
    p("v_lshlrev_b32 v50, 7, v0" if 'w128' in OPT else "v_lshlrev_b32 v50, 6, v0")
    if 'pt' in OPT:
        p("v_and_b32 v51, 15, v0"); p("v_lshlrev_b32 v51, 7, v51")
        p("s_lshr_b32 s3, s6, 1"); p("s_lshl_b32 s7, s4, 1"); p("s_add_u32 s3, s3, s7"); p("s_lshl_b32 s3, s3, 5")
        p("s_lshl_b32 s7, s5, 2"); p("s_add_u32 s3, s3, s7")
        p("s_and_b32 s7, s6, 1"); p("s_lshl_b32 s7, s7, 1"); p("s_add_u32 s3, s3, s7")
        p("s_lshl_b32 s3, s3, 10"); p(f"s_add_u32 s82, s3, {L.OF}")
        p("s_lshl_b32 s3, s61, 5"); p("s_lshl_b32 s7, s62, 1"); p("s_add_u32 s3, s3, s7"); p("s_lshl_b32 s3, s3, 10"); p(f"s_add_u32 s83, s3, {L.HF}")
        p("s_lshl_b32 s3, s61, 12"); p("s_lshl_b32 s7, s62, 8"); p("s_add_u32 s3, s3, s7"); p(f"s_add_u32 s84, s3, {L.HS}")
    p("s_lshl_b32 s31, s42, 1"); p(f"s_add_u32 s31, s31, {L.VF}")
    p(f"s_add_u32 s30, s42, {L.KF}")
    lane_params(p)
    p("s_and_b32 s3, s6, 1"); p("s_lshl_b32 s3, s3, 2")
    tr_base128(p,'v10',"s3",WO_L)
    p("s_and_b32 s3, s6, 1"); p("s_lshl_b32 s3, s3, 15")
    p("v_add_u32 v10, s3, v10")
    p("v_xor_b32 v1, 64, v10")
    p("v_lshlrev_b32 v11, 7, v0")
    if 'vones' not in OPT: v_ones(p,16)
    stamp(p,'B pre-S1',vt=200)
    for f in GOFN: f()
    p("s_cmp_lg_u32 s6, 0"); p("s_cbranch_scc1 B_s1skip")
    if 'go2' in OPT: p("v_and_b32 v62, 1, v0"); p("v_lshlrev_b32 v62, 6, v62"); p("v_add_u32 v62, 128, v62")
    else: p("v_mov_b32 v62, 128")
    poll(p,'s1',SRD_D,'0','v62',1,61,sleep=int(os.environ.get('S1SLEEP','1')))
    p.label("B_s1skip")
    p("s_waitcnt lgkmcnt(0)")
    p("s_barrier")
    stamp(p,'B S1 done',vt=200)
    vm=VM(p)
    p(f"s_mov_b32 s3, {L.KM}")
    vm.issue('KM',f"buffer_load_dword v61, v11, {SRD_WS}, s3 offen sc1")
    ldK(p,vm,0)
    p(f"ds_read_b128 v[{QB[0]}:{QB[0]+3}], v59")
    p(f"ds_read_b128 v[104:107], v60")
    ldK(p,vm,1); ldV(p,vm,0); ldK(p,vm,2); ldV(p,vm,1); ldK(p,vm,3); ldV(p,vm,2)
    p("s_waitcnt lgkmcnt(0)")
    p("v_max_u32 v60, v104, v105"); p("v_max3_u32 v60, v60, v106, v107")
    vm.wait('KM')
    for d in ("row_ror:8","row_ror:4","row_ror:2","row_ror:1"):
        p(f"v_max_u32_dpp v61, v61, v61 {d} row_mask:0xf bank_mask:0xf")
    p("v_readlane_b32 s3, v61, 0"); p("v_readlane_b32 s7, v61, 16"); p("s_max_u32 s3, s3, s7")
    p("v_readlane_b32 s7, v61, 32"); p("s_max_u32 s3, s3, s7")
    p("v_readlane_b32 s7, v61, 48"); p("s_max_u32 s65, s3, s7")
    p("v_mul_f32 v60, s65, v60")
    p(f"v_cmp_nge_f32 vcc, {hx(f2u(THRESH*THRESH/(1.02*1.02)))}, v60")
    p("s_cmp_lg_u64 vcc, 0")
    p("s_cbranch_scc1 L_slow")
    vm.wait(('K',0))
    p(QK(SB[0],0,QB[0],False))
    stamp(p,'B first',vt=200)
    import copy
    SLOW.append(vm)
    vm=copy.copy(vm); vm.pos=dict(vm.pos)
    ev0={}
    if 'wowarm2' in OPT:
        ev0[int(os.environ.get('WOT','13'))]=[(11,[('s',"s_lshr_b32 s85, s2, 3"),('s',"s_lshl_b32 s85, s85, 2"),('s',"s_add_u32 s85, s85, s6"),('s',"s_lshl_b32 s85, s85, 12"),
              ('m',('WOW',0),f"buffer_load_dword v49, v50, {SRD_O}, s85 offen ; nowaitcheck")])]
    att_pass(p,0,first=True,vm=vm,ev=ev0)
    vm.wait(('V',15,1))
    stamp(p,'B pass0',vt=200)
    if 'wo2' in OPT:
        DPOS=tuple(int(x) for x in os.environ.get('DPOS','13,13').split(',')); DT1=18//len(DPOS)
        THIN=0
        WOG=wo_dma_groups(vm)
        ev={}
        ev[0]=[(11,[('s',"s_lshr_b32 s85, s2, 3"),('s',"s_lshl_b32 s85, s85, 2"),('s',"s_add_u32 s85, s85, s6"),('s',"s_lshl_b32 s85, s85, 12"),
              ('m',('WOW',0),f"buffer_load_dword v49, v50, {SRD_O}, s85 offen ; nowaitcheck")])]
        if 'xcc' in OPT:
            class NV:
                def issue(s_,k,t): p(t)
            ev.setdefault(1,[]).append((4,lambda: xcc_publish(p,NV())))
        W1T=int(os.environ.get('W1T','10'))
        for n,(t,sr,off) in enumerate(((0,SRD_A,0),(1,SRD_B,0),(2,SRD_A,4096),(3,SRD_B,4096))):
            g=[('m',('WARM',n),f"buffer_load_dword v49, v50, {sr}, s78 offen ; nowaitcheck")]
            if n==2: g=[('s',"s_add_u32 s78, s78, 4096")]+g
            ev.setdefault(W1T+t,[]).append((11,g))
        spread(ev,w1_setup(),2,9,poss=(1,4,8,11,14,17))
        att_pass(p,1,vm=vm,ev=ev)
        ev={}
        W0=int(os.environ.get('WOD0','0')); spread(ev,WOG,W0,W0+DT1-1,poss=DPOS)
        att_pass(p,0,vm=vm,ev=ev)
    else:
        DPOS=tuple(int(x) for x in os.environ.get('DPOS','13,13').split(',')); DT1=18//len(DPOS)
        THIN=int(os.environ.get('THIN','0')); TPOS=int(os.environ.get('TPOS','4'))
        WOG=wo_dma_groups(vm)
        ev={}
        if THIN: spread(ev,WOG[:16],0,15,poss=(TPOS,))
        else:
            W0=int(os.environ.get('WOD0','7' if 'wowarm3' in OPT else '1')); spread(ev,WOG,W0,W0+DT1-1,poss=DPOS)
        if 'xcc' in OPT:
            class NV:
                def issue(s_,k,t): p(t)
            ev.setdefault(0,[]).append((4,lambda: xcc_publish(p,NV())))
        if 'wowarm3' in OPT:
            g=[('s',"s_lshr_b32 s85, s2, 3"),('s',"s_lshl_b32 s85, s85, 2"),('s',"s_add_u32 s85, s85, s6"),('s',"s_lshl_b32 s85, s85, 12")]
            if 'w128' in OPT: g.append(('s',"s_mov_b32 exec_hi, 0"))
            g.append(('m',('WOW',0),f"buffer_load_dword v49, v50, {SRD_O}, s85 offen ; nowaitcheck"))
            if 'w128' in OPT: g.append(('s',"s_mov_b64 exec, -1"))
            ev.setdefault(int(os.environ.get('WOT','0')),[]).append((11,g))
        att_pass(p,1,vm=vm,ev=ev)
        ev={}
        if 'warm' in OPT:
            for n,(t,sr,off) in enumerate(((0,SRD_A,0),(1,SRD_B,0),(2,SRD_A,4096),(3,SRD_B,4096))[:2 if 'w128' in OPT else 4]):
                g=[('m',('WARM',n),f"buffer_load_dword v49, v50, {sr}, s78 offen ; nowaitcheck")]
                if n==2: g=[('s',"s_add_u32 s78, s78, 4096")]+g
                ev.setdefault(t,[]).append((11,g))
        if THIN:
            for n,g in enumerate(WOG[16:]): ev.setdefault(4+n,[]).append((TPOS,g))
        spread(ev,w1_setup(),4,14 if 'w1mask' in OPT else 13,poss=(1,4,8,11,14,17))
        att_pass(p,0,vm=vm,ev=ev)
    ev={0:[(0,lambda: vm.wait(('XR',1))),(0,"s_barrier")]}
    spread(ev,wo_frag_reads(),0,12,poss=(1,4,8,11,14))
    att_pass(p,1,vm=vm,ev=ev)
    ev={0:[(0,"s_barrier")]}
    W1G=w1_dma(0)+w1_dma(1)+w1_dma(2)
    if THIN: spread(ev,W1G[:15],1,15,poss=(TPOS,))
    else: spread(ev,W1G,1,DT1,poss=DPOS)
    att_pass(p,0,vm=vm,ev=ev)
    ev={}
    if THIN:
        for n,g in enumerate(W1G[15:]): ev.setdefault((0,1,3)[n],[]).append((TPOS,g))
    if 'pt' in OPT:
        ev.setdefault(2,[]); ev[2]+=[(4,[('m',('PT',0),f"buffer_load_dword v49, v51, {SRD_WS}, s82 offen ; nowaitcheck")])]
        ev[6]=[(4,[('m',('PT',1),f"buffer_load_dword v49, v51, {SRD_WS}, s83 offen ; nowaitcheck")])]
        ev[10]=[(4,[('s',"s_mov_b64 exec, 3"),('m',('PT',2),f"buffer_load_dword v49, v51, {SRD_WS}, s84 offen ; nowaitcheck"),('s',"s_mov_b64 exec, -1")])]
    W1RP=os.environ.get('W1RP','5') if 'w1reg' in OPT else ''
    if W1RP=='5': spread(ev,w1_reg(),int(os.environ.get('W1R0','3')),int(os.environ.get('W1R0','3'))+11,poss=(13,))
    att_pass(p,1,vm=vm,ev=ev)
    ev={}
    if 'codepf2' in OPT:
        NL=int(os.environ.get('PF2_LINES','4'))
        def pf2():
            p("s_getpc_b64 s[84:85]")
            p.label("PF2_HERE")
            p("s_lshr_b32 s3, s2, 3"); p("s_lshl_b32 s3, s3, 2"); p("s_add_u32 s3, s3, s6"); p(f"s_mul_i32 s3, s3, {NL*64}")
            p(f"v_and_b32 v50, {NL-1}, v0"); p("v_lshlrev_b32 v50, 6, v50"); p("v_add_u32 v50, s3, v50")
            p("v_add_u32 v50, L_att_tail-PF2_HERE, v50")
            p("v_min_u32 v50, END_K-PF2_HERE-4, v50")
            p(f"s_mov_b64 exec, {(1<<NL)-1}")
            vm.issue(('PF2',0),"global_load_dword v49, v50, s[84:85] ; nowaitcheck")
            p("s_mov_b64 exec, -1")
        ev[PF2_T]=[(4,pf2)]
    if 'wdatt' in OPT:
        g=[('s',f"s_mov_b32 s24, s{P_WD}"),('s',f"s_mov_b32 s25, s{P_WD+1}"),('s',f"s_mov_b32 s26, {hx(1376*1024)}"),
           ('s',"s_lshr_b32 s79, s2, 3"),('s',"s_lshl_b32 s79, s79, 2"),('s',"s_add_u32 s79, s79, s6"),('s',"s_mul_i32 s79, s79, 11008"),('s',f"v_lshlrev_b32 v51, {7 if 'w128' in OPT else 6}, v0")]
        ev.setdefault(0,[]).append((4,g))
        WDT=int(os.environ.get('WDT','1'))
        for n in range(0 if 'x_nowd' in OPT else (2 if 'w128' in OPT else 3)):
            g=[('m',('WDW',n),f"buffer_load_dword v49, v51, {SRD_O}, s79 offen ; nowaitcheck")]
            if 'w128' in OPT:
                if n==0: g.append(('s',"s_add_u32 s79, s79, 8192"))
                else: g=[('s',"s_mov_b64 exec, 0x3fffff")]+g+[('s',"s_mov_b64 exec, -1")]
            elif n<2: g.append(('s',"s_add_u32 s79, s79, 4096"))
            ev.setdefault(WDT+2*n,[]).append((11,g))
    if 'xcc' in OPT: ev.setdefault(12,[]).append((4,lambda: xcc_load(p,vm)))
    att_pass(p,0,vm=vm,ev=ev)
    ev={}
    if W1RP=='7': spread(ev,w1_reg(),int(os.environ.get('W1R0','0')),int(os.environ.get('W1R0','0'))+11,poss=(13,))
    att_pass(p,1,vm=vm,ev=ev)
    p.label("L_att_tail")
    p(PV(OB[1],VA+8*15+4,SB[1]+8))
    G1='glue1' in OPT
    if G1: tail_setup(p,'M')
    slot_write(p,OB[1])
    p.label("L_att_done")
    stamp(p,'B loop done',vt=14)
    if not G1: tail_addr(p)
    p("s_waitcnt vmcnt(0) lgkmcnt(0)")
    p("s_barrier")
    if 'xcc' in OPT and not G1: xcc_check(p)
    if 'pnorm' in OPT:
        p("s_lshl_b32 s3, s61, 12"); p("s_lshl_b32 s7, s62, 8"); p("s_add_u32 s3, s3, s7"); p(f"s_add_u32 s3, s3, {L.HS}")
        p("v_mov_b32 v122, -1"); p("v_mov_b32 v123, -1"); p("v_lshlrev_b32 v124, 3, v0")
        p("s_mov_b32 exec_hi, 0")
        hstore(p,f"buffer_store_dwordx2 v[122:123], v124, {SRD_WS}, s3 offen")
        p("s_mov_b64 exec, -1")
    def rds(jj):
        for ww in range(4):
            b=16+(jj*4+ww)*8; off=jj*9216+ww*2304
            p(f"ds_read_b128 v[{b}:{b+3}], v118 offset:{off}")
            p(f"ds_read_b128 v[{b+4}:{b+7}], v118 offset:{off+1024}")
            p(f"ds_read_b32 v{80+jj*4+ww}, v119 offset:{off}")
    rds(0)
    for jj in range(2):
        b=16+jj*32; sb=80+jj*4; O=96+10*jj
        if jj==0:
            p("s_waitcnt lgkmcnt(6)")
            for j in range(4): p(f"v_pk_add_f32 v[{b+2*j}:{b+2*j+1}], v[{b+2*j}:{b+2*j+1}], v[{b+8+2*j}:{b+8+2*j+1}]")
            p(f"v_add_f32 v{sb}, v{sb}, v{sb+1}")
            rds(1)
            p("s_waitcnt lgkmcnt(12)")
        else:
            p("s_waitcnt lgkmcnt(6)")
            for j in range(4): p(f"v_pk_add_f32 v[{b+2*j}:{b+2*j+1}], v[{b+2*j}:{b+2*j+1}], v[{b+8+2*j}:{b+8+2*j+1}]")
            p(f"v_add_f32 v{sb}, v{sb}, v{sb+1}")
            p("s_waitcnt lgkmcnt(0)")
        for j in range(4):
            p(f"v_pk_add_f32 v[{b+16+2*j}:{b+16+2*j+1}], v[{b+16+2*j}:{b+16+2*j+1}], v[{b+24+2*j}:{b+24+2*j+1}]")
        p(f"v_add_f32 v{sb+2}, v{sb+2}, v{sb+3}")
        for j in range(4):
            p(f"v_pk_add_f32 v[{O+2*j}:{O+2*j+1}], v[{b+2*j}:{b+2*j+1}], v[{b+16+2*j}:{b+16+2*j+1}]")
        p(f"v_add_f32 v{O+8}, v{sb}, v{sb+2}")
        o_store(p,O,jj)

SLOW=[]
def attention_slow(p):
    vm=SLOW[0]
    p.label("L_slow")
    if 'xcc' in OPT: xcc_publish(p,vm)
    for j in range(4,16): ldK(p,vm,j)
    for j in range(3,16): ldV(p,vm,j)
    for g in wo_dma_groups(vm): emit_group(p,vm,g)
    p("s_waitcnt vmcnt(0)")
    p("s_barrier")
    for x in wo_frag_reads(): p(x)
    for x in w1_setup():
        if isinstance(x,list): emit_group(p,vm,x)
        else: p(x)
    p("s_waitcnt lgkmcnt(0)")
    p("s_barrier")
    for g in w1_dma(0)+w1_dma(1)+w1_dma(2): emit_group(p,vm,g)
    if 'w1reg' in OPT:
        for g in w1_reg(): emit_group(p,vm,g)
    p("s_mov_b32 s64, 0")
    p.label("L_mx")
    p("s_lshl_b32 s3, s64, 10")
    p("v_add_u32 v120, s3, v59")
    p(f"ds_read_b128 v[{QB[1]}:{QB[1]+3}], v120")
    p("v_mov_b32 v121, 0xff800000")
    p("s_waitcnt lgkmcnt(0)")
    p(QK(SB[0],0,QB[1],False))
    for t in range(16):
        S=SB[t%2]; Sn=SB[(t+1)%2]
        if t<15: p(QK(Sn,t+1,QB[1],False))
        for j in range(8): p(f"v_max3_f32 v121, v{S+2*j}, v{S+2*j+1}, v121")
    p("v_mov_b32 v122, v121")
    p("v_permlane32_swap_b32 v121, v122")
    p("v_max_f32 v121, v121, v122")
    p("s_lshl_b32 s3, s64, 9"); p("s_lshl_b32 s7, s6, 7"); p("s_add_u32 s3, s3, s7")
    p("v_and_b32 v122, 31, v0")
    p("v_lshl_add_u32 v122, v122, 2, s3")
    p(f"v_add_u32 v122, {MX}, v122")
    p(f"ds_write_b32 v122, v121")
    p("s_add_u32 s64, s64, 1"); p("s_cmp_lt_u32 s64, 8"); p("s_cbranch_scc1 L_mx")
    p("s_waitcnt lgkmcnt(0)")
    p("s_barrier")
    p("v_and_b32 v122, 31, v0"); p("v_lshlrev_b32 v122, 2, v122")
    p("s_lshl_b32 s3, s6, 10"); p(f"s_add_u32 s3, s3, {MX}"); p("v_add_u32 v122, s3, v122")
    for qq in range(2):
        for ww in range(4): p(f"ds_read_b32 v{16+4*qq+ww}, v122 offset:{qq*512+ww*128}")
    p("s_waitcnt lgkmcnt(0)")
    p("s_lshl_b32 s3, s6, 9"); p(f"s_add_u32 s3, s3, {MF}")
    p("v_lshl_add_u32 v122, v0, 2, s3")
    for qq in range(2):
        b=16+4*qq
        p(f"v_max3_f32 v{b}, v{b}, v{b+1}, v{b+2}"); p(f"v_max_f32 v{b}, v{b}, v{b+3}"); p(f"v_sub_f32 v{b}, 0, v{b}")
        p(f"ds_write_b32 v122, v{b} offset:{qq*256}")
    p("s_waitcnt lgkmcnt(0)")
    p("s_barrier")
    p(f"v_lshlrev_b32 v120, 2, v0"); p(f"v_add_u32 v120, {MF}, v120")
    p(f"ds_read_b32 v121, v120")
    p("v_add_u32 v120, 256, v120")
    p("s_waitcnt lgkmcnt(0)")
    for j in range(16): p(f"v_mov_b32 v{CB+j}, v121")
    p(QK(SB[0],0,QB[0],True))
    att_pass_slow(p)
    if 'xcc' in OPT: xcc_load(p,vm)
    if 'glue1' in OPT: tail_setup(p,'S')
    p("s_branch L_att_done")

def att_pass_slow(p):
    att_pass(p,0,first=True,slow=True,vm=None)
    p("s_mov_b32 s64, 4")
    p("s_branch L_sttY")
    p.label("L_sttX")
    att_pass(p,0,slow=True)
    p.label("L_sttY")
    att_pass(p,1,slow=True)
    p("s_sub_u32 s64, s64, 1")
    p("s_cmp_lg_u32 s64, 0")
    p("s_cbranch_scc1 L_sttX")
    p(PV(OB[1],VA+8*15+4,SB[1]+8))
    slot_write(p,OB[1])

def w1_setup():
    F=[]; p=F.append
    p("s_and_b32 s3, s4, 1"); p("s_lshl_b32 s3, s3, 3"); p("s_add_u32 s3, s3, s5")
    p("s_min_u32 s7, s3, 11"); p("s_lshl_b32 s7, s7, 1"); p("s_lshl_b32 s66, s3, 2"); p("s_add_u32 s66, s66, s7")
    p("s_cmp_lt_u32 s3, 11"); F[-1]=[('s',"s_cmp_lt_u32 s3, 11"),('s',"s_cselect_b32 s67, 6, 4")]
    MK='w1mask' in OPT
    if MK:
        p("s_lshl_b32 s7, s67, 1"); p("v_mov_b32 v15, 0x40000000")
    for i in range(3):
        p(f"v_add_u32 v11, {64*i}, v0")
        p("v_mul_u32_u24 v12, 5462, v11"); p("v_lshrrev_b32 v12, 16, v12")
        p("v_mul_u32_u24 v13, 12, v12"); p("v_sub_u32 v13, v11, v13")
        p("v_mul_u32_u24 v12, 2752, v12")
        if i: p(f"v_subrev_u32 v12, {1024*i}, v12")
        p(f"v_lshl_add_u32 v{2+i}, v13, 4, v12")
        if MK: p("v_cmp_le_u32 vcc, s7, v13"); p(f"v_cndmask_b32 v{2+i}, v{2+i}, v15, vcc")
        p("v_add_u32 v13, 10, v13"); p("v_subrev_u32 v14, 12, v13"); p("v_min_u32 v13, v13, v14")
        p(f"v_lshl_add_u32 v{5+i}, v13, 4, v12")
        if MK: p("v_cmp_le_u32 vcc, s7, v13"); p(f"v_cndmask_b32 v{5+i}, v{5+i}, v15, vcc")
    p(f"s_mul_i32 s68, s6, {16*2752}"); p("s_lshl_b32 s3, s66, 5"); p("s_add_u32 s68, s68, s3")
    p("s_mul_i32 s69, s6, 3072")
    return F
assert all((c*5462)>>16==c//12 for c in range(192))

def w1_dma(q):
    slot=q%6
    out=[]
    for mat in range(2):
        for i in range(3):
            g=[]
            if i==0 or ('w1wait' in OPT and q>=3): g.append(('s',f"s_add_u32 m0, s69, {slot*SLOT+mat*12288}"))
            if i==0 and mat==0: g.append(('s',f"s_add_u32 s71, s68, {q*64*2752}"))
            nt=' nt' if (('ntw1e' in OPT and q<3) or ('ntw1l' in OPT and q>=3)) else ''
            g.append(('m',('W1',q,3*mat+i),f"buffer_load_dwordx4 v{2+3*mat+i}, {SRD_A if mat==0 else SRD_B}, s71 offen offset:{i*1024}{nt} lds"))
            out.append(g)
    return out

W1R=200
def w1_reg(vmkey='W1R'):
    out=[]; n=0
    for q in (3,4):
        for mat in range(2):
            for i in range(3):
                g=[]
                if i==0 and mat==0: g.append(('s',f"s_add_u32 s71, s68, {q*64*2752}"))
                g.append(('m',(vmkey,n),f"buffer_load_dwordx4 a[{W1R+4*n}:{W1R+4*n+3}], v{2+3*mat+i}, {SRD_A if mat==0 else SRD_B}, s71 offen offset:{i*1024}"))
                out.append(g); n+=1
    return out
def w1_reg_write(p):
    p(f"s_add_u32 s3, s69, {3*SLOT}"); p("v_add_u32 v13, s3, v9")
    n=0
    for q in (3,4):
        for mat in range(2):
            for i in range(3):
                p(f"ds_write_b128 v13, a[{W1R+4*n}:{W1R+4*n+3}] offset:{(q-3)*SLOT+mat*12288+i*1024}"); n+=1

WOA=128
def wo_frag_reads():
    out=[]
    for i in range(16):
        for cc,va in enumerate(('v10','v1')):
            b=WOA+8*i+4*cc
            out.append(f"ds_read_b64_tr_b16 v[{b}:{b+1}], {va} offset:{i*2048}")
            out.append(f"ds_read_b64_tr_b16 v[{b+2}:{b+3}], {va} offset:{i*2048+512}")
    return out

def wo_phase(p):
    if 'glue2' in OPT:
        flag_off(p,F2); p("s_waitcnt vmcnt(0)"); set_flag(p,'s3',12)
    else:
        p("s_waitcnt vmcnt(0)")
        flag_off(p,F2); set_flag(p,'s3',12)
    stamp(p,'C flag set',vt=14)
    p("s_barrier")
    WW=os.environ.get('WW','3,4,5').split(',') if 'w1wait' in OPT else []
    class NV2:
        def issue(s_,k,t): p(t)
    def wdma(q):
        for g in w1_dma(q): emit_group(p,NV2(),g)
    if '3' in WW: wdma(3)
    p("v_and_b32 v12, 31, v0"); p("v_lshlrev_b32 v12, 2, v12")
    p("s_lshl_b32 s30, s4, 7"); p(f"s_add_u32 s30, s30, {F2}")
    p("s_lshl_b32 s31, s61, 5"); p("s_and_b32 s3, s6, 1"); p("s_lshl_b32 s3, s3, 4"); p("s_add_u32 s31, s31, s3")
    p("s_lshl_b32 s31, s31, 10"); p(f"s_add_u32 s31, s31, {L.OF}")
    poll(p,'s2',SRD_WS,'s30','v12',1,13)
    stamp(p,'C S2 done',vt=14)
    vm=VM(p)
    WOLA=int(os.environ.get('WOLA','8'))
    def ldO(i):
        if i%4==0 and i: p(f"s_add_u32 s31, s31, 4096")
        vm.issue(i,f"buffer_load_dwordx4 a[{4*i}:{4*i+3}], v9, {SRD_WS}, s31 offen offset:{(i%4)*1024}{HL1}")
    for i in range(WOLA): ldO(i)
    ACC=[64,80]
    if 'w1reg' in OPT: w1_reg_write(p)
    dm=[] if 'w1late' in OPT else w1_dma(3)+w1_dma(4)+w1_dma(5)
    for j in range(8): p(f"v_accvgpr_read_b32 v{112+j}, a{192+j}")
    RC='rescin' in OPT
    if RC:
        for j in range(8):
            p(f"v_lshlrev_b32 v{64+2*j}, 16, v{112+j}")
            p(f"v_and_b32 v{65+2*j}, 0xffff0000, v{112+j}")
    for i in range(16):
        vm.wait(i)
        for cc in ((1,0) if 'last10' in OPT else (0,1)):
            a=ACC[cc]; b=WOA+8*i+4*cc
            p(f"v_mfma_f32_32x32x16_bf16 v[{a}:{a+15}], v[{b}:{b+3}], a[{4*i}:{4*i+3}], {'0' if (i==0 and not (RC and cc==0)) else f'v[{a}:{a+15}]'}")
            if i+WOLA<16 and cc==(1 if 'last10' in OPT else 0): ldO(i+WOLA)
            if dm and (cc==0 or i<2): emit_group(p,vm,dm.pop(0))
    assert not dm
    for j in range(8):
        if RC: break
        p(f"v_lshlrev_b32 v{96+2*j}, 16, v{112+j}")
        p(f"v_and_b32 v{97+2*j}, 0xffff0000, v{112+j}")
    stamp(p,'C mfma',vt=14)
    if '4' in WW: wdma(4)
    if 'glue2' in OPT:
        p("s_lshl_b32 s71, s61, 5"); p("s_lshl_b32 s7, s62, 1"); p("s_add_u32 s71, s71, s7"); p("s_lshl_b32 s71, s71, 10"); p(f"s_add_u32 s71, s71, {L.HF}")
    pair_reduce(p,ACC,RED)
    for j in range(0 if RC else 8): p(f"v_pk_add_f32 v[{64+2*j}:{65+2*j}], v[{64+2*j}:{65+2*j}], v[{96+2*j}:{97+2*j}]")
    if 'pnorm' in OPT:
        wo_tail_pnorm(p); return
    for j in range(8): p(f"v_cvt_pk_bf16_f32 v{32+j}, v{64+2*j}, v{65+2*j}")
    hb='s3'
    if 'glue2' in OPT: hb='s71'
    else: p("s_lshl_b32 s3, s61, 5"); p("s_lshl_b32 s7, s62, 1"); p("s_add_u32 s3, s3, s7"); p("s_lshl_b32 s3, s3, 10"); p(f"s_add_u32 s3, s3, {L.HF}")
    hstore(p,[f"buffer_store_dwordx4 v[32:35], v9, {SRD_WS}, {hb} offen",
              f"buffer_store_dwordx4 v[36:39], v9, {SRD_WS}, {hb} offen offset:1024"])
    p("v_pk_mul_f32 v[42:43], v[64:65], v[64:65]"); p("v_pk_add_f32 v[40:41], v[64:65], v[66:67]")
    p("v_pk_fma_f32 v[42:43], v[66:67], v[66:67], v[42:43]")
    for j in range(2,8):
        p(f"v_pk_add_f32 v[40:41], v[40:41], v[{64+2*j}:{65+2*j}]"); p(f"v_pk_fma_f32 v[42:43], v[{64+2*j}:{65+2*j}], v[{64+2*j}:{65+2*j}], v[42:43]")
    p("v_add_f32 v40, v40, v41"); p("v_add_f32 v41, v42, v43")
    p("v_mov_b32 v42, v40"); p("v_mov_b32 v43, v41")
    p("v_permlane32_swap_b32 v40, v42"); p("v_permlane32_swap_b32 v41, v43")
    p("v_add_f32 v40, v40, v42"); p("v_add_f32 v41, v41, v43")
    p("s_lshl_b32 s3, s61, 12"); p("s_lshl_b32 s7, s62, 8"); p("s_add_u32 s3, s3, s7"); p(f"s_add_u32 s3, s3, {L.HS}")
    p("v_lshlrev_b32 v12, 3, v0")
    if 'hsflag' in OPT:
        for j in range(8): p(f"v_accvgpr_write_b32 a{248+j}, v{32+j}")
        p("s_waitcnt vmcnt(0)")
        p("s_mov_b32 exec_hi, 0")
        hstore(p,f"buffer_store_dwordx2 v[40:41], v12, {SRD_WS}, s3 offen")
        p("s_mov_b64 exec, -1")
        stamp(p,'C done',vt=14)
        return
    p("s_mov_b32 exec_hi, 0")
    hstore(p,f"buffer_store_dwordx2 v[40:41], v12, {SRD_WS}, s3 offen")
    p("s_mov_b64 exec, -1")
    for j in range(8): p(f"v_accvgpr_write_b32 a{248+j}, v{32+j}")
    flag_off(p,F3)
    p("s_waitcnt vmcnt(0)")
    set_flag(p,'s3',12)
    stamp(p,'C done',vt=14)

def ln_stats(p,b):
    for i in range(2):
        p(f"v_pk_add_f32 v[{b+4*i}:{b+1+4*i}], v[{b+4*i}:{b+1+4*i}], v[{b+2+4*i}:{b+3+4*i}]")
        p(f"v_pk_add_f32 v[{b+8+4*i}:{b+9+4*i}], v[{b+8+4*i}:{b+9+4*i}], v[{b+10+4*i}:{b+11+4*i}]")
    p(f"v_pk_add_f32 v[{b}:{b+1}], v[{b}:{b+1}], v[{b+4}:{b+5}]"); p(f"v_pk_add_f32 v[{b+8}:{b+9}], v[{b+8}:{b+9}], v[{b+12}:{b+13}]")
    p(f"v_pk_add_f32 v[16:17], v[{b}:{b+1}], v[{b+8}:{b+9}]")
    p("v_mov_b32 v18, v16"); p("v_mov_b32 v19, v17")
    p("v_permlane32_swap_b32 v16, v18"); p("v_permlane32_swap_b32 v17, v19")
    p("v_add_f32 v16, v16, v18"); p("v_add_f32 v17, v17, v19")
    p(f"v_mul_f32 v16, {hx(f2u(1/512))}, v16"); p(f"v_mul_f32 v17, {hx(f2u(1/512))}, v17")
    p("v_fma_f32 v17, -v16, v16, v17"); p("v_max_f32 v17, 0, v17"); p(f"v_add_f32 v17, {hx(f2u(1e-5))}, v17")
    p("v_rsq_f32 v17, v17"); p("v_mul_f32 v16, v16, v17"); p("v_sub_f32 v18, 0, v16"); p("v_mov_b32 v19, v18"); p("v_mov_b32 v16, v17")

def wo_tail_pnorm(p):
    p("v_pk_mul_f32 v[42:43], v[64:65], v[64:65]"); p("v_pk_add_f32 v[40:41], v[64:65], v[66:67]")
    p("v_pk_fma_f32 v[42:43], v[66:67], v[66:67], v[42:43]")
    for j in range(2,8):
        p(f"v_pk_add_f32 v[40:41], v[40:41], v[{64+2*j}:{65+2*j}]"); p(f"v_pk_fma_f32 v[42:43], v[{64+2*j}:{65+2*j}], v[{64+2*j}:{65+2*j}], v[42:43]")
    p("v_add_f32 v40, v40, v41"); p("v_add_f32 v41, v42, v43")
    p("v_mov_b32 v42, v40"); p("v_mov_b32 v43, v41")
    p("v_permlane32_swap_b32 v40, v42"); p("v_permlane32_swap_b32 v41, v43")
    p("s_lshl_b32 s31, s61, 12"); p(f"s_add_u32 s31, s31, {L.HS}"); p("s_lshl_b32 s7, s62, 8"); p("s_add_u32 s3, s31, s7")
    p("v_add_f32 v40, v40, v42"); p("v_add_f32 v41, v41, v43")
    p("v_lshlrev_b32 v12, 3, v0")
    p("s_mov_b32 exec_hi, 0")
    hstore(p,f"buffer_store_dwordx2 v[40:41], v12, {SRD_WS}, s3 offen")
    p("s_mov_b64 exec, -1")
    p("v_and_b32 v12, 31, v0"); p("v_lshlrev_b32 v12, 3, v12"); p("v_lshrrev_b32 v13, 5, v0"); p("v_lshl_add_u32 v30, v13, 11, v12")
    def lds_():
        for i in range(8): p(f"buffer_load_dwordx2 v[{96+2*i}:{97+2*i}], v30, {SRD_WS}, s31 offen offset:{i*256} sc1")
    lds_()
    for j in range(8): p(f"v_cvt_pk_bf16_f32 v{32+j}, v{64+2*j}, v{65+2*j}")
    for j in range(8): p(f"v_accvgpr_write_b32 a{248+j}, v{32+j}")
    p("s_lshl_b32 s3, s61, 5"); p("s_lshl_b32 s7, s62, 1"); p("s_add_u32 s3, s3, s7"); p("s_lshl_b32 s3, s3, 10"); p(f"s_add_u32 s30, s3, {L.HF}")
    p(f"s_mov_b32 s29, {SPIN}")
    p.label("POLL_hs")
    p("s_waitcnt vmcnt(0)")
    p("v_max3_u32 v112, v97, v99, v101"); p("v_max3_u32 v113, v103, v105, v107"); p("v_max3_u32 v112, v112, v109, v111"); p("v_max_u32 v112, v112, v113")
    p("v_cmp_eq_u32 vcc, -1, v112")
    p("s_cmp_eq_u64 vcc, 0"); p("s_cbranch_scc1 POLLD_hs")
    p("s_sub_u32 s29, s29, 1"); p("s_cmp_eq_u32 s29, 0"); p("s_cbranch_scc1 POLLD_hs")
    lds_()
    p("s_branch POLL_hs")
    p.label("POLLD_hs")
    stamp(p,'C stats',vt=12)
    ln_stats(p,96)
    for j in range(8): p(f"v_pk_fma_f32 v[{64+2*j}:{65+2*j}], v[{64+2*j}:{65+2*j}], v[16:17], v[18:19]")
    for j in range(8): p(f"v_cvt_pk_bf16_f32 v{32+j}, v{64+2*j}, v{65+2*j}")
    hstore(p,[f"buffer_store_dwordx4 v[32:35], v9, {SRD_WS}, s30 offen",
              f"buffer_store_dwordx4 v[36:39], v9, {SRD_WS}, s30 offen offset:1024"])
    flag_off(p,F3)
    p("s_waitcnt vmcnt(0)")
    set_flag(p,'s3',12)
    stamp(p,'C done',vt=14)
    if 'w1wait' in OPT and '5' in os.environ.get('WW','3,4,5').split(','):
        class NV2:
            def issue(s_,k,t): p(t)
        for g in w1_dma(5): emit_group(p,NV2(),g)

def flag_off(p,F):
    p("s_lshl_b32 s3, s4, 7"); p("s_lshl_b32 s7, s5, 4"); p("s_add_u32 s3, s3, s7"); p("s_lshl_b32 s7, s6, 2"); p("s_add_u32 s3, s3, s7")
    p(f"s_add_u32 s3, s3, {F}")

def pair_reduce(p,ACC,base):
    p(f"s_lshl_b32 s3, s6, 12"); p(f"s_add_u32 s3, s3, {base}")
    p("v_add_u32 v12, s3, v9")
    for q in range(4): p(f"ds_write_b128 v12, v[{ACC[1]+4*q}:{ACC[1]+4*q+3}] offset:{q*1024}")
    p("v_xor_b32 v12, 4096, v12")
    p("s_waitcnt lgkmcnt(0)")
    p("s_barrier")
    for q in range(4): p(f"ds_read_b128 v[{ACC[1]+4*q}:{ACC[1]+4*q+3}], v12 offset:{q*1024}")
    for q in range(4):
        p(f"s_waitcnt lgkmcnt({3-q})")
        for j in range(2):
            a=ACC[0]+4*q+2*j; b=ACC[1]+4*q+2*j
            p(f"v_pk_add_f32 v[{a}:{a+1}], v[{a}:{a+1}], v[{b}:{b+1}]")

def ffn1_phase(p):
    p("s_lshr_b32 s70, s4, 1"); p("s_lshl_b32 s70, s70, 2"); p("s_add_u32 s70, s70, s6")
    if 'wdpf' in OPT:
        p("v_lshrrev_b32 v1, 3, v0"); p("v_and_b32 v10, 7, v0")
        w128_voff(p,'v1')
        p("s_lshl_b32 s74, s6, 12"); p("s_lshl_b32 s77, s6, 15")
        p("s_lshr_b32 s3, s6, 1"); p(f"s_mul_i32 s75, s3, {43*16*1024}")
    lane_params(p)
    p("v_mul_u32_u24 v10, 192, v14"); p("v_add_u32 v10, v10, v96")
    p(f"v_mul_u32_u24 v97, {12288+32}, v15"); p("v_add_u32 v28, v10, v97")
    p(f"v_mul_u32_u24 v97, {12288+32-192}, v15"); p("v_add_u32 v29, v10, v97")
    p("v_and_b32 v12, 31, v0"); p("v_lshlrev_b32 v12, 3, v12"); p("v_lshrrev_b32 v13, 5, v0"); p("v_lshl_add_u32 v30, v13, 11, v12")
    p("v_lshlrev_b32 v12, 2, v0")
    p("s_lshr_b32 s30, s4, 1"); p("s_lshl_b32 s30, s30, 8"); p(f"s_add_u32 s30, s30, {F3}")
    HSF='hsflag' in OPT
    G2='glue2' in OPT and HSF
    def pre_b():
        srd(p,24,P_WD,1376*1024)
        p("s_lshr_b32 s79, s2, 3"); p("s_lshl_b32 s79, s79, 2"); p("s_add_u32 s79, s79, s6"); p("s_mul_i32 s79, s79, 11008")
        p("v_lshlrev_b32 v14, 6, v0")
        p("s_lshl_b32 s30, s70, 15"); p(f"s_add_u32 s30, s30, {L.HF}")
    if G2: pre_b()
    if HSF:
        p("s_lshl_b32 s31, s70, 12"); p(f"s_add_u32 s31, s31, {L.HS}")
        p(f"s_mov_b32 s29, {SPIN}")
        p.label("POLL_hs3")
        for i in range(8): p(f"buffer_load_dwordx2 v[{32+2*i}:{33+2*i}], v30, {SRD_WS}, s31 offen offset:{i*256} sc1")
        p("s_waitcnt vmcnt(0)")
        p("v_max3_u32 v48, v33, v35, v37"); p("v_max3_u32 v49, v39, v41, v43"); p("v_max3_u32 v48, v48, v45, v47"); p("v_max_u32 v48, v48, v49")
        p("v_cmp_eq_u32 vcc, -1, v48")
        p("s_cmp_eq_u64 vcc, 0"); p("s_cbranch_scc1 POLLD_hs3")
        p("s_sub_u32 s29, s29, 1"); p("s_cmp_lg_u32 s29, 0"); p("s_cbranch_scc1 POLL_hs3")
        p.label("POLLD_hs3")
    else: poll(p,'s3',SRD_WS,'s30','v12',1,13)
    stamp(p,'D S3 done',vt=12)
    if not G2: pre_b()
    vm=VM(p)
    def ldB(s):
        p(f"s_add_u32 s3, s30, {s*1024}")
        vm.issue(('B',s),f"buffer_load_dwordx4 v[{128+4*s}:{131+4*s}], v9, {SRD_WS}, s3 offen{HL1}")
    if not G2: p("s_lshl_b32 s31, s70, 12"); p(f"s_add_u32 s31, s31, {L.HS}")
    PN='pnorm' in OPT
    ldB(0)
    if not PN and not HSF:
        for i in range(8): vm.issue(('S',i),f"buffer_load_dwordx2 v[{32+2*i}:{33+2*i}], v30, {SRD_WS}, s31 offen offset:{i*256}{HL1}")
    LA=int(os.environ.get('LA1','8'))
    for s in range(1,LA): ldB(s)
    NEW='w1late' in OPT
    if not NEW: p("s_barrier")
    AB=[0,24]
    def rdA(s):
        q,ss=divmod(s,4); b=AB[s%2]; out=[]
        for uu in range(6):
            va='v10' if uu<5 else 'v11'
            off=ss*3072+uu*32
            out.append(f"ds_read_b64_tr_b16 a[{b+4*uu}:{b+4*uu+1}], {va} offset:{off}")
            out.append(f"ds_read_b64_tr_b16 a[{b+4*uu+2}:{b+4*uu+3}], {va} offset:{off+768}")
        return out
    def setbase(q):
        slot=q%6
        return [f"v_add_u32 v10, {slot*SLOT}, v28", f"v_add_u32 v11, {slot*SLOT}, v29"]
    for x in setbase(0): p(x)
    for x in rdA(0): p(x)
    if not PN:
        if not HSF: vm.wait(('S',7))
        ln_stats(p,32)
    def norm(s):
        out=[]
        if PN: return out
        if 'pknorm' in OPT:
            for i in range(4):
                r=128+4*s+i; t0=20+2*i; t1=21+2*i
                out.append(f"v_lshlrev_b32 v{t0}, 16, v{r}"); out.append(f"v_and_b32 v{t1}, 0xffff0000, v{r}")
            for i in range(4):
                t0=20+2*i
                out.append(f"v_pk_fma_f32 v[{t0}:{t0+1}], v[{t0}:{t0+1}], v[16:17], v[18:19]")
            for i in range(4):
                r=128+4*s+i; t0=20+2*i; t1=21+2*i
                out.append(f"v_cvt_pk_bf16_f32 v{r}, v{t0}, v{t1}")
            return out
        for h2 in range(2):
            for i in (2*h2,2*h2+1):
                r=128+4*s+i; t0=20+2*i; t1=21+2*i
                out.append(f"v_lshlrev_b32 v{t0}, 16, v{r}"); out.append(f"v_and_b32 v{t1}, 0xffff0000, v{r}")
            for i in (2*h2,2*h2+1):
                t0=20+2*i; t1=21+2*i
                out.append(f"v_fma_f32 v{t0}, v{t0}, v16, v18"); out.append(f"v_fma_f32 v{t1}, v{t1}, v16, v18")
            for i in (2*h2,2*h2+1):
                r=128+4*s+i; t0=20+2*i; t1=21+2*i
                out.append(f"v_cvt_pk_bf16_f32 v{r}, v{t0}, v{t1}")
        return out
    vm.wait(('B',0))
    for x in norm(0): p(x)
    stamp(p,'D start',vt=12)
    ACC=[32+16*u for u in range(6)]
    dmas=w1_dma(6)+w1_dma(7)
    DS={}; BAR={}
    def wd_group(g0,vb=4):
        out=[]
        for j in range(4):
            g=[]
            if j==0 or 'w1wait' in OPT: g.append(('s',f"s_add_u32 m0, s74, {g0*4096}"))
            if j==0:
                g.append(('s',f"s_add_u32 s76, s77, {(g0//20)*43*16*1024+(g0%20)*32768}"))
            g.append(('m',('WD',g0,j),f"buffer_load_dwordx4 v{vb+j}, {SRD_O}, s76 offen offset:{j*1024}{' nt' if 'ntwd' in OPT else ''} lds"))
            out.append(g)
        return out
    WDPF='wdpf' in OPT
    if NEW:
        def put(items,s0,per):
            for n,g in enumerate(items): DS.setdefault(s0+n//per,[]).append(g)
        SWS=15
        if 'w1wait' in OPT:
            assert WDPF and PN
            WW=os.environ.get('WW','3,4,5').split(',')
            late=[q for q in (3,4,5) if str(q) not in WW]
            put(sum((w1_dma(q) for q in late),[]),0,2)
            put(w1_dma(6),8,1); put(w1_dma(7),14,1)
            BAR={8:[('W1',q,5) for q in late],20:[('W1',6,5)]}
            SWS=19
            p("v_mov_b32 v20, v1")
            for j in range(1,4): p(f"v_add_u32 v{20+j}, {7168*j}, v1")
            put(wd_group(36,20),int(os.environ.get('RA0','2')),1)
        elif 'w1reg' in OPT:
            put(w1_dma(5),int(os.environ.get('W5S','0')),int(os.environ.get('W5P','2'))); put(dmas,9,2)
            BAR={8:[],14:[('W1',5,5)],20:[('W1',7,5)]}
        else:
            put(w1_dma(3),0,2); put(w1_dma(4)+w1_dma(5),3,2); put(dmas,9,2)
            BAR={8:[('W1',3,5)],14:[('W1',5,5)],20:[('W1',7,5)]}
        if WDPF:
            if 'w1wait' not in OPT: put(wd_group(36),16,1)
            put(sum((wd_group(g) for g in (12,16,20,24)),[]),20,2)
            put(sum((wd_group(g) for g in (28,32)),[]),28,2)
            BAR[24]=[('W1',7,5)] if 'w1wait' in OPT else []
    if 'x_nods' in OPT:
        DS={}; BAR={k:[] for k in BAR}
    if 'x_nods2' in OPT:
        DS={k:v for k,v in DS.items() if k<15};
    DPL=tuple(int(x) for x in os.environ.get('DPL','3,5,4').split(','))
    SKP={int(x):n for n,x in enumerate(os.environ.get('SKP','0,1,2,3').split(','))}
    if 'skew0' in OPT: BAR[int(os.environ.get('SK0','1'))]=[]
    def f1loop(NU,vm):
      H=NU//2
      def ldB(s):
          if 'x_nob' in OPT:
              vm.pos[('B',s)]=vm.pos[('B',0)]; return
          p(f"s_add_u32 s3, s30, {s*1024}")
          vm.issue(('B',s),f"buffer_load_dwordx4 v[{128+4*s}:{131+4*s}], v9, {SRD_WS}, s3 offen{HL1}")
      for s in range(32):
          nxt=s+1
          pre=[]; rd=[]; fill=[]; mem=[]
          SKEW='skew' in OPT
          if NEW:
              if s in BAR and not SKEW:
                  if BAR[s]: vm.wait(*BAR[s])
                  p("s_barrier")
          elif s==8:
              p("s_barrier")
          if B2:
              for j in (LA+2*s,LA+2*s+1):
                  if j<32: mem.append(('B',j))
          elif s+LA<32: mem.append(('B',s+LA))
          if not NEW and 8<=s<20: mem.append(('D',s-8))
          if 'warm' in OPT and 'wdatt' not in OPT and WD_STEP<=s<WD_STEP+3: mem.append(('W',s-WD_STEP))
          if 'pt' in OPT and s==PT_STEP: mem.append(('P',0))
          if 'ptout' in OPT and s==int(os.environ.get('PTO_STEP','29')): mem.append(('O',0))
          if nxt<32:
              qn,ssn=divmod(nxt,4)
              if nxt==24 and not NEW:
                  vm.wait(('W1',7,5))
                  p("s_barrier")
              if ssn==0: pre=setbase(qn)
              rd=rdA(nxt)[:2*NU]; fill=norm(nxt)
          if 'x_nofill' in OPT: fill=[]
          if 'x_nord' in OPT: rd=[]
          if 'x_nodma' in OPT and s!=19: mem=[m for m in mem if m[0]!='D']
          if 'x_nodma' in OPT and s==19: mem=[('B',s+LA)]; vm.pos[('W1',7,5)]=vm.n-1
          if 'oldwait' in OPT: p("s_waitcnt lgkmcnt(0)")
          for x in pre: p(x)
          if PN: vm.wait(('B',s))
          elif nxt<32: vm.wait(('B',nxt))
          b=AB[s%2]
          mf=[f"v_mfma_f32_32x32x16_bf16 v[{ACC[uu]}:{ACC[uu]+15}], a[{b+4*uu}:{b+4*uu+3}], v[{128+4*s}:{131+4*s}], {'0' if s==0 else f'v[{ACC[uu]}:{ACC[uu]+15}]'}" for uu in range(NU)]
          fi=0
          KS=[3,3,3,3,2,2] if 'pknorm' in OPT else ([3,4,3,3,4,3] if NU==6 else [5,5,5,5])
          for uu in range(NU):
              if 'oldwait' not in OPT:
                  if 'wait6' in OPT: p(f"s_waitcnt lgkmcnt({10 if nxt<32 else 2*(5-uu)})")
                  elif uu in (0,H): p(f"s_waitcnt lgkmcnt({2*H if (nxt<32 or uu==0) else 0})")
              p(mf[uu])
              for x in rd[2*uu:2*uu+2]: p(x)
              k=KS[uu]
              for x in fill[fi:fi+k]: p(x)
              fi+=k
              if NEW and SKEW and s in BAR and uu in SKP:
                  lab=f"SKW_{s}_{uu}"
                  p(f"s_cmp_lg_u32 s6, {SKP[uu]}"); p(f"s_cbranch_scc1 {lab}")
                  if BAR[s]: vm.wait(*BAR[s])
                  p("s_barrier")
                  p.label(lab)
              if uu==1 and mem and mem[0][0]=='B': ldB(mem[0][1])
              if NEW:
                  for n,g in enumerate(DS.get(s,[])):
                      if (DPL if NU==6 else (2,3,3))[n]==uu: emit_group(p,vm,g)
                  if WDPF and s==SWS and uu==NU-1:
                      p("v_mov_b32 v4, v1")
                      for j in range(1,4): p(f"v_add_u32 v{4+j}, {7168*j}, v1")
              if uu==4 and len(mem)>1 and mem[1][0]=='B': ldB(mem[1][1])
              if uu==3:
                  for m in mem:
                      if m[0]=='D':
                          emit_group(p,vm,dmas[m[1]])
                      if m[0]=='P':
                          p("s_mul_i32 s3, s70, 86"); p("s_add_u32 s3, s3, s66"); p("s_lshl_b32 s3, s3, 10"); p(f"s_add_u32 s3, s3, {L.AF}")
                          p("v_lshlrev_b32 v13, 7, v0"); p("s_lshl_b32 s7, s67, 3"); p("s_bfm_b64 exec, s7, 0")
                          vm.issue(('P',0),f"buffer_load_dword v15, v13, {SRD_WS}, s3 offen ; nowaitcheck")
                          p("s_mov_b64 exec, -1")
                      if m[0]=='O':
                          srd(p,16,P_OUT,2048*1024)
                          p("s_lshl_b32 s3, s62, 6")
                          vm.issue(('O',0),f"buffer_load_dword v15, v8, {SRD_A}, s3 offen ; nowaitcheck")
                      if m[0]=='W':
                          p(f"s_add_u32 s3, s79, {m[1]*4096}")
                          vm.issue(('W',m[1]),f"buffer_load_dword v15, v14, {SRD_O}, s3 offen ; nowaitcheck")
          for x in fill[fi:]: p(x)
    if 'four' in OPT:
        import copy
        vm4=copy.copy(vm); vm4.pos=dict(vm.pos)
        p("s_cmp_eq_u32 s67, 4"); p("s_cbranch_scc1 F1L_4")
        f1loop(6,vm)
        p("s_branch F1L_end")
        p.label("F1L_4")
        f1loop(4,vm4)
        p.label("F1L_end")
    else: f1loop(6,vm)
    stamp(p,'D mfma done',vt=12)
    if NEW and WDPF:
        WD=[[x[1] if x[0]=='s' else x[2] for x in g] for g0 in (0,4,8) for g in wd_group(g0)]
    else:
        p("v_lshrrev_b32 v1, 3, v0"); p("v_and_b32 v10, 7, v0")
        w128_voff(p,'v4')
        for j in range(1,4): p(f"v_add_u32 v{4+j}, {7168*j}, v4")
        p("s_lshr_b32 s3, s6, 1"); p("s_and_b32 s7, s6, 1")
        p(f"s_mul_i32 s30, s3, 81920"); p(f"s_mul_i32 s31, s7, 40960"); p("s_add_u32 s74, s30, s31")
        p(f"s_mul_i32 s75, s3, {43*16*1024}"); p(f"s_mul_i32 s31, s7, {320*1024}"); p("s_add_u32 s77, s31, s75")
        WD=dma128(['v4','v5','v6','v7'],SRD_O,'s74',0,'s77',40,sg='s71')
    if 'glue2' not in OPT: p("s_barrier")
    c1=-2*1.4426950408889634*0.7978845608028654; c2=c1*0.044715
    p(f"s_mov_b32 s72, {hx(f2u(c2))}"); p("s_mov_b32 s73, s72")
    p(f"v_mov_b32 v28, {hx(f2u(c1))}"); p("v_mov_b32 v29, v28")
    p("v_mov_b32 v30, 1.0"); p("v_mov_b32 v31, 1.0")
    p("s_mul_i32 s30, s70, 86"); p("s_add_u32 s30, s30, s66"); p("s_lshl_b32 s30, s30, 10"); p(f"s_add_u32 s30, s30, {L.AF}")
    if 'glue2' in OPT: p("s_barrier")
    S4S='s4split' in OPT
    if S4S: flag_off(p,F3); p("s_mov_b32 s80, s3")
    NDU=[8,8,8,8,4,4]
    if NEW and WDPF: NDU=[int(x) for x in os.environ.get('NDU','3,3,3,3,0,0').split(',')]
    k0=0
    for uu in range(6):
        a=ACC[uu]; T=16
        if uu==4:
            p("s_cmp_eq_u32 s67, 4"); p("s_cbranch_scc1 F1_four")
        pr=lambda x,j: f"v[{x+2*j}:{x+2*j+1}]"
        I=[]
        for j in range(4): I.append(f"v_pk_mul_f32 {pr(T,j)}, {pr(a,j)}, {pr(a,j)}")
        for j in range(4): I.append(f"v_pk_fma_f32 {pr(T,j)}, {pr(T,j)}, s[72:73], v[28:29]")
        for j in range(4): I.append(f"v_pk_mul_f32 {pr(T,j)}, {pr(T,j)}, {pr(a,j)}")
        for j in range(8): I.append(f"v_exp_f32 v{T+j}, v{T+j}")
        for j in range(4): I.append(f"v_pk_mul_f32 {pr(a,j)}, {pr(a,j)}, {pr(a+8,j)}")
        for j in range(4): I.append(f"v_pk_add_f32 {pr(T,j)}, {pr(T,j)}, v[30:31]")
        for j in range(8): I.append(f"v_rcp_f32 v{T+j}, v{T+j}")
        for j in range(4): I.append(f"v_pk_mul_f32 {pr(T,j)}, {pr(T,j)}, {pr(a,j)}")
        for j in range(4): I.append(f"v_cvt_pk_bf16_f32 v{24+j}, v{T+2*j}, v{T+2*j+1}")
        G=WD[k0:k0+NDU[uu]]; k0+=NDU[uu]
        gap=len(I)//max(len(G),1)
        for n,x in enumerate(I):
            p(x)
            if n%gap==gap-1 and G:
                for y in G.pop(0): p(y)
        assert not G
        hstore(p,f"buffer_store_dwordx4 v[24:27], v9, {SRD_WS}, s30 offen offset:{(uu%4)*1024}")
        if uu==3: p("s_add_u32 s30, s30, 4096")
        if S4S and uu==int(os.environ.get('F4A','4')):
            p(f"s_waitcnt vmcnt({sum(NDU[3:uu+1])+uu-2})")
            set_flag(p,'s80',12)
    p("s_branch F1_done")
    p.label("F1_four")
    for g in WD[sum(NDU[:4]):]:
        for y in g: p(y)
    if S4S:
        p("s_waitcnt vmcnt(0)")
        set_flag(p,'s80',12)
    p.label("F1_done")
    stamp(p,'D epi done',vt=12)

def ffn2_phase(p):
    S4S='s4split' in OPT
    flag_off(p,F4)
    if S4S:
        p("v_lshlrev_b32 v50, 2, v0")
        p("s_lshr_b32 s30, s4, 1"); p("s_lshl_b32 s30, s30, 8"); p(f"s_add_u32 s81, s30, {F4}"); p(f"s_add_u32 s30, s30, {F3}")
        p(f"buffer_load_dword v48, v50, {SRD_WS}, s30 offen sc1")
    p("s_waitcnt vmcnt(0)")
    set_flag(p,'s3',12)
    stamp(p,'E flag set',vt=12)
    srd(p,16,P_WD,1376*1024)
    srd(p,24,P_OUT,2048*1024)
    lane_params(p)
    p("s_and_b32 s3, s6, 1"); p("s_lshl_b32 s3, s3, 2")
    tr_base128(p,'v10',"s3",0)
    p("s_and_b32 s3, s6, 1"); p("s_mul_i32 s3, s3, 81920")
    p("v_add_u32 v10, s3, v10")
    p("v_xor_b32 v11, 64, v10")
    p("v_add_u32 v14, 49152, v10"); p("v_add_u32 v15, 49152, v11")
    RC='rescin' in OPT
    if RC:
        for j in range(8): p(f"v_accvgpr_read_b32 v{52+j}, a{248+j}")
        for j in range(8):
            p(f"v_lshlrev_b32 v{64+2*j}, 16, v{52+j}")
            p(f"v_and_b32 v{65+2*j}, 0xffff0000, v{52+j}")
    p("s_barrier")
    AB=[16+8*b for b in range(4)]
    ACC=[64,80]; NS=43
    LA=int(os.environ.get('LA2','8'))
    def orders(kh):
        if not S4S: return list(range(NS)),0,[0,1,2]
        u0=[4*m+2*min(m,11) for m in range(16)]; nu=[6 if m<11 else 4 for m in range(16)]
        early=set()
        for m in range(16):
            for k in range(3 if nu[m]==6 else 4): early.add(u0[m]+k)
        e=[s for s in range(40) if 43*kh+s in early]; l=[s for s in range(40) if 43*kh+s not in early]
        o=e+l+[40,41,42]
        return o,len(e),o[:3]
    def mkrd(order,reuse):
        def rd(i,ccs=(0,1)):
            b=AB[i%4]; st=order[i]
            j=st if st<40 else reuse[st-40]
            off=j*2048
            va=('v10','v11')
            if j>=24: va=('v14','v15'); off-=49152
            for cc in ccs:
                p(f"ds_read_b64_tr_b16 v[{b+4*cc}:{b+4*cc+1}], {va[cc]} offset:{off}")
                p(f"ds_read_b64_tr_b16 v[{b+4*cc+2}:{b+4*cc+3}], {va[cc]} offset:{off+512}")
        return rd
    if not S4S:
        rd=mkrd(*orders(0)[::2])
        for i in range(3): rd(i)
    p("s_and_b32 s7, s6, 1"); p("s_mul_i32 s3, s7, 3")
    p("s_lshl_b32 s76, s3, 13"); p("s_add_u32 s76, s76, s75"); p(f"s_add_u32 s76, s76, {40*16*1024}")
    p("s_lshl_b32 s77, s3, 10"); p("s_lshr_b32 s3, s6, 1"); p("s_mul_i32 s3, s3, 81920"); p("s_add_u32 s77, s77, s3")
    if S4S:
        assert orders(0)[2]==[0,1,2] and orders(1)[2]==[0,1,5]
        p("s_cmp_eq_u32 s6, 3"); p("s_cselect_b32 s78, 6144, 0"); p("s_add_u32 s78, s78, s77")
    p("s_mul_i32 s31, s61, 86"); p("s_and_b32 s3, s6, 1"); p("s_mul_i32 s3, s3, 43"); p("s_add_u32 s31, s31, s3")
    p("s_lshl_b32 s31, s31, 10"); p(f"s_add_u32 s31, s31, {L.AF}")
    if 'wbl2' in OPT: raise RuntimeError
    def check_flags(name,reg,soff,waitf):
        waitf()
        p(f"v_cmp_ne_u32 vcc, 1, v{reg}")
        p("s_cmp_eq_u64 vcc, 0"); p(f"s_cbranch_scc1 POLLD_{name}")
        p(f"s_mov_b32 s29, {SPIN}")
        p.label(f"POLL_{name}")
        p(f"buffer_load_dword v{reg}, v50, {SRD_WS}, {soff} offen sc1")
        p("s_waitcnt vmcnt(0)")
        p(f"v_cmp_ne_u32 vcc, 1, v{reg}")
        p("s_cmp_eq_u64 vcc, 0")
        p(f"s_cbranch_scc1 POLLD_{name}")
        p("s_sub_u32 s29, s29, 1"); p("s_cmp_lg_u32 s29, 0"); p(f"s_cbranch_scc1 POLL_{name}")
        p.label(f"POLLD_{name}")
    def loop(kh):
        order,ne,reuse=orders(kh)
        rd=mkrd(order,reuse)
        vm=VM(p)
        def ldB(i):
            if S4S:
                st=order[i]
                if st>=4: p(f"s_add_u32 s3, s31, {(st//4)*4096}")
                vm.issue(('B',i),f"buffer_load_dwordx4 a[{4*i}:{4*i+3}], v9, {SRD_WS}, {'s3' if st>=4 else 's31'} offen offset:{(st%4)*1024}{HL1}")
                return
            if i%4==0 and i: p(f"s_add_u32 s31, s31, 4096")
            vm.issue(('B',i),f"buffer_load_dwordx4 a[{4*i}:{4*i+3}], v9, {SRD_WS}, s31 offen offset:{(i%4)*1024}{HL1}")
        for i in range(LA): ldB(i)
        if S4S:
            for i in range(3): rd(i)
        PQ=ne-LA-int(os.environ.get('PD',str(LA)))
        assert not S4S or (0<=PQ<ne-LA and LA<=ne)
        for i in range(NS):
            if i==4:
                p("s_barrier")
                for j in range(3):
                    p(f"s_add_u32 m0, {'s78' if (S4S and j) else 's77'}, {j*1024}"); p(f"s_add_u32 s3, s76, {j*8192}")
                    vm.issue(('D',j),f"buffer_load_dwordx4 v4, {SRD_A}, s3 offen lds")
            if i==36:
                vm.wait(('D',2))
                p("s_barrier")
            if S4S and i==PQ: vm.issue(('F',0),f"buffer_load_dword v49, v50, {SRD_WS}, s81 offen sc1")
            rem=min(2,NS-1-i)
            vm.wait(('B',i),extra=f" lgkmcnt({rem*4})")
            b=AB[i%4]
            CO=(1,0) if 'last10' in OPT else (0,1)
            for cc in CO:
                a=ACC[cc]
                p(f"v_mfma_f32_32x32x16_bf16 v[{a}:{a+15}], v[{b+4*cc}:{b+4*cc+3}], a[{4*i}:{4*i+3}], {'0' if (i==0 and not (RC and cc==0)) else f'v[{a}:{a+15}]'}")
                if cc==CO[0] and i+LA<NS:
                    if S4S and i+LA==ne:
                        if kh==0: stamp(p,'E pre b',vt=52)
                        check_flags(f's4b{kh}',49,'s81',lambda: vm.wait(('F',0)))
                        if kh==0: stamp(p,'E post b',vt=52)
                    ldB(i+LA)
                if i+3<NS: rd(i+3,(cc,))
    if S4S:
        check_flags('s4a',48,'s30',lambda: None)
        stamp(p,'E S4 done',vt=100)
        p("s_bitcmp1_b32 s6, 0"); p("s_cbranch_scc1 F2_K1")
        loop(0)
        p("s_branch F2_end")
        p.label("F2_K1")
        loop(1)
        p.label("F2_end")
    else:
        p("v_lshlrev_b32 v12, 2, v0")
        p("s_lshr_b32 s30, s4, 1"); p("s_lshl_b32 s30, s30, 8"); p(f"s_add_u32 s30, s30, {F4}")
        poll(p,'s4',SRD_WS,'s30','v12',1,13)
        stamp(p,'E S4 done',vt=100)
        loop(0)
    stamp(p,'E mfma',vt=12)
    pair_reduce(p,ACC,8192)
    if not RC:
        for j in range(8): p(f"v_accvgpr_read_b32 v{32+j}, a{248+j}")
        for j in range(8):
            p(f"v_lshlrev_b32 v{96+2*j}, 16, v{32+j}")
            p(f"v_and_b32 v{97+2*j}, 0xffff0000, v{32+j}")
        for j in range(8): p(f"v_pk_add_f32 v[{64+2*j}:{65+2*j}], v[{64+2*j}:{65+2*j}], v[{96+2*j}:{97+2*j}]")
    for j in range(8): p(f"v_cvt_pk_bf16_f32 v{32+j}, v{64+2*j}, v{65+2*j}")
    p("s_lshl_b32 s3, s62, 6")
    OF_=os.environ.get('OUTF','').replace('_',' ')
    if 'x_outfull' in OPT:
        p("v_lshrrev_b32 v8, 3, v0"); p("v_lshlrev_b32 v8, 10, v8"); p("v_and_b32 v13, 7, v0"); p("v_lshl_add_u32 v8, v13, 4, v8")
        p("s_lshl_b32 s3, s61, 15"); p("s_and_b32 s7, s6, 1"); p("s_lshl_b32 s7, s7, 14"); p("s_add_u32 s3, s3, s7"); p("s_lshl_b32 s7, s5, 7"); p("s_add_u32 s3, s3, s7")
        p(f"buffer_store_dwordx4 v[32:35], v8, {SRD_O}, s3 offen {OF_}")
        p("s_add_u32 s3, s3, 8192")
        p(f"buffer_store_dwordx4 v[36:39], v8, {SRD_O}, s3 offen {OF_}")
        return
    p(f"buffer_store_dwordx4 v[32:35], v8, {SRD_O}, s3 offen {OF_}")
    p(f"buffer_store_dwordx4 v[36:39], v8, {SRD_O}, s3 offen offset:32 {OF_}")

def build(fname):
    p=Prog()
    end="END_K"
    prologue(p,end)
    stamp(p,'start')
    phase_a(p)
    attention(p)
    wo_phase(p)
    ffn1_phase(p)
    ffn2_phase(p)
    stamp(p,'end',vt=12)
    p.label(end)
    p("s_endpgm")
    attention_slow(p)
    emit_outl(p)
    ins=p.finalize(name='k',check_waits=not os.environ.get('NOCHECK'))
    print(f"{len(ins)} lines, {p.nops} hazard nops",file=sys.stderr)
    ref=open('sequential_preLN__grouped_kv_mqa__geglu_ffn__prompt.s.ref').read()
    hdr=ref.split('; Override')[0]
    out=hdr+f"; @launch grid=(256,1,1) block=(256,1,1) lds={LDS_TOTAL}\n"
    out+='.amdgcn_target "amdgcn-amd-amdhsa--gfx950"\n.text\n'
    out+=f".globl {KNAME}\n.p2align 8\n.type {KNAME},@function\n{KNAME}:\n"+render(ins)
    out+=f""".section .rodata,"a"
.p2align 6
.amdhsa_kernel {KNAME}
  .amdhsa_next_free_vgpr 512
  .amdhsa_next_free_sgpr 96
  .amdhsa_accum_offset 256
  .amdhsa_group_segment_fixed_size 0
  .amdhsa_kernarg_size 96
  .amdhsa_user_sgpr_count 2
  .amdhsa_user_sgpr_kernarg_segment_ptr 1
  .amdhsa_system_sgpr_workgroup_id_x 1
.end_amdhsa_kernel
"""
    open(fname,'w').write(out)

if __name__=='__main__':
    out=sys.argv[1]
    if len(sys.argv)>2: PROFILE=True
    build(out)
    open(out+'.stamps','w').write('\n'.join(STAMPS))
    if DSTAMPS: print(DSTAMPS)
```

```python
import sys, os, struct
from asm import Prog, render
import layout as L

OPT=set(x for x in os.environ.get('OPT','').split(',') if x)
KNAME='sequential_preLN__grouped_kv_mqa__geglu_ffn__prompt_kernel'
QSCALE=1.4426950408889634/4.0
def f2u(x): return struct.unpack('<I',struct.pack('<f',x))[0]
def hx(x): return '0x%08x'%(x & 0xffffffff)

SRD_WS='s[8:11]'; SRD_X='s[12:15]'; SRD_A='s[16:19]'; SRD_B='s[20:23]'; SRD_O='s[24:27]'; SRD_D='s[56:59]'
P_X,P_WQ,P_WK,P_WV,P_WO,P_WG,P_WU,P_WD,P_OUT,P_WS,P_DBG=32,34,36,38,40,44,46,48,50,52,54
SPIN=1<<17

XH0=0; XH1=33792; WQ=67584; WK=XH1; WV=XH1+16384+128
WO_L=0; OP=73728; QL=147456; MX=155648; MF=MX+4096; QM=161792
SLOT=24576; RED=147456
LDS_TOTAL=163840
F2=L.FLG; F3=L.FLG+4096; F4=L.FLG+8192; FX=L.FLG+12288

def srd(p, d, ptr, size):
    p(f"s_mov_b32 s{d}, s{ptr}")
    p(f"s_mov_b32 s{d+1}, s{ptr+1}")
    p(f"s_mov_b32 s{d+2}, {hx(size)}")
    p(f"s_mov_b32 s{d+3}, 0x20000")
def csel(p,d,a,b):
    p(f"s_mov_b32 {d}, {b}"); p(f"s_cmov_b32 {d}, {a}")

PROFILE=False
HL1=' nt' if 'ldnt' in OPT else ('' if 'ldpl' in OPT else (' sc0' if 'ldsc0' in OPT else ' sc1'))
HS1='' if 'l2h' in OPT else ' sc1'
PF_N=int(os.environ.get('PF_N','3'))
PT_STEP=int(os.environ.get('PT_STEP','24'))
FLG_CLR=208
WD_STEP=int(os.environ.get('WD_STEP','24'))
B2='b2' in OPT
PF2_T=int(os.environ.get('PF2_T','8'))
GO_STEP=int(os.environ.get('GO_STEP','7'))
STAMPS=[]
DSTAMPS=[]
def dstamp(p,name,vt):
    slot=len(DSTAMPS)
    if slot>=16: return
    DSTAMPS.append(name)
    lab=f"DST_{slot}_{len(p.lines)}"
    p("s_lshl_b32 s90, s2, 2"); p("s_or_b32 s90, s90, s6")
    p(f"s_cmp_lg_u32 s90, {int(os.environ.get('DWG','40'))*4}"); p(f"s_cbranch_scc1 {lab}")
    p("s_memrealtime s[90:91]")
    p("s_waitcnt lgkmcnt(0) ; nowaitcheck")
    p(f"v_mov_b32 v{vt}, s90"); p(f"v_mov_b32 v{vt+1}, {slot*4}")
    p("s_mov_b64 s[94:95], exec"); p("s_mov_b64 exec, 1")
    p(f"buffer_store_dword v{vt}, v{vt+1}, {SRD_D}, 0 offen")
    p("s_mov_b64 exec, s[94:95]")
    p.label(lab)
DSEL=os.environ.get('DSEL','').split(',')
def stamp(p, name, vt=250, dyn=None, n=1):
    if name in DSEL: dstamp(p,name,vt)
    if not PROFILE: return
    slot=len(STAMPS)
    for i in range(n): STAMPS.append(name+(f"[{i}]" if n>1 else ""))
    lab=f"ST_{slot}_{len(p.lines)}"
    p("s_cmp_lg_u32 s6, 0"); p(f"s_cbranch_scc1 {lab}")
    p("s_memrealtime s[90:91]")
    p("s_memtime s[88:89]")
    p("s_lshl_b32 s92, s2, 3"); p(f"s_add_u32 s92, s92, {L.PROF+slot*2048}")
    if dyn: p(f"s_lshl_b32 s93, {dyn}, 11"); p("s_add_u32 s92, s92, s93")
    p("s_waitcnt lgkmcnt(0) ; nowaitcheck")
    p(f"v_mov_b32 v{vt}, s90"); p(f"v_mov_b32 v{vt+1}, s88"); p(f"v_mov_b32 v{vt+2}, 0")
    p("s_mov_b64 s[94:95], exec"); p("s_mov_b64 exec, 1")
    p(f"buffer_store_dwordx2 v[{vt}:{vt+1}], v{vt+2}, {SRD_WS}, s92 offen")
    p("s_mov_b64 exec, s[94:95]")
    p.label(lab)

class VM:
    def __init__(s,p): s.p=p; s.n=0; s.pos={}
    def issue(s,key,txt):
        s.p(txt); s.pos[key]=s.n; s.n+=1
    def wait(s,*keys,extra=""):
        need=max(s.pos[k] for k in keys)
        c=s.n-1-need
        if c<=63: s.p(f"s_waitcnt vmcnt({c}){extra}")
        elif extra: s.p(f"s_waitcnt{extra}")

def poll(p, name, srd_, soff, vaddr, expect, vt, sleep=0):
    if PROFILE:
        p("s_waitcnt vmcnt(0)")
        stamp(p,name+' own dma',vt={'s1':200,'s4':100}.get(name,14))
    p(f"s_mov_b32 s29, {SPIN}")
    p.label(f"POLL_{name}")
    p(f"buffer_load_dword v{vt}, {vaddr}, {srd_}, {soff} offen sc1")
    p("s_waitcnt vmcnt(0)")
    p(f"v_cmp_ne_u32 vcc, {expect}, v{vt}")
    p("s_cmp_eq_u64 vcc, 0")
    p(f"s_cbranch_scc1 POLLD_{name}")
    if sleep: p(f"s_sleep {sleep}")
    p("s_sub_u32 s29, s29, 1")
    p("s_cmp_lg_u32 s29, 0")
    p(f"s_cbranch_scc1 POLL_{name}")
    p.label(f"POLLD_{name}")

OUTL=[]
def hstore(p, lines):
    if isinstance(lines,str): lines=[lines]
    if 'xcc' not in OPT:
        for x in lines: p(x+HS1)
        return
    k=len(OUTL)
    p("s_cmp_lg_u32 s43, 0"); p(f"s_cbranch_scc1 HST_{k}")
    for x in lines: p(x)
    p.label(f"HSB_{k}")
    OUTL.append((k,[x+' sc1' for x in lines]))
def emit_outl(p):
    for k,lines in OUTL:
        p.label(f"HST_{k}")
        for x in lines: p(x)
        p(f"s_branch HSB_{k}")

def set_flag(p, soff, vt):
    p(f"v_mov_b32 v{vt}, 1"); p(f"v_mov_b32 v{vt+1}, 0")
    p("s_mov_b64 exec, 1")
    hstore(p,f"buffer_store_dword v{vt}, v{vt+1}, {SRD_WS}, {soff} offen")
    p("s_mov_b64 exec, -1")

def prologue(p, end):
    p(f"s_cmp_ge_u32 s2, {0 if 'empty' in OPT else 256}")
    p(f"s_cbranch_scc1 {end}")
    p("s_load_dwordx4 s[32:35], s[0:1], 0")
    p("s_load_dwordx4 s[36:39], s[0:1], 16")
    p("s_load_dwordx2 s[40:41], s[0:1], 32")
    p("s_load_dwordx4 s[44:47], s[0:1], 48")
    p("s_load_dwordx4 s[48:51], s[0:1], 64")
    p("s_load_dwordx2 s[52:53], s[0:1], 88")
    p("s_load_dwordx2 s[54:55], s[0:1], 80")
    p("v_lshrrev_b32 v1, 6, v0")
    p("v_and_b32 v0, 63, v0")
    p("v_readfirstlane_b32 s6, v1")
    p("s_and_b32 s3, s2, 7")
    p("s_lshr_b32 s7, s2, 3")
    p("s_lshr_b32 s4, s7, 3")
    p("s_lshl_b32 s3, s3, 2")
    p("s_add_u32 s4, s4, s3")
    p("s_and_b32 s5, s7, 7")
    p("v_lshlrev_b32 v9, 4, v0")
    if 'codepf' in OPT:
        p("s_getpc_b64 s[60:61]")
        p.label("PF_HERE")
        p("s_lshl_b32 s3, s7, 2"); p("s_add_u32 s3, s3, s6"); p("s_lshl_b32 s3, s3, 9")
        p("v_and_b32 v231, 7, v0"); p("v_lshlrev_b32 v231, 6, v231")
        p("v_add_u32 v231, s3, v231")
        p(f"v_min_u32 v230, END_K-PF_HERE-4, v231")
        p("s_mov_b64 exec, 0xff")
        p(f"global_load_dword v232, v230, s[60:61] ; nowaitcheck")
        p("s_mov_b64 exec, -1")
    p("s_waitcnt lgkmcnt(0)")
    srd(p,8,P_WS,L.WS_USED)
    srd(p,56,P_DBG,256)

def ln_tile(p, X, vaddr, off, extra=None, write=True):
    U=176
    S,S2,Q,Q2=80,82,84,86
    I=[]
    a=I.append
    pr=lambda r: f"v[{r}:{r+1}]"
    for i in range(32):
        a(f"v_lshlrev_b32 v{U+2*i}, 16, v{X+i}")
        a(f"v_and_b32 v{U+2*i+1}, 0xffff0000, v{X+i}")
        if i>=1:
            k=i-1; u=U+2*k; sa=(S,S2)[k%2]; qa=(Q,Q2)[k%2]
            if k<2: a(f"v_pk_mul_f32 {pr(qa)}, {pr(u)}, {pr(u)}")
            else: a(f"v_pk_fma_f32 {pr(qa)}, {pr(u)}, {pr(u)}, {pr(qa)}")
            if k==2 or k==3: a(f"v_pk_add_f32 {pr(sa)}, {pr(U+2*(k-2))}, {pr(u)}")
            elif k>3: a(f"v_pk_add_f32 {pr(sa)}, {pr(sa)}, {pr(u)}")
    u=U+62
    a(f"v_pk_fma_f32 {pr(Q2)}, {pr(u)}, {pr(u)}, {pr(Q2)}")
    a(f"v_pk_add_f32 {pr(S2)}, {pr(S2)}, {pr(u)}")
    a(f"v_pk_add_f32 {pr(S)}, {pr(S)}, {pr(S2)}")
    a(f"v_pk_add_f32 {pr(Q)}, {pr(Q)}, {pr(Q2)}")
    S0,Q0='v80','v82'
    a(f"v_add_f32 v80, v80, v81")
    a(f"v_add_f32 v82, v84, v85")
    for d in ("quad_perm:[1,0,3,2]","quad_perm:[2,3,0,1]","row_half_mirror"):
        a(f"v_add_f32_dpp {S0}, {S0}, {S0} {d} row_mask:0xf bank_mask:0xf")
        a(f"v_add_f32_dpp {Q0}, {Q0}, {Q0} {d} row_mask:0xf bank_mask:0xf")
    a(f"v_mul_f32 {S0}, {hx(f2u(1/512))}, {S0}")
    a(f"v_mul_f32 {Q0}, {hx(f2u(1/512))}, {Q0}")
    a(f"v_fma_f32 {Q0}, -{S0}, {S0}, {Q0}")
    a(f"v_max_f32 {Q0}, 0, {Q0}")
    a(f"v_add_f32 {Q0}, {hx(f2u(1e-5))}, {Q0}")
    a(f"v_rsq_f32 v92, {Q0}")
    a(f"v_sub_f32 v94, 0, {S0}")
    a(f"v_mov_b32 v93, v92")
    a(f"v_mul_f32 v94, v94, v92")
    a(f"v_mov_b32 v95, v94")
    for cb in range(8):
        for i in range(4):
            u=U+2*(4*cb+i)
            a(f"v_pk_fma_f32 {pr(u)}, {pr(u)}, v[92:93], v[94:95]")
        for i in range(4):
            u=U+2*(4*cb+i)
            a(f"v_cvt_pk_bf16_f32 v{X+4*cb+i}, v{u}, v{u+1}")
        if write: a(f"ds_write_b128 {vaddr}, v[{X+4*cb}:{X+4*cb+3}] offset:{off+cb*4224}")
    extra=list(extra or [])
    gap=max(1,(len(I)-8)//max(1,len(extra))) if extra else 0
    for n,x in enumerate(I):
        p(x)
        if extra and n%gap==gap-1:
            for y in extra.pop(0): p(y)
    for g in extra:
        for y in g: p(y)
def ln_write(p, X, vaddr, off):
    for cb in range(8): p(f"ds_write_b128 {vaddr}, v[{X+4*cb}:{X+4*cb+3}] offset:{off+cb*4224}")

def dma128(vregs, srd_, sbase_lds, lds_off, sbase_g, n, sg='s31', nt=''):
    out=[]
    for i in range(n):
        j=i%4; g=[]
        if j==0:
            g.append(f"s_add_u32 m0, {sbase_lds}, {lds_off+i*1024}")
            g.append(f"s_add_u32 {sg}, {sbase_g}, {i*8192}")
        g.append(f"buffer_load_dwordx4 {vregs[j]}, {srd_}, {sg} offen offset:{j*1024}{nt} lds")
        out.append(g)
    return out

def gemm_lds(p, nsteps, readA, readB, mfma, rps, depth=3, nbuf=4, fill=None, hook=None):
    fill=list(fill or []); hook=hook or {}
    for s in range(min(depth,nsteps)):
        readA(s,s%nbuf); readB(s,s%nbuf)
    for s in range(nsteps):
        if s+depth<nsteps:
            readA(s+depth,(s+depth)%nbuf); readB(s+depth,(s+depth)%nbuf)
        rem=min(depth,nsteps-1-s)
        p(f"s_waitcnt lgkmcnt({rem*rps})")
        mfma(s,s%nbuf)
        if s in hook: hook[s]()
        for _ in range(2):
            if fill: p(fill.pop(0))
    for x in fill: p(x)

def tr_base128(p, dst, cbit_sgpr, base, t=97):
    a=f"v{t}"; b=f"v{t+1}"
    p(f"v_and_b32 {a}, 1, v13")
    p(f"v_lshl_add_u32 {a}, v15, 1, {a}")
    if cbit_sgpr: p(f"v_add_u32 {a}, {cbit_sgpr}, {a}")
    p(f"v_lshrrev_b32 {b}, 1, v12")
    p(f"v_lshlrev_b32 {b}, 2, {b}")
    p(f"v_xor_b32 {a}, {a}, {b}")
    p(f"v_lshlrev_b32 {a}, 4, {a}")
    p(f"v_lshrrev_b32 {b}, 1, v13")
    p(f"v_lshl_add_u32 {a}, {b}, 3, {a}")
    p(f"v_lshl_add_u32 {a}, v14, 7, {a}")
    p(f"v_add_u32 {dst}, {base}, {a}")

def lane_params(p):
    p("v_lshrrev_b32 v11, 4, v0")
    p("v_bfe_u32 v12, v0, 2, 2")
    p("v_and_b32 v13, 3, v0")
    p("v_lshrrev_b32 v14, 1, v11")
    p("v_lshl_add_u32 v14, v14, 3, v12")
    p("v_and_b32 v15, 1, v11")
    p("v_and_b32 v96, 1, v13")
    p("v_lshlrev_b32 v96, 4, v96")
    p("v_lshrrev_b32 v97, 1, v13")
    p("v_lshl_add_u32 v96, v97, 3, v96")

def w128_voff(p, dst):
    p("v_lshrrev_b32 v11, 4, v0")
    p("v_and_b32 v11, 1, v11")
    p("v_lshlrev_b32 v11, 2, v11")
    p("v_xor_b32 v11, v11, v10")
    p("v_lshlrev_b32 v11, 4, v11")
    p(f"v_lshl_add_u32 {dst}, v1, 10, v11")
    if 'x_wdx' in OPT and dst=='v1': p("s_xor_b32 s3, s5, 1"); p("s_lshl_b32 s3, s3, 7")
    else: p("s_lshl_b32 s3, s5, 7")
    p(f"v_add_u32 {dst}, s3, {dst}")

def hs_sentinel(p,w):
    if 'hsflag' not in OPT: return
    p("s_lshl_b32 s3, s60, 12"); p(f"s_add_u32 s3, s3, {L.HS+w*2048}")
    for i in range(4): p(f"v_mov_b32 v{120+i}, -1")
    p(f"buffer_store_dwordx4 v[120:123], v9, {SRD_WS}, s3 offen sc1")
    p(f"buffer_store_dwordx4 v[120:123], v9, {SRD_WS}, s3 offen offset:1024 sc1")

VA=64
def phase_a(p):
    p("s_mov_b32 s28, 0x3f803f80")
    srd(p,12,P_X,2048*1024)
    p("s_and_b32 s3, s5, 1")
    p("s_lshl_b32 s60, s4, 1")
    p("s_add_u32 s60, s60, s3")
    p("v_lshrrev_b32 v1, 3, v0")
    p("v_and_b32 v10, 7, v0")
    p("s_lshl_b32 s3, s60, 5")
    p("s_lshl_b32 s7, s6, 3")
    p("s_add_u32 s3, s3, s7")
    p("v_add_u32 v2, s3, v1")
    p("v_lshlrev_b32 v2, 10, v2")
    p("v_lshl_add_u32 v2, v10, 4, v2")
    p("v_xor_b32 v3, 0x8000, v2")
    for cb in range(8):
        p(f"buffer_load_dwordx4 v[{16+4*cb}:{19+4*cb}], v2, {SRD_X}, 0 offen offset:{cb*128}")
    srd(p,16,P_WQ,512*1024)
    w128_voff(p,'v4')
    p("v_lshrrev_b32 v11, 1, v10")
    p("v_mul_u32_u24 v11, 1056, v11")
    p("v_and_b32 v12, 1, v10")
    p("v_mul_u32_u24 v12, 528, v12")
    p("v_add_u32 v5, v11, v12")
    p("s_lshl_b32 s3, s6, 3")
    p("v_add_u32 v11, s3, v1")
    p("v_lshl_add_u32 v5, v11, 4, v5")
    p("v_lshrrev_b32 v11, 5, v0")
    p("v_mul_u32_u24 v11, 528, v11")
    p("v_and_b32 v12, 31, v0")
    p("v_lshl_add_u32 v6, v12, 4, v11")
    lane_params(p)
    p(f"v_mul_u32_u24 v97, {WV-WK}, v15")
    p("v_lshl_add_u32 v97, v14, 5, v97")
    p("v_add_u32 v97, v97, v96")
    p(f"v_add_u32 v8, {WK}, v97")
    p("s_and_b32 s3, s6, 1")
    p("s_lshl_b32 s3, s3, 2")
    tr_base128(p,'v7','s3',WQ)
    p("s_cmp_ge_u32 s5, 2")
    p("s_cselect_b32 s77, 4, 8")
    p("s_sub_u32 s3, s6, 2"); p("s_lshl_b32 s3, s3, 1")
    p("s_cmp_ge_u32 s5, 2"); p("s_cselect_b32 s3, s6, s3")
    p("s_lshl_b32 s75, s3, 17")
    p("s_lshl_b32 s76, s3, 14"); p(f"s_add_u32 s76, s76, {WQ}")
    p("s_lshl_b32 s74, s6, 14")
    p("s_cmp_ge_u32 s5, 2")
    p("s_cbranch_scc1 A_nokvdma")
    p("s_cmp_lg_u32 s6, 2")
    p("s_cbranch_scc1 A_noclr")
    p(f"s_mul_i32 s3, s60, {FLG_CLR}")
    p(f"s_add_u32 s3, s3, {L.FLG}")
    p("v_lshlrev_b32 v11, 2, v0")
    p("v_mov_b32 v12, 0")
    p(f"s_mov_b32 exec_hi, {hx((1<<(FLG_CLR//4-32))-1)}")
    p(f"buffer_store_dword v12, v11, {SRD_WS}, s3 offen sc1")
    p("s_mov_b64 exec, -1")
    p.label("A_noclr")
    p("s_cmp_lt_u32 s6, 2")
    p(f"s_cselect_b32 s20, s{P_WK}, s{P_WV}")
    p(f"s_cselect_b32 s21, s{P_WK+1}, s{P_WV+1}")
    p("s_mov_b32 s22, 16384")
    p("s_mov_b32 s23, 0x20000")
    csel(p,'s30',WK,WV)
    p("s_and_b32 s3, s6, 1")
    p("s_lshl_b32 s3, s3, 13")
    p("s_add_u32 s30, s30, s3")
    for i in range(8):
        if i%4==0: p(f"s_add_u32 m0, s30, {i*1024}"); p(f"s_add_u32 s31, s3, {i*1024}")
        p(f"buffer_load_dwordx4 v9, {SRD_B}, s31 offen offset:{(i%4)*1024} lds")
    stamp(p,'A issued')
    WE='wqearly' in OPT
    if WE:
        p("s_cmp_lt_u32 s6, 2"); p("s_cbranch_scc1 A_noweq")
        p("v_add_u32 v240, 7168, v4"); p("v_add_u32 v241, 14336, v4"); p("v_add_u32 v242, 21504, v4")
        for g in range(8):
            p(f"s_add_u32 m0, s76, {g*4096}"); p(f"s_add_u32 s3, s75, {g*32768}")
            for j,vr in enumerate(('v4','v240','v241','v242')):
                p(f"buffer_load_dwordx4 {vr}, {SRD_A}, s3 offen offset:{j*1024} lds")
        if 'vones' in OPT: v_ones(p,88)
        p("s_waitcnt vmcnt(40)")
        p("s_branch A_xw")
        p.label("A_noweq")
    if 'vones' in OPT: v_ones(p,88)
    p("s_waitcnt vmcnt(8)")
    p("s_branch A_xw")
    p.label("A_nokvdma")
    if 'wqwarm' in OPT:
        p("s_and_b32 s3, s4, 3"); p("s_mul_i32 s3, s3, 6"); p("s_add_u32 s3, s3, s5"); p("s_sub_u32 s3, s3, 2")
        p("s_lshl_b32 s3, s3, 2"); p("s_add_u32 s3, s3, s6"); p("s_mul_i32 s3, s3, 22")
        p("v_add_u32 v247, s3, v0"); p("v_lshrrev_b32 v246, 2, v247"); p("v_and_b32 v247, 3, v247"); p("v_lshlrev_b32 v247, 6, v247")
        p("v_lshl_add_u32 v247, v246, 10, v247")
        p("s_mov_b64 exec, 0x3fffff")
        p(f"buffer_load_dword v246, v247, {SRD_A}, 0 offen ; nowaitcheck")
        p("s_mov_b64 exec, -1")
    if 'vones' in OPT: v_ones(p,88)
    p("s_waitcnt vmcnt(1)" if 'wqwarm' in OPT else "s_waitcnt vmcnt(0)")
    p.label("A_xw")
    stamp(p,'A x arrived')
    ln_tile(p,16,'v5',XH0,extra=[[f"buffer_load_dwordx4 v[{48+4*cb}:{51+4*cb}], v3, {SRD_X}, 0 offen offset:{cb*128}"] for cb in range(8)])
    for j in range(1,4): p(f"v_add_u32 v{175+j+64}, {7168*j}, v4")
    stamp(p,'A lnA done')
    p("s_cmp_ge_u32 s5, 2")
    p("s_cbranch_scc1 A_wqdma")
    if 'wqearly' in OPT:
        p("s_cmp_lt_u32 s6, 2"); p("s_cbranch_scc1 A_kw01")
        p("s_waitcnt vmcnt(40) lgkmcnt(0)")
        p("s_barrier")
        p("s_waitcnt vmcnt(0)")
        p("s_branch A_kvdone")
        p.label("A_kw01")
    p("s_waitcnt vmcnt(8) lgkmcnt(0)")
    p("s_barrier")
    p("s_cmp_ge_u32 s6, 2")
    p("s_cbranch_scc1 A_wqdma")
    AB_=[96+4*b for b in range(6)]; BB_=[144+4*b for b in range(6)]
    def rA(s,b):
        p(f"ds_read_b64_tr_b16 v[{AB_[b]}:{AB_[b]+1}], v8 offset:{s*512}")
        p(f"ds_read_b64_tr_b16 v[{AB_[b]+2}:{AB_[b]+3}], v8 offset:{s*512+128}")
    def rB(s,b):
        p(f"ds_read_b128 v[{BB_[b]}:{BB_[b]+3}], v6 offset:{XH0+s*1056}")
    p("s_cmp_eq_u32 s6, 1")
    p("s_cbranch_scc1 A_vwave")
    gemm_lds(p,32,rA,rB,lambda s,b: p(f"v_mfma_f32_32x32x16_bf16 v[128:143], v[{AB_[b]}:{AB_[b]+3}], v[{BB_[b]}:{BB_[b]+3}], {'0' if s==0 else 'v[128:143]'}"),3,depth=4,nbuf=6)
    for j in range(4): p(f"v_cvt_pk_bf16_f32 v{88+j}, v{128+2*j}, v{129+2*j}")
    p("s_lshl_b32 s3, s60, 10")
    p(f"s_add_u32 s3, s3, {L.KF}")
    p(f"buffer_store_dwordx4 v[88:91], v9, {SRD_WS}, s3 offen sc1")
    p("v_mul_f32 v84, v128, v128")
    for j in range(1,8): p(f"v_fmac_f32 v84, v{128+j}, v{128+j}")
    p("v_mov_b32 v85, v84")
    p("v_permlane32_swap_b32 v84, v85")
    p("v_add_f32 v84, v84, v85")
    for d in ("row_ror:8","row_ror:4","row_ror:2","row_ror:1"):
        p(f"v_max_f32_dpp v84, v84, v84 {d} row_mask:0xf bank_mask:0xf")
    p("v_readlane_b32 s3, v84, 0")
    p("v_readlane_b32 s7, v84, 16")
    p("s_max_u32 s3, s3, s7")
    p("v_mov_b32 v84, s3")
    p("s_lshl_b32 s7, s60, 7")
    p(f"s_add_u32 s7, s7, {L.KM}")
    p("v_lshlrev_b32 v85, 2, v0")
    p("s_mov_b32 exec_hi, 0")
    p(f"buffer_store_dword v84, v85, {SRD_WS}, s7 offen sc1")
    p("s_mov_b64 exec, -1")
    p("s_waitcnt vmcnt(2)")
    hs_sentinel(p,0)
    p("s_branch A_kvdone")
    p.label("A_vwave")
    p("v_and_b32 v84, 3, v0")
    p("v_bfe_u32 v85, v0, 2, 1")
    p("v_lshl_add_u32 v84, v85, 3, v84")
    p("v_bfe_u32 v85, v0, 3, 1")
    p("v_lshl_add_u32 v84, v85, 2, v84")
    p("v_and_b32 v85, 16, v0")
    p("v_add_u32 v84, v84, v85")
    p("v_lshrrev_b32 v85, 5, v0")
    p("v_mul_u32_u24 v85, 528, v85")
    p("v_lshl_add_u32 v86, v84, 4, v85")
    def rBv(s,b):
        p(f"ds_read_b128 v[{BB_[b]}:{BB_[b]+3}], v86 offset:{XH0+s*1056}")
    gemm_lds(p,32,rA,rBv,lambda s,b: p(f"v_mfma_f32_32x32x16_bf16 v[128:143], v[{BB_[b]}:{BB_[b]+3}], v[{AB_[b]}:{AB_[b]+3}], {'0' if s==0 else 'v[128:143]'}"),3,depth=4,nbuf=6)
    for j in range(8): p(f"v_cvt_pk_bf16_f32 v{88+j}, v{128+2*j}, v{129+2*j}")
    p("v_xor_b32 v84, 256, v9")
    p("s_lshl_b32 s3, s60, 11")
    p(f"s_add_u32 s3, s3, {L.VF}")
    p("s_mov_b32 exec_lo, 0xffff0000")
    p("s_mov_b32 exec_hi, 0xffff0000")
    p(f"buffer_store_dwordx4 v[88:91], v84, {SRD_WS}, s3 offen sc1")
    p(f"buffer_store_dwordx4 v[92:95], v84, {SRD_WS}, s3 offen offset:1024 sc1")
    p("s_mov_b64 exec, -1")
    p("s_waitcnt vmcnt(2)")
    hs_sentinel(p,1)
    p("s_branch A_kvdone")
    p.label("A_wqdma")
    p("s_waitcnt vmcnt(0)")
    p.label("A_wqloop")
    p("s_mov_b32 m0, s76")
    for j,vr in enumerate(('v4','v240','v241','v242')):
        p(f"buffer_load_dwordx4 {vr}, {SRD_A}, s75 offen offset:{j*1024}{' nt' if 'ntwq' in OPT else ''} lds")
    p("s_add_u32 s76, s76, 4096"); p("s_add_u32 s75, s75, 32768")
    p("s_sub_u32 s77, s77, 1"); p("s_cmp_lg_u32 s77, 0"); p("s_cbranch_scc1 A_wqloop")
    p.label("A_kvdone")
    stamp(p,'A kvdone')
    ln_tile(p,48,'v5',XH1,write=False)
    KE='kvearly' in OPT
    if KE:
        p("s_cmp_ge_u32 s5, 2"); p("s_cbranch_scc1 A_nosig")
        p("s_barrier")
        p("s_cmp_ge_u32 s6, 2"); p("s_cbranch_scc1 A_nosig")
        ln_write(p,48,'v5',XH1)
        p("s_branch A_lnbw")
        p.label("A_nosig")
        ln_write(p,48,'v5',XH1)
        p("s_waitcnt vmcnt(0)")
        p.label("A_lnbw")
        p("s_waitcnt lgkmcnt(0)")
        p("s_barrier")
        stamp(p,'A lnB done')
        phase_a_q(p,KE,AB_,BB_)
        return
    p("s_cmp_ge_u32 s5, 2"); p("s_cbranch_scc1 A_nosig")
    p("s_cmp_ge_u32 s6, 2"); p("s_cbranch_scc1 A_nosig2")
    p("s_waitcnt vmcnt(0)")
    p("s_barrier")
    p("s_cmp_lg_u32 s6, 0"); p("s_cbranch_scc1 A_nosig3")
    if 'go2' in OPT:
        p("s_lshr_b32 s3, s60, 5"); p("s_lshl_b32 s3, s3, 6"); p("v_mov_b32 v85, s3")
    else: p("v_mov_b32 v85, 0")
    p("v_mov_b32 v243, 1")
    p("s_mov_b64 exec, 1")
    p(f"buffer_atomic_add v243, v85, {SRD_D}, 0 offen sc0 sc1 ; nowaitcheck")
    p("s_mov_b64 exec, -1")
    stamp(p,'A sig')
    p.label("A_nosig3")
    ln_write(p,48,'v5',XH1)
    p("s_branch A_lnbw")
    p.label("A_nosig2")
    p("s_barrier")
    p.label("A_nosig")
    ln_write(p,48,'v5',XH1)
    p("s_waitcnt vmcnt(0)")
    p.label("A_lnbw")
    p("s_waitcnt lgkmcnt(0)")
    p("s_barrier")
    stamp(p,'A lnB done')
    phase_a_q(p,False,AB_,BB_)

GOFN=[]
def phase_a_q(p,KE,AB_,BB_):
    if 'wowarm' in OPT:
        srd(p,24,P_WO,512*1024)
        p("s_cmp_lt_u32 s5, 2"); p("s_cbranch_scc1 A_nowarm")
        p("s_and_b32 s3, s4, 3"); p("s_mul_i32 s3, s3, 6"); p("s_add_u32 s3, s3, s5"); p("s_sub_u32 s3, s3, 2")
        p("s_lshl_b32 s3, s3, 2"); p("s_add_u32 s3, s3, s6"); p("s_mul_i32 s3, s3, 5504")
        p("v_lshlrev_b32 v247, 6, v0")
        p(f"buffer_load_dword v246, v247, {SRD_O}, s3 offen ; nowaitcheck")
        p("s_add_u32 s3, s3, 4096")
        p("s_mov_b64 exec, 0x3fffff")
        p(f"buffer_load_dword v246, v247, {SRD_O}, s3 offen ; nowaitcheck")
        p("s_mov_b64 exec, -1")
        p.label("A_nowarm")
    def go():
        N=32 if 'go2' in OPT else 64
        p("s_cmp_ge_u32 s5, 2"); p("s_cbranch_scc1 A_nogo")
        p("s_cmp_lg_u32 s6, 0"); p("s_cbranch_scc1 A_nogo")
        p("s_waitcnt vmcnt(0)")
        stamp(p,'A atom ret')
        p(f"v_readfirstlane_b32 s3, v243"); p(f"s_and_b32 s3, s3, {N-1}"); p(f"s_cmp_lg_u32 s3, {N-1}"); p("s_cbranch_scc1 A_nogo")
        p("v_mov_b32 v243, 1")
        if 'go2' in OPT:
            p("s_lshr_b32 s3, s60, 5"); p("s_lshl_b32 s3, s3, 6"); p("s_add_u32 s3, s3, 128"); p("v_mov_b32 v244, s3")
        else: p("v_mov_b32 v244, 128")
        p("s_mov_b64 exec, 1")
        p(f"buffer_store_dword v243, v244, {SRD_D}, 0 offen sc1")
        p("s_mov_b64 exec, -1")
        p.label("A_nogo")
    def kvsig():
        p("s_cmp_ge_u32 s5, 2"); p("s_cbranch_scc1 A_nosig9")
        p("s_waitcnt vmcnt(0)")
        p("s_barrier")
        p("s_cmp_lg_u32 s6, 0"); p("s_cbranch_scc1 A_nosig9")
        p("s_lshr_b32 s3, s60, 5"); p("s_lshl_b32 s3, s3, 6"); p("v_mov_b32 v245, s3")
        p("v_mov_b32 v243, 1")
        p("s_mov_b64 exec, 1")
        p(f"buffer_atomic_add v243, v245, {SRD_D}, 0 offen sc0 sc1 ; nowaitcheck")
        p("s_mov_b64 exec, -1")
        stamp(p,'A sig')
        p.label("A_nosig9")
    GOP=os.environ.get('GOP','q')
    hooks={GO_STEP:go}
    if KE:
        hooks={int(os.environ.get('KA','12')):kvsig}
        if GOP=='hook': hooks[GO_STEP]=go
        elif GOP=='pre': GOFN.append(go)
    p("s_lshr_b32 s3, s6, 1")
    p(f"s_mul_i32 s7, s3, {XH1}")
    p("v_add_u32 v6, s7, v6")
    def rA(s,b):
        p(f"ds_read_b64_tr_b16 v[{AB_[b]}:{AB_[b]+1}], v7 offset:{s*2048}")
        p(f"ds_read_b64_tr_b16 v[{AB_[b]+2}:{AB_[b]+3}], v7 offset:{s*2048+512}")
    def rB(s,b):
        p(f"ds_read_b128 v[{BB_[b]}:{BB_[b]+3}], v6 offset:{s*1056}")
    gemm_lds(p,32,rA,rB,lambda s,b: p(f"v_mfma_f32_32x32x16_bf16 v[128:143], v[{AB_[b]}:{AB_[b]+3}], v[{BB_[b]}:{BB_[b]+3}], {'0' if s==0 else 'v[128:143]'}"),3,depth=4,nbuf=6,fill=att_setup(),hook=hooks)
    if KE and GOP=='q0': go()
    p(f"s_mov_b32 s30, {hx(f2u(QSCALE))}"); p("s_mov_b32 s31, s30")
    if 'wo2' in OPT: p("v_mov_b32 v239, v4")
    else:
        for j in range(1,4): p(f"v_add_u32 v{4+j}, {7168*j}, v4")
    for j in range(8): p(f"v_pk_mul_f32 v[{128+2*j}:{129+2*j}], v[{128+2*j}:{129+2*j}], s[30:31]")
    for j in range(8): p(f"v_cvt_pk_bf16_f32 v{96+j}, v{128+2*j}, v{129+2*j}")
    p("s_lshr_b32 s3, s6, 1")
    p("s_xor_b32 s3, s5, s3"); p("s_and_b32 s3, s3, 1"); p("s_lshl_b32 s3, s3, 2")
    p("s_and_b32 s7, s6, 1"); p("s_lshl_b32 s7, s7, 1"); p("s_add_u32 s3, s3, s7")
    p("s_lshl_b32 s3, s3, 10"); p(f"s_add_u32 s3, s3, {QL}")
    p("v_add_u32 v104, s3, v9")
    p("ds_write_b128 v104, v[96:99]")
    p("ds_write_b128 v104, v[100:103] offset:1024")
    p("v_mul_f32 v104, v128, v128"); p("v_mul_f32 v105, v136, v136")
    for j in range(1,8): p(f"v_fmac_f32 v104, v{128+j}, v{128+j}"); p(f"v_fmac_f32 v105, v{136+j}, v{136+j}")
    p("v_mov_b32 v106, v104"); p("v_mov_b32 v107, v105")
    p("v_permlane32_swap_b32 v104, v106"); p("v_permlane32_swap_b32 v105, v107")
    p("v_add_f32 v104, v104, v106"); p("v_add_f32 v105, v105, v107")
    p("v_max_u32 v104, v104, v105")
    for d in ("row_ror:8","row_ror:4","row_ror:2","row_ror:1"):
        p(f"v_max_u32_dpp v104, v104, v104 {d} row_mask:0xf bank_mask:0xf")
    p("v_readlane_b32 s3, v104, 0")
    p("v_readlane_b32 s7, v104, 16")
    p("s_max_u32 s3, s3, s7")
    p("v_mov_b32 v104, s3")
    p("s_lshl_b32 s7, s6, 2"); p(f"s_add_u32 s7, s7, {QM}")
    p("v_mov_b32 v105, s7")
    p("ds_write_b32 v105, v104")
    if KE and GOP=='q': go()
    stamp(p,'A q done')

def att_setup():
    F=[]; a=F.append
    for i in range(16): a(f"v_mov_b32 v{OB[0]+i}, 0"); a(f"v_mov_b32 v{OB[1]+i}, 0")
    for i in range(4): a(f"v_mov_b32 v{ZR+i}, 0")
    a(f"v_mov_b32 v{IDX}, 0xdddddddd")
    a("s_mov_b32 s80, 0xffff"); a("s_mov_b32 s81, 0xffff")
    a("s_mul_i32 s77, s6, 2304"); a(f"s_add_u32 s77, s77, {OP}")
    a(f"v_add_u32 v{SLA}, s77, v9")
    a("s_add_u32 s77, s77, 2048")
    a(f"v_lshl_add_u32 v{SLB}, v0, 2, s77")
    a(f"v_add_u32 v{QA}, {QL+1024}, v9")
    a(f"v_add_u32 v59, {QL}, v9")
    a(f"v_mov_b32 v60, {QM}")
    a("s_lshl_b32 s42, s6, 14")
    a("s_lshr_b32 s61, s6, 1"); a("s_lshl_b32 s77, s4, 1"); a("s_add_u32 s61, s61, s77")
    a("s_and_b32 s62, s6, 1"); a("s_lshl_b32 s77, s5, 1"); a("s_add_u32 s62, s62, s77")
    a("v_and_b32 v2, 31, v0"); a("s_lshl_b32 s77, s61, 5"); a("v_add_u32 v2, s77, v2"); a("v_lshlrev_b32 v2, 10, v2")
    a("v_lshrrev_b32 v3, 5, v0"); a("v_lshl_add_u32 v8, v3, 4, v2")
    return F

KA=0
SB=[16,32]; OB=[64,80]; QB=[96,100]; CB=104; IDX=48; ZR=52; SLA=56; SLB=57; QA=58; TB=120
THRESH=40.0
VMASK='s[80:81]'

def QK(Sn,kn,Qn,slow): return f"v_mfma_f32_32x32x16_bf16 v[{Sn}:{Sn+15}], a[{KA+4*kn}:{KA+4*kn+3}], v[{Qn}:{Qn+3}], {f'v[{CB}:{CB+15}]' if slow else '0'}"
def PV(O,areg,S): return f"v_smfmac_f32_32x32x32_bf16 v[{O}:{O+15}], a[{areg}:{areg+3}], v[{S}:{S+7}], v{IDX}"

def slot_write(p,O):
    p(f"ds_write_b128 v{SLA}, v[{O}:{O+3}]")
    p(f"ds_write_b128 v{SLA}, v[{O+4}:{O+7}] offset:1024")
    p(f"ds_write_b32 v{SLB}, v{O+8}")

def att_pass(p, ps, first=False, slow=False, vm=None, ev=None):
    ev=ev or {}
    for t in range(16):
        S=SB[t%2]; Sn=SB[(t+1)%2]
        O=OB[ps]; Op=OB[ps] if t>0 else OB[1-ps]
        Qn=QB[ps] if t<15 else QB[1-ps]
        kn=(t+1)%16; tp=(t-1)%16
        e=lambda i: f"v_exp_f32 v{S+i}, v{S+i}"
        pv2=PV(Op,VA+8*tp+4,Sn+8)
        I=[e(0),e(1),pv2,e(2),e(3),e(4),QK(Sn,kn,Qn,slow),e(5),e(6),e(7),e(8),e(9),PV(O,VA+8*t,S),e(10),e(11),e(12),e(13),e(14),e(15)]
        if not first:
            oa,ob,oc=[int(x) for x in os.environ.get('ORD','3,5,11').split(',')]
            I=[e(i) for i in range(16)]
            I.insert(oc,PV(O,VA+8*t,S)); I.insert(ob,QK(Sn,kn,Qn,slow)); I.insert(oa,pv2)
        ins={}
        def add(pos,txt): ins.setdefault(pos,[]).append(txt)
        if first and t==0: I[2]=None
        if not first:
            if t==2:
                add(4,f"ds_write_b128 v{SLA}, v[{OB[1-ps]}:{OB[1-ps]+3}]")
                add(8,f"ds_write_b128 v{SLA}, v[{OB[1-ps]+4}:{OB[1-ps]+7}] offset:1024")
                add(10,f"ds_write_b32 v{SLB}, v{OB[1-ps]+8}")
            if t==3:
                add(4,f"v_add_u32 v{SLA}, 9216, v{SLA}"); add(8,f"v_add_u32 v{SLB}, 9216, v{SLB}")
            if t==8:
                Z=OB[1-ps]
                add(16,f"v_mfma_f32_32x32x16_bf16 v[{Z}:{Z+15}], v[{ZR}:{ZR+3}], v[{ZR}:{ZR+3}], 0")
        if t==4:
            Qd=QB[1-ps]
            add(4,f"ds_read_b128 v[{Qd}:{Qd+3}], v{QA}")
            if slow: add(5,f"ds_read_b32 v121, v120")
        if t==5:
            add(4,f"v_add_u32 v{QA}, 1024, v{QA}")
            if slow: add(8,"v_add_u32 v120, 256, v120")
        if t==14:
            add(0,"s_waitcnt lgkmcnt(0)")
        if t==15 and slow:
            for j in range(16): add(1,f"v_mov_b32 v{CB+j}, v121")
        if first and vm is not None:
            vm.wait(('V',t,0))
            if t+4<16: add(4,('K',t+4))
            if t+3<16: add(9,('V',t+3))
        for pos,item in ev.get(t,[]): add(pos,item)
        for i,x in enumerate(I):
            for y in ins.get(i,[]):
                if callable(y): y()
                elif isinstance(y,list): emit_group(p,vm,y)
                elif isinstance(y,tuple): (ldK if y[0]=='K' else ldV)(p,vm,y[1])
                else: p(y)
            if x: p(x)

def spread(ev, items, t0, t1, poss=(1,4,8,11,14,17)):
    n=t1-t0+1; per=-(-len(items)//n); assert per<=len(poss),(per,len(items))
    k=0
    for t in range(t0,t1+1):
        for j in range(per):
            if k<len(items): ev.setdefault(t,[]).append((poss[j*len(poss)//per],items[k])); k+=1

def ldK(p,vm,j):
    p(f"s_add_u32 s3, s30, {j*1024}")
    vm.issue(('K',j),f"buffer_load_dwordx4 a[{KA+4*j}:{KA+4*j+3}], v9, {SRD_WS}, s3 offen sc1")
def ldV(p,vm,j):
    p(f"s_add_u32 s3, s31, {j*2048}")
    p(f"s_mov_b64 exec, {VMASK}")
    vm.issue(('V',j,0),f"buffer_load_dwordx4 a[{VA+8*j}:{VA+8*j+3}], v9, {SRD_WS}, s3 offen sc1")
    vm.issue(('V',j,1),f"buffer_load_dwordx4 a[{VA+8*j+4}:{VA+8*j+7}], v9, {SRD_WS}, s3 offen offset:1024 sc1")
    p("s_mov_b64 exec, -1")

def o_store(p,O,jj):
    p(f"v_rcp_f32 v{TB}, v{O+8}")
    p(f"v_mov_b32 v{TB+1}, v{O+8}")
    p(f"v_mov_b32 v{TB+1}, v{TB}")
    for j in range(4): p(f"v_pk_mul_f32 v[{O+2*j}:{O+2*j+1}], v[{O+2*j}:{O+2*j+1}], v[{TB}:{TB+1}]")
    for j in range(4): p(f"v_cvt_pk_bf16_f32 v{TB+4+j}, v{O+2*j}, v{O+2*j+1}")
    hstore(p,f"buffer_store_dwordx4 v[{TB+4}:{TB+7}], v9, {SRD_WS}, s63 offen offset:{jj*1024}")

def xcc_publish(p,vm):
    lab=f"XP_{len(p.lines)}"
    p("s_getreg_b32 s43, hwreg(HW_REG_XCC_ID, 0, 4)")
    p("s_add_u32 s43, s43, 1")
    p("s_lshr_b32 s86, s4, 1"); p("s_lshl_b32 s86, s86, 6"); p(f"s_add_u32 s86, s86, {FX}")
    p("s_cmp_lg_u32 s6, 0"); p(f"s_cbranch_scc1 {lab}")
    p("s_and_b32 s3, s4, 1"); p("s_lshl_b32 s3, s3, 3"); p("s_add_u32 s3, s3, s5"); p("s_lshl_b32 s3, s3, 2")
    p("v_mov_b32 v12, s43"); p("v_mov_b32 v14, s3")
    p("s_mov_b64 exec, 1")
    vm.issue(('XP',0),f"buffer_store_dword v12, v14, {SRD_WS}, s86 offen sc1")
    p("s_mov_b64 exec, -1")
    p.label(lab)
def xcc_load(p,vm):
    p("v_and_b32 v13, 15, v0"); p("v_lshlrev_b32 v13, 2, v13")
    vm.issue(('XL',0),f"buffer_load_dword v12, v13, {SRD_WS}, s86 offen sc1")
def xcc_check(p,sfx=''):
    p(f"s_mov_b32 s29, {SPIN}")
    p.label("XC_CHK"+sfx)
    p("v_cmp_eq_u32 vcc, 0, v12")
    p("s_cmp_eq_u64 vcc, 0"); p("s_cbranch_scc1 XC_OK"+sfx)
    p("s_sub_u32 s29, s29, 1"); p("s_cmp_eq_u32 s29, 0"); p("s_cbranch_scc1 XC_OK"+sfx)
    p(f"buffer_load_dword v12, v13, {SRD_WS}, s86 offen sc1")
    p("s_waitcnt vmcnt(0)")
    p("s_branch XC_CHK"+sfx)
    p.label("XC_OK"+sfx)
    p("v_cmp_ne_u32 vcc, s43, v12")
    p("s_cmp_lg_u64 vcc, 0")
    p("s_cselect_b32 s43, 1, 0")
    if 'xslow' in OPT: p("s_mov_b32 s43, 1")

def wo_dma_groups(vm):
    G=[]
    for n,g in enumerate(dma128(['v239','v240','v241','v242'] if 'wo2' in OPT else ['v4','v5','v6','v7'],SRD_O,'s74',WO_L,'s75',16,sg='s76',nt=' nt' if 'ntwo' in OPT else '')):
        G.append([('s',x) for x in g[:-1]]+[('m',('WO',n),g[-1])])
    G.append([('s',"s_lshl_b32 s76, s62, 6"),('m',('XR',0),f"buffer_load_dwordx4 a[192:195], v8, {SRD_X}, s76 offen")])
    G.append([('m',('XR',1),f"buffer_load_dwordx4 a[196:199], v8, {SRD_X}, s76 offen offset:32")])
    return G
def emit_group(p,vm,g):
    for x in g:
        if x[0]=='s': p(x[1])
        else: vm.issue(x[1],x[2])

def v_ones(p,b):
    p(f"v_mov_b32 v{b}, 0x3f803f80"); p(f"v_mov_b32 v{b+4}, 0x3afe3f80")
    p(f"v_and_b32 v{b+1}, 59, v0"); p(f"v_cmp_eq_u32 vcc, 16, v{b+1}"); p(f"v_cndmask_b32 v{b+4}, 0, v{b+4}, vcc")
    for i in (1,2,3,5,6,7): p(f"v_mov_b32 v{b+i}, 0")
    for i in range(8): p(f"v_mfma_f32_32x32x16_bf16 a[{VA+16*i}:{VA+16*i+15}], v[{b}:{b+3}], v[{b+4}:{b+7}], 0")

def tail_addr(p):
    p("s_mul_i32 s3, s6, 18432"); p(f"s_add_u32 s3, s3, {OP}")
    p("v_add_u32 v118, s3, v9")
    p("s_add_u32 s3, s3, 2048")
    p("v_lshl_add_u32 v119, v0, 2, s3")
    p("s_lshr_b32 s3, s6, 1"); p("s_lshl_b32 s7, s4, 1"); p("s_add_u32 s3, s3, s7"); p("s_lshl_b32 s3, s3, 5")
    p("s_lshl_b32 s7, s5, 2"); p("s_add_u32 s3, s3, s7")
    p("s_and_b32 s7, s6, 1"); p("s_lshl_b32 s7, s7, 1"); p("s_add_u32 s3, s3, s7")
    p("s_lshl_b32 s3, s3, 10"); p(f"s_add_u32 s63, s3, {L.OF}")
def tail_setup(p,sfx):
    tail_addr(p)
    if 'xcc' in OPT:
        p("s_waitcnt vmcnt(0)")
        xcc_check(p,sfx)
def attention(p):
    srd(p,24,P_WO,512*1024)
    p("s_lshl_b32 s75, s6, 17")
    srd(p,16,P_WG,512*2752)
    srd(p,20,P_WU,512*2752)
    p("s_lshr_b32 s78, s2, 3"); p("s_lshl_b32 s78, s78, 2"); p("s_add_u32 s78, s78, s6"); p("s_mul_i32 s78, s78, 6880"); p(f"s_add_u32 s78, s78, {192*2752}")
    p("v_lshlrev_b32 v50, 7, v0" if 'w128' in OPT else "v_lshlrev_b32 v50, 6, v0")
    if 'pt' in OPT:
        p("v_and_b32 v51, 15, v0"); p("v_lshlrev_b32 v51, 7, v51")
        p("s_lshr_b32 s3, s6, 1"); p("s_lshl_b32 s7, s4, 1"); p("s_add_u32 s3, s3, s7"); p("s_lshl_b32 s3, s3, 5")
        p("s_lshl_b32 s7, s5, 2"); p("s_add_u32 s3, s3, s7")
        p("s_and_b32 s7, s6, 1"); p("s_lshl_b32 s7, s7, 1"); p("s_add_u32 s3, s3, s7")
        p("s_lshl_b32 s3, s3, 10"); p(f"s_add_u32 s82, s3, {L.OF}")
        p("s_lshl_b32 s3, s61, 5"); p("s_lshl_b32 s7, s62, 1"); p("s_add_u32 s3, s3, s7"); p("s_lshl_b32 s3, s3, 10"); p(f"s_add_u32 s83, s3, {L.HF}")
        p("s_lshl_b32 s3, s61, 12"); p("s_lshl_b32 s7, s62, 8"); p("s_add_u32 s3, s3, s7"); p(f"s_add_u32 s84, s3, {L.HS}")
    p("s_lshl_b32 s31, s42, 1"); p(f"s_add_u32 s31, s31, {L.VF}")
    p(f"s_add_u32 s30, s42, {L.KF}")
    lane_params(p)
    p("s_and_b32 s3, s6, 1"); p("s_lshl_b32 s3, s3, 2")
    tr_base128(p,'v10',"s3",WO_L)
    p("s_and_b32 s3, s6, 1"); p("s_lshl_b32 s3, s3, 15")
    p("v_add_u32 v10, s3, v10")
    p("v_xor_b32 v1, 64, v10")
    p("v_lshlrev_b32 v11, 7, v0")
    if 'vones' not in OPT: v_ones(p,16)
    stamp(p,'B pre-S1',vt=200)
    for f in GOFN: f()
    p("s_cmp_lg_u32 s6, 0"); p("s_cbranch_scc1 B_s1skip")
    if 'go2' in OPT: p("v_and_b32 v62, 1, v0"); p("v_lshlrev_b32 v62, 6, v62"); p("v_add_u32 v62, 128, v62")
    else: p("v_mov_b32 v62, 128")
    poll(p,'s1',SRD_D,'0','v62',1,61,sleep=int(os.environ.get('S1SLEEP','1')))
    p.label("B_s1skip")
    p("s_waitcnt lgkmcnt(0)")
    p("s_barrier")
    stamp(p,'B S1 done',vt=200)
    vm=VM(p)
    p(f"s_mov_b32 s3, {L.KM}")
    vm.issue('KM',f"buffer_load_dword v61, v11, {SRD_WS}, s3 offen sc1")
    ldK(p,vm,0)
    p(f"ds_read_b128 v[{QB[0]}:{QB[0]+3}], v59")
    p(f"ds_read_b128 v[104:107], v60")
    ldK(p,vm,1); ldV(p,vm,0); ldK(p,vm,2); ldV(p,vm,1); ldK(p,vm,3); ldV(p,vm,2)
    p("s_waitcnt lgkmcnt(0)")
    p("v_max_u32 v60, v104, v105"); p("v_max3_u32 v60, v60, v106, v107")
    vm.wait('KM')
    for d in ("row_ror:8","row_ror:4","row_ror:2","row_ror:1"):
        p(f"v_max_u32_dpp v61, v61, v61 {d} row_mask:0xf bank_mask:0xf")
    p("v_readlane_b32 s3, v61, 0"); p("v_readlane_b32 s7, v61, 16"); p("s_max_u32 s3, s3, s7")
    p("v_readlane_b32 s7, v61, 32"); p("s_max_u32 s3, s3, s7")
    p("v_readlane_b32 s7, v61, 48"); p("s_max_u32 s65, s3, s7")
    p("v_mul_f32 v60, s65, v60")
    p(f"v_cmp_nge_f32 vcc, {hx(f2u(THRESH*THRESH/(1.02*1.02)))}, v60")
    p("s_cmp_lg_u64 vcc, 0")
    p("s_cbranch_scc1 L_slow")
    vm.wait(('K',0))
    p(QK(SB[0],0,QB[0],False))
    stamp(p,'B first',vt=200)
    import copy
    SLOW.append(vm)
    vm=copy.copy(vm); vm.pos=dict(vm.pos)
    ev0={}
    if 'wowarm2' in OPT:
        ev0[int(os.environ.get('WOT','13'))]=[(11,[('s',"s_lshr_b32 s85, s2, 3"),('s',"s_lshl_b32 s85, s85, 2"),('s',"s_add_u32 s85, s85, s6"),('s',"s_lshl_b32 s85, s85, 12"),
              ('m',('WOW',0),f"buffer_load_dword v49, v50, {SRD_O}, s85 offen ; nowaitcheck")])]
    att_pass(p,0,first=True,vm=vm,ev=ev0)
    vm.wait(('V',15,1))
    stamp(p,'B pass0',vt=200)
    if 'wo2' in OPT:
        DPOS=tuple(int(x) for x in os.environ.get('DPOS','13,13').split(',')); DT1=18//len(DPOS)
        THIN=0
        WOG=wo_dma_groups(vm)
        ev={}
        ev[0]=[(11,[('s',"s_lshr_b32 s85, s2, 3"),('s',"s_lshl_b32 s85, s85, 2"),('s',"s_add_u32 s85, s85, s6"),('s',"s_lshl_b32 s85, s85, 12"),
              ('m',('WOW',0),f"buffer_load_dword v49, v50, {SRD_O}, s85 offen ; nowaitcheck")])]
        if 'xcc' in OPT:
            class NV:
                def issue(s_,k,t): p(t)
            ev.setdefault(1,[]).append((4,lambda: xcc_publish(p,NV())))
        W1T=int(os.environ.get('W1T','10'))
        for n,(t,sr,off) in enumerate(((0,SRD_A,0),(1,SRD_B,0),(2,SRD_A,4096),(3,SRD_B,4096))):
            g=[('m',('WARM',n),f"buffer_load_dword v49, v50, {sr}, s78 offen ; nowaitcheck")]
            if n==2: g=[('s',"s_add_u32 s78, s78, 4096")]+g
            ev.setdefault(W1T+t,[]).append((11,g))
        spread(ev,w1_setup(),2,9,poss=(1,4,8,11,14,17))
        att_pass(p,1,vm=vm,ev=ev)
        ev={}
        W0=int(os.environ.get('WOD0','0')); spread(ev,WOG,W0,W0+DT1-1,poss=DPOS)
        att_pass(p,0,vm=vm,ev=ev)
    else:
        DPOS=tuple(int(x) for x in os.environ.get('DPOS','13,13').split(',')); DT1=18//len(DPOS)
        THIN=int(os.environ.get('THIN','0')); TPOS=int(os.environ.get('TPOS','4'))
        WOG=wo_dma_groups(vm)
        ev={}
        if THIN: spread(ev,WOG[:16],0,15,poss=(TPOS,))
        else:
            W0=int(os.environ.get('WOD0','7' if 'wowarm3' in OPT else '1')); spread(ev,WOG,W0,W0+DT1-1,poss=DPOS)
        if 'xcc' in OPT:
            class NV:
                def issue(s_,k,t): p(t)
            ev.setdefault(0,[]).append((4,lambda: xcc_publish(p,NV())))
        if 'wowarm3' in OPT:
            g=[('s',"s_lshr_b32 s85, s2, 3"),('s',"s_lshl_b32 s85, s85, 2"),('s',"s_add_u32 s85, s85, s6"),('s',"s_lshl_b32 s85, s85, 12")]
            if 'w128' in OPT: g.append(('s',"s_mov_b32 exec_hi, 0"))
            g.append(('m',('WOW',0),f"buffer_load_dword v49, v50, {SRD_O}, s85 offen ; nowaitcheck"))
            if 'w128' in OPT: g.append(('s',"s_mov_b64 exec, -1"))
            ev.setdefault(int(os.environ.get('WOT','0')),[]).append((11,g))
        att_pass(p,1,vm=vm,ev=ev)
        ev={}
        if 'warm' in OPT:
            for n,(t,sr,off) in enumerate(((0,SRD_A,0),(1,SRD_B,0),(2,SRD_A,4096),(3,SRD_B,4096))[:2 if 'w128' in OPT else 4]):
                g=[('m',('WARM',n),f"buffer_load_dword v49, v50, {sr}, s78 offen ; nowaitcheck")]
                if n==2: g=[('s',"s_add_u32 s78, s78, 4096")]+g
                ev.setdefault(t,[]).append((11,g))
        if THIN:
            for n,g in enumerate(WOG[16:]): ev.setdefault(4+n,[]).append((TPOS,g))
        spread(ev,w1_setup(),4,14 if 'w1mask' in OPT else 13,poss=(1,4,8,11,14,17))
        att_pass(p,0,vm=vm,ev=ev)
    ev={0:[(0,lambda: vm.wait(('XR',1))),(0,"s_barrier")]}
    spread(ev,wo_frag_reads(),0,12,poss=(1,4,8,11,14))
    att_pass(p,1,vm=vm,ev=ev)
    ev={0:[(0,"s_barrier")]}
    W1G=w1_dma(0)+w1_dma(1)+w1_dma(2)
    if THIN: spread(ev,W1G[:15],1,15,poss=(TPOS,))
    else: spread(ev,W1G,1,DT1,poss=DPOS)
    att_pass(p,0,vm=vm,ev=ev)
    ev={}
    if THIN:
        for n,g in enumerate(W1G[15:]): ev.setdefault((0,1,3)[n],[]).append((TPOS,g))
    if 'pt' in OPT:
        ev.setdefault(2,[]); ev[2]+=[(4,[('m',('PT',0),f"buffer_load_dword v49, v51, {SRD_WS}, s82 offen ; nowaitcheck")])]
        ev[6]=[(4,[('m',('PT',1),f"buffer_load_dword v49, v51, {SRD_WS}, s83 offen ; nowaitcheck")])]
        ev[10]=[(4,[('s',"s_mov_b64 exec, 3"),('m',('PT',2),f"buffer_load_dword v49, v51, {SRD_WS}, s84 offen ; nowaitcheck"),('s',"s_mov_b64 exec, -1")])]
    W1RP=os.environ.get('W1RP','5') if 'w1reg' in OPT else ''
    if W1RP=='5': spread(ev,w1_reg(),int(os.environ.get('W1R0','3')),int(os.environ.get('W1R0','3'))+11,poss=(13,))
    att_pass(p,1,vm=vm,ev=ev)
    ev={}
    if 'codepf2' in OPT:
        NL=int(os.environ.get('PF2_LINES','4'))
        def pf2():
            p("s_getpc_b64 s[84:85]")
            p.label("PF2_HERE")
            p("s_lshr_b32 s3, s2, 3"); p("s_lshl_b32 s3, s3, 2"); p("s_add_u32 s3, s3, s6"); p(f"s_mul_i32 s3, s3, {NL*64}")
            p(f"v_and_b32 v50, {NL-1}, v0"); p("v_lshlrev_b32 v50, 6, v50"); p("v_add_u32 v50, s3, v50")
            p("v_add_u32 v50, L_att_tail-PF2_HERE, v50")
            p("v_min_u32 v50, END_K-PF2_HERE-4, v50")
            p(f"s_mov_b64 exec, {(1<<NL)-1}")
            vm.issue(('PF2',0),"global_load_dword v49, v50, s[84:85] ; nowaitcheck")
            p("s_mov_b64 exec, -1")
        ev[PF2_T]=[(4,pf2)]
    if 'wdatt' in OPT:
        g=[('s',f"s_mov_b32 s24, s{P_WD}"),('s',f"s_mov_b32 s25, s{P_WD+1}"),('s',f"s_mov_b32 s26, {hx(1376*1024)}"),
           ('s',"s_lshr_b32 s79, s2, 3"),('s',"s_lshl_b32 s79, s79, 2"),('s',"s_add_u32 s79, s79, s6"),('s',"s_mul_i32 s79, s79, 11008"),('s',f"v_lshlrev_b32 v51, {7 if 'w128' in OPT else 6}, v0")]
        ev.setdefault(0,[]).append((4,g))
        WDT=int(os.environ.get('WDT','1'))
        for n in range(0 if 'x_nowd' in OPT else (2 if 'w128' in OPT else 3)):
            g=[('m',('WDW',n),f"buffer_load_dword v49, v51, {SRD_O}, s79 offen ; nowaitcheck")]
            if 'w128' in OPT:
                if n==0: g.append(('s',"s_add_u32 s79, s79, 8192"))
                else: g=[('s',"s_mov_b64 exec, 0x3fffff")]+g+[('s',"s_mov_b64 exec, -1")]
            elif n<2: g.append(('s',"s_add_u32 s79, s79, 4096"))
            ev.setdefault(WDT+2*n,[]).append((11,g))
    if 'xcc' in OPT: ev.setdefault(12,[]).append((4,lambda: xcc_load(p,vm)))
    att_pass(p,0,vm=vm,ev=ev)
    ev={}
    if W1RP=='7': spread(ev,w1_reg(),int(os.environ.get('W1R0','0')),int(os.environ.get('W1R0','0'))+11,poss=(13,))
    att_pass(p,1,vm=vm,ev=ev)
    p.label("L_att_tail")
    p(PV(OB[1],VA+8*15+4,SB[1]+8))
    G1='glue1' in OPT
    if G1: tail_setup(p,'M')
    slot_write(p,OB[1])
    p.label("L_att_done")
    stamp(p,'B loop done',vt=14)
    if not G1: tail_addr(p)
    p("s_waitcnt vmcnt(0) lgkmcnt(0)")
    p("s_barrier")
    if 'xcc' in OPT and not G1: xcc_check(p)
    if 'pnorm' in OPT:
        p("s_lshl_b32 s3, s61, 12"); p("s_lshl_b32 s7, s62, 8"); p("s_add_u32 s3, s3, s7"); p(f"s_add_u32 s3, s3, {L.HS}")
        p("v_mov_b32 v122, -1"); p("v_mov_b32 v123, -1"); p("v_lshlrev_b32 v124, 3, v0")
        p("s_mov_b32 exec_hi, 0")
        hstore(p,f"buffer_store_dwordx2 v[122:123], v124, {SRD_WS}, s3 offen")
        p("s_mov_b64 exec, -1")
    def rds(jj):
        for ww in range(4):
            b=16+(jj*4+ww)*8; off=jj*9216+ww*2304
            p(f"ds_read_b128 v[{b}:{b+3}], v118 offset:{off}")
            p(f"ds_read_b128 v[{b+4}:{b+7}], v118 offset:{off+1024}")
            p(f"ds_read_b32 v{80+jj*4+ww}, v119 offset:{off}")
    rds(0)
    for jj in range(2):
        b=16+jj*32; sb=80+jj*4; O=96+10*jj
        if jj==0:
            p("s_waitcnt lgkmcnt(6)")
            for j in range(4): p(f"v_pk_add_f32 v[{b+2*j}:{b+2*j+1}], v[{b+2*j}:{b+2*j+1}], v[{b+8+2*j}:{b+8+2*j+1}]")
            p(f"v_add_f32 v{sb}, v{sb}, v{sb+1}")
            rds(1)
            p("s_waitcnt lgkmcnt(12)")
        else:
            p("s_waitcnt lgkmcnt(6)")
            for j in range(4): p(f"v_pk_add_f32 v[{b+2*j}:{b+2*j+1}], v[{b+2*j}:{b+2*j+1}], v[{b+8+2*j}:{b+8+2*j+1}]")
            p(f"v_add_f32 v{sb}, v{sb}, v{sb+1}")
            p("s_waitcnt lgkmcnt(0)")
        for j in range(4):
            p(f"v_pk_add_f32 v[{b+16+2*j}:{b+16+2*j+1}], v[{b+16+2*j}:{b+16+2*j+1}], v[{b+24+2*j}:{b+24+2*j+1}]")
        p(f"v_add_f32 v{sb+2}, v{sb+2}, v{sb+3}")
        for j in range(4):
            p(f"v_pk_add_f32 v[{O+2*j}:{O+2*j+1}], v[{b+2*j}:{b+2*j+1}], v[{b+16+2*j}:{b+16+2*j+1}]")
        p(f"v_add_f32 v{O+8}, v{sb}, v{sb+2}")
        o_store(p,O,jj)

SLOW=[]
def attention_slow(p):
    vm=SLOW[0]
    p.label("L_slow")
    if 'xcc' in OPT: xcc_publish(p,vm)
    for j in range(4,16): ldK(p,vm,j)
    for j in range(3,16): ldV(p,vm,j)
    for g in wo_dma_groups(vm): emit_group(p,vm,g)
    p("s_waitcnt vmcnt(0)")
    p("s_barrier")
    for x in wo_frag_reads(): p(x)
    for x in w1_setup():
        if isinstance(x,list): emit_group(p,vm,x)
        else: p(x)
    p("s_waitcnt lgkmcnt(0)")
    p("s_barrier")
    for g in w1_dma(0)+w1_dma(1)+w1_dma(2): emit_group(p,vm,g)
    if 'w1reg' in OPT:
        for g in w1_reg(): emit_group(p,vm,g)
    p("s_mov_b32 s64, 0")
    p.label("L_mx")
    p("s_lshl_b32 s3, s64, 10")
    p("v_add_u32 v120, s3, v59")
    p(f"ds_read_b128 v[{QB[1]}:{QB[1]+3}], v120")
    p("v_mov_b32 v121, 0xff800000")
    p("s_waitcnt lgkmcnt(0)")
    p(QK(SB[0],0,QB[1],False))
    for t in range(16):
        S=SB[t%2]; Sn=SB[(t+1)%2]
        if t<15: p(QK(Sn,t+1,QB[1],False))
        for j in range(8): p(f"v_max3_f32 v121, v{S+2*j}, v{S+2*j+1}, v121")
    p("v_mov_b32 v122, v121")
    p("v_permlane32_swap_b32 v121, v122")
    p("v_max_f32 v121, v121, v122")
    p("s_lshl_b32 s3, s64, 9"); p("s_lshl_b32 s7, s6, 7"); p("s_add_u32 s3, s3, s7")
    p("v_and_b32 v122, 31, v0")
    p("v_lshl_add_u32 v122, v122, 2, s3")
    p(f"v_add_u32 v122, {MX}, v122")
    p(f"ds_write_b32 v122, v121")
    p("s_add_u32 s64, s64, 1"); p("s_cmp_lt_u32 s64, 8"); p("s_cbranch_scc1 L_mx")
    p("s_waitcnt lgkmcnt(0)")
    p("s_barrier")
    p("v_and_b32 v122, 31, v0"); p("v_lshlrev_b32 v122, 2, v122")
    p("s_lshl_b32 s3, s6, 10"); p(f"s_add_u32 s3, s3, {MX}"); p("v_add_u32 v122, s3, v122")
    for qq in range(2):
        for ww in range(4): p(f"ds_read_b32 v{16+4*qq+ww}, v122 offset:{qq*512+ww*128}")
    p("s_waitcnt lgkmcnt(0)")
    p("s_lshl_b32 s3, s6, 9"); p(f"s_add_u32 s3, s3, {MF}")
    p("v_lshl_add_u32 v122, v0, 2, s3")
    for qq in range(2):
        b=16+4*qq
        p(f"v_max3_f32 v{b}, v{b}, v{b+1}, v{b+2}"); p(f"v_max_f32 v{b}, v{b}, v{b+3}"); p(f"v_sub_f32 v{b}, 0, v{b}")
        p(f"ds_write_b32 v122, v{b} offset:{qq*256}")
    p("s_waitcnt lgkmcnt(0)")
    p("s_barrier")
    p(f"v_lshlrev_b32 v120, 2, v0"); p(f"v_add_u32 v120, {MF}, v120")
    p(f"ds_read_b32 v121, v120")
    p("v_add_u32 v120, 256, v120")
    p("s_waitcnt lgkmcnt(0)")
    for j in range(16): p(f"v_mov_b32 v{CB+j}, v121")
    p(QK(SB[0],0,QB[0],True))
    att_pass_slow(p)
    if 'xcc' in OPT: xcc_load(p,vm)
    if 'glue1' in OPT: tail_setup(p,'S')
    p("s_branch L_att_done")

def att_pass_slow(p):
    att_pass(p,0,first=True,slow=True,vm=None)
    p("s_mov_b32 s64, 4")
    p("s_branch L_sttY")
    p.label("L_sttX")
    att_pass(p,0,slow=True)
    p.label("L_sttY")
    att_pass(p,1,slow=True)
    p("s_sub_u32 s64, s64, 1")
    p("s_cmp_lg_u32 s64, 0")
    p("s_cbranch_scc1 L_sttX")
    p(PV(OB[1],VA+8*15+4,SB[1]+8))
    slot_write(p,OB[1])

def w1_setup():
    F=[]; p=F.append
    p("s_and_b32 s3, s4, 1"); p("s_lshl_b32 s3, s3, 3"); p("s_add_u32 s3, s3, s5")
    p("s_min_u32 s7, s3, 11"); p("s_lshl_b32 s7, s7, 1"); p("s_lshl_b32 s66, s3, 2"); p("s_add_u32 s66, s66, s7")
    p("s_cmp_lt_u32 s3, 11"); F[-1]=[('s',"s_cmp_lt_u32 s3, 11"),('s',"s_cselect_b32 s67, 6, 4")]
    MK='w1mask' in OPT
    if MK:
        p("s_lshl_b32 s7, s67, 1"); p("v_mov_b32 v15, 0x40000000")
    for i in range(3):
        p(f"v_add_u32 v11, {64*i}, v0")
        p("v_mul_u32_u24 v12, 5462, v11"); p("v_lshrrev_b32 v12, 16, v12")
        p("v_mul_u32_u24 v13, 12, v12"); p("v_sub_u32 v13, v11, v13")
        p("v_mul_u32_u24 v12, 2752, v12")
        if i: p(f"v_subrev_u32 v12, {1024*i}, v12")
        p(f"v_lshl_add_u32 v{2+i}, v13, 4, v12")
        if MK: p("v_cmp_le_u32 vcc, s7, v13"); p(f"v_cndmask_b32 v{2+i}, v{2+i}, v15, vcc")
        p("v_add_u32 v13, 10, v13"); p("v_subrev_u32 v14, 12, v13"); p("v_min_u32 v13, v13, v14")
        p(f"v_lshl_add_u32 v{5+i}, v13, 4, v12")
        if MK: p("v_cmp_le_u32 vcc, s7, v13"); p(f"v_cndmask_b32 v{5+i}, v{5+i}, v15, vcc")
    p(f"s_mul_i32 s68, s6, {16*2752}"); p("s_lshl_b32 s3, s66, 5"); p("s_add_u32 s68, s68, s3")
    p("s_mul_i32 s69, s6, 3072")
    return F
assert all((c*5462)>>16==c//12 for c in range(192))

def w1_dma(q):
    slot=q%6
    out=[]
    for mat in range(2):
        for i in range(3):
            g=[]
            if i==0 or ('w1wait' in OPT and q>=3): g.append(('s',f"s_add_u32 m0, s69, {slot*SLOT+mat*12288}"))
            if i==0 and mat==0: g.append(('s',f"s_add_u32 s71, s68, {q*64*2752}"))
            nt=' nt' if (('ntw1e' in OPT and q<3) or ('ntw1l' in OPT and q>=3)) else ''
            g.append(('m',('W1',q,3*mat+i),f"buffer_load_dwordx4 v{2+3*mat+i}, {SRD_A if mat==0 else SRD_B}, s71 offen offset:{i*1024}{nt} lds"))
            out.append(g)
    return out

W1R=200
def w1_reg(vmkey='W1R'):
    out=[]; n=0
    for q in (3,4):
        for mat in range(2):
            for i in range(3):
                g=[]
                if i==0 and mat==0: g.append(('s',f"s_add_u32 s71, s68, {q*64*2752}"))
                g.append(('m',(vmkey,n),f"buffer_load_dwordx4 a[{W1R+4*n}:{W1R+4*n+3}], v{2+3*mat+i}, {SRD_A if mat==0 else SRD_B}, s71 offen offset:{i*1024}"))
                out.append(g); n+=1
    return out
def w1_reg_write(p):
    p(f"s_add_u32 s3, s69, {3*SLOT}"); p("v_add_u32 v13, s3, v9")
    n=0
    for q in (3,4):
        for mat in range(2):
            for i in range(3):
                p(f"ds_write_b128 v13, a[{W1R+4*n}:{W1R+4*n+3}] offset:{(q-3)*SLOT+mat*12288+i*1024}"); n+=1

WOA=128
def wo_frag_reads():
    out=[]
    for i in range(16):
        for cc,va in enumerate(('v10','v1')):
            b=WOA+8*i+4*cc
            out.append(f"ds_read_b64_tr_b16 v[{b}:{b+1}], {va} offset:{i*2048}")
            out.append(f"ds_read_b64_tr_b16 v[{b+2}:{b+3}], {va} offset:{i*2048+512}")
    return out

def wo_phase(p):
    if 'glue2' in OPT:
        flag_off(p,F2); p("s_waitcnt vmcnt(0)"); set_flag(p,'s3',12)
    else:
        p("s_waitcnt vmcnt(0)")
        flag_off(p,F2); set_flag(p,'s3',12)
    stamp(p,'C flag set',vt=14)
    p("s_barrier")
    WW=os.environ.get('WW','3,4,5').split(',') if 'w1wait' in OPT else []
    class NV2:
        def issue(s_,k,t): p(t)
    def wdma(q):
        for g in w1_dma(q): emit_group(p,NV2(),g)
    if '3' in WW: wdma(3)
    p("v_and_b32 v12, 31, v0"); p("v_lshlrev_b32 v12, 2, v12")
    p("s_lshl_b32 s30, s4, 7"); p(f"s_add_u32 s30, s30, {F2}")
    p("s_lshl_b32 s31, s61, 5"); p("s_and_b32 s3, s6, 1"); p("s_lshl_b32 s3, s3, 4"); p("s_add_u32 s31, s31, s3")
    p("s_lshl_b32 s31, s31, 10"); p(f"s_add_u32 s31, s31, {L.OF}")
    poll(p,'s2',SRD_WS,'s30','v12',1,13)
    stamp(p,'C S2 done',vt=14)
    vm=VM(p)
    WOLA=int(os.environ.get('WOLA','8'))
    def ldO(i):
        if i%4==0 and i: p(f"s_add_u32 s31, s31, 4096")
        vm.issue(i,f"buffer_load_dwordx4 a[{4*i}:{4*i+3}], v9, {SRD_WS}, s31 offen offset:{(i%4)*1024}{HL1}")
    for i in range(WOLA): ldO(i)
    ACC=[64,80]
    if 'w1reg' in OPT: w1_reg_write(p)
    dm=[] if 'w1late' in OPT else w1_dma(3)+w1_dma(4)+w1_dma(5)
    for j in range(8): p(f"v_accvgpr_read_b32 v{112+j}, a{192+j}")
    RC='rescin' in OPT
    if RC:
        for j in range(8):
            p(f"v_lshlrev_b32 v{64+2*j}, 16, v{112+j}")
            p(f"v_and_b32 v{65+2*j}, 0xffff0000, v{112+j}")
    for i in range(16):
        vm.wait(i)
        for cc in ((1,0) if 'last10' in OPT else (0,1)):
            a=ACC[cc]; b=WOA+8*i+4*cc
            p(f"v_mfma_f32_32x32x16_bf16 v[{a}:{a+15}], v[{b}:{b+3}], a[{4*i}:{4*i+3}], {'0' if (i==0 and not (RC and cc==0)) else f'v[{a}:{a+15}]'}")
            if i+WOLA<16 and cc==(1 if 'last10' in OPT else 0): ldO(i+WOLA)
            if dm and (cc==0 or i<2): emit_group(p,vm,dm.pop(0))
    assert not dm
    for j in range(8):
        if RC: break
        p(f"v_lshlrev_b32 v{96+2*j}, 16, v{112+j}")
        p(f"v_and_b32 v{97+2*j}, 0xffff0000, v{112+j}")
    stamp(p,'C mfma',vt=14)
    if '4' in WW: wdma(4)
    if 'glue2' in OPT:
        p("s_lshl_b32 s71, s61, 5"); p("s_lshl_b32 s7, s62, 1"); p("s_add_u32 s71, s71, s7"); p("s_lshl_b32 s71, s71, 10"); p(f"s_add_u32 s71, s71, {L.HF}")
    pair_reduce(p,ACC,RED)
    for j in range(0 if RC else 8): p(f"v_pk_add_f32 v[{64+2*j}:{65+2*j}], v[{64+2*j}:{65+2*j}], v[{96+2*j}:{97+2*j}]")
    if 'pnorm' in OPT:
        wo_tail_pnorm(p); return
    for j in range(8): p(f"v_cvt_pk_bf16_f32 v{32+j}, v{64+2*j}, v{65+2*j}")
    hb='s3'
    if 'glue2' in OPT: hb='s71'
    else: p("s_lshl_b32 s3, s61, 5"); p("s_lshl_b32 s7, s62, 1"); p("s_add_u32 s3, s3, s7"); p("s_lshl_b32 s3, s3, 10"); p(f"s_add_u32 s3, s3, {L.HF}")
    hstore(p,[f"buffer_store_dwordx4 v[32:35], v9, {SRD_WS}, {hb} offen",
              f"buffer_store_dwordx4 v[36:39], v9, {SRD_WS}, {hb} offen offset:1024"])
    p("v_pk_mul_f32 v[42:43], v[64:65], v[64:65]"); p("v_pk_add_f32 v[40:41], v[64:65], v[66:67]")
    p("v_pk_fma_f32 v[42:43], v[66:67], v[66:67], v[42:43]")
    for j in range(2,8):
        p(f"v_pk_add_f32 v[40:41], v[40:41], v[{64+2*j}:{65+2*j}]"); p(f"v_pk_fma_f32 v[42:43], v[{64+2*j}:{65+2*j}], v[{64+2*j}:{65+2*j}], v[42:43]")
    p("v_add_f32 v40, v40, v41"); p("v_add_f32 v41, v42, v43")
    p("v_mov_b32 v42, v40"); p("v_mov_b32 v43, v41")
    p("v_permlane32_swap_b32 v40, v42"); p("v_permlane32_swap_b32 v41, v43")
    p("v_add_f32 v40, v40, v42"); p("v_add_f32 v41, v41, v43")
    p("s_lshl_b32 s3, s61, 12"); p("s_lshl_b32 s7, s62, 8"); p("s_add_u32 s3, s3, s7"); p(f"s_add_u32 s3, s3, {L.HS}")
    p("v_lshlrev_b32 v12, 3, v0")
    if 'hsflag' in OPT:
        for j in range(8): p(f"v_accvgpr_write_b32 a{248+j}, v{32+j}")
        p("s_waitcnt vmcnt(0)")
        p("s_mov_b32 exec_hi, 0")
        hstore(p,f"buffer_store_dwordx2 v[40:41], v12, {SRD_WS}, s3 offen")
        p("s_mov_b64 exec, -1")
        stamp(p,'C done',vt=14)
        return
    p("s_mov_b32 exec_hi, 0")
    hstore(p,f"buffer_store_dwordx2 v[40:41], v12, {SRD_WS}, s3 offen")
    p("s_mov_b64 exec, -1")
    for j in range(8): p(f"v_accvgpr_write_b32 a{248+j}, v{32+j}")
    flag_off(p,F3)
    p("s_waitcnt vmcnt(0)")
    set_flag(p,'s3',12)
    stamp(p,'C done',vt=14)

def ln_stats(p,b):
    for i in range(2):
        p(f"v_pk_add_f32 v[{b+4*i}:{b+1+4*i}], v[{b+4*i}:{b+1+4*i}], v[{b+2+4*i}:{b+3+4*i}]")
        p(f"v_pk_add_f32 v[{b+8+4*i}:{b+9+4*i}], v[{b+8+4*i}:{b+9+4*i}], v[{b+10+4*i}:{b+11+4*i}]")
    p(f"v_pk_add_f32 v[{b}:{b+1}], v[{b}:{b+1}], v[{b+4}:{b+5}]"); p(f"v_pk_add_f32 v[{b+8}:{b+9}], v[{b+8}:{b+9}], v[{b+12}:{b+13}]")
    p(f"v_pk_add_f32 v[16:17], v[{b}:{b+1}], v[{b+8}:{b+9}]")
    p("v_mov_b32 v18, v16"); p("v_mov_b32 v19, v17")
    p("v_permlane32_swap_b32 v16, v18"); p("v_permlane32_swap_b32 v17, v19")
    p("v_add_f32 v16, v16, v18"); p("v_add_f32 v17, v17, v19")
    p(f"v_mul_f32 v16, {hx(f2u(1/512))}, v16"); p(f"v_mul_f32 v17, {hx(f2u(1/512))}, v17")
    p("v_fma_f32 v17, -v16, v16, v17"); p("v_max_f32 v17, 0, v17"); p(f"v_add_f32 v17, {hx(f2u(1e-5))}, v17")
    p("v_rsq_f32 v17, v17"); p("v_mul_f32 v16, v16, v17"); p("v_sub_f32 v18, 0, v16"); p("v_mov_b32 v19, v18"); p("v_mov_b32 v16, v17")

def wo_tail_pnorm(p):
    p("v_pk_mul_f32 v[42:43], v[64:65], v[64:65]"); p("v_pk_add_f32 v[40:41], v[64:65], v[66:67]")
    p("v_pk_fma_f32 v[42:43], v[66:67], v[66:67], v[42:43]")
    for j in range(2,8):
        p(f"v_pk_add_f32 v[40:41], v[40:41], v[{64+2*j}:{65+2*j}]"); p(f"v_pk_fma_f32 v[42:43], v[{64+2*j}:{65+2*j}], v[{64+2*j}:{65+2*j}], v[42:43]")
    p("v_add_f32 v40, v40, v41"); p("v_add_f32 v41, v42, v43")
    p("v_mov_b32 v42, v40"); p("v_mov_b32 v43, v41")
    p("v_permlane32_swap_b32 v40, v42"); p("v_permlane32_swap_b32 v41, v43")
    p("s_lshl_b32 s31, s61, 12"); p(f"s_add_u32 s31, s31, {L.HS}"); p("s_lshl_b32 s7, s62, 8"); p("s_add_u32 s3, s31, s7")
    p("v_add_f32 v40, v40, v42"); p("v_add_f32 v41, v41, v43")
    p("v_lshlrev_b32 v12, 3, v0")
    p("s_mov_b32 exec_hi, 0")
    hstore(p,f"buffer_store_dwordx2 v[40:41], v12, {SRD_WS}, s3 offen")
    p("s_mov_b64 exec, -1")
    p("v_and_b32 v12, 31, v0"); p("v_lshlrev_b32 v12, 3, v12"); p("v_lshrrev_b32 v13, 5, v0"); p("v_lshl_add_u32 v30, v13, 11, v12")
    def lds_():
        for i in range(8): p(f"buffer_load_dwordx2 v[{96+2*i}:{97+2*i}], v30, {SRD_WS}, s31 offen offset:{i*256} sc1")
    lds_()
    for j in range(8): p(f"v_cvt_pk_bf16_f32 v{32+j}, v{64+2*j}, v{65+2*j}")
    for j in range(8): p(f"v_accvgpr_write_b32 a{248+j}, v{32+j}")
    p("s_lshl_b32 s3, s61, 5"); p("s_lshl_b32 s7, s62, 1"); p("s_add_u32 s3, s3, s7"); p("s_lshl_b32 s3, s3, 10"); p(f"s_add_u32 s30, s3, {L.HF}")
    p(f"s_mov_b32 s29, {SPIN}")
    p.label("POLL_hs")
    p("s_waitcnt vmcnt(0)")
    p("v_max3_u32 v112, v97, v99, v101"); p("v_max3_u32 v113, v103, v105, v107"); p("v_max3_u32 v112, v112, v109, v111"); p("v_max_u32 v112, v112, v113")
    p("v_cmp_eq_u32 vcc, -1, v112")
    p("s_cmp_eq_u64 vcc, 0"); p("s_cbranch_scc1 POLLD_hs")
    p("s_sub_u32 s29, s29, 1"); p("s_cmp_eq_u32 s29, 0"); p("s_cbranch_scc1 POLLD_hs")
    lds_()
    p("s_branch POLL_hs")
    p.label("POLLD_hs")
    stamp(p,'C stats',vt=12)
    ln_stats(p,96)
    for j in range(8): p(f"v_pk_fma_f32 v[{64+2*j}:{65+2*j}], v[{64+2*j}:{65+2*j}], v[16:17], v[18:19]")
    for j in range(8): p(f"v_cvt_pk_bf16_f32 v{32+j}, v{64+2*j}, v{65+2*j}")
    hstore(p,[f"buffer_store_dwordx4 v[32:35], v9, {SRD_WS}, s30 offen",
              f"buffer_store_dwordx4 v[36:39], v9, {SRD_WS}, s30 offen offset:1024"])
    flag_off(p,F3)
    p("s_waitcnt vmcnt(0)")
    set_flag(p,'s3',12)
    stamp(p,'C done',vt=14)
    if 'w1wait' in OPT and '5' in os.environ.get('WW','3,4,5').split(','):
        class NV2:
            def issue(s_,k,t): p(t)
        for g in w1_dma(5): emit_group(p,NV2(),g)

def flag_off(p,F):
    p("s_lshl_b32 s3, s4, 7"); p("s_lshl_b32 s7, s5, 4"); p("s_add_u32 s3, s3, s7"); p("s_lshl_b32 s7, s6, 2"); p("s_add_u32 s3, s3, s7")
    p(f"s_add_u32 s3, s3, {F}")

def pair_reduce(p,ACC,base):
    p(f"s_lshl_b32 s3, s6, 12"); p(f"s_add_u32 s3, s3, {base}")
    p("v_add_u32 v12, s3, v9")
    for q in range(4): p(f"ds_write_b128 v12, v[{ACC[1]+4*q}:{ACC[1]+4*q+3}] offset:{q*1024}")
    p("v_xor_b32 v12, 4096, v12")
    p("s_waitcnt lgkmcnt(0)")
    p("s_barrier")
    for q in range(4): p(f"ds_read_b128 v[{ACC[1]+4*q}:{ACC[1]+4*q+3}], v12 offset:{q*1024}")
    for q in range(4):
        p(f"s_waitcnt lgkmcnt({3-q})")
        for j in range(2):
            a=ACC[0]+4*q+2*j; b=ACC[1]+4*q+2*j
            p(f"v_pk_add_f32 v[{a}:{a+1}], v[{a}:{a+1}], v[{b}:{b+1}]")

def ffn1_phase(p):
    p("s_lshr_b32 s70, s4, 1"); p("s_lshl_b32 s70, s70, 2"); p("s_add_u32 s70, s70, s6")
    if 'wdpf' in OPT:
        p("v_lshrrev_b32 v1, 3, v0"); p("v_and_b32 v10, 7, v0")
        w128_voff(p,'v1')
        p("s_lshl_b32 s74, s6, 12"); p("s_lshl_b32 s77, s6, 15")
        p("s_lshr_b32 s3, s6, 1"); p(f"s_mul_i32 s75, s3, {43*16*1024}")
    lane_params(p)
    p("v_mul_u32_u24 v10, 192, v14"); p("v_add_u32 v10, v10, v96")
    p(f"v_mul_u32_u24 v97, {12288+32}, v15"); p("v_add_u32 v28, v10, v97")
    p(f"v_mul_u32_u24 v97, {12288+32-192}, v15"); p("v_add_u32 v29, v10, v97")
    p("v_and_b32 v12, 31, v0"); p("v_lshlrev_b32 v12, 3, v12"); p("v_lshrrev_b32 v13, 5, v0"); p("v_lshl_add_u32 v30, v13, 11, v12")
    p("v_lshlrev_b32 v12, 2, v0")
    p("s_lshr_b32 s30, s4, 1"); p("s_lshl_b32 s30, s30, 8"); p(f"s_add_u32 s30, s30, {F3}")
    HSF='hsflag' in OPT
    G2='glue2' in OPT and HSF
    def pre_b():
        srd(p,24,P_WD,1376*1024)
        p("s_lshr_b32 s79, s2, 3"); p("s_lshl_b32 s79, s79, 2"); p("s_add_u32 s79, s79, s6"); p("s_mul_i32 s79, s79, 11008")
        p("v_lshlrev_b32 v14, 6, v0")
        p("s_lshl_b32 s30, s70, 15"); p(f"s_add_u32 s30, s30, {L.HF}")
    if G2: pre_b()
    if HSF:
        p("s_lshl_b32 s31, s70, 12"); p(f"s_add_u32 s31, s31, {L.HS}")
        p(f"s_mov_b32 s29, {SPIN}")
        p.label("POLL_hs3")
        for i in range(8): p(f"buffer_load_dwordx2 v[{32+2*i}:{33+2*i}], v30, {SRD_WS}, s31 offen offset:{i*256} sc1")
        p("s_waitcnt vmcnt(0)")
        p("v_max3_u32 v48, v33, v35, v37"); p("v_max3_u32 v49, v39, v41, v43"); p("v_max3_u32 v48, v48, v45, v47"); p("v_max_u32 v48, v48, v49")
        p("v_cmp_eq_u32 vcc, -1, v48")
        p("s_cmp_eq_u64 vcc, 0"); p("s_cbranch_scc1 POLLD_hs3")
        p("s_sub_u32 s29, s29, 1"); p("s_cmp_lg_u32 s29, 0"); p("s_cbranch_scc1 POLL_hs3")
        p.label("POLLD_hs3")
    else: poll(p,'s3',SRD_WS,'s30','v12',1,13)
    stamp(p,'D S3 done',vt=12)
    if not G2: pre_b()
    vm=VM(p)
    def ldB(s):
        p(f"s_add_u32 s3, s30, {s*1024}")
        vm.issue(('B',s),f"buffer_load_dwordx4 v[{128+4*s}:{131+4*s}], v9, {SRD_WS}, s3 offen{HL1}")
    if not G2: p("s_lshl_b32 s31, s70, 12"); p(f"s_add_u32 s31, s31, {L.HS}")
    PN='pnorm' in OPT
    ldB(0)
    if not PN and not HSF:
        for i in range(8): vm.issue(('S',i),f"buffer_load_dwordx2 v[{32+2*i}:{33+2*i}], v30, {SRD_WS}, s31 offen offset:{i*256}{HL1}")
    LA=int(os.environ.get('LA1','8'))
    LA10=min(LA,int(os.environ.get('LA10',str(LA))))
    for s in range(1,LA10): ldB(s)
    NEW='w1late' in OPT
    if not NEW: p("s_barrier")
    AB=[0,24]
    def rdA(s):
        q,ss=divmod(s,4); b=AB[s%2]; out=[]
        for uu in range(6):
            va='v10' if uu<5 else 'v11'
            off=ss*3072+uu*32
            out.append(f"ds_read_b64_tr_b16 a[{b+4*uu}:{b+4*uu+1}], {va} offset:{off}")
            out.append(f"ds_read_b64_tr_b16 a[{b+4*uu+2}:{b+4*uu+3}], {va} offset:{off+768}")
        return out
    def setbase(q):
        slot=q%6
        return [f"v_add_u32 v10, {slot*SLOT}, v28", f"v_add_u32 v11, {slot*SLOT}, v29"]
    for x in setbase(0): p(x)
    for x in rdA(0): p(x)
    if not PN:
        if not HSF: vm.wait(('S',7))
        ln_stats(p,32)
    def norm(s):
        out=[]
        if PN: return out
        if 'pknorm' in OPT:
            for i in range(4):
                r=128+4*s+i; t0=20+2*i; t1=21+2*i
                out.append(f"v_lshlrev_b32 v{t0}, 16, v{r}"); out.append(f"v_and_b32 v{t1}, 0xffff0000, v{r}")
            for i in range(4):
                t0=20+2*i
                out.append(f"v_pk_fma_f32 v[{t0}:{t0+1}], v[{t0}:{t0+1}], v[16:17], v[18:19]")
            for i in range(4):
                r=128+4*s+i; t0=20+2*i; t1=21+2*i
                out.append(f"v_cvt_pk_bf16_f32 v{r}, v{t0}, v{t1}")
            return out
        for h2 in range(2):
            for i in (2*h2,2*h2+1):
                r=128+4*s+i; t0=20+2*i; t1=21+2*i
                out.append(f"v_lshlrev_b32 v{t0}, 16, v{r}"); out.append(f"v_and_b32 v{t1}, 0xffff0000, v{r}")
            for i in (2*h2,2*h2+1):
                t0=20+2*i; t1=21+2*i
                out.append(f"v_fma_f32 v{t0}, v{t0}, v16, v18"); out.append(f"v_fma_f32 v{t1}, v{t1}, v16, v18")
            for i in (2*h2,2*h2+1):
                r=128+4*s+i; t0=20+2*i; t1=21+2*i
                out.append(f"v_cvt_pk_bf16_f32 v{r}, v{t0}, v{t1}")
        return out
    vm.wait(('B',0))
    for x in norm(0): p(x)
    stamp(p,'D start',vt=12)
    ACC=[32+16*u for u in range(6)]
    dmas=w1_dma(6)+w1_dma(7)
    DS={}; BAR={}
    def wd_group(g0,vb=4):
        out=[]
        for j in range(4):
            g=[]
            if j==0 or 'w1wait' in OPT: g.append(('s',f"s_add_u32 m0, s74, {g0*4096}"))
            if j==0:
                g.append(('s',f"s_add_u32 s76, s77, {(g0//20)*43*16*1024+(g0%20)*32768}"))
            g.append(('m',('WD',g0,j),f"buffer_load_dwordx4 v{vb+j}, {SRD_O}, s76 offen offset:{j*1024}{' nt' if 'ntwd' in OPT else ''} lds"))
            out.append(g)
        return out
    WDPF='wdpf' in OPT
    if NEW:
        def put(items,s0,per):
            for n,g in enumerate(items): DS.setdefault(s0+n//per,[]).append(g)
        SWS=15
        if 'w1wait' in OPT:
            assert WDPF and PN
            WW=os.environ.get('WW','3,4,5').split(',')
            late=[q for q in (3,4,5) if str(q) not in WW]
            put(sum((w1_dma(q) for q in late),[]),0,2)
            put(w1_dma(6),8,1); put(w1_dma(7),14,1)
            BAR={8:[('W1',q,5) for q in late],20:[('W1',6,5)]}
            SWS=19
            p("v_mov_b32 v20, v1")
            for j in range(1,4): p(f"v_add_u32 v{20+j}, {7168*j}, v1")
            put(wd_group(36,20),int(os.environ.get('RA0','2')),1)
        elif 'w1reg' in OPT:
            put(w1_dma(5),int(os.environ.get('W5S','0')),int(os.environ.get('W5P','2'))); put(dmas,9,2)
            BAR={8:[],14:[('W1',5,5)],20:[('W1',7,5)]}
        else:
            put(w1_dma(3),0,2); put(w1_dma(4)+w1_dma(5),3,2); put(dmas,9,2)
            BAR={8:[('W1',3,5)],14:[('W1',5,5)],20:[('W1',7,5)]}
        if WDPF:
            if 'w1wait' not in OPT: put(wd_group(36),16,1)
            put(sum((wd_group(g) for g in (12,16,20,24)),[]),20,2)
            put(sum((wd_group(g) for g in (28,32)),[]),28,2)
            BAR[24]=[('W1',7,5)] if 'w1wait' in OPT else []
    if 'x_nods' in OPT:
        DS={}; BAR={k:[] for k in BAR}
    if 'x_nods2' in OPT:
        DS={k:v for k,v in DS.items() if k<15};
    DPL=tuple(int(x) for x in os.environ.get('DPL','3,5,4').split(','))
    SKP={int(x):n for n,x in enumerate(os.environ.get('SKP','0,1,2,3').split(','))}
    if 'skew0' in OPT: BAR[int(os.environ.get('SK0','1'))]=[]
    def f1loop(NU,vm):
      H=NU//2
      nb=[LA10]
      def ldB(s):
          if 'x_nob' in OPT:
              vm.pos[('B',s)]=vm.pos[('B',0)]; return
          p(f"s_add_u32 s3, s30, {s*1024}")
          vm.issue(('B',s),f"buffer_load_dwordx4 v[{128+4*s}:{131+4*s}], v9, {SRD_WS}, s3 offen{HL1}")
      for s in range(32):
          nxt=s+1
          pre=[]; rd=[]; fill=[]; mem=[]
          SKEW='skew' in OPT
          if NEW:
              if s in BAR and not SKEW:
                  if BAR[s]: vm.wait(*BAR[s])
                  p("s_barrier")
          elif s==8:
              p("s_barrier")
          if B2:
              for j in (LA+2*s,LA+2*s+1):
                  if j<32: mem.append(('B',j))
          elif LA10<LA:
              for _ in range(2):
                  if nb[0]<32 and nb[0]<=s+LA: mem.append(('B',nb[0])); nb[0]+=1
          elif s+LA<32: mem.append(('B',s+LA))
          if not NEW and 8<=s<20: mem.append(('D',s-8))
          if 'warm' in OPT and 'wdatt' not in OPT and WD_STEP<=s<WD_STEP+3: mem.append(('W',s-WD_STEP))
          if 'pt' in OPT and s==PT_STEP: mem.append(('P',0))
          if 'ptout' in OPT and s==int(os.environ.get('PTO_STEP','29')): mem.append(('O',0))
          if nxt<32:
              qn,ssn=divmod(nxt,4)
              if nxt==24 and not NEW:
                  vm.wait(('W1',7,5))
                  p("s_barrier")
              if ssn==0: pre=setbase(qn)
              rd=rdA(nxt)[:2*NU]; fill=norm(nxt)
          if 'x_nofill' in OPT: fill=[]
          if 'x_nord' in OPT: rd=[]
          if 'x_nodma' in OPT and s!=19: mem=[m for m in mem if m[0]!='D']
          if 'x_nodma' in OPT and s==19: mem=[('B',s+LA)]; vm.pos[('W1',7,5)]=vm.n-1
          if 'oldwait' in OPT: p("s_waitcnt lgkmcnt(0)")
          for x in pre: p(x)
          if PN: vm.wait(('B',s))
          elif nxt<32: vm.wait(('B',nxt))
          b=AB[s%2]
          mf=[f"v_mfma_f32_32x32x16_bf16 v[{ACC[uu]}:{ACC[uu]+15}], a[{b+4*uu}:{b+4*uu+3}], v[{128+4*s}:{131+4*s}], {'0' if s==0 else f'v[{ACC[uu]}:{ACC[uu]+15}]'}" for uu in range(NU)]
          fi=0
          KS=[3,3,3,3,2,2] if 'pknorm' in OPT else ([3,4,3,3,4,3] if NU==6 else [5,5,5,5])
          for uu in range(NU):
              if 'oldwait' not in OPT:
                  if 'wait6' in OPT: p(f"s_waitcnt lgkmcnt({10 if nxt<32 else 2*(5-uu)})")
                  elif uu in (0,H): p(f"s_waitcnt lgkmcnt({2*H if (nxt<32 or uu==0) else 0})")
              p(mf[uu])
              for x in rd[2*uu:2*uu+2]: p(x)
              k=KS[uu]
              for x in fill[fi:fi+k]: p(x)
              fi+=k
              if NEW and SKEW and s in BAR and uu in SKP:
                  lab=f"SKW_{s}_{uu}"
                  p(f"s_cmp_lg_u32 s6, {SKP[uu]}"); p(f"s_cbranch_scc1 {lab}")
                  if BAR[s]: vm.wait(*BAR[s])
                  p("s_barrier")
                  p.label(lab)
              if uu==1 and mem and mem[0][0]=='B': ldB(mem[0][1])
              if NEW:
                  for n,g in enumerate(DS.get(s,[])):
                      if (DPL if NU==6 else (2,3,3))[n]==uu: emit_group(p,vm,g)
                  if WDPF and s==SWS and uu==NU-1:
                      p("v_mov_b32 v4, v1")
                      for j in range(1,4): p(f"v_add_u32 v{4+j}, {7168*j}, v1")
              if uu==min(4,NU-1) and len(mem)>1 and mem[1][0]=='B': ldB(mem[1][1])
              if uu==3:
                  for m in mem:
                      if m[0]=='D':
                          emit_group(p,vm,dmas[m[1]])
                      if m[0]=='P':
                          p("s_mul_i32 s3, s70, 86"); p("s_add_u32 s3, s3, s66"); p("s_lshl_b32 s3, s3, 10"); p(f"s_add_u32 s3, s3, {L.AF}")
                          p("v_lshlrev_b32 v13, 7, v0"); p("s_lshl_b32 s7, s67, 3"); p("s_bfm_b64 exec, s7, 0")
                          vm.issue(('P',0),f"buffer_load_dword v15, v13, {SRD_WS}, s3 offen ; nowaitcheck")
                          p("s_mov_b64 exec, -1")
                      if m[0]=='O':
                          srd(p,16,P_OUT,2048*1024)
                          p("s_lshl_b32 s3, s62, 6")
                          vm.issue(('O',0),f"buffer_load_dword v15, v8, {SRD_A}, s3 offen ; nowaitcheck")
                      if m[0]=='W':
                          p(f"s_add_u32 s3, s79, {m[1]*4096}")
                          vm.issue(('W',m[1]),f"buffer_load_dword v15, v14, {SRD_O}, s3 offen ; nowaitcheck")
          for x in fill[fi:]: p(x)
    if 'four' in OPT:
        import copy
        vm4=copy.copy(vm); vm4.pos=dict(vm.pos)
        p("s_cmp_eq_u32 s67, 4"); p("s_cbranch_scc1 F1L_4")
        f1loop(6,vm)
        p("s_branch F1L_end")
        p.label("F1L_4")
        f1loop(4,vm4)
        p.label("F1L_end")
    else: f1loop(6,vm)
    stamp(p,'D mfma done',vt=12)
    if NEW and WDPF:
        WD=[[x[1] if x[0]=='s' else x[2] for x in g] for g0 in (0,4,8) for g in wd_group(g0)]
    else:
        p("v_lshrrev_b32 v1, 3, v0"); p("v_and_b32 v10, 7, v0")
        w128_voff(p,'v4')
        for j in range(1,4): p(f"v_add_u32 v{4+j}, {7168*j}, v4")
        p("s_lshr_b32 s3, s6, 1"); p("s_and_b32 s7, s6, 1")
        p(f"s_mul_i32 s30, s3, 81920"); p(f"s_mul_i32 s31, s7, 40960"); p("s_add_u32 s74, s30, s31")
        p(f"s_mul_i32 s75, s3, {43*16*1024}"); p(f"s_mul_i32 s31, s7, {320*1024}"); p("s_add_u32 s77, s31, s75")
        WD=dma128(['v4','v5','v6','v7'],SRD_O,'s74',0,'s77',40,sg='s71')
    if 'glue2' not in OPT: p("s_barrier")
    c1=-2*1.4426950408889634*0.7978845608028654; c2=c1*0.044715
    p(f"s_mov_b32 s72, {hx(f2u(c2))}"); p("s_mov_b32 s73, s72")
    p(f"v_mov_b32 v28, {hx(f2u(c1))}"); p("v_mov_b32 v29, v28")
    p("v_mov_b32 v30, 1.0"); p("v_mov_b32 v31, 1.0")
    p("s_mul_i32 s30, s70, 86"); p("s_add_u32 s30, s30, s66"); p("s_lshl_b32 s30, s30, 10"); p(f"s_add_u32 s30, s30, {L.AF}")
    if 'glue2' in OPT: p("s_barrier")
    S4S='s4split' in OPT
    if S4S: flag_off(p,F3); p("s_mov_b32 s80, s3")
    NDU=[8,8,8,8,4,4]
    if NEW and WDPF: NDU=[int(x) for x in os.environ.get('NDU','3,3,3,3,0,0').split(',')]
    k0=0
    for uu in range(6):
        a=ACC[uu]; T=16
        if uu==4:
            p("s_cmp_eq_u32 s67, 4"); p("s_cbranch_scc1 F1_four")
        pr=lambda x,j: f"v[{x+2*j}:{x+2*j+1}]"
        I=[]
        for j in range(4): I.append(f"v_pk_mul_f32 {pr(T,j)}, {pr(a,j)}, {pr(a,j)}")
        for j in range(4): I.append(f"v_pk_fma_f32 {pr(T,j)}, {pr(T,j)}, s[72:73], v[28:29]")
        for j in range(4): I.append(f"v_pk_mul_f32 {pr(T,j)}, {pr(T,j)}, {pr(a,j)}")
        for j in range(8): I.append(f"v_exp_f32 v{T+j}, v{T+j}")
        for j in range(4): I.append(f"v_pk_mul_f32 {pr(a,j)}, {pr(a,j)}, {pr(a+8,j)}")
        for j in range(4): I.append(f"v_pk_add_f32 {pr(T,j)}, {pr(T,j)}, v[30:31]")
        for j in range(8): I.append(f"v_rcp_f32 v{T+j}, v{T+j}")
        for j in range(4): I.append(f"v_pk_mul_f32 {pr(T,j)}, {pr(T,j)}, {pr(a,j)}")
        for j in range(4): I.append(f"v_cvt_pk_bf16_f32 v{24+j}, v{T+2*j}, v{T+2*j+1}")
        G=WD[k0:k0+NDU[uu]]; k0+=NDU[uu]
        gap=len(I)//max(len(G),1)
        for n,x in enumerate(I):
            p(x)
            if n%gap==gap-1 and G:
                for y in G.pop(0): p(y)
        assert not G
        hstore(p,f"buffer_store_dwordx4 v[24:27], v9, {SRD_WS}, s30 offen offset:{(uu%4)*1024}")
        if uu==3: p("s_add_u32 s30, s30, 4096")
        if S4S and uu==int(os.environ.get('F4A','4')):
            p(f"s_waitcnt vmcnt({sum(NDU[3:uu+1])+uu-2})")
            set_flag(p,'s80',12)
    p("s_branch F1_done")
    p.label("F1_four")
    for g in WD[sum(NDU[:4]):]:
        for y in g: p(y)
    if S4S:
        p("s_waitcnt vmcnt(0)")
        set_flag(p,'s80',12)
    p.label("F1_done")
    stamp(p,'D epi done',vt=12)

def ffn2_phase(p):
    S4S='s4split' in OPT
    flag_off(p,F4)
    if S4S:
        p("v_lshlrev_b32 v50, 2, v0")
        p("s_lshr_b32 s30, s4, 1"); p("s_lshl_b32 s30, s30, 8"); p(f"s_add_u32 s81, s30, {F4}"); p(f"s_add_u32 s30, s30, {F3}")
        p(f"buffer_load_dword v48, v50, {SRD_WS}, s30 offen sc1")
    p("s_waitcnt vmcnt(0)")
    set_flag(p,'s3',12)
    stamp(p,'E flag set',vt=12)
    srd(p,16,P_WD,1376*1024)
    srd(p,24,P_OUT,2048*1024)
    lane_params(p)
    p("s_and_b32 s3, s6, 1"); p("s_lshl_b32 s3, s3, 2")
    tr_base128(p,'v10',"s3",0)
    p("s_and_b32 s3, s6, 1"); p("s_mul_i32 s3, s3, 81920")
    p("v_add_u32 v10, s3, v10")
    p("v_xor_b32 v11, 64, v10")
    p("v_add_u32 v14, 49152, v10"); p("v_add_u32 v15, 49152, v11")
    RC='rescin' in OPT
    if RC:
        for j in range(8): p(f"v_accvgpr_read_b32 v{52+j}, a{248+j}")
        for j in range(8):
            p(f"v_lshlrev_b32 v{64+2*j}, 16, v{52+j}")
            p(f"v_and_b32 v{65+2*j}, 0xffff0000, v{52+j}")
    p("s_barrier")
    AB=[16+8*b for b in range(4)]
    ACC=[64,80]; NS=43
    LA=int(os.environ.get('LA2','8'))
    def orders(kh):
        if not S4S: return list(range(NS)),0,[0,1,2]
        u0=[4*m+2*min(m,11) for m in range(16)]; nu=[6 if m<11 else 4 for m in range(16)]
        early=set()
        for m in range(16):
            for k in range(3 if nu[m]==6 else 4): early.add(u0[m]+k)
        e=[s for s in range(40) if 43*kh+s in early]; l=[s for s in range(40) if 43*kh+s not in early]
        o=e+l+[40,41,42]
        return o,len(e),o[:3]
    def mkrd(order,reuse):
        def rd(i,ccs=(0,1)):
            b=AB[i%4]; st=order[i]
            j=st if st<40 else reuse[st-40]
            off=j*2048
            va=('v10','v11')
            if j>=24: va=('v14','v15'); off-=49152
            for cc in ccs:
                p(f"ds_read_b64_tr_b16 v[{b+4*cc}:{b+4*cc+1}], {va[cc]} offset:{off}")
                p(f"ds_read_b64_tr_b16 v[{b+4*cc+2}:{b+4*cc+3}], {va[cc]} offset:{off+512}")
        return rd
    if not S4S:
        rd=mkrd(*orders(0)[::2])
        for i in range(3): rd(i)
    p("s_and_b32 s7, s6, 1"); p("s_mul_i32 s3, s7, 3")
    p("s_lshl_b32 s76, s3, 13"); p("s_add_u32 s76, s76, s75"); p(f"s_add_u32 s76, s76, {40*16*1024}")
    p("s_lshl_b32 s77, s3, 10"); p("s_lshr_b32 s3, s6, 1"); p("s_mul_i32 s3, s3, 81920"); p("s_add_u32 s77, s77, s3")
    if S4S:
        assert orders(0)[2]==[0,1,2] and orders(1)[2]==[0,1,5]
        p("s_cmp_eq_u32 s6, 3"); p("s_cselect_b32 s78, 6144, 0"); p("s_add_u32 s78, s78, s77")
    p("s_mul_i32 s31, s61, 86"); p("s_and_b32 s3, s6, 1"); p("s_mul_i32 s3, s3, 43"); p("s_add_u32 s31, s31, s3")
    p("s_lshl_b32 s31, s31, 10"); p(f"s_add_u32 s31, s31, {L.AF}")
    if 'wbl2' in OPT: raise RuntimeError
    def check_flags(name,reg,soff,waitf):
        waitf()
        p(f"v_cmp_ne_u32 vcc, 1, v{reg}")
        p("s_cmp_eq_u64 vcc, 0"); p(f"s_cbranch_scc1 POLLD_{name}")
        p(f"s_mov_b32 s29, {SPIN}")
        p.label(f"POLL_{name}")
        p(f"buffer_load_dword v{reg}, v50, {SRD_WS}, {soff} offen sc1")
        p("s_waitcnt vmcnt(0)")
        p(f"v_cmp_ne_u32 vcc, 1, v{reg}")
        p("s_cmp_eq_u64 vcc, 0")
        p(f"s_cbranch_scc1 POLLD_{name}")
        p("s_sub_u32 s29, s29, 1"); p("s_cmp_lg_u32 s29, 0"); p(f"s_cbranch_scc1 POLL_{name}")
        p.label(f"POLLD_{name}")
    def loop(kh):
        order,ne,reuse=orders(kh)
        rd=mkrd(order,reuse)
        vm=VM(p)
        def ldB(i):
            if S4S:
                st=order[i]
                if st>=4: p(f"s_add_u32 s3, s31, {(st//4)*4096}")
                vm.issue(('B',i),f"buffer_load_dwordx4 a[{4*i}:{4*i+3}], v9, {SRD_WS}, {'s3' if st>=4 else 's31'} offen offset:{(st%4)*1024}{HL1}")
                return
            if i%4==0 and i: p(f"s_add_u32 s31, s31, 4096")
            vm.issue(('B',i),f"buffer_load_dwordx4 a[{4*i}:{4*i+3}], v9, {SRD_WS}, s31 offen offset:{(i%4)*1024}{HL1}")
        LA0=min(LA,int(os.environ.get('LA20',str(LA))))
        assert LA0==LA or not S4S
        nb=[LA0]
        for i in range(LA0): ldB(i)
        if S4S:
            for i in range(3): rd(i)
        PQ=ne-LA-int(os.environ.get('PD',str(LA)))
        assert not S4S or (0<=PQ<ne-LA and LA<=ne)
        for i in range(NS):
            if i==4:
                p("s_barrier")
                for j in range(3):
                    p(f"s_add_u32 m0, {'s78' if (S4S and j) else 's77'}, {j*1024}"); p(f"s_add_u32 s3, s76, {j*8192}")
                    vm.issue(('D',j),f"buffer_load_dwordx4 v4, {SRD_A}, s3 offen lds")
            if i==36:
                vm.wait(('D',2))
                p("s_barrier")
            if S4S and i==PQ: vm.issue(('F',0),f"buffer_load_dword v49, v50, {SRD_WS}, s81 offen sc1")
            rem=min(2,NS-1-i)
            vm.wait(('B',i),extra=f" lgkmcnt({rem*4})")
            b=AB[i%4]
            CO=(1,0) if 'last10' in OPT else (0,1)
            for cc in CO:
                a=ACC[cc]
                p(f"v_mfma_f32_32x32x16_bf16 v[{a}:{a+15}], v[{b+4*cc}:{b+4*cc+3}], a[{4*i}:{4*i+3}], {'0' if (i==0 and not (RC and cc==0)) else f'v[{a}:{a+15}]'}")
                if LA0<LA:
                    if nb[0]<NS and nb[0]<=i+LA: ldB(nb[0]); nb[0]+=1
                elif cc==CO[0] and i+LA<NS:
                    if S4S and i+LA==ne:
                        if kh==0: stamp(p,'E pre b',vt=52)
                        check_flags(f's4b{kh}',49,'s81',lambda: vm.wait(('F',0)))
                        if kh==0: stamp(p,'E post b',vt=52)
                    ldB(i+LA)
                if i+3<NS: rd(i+3,(cc,))
    if S4S:
        check_flags('s4a',48,'s30',lambda: None)
        stamp(p,'E S4 done',vt=100)
        p("s_bitcmp1_b32 s6, 0"); p("s_cbranch_scc1 F2_K1")
        loop(0)
        p("s_branch F2_end")
        p.label("F2_K1")
        loop(1)
        p.label("F2_end")
    else:
        p("v_lshlrev_b32 v12, 2, v0")
        p("s_lshr_b32 s30, s4, 1"); p("s_lshl_b32 s30, s30, 8"); p(f"s_add_u32 s30, s30, {F4}")
        poll(p,'s4',SRD_WS,'s30','v12',1,13)
        stamp(p,'E S4 done',vt=100)
        loop(0)
    stamp(p,'E mfma',vt=12)
    pair_reduce(p,ACC,8192)
    if not RC:
        for j in range(8): p(f"v_accvgpr_read_b32 v{32+j}, a{248+j}")
        for j in range(8):
            p(f"v_lshlrev_b32 v{96+2*j}, 16, v{32+j}")
            p(f"v_and_b32 v{97+2*j}, 0xffff0000, v{32+j}")
        for j in range(8): p(f"v_pk_add_f32 v[{64+2*j}:{65+2*j}], v[{64+2*j}:{65+2*j}], v[{96+2*j}:{97+2*j}]")
    for j in range(8): p(f"v_cvt_pk_bf16_f32 v{32+j}, v{64+2*j}, v{65+2*j}")
    p("s_lshl_b32 s3, s62, 6")
    OF_=os.environ.get('OUTF','').replace('_',' ')
    if 'x_outfull' in OPT:
        p("v_lshrrev_b32 v8, 3, v0"); p("v_lshlrev_b32 v8, 10, v8"); p("v_and_b32 v13, 7, v0"); p("v_lshl_add_u32 v8, v13, 4, v8")
        p("s_lshl_b32 s3, s61, 15"); p("s_and_b32 s7, s6, 1"); p("s_lshl_b32 s7, s7, 14"); p("s_add_u32 s3, s3, s7"); p("s_lshl_b32 s7, s5, 7"); p("s_add_u32 s3, s3, s7")
        p(f"buffer_store_dwordx4 v[32:35], v8, {SRD_O}, s3 offen {OF_}")
        p("s_add_u32 s3, s3, 8192")
        p(f"buffer_store_dwordx4 v[36:39], v8, {SRD_O}, s3 offen {OF_}")
        return
    p(f"buffer_store_dwordx4 v[32:35], v8, {SRD_O}, s3 offen {OF_}")
    p(f"buffer_store_dwordx4 v[36:39], v8, {SRD_O}, s3 offen offset:32 {OF_}")

def build(fname):
    p=Prog()
    end="END_K"
    prologue(p,end)
    stamp(p,'start')
    phase_a(p)
    attention(p)
    wo_phase(p)
    ffn1_phase(p)
    ffn2_phase(p)
    stamp(p,'end',vt=12)
    p.label(end)
    p("s_endpgm")
    attention_slow(p)
    emit_outl(p)
    ins=p.finalize(name='k',check_waits=not os.environ.get('NOCHECK'))
    print(f"{len(ins)} lines, {p.nops} hazard nops",file=sys.stderr)
    ref=open('sequential_preLN__grouped_kv_mqa__geglu_ffn__prompt.s.ref').read()
    hdr=ref.split('; Override')[0]
    out=hdr+f"; @launch grid=(256,1,1) block=(256,1,1) lds={LDS_TOTAL}\n"
    out+='.amdgcn_target "amdgcn-amd-amdhsa--gfx950"\n.text\n'
    out+=f".globl {KNAME}\n.p2align 8\n.type {KNAME},@function\n{KNAME}:\n"+render(ins)
    out+=f""".section .rodata,"a"
.p2align 6
.amdhsa_kernel {KNAME}
  .amdhsa_next_free_vgpr 512
  .amdhsa_next_free_sgpr 96
  .amdhsa_accum_offset 256
  .amdhsa_group_segment_fixed_size 0
  .amdhsa_kernarg_size 96
  .amdhsa_user_sgpr_count 2
  .amdhsa_user_sgpr_kernarg_segment_ptr 1
  .amdhsa_system_sgpr_workgroup_id_x 1
.end_amdhsa_kernel
"""
    open(fname,'w').write(out)

if __name__=='__main__':
    out=sys.argv[1]
    if len(sys.argv)>2: PROFILE=True
    build(out)
    open(out+'.stamps','w').write('\n'.join(STAMPS))
    if DSTAMPS: print(DSTAMPS)
```

```python
import sys, os, struct
from asm import Prog, render
import layout as L

OPT=set(x for x in os.environ.get('OPT','').split(',') if x)
KNAME='sequential_preLN__grouped_kv_mqa__geglu_ffn__prompt_kernel'
QSCALE=1.4426950408889634/4.0
def f2u(x): return struct.unpack('<I',struct.pack('<f',x))[0]
def hx(x): return '0x%08x'%(x & 0xffffffff)

SRD_WS='s[8:11]'; SRD_X='s[12:15]'; SRD_A='s[16:19]'; SRD_B='s[20:23]'; SRD_O='s[24:27]'; SRD_D='s[56:59]'
P_X,P_WQ,P_WK,P_WV,P_WO,P_WG,P_WU,P_WD,P_OUT,P_WS,P_DBG=32,34,36,38,40,44,46,48,50,52,54
SPIN=1<<17

XH0=0; XH1=33792; WQ=67584; WK=XH1; WV=XH1+16384+128
WO_L=0; OP=73728; QL=147456; MX=155648; MF=MX+4096; QM=161792
SLOT=24576; RED=147456
LDS_TOTAL=163840
F2=L.FLG; F3=L.FLG+4096; F4=L.FLG+8192; FX=L.FLG+12288

def srd(p, d, ptr, size):
    p(f"s_mov_b32 s{d}, s{ptr}")
    p(f"s_mov_b32 s{d+1}, s{ptr+1}")
    p(f"s_mov_b32 s{d+2}, {hx(size)}")
    p(f"s_mov_b32 s{d+3}, 0x20000")
def csel(p,d,a,b):
    p(f"s_mov_b32 {d}, {b}"); p(f"s_cmov_b32 {d}, {a}")

PROFILE=False
HL1=' nt' if 'ldnt' in OPT else ('' if 'ldpl' in OPT else (' sc0' if 'ldsc0' in OPT else ' sc1'))
HS1='' if 'l2h' in OPT else ' sc1'
PF_N=int(os.environ.get('PF_N','3'))
PT_STEP=int(os.environ.get('PT_STEP','24'))
FLG_CLR=208
WD_STEP=int(os.environ.get('WD_STEP','24'))
B2='b2' in OPT
PF2_T=int(os.environ.get('PF2_T','8'))
GO_STEP=int(os.environ.get('GO_STEP','7'))
STAMPS=[]
DSTAMPS=[]
def dstamp(p,name,vt):
    slot=len(DSTAMPS)
    if slot>=16: return
    DSTAMPS.append(name)
    lab=f"DST_{slot}_{len(p.lines)}"
    p("s_lshl_b32 s90, s2, 2"); p("s_or_b32 s90, s90, s6")
    p(f"s_cmp_lg_u32 s90, {int(os.environ.get('DWG','40'))*4}"); p(f"s_cbranch_scc1 {lab}")
    p("s_memrealtime s[90:91]")
    p("s_waitcnt lgkmcnt(0) ; nowaitcheck")
    p(f"v_mov_b32 v{vt}, s90"); p(f"v_mov_b32 v{vt+1}, {slot*4}")
    p("s_mov_b64 s[94:95], exec"); p("s_mov_b64 exec, 1")
    p(f"buffer_store_dword v{vt}, v{vt+1}, {SRD_D}, 0 offen")
    p("s_mov_b64 exec, s[94:95]")
    p.label(lab)
DSEL=os.environ.get('DSEL','').split(',')
def stamp(p, name, vt=250, dyn=None, n=1):
    if name in DSEL: dstamp(p,name,vt)
    if not PROFILE: return
    slot=len(STAMPS)
    for i in range(n): STAMPS.append(name+(f"[{i}]" if n>1 else ""))
    lab=f"ST_{slot}_{len(p.lines)}"
    p("s_cmp_lg_u32 s6, 0"); p(f"s_cbranch_scc1 {lab}")
    p("s_memrealtime s[90:91]")
    p("s_memtime s[88:89]")
    p("s_lshl_b32 s92, s2, 3"); p(f"s_add_u32 s92, s92, {L.PROF+slot*2048}")
    if dyn: p(f"s_lshl_b32 s93, {dyn}, 11"); p("s_add_u32 s92, s92, s93")
    p("s_waitcnt lgkmcnt(0) ; nowaitcheck")
    p(f"v_mov_b32 v{vt}, s90"); p(f"v_mov_b32 v{vt+1}, s88"); p(f"v_mov_b32 v{vt+2}, 0")
    p("s_mov_b64 s[94:95], exec"); p("s_mov_b64 exec, 1")
    p(f"buffer_store_dwordx2 v[{vt}:{vt+1}], v{vt+2}, {SRD_WS}, s92 offen")
    p("s_mov_b64 exec, s[94:95]")
    p.label(lab)

class VM:
    def __init__(s,p): s.p=p; s.n=0; s.pos={}
    def issue(s,key,txt):
        s.p(txt); s.pos[key]=s.n; s.n+=1
    def wait(s,*keys,extra=""):
        need=max(s.pos[k] for k in keys)
        c=s.n-1-need
        if c<=63: s.p(f"s_waitcnt vmcnt({c}){extra}")
        elif extra: s.p(f"s_waitcnt{extra}")

def poll(p, name, srd_, soff, vaddr, expect, vt, sleep=0):
    if PROFILE:
        p("s_waitcnt vmcnt(0)")
        stamp(p,name+' own dma',vt={'s1':200,'s4':100}.get(name,14))
    p(f"s_mov_b32 s29, {SPIN}")
    p.label(f"POLL_{name}")
    p(f"buffer_load_dword v{vt}, {vaddr}, {srd_}, {soff} offen sc1")
    p("s_waitcnt vmcnt(0)")
    p(f"v_cmp_ne_u32 vcc, {expect}, v{vt}")
    p("s_cmp_eq_u64 vcc, 0")
    p(f"s_cbranch_scc1 POLLD_{name}")
    if sleep: p(f"s_sleep {sleep}")
    p("s_sub_u32 s29, s29, 1")
    p("s_cmp_lg_u32 s29, 0")
    p(f"s_cbranch_scc1 POLL_{name}")
    p.label(f"POLLD_{name}")

OUTL=[]
def hstore(p, lines):
    if isinstance(lines,str): lines=[lines]
    if 'xcc' not in OPT:
        for x in lines: p(x+HS1)
        return
    k=len(OUTL)
    p("s_cmp_lg_u32 s43, 0"); p(f"s_cbranch_scc1 HST_{k}")
    for x in lines: p(x)
    p.label(f"HSB_{k}")
    OUTL.append((k,[x+' sc1' for x in lines]))
def emit_outl(p):
    for k,lines in OUTL:
        p.label(f"HST_{k}")
        for x in lines: p(x)
        p(f"s_branch HSB_{k}")

def set_flag(p, soff, vt):
    p(f"v_mov_b32 v{vt}, 1"); p(f"v_mov_b32 v{vt+1}, 0")
    p("s_mov_b64 exec, 1")
    hstore(p,f"buffer_store_dword v{vt}, v{vt+1}, {SRD_WS}, {soff} offen")
    p("s_mov_b64 exec, -1")

def prologue(p, end):
    p(f"s_cmp_ge_u32 s2, {0 if 'empty' in OPT else 256}")
    p(f"s_cbranch_scc1 {end}")
    p("s_load_dwordx4 s[32:35], s[0:1], 0")
    p("s_load_dwordx4 s[36:39], s[0:1], 16")
    p("s_load_dwordx2 s[40:41], s[0:1], 32")
    p("s_load_dwordx4 s[44:47], s[0:1], 48")
    p("s_load_dwordx4 s[48:51], s[0:1], 64")
    p("s_load_dwordx2 s[52:53], s[0:1], 88")
    p("s_load_dwordx2 s[54:55], s[0:1], 80")
    p("v_lshrrev_b32 v1, 6, v0")
    p("v_and_b32 v0, 63, v0")
    p("v_readfirstlane_b32 s6, v1")
    p("s_and_b32 s3, s2, 7")
    p("s_lshr_b32 s7, s2, 3")
    p("s_lshr_b32 s4, s7, 3")
    p("s_lshl_b32 s3, s3, 2")
    p("s_add_u32 s4, s4, s3")
    p("s_and_b32 s5, s7, 7")
    p("v_lshlrev_b32 v9, 4, v0")
    if 'codepf' in OPT:
        p("s_getpc_b64 s[60:61]")
        p.label("PF_HERE")
        p("s_lshl_b32 s3, s7, 2"); p("s_add_u32 s3, s3, s6"); p("s_lshl_b32 s3, s3, 9")
        p("v_and_b32 v231, 7, v0"); p("v_lshlrev_b32 v231, 6, v231")
        p("v_add_u32 v231, s3, v231")
        p(f"v_min_u32 v230, END_K-PF_HERE-4, v231")
        p("s_mov_b64 exec, 0xff")
        p(f"global_load_dword v232, v230, s[60:61] ; nowaitcheck")
        p("s_mov_b64 exec, -1")
    p("s_waitcnt lgkmcnt(0)")
    srd(p,8,P_WS,L.WS_USED)
    srd(p,56,P_DBG,256)

def ln_tile(p, X, vaddr, off, extra=None, write=True):
    U=176
    S,S2,Q,Q2=80,82,84,86
    I=[]
    a=I.append
    pr=lambda r: f"v[{r}:{r+1}]"
    for i in range(32):
        a(f"v_lshlrev_b32 v{U+2*i}, 16, v{X+i}")
        a(f"v_and_b32 v{U+2*i+1}, 0xffff0000, v{X+i}")
        if i>=1:
            k=i-1; u=U+2*k; sa=(S,S2)[k%2]; qa=(Q,Q2)[k%2]
            if k<2: a(f"v_pk_mul_f32 {pr(qa)}, {pr(u)}, {pr(u)}")
            else: a(f"v_pk_fma_f32 {pr(qa)}, {pr(u)}, {pr(u)}, {pr(qa)}")
            if k==2 or k==3: a(f"v_pk_add_f32 {pr(sa)}, {pr(U+2*(k-2))}, {pr(u)}")
            elif k>3: a(f"v_pk_add_f32 {pr(sa)}, {pr(sa)}, {pr(u)}")
    u=U+62
    a(f"v_pk_fma_f32 {pr(Q2)}, {pr(u)}, {pr(u)}, {pr(Q2)}")
    a(f"v_pk_add_f32 {pr(S2)}, {pr(S2)}, {pr(u)}")
    a(f"v_pk_add_f32 {pr(S)}, {pr(S)}, {pr(S2)}")
    a(f"v_pk_add_f32 {pr(Q)}, {pr(Q)}, {pr(Q2)}")
    S0,Q0='v80','v82'
    a(f"v_add_f32 v80, v80, v81")
    a(f"v_add_f32 v82, v84, v85")
    for d in ("quad_perm:[1,0,3,2]","quad_perm:[2,3,0,1]","row_half_mirror"):
        a(f"v_add_f32_dpp {S0}, {S0}, {S0} {d} row_mask:0xf bank_mask:0xf")
        a(f"v_add_f32_dpp {Q0}, {Q0}, {Q0} {d} row_mask:0xf bank_mask:0xf")
    a(f"v_mul_f32 {S0}, {hx(f2u(1/512))}, {S0}")
    a(f"v_mul_f32 {Q0}, {hx(f2u(1/512))}, {Q0}")
    a(f"v_fma_f32 {Q0}, -{S0}, {S0}, {Q0}")
    a(f"v_max_f32 {Q0}, 0, {Q0}")
    a(f"v_add_f32 {Q0}, {hx(f2u(1e-5))}, {Q0}")
    a(f"v_rsq_f32 v92, {Q0}")
    a(f"v_sub_f32 v94, 0, {S0}")
    a(f"v_mov_b32 v93, v92")
    a(f"v_mul_f32 v94, v94, v92")
    a(f"v_mov_b32 v95, v94")
    for cb in range(8):
        for i in range(4):
            u=U+2*(4*cb+i)
            a(f"v_pk_fma_f32 {pr(u)}, {pr(u)}, v[92:93], v[94:95]")
        for i in range(4):
            u=U+2*(4*cb+i)
            a(f"v_cvt_pk_bf16_f32 v{X+4*cb+i}, v{u}, v{u+1}")
        if write: a(f"ds_write_b128 {vaddr}, v[{X+4*cb}:{X+4*cb+3}] offset:{off+cb*4224}")
    extra=list(extra or [])
    gap=max(1,(len(I)-8)//max(1,len(extra))) if extra else 0
    for n,x in enumerate(I):
        p(x)
        if extra and n%gap==gap-1:
            for y in extra.pop(0): p(y)
    for g in extra:
        for y in g: p(y)
def ln_write(p, X, vaddr, off):
    for cb in range(8): p(f"ds_write_b128 {vaddr}, v[{X+4*cb}:{X+4*cb+3}] offset:{off+cb*4224}")

def dma128(vregs, srd_, sbase_lds, lds_off, sbase_g, n, sg='s31', nt=''):
    out=[]
    for i in range(n):
        j=i%4; g=[]
        if j==0:
            g.append(f"s_add_u32 m0, {sbase_lds}, {lds_off+i*1024}")
            g.append(f"s_add_u32 {sg}, {sbase_g}, {i*8192}")
        g.append(f"buffer_load_dwordx4 {vregs[j]}, {srd_}, {sg} offen offset:{j*1024}{nt} lds")
        out.append(g)
    return out

def gemm_lds(p, nsteps, readA, readB, mfma, rps, depth=3, nbuf=4, fill=None, hook=None):
    fill=list(fill or []); hook=hook or {}
    for s in range(min(depth,nsteps)):
        readA(s,s%nbuf); readB(s,s%nbuf)
    for s in range(nsteps):
        if s+depth<nsteps:
            readA(s+depth,(s+depth)%nbuf); readB(s+depth,(s+depth)%nbuf)
        rem=min(depth,nsteps-1-s)
        p(f"s_waitcnt lgkmcnt({rem*rps})")
        mfma(s,s%nbuf)
        if s in hook: hook[s]()
        for _ in range(2):
            if fill: p(fill.pop(0))
    for x in fill: p(x)

def tr_base128(p, dst, cbit_sgpr, base, t=97):
    a=f"v{t}"; b=f"v{t+1}"
    p(f"v_and_b32 {a}, 1, v13")
    p(f"v_lshl_add_u32 {a}, v15, 1, {a}")
    if cbit_sgpr: p(f"v_add_u32 {a}, {cbit_sgpr}, {a}")
    p(f"v_lshrrev_b32 {b}, 1, v12")
    p(f"v_lshlrev_b32 {b}, 2, {b}")
    p(f"v_xor_b32 {a}, {a}, {b}")
    p(f"v_lshlrev_b32 {a}, 4, {a}")
    p(f"v_lshrrev_b32 {b}, 1, v13")
    p(f"v_lshl_add_u32 {a}, {b}, 3, {a}")
    p(f"v_lshl_add_u32 {a}, v14, 7, {a}")
    p(f"v_add_u32 {dst}, {base}, {a}")

def lane_params(p):
    p("v_lshrrev_b32 v11, 4, v0")
    p("v_bfe_u32 v12, v0, 2, 2")
    p("v_and_b32 v13, 3, v0")
    p("v_lshrrev_b32 v14, 1, v11")
    p("v_lshl_add_u32 v14, v14, 3, v12")
    p("v_and_b32 v15, 1, v11")
    p("v_and_b32 v96, 1, v13")
    p("v_lshlrev_b32 v96, 4, v96")
    p("v_lshrrev_b32 v97, 1, v13")
    p("v_lshl_add_u32 v96, v97, 3, v96")

def w128_voff(p, dst):
    p("v_lshrrev_b32 v11, 4, v0")
    p("v_and_b32 v11, 1, v11")
    p("v_lshlrev_b32 v11, 2, v11")
    p("v_xor_b32 v11, v11, v10")
    p("v_lshlrev_b32 v11, 4, v11")
    p(f"v_lshl_add_u32 {dst}, v1, 10, v11")
    if 'x_wdx' in OPT and dst=='v1': p("s_xor_b32 s3, s5, 1"); p("s_lshl_b32 s3, s3, 7")
    else: p("s_lshl_b32 s3, s5, 7")
    p(f"v_add_u32 {dst}, s3, {dst}")

def hs_sentinel(p,w):
    if 'hsflag' not in OPT: return
    p("s_lshl_b32 s3, s60, 12"); p(f"s_add_u32 s3, s3, {L.HS+w*2048}")
    for i in range(4): p(f"v_mov_b32 v{120+i}, -1")
    p(f"buffer_store_dwordx4 v[120:123], v9, {SRD_WS}, s3 offen sc1")
    p(f"buffer_store_dwordx4 v[120:123], v9, {SRD_WS}, s3 offen offset:1024 sc1")

VA=64
def phase_a(p):
    p("s_mov_b32 s28, 0x3f803f80")
    srd(p,12,P_X,2048*1024)
    p("s_and_b32 s3, s5, 1")
    p("s_lshl_b32 s60, s4, 1")
    p("s_add_u32 s60, s60, s3")
    p("v_lshrrev_b32 v1, 3, v0")
    p("v_and_b32 v10, 7, v0")
    p("s_lshl_b32 s3, s60, 5")
    p("s_lshl_b32 s7, s6, 3")
    p("s_add_u32 s3, s3, s7")
    p("v_add_u32 v2, s3, v1")
    p("v_lshlrev_b32 v2, 10, v2")
    p("v_lshl_add_u32 v2, v10, 4, v2")
    p("v_xor_b32 v3, 0x8000, v2")
    for cb in range(8):
        p(f"buffer_load_dwordx4 v[{16+4*cb}:{19+4*cb}], v2, {SRD_X}, 0 offen offset:{cb*128}")
    srd(p,16,P_WQ,512*1024)
    w128_voff(p,'v4')
    p("v_lshrrev_b32 v11, 1, v10")
    p("v_mul_u32_u24 v11, 1056, v11")
    p("v_and_b32 v12, 1, v10")
    p("v_mul_u32_u24 v12, 528, v12")
    p("v_add_u32 v5, v11, v12")
    p("s_lshl_b32 s3, s6, 3")
    p("v_add_u32 v11, s3, v1")
    p("v_lshl_add_u32 v5, v11, 4, v5")
    p("v_lshrrev_b32 v11, 5, v0")
    p("v_mul_u32_u24 v11, 528, v11")
    p("v_and_b32 v12, 31, v0")
    p("v_lshl_add_u32 v6, v12, 4, v11")
    lane_params(p)
    p(f"v_mul_u32_u24 v97, {WV-WK}, v15")
    p("v_lshl_add_u32 v97, v14, 5, v97")
    p("v_add_u32 v97, v97, v96")
    p(f"v_add_u32 v8, {WK}, v97")
    p("s_and_b32 s3, s6, 1")
    p("s_lshl_b32 s3, s3, 2")
    tr_base128(p,'v7','s3',WQ)
    p("s_cmp_ge_u32 s5, 2")
    p("s_cselect_b32 s77, 4, 8")
    p("s_sub_u32 s3, s6, 2"); p("s_lshl_b32 s3, s3, 1")
    p("s_cmp_ge_u32 s5, 2"); p("s_cselect_b32 s3, s6, s3")
    p("s_lshl_b32 s75, s3, 17")
    p("s_lshl_b32 s76, s3, 14"); p(f"s_add_u32 s76, s76, {WQ}")
    p("s_lshl_b32 s74, s6, 14")
    p("s_cmp_ge_u32 s5, 2")
    p("s_cbranch_scc1 A_nokvdma")
    p("s_cmp_lg_u32 s6, 2")
    p("s_cbranch_scc1 A_noclr")
    p(f"s_mul_i32 s3, s60, {FLG_CLR}")
    p(f"s_add_u32 s3, s3, {L.FLG}")
    p("v_lshlrev_b32 v11, 2, v0")
    p("v_mov_b32 v12, 0")
    p(f"s_mov_b32 exec_hi, {hx((1<<(FLG_CLR//4-32))-1)}")
    p(f"buffer_store_dword v12, v11, {SRD_WS}, s3 offen sc1")
    p("s_mov_b64 exec, -1")
    p.label("A_noclr")
    p("s_cmp_lt_u32 s6, 2")
    p(f"s_cselect_b32 s20, s{P_WK}, s{P_WV}")
    p(f"s_cselect_b32 s21, s{P_WK+1}, s{P_WV+1}")
    p("s_mov_b32 s22, 16384")
    p("s_mov_b32 s23, 0x20000")
    csel(p,'s30',WK,WV)
    p("s_and_b32 s3, s6, 1")
    p("s_lshl_b32 s3, s3, 13")
    p("s_add_u32 s30, s30, s3")
    for i in range(8):
        if i%4==0: p(f"s_add_u32 m0, s30, {i*1024}"); p(f"s_add_u32 s31, s3, {i*1024}")
        p(f"buffer_load_dwordx4 v9, {SRD_B}, s31 offen offset:{(i%4)*1024} lds")
    stamp(p,'A issued')
    WE='wqearly' in OPT
    if WE:
        p("s_cmp_lt_u32 s6, 2"); p("s_cbranch_scc1 A_noweq")
        p("v_add_u32 v240, 7168, v4"); p("v_add_u32 v241, 14336, v4"); p("v_add_u32 v242, 21504, v4")
        for g in range(8):
            p(f"s_add_u32 m0, s76, {g*4096}"); p(f"s_add_u32 s3, s75, {g*32768}")
            for j,vr in enumerate(('v4','v240','v241','v242')):
                p(f"buffer_load_dwordx4 {vr}, {SRD_A}, s3 offen offset:{j*1024} lds")
        if 'vones' in OPT: v_ones(p,88)
        p("s_waitcnt vmcnt(40)")
        p("s_branch A_xw")
        p.label("A_noweq")
    if 'vones' in OPT: v_ones(p,88)
    p("s_waitcnt vmcnt(8)")
    p("s_branch A_xw")
    p.label("A_nokvdma")
    if 'wqwarm' in OPT:
        p("s_and_b32 s3, s4, 3"); p("s_mul_i32 s3, s3, 6"); p("s_add_u32 s3, s3, s5"); p("s_sub_u32 s3, s3, 2")
        p("s_lshl_b32 s3, s3, 2"); p("s_add_u32 s3, s3, s6"); p("s_mul_i32 s3, s3, 22")
        p("v_add_u32 v247, s3, v0"); p("v_lshrrev_b32 v246, 2, v247"); p("v_and_b32 v247, 3, v247"); p("v_lshlrev_b32 v247, 6, v247")
        p("v_lshl_add_u32 v247, v246, 10, v247")
        p("s_mov_b64 exec, 0x3fffff")
        p(f"buffer_load_dword v246, v247, {SRD_A}, 0 offen ; nowaitcheck")
        p("s_mov_b64 exec, -1")
    if 'vones' in OPT: v_ones(p,88)
    p("s_waitcnt vmcnt(1)" if 'wqwarm' in OPT else "s_waitcnt vmcnt(0)")
    p.label("A_xw")
    stamp(p,'A x arrived')
    ln_tile(p,16,'v5',XH0,extra=[[f"buffer_load_dwordx4 v[{48+4*cb}:{51+4*cb}], v3, {SRD_X}, 0 offen offset:{cb*128}"] for cb in range(8)])
    for j in range(1,4): p(f"v_add_u32 v{175+j+64}, {7168*j}, v4")
    stamp(p,'A lnA done')
    p("s_cmp_ge_u32 s5, 2")
    p("s_cbranch_scc1 A_wqdma")
    if 'wqearly' in OPT:
        p("s_cmp_lt_u32 s6, 2"); p("s_cbranch_scc1 A_kw01")
        p("s_waitcnt vmcnt(40) lgkmcnt(0)")
        p("s_barrier")
        p("s_waitcnt vmcnt(0)")
        p("s_branch A_kvdone")
        p.label("A_kw01")
    p("s_waitcnt vmcnt(8) lgkmcnt(0)")
    p("s_barrier")
    p("s_cmp_ge_u32 s6, 2")
    p("s_cbranch_scc1 A_wqdma")
    AB_=[96+4*b for b in range(6)]; BB_=[144+4*b for b in range(6)]
    def rA(s,b):
        p(f"ds_read_b64_tr_b16 v[{AB_[b]}:{AB_[b]+1}], v8 offset:{s*512}")
        p(f"ds_read_b64_tr_b16 v[{AB_[b]+2}:{AB_[b]+3}], v8 offset:{s*512+128}")
    def rB(s,b):
        p(f"ds_read_b128 v[{BB_[b]}:{BB_[b]+3}], v6 offset:{XH0+s*1056}")
    p("s_cmp_eq_u32 s6, 1")
    p("s_cbranch_scc1 A_vwave")
    gemm_lds(p,32,rA,rB,lambda s,b: p(f"v_mfma_f32_32x32x16_bf16 v[128:143], v[{AB_[b]}:{AB_[b]+3}], v[{BB_[b]}:{BB_[b]+3}], {'0' if s==0 else 'v[128:143]'}"),3,depth=4,nbuf=6)
    for j in range(4): p(f"v_cvt_pk_bf16_f32 v{88+j}, v{128+2*j}, v{129+2*j}")
    p("s_lshl_b32 s3, s60, 10")
    p(f"s_add_u32 s3, s3, {L.KF}")
    p(f"buffer_store_dwordx4 v[88:91], v9, {SRD_WS}, s3 offen sc1")
    p("v_mul_f32 v84, v128, v128")
    for j in range(1,8): p(f"v_fmac_f32 v84, v{128+j}, v{128+j}")
    p("v_mov_b32 v85, v84")
    p("v_permlane32_swap_b32 v84, v85")
    p("v_add_f32 v84, v84, v85")
    for d in ("row_ror:8","row_ror:4","row_ror:2","row_ror:1"):
        p(f"v_max_f32_dpp v84, v84, v84 {d} row_mask:0xf bank_mask:0xf")
    p("v_readlane_b32 s3, v84, 0")
    p("v_readlane_b32 s7, v84, 16")
    p("s_max_u32 s3, s3, s7")
    p("v_mov_b32 v84, s3")
    p("s_lshl_b32 s7, s60, 7")
    p(f"s_add_u32 s7, s7, {L.KM}")
    p("v_lshlrev_b32 v85, 2, v0")
    p("s_mov_b32 exec_hi, 0")
    p(f"buffer_store_dword v84, v85, {SRD_WS}, s7 offen sc1")
    p("s_mov_b64 exec, -1")
    p("s_waitcnt vmcnt(2)")
    hs_sentinel(p,0)
    p("s_branch A_kvdone")
    p.label("A_vwave")
    p("v_and_b32 v84, 3, v0")
    p("v_bfe_u32 v85, v0, 2, 1")
    p("v_lshl_add_u32 v84, v85, 3, v84")
    p("v_bfe_u32 v85, v0, 3, 1")
    p("v_lshl_add_u32 v84, v85, 2, v84")
    p("v_and_b32 v85, 16, v0")
    p("v_add_u32 v84, v84, v85")
    p("v_lshrrev_b32 v85, 5, v0")
    p("v_mul_u32_u24 v85, 528, v85")
    p("v_lshl_add_u32 v86, v84, 4, v85")
    def rBv(s,b):
        p(f"ds_read_b128 v[{BB_[b]}:{BB_[b]+3}], v86 offset:{XH0+s*1056}")
    gemm_lds(p,32,rA,rBv,lambda s,b: p(f"v_mfma_f32_32x32x16_bf16 v[128:143], v[{BB_[b]}:{BB_[b]+3}], v[{AB_[b]}:{AB_[b]+3}], {'0' if s==0 else 'v[128:143]'}"),3,depth=4,nbuf=6)
    for j in range(8): p(f"v_cvt_pk_bf16_f32 v{88+j}, v{128+2*j}, v{129+2*j}")
    p("v_xor_b32 v84, 256, v9")
    p("s_lshl_b32 s3, s60, 11")
    p(f"s_add_u32 s3, s3, {L.VF}")
    p("s_mov_b32 exec_lo, 0xffff0000")
    p("s_mov_b32 exec_hi, 0xffff0000")
    p(f"buffer_store_dwordx4 v[88:91], v84, {SRD_WS}, s3 offen sc1")
    p(f"buffer_store_dwordx4 v[92:95], v84, {SRD_WS}, s3 offen offset:1024 sc1")
    p("s_mov_b64 exec, -1")
    p("s_waitcnt vmcnt(2)")
    hs_sentinel(p,1)
    p("s_branch A_kvdone")
    p.label("A_wqdma")
    p("s_waitcnt vmcnt(0)")
    p.label("A_wqloop")
    p("s_mov_b32 m0, s76")
    for j,vr in enumerate(('v4','v240','v241','v242')):
        p(f"buffer_load_dwordx4 {vr}, {SRD_A}, s75 offen offset:{j*1024}{' nt' if 'ntwq' in OPT else ''} lds")
    p("s_add_u32 s76, s76, 4096"); p("s_add_u32 s75, s75, 32768")
    p("s_sub_u32 s77, s77, 1"); p("s_cmp_lg_u32 s77, 0"); p("s_cbranch_scc1 A_wqloop")
    p.label("A_kvdone")
    stamp(p,'A kvdone')
    ln_tile(p,48,'v5',XH1,write=False)
    KE='kvearly' in OPT
    if KE:
        p("s_cmp_ge_u32 s5, 2"); p("s_cbranch_scc1 A_nosig")
        p("s_barrier")
        p("s_cmp_ge_u32 s6, 2"); p("s_cbranch_scc1 A_nosig")
        ln_write(p,48,'v5',XH1)
        p("s_branch A_lnbw")
        p.label("A_nosig")
        ln_write(p,48,'v5',XH1)
        p("s_waitcnt vmcnt(0)")
        p.label("A_lnbw")
        p("s_waitcnt lgkmcnt(0)")
        p("s_barrier")
        stamp(p,'A lnB done')
        phase_a_q(p,KE,AB_,BB_)
        return
    p("s_cmp_ge_u32 s5, 2"); p("s_cbranch_scc1 A_nosig")
    p("s_cmp_ge_u32 s6, 2"); p("s_cbranch_scc1 A_nosig2")
    p("s_waitcnt vmcnt(0)")
    p("s_barrier")
    p("s_cmp_lg_u32 s6, 0"); p("s_cbranch_scc1 A_nosig3")
    if 'go2' in OPT:
        p("s_lshr_b32 s3, s60, 5"); p("s_lshl_b32 s3, s3, 6"); p("v_mov_b32 v85, s3")
    else: p("v_mov_b32 v85, 0")
    p("v_mov_b32 v243, 1")
    p("s_mov_b64 exec, 1")
    p(f"buffer_atomic_add v243, v85, {SRD_D}, 0 offen sc0 sc1 ; nowaitcheck")
    p("s_mov_b64 exec, -1")
    stamp(p,'A sig')
    p.label("A_nosig3")
    ln_write(p,48,'v5',XH1)
    p("s_branch A_lnbw")
    p.label("A_nosig2")
    p("s_barrier")
    p.label("A_nosig")
    ln_write(p,48,'v5',XH1)
    p("s_waitcnt vmcnt(0)")
    p.label("A_lnbw")
    p("s_waitcnt lgkmcnt(0)")
    p("s_barrier")
    stamp(p,'A lnB done')
    phase_a_q(p,False,AB_,BB_)

GOFN=[]
def phase_a_q(p,KE,AB_,BB_):
    if 'wowarm' in OPT:
        srd(p,24,P_WO,512*1024)
        p("s_cmp_lt_u32 s5, 2"); p("s_cbranch_scc1 A_nowarm")
        p("s_and_b32 s3, s4, 3"); p("s_mul_i32 s3, s3, 6"); p("s_add_u32 s3, s3, s5"); p("s_sub_u32 s3, s3, 2")
        p("s_lshl_b32 s3, s3, 2"); p("s_add_u32 s3, s3, s6"); p("s_mul_i32 s3, s3, 5504")
        p("v_lshlrev_b32 v247, 6, v0")
        p(f"buffer_load_dword v246, v247, {SRD_O}, s3 offen ; nowaitcheck")
        p("s_add_u32 s3, s3, 4096")
        p("s_mov_b64 exec, 0x3fffff")
        p(f"buffer_load_dword v246, v247, {SRD_O}, s3 offen ; nowaitcheck")
        p("s_mov_b64 exec, -1")
        p.label("A_nowarm")
    def go():
        N=32 if 'go2' in OPT else 64
        p("s_cmp_ge_u32 s5, 2"); p("s_cbranch_scc1 A_nogo")
        p("s_cmp_lg_u32 s6, 0"); p("s_cbranch_scc1 A_nogo")
        p("s_waitcnt vmcnt(0)")
        stamp(p,'A atom ret')
        p(f"v_readfirstlane_b32 s3, v243"); p(f"s_and_b32 s3, s3, {N-1}"); p(f"s_cmp_lg_u32 s3, {N-1}"); p("s_cbranch_scc1 A_nogo")
        p("v_mov_b32 v243, 1")
        if 'go2' in OPT:
            p("s_lshr_b32 s3, s60, 5"); p("s_lshl_b32 s3, s3, 6"); p("s_add_u32 s3, s3, 128"); p("v_mov_b32 v244, s3")
        else: p("v_mov_b32 v244, 128")
        p("s_mov_b64 exec, 1")
        p(f"buffer_store_dword v243, v244, {SRD_D}, 0 offen sc1")
        p("s_mov_b64 exec, -1")
        p.label("A_nogo")
    def kvsig():
        p("s_cmp_ge_u32 s5, 2"); p("s_cbranch_scc1 A_nosig9")
        p("s_waitcnt vmcnt(0)")
        p("s_barrier")
        p("s_cmp_lg_u32 s6, 0"); p("s_cbranch_scc1 A_nosig9")
        p("s_lshr_b32 s3, s60, 5"); p("s_lshl_b32 s3, s3, 6"); p("v_mov_b32 v245, s3")
        p("v_mov_b32 v243, 1")
        p("s_mov_b64 exec, 1")
        p(f"buffer_atomic_add v243, v245, {SRD_D}, 0 offen sc0 sc1 ; nowaitcheck")
        p("s_mov_b64 exec, -1")
        stamp(p,'A sig')
        p.label("A_nosig9")
    GOP=os.environ.get('GOP','q')
    hooks={GO_STEP:go}
    if KE:
        hooks={int(os.environ.get('KA','12')):kvsig}
        if GOP=='hook': hooks[GO_STEP]=go
        elif GOP=='pre': GOFN.append(go)
    p("s_lshr_b32 s3, s6, 1")
    p(f"s_mul_i32 s7, s3, {XH1}")
    p("v_add_u32 v6, s7, v6")
    def rA(s,b):
        p(f"ds_read_b64_tr_b16 v[{AB_[b]}:{AB_[b]+1}], v7 offset:{s*2048}")
        p(f"ds_read_b64_tr_b16 v[{AB_[b]+2}:{AB_[b]+3}], v7 offset:{s*2048+512}")
    def rB(s,b):
        p(f"ds_read_b128 v[{BB_[b]}:{BB_[b]+3}], v6 offset:{s*1056}")
    gemm_lds(p,32,rA,rB,lambda s,b: p(f"v_mfma_f32_32x32x16_bf16 v[128:143], v[{AB_[b]}:{AB_[b]+3}], v[{BB_[b]}:{BB_[b]+3}], {'0' if s==0 else 'v[128:143]'}"),3,depth=4,nbuf=6,fill=att_setup(),hook=hooks)
    if KE and GOP=='q0': go()
    p(f"s_mov_b32 s30, {hx(f2u(QSCALE))}"); p("s_mov_b32 s31, s30")
    if 'wo2' in OPT: p("v_mov_b32 v239, v4")
    else:
        for j in range(1,4): p(f"v_add_u32 v{4+j}, {7168*j}, v4")
    for j in range(8): p(f"v_pk_mul_f32 v[{128+2*j}:{129+2*j}], v[{128+2*j}:{129+2*j}], s[30:31]")
    for j in range(8): p(f"v_cvt_pk_bf16_f32 v{96+j}, v{128+2*j}, v{129+2*j}")
    p("s_lshr_b32 s3, s6, 1")
    p("s_xor_b32 s3, s5, s3"); p("s_and_b32 s3, s3, 1"); p("s_lshl_b32 s3, s3, 2")
    p("s_and_b32 s7, s6, 1"); p("s_lshl_b32 s7, s7, 1"); p("s_add_u32 s3, s3, s7")
    p("s_lshl_b32 s3, s3, 10"); p(f"s_add_u32 s3, s3, {QL}")
    p("v_add_u32 v104, s3, v9")
    p("ds_write_b128 v104, v[96:99]")
    p("ds_write_b128 v104, v[100:103] offset:1024")
    p("v_mul_f32 v104, v128, v128"); p("v_mul_f32 v105, v136, v136")
    for j in range(1,8): p(f"v_fmac_f32 v104, v{128+j}, v{128+j}"); p(f"v_fmac_f32 v105, v{136+j}, v{136+j}")
    p("v_mov_b32 v106, v104"); p("v_mov_b32 v107, v105")
    p("v_permlane32_swap_b32 v104, v106"); p("v_permlane32_swap_b32 v105, v107")
    p("v_add_f32 v104, v104, v106"); p("v_add_f32 v105, v105, v107")
    p("v_max_u32 v104, v104, v105")
    for d in ("row_ror:8","row_ror:4","row_ror:2","row_ror:1"):
        p(f"v_max_u32_dpp v104, v104, v104 {d} row_mask:0xf bank_mask:0xf")
    p("v_readlane_b32 s3, v104, 0")
    p("v_readlane_b32 s7, v104, 16")
    p("s_max_u32 s3, s3, s7")
    p("v_mov_b32 v104, s3")
    p("s_lshl_b32 s7, s6, 2"); p(f"s_add_u32 s7, s7, {QM}")
    p("v_mov_b32 v105, s7")
    p("ds_write_b32 v105, v104")
    if KE and GOP=='q': go()
    stamp(p,'A q done')

def att_setup():
    F=[]; a=F.append
    for i in range(16): a(f"v_mov_b32 v{OB[0]+i}, 0"); a(f"v_mov_b32 v{OB[1]+i}, 0")
    for i in range(4): a(f"v_mov_b32 v{ZR+i}, 0")
    a(f"v_mov_b32 v{IDX}, 0xdddddddd")
    a("s_mov_b32 s80, 0xffff"); a("s_mov_b32 s81, 0xffff")
    a("s_mul_i32 s77, s6, 2304"); a(f"s_add_u32 s77, s77, {OP}")
    a(f"v_add_u32 v{SLA}, s77, v9")
    a("s_add_u32 s77, s77, 2048")
    a(f"v_lshl_add_u32 v{SLB}, v0, 2, s77")
    a(f"v_add_u32 v{QA}, {QL+1024}, v9")
    a(f"v_add_u32 v59, {QL}, v9")
    a(f"v_mov_b32 v60, {QM}")
    a("s_lshl_b32 s42, s6, 14")
    a("s_lshr_b32 s61, s6, 1"); a("s_lshl_b32 s77, s4, 1"); a("s_add_u32 s61, s61, s77")
    a("s_and_b32 s62, s6, 1"); a("s_lshl_b32 s77, s5, 1"); a("s_add_u32 s62, s62, s77")
    a("v_and_b32 v2, 31, v0"); a("s_lshl_b32 s77, s61, 5"); a("v_add_u32 v2, s77, v2"); a("v_lshlrev_b32 v2, 10, v2")
    a("v_lshrrev_b32 v3, 5, v0"); a("v_lshl_add_u32 v8, v3, 4, v2")
    return F

KA=0
SB=[16,32]; OB=[64,80]; QB=[96,100]; CB=104; IDX=48; ZR=52; SLA=56; SLB=57; QA=58; TB=120
THRESH=40.0
VMASK='s[80:81]'

def QK(Sn,kn,Qn,slow): return f"v_mfma_f32_32x32x16_bf16 v[{Sn}:{Sn+15}], a[{KA+4*kn}:{KA+4*kn+3}], v[{Qn}:{Qn+3}], {f'v[{CB}:{CB+15}]' if slow else '0'}"
def PV(O,areg,S): return f"v_smfmac_f32_32x32x32_bf16 v[{O}:{O+15}], a[{areg}:{areg+3}], v[{S}:{S+7}], v{IDX}"

def slot_write(p,O):
    p(f"ds_write_b128 v{SLA}, v[{O}:{O+3}]")
    p(f"ds_write_b128 v{SLA}, v[{O+4}:{O+7}] offset:1024")
    p(f"ds_write_b32 v{SLB}, v{O+8}")

def att_pass(p, ps, first=False, slow=False, vm=None, ev=None):
    ev=ev or {}
    for t in range(16):
        S=SB[t%2]; Sn=SB[(t+1)%2]
        O=OB[ps]; Op=OB[ps] if t>0 else OB[1-ps]
        Qn=QB[ps] if t<15 else QB[1-ps]
        kn=(t+1)%16; tp=(t-1)%16
        e=lambda i: f"v_exp_f32 v{S+i}, v{S+i}"
        pv2=PV(Op,VA+8*tp+4,Sn+8)
        I=[e(0),e(1),pv2,e(2),e(3),e(4),QK(Sn,kn,Qn,slow),e(5),e(6),e(7),e(8),e(9),PV(O,VA+8*t,S),e(10),e(11),e(12),e(13),e(14),e(15)]
        if not first:
            oa,ob,oc=[int(x) for x in os.environ.get('ORD','3,5,11').split(',')]
            I=[e(i) for i in range(16)]
            I.insert(oc,PV(O,VA+8*t,S)); I.insert(ob,QK(Sn,kn,Qn,slow)); I.insert(oa,pv2)
        ins={}
        def add(pos,txt): ins.setdefault(pos,[]).append(txt)
        if first and t==0: I[2]=None
        if not first:
            if t==2:
                add(4,f"ds_write_b128 v{SLA}, v[{OB[1-ps]}:{OB[1-ps]+3}]")
                add(8,f"ds_write_b128 v{SLA}, v[{OB[1-ps]+4}:{OB[1-ps]+7}] offset:1024")
                add(10,f"ds_write_b32 v{SLB}, v{OB[1-ps]+8}")
            if t==3:
                add(4,f"v_add_u32 v{SLA}, 9216, v{SLA}"); add(8,f"v_add_u32 v{SLB}, 9216, v{SLB}")
            if t==8:
                Z=OB[1-ps]
                add(16,f"v_mfma_f32_32x32x16_bf16 v[{Z}:{Z+15}], v[{ZR}:{ZR+3}], v[{ZR}:{ZR+3}], 0")
        if t==4:
            Qd=QB[1-ps]
            add(4,f"ds_read_b128 v[{Qd}:{Qd+3}], v{QA}")
            if slow: add(5,f"ds_read_b32 v121, v120")
        if t==5:
            add(4,f"v_add_u32 v{QA}, 1024, v{QA}")
            if slow: add(8,"v_add_u32 v120, 256, v120")
        if t==14:
            add(0,"s_waitcnt lgkmcnt(0)")
        if t==15 and slow:
            for j in range(16): add(1,f"v_mov_b32 v{CB+j}, v121")
        if first and vm is not None:
            vm.wait(('V',t,0))
            if t+4<16: add(4,('K',t+4))
            if t+3<16: add(9,('V',t+3))
        for pos,item in ev.get(t,[]): add(pos,item)
        for i,x in enumerate(I):
            for y in ins.get(i,[]):
                if callable(y): y()
                elif isinstance(y,list): emit_group(p,vm,y)
                elif isinstance(y,tuple): (ldK if y[0]=='K' else ldV)(p,vm,y[1])
                else: p(y)
            if x: p(x)

def spread(ev, items, t0, t1, poss=(1,4,8,11,14,17)):
    n=t1-t0+1; per=-(-len(items)//n); assert per<=len(poss),(per,len(items))
    k=0
    for t in range(t0,t1+1):
        for j in range(per):
            if k<len(items): ev.setdefault(t,[]).append((poss[j*len(poss)//per],items[k])); k+=1

def ldK(p,vm,j):
    p(f"s_add_u32 s3, s30, {j*1024}")
    vm.issue(('K',j),f"buffer_load_dwordx4 a[{KA+4*j}:{KA+4*j+3}], v9, {SRD_WS}, s3 offen sc1")
def ldV(p,vm,j):
    p(f"s_add_u32 s3, s31, {j*2048}")
    p(f"s_mov_b64 exec, {VMASK}")
    vm.issue(('V',j,0),f"buffer_load_dwordx4 a[{VA+8*j}:{VA+8*j+3}], v9, {SRD_WS}, s3 offen sc1")
    vm.issue(('V',j,1),f"buffer_load_dwordx4 a[{VA+8*j+4}:{VA+8*j+7}], v9, {SRD_WS}, s3 offen offset:1024 sc1")
    p("s_mov_b64 exec, -1")

def o_store(p,O,jj):
    p(f"v_rcp_f32 v{TB}, v{O+8}")
    p(f"v_mov_b32 v{TB+1}, v{O+8}")
    p(f"v_mov_b32 v{TB+1}, v{TB}")
    for j in range(4): p(f"v_pk_mul_f32 v[{O+2*j}:{O+2*j+1}], v[{O+2*j}:{O+2*j+1}], v[{TB}:{TB+1}]")
    for j in range(4): p(f"v_cvt_pk_bf16_f32 v{TB+4+j}, v{O+2*j}, v{O+2*j+1}")
    hstore(p,f"buffer_store_dwordx4 v[{TB+4}:{TB+7}], v9, {SRD_WS}, s63 offen offset:{jj*1024}")

def xcc_publish(p,vm):
    lab=f"XP_{len(p.lines)}"
    p("s_getreg_b32 s43, hwreg(HW_REG_XCC_ID, 0, 4)")
    p("s_add_u32 s43, s43, 1")
    p("s_lshr_b32 s86, s4, 1"); p("s_lshl_b32 s86, s86, 6"); p(f"s_add_u32 s86, s86, {FX}")
    p("s_cmp_lg_u32 s6, 0"); p(f"s_cbranch_scc1 {lab}")
    p("s_and_b32 s3, s4, 1"); p("s_lshl_b32 s3, s3, 3"); p("s_add_u32 s3, s3, s5"); p("s_lshl_b32 s3, s3, 2")
    p("v_mov_b32 v12, s43"); p("v_mov_b32 v14, s3")
    p("s_mov_b64 exec, 1")
    vm.issue(('XP',0),f"buffer_store_dword v12, v14, {SRD_WS}, s86 offen sc1")
    p("s_mov_b64 exec, -1")
    p.label(lab)
def xcc_load(p,vm):
    p("v_and_b32 v13, 15, v0"); p("v_lshlrev_b32 v13, 2, v13")
    vm.issue(('XL',0),f"buffer_load_dword v12, v13, {SRD_WS}, s86 offen sc1")
def xcc_check(p,sfx=''):
    p(f"s_mov_b32 s29, {SPIN}")
    p.label("XC_CHK"+sfx)
    p("v_cmp_eq_u32 vcc, 0, v12")
    p("s_cmp_eq_u64 vcc, 0"); p("s_cbranch_scc1 XC_OK"+sfx)
    p("s_sub_u32 s29, s29, 1"); p("s_cmp_eq_u32 s29, 0"); p("s_cbranch_scc1 XC_OK"+sfx)
    p(f"buffer_load_dword v12, v13, {SRD_WS}, s86 offen sc1")
    p("s_waitcnt vmcnt(0)")
    p("s_branch XC_CHK"+sfx)
    p.label("XC_OK"+sfx)
    p("v_cmp_ne_u32 vcc, s43, v12")
    p("s_cmp_lg_u64 vcc, 0")
    p("s_cselect_b32 s43, 1, 0")
    if 'xslow' in OPT: p("s_mov_b32 s43, 1")

def wo_dma_groups(vm):
    G=[]
    for n,g in enumerate(dma128(['v239','v240','v241','v242'] if 'wo2' in OPT else ['v4','v5','v6','v7'],SRD_O,'s74',WO_L,'s75',16,sg='s76',nt=' nt' if 'ntwo' in OPT else '')):
        G.append([('s',x) for x in g[:-1]]+[('m',('WO',n),g[-1])])
    G.append([('s',"s_lshl_b32 s76, s62, 6"),('m',('XR',0),f"buffer_load_dwordx4 a[192:195], v8, {SRD_X}, s76 offen")])
    G.append([('m',('XR',1),f"buffer_load_dwordx4 a[196:199], v8, {SRD_X}, s76 offen offset:32")])
    return G
def emit_group(p,vm,g):
    for x in g:
        if x[0]=='s': p(x[1])
        else: vm.issue(x[1],x[2])

def v_ones(p,b):
    p(f"v_mov_b32 v{b}, 0x3f803f80"); p(f"v_mov_b32 v{b+4}, 0x3afe3f80")
    p(f"v_and_b32 v{b+1}, 59, v0"); p(f"v_cmp_eq_u32 vcc, 16, v{b+1}"); p(f"v_cndmask_b32 v{b+4}, 0, v{b+4}, vcc")
    for i in (1,2,3,5,6,7): p(f"v_mov_b32 v{b+i}, 0")
    for i in range(8): p(f"v_mfma_f32_32x32x16_bf16 a[{VA+16*i}:{VA+16*i+15}], v[{b}:{b+3}], v[{b+4}:{b+7}], 0")

def tail_addr(p):
    p("s_mul_i32 s3, s6, 18432"); p(f"s_add_u32 s3, s3, {OP}")
    p("v_add_u32 v118, s3, v9")
    p("s_add_u32 s3, s3, 2048")
    p("v_lshl_add_u32 v119, v0, 2, s3")
    p("s_lshr_b32 s3, s6, 1"); p("s_lshl_b32 s7, s4, 1"); p("s_add_u32 s3, s3, s7"); p("s_lshl_b32 s3, s3, 5")
    p("s_lshl_b32 s7, s5, 2"); p("s_add_u32 s3, s3, s7")
    p("s_and_b32 s7, s6, 1"); p("s_lshl_b32 s7, s7, 1"); p("s_add_u32 s3, s3, s7")
    p("s_lshl_b32 s3, s3, 10"); p(f"s_add_u32 s63, s3, {L.OF}")
def tail_setup(p,sfx):
    tail_addr(p)
    if 'xcc' in OPT:
        p("s_waitcnt vmcnt(0)")
        xcc_check(p,sfx)
def attention(p):
    srd(p,24,P_WO,512*1024)
    p("s_lshl_b32 s75, s6, 17")
    srd(p,16,P_WG,512*2752)
    srd(p,20,P_WU,512*2752)
    p("s_lshr_b32 s78, s2, 3"); p("s_lshl_b32 s78, s78, 2"); p("s_add_u32 s78, s78, s6"); p("s_mul_i32 s78, s78, 6880"); p(f"s_add_u32 s78, s78, {192*2752}")
    p("v_lshlrev_b32 v50, 7, v0" if 'w128' in OPT else "v_lshlrev_b32 v50, 6, v0")
    if 'pt' in OPT:
        p("v_and_b32 v51, 15, v0"); p("v_lshlrev_b32 v51, 7, v51")
        p("s_lshr_b32 s3, s6, 1"); p("s_lshl_b32 s7, s4, 1"); p("s_add_u32 s3, s3, s7"); p("s_lshl_b32 s3, s3, 5")
        p("s_lshl_b32 s7, s5, 2"); p("s_add_u32 s3, s3, s7")
        p("s_and_b32 s7, s6, 1"); p("s_lshl_b32 s7, s7, 1"); p("s_add_u32 s3, s3, s7")
        p("s_lshl_b32 s3, s3, 10"); p(f"s_add_u32 s82, s3, {L.OF}")
        p("s_lshl_b32 s3, s61, 5"); p("s_lshl_b32 s7, s62, 1"); p("s_add_u32 s3, s3, s7"); p("s_lshl_b32 s3, s3, 10"); p(f"s_add_u32 s83, s3, {L.HF}")
        p("s_lshl_b32 s3, s61, 12"); p("s_lshl_b32 s7, s62, 8"); p("s_add_u32 s3, s3, s7"); p(f"s_add_u32 s84, s3, {L.HS}")
    p("s_lshl_b32 s31, s42, 1"); p(f"s_add_u32 s31, s31, {L.VF}")
    p(f"s_add_u32 s30, s42, {L.KF}")
    lane_params(p)
    p("s_and_b32 s3, s6, 1"); p("s_lshl_b32 s3, s3, 2")
    tr_base128(p,'v10',"s3",WO_L)
    p("s_and_b32 s3, s6, 1"); p("s_lshl_b32 s3, s3, 15")
    p("v_add_u32 v10, s3, v10")
    p("v_xor_b32 v1, 64, v10")
    p("v_lshlrev_b32 v11, 7, v0")
    if 'vones' not in OPT: v_ones(p,16)
    stamp(p,'B pre-S1',vt=200)
    for f in GOFN: f()
    p("s_cmp_lg_u32 s6, 0"); p("s_cbranch_scc1 B_s1skip")
    if 'go2' in OPT: p("v_and_b32 v62, 1, v0"); p("v_lshlrev_b32 v62, 6, v62"); p("v_add_u32 v62, 128, v62")
    else: p("v_mov_b32 v62, 128")
    poll(p,'s1',SRD_D,'0','v62',1,61,sleep=int(os.environ.get('S1SLEEP','1')))
    p.label("B_s1skip")
    p("s_waitcnt lgkmcnt(0)")
    p("s_barrier")
    stamp(p,'B S1 done',vt=200)
    vm=VM(p)
    p(f"s_mov_b32 s3, {L.KM}")
    vm.issue('KM',f"buffer_load_dword v61, v11, {SRD_WS}, s3 offen sc1")
    ldK(p,vm,0)
    p(f"ds_read_b128 v[{QB[0]}:{QB[0]+3}], v59")
    p(f"ds_read_b128 v[104:107], v60")
    ldK(p,vm,1); ldV(p,vm,0); ldK(p,vm,2); ldV(p,vm,1); ldK(p,vm,3); ldV(p,vm,2)
    p("s_waitcnt lgkmcnt(0)")
    p("v_max_u32 v60, v104, v105"); p("v_max3_u32 v60, v60, v106, v107")
    if 'glue3' in OPT:
        vm.wait(('K',0))
        p(QK(SB[0],0,QB[0],False))
    vm.wait('KM')
    for d in ("row_ror:8","row_ror:4","row_ror:2","row_ror:1"):
        p(f"v_max_u32_dpp v61, v61, v61 {d} row_mask:0xf bank_mask:0xf")
    p("v_readlane_b32 s3, v61, 0"); p("v_readlane_b32 s7, v61, 16"); p("s_max_u32 s3, s3, s7")
    p("v_readlane_b32 s7, v61, 32"); p("s_max_u32 s3, s3, s7")
    p("v_readlane_b32 s7, v61, 48"); p("s_max_u32 s65, s3, s7")
    p("v_mul_f32 v60, s65, v60")
    p(f"v_cmp_nge_f32 vcc, {hx(f2u(THRESH*THRESH/(1.02*1.02)))}, v60")
    p("s_cmp_lg_u64 vcc, 0")
    p("s_cbranch_scc1 L_slow")
    if 'glue3' not in OPT:
        vm.wait(('K',0))
        p(QK(SB[0],0,QB[0],False))
    stamp(p,'B first',vt=200)
    import copy
    SLOW.append(vm)
    vm=copy.copy(vm); vm.pos=dict(vm.pos)
    ev0={}
    if 'wowarm2' in OPT:
        ev0[int(os.environ.get('WOT','13'))]=[(11,[('s',"s_lshr_b32 s85, s2, 3"),('s',"s_lshl_b32 s85, s85, 2"),('s',"s_add_u32 s85, s85, s6"),('s',"s_lshl_b32 s85, s85, 12"),
              ('m',('WOW',0),f"buffer_load_dword v49, v50, {SRD_O}, s85 offen ; nowaitcheck")])]
    att_pass(p,0,first=True,vm=vm,ev=ev0)
    vm.wait(('V',15,1))
    stamp(p,'B pass0',vt=200)
    if 'wo2' in OPT:
        DPOS=tuple(int(x) for x in os.environ.get('DPOS','13,13').split(',')); DT1=18//len(DPOS)
        THIN=0
        WOG=wo_dma_groups(vm)
        ev={}
        ev[0]=[(11,[('s',"s_lshr_b32 s85, s2, 3"),('s',"s_lshl_b32 s85, s85, 2"),('s',"s_add_u32 s85, s85, s6"),('s',"s_lshl_b32 s85, s85, 12"),
              ('m',('WOW',0),f"buffer_load_dword v49, v50, {SRD_O}, s85 offen ; nowaitcheck")])]
        if 'xcc' in OPT:
            class NV:
                def issue(s_,k,t): p(t)
            ev.setdefault(1,[]).append((4,lambda: xcc_publish(p,NV())))
        W1T=int(os.environ.get('W1T','10'))
        for n,(t,sr,off) in enumerate(((0,SRD_A,0),(1,SRD_B,0),(2,SRD_A,4096),(3,SRD_B,4096))):
            g=[('m',('WARM',n),f"buffer_load_dword v49, v50, {sr}, s78 offen ; nowaitcheck")]
            if n==2: g=[('s',"s_add_u32 s78, s78, 4096")]+g
            ev.setdefault(W1T+t,[]).append((11,g))
        spread(ev,w1_setup(),2,9,poss=(1,4,8,11,14,17))
        att_pass(p,1,vm=vm,ev=ev)
        ev={}
        W0=int(os.environ.get('WOD0','0')); spread(ev,WOG,W0,W0+DT1-1,poss=DPOS)
        att_pass(p,0,vm=vm,ev=ev)
    else:
        DPOS=tuple(int(x) for x in os.environ.get('DPOS','13,13').split(',')); DT1=18//len(DPOS)
        THIN=int(os.environ.get('THIN','0')); TPOS=int(os.environ.get('TPOS','4'))
        WOG=wo_dma_groups(vm)
        ev={}
        if THIN: spread(ev,WOG[:16],0,15,poss=(TPOS,))
        else:
            W0=int(os.environ.get('WOD0','7' if 'wowarm3' in OPT else '1')); spread(ev,WOG,W0,W0+DT1-1,poss=DPOS)
        if 'xcc' in OPT:
            class NV:
                def issue(s_,k,t): p(t)
            ev.setdefault(0,[]).append((4,lambda: xcc_publish(p,NV())))
        if 'wowarm3' in OPT:
            g=[('s',"s_lshr_b32 s85, s2, 3"),('s',"s_lshl_b32 s85, s85, 2"),('s',"s_add_u32 s85, s85, s6"),('s',"s_lshl_b32 s85, s85, 12")]
            if 'w128' in OPT: g.append(('s',"s_mov_b32 exec_hi, 0"))
            g.append(('m',('WOW',0),f"buffer_load_dword v49, v50, {SRD_O}, s85 offen ; nowaitcheck"))
            if 'w128' in OPT: g.append(('s',"s_mov_b64 exec, -1"))
            ev.setdefault(int(os.environ.get('WOT','0')),[]).append((11,g))
        att_pass(p,1,vm=vm,ev=ev)
        ev={}
        if 'warm' in OPT:
            for n,(t,sr,off) in enumerate(((0,SRD_A,0),(1,SRD_B,0),(2,SRD_A,4096),(3,SRD_B,4096))[:2 if 'w128' in OPT else 4]):
                g=[('m',('WARM',n),f"buffer_load_dword v49, v50, {sr}, s78 offen ; nowaitcheck")]
                if n==2: g=[('s',"s_add_u32 s78, s78, 4096")]+g
                ev.setdefault(t,[]).append((11,g))
        if THIN:
            for n,g in enumerate(WOG[16:]): ev.setdefault(4+n,[]).append((TPOS,g))
        spread(ev,w1_setup(),4,14 if 'w1mask' in OPT else 13,poss=(1,4,8,11,14,17))
        att_pass(p,0,vm=vm,ev=ev)
    ev={0:[(0,lambda: vm.wait(('XR',1))),(0,"s_barrier")]}
    spread(ev,wo_frag_reads(),0,12,poss=(1,4,8,11,14))
    att_pass(p,1,vm=vm,ev=ev)
    ev={0:[(0,"s_barrier")]}
    W1G=w1_dma(0)+w1_dma(1)+w1_dma(2)
    if THIN: spread(ev,W1G[:15],1,15,poss=(TPOS,))
    else: spread(ev,W1G,1,DT1,poss=DPOS)
    att_pass(p,0,vm=vm,ev=ev)
    ev={}
    if THIN:
        for n,g in enumerate(W1G[15:]): ev.setdefault((0,1,3)[n],[]).append((TPOS,g))
    if 'pt' in OPT:
        ev.setdefault(2,[]); ev[2]+=[(4,[('m',('PT',0),f"buffer_load_dword v49, v51, {SRD_WS}, s82 offen ; nowaitcheck")])]
        ev[6]=[(4,[('m',('PT',1),f"buffer_load_dword v49, v51, {SRD_WS}, s83 offen ; nowaitcheck")])]
        ev[10]=[(4,[('s',"s_mov_b64 exec, 3"),('m',('PT',2),f"buffer_load_dword v49, v51, {SRD_WS}, s84 offen ; nowaitcheck"),('s',"s_mov_b64 exec, -1")])]
    W1RP=os.environ.get('W1RP','5') if 'w1reg' in OPT else ''
    if W1RP=='5': spread(ev,w1_reg(),int(os.environ.get('W1R0','3')),int(os.environ.get('W1R0','3'))+11,poss=(13,))
    att_pass(p,1,vm=vm,ev=ev)
    ev={}
    if 'codepf2' in OPT:
        NL=int(os.environ.get('PF2_LINES','4'))
        def pf2():
            p("s_getpc_b64 s[84:85]")
            p.label("PF2_HERE")
            p("s_lshr_b32 s3, s2, 3"); p("s_lshl_b32 s3, s3, 2"); p("s_add_u32 s3, s3, s6"); p(f"s_mul_i32 s3, s3, {NL*64}")
            p(f"v_and_b32 v50, {NL-1}, v0"); p("v_lshlrev_b32 v50, 6, v50"); p("v_add_u32 v50, s3, v50")
            p("v_add_u32 v50, L_att_tail-PF2_HERE, v50")
            p("v_min_u32 v50, END_K-PF2_HERE-4, v50")
            p(f"s_mov_b64 exec, {(1<<NL)-1}")
            vm.issue(('PF2',0),"global_load_dword v49, v50, s[84:85] ; nowaitcheck")
            p("s_mov_b64 exec, -1")
        ev[PF2_T]=[(4,pf2)]
    if 'wdatt' in OPT:
        g=[('s',f"s_mov_b32 s24, s{P_WD}"),('s',f"s_mov_b32 s25, s{P_WD+1}"),('s',f"s_mov_b32 s26, {hx(1376*1024)}"),
           ('s',"s_lshr_b32 s79, s2, 3"),('s',"s_lshl_b32 s79, s79, 2"),('s',"s_add_u32 s79, s79, s6"),('s',"s_mul_i32 s79, s79, 11008"),('s',f"v_lshlrev_b32 v51, {7 if 'w128' in OPT else 6}, v0")]
        ev.setdefault(0,[]).append((4,g))
        WDT=int(os.environ.get('WDT','1'))
        for n in range(0 if 'x_nowd' in OPT else (2 if 'w128' in OPT else 3)):
            g=[('m',('WDW',n),f"buffer_load_dword v49, v51, {SRD_O}, s79 offen ; nowaitcheck")]
            if 'w128' in OPT:
                if n==0: g.append(('s',"s_add_u32 s79, s79, 8192"))
                else: g=[('s',"s_mov_b64 exec, 0x3fffff")]+g+[('s',"s_mov_b64 exec, -1")]
            elif n<2: g.append(('s',"s_add_u32 s79, s79, 4096"))
            ev.setdefault(WDT+2*n,[]).append((11,g))
    if 'xcc' in OPT: ev.setdefault(12,[]).append((4,lambda: xcc_load(p,vm)))
    att_pass(p,0,vm=vm,ev=ev)
    ev={}
    if W1RP=='7': spread(ev,w1_reg(),int(os.environ.get('W1R0','0')),int(os.environ.get('W1R0','0'))+11,poss=(13,))
    att_pass(p,1,vm=vm,ev=ev)
    p.label("L_att_tail")
    p(PV(OB[1],VA+8*15+4,SB[1]+8))
    G1='glue1' in OPT
    if G1: tail_setup(p,'M')
    slot_write(p,OB[1])
    p.label("L_att_done")
    stamp(p,'B loop done',vt=14)
    if not G1: tail_addr(p)
    p("s_waitcnt vmcnt(0) lgkmcnt(0)")
    p("s_barrier")
    if 'xcc' in OPT and not G1: xcc_check(p)
    if 'pnorm' in OPT:
        p("s_lshl_b32 s3, s61, 12"); p("s_lshl_b32 s7, s62, 8"); p("s_add_u32 s3, s3, s7"); p(f"s_add_u32 s3, s3, {L.HS}")
        p("v_mov_b32 v122, -1"); p("v_mov_b32 v123, -1"); p("v_lshlrev_b32 v124, 3, v0")
        p("s_mov_b32 exec_hi, 0")
        hstore(p,f"buffer_store_dwordx2 v[122:123], v124, {SRD_WS}, s3 offen")
        p("s_mov_b64 exec, -1")
    def rds(jj):
        for ww in range(4):
            b=16+(jj*4+ww)*8; off=jj*9216+ww*2304
            p(f"ds_read_b128 v[{b}:{b+3}], v118 offset:{off}")
            p(f"ds_read_b128 v[{b+4}:{b+7}], v118 offset:{off+1024}")
            p(f"ds_read_b32 v{80+jj*4+ww}, v119 offset:{off}")
    rds(0)
    for jj in range(2):
        b=16+jj*32; sb=80+jj*4; O=96+10*jj
        if jj==0:
            p("s_waitcnt lgkmcnt(6)")
            for j in range(4): p(f"v_pk_add_f32 v[{b+2*j}:{b+2*j+1}], v[{b+2*j}:{b+2*j+1}], v[{b+8+2*j}:{b+8+2*j+1}]")
            p(f"v_add_f32 v{sb}, v{sb}, v{sb+1}")
            rds(1)
            p("s_waitcnt lgkmcnt(12)")
        else:
            p("s_waitcnt lgkmcnt(6)")
            for j in range(4): p(f"v_pk_add_f32 v[{b+2*j}:{b+2*j+1}], v[{b+2*j}:{b+2*j+1}], v[{b+8+2*j}:{b+8+2*j+1}]")
            p(f"v_add_f32 v{sb}, v{sb}, v{sb+1}")
            p("s_waitcnt lgkmcnt(0)")
        for j in range(4):
            p(f"v_pk_add_f32 v[{b+16+2*j}:{b+16+2*j+1}], v[{b+16+2*j}:{b+16+2*j+1}], v[{b+24+2*j}:{b+24+2*j+1}]")
        p(f"v_add_f32 v{sb+2}, v{sb+2}, v{sb+3}")
        for j in range(4):
            p(f"v_pk_add_f32 v[{O+2*j}:{O+2*j+1}], v[{b+2*j}:{b+2*j+1}], v[{b+16+2*j}:{b+16+2*j+1}]")
        p(f"v_add_f32 v{O+8}, v{sb}, v{sb+2}")
        o_store(p,O,jj)

SLOW=[]
def attention_slow(p):
    vm=SLOW[0]
    p.label("L_slow")
    if 'xcc' in OPT: xcc_publish(p,vm)
    for j in range(4,16): ldK(p,vm,j)
    for j in range(3,16): ldV(p,vm,j)
    for g in wo_dma_groups(vm): emit_group(p,vm,g)
    p("s_waitcnt vmcnt(0)")
    p("s_barrier")
    for x in wo_frag_reads(): p(x)
    for x in w1_setup():
        if isinstance(x,list): emit_group(p,vm,x)
        else: p(x)
    p("s_waitcnt lgkmcnt(0)")
    p("s_barrier")
    for g in w1_dma(0)+w1_dma(1)+w1_dma(2): emit_group(p,vm,g)
    if 'w1reg' in OPT:
        for g in w1_reg(): emit_group(p,vm,g)
    p("s_mov_b32 s64, 0")
    p.label("L_mx")
    p("s_lshl_b32 s3, s64, 10")
    p("v_add_u32 v120, s3, v59")
    p(f"ds_read_b128 v[{QB[1]}:{QB[1]+3}], v120")
    p("v_mov_b32 v121, 0xff800000")
    p("s_waitcnt lgkmcnt(0)")
    p(QK(SB[0],0,QB[1],False))
    for t in range(16):
        S=SB[t%2]; Sn=SB[(t+1)%2]
        if t<15: p(QK(Sn,t+1,QB[1],False))
        for j in range(8): p(f"v_max3_f32 v121, v{S+2*j}, v{S+2*j+1}, v121")
    p("v_mov_b32 v122, v121")
    p("v_permlane32_swap_b32 v121, v122")
    p("v_max_f32 v121, v121, v122")
    p("s_lshl_b32 s3, s64, 9"); p("s_lshl_b32 s7, s6, 7"); p("s_add_u32 s3, s3, s7")
    p("v_and_b32 v122, 31, v0")
    p("v_lshl_add_u32 v122, v122, 2, s3")
    p(f"v_add_u32 v122, {MX}, v122")
    p(f"ds_write_b32 v122, v121")
    p("s_add_u32 s64, s64, 1"); p("s_cmp_lt_u32 s64, 8"); p("s_cbranch_scc1 L_mx")
    p("s_waitcnt lgkmcnt(0)")
    p("s_barrier")
    p("v_and_b32 v122, 31, v0"); p("v_lshlrev_b32 v122, 2, v122")
    p("s_lshl_b32 s3, s6, 10"); p(f"s_add_u32 s3, s3, {MX}"); p("v_add_u32 v122, s3, v122")
    for qq in range(2):
        for ww in range(4): p(f"ds_read_b32 v{16+4*qq+ww}, v122 offset:{qq*512+ww*128}")
    p("s_waitcnt lgkmcnt(0)")
    p("s_lshl_b32 s3, s6, 9"); p(f"s_add_u32 s3, s3, {MF}")
    p("v_lshl_add_u32 v122, v0, 2, s3")
    for qq in range(2):
        b=16+4*qq
        p(f"v_max3_f32 v{b}, v{b}, v{b+1}, v{b+2}"); p(f"v_max_f32 v{b}, v{b}, v{b+3}"); p(f"v_sub_f32 v{b}, 0, v{b}")
        p(f"ds_write_b32 v122, v{b} offset:{qq*256}")
    p("s_waitcnt lgkmcnt(0)")
    p("s_barrier")
    p(f"v_lshlrev_b32 v120, 2, v0"); p(f"v_add_u32 v120, {MF}, v120")
    p(f"ds_read_b32 v121, v120")
    p("v_add_u32 v120, 256, v120")
    p("s_waitcnt lgkmcnt(0)")
    for j in range(16): p(f"v_mov_b32 v{CB+j}, v121")
    p(QK(SB[0],0,QB[0],True))
    att_pass_slow(p)
    if 'xcc' in OPT: xcc_load(p,vm)
    if 'glue1' in OPT: tail_setup(p,'S')
    p("s_branch L_att_done")

def att_pass_slow(p):
    att_pass(p,0,first=True,slow=True,vm=None)
    p("s_mov_b32 s64, 4")
    p("s_branch L_sttY")
    p.label("L_sttX")
    att_pass(p,0,slow=True)
    p.label("L_sttY")
    att_pass(p,1,slow=True)
    p("s_sub_u32 s64, s64, 1")
    p("s_cmp_lg_u32 s64, 0")
    p("s_cbranch_scc1 L_sttX")
    p(PV(OB[1],VA+8*15+4,SB[1]+8))
    slot_write(p,OB[1])

def w1_setup():
    F=[]; p=F.append
    p("s_and_b32 s3, s4, 1"); p("s_lshl_b32 s3, s3, 3"); p("s_add_u32 s3, s3, s5")
    p("s_min_u32 s7, s3, 11"); p("s_lshl_b32 s7, s7, 1"); p("s_lshl_b32 s66, s3, 2"); p("s_add_u32 s66, s66, s7")
    p("s_cmp_lt_u32 s3, 11"); F[-1]=[('s',"s_cmp_lt_u32 s3, 11"),('s',"s_cselect_b32 s67, 6, 4")]
    MK='w1mask' in OPT
    if MK:
        p("s_lshl_b32 s7, s67, 1"); p("v_mov_b32 v15, 0x40000000")
    for i in range(3):
        p(f"v_add_u32 v11, {64*i}, v0")
        p("v_mul_u32_u24 v12, 5462, v11"); p("v_lshrrev_b32 v12, 16, v12")
        p("v_mul_u32_u24 v13, 12, v12"); p("v_sub_u32 v13, v11, v13")
        p("v_mul_u32_u24 v12, 2752, v12")
        if i: p(f"v_subrev_u32 v12, {1024*i}, v12")
        p(f"v_lshl_add_u32 v{2+i}, v13, 4, v12")
        if MK: p("v_cmp_le_u32 vcc, s7, v13"); p(f"v_cndmask_b32 v{2+i}, v{2+i}, v15, vcc")
        p("v_add_u32 v13, 10, v13"); p("v_subrev_u32 v14, 12, v13"); p("v_min_u32 v13, v13, v14")
        p(f"v_lshl_add_u32 v{5+i}, v13, 4, v12")
        if MK: p("v_cmp_le_u32 vcc, s7, v13"); p(f"v_cndmask_b32 v{5+i}, v{5+i}, v15, vcc")
    p(f"s_mul_i32 s68, s6, {16*2752}"); p("s_lshl_b32 s3, s66, 5"); p("s_add_u32 s68, s68, s3")
    p("s_mul_i32 s69, s6, 3072")
    return F
assert all((c*5462)>>16==c//12 for c in range(192))

def w1_dma(q):
    slot=q%6
    out=[]
    for mat in range(2):
        for i in range(3):
            g=[]
            if i==0 or ('w1wait' in OPT and q>=3): g.append(('s',f"s_add_u32 m0, s69, {slot*SLOT+mat*12288}"))
            if i==0 and mat==0: g.append(('s',f"s_add_u32 s71, s68, {q*64*2752}"))
            nt=' nt' if (('ntw1e' in OPT and q<3) or ('ntw1l' in OPT and q>=3)) else ''
            g.append(('m',('W1',q,3*mat+i),f"buffer_load_dwordx4 v{2+3*mat+i}, {SRD_A if mat==0 else SRD_B}, s71 offen offset:{i*1024}{nt} lds"))
            out.append(g)
    return out

W1R=200
def w1_reg(vmkey='W1R'):
    out=[]; n=0
    for q in (3,4):
        for mat in range(2):
            for i in range(3):
                g=[]
                if i==0 and mat==0: g.append(('s',f"s_add_u32 s71, s68, {q*64*2752}"))
                g.append(('m',(vmkey,n),f"buffer_load_dwordx4 a[{W1R+4*n}:{W1R+4*n+3}], v{2+3*mat+i}, {SRD_A if mat==0 else SRD_B}, s71 offen offset:{i*1024}"))
                out.append(g); n+=1
    return out
def w1_reg_write(p):
    p(f"s_add_u32 s3, s69, {3*SLOT}"); p("v_add_u32 v13, s3, v9")
    n=0
    for q in (3,4):
        for mat in range(2):
            for i in range(3):
                p(f"ds_write_b128 v13, a[{W1R+4*n}:{W1R+4*n+3}] offset:{(q-3)*SLOT+mat*12288+i*1024}"); n+=1

WOA=128
def wo_frag_reads():
    out=[]
    for i in range(16):
        for cc,va in enumerate(('v10','v1')):
            b=WOA+8*i+4*cc
            out.append(f"ds_read_b64_tr_b16 v[{b}:{b+1}], {va} offset:{i*2048}")
            out.append(f"ds_read_b64_tr_b16 v[{b+2}:{b+3}], {va} offset:{i*2048+512}")
    return out

def wo_phase(p):
    if 'glue2' in OPT:
        flag_off(p,F2); p("s_waitcnt vmcnt(0)"); set_flag(p,'s3',12)
    else:
        p("s_waitcnt vmcnt(0)")
        flag_off(p,F2); set_flag(p,'s3',12)
    stamp(p,'C flag set',vt=14)
    p("s_barrier")
    WW=os.environ.get('WW','3,4,5').split(',') if 'w1wait' in OPT else []
    class NV2:
        def issue(s_,k,t): p(t)
    def wdma(q):
        for g in w1_dma(q): emit_group(p,NV2(),g)
    if '3' in WW: wdma(3)
    p("v_and_b32 v12, 31, v0"); p("v_lshlrev_b32 v12, 2, v12")
    p("s_lshl_b32 s30, s4, 7"); p(f"s_add_u32 s30, s30, {F2}")
    p("s_lshl_b32 s31, s61, 5"); p("s_and_b32 s3, s6, 1"); p("s_lshl_b32 s3, s3, 4"); p("s_add_u32 s31, s31, s3")
    p("s_lshl_b32 s31, s31, 10"); p(f"s_add_u32 s31, s31, {L.OF}")
    poll(p,'s2',SRD_WS,'s30','v12',1,13)
    stamp(p,'C S2 done',vt=14)
    vm=VM(p)
    WOLA=int(os.environ.get('WOLA','8'))
    def ldO(i):
        if i%4==0 and i: p(f"s_add_u32 s31, s31, 4096")
        vm.issue(i,f"buffer_load_dwordx4 a[{4*i}:{4*i+3}], v9, {SRD_WS}, s31 offen offset:{(i%4)*1024}{HL1}")
    for i in range(WOLA): ldO(i)
    ACC=[64,80]
    if 'w1reg' in OPT: w1_reg_write(p)
    dm=[] if 'w1late' in OPT else w1_dma(3)+w1_dma(4)+w1_dma(5)
    for j in range(8): p(f"v_accvgpr_read_b32 v{112+j}, a{192+j}")
    RC='rescin' in OPT
    if RC:
        for j in range(8):
            p(f"v_lshlrev_b32 v{64+2*j}, 16, v{112+j}")
            p(f"v_and_b32 v{65+2*j}, 0xffff0000, v{112+j}")
    for i in range(16):
        vm.wait(i)
        for cc in ((1,0) if 'last10' in OPT else (0,1)):
            a=ACC[cc]; b=WOA+8*i+4*cc
            p(f"v_mfma_f32_32x32x16_bf16 v[{a}:{a+15}], v[{b}:{b+3}], a[{4*i}:{4*i+3}], {'0' if (i==0 and not (RC and cc==0)) else f'v[{a}:{a+15}]'}")
            if i+WOLA<16 and cc==(1 if 'last10' in OPT else 0): ldO(i+WOLA)
            if dm and (cc==0 or i<2): emit_group(p,vm,dm.pop(0))
    assert not dm
    for j in range(8):
        if RC: break
        p(f"v_lshlrev_b32 v{96+2*j}, 16, v{112+j}")
        p(f"v_and_b32 v{97+2*j}, 0xffff0000, v{112+j}")
    stamp(p,'C mfma',vt=14)
    if '4' in WW: wdma(4)
    if 'glue2' in OPT:
        p("s_lshl_b32 s71, s61, 5"); p("s_lshl_b32 s7, s62, 1"); p("s_add_u32 s71, s71, s7"); p("s_lshl_b32 s71, s71, 10"); p(f"s_add_u32 s71, s71, {L.HF}")
    pair_reduce(p,ACC,RED)
    for j in range(0 if RC else 8): p(f"v_pk_add_f32 v[{64+2*j}:{65+2*j}], v[{64+2*j}:{65+2*j}], v[{96+2*j}:{97+2*j}]")
    if 'pnorm' in OPT:
        wo_tail_pnorm(p); return
    for j in range(8): p(f"v_cvt_pk_bf16_f32 v{32+j}, v{64+2*j}, v{65+2*j}")
    hb='s3'
    if 'glue2' in OPT: hb='s71'
    else: p("s_lshl_b32 s3, s61, 5"); p("s_lshl_b32 s7, s62, 1"); p("s_add_u32 s3, s3, s7"); p("s_lshl_b32 s3, s3, 10"); p(f"s_add_u32 s3, s3, {L.HF}")
    hstore(p,[f"buffer_store_dwordx4 v[32:35], v9, {SRD_WS}, {hb} offen",
              f"buffer_store_dwordx4 v[36:39], v9, {SRD_WS}, {hb} offen offset:1024"])
    p("v_pk_mul_f32 v[42:43], v[64:65], v[64:65]"); p("v_pk_add_f32 v[40:41], v[64:65], v[66:67]")
    p("v_pk_fma_f32 v[42:43], v[66:67], v[66:67], v[42:43]")
    for j in range(2,8):
        p(f"v_pk_add_f32 v[40:41], v[40:41], v[{64+2*j}:{65+2*j}]"); p(f"v_pk_fma_f32 v[42:43], v[{64+2*j}:{65+2*j}], v[{64+2*j}:{65+2*j}], v[42:43]")
    p("v_add_f32 v40, v40, v41"); p("v_add_f32 v41, v42, v43")
    p("v_mov_b32 v42, v40"); p("v_mov_b32 v43, v41")
    p("v_permlane32_swap_b32 v40, v42"); p("v_permlane32_swap_b32 v41, v43")
    p("v_add_f32 v40, v40, v42"); p("v_add_f32 v41, v41, v43")
    p("s_lshl_b32 s3, s61, 12"); p("s_lshl_b32 s7, s62, 8"); p("s_add_u32 s3, s3, s7"); p(f"s_add_u32 s3, s3, {L.HS}")
    p("v_lshlrev_b32 v12, 3, v0")
    if 'hsflag' in OPT:
        for j in range(8): p(f"v_accvgpr_write_b32 a{248+j}, v{32+j}")
        p("s_waitcnt vmcnt(0)")
        p("s_mov_b32 exec_hi, 0")
        hstore(p,f"buffer_store_dwordx2 v[40:41], v12, {SRD_WS}, s3 offen")
        p("s_mov_b64 exec, -1")
        stamp(p,'C done',vt=14)
        return
    p("s_mov_b32 exec_hi, 0")
    hstore(p,f"buffer_store_dwordx2 v[40:41], v12, {SRD_WS}, s3 offen")
    p("s_mov_b64 exec, -1")
    for j in range(8): p(f"v_accvgpr_write_b32 a{248+j}, v{32+j}")
    flag_off(p,F3)
    p("s_waitcnt vmcnt(0)")
    set_flag(p,'s3',12)
    stamp(p,'C done',vt=14)

def ln_stats(p,b):
    for i in range(2):
        p(f"v_pk_add_f32 v[{b+4*i}:{b+1+4*i}], v[{b+4*i}:{b+1+4*i}], v[{b+2+4*i}:{b+3+4*i}]")
        p(f"v_pk_add_f32 v[{b+8+4*i}:{b+9+4*i}], v[{b+8+4*i}:{b+9+4*i}], v[{b+10+4*i}:{b+11+4*i}]")
    p(f"v_pk_add_f32 v[{b}:{b+1}], v[{b}:{b+1}], v[{b+4}:{b+5}]"); p(f"v_pk_add_f32 v[{b+8}:{b+9}], v[{b+8}:{b+9}], v[{b+12}:{b+13}]")
    p(f"v_pk_add_f32 v[16:17], v[{b}:{b+1}], v[{b+8}:{b+9}]")
    p("v_mov_b32 v18, v16"); p("v_mov_b32 v19, v17")
    p("v_permlane32_swap_b32 v16, v18"); p("v_permlane32_swap_b32 v17, v19")
    p("v_add_f32 v16, v16, v18"); p("v_add_f32 v17, v17, v19")
    p(f"v_mul_f32 v16, {hx(f2u(1/512))}, v16"); p(f"v_mul_f32 v17, {hx(f2u(1/512))}, v17")
    p("v_fma_f32 v17, -v16, v16, v17"); p("v_max_f32 v17, 0, v17"); p(f"v_add_f32 v17, {hx(f2u(1e-5))}, v17")
    p("v_rsq_f32 v17, v17"); p("v_mul_f32 v16, v16, v17"); p("v_sub_f32 v18, 0, v16"); p("v_mov_b32 v19, v18"); p("v_mov_b32 v16, v17")

def wo_tail_pnorm(p):
    p("v_pk_mul_f32 v[42:43], v[64:65], v[64:65]"); p("v_pk_add_f32 v[40:41], v[64:65], v[66:67]")
    p("v_pk_fma_f32 v[42:43], v[66:67], v[66:67], v[42:43]")
    for j in range(2,8):
        p(f"v_pk_add_f32 v[40:41], v[40:41], v[{64+2*j}:{65+2*j}]"); p(f"v_pk_fma_f32 v[42:43], v[{64+2*j}:{65+2*j}], v[{64+2*j}:{65+2*j}], v[42:43]")
    p("v_add_f32 v40, v40, v41"); p("v_add_f32 v41, v42, v43")
    p("v_mov_b32 v42, v40"); p("v_mov_b32 v43, v41")
    p("v_permlane32_swap_b32 v40, v42"); p("v_permlane32_swap_b32 v41, v43")
    p("s_lshl_b32 s31, s61, 12"); p(f"s_add_u32 s31, s31, {L.HS}"); p("s_lshl_b32 s7, s62, 8"); p("s_add_u32 s3, s31, s7")
    p("v_add_f32 v40, v40, v42"); p("v_add_f32 v41, v41, v43")
    p("v_lshlrev_b32 v12, 3, v0")
    p("s_mov_b32 exec_hi, 0")
    hstore(p,f"buffer_store_dwordx2 v[40:41], v12, {SRD_WS}, s3 offen")
    p("s_mov_b64 exec, -1")
    p("v_and_b32 v12, 31, v0"); p("v_lshlrev_b32 v12, 3, v12"); p("v_lshrrev_b32 v13, 5, v0"); p("v_lshl_add_u32 v30, v13, 11, v12")
    def lds_():
        for i in range(8): p(f"buffer_load_dwordx2 v[{96+2*i}:{97+2*i}], v30, {SRD_WS}, s31 offen offset:{i*256} sc1")
    lds_()
    for j in range(8): p(f"v_cvt_pk_bf16_f32 v{32+j}, v{64+2*j}, v{65+2*j}")
    for j in range(8): p(f"v_accvgpr_write_b32 a{248+j}, v{32+j}")
    p("s_lshl_b32 s3, s61, 5"); p("s_lshl_b32 s7, s62, 1"); p("s_add_u32 s3, s3, s7"); p("s_lshl_b32 s3, s3, 10"); p(f"s_add_u32 s30, s3, {L.HF}")
    p(f"s_mov_b32 s29, {SPIN}")
    p.label("POLL_hs")
    p("s_waitcnt vmcnt(0)")
    p("v_max3_u32 v112, v97, v99, v101"); p("v_max3_u32 v113, v103, v105, v107"); p("v_max3_u32 v112, v112, v109, v111"); p("v_max_u32 v112, v112, v113")
    p("v_cmp_eq_u32 vcc, -1, v112")
    p("s_cmp_eq_u64 vcc, 0"); p("s_cbranch_scc1 POLLD_hs")
    p("s_sub_u32 s29, s29, 1"); p("s_cmp_eq_u32 s29, 0"); p("s_cbranch_scc1 POLLD_hs")
    lds_()
    p("s_branch POLL_hs")
    p.label("POLLD_hs")
    stamp(p,'C stats',vt=12)
    ln_stats(p,96)
    for j in range(8): p(f"v_pk_fma_f32 v[{64+2*j}:{65+2*j}], v[{64+2*j}:{65+2*j}], v[16:17], v[18:19]")
    for j in range(8): p(f"v_cvt_pk_bf16_f32 v{32+j}, v{64+2*j}, v{65+2*j}")
    hstore(p,[f"buffer_store_dwordx4 v[32:35], v9, {SRD_WS}, s30 offen",
              f"buffer_store_dwordx4 v[36:39], v9, {SRD_WS}, s30 offen offset:1024"])
    flag_off(p,F3)
    p("s_waitcnt vmcnt(0)")
    set_flag(p,'s3',12)
    stamp(p,'C done',vt=14)
    if 'w1wait' in OPT and '5' in os.environ.get('WW','3,4,5').split(','):
        class NV2:
            def issue(s_,k,t): p(t)
        for g in w1_dma(5): emit_group(p,NV2(),g)

def flag_off(p,F):
    p("s_lshl_b32 s3, s4, 7"); p("s_lshl_b32 s7, s5, 4"); p("s_add_u32 s3, s3, s7"); p("s_lshl_b32 s7, s6, 2"); p("s_add_u32 s3, s3, s7")
    p(f"s_add_u32 s3, s3, {F}")

def pair_reduce(p,ACC,base):
    p(f"s_lshl_b32 s3, s6, 12"); p(f"s_add_u32 s3, s3, {base}")
    p("v_add_u32 v12, s3, v9")
    for q in range(4): p(f"ds_write_b128 v12, v[{ACC[1]+4*q}:{ACC[1]+4*q+3}] offset:{q*1024}")
    p("v_xor_b32 v12, 4096, v12")
    p("s_waitcnt lgkmcnt(0)")
    p("s_barrier")
    for q in range(4): p(f"ds_read_b128 v[{ACC[1]+4*q}:{ACC[1]+4*q+3}], v12 offset:{q*1024}")
    for q in range(4):
        p(f"s_waitcnt lgkmcnt({3-q})")
        for j in range(2):
            a=ACC[0]+4*q+2*j; b=ACC[1]+4*q+2*j
            p(f"v_pk_add_f32 v[{a}:{a+1}], v[{a}:{a+1}], v[{b}:{b+1}]")

def ffn1_phase(p):
    p("s_lshr_b32 s70, s4, 1"); p("s_lshl_b32 s70, s70, 2"); p("s_add_u32 s70, s70, s6")
    if 'wdpf' in OPT:
        p("v_lshrrev_b32 v1, 3, v0"); p("v_and_b32 v10, 7, v0")
        w128_voff(p,'v1')
        p("s_lshl_b32 s74, s6, 12"); p("s_lshl_b32 s77, s6, 15")
        p("s_lshr_b32 s3, s6, 1"); p(f"s_mul_i32 s75, s3, {43*16*1024}")
    lane_params(p)
    p("v_mul_u32_u24 v10, 192, v14"); p("v_add_u32 v10, v10, v96")
    p(f"v_mul_u32_u24 v97, {12288+32}, v15"); p("v_add_u32 v28, v10, v97")
    p(f"v_mul_u32_u24 v97, {12288+32-192}, v15"); p("v_add_u32 v29, v10, v97")
    p("v_and_b32 v12, 31, v0"); p("v_lshlrev_b32 v12, 3, v12"); p("v_lshrrev_b32 v13, 5, v0"); p("v_lshl_add_u32 v30, v13, 11, v12")
    p("v_lshlrev_b32 v12, 2, v0")
    p("s_lshr_b32 s30, s4, 1"); p("s_lshl_b32 s30, s30, 8"); p(f"s_add_u32 s30, s30, {F3}")
    HSF='hsflag' in OPT
    G2='glue2' in OPT and HSF
    def pre_b():
        srd(p,24,P_WD,1376*1024)
        p("s_lshr_b32 s79, s2, 3"); p("s_lshl_b32 s79, s79, 2"); p("s_add_u32 s79, s79, s6"); p("s_mul_i32 s79, s79, 11008")
        p("v_lshlrev_b32 v14, 6, v0")
        p("s_lshl_b32 s30, s70, 15"); p(f"s_add_u32 s30, s30, {L.HF}")
    if G2: pre_b()
    if HSF:
        p("s_lshl_b32 s31, s70, 12"); p(f"s_add_u32 s31, s31, {L.HS}")
        p(f"s_mov_b32 s29, {SPIN}")
        p.label("POLL_hs3")
        for i in range(8): p(f"buffer_load_dwordx2 v[{32+2*i}:{33+2*i}], v30, {SRD_WS}, s31 offen offset:{i*256} sc1")
        p("s_waitcnt vmcnt(0)")
        p("v_max3_u32 v48, v33, v35, v37"); p("v_max3_u32 v49, v39, v41, v43"); p("v_max3_u32 v48, v48, v45, v47"); p("v_max_u32 v48, v48, v49")
        p("v_cmp_eq_u32 vcc, -1, v48")
        p("s_cmp_eq_u64 vcc, 0"); p("s_cbranch_scc1 POLLD_hs3")
        p("s_sub_u32 s29, s29, 1"); p("s_cmp_lg_u32 s29, 0"); p("s_cbranch_scc1 POLL_hs3")
        p.label("POLLD_hs3")
    else: poll(p,'s3',SRD_WS,'s30','v12',1,13)
    stamp(p,'D S3 done',vt=12)
    if not G2: pre_b()
    vm=VM(p)
    def ldB(s):
        p(f"s_add_u32 s3, s30, {s*1024}")
        vm.issue(('B',s),f"buffer_load_dwordx4 v[{128+4*s}:{131+4*s}], v9, {SRD_WS}, s3 offen{HL1}")
    if not G2: p("s_lshl_b32 s31, s70, 12"); p(f"s_add_u32 s31, s31, {L.HS}")
    PN='pnorm' in OPT
    ldB(0)
    if not PN and not HSF:
        for i in range(8): vm.issue(('S',i),f"buffer_load_dwordx2 v[{32+2*i}:{33+2*i}], v30, {SRD_WS}, s31 offen offset:{i*256}{HL1}")
    LA=int(os.environ.get('LA1','8'))
    LA10=min(LA,int(os.environ.get('LA10',str(LA))))
    for s in range(1,LA10): ldB(s)
    NEW='w1late' in OPT
    if not NEW: p("s_barrier")
    AB=[0,24]
    def rdA(s):
        q,ss=divmod(s,4); b=AB[s%2]; out=[]
        for uu in range(6):
            va='v10' if uu<5 else 'v11'
            off=ss*3072+uu*32
            out.append(f"ds_read_b64_tr_b16 a[{b+4*uu}:{b+4*uu+1}], {va} offset:{off}")
            out.append(f"ds_read_b64_tr_b16 a[{b+4*uu+2}:{b+4*uu+3}], {va} offset:{off+768}")
        return out
    def setbase(q):
        slot=q%6
        return [f"v_add_u32 v10, {slot*SLOT}, v28", f"v_add_u32 v11, {slot*SLOT}, v29"]
    for x in setbase(0): p(x)
    for x in rdA(0): p(x)
    if not PN:
        if not HSF: vm.wait(('S',7))
        ln_stats(p,32)
    def norm(s):
        out=[]
        if PN: return out
        if 'pknorm' in OPT:
            for i in range(4):
                r=128+4*s+i; t0=20+2*i; t1=21+2*i
                out.append(f"v_lshlrev_b32 v{t0}, 16, v{r}"); out.append(f"v_and_b32 v{t1}, 0xffff0000, v{r}")
            for i in range(4):
                t0=20+2*i
                out.append(f"v_pk_fma_f32 v[{t0}:{t0+1}], v[{t0}:{t0+1}], v[16:17], v[18:19]")
            for i in range(4):
                r=128+4*s+i; t0=20+2*i; t1=21+2*i
                out.append(f"v_cvt_pk_bf16_f32 v{r}, v{t0}, v{t1}")
            return out
        for h2 in range(2):
            for i in (2*h2,2*h2+1):
                r=128+4*s+i; t0=20+2*i; t1=21+2*i
                out.append(f"v_lshlrev_b32 v{t0}, 16, v{r}"); out.append(f"v_and_b32 v{t1}, 0xffff0000, v{r}")
            for i in (2*h2,2*h2+1):
                t0=20+2*i; t1=21+2*i
                out.append(f"v_fma_f32 v{t0}, v{t0}, v16, v18"); out.append(f"v_fma_f32 v{t1}, v{t1}, v16, v18")
            for i in (2*h2,2*h2+1):
                r=128+4*s+i; t0=20+2*i; t1=21+2*i
                out.append(f"v_cvt_pk_bf16_f32 v{r}, v{t0}, v{t1}")
        return out
    vm.wait(('B',0))
    for x in norm(0): p(x)
    stamp(p,'D start',vt=12)
    ACC=[32+16*u for u in range(6)]
    dmas=w1_dma(6)+w1_dma(7)
    DS={}; BAR={}
    def wd_group(g0,vb=4):
        out=[]
        for j in range(4):
            g=[]
            if j==0 or 'w1wait' in OPT: g.append(('s',f"s_add_u32 m0, s74, {g0*4096}"))
            if j==0:
                g.append(('s',f"s_add_u32 s76, s77, {(g0//20)*43*16*1024+(g0%20)*32768}"))
            g.append(('m',('WD',g0,j),f"buffer_load_dwordx4 v{vb+j}, {SRD_O}, s76 offen offset:{j*1024}{' nt' if 'ntwd' in OPT else ''} lds"))
            out.append(g)
        return out
    WDPF='wdpf' in OPT
    if NEW:
        def put(items,s0,per):
            for n,g in enumerate(items): DS.setdefault(s0+n//per,[]).append(g)
        SWS=15
        if 'w1wait' in OPT:
            assert WDPF and PN
            WW=os.environ.get('WW','3,4,5').split(',')
            late=[q for q in (3,4,5) if str(q) not in WW]
            put(sum((w1_dma(q) for q in late),[]),0,2)
            put(w1_dma(6),8,1); put(w1_dma(7),14,1)
            BAR={8:[('W1',q,5) for q in late],20:[('W1',6,5)]}
            SWS=19
            p("v_mov_b32 v20, v1")
            for j in range(1,4): p(f"v_add_u32 v{20+j}, {7168*j}, v1")
            put(wd_group(36,20),int(os.environ.get('RA0','2')),1)
        elif 'w1reg' in OPT:
            put(w1_dma(5),int(os.environ.get('W5S','0')),int(os.environ.get('W5P','2'))); put(dmas,9,2)
            BAR={8:[],14:[('W1',5,5)],20:[('W1',7,5)]}
        else:
            put(w1_dma(3),0,2); put(w1_dma(4)+w1_dma(5),3,2); put(dmas,9,2)
            BAR={8:[('W1',3,5)],14:[('W1',5,5)],20:[('W1',7,5)]}
        if WDPF:
            if 'w1wait' not in OPT: put(wd_group(36),16,1)
            put(sum((wd_group(g) for g in (12,16,20,24)),[]),20,2)
            put(sum((wd_group(g) for g in (28,32)),[]),28,2)
            BAR[24]=[('W1',7,5)] if 'w1wait' in OPT else []
    if 'x_nods' in OPT:
        DS={}; BAR={k:[] for k in BAR}
    if 'x_nods2' in OPT:
        DS={k:v for k,v in DS.items() if k<15};
    DPL=tuple(int(x) for x in os.environ.get('DPL','3,5,4').split(','))
    SKP={int(x):n for n,x in enumerate(os.environ.get('SKP','0,1,2,3').split(','))}
    if 'skew0' in OPT: BAR[int(os.environ.get('SK0','1'))]=[]
    def f1loop(NU,vm):
      H=NU//2
      nb=[LA10]
      def ldB(s):
          if 'x_nob' in OPT:
              vm.pos[('B',s)]=vm.pos[('B',0)]; return
          p(f"s_add_u32 s3, s30, {s*1024}")
          vm.issue(('B',s),f"buffer_load_dwordx4 v[{128+4*s}:{131+4*s}], v9, {SRD_WS}, s3 offen{HL1}")
      for s in range(32):
          nxt=s+1
          pre=[]; rd=[]; fill=[]; mem=[]
          SKEW='skew' in OPT
          if NEW:
              if s in BAR and not SKEW:
                  if BAR[s]: vm.wait(*BAR[s])
                  p("s_barrier")
          elif s==8:
              p("s_barrier")
          if B2:
              for j in (LA+2*s,LA+2*s+1):
                  if j<32: mem.append(('B',j))
          elif LA10<LA:
              for _ in range(2):
                  if nb[0]<32 and nb[0]<=s+LA: mem.append(('B',nb[0])); nb[0]+=1
          elif s+LA<32: mem.append(('B',s+LA))
          if not NEW and 8<=s<20: mem.append(('D',s-8))
          if 'warm' in OPT and 'wdatt' not in OPT and WD_STEP<=s<WD_STEP+3: mem.append(('W',s-WD_STEP))
          if 'pt' in OPT and s==PT_STEP: mem.append(('P',0))
          if 'ptout' in OPT and s==int(os.environ.get('PTO_STEP','29')): mem.append(('O',0))
          if nxt<32:
              qn,ssn=divmod(nxt,4)
              if nxt==24 and not NEW:
                  vm.wait(('W1',7,5))
                  p("s_barrier")
              if ssn==0: pre=setbase(qn)
              rd=rdA(nxt)[:2*NU]; fill=norm(nxt)
          if 'x_nofill' in OPT: fill=[]
          if 'x_nord' in OPT: rd=[]
          if 'x_nodma' in OPT and s!=19: mem=[m for m in mem if m[0]!='D']
          if 'x_nodma' in OPT and s==19: mem=[('B',s+LA)]; vm.pos[('W1',7,5)]=vm.n-1
          if 'oldwait' in OPT: p("s_waitcnt lgkmcnt(0)")
          for x in pre: p(x)
          if PN: vm.wait(('B',s))
          elif nxt<32: vm.wait(('B',nxt))
          b=AB[s%2]
          mf=[f"v_mfma_f32_32x32x16_bf16 v[{ACC[uu]}:{ACC[uu]+15}], a[{b+4*uu}:{b+4*uu+3}], v[{128+4*s}:{131+4*s}], {'0' if s==0 else f'v[{ACC[uu]}:{ACC[uu]+15}]'}" for uu in range(NU)]
          fi=0
          KS=[3,3,3,3,2,2] if 'pknorm' in OPT else ([3,4,3,3,4,3] if NU==6 else [5,5,5,5])
          for uu in range(NU):
              if 'oldwait' not in OPT:
                  if 'wait6' in OPT: p(f"s_waitcnt lgkmcnt({10 if nxt<32 else 2*(5-uu)})")
                  elif uu in (0,H): p(f"s_waitcnt lgkmcnt({2*H if (nxt<32 or uu==0) else 0})")
              p(mf[uu])
              for x in rd[2*uu:2*uu+2]: p(x)
              k=KS[uu]
              for x in fill[fi:fi+k]: p(x)
              fi+=k
              if NEW and SKEW and s in BAR and uu in SKP:
                  lab=f"SKW_{s}_{uu}"
                  p(f"s_cmp_lg_u32 s6, {SKP[uu]}"); p(f"s_cbranch_scc1 {lab}")
                  if BAR[s]: vm.wait(*BAR[s])
                  p("s_barrier")
                  p.label(lab)
              if uu==1 and mem and mem[0][0]=='B': ldB(mem[0][1])
              if NEW:
                  for n,g in enumerate(DS.get(s,[])):
                      if (DPL if NU==6 else (2,3,3))[n]==uu: emit_group(p,vm,g)
                  if WDPF and s==SWS and uu==NU-1:
                      p("v_mov_b32 v4, v1")
                      for j in range(1,4): p(f"v_add_u32 v{4+j}, {7168*j}, v1")
              if uu==min(4,NU-1) and len(mem)>1 and mem[1][0]=='B': ldB(mem[1][1])
              if uu==3:
                  for m in mem:
                      if m[0]=='D':
                          emit_group(p,vm,dmas[m[1]])
                      if m[0]=='P':
                          p("s_mul_i32 s3, s70, 86"); p("s_add_u32 s3, s3, s66"); p("s_lshl_b32 s3, s3, 10"); p(f"s_add_u32 s3, s3, {L.AF}")
                          p("v_lshlrev_b32 v13, 7, v0"); p("s_lshl_b32 s7, s67, 3"); p("s_bfm_b64 exec, s7, 0")
                          vm.issue(('P',0),f"buffer_load_dword v15, v13, {SRD_WS}, s3 offen ; nowaitcheck")
                          p("s_mov_b64 exec, -1")
                      if m[0]=='O':
                          srd(p,16,P_OUT,2048*1024)
                          p("s_lshl_b32 s3, s62, 6")
                          vm.issue(('O',0),f"buffer_load_dword v15, v8, {SRD_A}, s3 offen ; nowaitcheck")
                      if m[0]=='W':
                          p(f"s_add_u32 s3, s79, {m[1]*4096}")
                          vm.issue(('W',m[1]),f"buffer_load_dword v15, v14, {SRD_O}, s3 offen ; nowaitcheck")
          for x in fill[fi:]: p(x)
    if 'four' in OPT:
        import copy
        vm4=copy.copy(vm); vm4.pos=dict(vm.pos)
        p("s_cmp_eq_u32 s67, 4"); p("s_cbranch_scc1 F1L_4")
        f1loop(6,vm)
        p("s_branch F1L_end")
        p.label("F1L_4")
        f1loop(4,vm4)
        p.label("F1L_end")
    else: f1loop(6,vm)
    stamp(p,'D mfma done',vt=12)
    if NEW and WDPF:
        WD=[[x[1] if x[0]=='s' else x[2] for x in g] for g0 in (0,4,8) for g in wd_group(g0)]
    else:
        p("v_lshrrev_b32 v1, 3, v0"); p("v_and_b32 v10, 7, v0")
        w128_voff(p,'v4')
        for j in range(1,4): p(f"v_add_u32 v{4+j}, {7168*j}, v4")
        p("s_lshr_b32 s3, s6, 1"); p("s_and_b32 s7, s6, 1")
        p(f"s_mul_i32 s30, s3, 81920"); p(f"s_mul_i32 s31, s7, 40960"); p("s_add_u32 s74, s30, s31")
        p(f"s_mul_i32 s75, s3, {43*16*1024}"); p(f"s_mul_i32 s31, s7, {320*1024}"); p("s_add_u32 s77, s31, s75")
        WD=dma128(['v4','v5','v6','v7'],SRD_O,'s74',0,'s77',40,sg='s71')
    if 'glue2' not in OPT: p("s_barrier")
    c1=-2*1.4426950408889634*0.7978845608028654; c2=c1*0.044715
    p(f"s_mov_b32 s72, {hx(f2u(c2))}"); p("s_mov_b32 s73, s72")
    p(f"v_mov_b32 v28, {hx(f2u(c1))}"); p("v_mov_b32 v29, v28")
    p("v_mov_b32 v30, 1.0"); p("v_mov_b32 v31, 1.0")
    p("s_mul_i32 s30, s70, 86"); p("s_add_u32 s30, s30, s66"); p("s_lshl_b32 s30, s30, 10"); p(f"s_add_u32 s30, s30, {L.AF}")
    if 'glue2' in OPT: p("s_barrier")
    S4S='s4split' in OPT
    if S4S: flag_off(p,F3); p("s_mov_b32 s80, s3")
    NDU=[8,8,8,8,4,4]
    if NEW and WDPF: NDU=[int(x) for x in os.environ.get('NDU','3,3,3,3,0,0').split(',')]
    k0=0
    for uu in range(6):
        a=ACC[uu]; T=16
        if uu==4:
            p("s_cmp_eq_u32 s67, 4"); p("s_cbranch_scc1 F1_four")
        pr=lambda x,j: f"v[{x+2*j}:{x+2*j+1}]"
        I=[]
        for j in range(4): I.append(f"v_pk_mul_f32 {pr(T,j)}, {pr(a,j)}, {pr(a,j)}")
        for j in range(4): I.append(f"v_pk_fma_f32 {pr(T,j)}, {pr(T,j)}, s[72:73], v[28:29]")
        for j in range(4): I.append(f"v_pk_mul_f32 {pr(T,j)}, {pr(T,j)}, {pr(a,j)}")
        for j in range(8): I.append(f"v_exp_f32 v{T+j}, v{T+j}")
        for j in range(4): I.append(f"v_pk_mul_f32 {pr(a,j)}, {pr(a,j)}, {pr(a+8,j)}")
        for j in range(4): I.append(f"v_pk_add_f32 {pr(T,j)}, {pr(T,j)}, v[30:31]")
        for j in range(8): I.append(f"v_rcp_f32 v{T+j}, v{T+j}")
        for j in range(4): I.append(f"v_pk_mul_f32 {pr(T,j)}, {pr(T,j)}, {pr(a,j)}")
        for j in range(4): I.append(f"v_cvt_pk_bf16_f32 v{24+j}, v{T+2*j}, v{T+2*j+1}")
        G=WD[k0:k0+NDU[uu]]; k0+=NDU[uu]
        gap=len(I)//max(len(G),1)
        for n,x in enumerate(I):
            p(x)
            if n%gap==gap-1 and G:
                for y in G.pop(0): p(y)
        assert not G
        hstore(p,f"buffer_store_dwordx4 v[24:27], v9, {SRD_WS}, s30 offen offset:{(uu%4)*1024}")
        if uu==3: p("s_add_u32 s30, s30, 4096")
        if S4S and uu==int(os.environ.get('F4A','4')):
            p(f"s_waitcnt vmcnt({sum(NDU[3:uu+1])+uu-2})")
            set_flag(p,'s80',12)
    p("s_branch F1_done")
    p.label("F1_four")
    for g in WD[sum(NDU[:4]):]:
        for y in g: p(y)
    if S4S:
        p("s_waitcnt vmcnt(0)")
        set_flag(p,'s80',12)
    p.label("F1_done")
    stamp(p,'D epi done',vt=12)

def ffn2_phase(p):
    S4S='s4split' in OPT
    flag_off(p,F4)
    if S4S:
        p("v_lshlrev_b32 v50, 2, v0")
        p("s_lshr_b32 s30, s4, 1"); p("s_lshl_b32 s30, s30, 8"); p(f"s_add_u32 s81, s30, {F4}"); p(f"s_add_u32 s30, s30, {F3}")
        p(f"buffer_load_dword v48, v50, {SRD_WS}, s30 offen sc1")
    p("s_waitcnt vmcnt(0)")
    set_flag(p,'s3',12)
    stamp(p,'E flag set',vt=12)
    srd(p,16,P_WD,1376*1024)
    srd(p,24,P_OUT,2048*1024)
    lane_params(p)
    p("s_and_b32 s3, s6, 1"); p("s_lshl_b32 s3, s3, 2")
    tr_base128(p,'v10',"s3",0)
    p("s_and_b32 s3, s6, 1"); p("s_mul_i32 s3, s3, 81920")
    p("v_add_u32 v10, s3, v10")
    p("v_xor_b32 v11, 64, v10")
    p("v_add_u32 v14, 49152, v10"); p("v_add_u32 v15, 49152, v11")
    RC='rescin' in OPT
    if RC:
        for j in range(8): p(f"v_accvgpr_read_b32 v{52+j}, a{248+j}")
        for j in range(8):
            p(f"v_lshlrev_b32 v{64+2*j}, 16, v{52+j}")
            p(f"v_and_b32 v{65+2*j}, 0xffff0000, v{52+j}")
    p("s_barrier")
    AB=[16+8*b for b in range(4)]
    ACC=[64,80]; NS=43
    LA=int(os.environ.get('LA2','8'))
    def orders(kh):
        if not S4S: return list(range(NS)),0,[0,1,2]
        u0=[4*m+2*min(m,11) for m in range(16)]; nu=[6 if m<11 else 4 for m in range(16)]
        early=set()
        for m in range(16):
            for k in range(3 if nu[m]==6 else 4): early.add(u0[m]+k)
        e=[s for s in range(40) if 43*kh+s in early]; l=[s for s in range(40) if 43*kh+s not in early]
        o=e+l+[40,41,42]
        return o,len(e),o[:3]
    def mkrd(order,reuse):
        def rd(i,ccs=(0,1)):
            b=AB[i%4]; st=order[i]
            j=st if st<40 else reuse[st-40]
            off=j*2048
            va=('v10','v11')
            if j>=24: va=('v14','v15'); off-=49152
            for cc in ccs:
                p(f"ds_read_b64_tr_b16 v[{b+4*cc}:{b+4*cc+1}], {va[cc]} offset:{off}")
                p(f"ds_read_b64_tr_b16 v[{b+4*cc+2}:{b+4*cc+3}], {va[cc]} offset:{off+512}")
        return rd
    if not S4S:
        rd=mkrd(*orders(0)[::2])
        for i in range(3): rd(i)
    p("s_and_b32 s7, s6, 1"); p("s_mul_i32 s3, s7, 3")
    p("s_lshl_b32 s76, s3, 13"); p("s_add_u32 s76, s76, s75"); p(f"s_add_u32 s76, s76, {40*16*1024}")
    p("s_lshl_b32 s77, s3, 10"); p("s_lshr_b32 s3, s6, 1"); p("s_mul_i32 s3, s3, 81920"); p("s_add_u32 s77, s77, s3")
    if S4S:
        assert orders(0)[2]==[0,1,2] and orders(1)[2]==[0,1,5]
        p("s_cmp_eq_u32 s6, 3"); p("s_cselect_b32 s78, 6144, 0"); p("s_add_u32 s78, s78, s77")
    p("s_mul_i32 s31, s61, 86"); p("s_and_b32 s3, s6, 1"); p("s_mul_i32 s3, s3, 43"); p("s_add_u32 s31, s31, s3")
    p("s_lshl_b32 s31, s31, 10"); p(f"s_add_u32 s31, s31, {L.AF}")
    if 'wbl2' in OPT: raise RuntimeError
    def check_flags(name,reg,soff,waitf):
        waitf()
        p(f"v_cmp_ne_u32 vcc, 1, v{reg}")
        p("s_cmp_eq_u64 vcc, 0"); p(f"s_cbranch_scc1 POLLD_{name}")
        p(f"s_mov_b32 s29, {SPIN}")
        p.label(f"POLL_{name}")
        p(f"buffer_load_dword v{reg}, v50, {SRD_WS}, {soff} offen sc1")
        p("s_waitcnt vmcnt(0)")
        p(f"v_cmp_ne_u32 vcc, 1, v{reg}")
        p("s_cmp_eq_u64 vcc, 0")
        p(f"s_cbranch_scc1 POLLD_{name}")
        p("s_sub_u32 s29, s29, 1"); p("s_cmp_lg_u32 s29, 0"); p(f"s_cbranch_scc1 POLL_{name}")
        p.label(f"POLLD_{name}")
    def loop(kh):
        order,ne,reuse=orders(kh)
        rd=mkrd(order,reuse)
        vm=VM(p)
        def ldB(i):
            if S4S:
                st=order[i]
                if st>=4: p(f"s_add_u32 s3, s31, {(st//4)*4096}")
                vm.issue(('B',i),f"buffer_load_dwordx4 a[{4*i}:{4*i+3}], v9, {SRD_WS}, {'s3' if st>=4 else 's31'} offen offset:{(st%4)*1024}{HL1}")
                return
            if i%4==0 and i: p(f"s_add_u32 s31, s31, 4096")
            vm.issue(('B',i),f"buffer_load_dwordx4 a[{4*i}:{4*i+3}], v9, {SRD_WS}, s31 offen offset:{(i%4)*1024}{HL1}")
        LA0=min(LA,int(os.environ.get('LA20',str(LA))))
        assert LA0==LA or not S4S
        nb=[LA0]
        for i in range(LA0): ldB(i)
        if S4S:
            for i in range(3): rd(i)
        PQ=ne-LA-int(os.environ.get('PD',str(LA)))
        assert not S4S or (0<=PQ<ne-LA and LA<=ne)
        for i in range(NS):
            if i==4:
                p("s_barrier")
                for j in range(3):
                    p(f"s_add_u32 m0, {'s78' if (S4S and j) else 's77'}, {j*1024}"); p(f"s_add_u32 s3, s76, {j*8192}")
                    vm.issue(('D',j),f"buffer_load_dwordx4 v4, {SRD_A}, s3 offen lds")
            if i==36:
                vm.wait(('D',2))
                p("s_barrier")
            if S4S and i==PQ: vm.issue(('F',0),f"buffer_load_dword v49, v50, {SRD_WS}, s81 offen sc1")
            rem=min(2,NS-1-i)
            vm.wait(('B',i),extra=f" lgkmcnt({rem*4})")
            b=AB[i%4]
            CO=(1,0) if 'last10' in OPT else (0,1)
            for cc in CO:
                a=ACC[cc]
                p(f"v_mfma_f32_32x32x16_bf16 v[{a}:{a+15}], v[{b+4*cc}:{b+4*cc+3}], a[{4*i}:{4*i+3}], {'0' if (i==0 and not (RC and cc==0)) else f'v[{a}:{a+15}]'}")
                if LA0<LA:
                    if nb[0]<NS and nb[0]<=i+LA: ldB(nb[0]); nb[0]+=1
                elif cc==CO[0] and i+LA<NS:
                    if S4S and i+LA==ne:
                        if kh==0: stamp(p,'E pre b',vt=52)
                        check_flags(f's4b{kh}',49,'s81',lambda: vm.wait(('F',0)))
                        if kh==0: stamp(p,'E post b',vt=52)
                    ldB(i+LA)
                if i+3<NS: rd(i+3,(cc,))
    if S4S:
        check_flags('s4a',48,'s30',lambda: None)
        stamp(p,'E S4 done',vt=100)
        p("s_bitcmp1_b32 s6, 0"); p("s_cbranch_scc1 F2_K1")
        loop(0)
        p("s_branch F2_end")
        p.label("F2_K1")
        loop(1)
        p.label("F2_end")
    else:
        p("v_lshlrev_b32 v12, 2, v0")
        p("s_lshr_b32 s30, s4, 1"); p("s_lshl_b32 s30, s30, 8"); p(f"s_add_u32 s30, s30, {F4}")
        poll(p,'s4',SRD_WS,'s30','v12',1,13)
        stamp(p,'E S4 done',vt=100)
        loop(0)
    stamp(p,'E mfma',vt=12)
    pair_reduce(p,ACC,8192)
    if not RC:
        for j in range(8): p(f"v_accvgpr_read_b32 v{32+j}, a{248+j}")
        for j in range(8):
            p(f"v_lshlrev_b32 v{96+2*j}, 16, v{32+j}")
            p(f"v_and_b32 v{97+2*j}, 0xffff0000, v{32+j}")
        for j in range(8): p(f"v_pk_add_f32 v[{64+2*j}:{65+2*j}], v[{64+2*j}:{65+2*j}], v[{96+2*j}:{97+2*j}]")
    for j in range(8): p(f"v_cvt_pk_bf16_f32 v{32+j}, v{64+2*j}, v{65+2*j}")
    p("s_lshl_b32 s3, s62, 6")
    OF_=os.environ.get('OUTF','').replace('_',' ')
    if 'x_outfull' in OPT:
        p("v_lshrrev_b32 v8, 3, v0"); p("v_lshlrev_b32 v8, 10, v8"); p("v_and_b32 v13, 7, v0"); p("v_lshl_add_u32 v8, v13, 4, v8")
        p("s_lshl_b32 s3, s61, 15"); p("s_and_b32 s7, s6, 1"); p("s_lshl_b32 s7, s7, 14"); p("s_add_u32 s3, s3, s7"); p("s_lshl_b32 s7, s5, 7"); p("s_add_u32 s3, s3, s7")
        p(f"buffer_store_dwordx4 v[32:35], v8, {SRD_O}, s3 offen {OF_}")
        p("s_add_u32 s3, s3, 8192")
        p(f"buffer_store_dwordx4 v[36:39], v8, {SRD_O}, s3 offen {OF_}")
        return
    p(f"buffer_store_dwordx4 v[32:35], v8, {SRD_O}, s3 offen {OF_}")
    p(f"buffer_store_dwordx4 v[36:39], v8, {SRD_O}, s3 offen offset:32 {OF_}")

def build(fname):
    p=Prog()
    end="END_K"
    prologue(p,end)
    stamp(p,'start')
    phase_a(p)
    attention(p)
    wo_phase(p)
    ffn1_phase(p)
    ffn2_phase(p)
    stamp(p,'end',vt=12)
    p.label(end)
    p("s_endpgm")
    attention_slow(p)
    emit_outl(p)
    ins=p.finalize(name='k',check_waits=not os.environ.get('NOCHECK'))
    print(f"{len(ins)} lines, {p.nops} hazard nops",file=sys.stderr)
    ref=open('sequential_preLN__grouped_kv_mqa__geglu_ffn__prompt.s.ref').read()
    hdr=ref.split('; Override')[0]
    out=hdr+f"; @launch grid=(256,1,1) block=(256,1,1) lds={LDS_TOTAL}\n"
    out+='.amdgcn_target "amdgcn-amd-amdhsa--gfx950"\n.text\n'
    out+=f".globl {KNAME}\n.p2align 8\n.type {KNAME},@function\n{KNAME}:\n"+render(ins)
    out+=f""".section .rodata,"a"
.p2align 6
.amdhsa_kernel {KNAME}
  .amdhsa_next_free_vgpr 512
  .amdhsa_next_free_sgpr 96
  .amdhsa_accum_offset 256
  .amdhsa_group_segment_fixed_size 0
  .amdhsa_kernarg_size 96
  .amdhsa_user_sgpr_count 2
  .amdhsa_user_sgpr_kernarg_segment_ptr 1
  .amdhsa_system_sgpr_workgroup_id_x 1
.end_amdhsa_kernel
"""
    open(fname,'w').write(out)

if __name__=='__main__':
    out=sys.argv[1]
    if len(sys.argv)>2: PROFILE=True
    build(out)
    open(out+'.stamps','w').write('\n'.join(STAMPS))
    if DSTAMPS: print(DSTAMPS)
```
